```python
import torch

def _softmax(x, axis=-1):
    return torch.softmax(x, dim=axis)

def _gelu(x):
    return torch.nn.functional.gelu(x, approximate='tanh')

def _silu(x):
    return torch.nn.functional.silu(x)

def _sigmoid(x):
    return torch.sigmoid(x)

def _layernorm(x, axis=-1, eps=1e-05):
    m = x.mean(dim=axis, keepdim=True)
    v = x.var(dim=axis, keepdim=True, unbiased=False)
    return (x - m) / torch.sqrt(v + eps)

def _scatter_add(tgt, idx, src, axis=0):
    return tgt.clone().index_add_(axis, idx, src)

def _segment_sum(src, seg, n):
    out = torch.zeros((n,) + src.shape[1:], dtype=src.dtype)
    return out.index_add_(0, seg, src)

def _pad(x, pw):
    flat = tuple((v for pair in reversed(pw) for v in pair))
    return torch.nn.functional.pad(x, flat)
kernel_name = 'adaLN_cond__sliding_block_cached__mixer_channel_mlp__decode'

def setup_inputs():

    _w = lambda a: (lambda t: t.to(torch.bfloat16) if t.is_floating_point() else t)(torch.as_tensor(a))

    def _A_setup():
        B, Sq, D = (2, 1, 576)
        Hq, Hkv, Sk, Dh = (32, 16, 8192, 128)
        assert Hq % Hkv == 0, (Hq, Hkv)
        return {'x': _w((lambda *s: torch.randn(*s, dtype=torch.bfloat16) * 0.1)(B, Sq, D)), 'k_cache': _w((lambda *s: torch.randn(*s, dtype=torch.bfloat16) * 0.8)(B, Hkv, Sk, Dh)), 'v_cache': _w((lambda *s: torch.randn(*s, dtype=torch.bfloat16) * 0.8)(B, Hkv, Sk, Dh)), 'wq': _w((lambda *s: torch.randn(*s, dtype=torch.bfloat16) * 0.8)(D, Hq * Dh) * D ** (-0.5)), 'wo': _w((lambda *s: torch.randn(*s, dtype=torch.bfloat16) * 0.8)(Hq * Dh, D) * (Hq * Dh) ** (-0.5))}
    _A_in = _A_setup()

    def _B_setup():
        B, S, D, F = (2, 1, 576, 4608)
        return {'x': _w((lambda *s: torch.randn(*s, dtype=torch.bfloat16) * 0.1)(B, S, D)), 'w1': _w((lambda *s: torch.randn(*s, dtype=torch.bfloat16) * 3.2)(D, F) * D ** (-0.5)), 'b1': _w((lambda *s: torch.randn(*s, dtype=torch.bfloat16) * 3.2)(F)), 'w2': _w((lambda *s: torch.randn(*s, dtype=torch.bfloat16) * 3.2)(F, D) * F ** (-0.5)), 'b2': _w((lambda *s: torch.randn(*s, dtype=torch.bfloat16) * 3.2)(D))}
    _B_in = _B_setup()
    return {'A_x': _A_in['x'], 'A_k_cache': _A_in['k_cache'], 'A_v_cache': _A_in['v_cache'], 'A_wq': _A_in['wq'], 'A_wo': _A_in['wo'], 'B_x': _B_in['x'], 'B_w1': _B_in['w1'], 'B_b1': _B_in['b1'], 'B_w2': _B_in['w2'], 'B_b2': _B_in['b2'], 'c': _w((lambda *s: torch.randn(*s, dtype=torch.bfloat16) * 0.4)(2, 576) * 8.0), 'w_mod': _w((lambda *s: torch.randn(*s, dtype=torch.bfloat16) * 0.4)(576, 6 * 576) * 576 ** (-0.5) * 8.0)}

def reference(A_x, A_k_cache, A_v_cache, A_wq, A_wo, B_x, B_w1, B_b1, B_w2, B_b2, c, w_mod):

    def _A_ref(x, k_cache, v_cache, wq, wo):
        B, Sq, D = x.shape
        Hq, Dh = (32, 128)
        Hkv, Sk = (k_cache.shape[1], k_cache.shape[2])
        W = min(4096, max(256, Sk // 4))
        rep = Hq // Hkv
        q = (lambda x, *d: x.permute(*d))((x @ wq).reshape(B, Sq, Hq, Dh), 0, 2, 1, 3)
        k = (lambda x, n, axis: torch.repeat_interleave(x, n, dim=axis))(k_cache[:, :, Sk - W:, :], rep, axis=1)
        v = (lambda x, n, axis: torch.repeat_interleave(x, n, dim=axis))(v_cache[:, :, Sk - W:, :], rep, axis=1)
        scores = torch.einsum('bhqd,bhkd->bhqk', q, k) * Dh ** (-0.5)
        p = _softmax(scores, axis=-1)
        o = torch.einsum('bhqk,bhkd->bhqd', p, v)
        return (lambda x, *d: x.permute(*d))(o, 0, 2, 1, 3).reshape(B, Sq, Hq * Dh) @ wo

    def _B_ref(x, w1, b1, w2, b2):
        y = _layernorm(x, axis=-1)
        h = _gelu(torch.einsum('bsd,df->bsf', y, w1) + b1)
        return torch.einsum('bsf,fd->bsd', h, w2) + b2
    x = A_x
    mod = (_silu(c) @ w_mod).reshape(c.shape[0], 6, 1, -1)
    sa, ca, ga, sb, cb, gb = (mod[:, 0].clone(), mod[:, 1].clone(), mod[:, 2].clone(), mod[:, 3].clone(), mod[:, 4].clone(), mod[:, 5].clone())
    h = _layernorm(x, axis=-1) * (1 + ca) + sa
    x = x + ga * _A_ref(h, A_k_cache, A_v_cache, A_wq, A_wo)
    h = _layernorm(x, axis=-1) * (1 + cb) + sb
    x = x + gb * _B_ref(h, B_w1, B_b1, B_w2, B_b2)
    return x
```

```python
NAME = "adaLN_cond__sliding_block_cached__mixer_channel_mlp__decode"
class Asm:
    def __init__(self):
        self.L = []
        self.nlab = 0
    def __call__(self, s):
        for line in s.split("\n"):
            line = line.strip()
            if line: self.L.append(line)
    def label(self, base="L"):
        self.nlab += 1
        return f"{base}_{self.nlab}"
    def header(self, nwg, nthreads, lds):
        self(f"; @launch grid=({nwg},1,1) block=({nthreads},1,1) lds={lds}")
        self('.amdgcn_target "amdgcn-amd-amdhsa--gfx950"')
        self(f".text\n.globl {NAME}_kernel\n.p2align 8\n.type {NAME}_kernel,@function\n{NAME}_kernel:")
    def footer(self, vgprs, sgprs=96, accum=None):
        if accum is None: accum = (vgprs + 3)//4*4
        self('.section .rodata,"a"\n.p2align 6')
        self(f".amdhsa_kernel {NAME}_kernel")
        self(f".amdhsa_next_free_vgpr {vgprs}\n.amdhsa_next_free_sgpr {sgprs}\n.amdhsa_accum_offset {accum}")
        self(".amdhsa_group_segment_fixed_size 0\n.amdhsa_kernarg_size 120\n.amdhsa_user_sgpr_count 2")
        self(".amdhsa_user_sgpr_kernarg_segment_ptr 1\n.amdhsa_system_sgpr_workgroup_id_x 1\n.end_amdhsa_kernel")
    def text(self):
        return "\n".join(self.L) + "\n"
```

```python
import sys
from asmlib import Asm, NAME

WS_EPOCH = 0x0
WS_HG    = 0x1000
WS_QG    = 0x4000
WS_MG    = 0x10000
WS_TRIG  = 0x18000
WS_OG    = 0x20000
WS_MLG   = 0x60000
WS_PG    = 0x80000
WS_XG    = 0xD0000
WS_FG    = 0x100000
WS_STAMP = 0x8000000
L_Q = 0; L_CNT = 512; L_PW = 1024; L_ML = 5120; L_ACT4 = 5632; L_OW = 8192; L_WO = 24576
L_BUF0 = 0; L_BUF1 = 73728; L_ACT = 147456; L_ST = 149760; L_H1 = 150272
LDS_BYTES = 151552
SPIN = 40000
LOG2E = 0x3fb8aa3b
X_, K_, V_, WQ_, WO_, W1_, B1_, W2_, B2_, C_, WM_, OUT_, WS_ = 16, 18, 20, 22, 24, 28, 30, 32, 34, 36, 38, 40, 42
TAG = "s6"

def sp(n): return f"s[{n}:{n+1}]"
def vr(n, k): return f"v[{n}:{n+k-1}]"

class G(Asm):
    def __init__(self, stamps=False, nt="nt"):
        super().__init__()
        self.stamps = stamps
        self.nt = (" " + nt) if nt else ""
    def stamp(self, i):
        if self.stamps:
            self(f"s_memrealtime s[96:97]\ns_waitcnt lgkmcnt(0)\nv_writelane_b32 v127, s96, {i}")
    def rbf(self, d, s):
        self(f"v_cvt_pk_bf16_f32 {d}, {s}, {s}\nv_and_b32 {d}, 0xffff0000, {d}")
    def srd(self, b, ptr, nbytes):
        self(f"s_mov_b32 s{b}, s{ptr}\ns_and_b32 s{b+1}, s{ptr+1}, 0xffff\ns_mov_b32 s{b+2}, {nbytes}\ns_mov_b32 s{b+3}, 0x20000")
    def tagcheck(self, tags, mn, mx, retry):
        assert len(tags) % 2 == 0 or len(tags) == 1
        if len(tags) == 1:
            self(f"v_cmp_ne_u32 vcc, {TAG}, {tags[0]}")
        else:
            for i in range(0, len(tags), 2):
                a, b = tags[i], tags[i+1]
                self(f"v_min3_u32 {mn}, {a}, {b}, {TAG if i == 0 else mn}")
                self(f"v_max3_u32 {mx}, {a}, {b}, {TAG if i == 0 else mx}")
            self(f"v_cmp_ne_u32 vcc, {mn}, {mx}")
        self(f"s_cbranch_vccnz {retry}")
    def spin_head(self, lab):
        self(f"s_mov_b32 s7, 0\n{lab}:\ns_add_u32 s7, s7, 1\ns_cmp_gt_u32 s7, {SPIN}\ns_cbranch_scc1 L_end")
    def row_reduce(self, op, regs):
        for ctl in ("quad_perm:[1,0,3,2]", "quad_perm:[2,3,0,1]", "row_half_mirror", "row_mirror"):
            if len(regs) < 3: self(f"s_nop {2 - len(regs)}")
            for r in regs:
                self(f"{op}_dpp {r}, {r}, {r} {ctl} row_mask:0xf bank_mask:0xf")
    def lds_spin(self, off, val, vt, vz):
        lab = self.label("LS")
        self.spin_head(lab)
        self(f"ds_read_b32 {vt}, {vz} offset:{off}\ns_waitcnt lgkmcnt(0)\nv_readfirstlane_b32 s44, {vt}\ns_cmp_eq_u32 s44, {val}")
        done = self.label("LD")
        self(f"s_cbranch_scc1 {done}\ns_sleep 1\ns_branch {lab}\n{done}:")

def ln_stats_finish(A, s1, s2, mb, rs, t):
    inv = 0x3ae38e39
    A(f"v_mul_f32 {mb}, {hex(inv)}, {s1}")
    A(f"v_mul_f32 {t}, {hex(inv)}, {s2}")
    A(f"v_fma_f32 {t}, -{mb}, {mb}, {t}")
    A(f"v_max_f32 {t}, 0, {t}")
    A.rbf(mb, mb)
    A.rbf(t, t)
    A(f"v_add_f32 {t}, 0x3727c5ac, {t}")
    A.rbf(t, t)
    A(f"v_sqrt_f32 {t}, {t}\ns_nop 0")
    A.rbf(t, t)
    A(f"v_rcp_f32 {rs}, {t}\ns_nop 0")

def gemv64_dma(A, srd, voff, rowstride, ldsbase):
    A(f"s_mul_i32 s44, s3, {8*rowstride}\ns_lshl_b32 s45, s3, 10\ns_add_u32 s45, s45, {ldsbase}")
    for i in range(5):
        skip = None
        if i == 4:
            skip = A.label("DS")
            A(f"s_cmp_ge_u32 s3, 8\ns_cbranch_scc1 {skip}")
        A(f"s_mov_b32 m0, s45\ns_add_u32 s45, s45, 16384")
        A(f"buffer_load_dwordx4 {voff}, s[{srd}:{srd+3}], s44 offen{A.nt} lds")
        A(f"s_add_u32 s44, s44, {128*rowstride}")
        if skip: A(f"{skip}:")

def gemv64_bfrags(A, vaddr, vb):
    for ks in range(18):
        for half in range(2):
            off = (ks*32 + half*16) * 128
            if off == 65536: A(f"v_add_u32 {vaddr}, 0x10000, {vaddr}")
            if off >= 65536: off -= 65536
            r = vb + ks*4 + half*2
            A(f"ds_read_b64_tr_b16 {vr(r,2)}, {vaddr} offset:{off}")

def gemv64_mfma(A, vaaddr, vb=52, va=24, vd=20, depth=7):
    def rd(ks):
        r = va + (ks % depth) * 4
        A(f"ds_read_b128 {vr(r,4)}, {vaaddr} offset:{ks*64}")
    for ks in range(depth): rd(ks)
    for ks in range(18):
        issued = min(18, depth + ks)
        A(f"s_waitcnt lgkmcnt({issued - ks - 1})")
        r = va + (ks % depth) * 4
        c = "0" if ks == 0 else vr(vd, 4)
        A(f"v_mfma_f32_16x16x32_bf16 {vr(vd,4)}, {vr(r,4)}, {vr(vb+ks*4,4)}, {c}")
        if ks + depth < 18: rd(ks + depth)
    A("s_nop 7")

def build(stamps=False, nt="nt"):
    A = G(stamps, nt)
    NT = A.nt
    A.header(256, 1024, LDS_BYTES)
    A(f"""
    s_cmp_ge_u32 s2, 256
    s_cbranch_scc1 L_exit
    s_load_dwordx16 s[16:31], s[0:1], 0
    s_load_dwordx8 s[32:39], s[0:1], 64
    s_load_dwordx2 s[40:41], s[0:1], 96
    s_load_dwordx2 s[42:43], s[0:1], 112
    v_lshrrev_b32 v2, 6, v0
    v_and_b32 v1, 63, v0
    s_and_b32 s4, s2, 7
    v_readfirstlane_b32 s3, v2
    s_lshr_b32 s5, s2, 3
    v_mov_b32 v3, 0
    """)
    if stamps:
        A("v_mov_b32 v127, 0")
        A("s_memrealtime s[98:99]")
    A(f"""
    s_cmp_ge_u32 s5, 16
    s_cbranch_scc1 L_W
    """)
    A(f"""
    ds_write2_b32 v3, v3, v3 offset0:{L_CNT//4} offset1:{L_CNT//4+1}
    s_lshr_b32 s44, s5, 3
    s_lshl_b32 s45, s4, 1
    s_add_u32 s46, s45, s44            ; hkv
    s_bfe_u32 s47, s5, 0x10002          ; b
    s_and_b32 s48, s5, 3                ; sp
    s_lshl_b32 s49, s47, 4
    s_add_u32 s49, s49, s46             ; b*16+hkv
    s_lshl_b32 s49, s49, 21
    s_lshl_b32 s50, s48, 17
    s_add_u32 s49, s49, s50
    s_lshl_b32 s50, s3, 13
    s_add_u32 s49, s49, s50
    s_add_u32 s49, s49, {6144*256 + 4096}
    v_bfe_u32 v5, v1, 2, 2
    v_lshlrev_b32 v5, 8, v5
    v_and_b32 v6, 48, v1
    v_lshl_or_b32 v5, v6, 2, v5
    v_and_b32 v6, 3, v1
    v_lshl_or_b32 v5, v6, 4, v5
    v_lshlrev_b32 v6, 4, v1
    s_waitcnt lgkmcnt(0)
    s_load_dword s6, {sp(WS_)}, {WS_EPOCH}
    s_add_u32 s52, s{K_}, s49
    s_addc_u32 s53, s{K_+1}, 0
    s_add_u32 s54, s{V_}, s49
    s_addc_u32 s55, s{V_+1}, 0
    s_barrier
    """)
    for t in range(8):
        A(f"global_load_dwordx4 {vr(32+4*t,4)}, v5, s[52:53] offset:{t*1024-4096}{NT}")
    for t in range(8):
        A(f"global_load_dwordx4 {vr(64+4*t,4)}, v6, s[54:55] offset:{t*1024-4096}{NT}")
    if stamps: A("s_waitcnt lgkmcnt(0)\nv_writelane_b32 v127, s98, 0")
    A.stamp(1)
    A(f"""
    s_mov_b64 exec, 1
    v_mov_b32 v7, 1
    ds_add_rtn_u32 v8, v3, v7 offset:{L_CNT+4}
    s_waitcnt lgkmcnt(0)
    s_add_u32 s6, s6, 0x9e3779b9
    v_readfirstlane_b32 s44, v8
    s_cmp_eq_u32 s44, 15
    s_cbranch_scc0 L_A_notrig
    s_lshl_b32 s44, s4, 4
    s_add_u32 s44, s44, s5
    s_lshl_b32 s44, s44, 7
    s_add_u32 s44, s44, {WS_TRIG}
    v_mov_b32 v8, s44
    v_mov_b32 v9, {TAG}
    global_store_dword v8, v9, {sp(WS_)} sc1
    L_A_notrig:
    s_mov_b64 exec, -1
    """)
    A(f"""
    s_cmp_ge_u32 s3, 8
    s_cbranch_scc1 L_A_qwait
    s_lshl_b32 s44, s47, 14
    s_lshl_b32 s45, s46, 10
    s_add_u32 s44, s44, s45
    s_lshl_b32 s45, s3, 7
    s_add_u32 s44, s44, s45
    s_add_u32 s44, s44, {WS_QG}
    s_add_u32 s56, s{WS_}, s44
    s_addc_u32 s57, s{WS_+1}, 0
    """)
    A.spin_head("L_A_qpoll")
    A("s_sleep 1\ns_load_dwordx16 s[64:79], s[56:57], 0 glc\ns_load_dwordx16 s[80:95], s[56:57], 64 glc\ns_waitcnt lgkmcnt(0)")
    for i in range(16):
        A(f"s_cmp_lg_u32 s{65+2*i}, {TAG}\ns_cbranch_scc1 L_A_qpoll")
    A("s_mov_b64 exec, 1")
    for i in range(16):
        A(f"v_mov_b32 v{96+i}, s{64+2*i}")
    A(f"s_lshl_b32 s44, s3, 6\nv_mov_b32 v8, s44")
    for i in range(4):
        A(f"ds_write_b128 v8, {vr(96+4*i,4)} offset:{L_Q+16*i}")
    A(f"""
    s_waitcnt lgkmcnt(0)
    ds_add_u32 v3, v7 offset:{L_CNT}
    s_mov_b64 exec, -1
    L_A_qwait:
    """)
    A(f"""
    v_bfe_u32 v8, v1, 2, 1
    v_lshlrev_b32 v8, 8, v8
    v_and_b32 v9, 48, v1
    v_lshl_or_b32 v8, v9, 2, v8
    v_and_b32 v9, 3, v1
    v_lshl_or_b32 v8, v9, 4, v8
    v_bfe_u32 v10, v1, 4, 1
    v_lshlrev_b32 v10, 7, v10
    v_bfe_u32 v11, v1, 2, 2
    v_lshl_or_b32 v10, v11, 5, v10
    v_lshl_or_b32 v10, v9, 3, v10
    v_lshrrev_b32 v11, 5, v1
    v_lshl_or_b32 v10, v11, 2, v10
    s_lshl_b32 s44, s3, 8
    v_add_u32 v10, s44, v10
    v_bfe_u32 v11, v1, 3, 1
    v_lshlrev_b32 v11, 7, v11
    v_lshrrev_b32 v12, 4, v1
    v_lshl_or_b32 v11, v12, 5, v11
    v_add_u32 v11, s44, v11
    ; masks M0..M3 (v12..v15): e=l&7
    v_and_b32 v16, 1, v1
    v_mov_b32 v17, 0xffff
    v_mov_b32 v18, 0xffff0000
    v_cmp_eq_u32 vcc, 1, v16
    v_bfe_u32 v16, v1, 1, 2
    s_nop 0
    v_cndmask_b32 v17, v17, v18, vcc
    """)
    for qd in range(4):
        A(f"v_cmp_eq_u32 vcc, {qd}, v16\ns_nop 1\nv_cndmask_b32 v{12+qd}, 0, v17, vcc")
    A(f"""
    v_and_b32 v16, 15, v1
    v_lshlrev_b32 v16, 5, v16
    v_bfe_u32 v17, v1, 4, 1
    v_lshl_or_b32 v16, v17, 4, v16
    v_lshrrev_b32 v17, 5, v1
    v_lshl_or_b32 v16, v17, 9, v16
    s_lshl_b32 s44, s3, 10
    v_add_u32 v16, s44, v16
    s_mov_b32 s58, 0x22222222
    s_mov_b32 s59, 0x22222222
    s_mov_b32 s60, 0x44444444
    s_mov_b32 s61, 0x44444444
    s_mov_b32 s62, 0x88888888
    s_mov_b32 s63, 0x88888888
    s_mov_b32 s56, 0xff00ff00
    s_mov_b32 s57, 0xff00ff00
    """)
    A.lds_spin(L_CNT, 8, "v17", "v3")
    A.stamp(2)
    A(f"ds_read_b128 v[20:23], v8 offset:{L_Q}\ns_waitcnt lgkmcnt(0)")
    for i in range(4):
        A(f"v_cndmask_b32 v{24+i}, 0, v{20+i}, s[56:57]")
        A(f"v_cndmask_b32 v{20+i}, v{20+i}, 0, s[56:57]")
    A("s_nop 1")
    for u in range(4):
        A(f"s_waitcnt vmcnt({15-2*u})")
        A(f"v_mfma_f32_16x16x32_bf16 {vr(96+4*u,4)}, v[20:23], {vr(32+8*u,4)}, 0")
        A(f"s_waitcnt vmcnt({14-2*u})")
        A(f"v_mfma_f32_16x16x32_bf16 {vr(96+4*u,4)}, v[24:27], {vr(36+8*u,4)}, {vr(96+4*u,4)}")
    A.stamp(3)
    A("s_nop 4")
    for u in range(4):
        if u == 3: A("s_nop 1")
        A(f"v_mov_b32_dpp v{112+u}, v{96+4*u} quad_perm:[0,0,0,0] row_mask:0xf bank_mask:0xf")
    for c in range(1, 4):
        for u in range(4):
            A(f"v_add_f32_dpp v{112+u}, v{96+4*u+c}, v{112+u} quad_perm:[{c},{c},{c},{c}] row_mask:0xf bank_mask:0xf")
    A("""
    v_cndmask_b32 v112, v112, v113, s[58:59]
    v_cndmask_b32 v112, v112, v114, s[60:61]
    v_cndmask_b32 v112, v112, v115, s[62:63]
    """)
    A.rbf("v112", "v112")
    A("v_mul_f32 v112, 0x3db504f3, v112")
    A.rbf("v112", "v112")
    A("v_mov_b32 v113, v112")
    A.row_reduce("v_max_f32", ["v113"])
    A("""
    v_mov_b32 v114, v113
    s_nop 1
    v_permlane32_swap_b32 v113, v114
    v_max_f32 v113, v113, v114
    v_sub_f32 v112, v112, v113
    """)
    A(f"v_mul_f32 v112, {hex(LOG2E)}, v112\nv_exp_f32 v112, v112\ns_nop 0")
    A(f"v_cvt_pk_bf16_f32 v115, v112, v112\nds_write_b32 v10, v115 offset:{L_PW}")
    A(f"s_waitcnt lgkmcnt(0)\nds_read_b128 v[96:99], v11 offset:{L_PW}\nds_read_b128 v[100:103], v11 offset:{L_PW+16}")
    A.row_reduce("v_add_f32", ["v112"])
    A("""
    v_mov_b32 v114, v112
    s_nop 1
    v_permlane32_swap_b32 v112, v114
    v_add_f32 v114, v112, v114
    """)
    A(f"""
    v_mov_b32 v116, v113
    v_mov_b32 v117, v114
    v_bfe_u32 v118, v1, 4, 1
    v_lshlrev_b32 v118, 7, v118
    s_lshl_b32 s44, s3, 3
    v_add_u32 v118, s44, v118
    s_mov_b32 exec_lo, 0x10001
    s_mov_b32 exec_hi, 0
    ds_write_b64 v118, v[116:117] offset:{L_ML}
    s_mov_b64 exec, -1
    s_waitcnt lgkmcnt(1)
    """)
    for t in range(8):
        for qd in range(4):
            A(f"v_and_b32 v{32+4*t+qd}, v{96+t}, v{12+qd}")
    A("s_nop 1")
    for t in range(8):
        A(f"s_waitcnt vmcnt({7-t})")
        c = "0" if t == 0 else "v[104:107]"
        A(f"v_mfma_f32_16x16x32_bf16 v[104:107], {vr(32+4*t,4)}, {vr(64+4*t,4)}, {c}")
    A("s_nop 7")
    A(f"ds_write_b128 v16, v[104:107] offset:{L_OW}")
    A.stamp(4)
    A(f"""
    s_cmp_ge_u32 s3, 8
    s_cbranch_scc1 L_A_b1
    """)
    A.srd(8, WO_, 4096*1152)
    A(f"""
    v_mul_u32_u24 v17, 0xe39, v1
    v_lshrrev_b32 v17, 16, v17            ; lane/18
    v_mul_u32_u24 v18, 18, v17
    v_sub_u32 v18, v1, v18                ; lane%18
    v_mul_u32_u24 v17, 1152, v17
    v_lshl_add_u32 v17, v18, 4, v17
    s_lshl_b32 s44, s46, 1
    s_add_u32 s44, s44, s47
    s_mul_i32 s44, s44, {128*1152}
    s_mul_i32 s45, s48, 288
    s_add_u32 s44, s44, s45
    s_mul_i32 s45, s3, 3456
    s_add_u32 s50, s44, s45               ; soffset
    s_mul_i32 s51, s3, 864
    s_add_u32 s51, s51, {L_WO}
    """)
    A.lds_spin(L_CNT+4, 16, "v18", "v3")
    A("s_mov_b32 exec_lo, -1\ns_mov_b32 exec_hi, 0x3fffff")
    for i in range(6):
        if i == 5: A("s_cmp_ge_u32 s3, 3\ns_cbranch_scc1 L_A_wodone")
        A(f"s_mov_b32 m0, s51\ns_add_u32 s51, s51, {8*864}")
        A(f"buffer_load_dwordx4 v17, s[8:11], s50 offen{NT} lds")
        A(f"s_add_u32 s50, s50, {8*3456}")
    A("L_A_wodone:\ns_mov_b64 exec, -1")
    A("L_A_b1:\ns_waitcnt lgkmcnt(0)\ns_barrier")
    A.stamp(5)
    A(f"""
    s_sub_u32 s44, s3, 8
    s_cmp_ge_u32 s44, 4
    s_cbranch_scc1 L_A_b15
    s_lshr_b32 s45, s44, 1
    v_and_b32 v17, 15, v1
    v_lshlrev_b32 v17, 3, v17
    s_lshl_b32 s50, s45, 7
    v_add_u32 v17, s50, v17
    ds_read_b64 v[20:21], v17 offset:{L_ML}
    s_lshl_b32 s50, s44, 8
    v_lshl_add_u32 v18, v1, 2, s50
    """)
    for w in range(16):
        A(f"ds_read_b32 v{32+w}, v18 offset:{L_OW + w*1024}")
    A("s_waitcnt lgkmcnt(15)\ns_waitcnt lgkmcnt(15)\nv_mov_b32 v22, v20")
    A.row_reduce("v_max_f32", ["v22"])
    A(f"""
    v_sub_f32 v23, v20, v22
    v_mul_f32 v23, {hex(LOG2E)}, v23
    v_exp_f32 v23, v23
    s_lshl_b32 s50, s4, 4
    s_add_u32 s50, s50, s5                ; a
    s_lshl_b32 s51, s50, 11
    s_lshl_b32 s49, s44, 9
    s_add_u32 s51, s51, s49
    s_add_u32 s51, s51, {WS_OG}
    v_mul_f32 v24, v23, v21
    v_lshl_add_u32 v19, v1, 3, s51
    v_mov_b32 v26, 0
    v_mov_b32 v27, {TAG}
    s_waitcnt lgkmcnt(0)
    """)
    for w in range(16):
        A(f"v_fmac_f32_dpp v26, v23, v{32+w} row_newbcast:{w} row_mask:0xf bank_mask:0xf")
    A(f"global_store_dwordx2 v19, v[26:27], {sp(WS_)} sc1")
    A.row_reduce("v_add_f32", ["v24"])
    A(f"""
    s_bitcmp1_b32 s44, 0
    s_cbranch_scc1 L_A_b15
    s_lshl_b32 s50, s50, 7
    s_lshl_b32 s49, s45, 6
    s_add_u32 s50, s50, s49
    s_add_u32 s50, s50, {WS_MLG}
    v_mov_b32 v19, s50
    v_mov_b32 v28, v22
    v_mov_b32 v29, {TAG}
    v_mov_b32 v30, v24
    v_mov_b32 v31, {TAG}
    s_mov_b64 exec, 1
    global_store_dwordx4 v19, v[28:31], {sp(WS_)} sc1
    s_mov_b64 exec, -1
    """)
    A("L_A_b15:")
    A.stamp(6)
    A(f"""
    s_cmp_ge_u32 s3, 8
    s_cbranch_scc1 L_A_b15b
    s_waitcnt vmcnt(0)
    L_A_b15b:
    s_barrier
    """)
    A.stamp(7)
    A(f"""
    s_cmp_lt_u32 s3, 9
    s_cbranch_scc1 L_A_s4m
    s_cmp_eq_u32 s3, 15
    s_cbranch_scc1 L_A_red
    s_sub_u32 s44, s3, 12
    s_cmp_ge_u32 s44, 2
    s_cbranch_scc1 L_end
    """)
    A(f"""
    s_lshl_b32 s50, s4, 4
    s_and_b32 s45, s5, 8
    s_add_u32 s50, s50, s45
    s_lshl_b32 s45, s44, 2
    s_add_u32 s50, s50, s45
    s_lshl_b32 s51, s50, 11
    s_lshl_b32 s45, s47, 10
    s_add_u32 s51, s51, s45
    s_add_u32 s51, s51, {WS_OG + 4096}
    v_lshl_add_u32 v17, v1, 4, s51
    s_lshl_b32 s51, s50, 7
    s_lshl_b32 s45, s47, 6
    s_add_u32 s51, s51, s45
    s_add_u32 s51, s51, {WS_MLG}
    v_mov_b32 v18, s51
    v_lshrrev_b32 v19, 4, v1
    v_lshlrev_b32 v19, 6, v19
    v_bfe_u32 v20, v1, 1, 2
    v_lshl_or_b32 v19, v20, 4, v19
    v_bfe_u32 v20, v1, 3, 1
    v_lshl_or_b32 v19, v20, 3, v19
    v_and_b32 v20, 1, v1
    v_lshl_or_b32 v19, v20, 2, v19
    s_lshl_b32 s45, s44, 8
    v_add_u32 v19, s45, v19
    """)
    A.spin_head("L_A_h3")
    for s_ in range(4):
        A(f"global_load_dwordx4 {vr(32+4*s_,4)}, v17, {sp(WS_)} offset:{s_*2048-4096} sc1")
        A(f"global_load_dwordx4 {vr(48+4*s_,4)}, v18, {sp(WS_)} offset:{s_*128} sc1")
    A("s_waitcnt vmcnt(0)")
    A.tagcheck([f"v{33+2*i}" for i in range(16)], "v20", "v21", "L_A_h3")
    A.stamp(8)
    A(f"""
    v_max_f32 v20, v48, v52
    v_max3_f32 v20, v56, v60, v20
    """)
    for s_ in range(4):
        A(f"v_sub_f32 v{21+s_}, v{48+4*s_}, v20")
    for s_ in range(4):
        A(f"v_mul_f32 v{21+s_}, {hex(LOG2E)}, v{21+s_}")
    for s_ in range(4):
        A(f"v_exp_f32 v{21+s_}, v{21+s_}")
    A("v_mul_f32 v25, v21, v50\nv_mul_f32 v26, v21, v32\nv_mul_f32 v27, v21, v34")
    for s_ in range(1, 4):
        A(f"v_fmac_f32 v25, v{21+s_}, v{50+4*s_}\nv_fmac_f32 v26, v{21+s_}, v{32+4*s_}\nv_fmac_f32 v27, v{21+s_}, v{34+4*s_}")
    A(f"""
    v_rcp_f32 v25, v25
    s_nop 0
    v_mul_f32 v26, v26, v25
    v_mul_f32 v27, v27, v25
    v_cvt_pk_bf16_f32 v26, v26, v27
    ds_write_b32 v19, v26 offset:{L_ACT4}
    s_waitcnt lgkmcnt(0)
    s_barrier
    s_branch L_end
    """)
    A(f"""
    L_A_s4m:
    v_lshrrev_b32 v17, 2, v1
    v_mul_u32_u24 v17, 288, v17
    v_and_b32 v18, 3, v1
    v_lshl_add_u32 v17, v18, 3, v17
    s_lshl_b32 s44, s3, 5
    v_add_u32 v17, s44, v17
    """)
    for ks in range(4):
        for half in range(2):
            A(f"ds_read_b64_tr_b16 {vr(32+ks*4+half*2,2)}, v17 offset:{L_WO + (ks*32+half*16)*288}")
    A(f"""
    v_and_b32 v18, 1, v1
    v_lshlrev_b32 v18, 8, v18
    v_and_b32 v19, 48, v1
    v_add_u32 v18, v18, v19
    s_mul_i32 s44, s48, 18
    s_lshl_b32 s45, s3, 1
    s_add_u32 s44, s44, s45
    s_lshl_b32 s44, s44, 12
    s_lshl_b32 s45, s46, 1
    s_add_u32 s45, s45, s47
    s_lshl_b32 s45, s45, 7
    s_add_u32 s44, s44, s45
    s_add_u32 s44, s44, {WS_PG}
    v_bfe_u32 v19, v1, 3, 1
    v_lshlrev_b32 v19, 12, v19
    v_and_b32 v20, 7, v1
    v_lshl_or_b32 v19, v20, 4, v19
    v_add_u32 v19, s44, v19
    v_mov_b32 v25, {TAG}
    v_mov_b32 v27, {TAG}
    s_waitcnt lgkmcnt(0)
    s_barrier
    """)
    for ks in range(4):
        A(f"ds_read_b128 {vr(48+4*ks,4)}, v18 offset:{L_ACT4 + ks*64}")
    for ks in range(4):
        c = "0" if ks == 0 else "v[20:23]"
        A(f"s_waitcnt lgkmcnt({3-ks})\nv_mfma_f32_16x16x32_bf16 v[20:23], {vr(48+4*ks,4)}, {vr(32+4*ks,4)}, {c}")
    A(f"""
    s_mov_b64 exec, 0xffff
    s_nop 6
    v_mov_b32 v24, v20
    v_mov_b32 v26, v21
    global_store_dwordx4 v19, v[24:27], {sp(WS_)} sc1
    s_mov_b64 exec, -1
    """)
    A.stamp(9)
    A("s_branch L_end")
    A(f"""
    L_A_red:
    s_cmp_ge_u32 s5, 9
    s_cbranch_scc1 L_end
    s_mul_i32 s50, s4, 9
    s_add_u32 s50, s50, s5                ; rho
    v_and_b32 v17, 7, v1
    s_lshl_b32 s44, s50, 3
    v_add_u32 v17, s44, v17               ; col
    v_lshrrev_b32 v18, 5, v1              ; b
    v_mul_u32_u24 v19, 1152, v18
    v_lshl_add_u32 v19, v17, 1, v19
    v_lshlrev_b32 v20, 1, v17
    global_load_ushort v21, v19, {sp(X_)}
    global_load_ushort v22, v20, {sp(B2_)}
    global_load_ushort v23, v19, {sp(OUT_)}
    v_lshlrev_b32 v20, 3, v17             ; col*8
    v_add_u32 v24, {WS_MG}, v20
    v_add_u32 v25, {WS_MG + 1728*8}, v20
    v_add_u32 v26, {WS_XG}, v20
    s_lshl_b32 s44, s50, 12
    s_add_u32 s44, s44, {WS_PG}
    v_lshl_add_u32 v27, v1, 4, s44
    s_mul_i32 s44, s50, 9216
    s_add_u32 s44, s44, {WS_FG + 4096}
    v_lshl_add_u32 v28, v1, 4, s44
    v_add_u32 v29, 4096, v28
    v_lshlrev_b32 v18, 4, v18             ; 16*b
    s_barrier
    """)
    A.spin_head("L_A_mg")
    A(f"""
    global_load_dwordx2 v[32:33], v24, {sp(WS_)} sc1
    global_load_dwordx2 v[34:35], v25, {sp(WS_)} sc1
    s_waitcnt vmcnt(0)
    """)
    A.tagcheck(["v33", "v35"], "v30", "v31", "L_A_mg")
    A("""
    v_lshrrev_b32 v32, v18, v32
    v_lshlrev_b32 v24, 16, v32            ; ga
    v_lshrrev_b32 v34, v18, v34
    v_lshlrev_b32 v25, 16, v34            ; gb
    v_lshlrev_b32 v21, 16, v21            ; x
    v_lshlrev_b32 v22, 16, v22            ; b2
    """)
    A.stamp(8)
    A.spin_head("L_A_pg")
    for i in range(4):
        A(f"global_load_dwordx4 {vr(32+4*i,4)}, v27, {sp(WS_)} offset:{i*1024} sc1")
    A("s_waitcnt vmcnt(0)")
    A.tagcheck([f"v{33+2*i}" for i in range(8)], "v30", "v31", "L_A_pg")
    A.stamp(9)
    def fold(n):
        for i in range(1, n):
            A(f"v_add_f32 v32, v32, v{32+4*i}\nv_add_f32 v34, v34, v{34+4*i}")
        A("""
        s_nop 1
        v_permlane32_swap_b32 v32, v34
        v_add_f32 v32, v32, v34
        v_mov_b32 v34, v32
        s_nop 1
        v_permlane16_swap_b32 v32, v34
        v_add_f32 v32, v32, v34
        s_nop 1
        v_add_f32_dpp v32, v32, v32 row_ror:8 row_mask:0xf bank_mask:0xf
        """)
    fold(4)
    A.rbf("v32", "v32")
    A("v_mul_f32 v32, v24, v32")
    A.rbf("v32", "v32")
    A("v_add_f32 v32, v21, v32")
    A.rbf("v21", "v32")
    A(f"""
    v_mov_b32 v32, v21
    v_mov_b32 v33, v21
    s_nop 1
    v_permlane32_swap_b32 v32, v33
    v_lshrrev_b32 v32, 16, v32
    v_or_b32 v32, v32, v33
    v_mov_b32 v33, {TAG}
    s_mov_b64 exec, 0xff
    global_store_dwordx2 v26, v[32:33], {sp(WS_)} sc1
    s_mov_b64 exec, -1
    """)
    A.stamp(10)
    A.spin_head("L_A_fg")
    for i in range(9):
        if i < 8: A(f"global_load_dwordx4 {vr(32+4*i,4)}, v28, {sp(WS_)} offset:{i*1024-4096} sc1")
        else: A(f"global_load_dwordx4 {vr(32+4*i,4)}, v29, {sp(WS_)} sc1")
    A("s_waitcnt vmcnt(0)")
    A.tagcheck([f"v{33+2*i}" for i in range(18)], "v30", "v31", "L_A_fg")
    A.stamp(11)
    fold(9)
    A.rbf("v32", "v32")
    A("v_add_f32 v32, v22, v32")
    A.rbf("v32", "v32")
    A("v_mul_f32 v32, v25, v32")
    A.rbf("v32", "v32")
    A(f"""
    v_add_f32 v32, v21, v32
    v_cvt_pk_bf16_f32 v32, v32, v32
    s_mov_b32 exec_lo, 0xff
    s_mov_b32 exec_hi, 0xff
    global_store_short v19, v32, {sp(OUT_)}
    s_cmp_lg_u32 s50, 0
    s_cbranch_scc1 L_A_fin
    s_mov_b64 exec, 1
    v_mov_b32 v33, {TAG}
    global_store_dword v3, v33, {sp(WS_)} sc1
    L_A_fin:
    s_mov_b64 exec, -1
    """)
    A.stamp(12)
    A("s_branch L_end")

    A(f"""
    L_W:
    s_sub_u32 s5, s5, 16                  ; u
    s_cmp_lg_u32 s3, 15
    s_cbranch_scc1 L_W_nopf
    s_getpc_b64 s[44:45]
    L_pfbase:
    s_sub_u32 s44, s44, L_pfbase-{NAME}_kernel
    s_subb_u32 s45, s45, 0
    v_lshlrev_b32 v4, 7, v1
    v_min_u32 v4, L_codeend-{NAME}_kernel-4, v4
    global_load_dword v5, v4, s[44:45]
    v_add_u32 v4, 0x2000, v4
    v_min_u32 v4, L_codeend-{NAME}_kernel-4, v4
    global_load_dword v5, v4, s[44:45]
    L_W_nopf:
    v_lshrrev_b32 v4, 3, v1
    v_bfe_u32 v6, v1, 4, 2
    v_lshlrev_b32 v6, 1, v6
    v_and_b32 v7, 7, v1
    v_xor_b32 v6, v6, v7
    v_lshrrev_b32 v8, 5, v0
    v_lshlrev_b32 v8, 6, v8
    v_bfe_u32 v9, v0, 2, 2
    v_lshl_or_b32 v8, v9, 4, v8
    v_bfe_u32 v9, v0, 4, 1
    v_lshl_or_b32 v8, v9, 3, v8
    v_and_b32 v9, 3, v0
    v_lshl_or_b32 v8, v9, 1, v8
    v_add_u32 v8, {L_ACT}, v8
    s_and_b32 s46, s3, 3
    v_bfe_u32 v10, v1, 3, 2
    v_xor_b32 v10, s46, v10
    v_lshlrev_b32 v10, 5, v10
    v_lshrrev_b32 v11, 2, v1
    v_lshl_or_b32 v10, v11, 7, v10
    v_lshl_or_b32 v10, v9, 3, v10         ; v9 = l&3
    v_and_b32 v11, 48, v1
    v_add_u32 v11, {L_ACT}, v11
    v_and_b32 v12, 1, v1
    v_mul_u32_u24 v12, 1152, v12
    v_add_u32 v12, v11, v12
    v_bfe_u32 v13, v1, 2, 1
    v_mul_u32_u24 v13, 1152, v13
    v_add_u32 v13, v11, v13
    s_waitcnt lgkmcnt(0)
    s_load_dword s6, {sp(WS_)}, {WS_EPOCH}
    """)
    if stamps: A("v_writelane_b32 v127, s98, 0")
    A(f"""
    s_cmp_ge_u32 s5, 9
    s_cbranch_scc1 L_M
    s_cmp_eq_u32 s5, 8
    s_cbranch_scc1 L_S5
    """)
    A.srd(8, WQ_, 576*8192)
    A(f"""
    s_lshl_b32 s47, s4, 3
    s_add_u32 s47, s47, s5                ; qb
    s_lshl_b32 s44, s47, 7
    v_lshlrev_b32 v14, 13, v4
    v_lshl_or_b32 v14, v6, 4, v14
    v_add_u32 v14, s44, v14
    """)
    gemv64_dma(A, 8, "v14", 8192, L_BUF0)
    A.stamp(1)
    A(f"""
    s_waitcnt vmcnt(0) lgkmcnt(0)
    s_add_u32 s6, s6, 0x9e3779b9
    s_barrier
    """)
    A.stamp(2)
    A(f"""
    s_cmp_ge_u32 s3, 12
    s_cbranch_scc1 L_B_m
    s_cmp_ge_u32 s3, 9
    s_cbranch_scc1 L_B_bar
    v_lshlrev_b32 v15, 3, v0
    v_add_u32 v15, {WS_HG}, v15
    """)
    A.spin_head("L_B_h")
    A(f"global_load_dwordx2 v[16:17], v15, {sp(WS_)} sc1\ns_waitcnt vmcnt(0)")
    A.tagcheck(["v17"], None, None, "L_B_h")
    A(f"""
    ds_write_b16 v8, v16
    ds_write_b16_d16_hi v8, v16 offset:1152
    s_waitcnt lgkmcnt(0)
    """)
    A.stamp(3)
    A(f"""
    L_B_bar:
    s_barrier
    s_branch L_S5b
    L_B_m:
    v_mov_b32 v15, v10
    """)
    gemv64_bfrags(A, "v15", 52)
    A(f"""
    s_lshl_b32 s44, s47, 8
    s_lshl_b32 s45, s46, 6
    s_add_u32 s44, s44, s45
    s_add_u32 s44, s44, {WS_QG}
    v_and_b32 v15, 15, v1
    v_lshlrev_b32 v15, 2, v15
    v_bfe_u32 v16, v1, 4, 1
    v_lshl_or_b32 v15, v16, 14, v15
    v_add_u32 v15, s44, v15
    s_waitcnt lgkmcnt(0)
    s_barrier
    """)
    gemv64_mfma(A, "v13")
    A(f"""
    v_mov_b32_dpp v21, v20 quad_perm:[1,0,3,2] row_mask:0xf bank_mask:0xf
    v_mov_b32 v23, {TAG}
    v_cvt_pk_bf16_f32 v22, v20, v21
    s_mov_b32 exec_lo, 0x55555555
    s_mov_b32 exec_hi, 0
    global_store_dwordx2 v15, v[22:23], {sp(WS_)} sc1
    s_mov_b64 exec, -1
    """)
    A.stamp(4)
    A("s_branch L_S5b")

    A(f"""
    L_M:
    s_sub_u32 s47, s5, 9
    s_lshl_b32 s47, s47, 3
    s_add_u32 s47, s47, s4                ; ma
    s_cmp_ge_u32 s47, 18
    s_cbranch_scc1 L_end
    """)
    A.srd(8, WM_, 576*6912)
    A(f"""
    v_lshlrev_b32 v15, 1, v0
    v_min_u32 v15, 1150, v15
    global_load_ushort v16, v15, {sp(C_)}
    global_load_ushort v17, v15, {sp(C_)} offset:1152
    v_mul_u32_u24 v15, 36, v1
    global_load_dwordx4 v[24:27], v15, {sp(X_)}
    global_load_dwordx4 v[28:31], v15, {sp(X_)} offset:16
    global_load_dword v32, v15, {sp(X_)} offset:32
    s_lshl_b32 s44, s47, 5
    s_lshl_b32 s45, s46, 3
    s_add_u32 s44, s44, s45
    v_add_u32 v18, s44, v7                ; col
    v_bfe_u32 v19, v1, 4, 1
    v_mul_u32_u24 v19, 1152, v19
    v_lshl_add_u32 v19, v18, 1, v19
    global_load_ushort v33, v19, {sp(X_)}
    v_mul_u32_u24 v14, 6912, v4
    v_and_b32 v15, 3, v6
    v_lshl_add_u32 v14, v15, 4, v14
    v_lshrrev_b32 v15, 2, v6
    v_mul_u32_u24 v15, 1152, v15
    v_add_u32 v14, v14, v15
    s_lshl_b32 s44, s47, 6
    v_add_u32 v14, s44, v14
    """)
    gemv64_dma(A, 8, "v14", 6912, L_BUF0)
    A.stamp(1)
    A(f"""
    s_waitcnt vmcnt(4)
    s_cmp_ge_u32 s3, 9
    s_cbranch_scc1 L_M_stats
    v_lshlrev_b32 v16, 16, v16
    v_lshlrev_b32 v17, 16, v17
    v_mul_f32 v34, 0xbfb8aa3b, v16
    v_mul_f32 v35, 0xbfb8aa3b, v17
    v_exp_f32 v34, v34
    v_exp_f32 v35, v35
    s_nop 0
    v_add_f32 v34, 1.0, v34
    v_add_f32 v35, 1.0, v35
    v_rcp_f32 v34, v34
    v_rcp_f32 v35, v35
    s_nop 0
    v_mul_f32 v16, v16, v34
    v_mul_f32 v17, v17, v35
    v_cvt_pk_bf16_f32 v16, v16, v17
    ds_write_b16 v8, v16
    ds_write_b16_d16_hi v8, v16 offset:1152
    s_branch L_M_bar0
    L_M_stats:
    s_mov_b32 s44, 0x3f803f80
    v_mov_b32 v34, 0
    v_mov_b32 v35, 0
    """)
    for i in range(9):
        A(f"v_dot2_f32_bf16 v34, v{24+i}, s44, v34\nv_dot2_f32_bf16 v35, v{24+i}, v{24+i}, v35")
    A("s_nop 2")
    A.row_reduce("v_add_f32", ["v34", "v35"])
    A(f"""
    s_nop 0
    v_readlane_b32 s48, v34, 0
    v_readlane_b32 s49, v34, 16
    v_readlane_b32 s50, v34, 32
    v_readlane_b32 s51, v34, 48
    v_readlane_b32 s52, v35, 0
    v_readlane_b32 s53, v35, 16
    v_readlane_b32 s54, v35, 32
    v_readlane_b32 s55, v35, 48
    s_mov_b32 s56, 0xffff0000
    s_mov_b32 s57, 0xffff0000
    v_mov_b32 v34, s48
    v_add_f32 v34, s49, v34
    v_mov_b32 v36, s50
    v_add_f32 v36, s51, v36
    v_mov_b32 v35, s52
    v_add_f32 v35, s53, v35
    v_mov_b32 v37, s54
    v_add_f32 v37, s55, v37
    v_cndmask_b32 v34, v34, v36, s[56:57]
    v_cndmask_b32 v35, v35, v37, s[56:57]
    """)
    ln_stats_finish(A, "v34", "v35", "v36", "v37", "v38")
    A("v_lshlrev_b32 v33, 16, v33\nv_sub_f32 v33, v33, v36")
    A.rbf("v33", "v33")
    A("v_mul_f32 v33, v33, v37")
    A.rbf("v19", "v33")
    A(f"""
    v_lshlrev_b32 v18, 3, v18
    v_add_u32 v18, {WS_HG}, v18
    L_M_bar0:
    s_waitcnt vmcnt(0) lgkmcnt(0)
    s_add_u32 s6, s6, 0x9e3779b9
    s_barrier
    """)
    A.stamp(2)
    A(f"""
    s_cmp_lt_u32 s3, 12
    s_cbranch_scc1 L_M_bar1
    v_bfe_u32 v15, v1, 1, 1
    v_lshlrev_b32 v15, 2, v15
    v_add_u32 v15, s46, v15
    v_bfe_u32 v16, v1, 3, 2
    v_lshlrev_b32 v16, 1, v16
    v_xor_b32 v15, v15, v16
    v_lshlrev_b32 v15, 4, v15
    v_lshrrev_b32 v16, 2, v1
    v_lshl_or_b32 v15, v16, 7, v15
    v_and_b32 v16, 1, v1
    v_lshl_or_b32 v15, v16, 3, v15
    """)
    gemv64_bfrags(A, "v15", 52)
    A("s_waitcnt lgkmcnt(0)")
    gemv64_mfma(A, "v13")
    A.rbf("v20", "v20")
    A("s_nop 1\nv_mov_b32_dpp v21, v20 row_ror:8 row_mask:0xf bank_mask:0xf\nv_add_f32 v21, 1.0, v21")
    A.rbf("v21", "v21")
    A("v_mul_f32 v21, v19, v21")
    A.rbf("v21", "v21")
    A("v_add_f32 v21, v21, v20")
    A.rbf("v22", "v21")
    A(f"""
    v_mov_b32 v23, v22
    s_nop 1
    v_permlane16_swap_b32 v22, v23
    v_lshrrev_b32 v22, 16, v22
    v_or_b32 v22, v22, v23
    v_mov_b32 v23, {TAG}
    s_mov_b64 exec, 0xff
    global_store_dwordx2 v18, v[22:23], {sp(WS_)} sc1
    s_mov_b64 exec, -1
    """)
    A.stamp(3)
    A(f"""
    L_M_bar1:
    s_barrier
    v_mul_u32_u24 v14, 6912, v4
    v_lshl_add_u32 v14, v6, 4, v14
    s_lshl_b32 s44, s47, 8
    s_add_u32 s44, s44, 2304
    v_add_u32 v14, s44, v14
    """)
    gemv64_dma(A, 8, "v14", 6912, L_BUF0)
    A("v_add_u32 v14, 128, v14")
    gemv64_dma(A, 8, "v14", 6912, L_BUF1)
    A(f"""
    s_waitcnt vmcnt(0)
    s_barrier
    s_cmp_lt_u32 s3, 8
    s_cbranch_scc1 L_end
    s_bfe_u32 s48, s3, 0x10002
    s_mul_i32 s44, s48, {L_BUF1}
    v_add_u32 v15, s44, v10
    """)
    A.stamp(4)
    gemv64_bfrags(A, "v15", 52)
    A(f"""
    s_lshl_b32 s44, s47, 10
    s_lshl_b32 s45, s48, 9
    s_add_u32 s44, s44, s45
    s_lshl_b32 s45, s46, 7
    s_add_u32 s44, s44, s45
    s_add_u32 s44, s44, {WS_MG}
    v_lshl_add_u32 v18, v1, 3, s44
    s_waitcnt lgkmcnt(0)
    """)
    gemv64_mfma(A, "v12")
    A(f"""
    v_cvt_pk_bf16_f32 v22, v20, v21
    v_mov_b32 v23, {TAG}
    s_mov_b64 exec, 0xffff
    global_store_dwordx2 v18, v[22:23], {sp(WS_)} sc1
    s_mov_b64 exec, -1
    """)
    A.stamp(5)
    A("s_branch L_end")

    A(f"""
    L_S5:
    s_waitcnt lgkmcnt(0)
    s_add_u32 s6, s6, 0x9e3779b9
    L_S5b:
    s_mul_i32 s47, s4, 9
    s_add_u32 s47, s47, s5                ; f
    """)
    A.srd(8, W1_, 576*9216)
    A.srd(12, W2_, 4608*1152)
    A(f"""
    s_lshl_b32 s44, s47, 7
    v_mul_u32_u24 v14, 9216, v4
    v_lshl_add_u32 v14, v6, 4, v14
    v_add_u32 v14, s44, v14
    s_lshl_b32 s45, s46, 5
    s_add_u32 s44, s44, s45
    v_and_b32 v15, 15, v1
    v_lshl_add_u32 v15, v15, 1, s44
    global_load_ushort v19, v15, {sp(B1_)}
    ; w2 DMA lane offset (waves 0..8; n'=w): p=w*64+lane=tid ; row=p/72 ; cpos=p%72 ; goff=row*1152+(cpos^(((row>>1)&3)<<1))*16
    v_mul_u32_u24 v15, 0x38f, v0
    v_lshrrev_b32 v15, 16, v15
    v_mul_u32_u24 v16, 72, v15
    v_sub_u32 v16, v0, v16
    v_and_b32 v17, 6, v15
    v_xor_b32 v16, v16, v17
    v_mul_u32_u24 v15, 1152, v15
    v_lshl_add_u32 v15, v16, 4, v15
    s_cmp_lg_u32 s3, 0
    s_cbranch_scc1 L_S5_tb
    v_lshlrev_b32 v16, 3, v1
    v_mov_b32 v124, 0
    v_mov_b32 v125, 0
    v_add_u32 v16, {L_ST}, v16
    ds_write_b64 v16, v[124:125]
    s_lshl_b32 s44, s4, 4
    s_add_u32 s44, s44, s5
    s_lshl_b32 s44, s44, 7
    s_add_u32 s44, s44, {WS_TRIG}
    s_add_u32 s48, s{WS_}, s44
    s_addc_u32 s49, s{WS_+1}, 0
    """)
    A.spin_head("L_S5_trig")
    A(f"""
    s_sleep 1
    s_load_dword s50, s[48:49], 0 glc
    s_waitcnt lgkmcnt(0)
    s_cmp_lg_u32 s50, {TAG}
    s_cbranch_scc1 L_S5_trig
    L_S5_tb:
    s_barrier
    """)
    A.stamp(5)
    gemv64_dma(A, 8, "v14", 9216, L_BUF0)
    A(f"""
    s_barrier
    s_cmp_ge_u32 s3, 9
    s_cbranch_scc1 L_S5_w2d
    s_mul_i32 s44, s47, {64*1152}
    s_lshl_b32 s45, s3, 10
    s_add_u32 s45, s45, {L_BUF1}
    """)
    for o in range(8):
        A(f"s_mov_b32 m0, s45\ns_add_u32 s45, s45, 9216")
        A(f"buffer_load_dwordx4 v15, s[12:15], s44 offen{NT} lds")
        A(f"s_add_u32 s44, s44, 9216")
    A(f"""
    L_S5_w2d:
    s_waitcnt vmcnt(0)
    s_barrier
    """)
    A.stamp(6)
    A(f"""
    s_cmp_ge_u32 s3, 12
    s_cbranch_scc1 L_S5_g1
    v_lshrrev_b32 v16, 2, v1
    v_mul_u32_u24 v16, 1152, v16
    v_lshl_add_u32 v16, v9, 3, v16
    v_add_u32 v16, {L_BUF1}, v16
    v_bfe_u32 v17, v1, 3, 2
    s_mul_i32 s48, s3, 3
    """)
    for i in range(3):
        A(f"s_add_u32 s44, s48, {i}\nv_xor_b32 v18, s44, v17\nv_lshl_add_u32 v18, v18, 5, v16")
        for ks in range(2):
            for half in range(2):
                A(f"ds_read_b64_tr_b16 {vr(52+i*8+ks*4+half*2,2)}, v18 offset:{(ks*32+half*16)*1152}")
    A(f"""
    s_mul_i32 s44, s48, {2*9216}
    s_lshl_b32 s45, s47, 7
    s_add_u32 s44, s44, s45
    s_add_u32 s44, s44, {WS_FG}
    v_bfe_u32 v16, v1, 3, 1
    v_mul_u32_u24 v16, 9216, v16
    v_lshl_add_u32 v16, v7, 4, v16
    v_add_u32 v76, s44, v16
    v_add_u32 v77, {2*9216}, v76
    v_add_u32 v78, {4*9216}, v76
    v_and_b32 v79, 1, v1
    v_lshlrev_b32 v79, 7, v79
    v_and_b32 v16, 48, v1
    v_add3_u32 v79, v79, v16, v3
    v_add_u32 v79, {L_H1}, v79
    s_cmp_ge_u32 s3, 9
    s_cbranch_scc1 L_S5_idle
    v_lshlrev_b32 v16, 3, v0
    v_add_u32 v17, {WS_MG + 576*8}, v16
    v_add_u32 v18, {WS_MG + 1152*8}, v16
    v_add_u32 v16, {WS_XG}, v16
    v_and_b32 v24, 48, v1
    v_lshlrev_b32 v24, 2, v24
    s_lshl_b32 s44, s3, 2
    s_add_u32 s44, s44, {L_ST}
    v_add_u32 v24, s44, v24
    v_lshlrev_b32 v25, 2, v1
    v_add_u32 v25, {L_ST}, v25
    s_mov_b32 s56, 0x00010001
    s_mov_b32 s57, 0x00010001
    """)
    A.spin_head("L_S5_mg")
    A(f"""
    global_load_dwordx2 v[26:27], v17, {sp(WS_)} sc1
    global_load_dwordx2 v[28:29], v18, {sp(WS_)} sc1
    s_waitcnt vmcnt(0)
    """)
    A.tagcheck(["v27", "v29"], "v30", "v31", "L_S5_mg")
    A("""
    v_lshlrev_b32 v32, 16, v26            ; sb0
    v_and_b32 v33, 0xffff0000, v26        ; sb1
    v_lshlrev_b32 v34, 16, v28
    v_and_b32 v35, 0xffff0000, v28
    v_add_f32 v34, 1.0, v34
    v_add_f32 v35, 1.0, v35
    """)
    A.rbf("v34", "v34"); A.rbf("v35", "v35")
    A.stamp(7)
    A.spin_head("L_S5_xg")
    A(f"global_load_dwordx2 v[26:27], v16, {sp(WS_)} sc1\ns_waitcnt vmcnt(0)")
    A.tagcheck(["v27"], None, None, "L_S5_xg")
    A.stamp(8)
    A("v_lshlrev_b32 v36, 16, v26\nv_and_b32 v37, 0xffff0000, v26")
    def ln_round(rnd):
        A(f"""
        v_mul_f32 v40, v36, v36
        v_mul_f32 v41, v37, v37
        v_mov_b32 v38, v36
        v_mov_b32 v39, v37
        s_nop 0
        v_permlane32_swap_b32 v40, v41
        v_permlane32_swap_b32 v38, v39
        v_add_f32 v40, v40, v41
        v_add_f32 v38, v38, v39
        s_nop 1
        v_permlane16_swap_b32 v38, v40
        v_add_f32 v38, v38, v40
        """)
        A.row_reduce("v_add_f32", ["v38"])
        A(f"""
        s_mov_b64 exec, s[56:57]
        ds_write_b32 v24, v38 offset:{rnd*256}
        s_mov_b64 exec, -1
        s_waitcnt lgkmcnt(0)
        s_barrier
        ds_read_b32 v38, v25 offset:{rnd*256}
        s_waitcnt lgkmcnt(0)
        """)
        A.row_reduce("v_add_f32", ["v38"])
        A("""
        v_mov_b32 v39, v38
        s_nop 1
        v_permlane16_swap_b32 v38, v39
        """)
        ln_stats_finish(A, "v38", "v39", "v40", "v41", "v42")
        A("""
        v_readlane_b32 s48, v40, 0
        v_readlane_b32 s49, v40, 32
        v_readlane_b32 s50, v41, 0
        v_readlane_b32 s51, v41, 32
        v_subrev_f32 v36, s48, v36
        v_subrev_f32 v37, s49, v37
        """)
        A.rbf("v36", "v36"); A.rbf("v37", "v37")
        A("v_mul_f32 v36, s50, v36\nv_mul_f32 v37, s51, v37")
    ln_round(0)
    A.rbf("v36", "v36"); A.rbf("v37", "v37")
    A("v_mul_f32 v36, v36, v34\nv_mul_f32 v37, v37, v35")
    A.rbf("v36", "v36"); A.rbf("v37", "v37")
    A("v_add_f32 v36, v36, v32\nv_add_f32 v37, v37, v33")
    A.rbf("v36", "v36"); A.rbf("v37", "v37")
    ln_round(1)
    A(f"""
    v_cvt_pk_bf16_f32 v36, v36, v37
    ds_write_b16 v8, v36
    ds_write_b16_d16_hi v8, v36 offset:1152
    s_waitcnt lgkmcnt(0)
    """)
    A.stamp(9)
    A(f"""
    s_barrier
    s_branch L_S5_g2
    L_S5_idle:
    s_barrier
    s_barrier
    s_barrier
    L_S5_g2:
    v_mov_b32 v29, {TAG}
    v_mov_b32 v31, {TAG}
    s_waitcnt lgkmcnt(0)
    s_barrier
    ds_read_b128 v[32:35], v79
    ds_read_b128 v[36:39], v79 offset:64
    s_waitcnt lgkmcnt(1)
    """)
    for i in range(3):
        A(f"v_mfma_f32_16x16x32_bf16 {vr(40+4*i,4)}, v[32:35], {vr(52+8*i,4)}, 0")
    A("s_waitcnt lgkmcnt(0)")
    for i in range(3):
        A(f"v_mfma_f32_16x16x32_bf16 {vr(40+4*i,4)}, v[36:39], {vr(56+8*i,4)}, {vr(40+4*i,4)}")
    A("s_mov_b64 exec, 0xffff\ns_nop 4")
    for i in range(3):
        A(f"""
        s_nop 1
        v_mov_b32 v28, v{40+4*i}
        v_mov_b32 v30, v{41+4*i}
        global_store_dwordx4 v{76+i}, v[28:31], {sp(WS_)} sc1
        """)
    A("s_mov_b64 exec, -1")
    A.stamp(11)
    A("s_branch L_end")
    A("L_S5_g1:\nv_mov_b32 v15, v10")
    gemv64_bfrags(A, "v15", 52)
    A(f"""
    v_bfe_u32 v15, v1, 4, 1
    v_lshlrev_b32 v15, 7, v15
    v_bfe_u32 v16, v1, 2, 2
    v_lshl_or_b32 v15, v16, 4, v15
    v_lshl_or_b32 v15, v9, 1, v15
    s_lshr_b32 s44, s46, 1
    s_lshl_b32 s44, s44, 6
    s_and_b32 s45, s46, 1
    s_lshl_b32 s45, s45, 3
    s_add_u32 s44, s44, s45
    s_add_u32 s44, s44, {L_H1}
    v_add_u32 v15, s44, v15
    v_lshlrev_b32 v19, 16, v19
    s_waitcnt lgkmcnt(0)
    s_barrier
    s_barrier
    s_barrier
    """)
    gemv64_mfma(A, "v13")
    A.rbf("v20", "v20")
    A("v_add_f32 v20, v20, v19")
    A.rbf("v20", "v20")
    import struct
    def f2h(x): return hex(struct.unpack("<I", struct.pack("<f", x))[0])
    k0 = -2.0 * 1.4426950408889634 * 0.7978845608028654
    A(f"""
    v_mul_f32 v21, v20, v20
    v_mov_b32 v22, {f2h(k0)}
    v_fmamk_f32 v21, v21, {f2h(k0*0.044715)}, v22
    v_mul_f32 v21, v21, v20
    v_exp_f32 v21, v21
    s_nop 0
    v_add_f32 v21, 1.0, v21
    v_rcp_f32 v21, v21
    s_nop 0
    v_mul_f32 v21, v21, v20
    v_cvt_pk_bf16_f32 v21, v21, v21
    s_mov_b32 exec_hi, 0
    ds_write_b16 v15, v21
    s_mov_b64 exec, -1
    s_waitcnt lgkmcnt(0)
    """)
    A.stamp(10)
    A("s_barrier")
    A("L_end:")
    if stamps:
        A(f"""
        s_mov_b64 exec, 0xffff
        s_lshl_b32 s44, s2, 4
        s_add_u32 s44, s44, s3
        s_lshl_b32 s44, s44, 6
        s_add_u32 s44, s44, {WS_STAMP}
        v_lshl_add_u32 v126, v1, 2, s44
        global_store_dword v126, v127, {sp(WS_)}
        """)
    A("L_exit:\ns_endpgm\nL_codeend:")
    A.footer(128, 100)
    return A

HEAD = """; Fused adaLN + sliding-window GQA decode attention + channel MLP, one persistent launch (gfx950).
"""
if __name__ == "__main__":
    out = sys.argv[1]
    opts = sys.argv[2:]
    A = build(stamps=("stamps" in opts), nt=("" if "nont" in opts else "nt"))
    open(out, "w").write(HEAD + A.text())
```

```python
import sys, struct
from asmlib import Asm, NAME

WS_EPOCH = 0x0
WS_QG    = 0x4000
WS_MG    = 0x10000
WS_TRIG  = 0x18000
WS_OG    = 0x20000
WS_MLG   = 0x60000
WS_PG    = 0x80000
WS_AG    = 0xC8000
WS_XG    = 0xD0000
WS_SG    = 0xD4000
WS_FG    = 0x100000
WS_STAMP = 0x8000000
L_Q = 0; L_CNT = 512; L_PW = 1024; L_ML = 5120; L_ACT4 = 5632; L_OW = 8192; L_WO = 24576
ASTR = 1216
L_BUF0 = 0; L_BUF1 = 73728; L_ACT = 147456; L_H1 = L_ACT + 8*ASTR; L_CF = L_H1 + 256; L_WCNT = L_CF + 64
LDS_BYTES = 157696
assert L_WCNT + 64 <= LDS_BYTES
SPIN = 40000
LOG2E = 0x3fb8aa3b
X_, K_, V_, WQ_, WO_, W1_, B1_, W2_, B2_, C_, WM_, OUT_, WS_ = 16, 18, 20, 22, 24, 28, 30, 32, 34, 36, 38, 40, 42
TAG = "s6"; ETAG = "s101"

def sp(n): return f"s[{n}:{n+1}]"
def vr(n, k): return f"v[{n}:{n+k-1}]"
def f2h(x): return hex(struct.unpack("<I", struct.pack("<f", x))[0])
DPPM = "row_mask:0xf bank_mask:0xf"

class G(Asm):
    def __init__(self, stamps=False, nt="nt"):
        super().__init__()
        self.stamps = stamps
        self.nt = (" " + nt) if nt else ""
    def stamp(self, i):
        if self.stamps:
            self(f"s_memrealtime s[96:97]\ns_waitcnt lgkmcnt(0)\nv_writelane_b32 v127, s96, {i}")
    def rbf(self, *pairs):
        for d, s in pairs: self(f"v_cvt_pk_bf16_f32 {d}, {s}, {s}")
        for d, s in pairs: self(f"v_and_b32 {d}, 0xffff0000, {d}")
    def r1(self, *regs): self.rbf(*[(r, r) for r in regs])
    def srd(self, b, ptr, nbytes):
        self(f"s_mov_b32 s{b}, s{ptr}\ns_and_b32 s{b+1}, s{ptr+1}, 0xffff\ns_mov_b32 s{b+2}, {nbytes}\ns_mov_b32 s{b+3}, 0x20000")
    def mktag(self):
        self(f"s_add_u32 s6, s6, 0x9e3779b9\ns_and_b32 {ETAG}, s6, 63")
    def tagcheck(self, tags, mn, mx, retry):
        if len(tags) == 1:
            self(f"v_cmp_ne_u32 vcc, {TAG}, {tags[0]}")
        else:
            assert len(tags) % 2 == 0
            for i in range(0, len(tags), 2):
                a, b = tags[i], tags[i+1]
                self(f"v_min3_u32 {mn}, {a}, {b}, {TAG if i == 0 else mn}")
                self(f"v_max3_u32 {mx}, {a}, {b}, {TAG if i == 0 else mx}")
            self(f"v_cmp_ne_u32 vcc, {mn}, {mx}")
        self(f"s_cbranch_vccnz {retry}")
    def etagcheck(self, words, acc, retry):
        assert len(words) % 2 == 0
        for i in range(0, len(words), 2):
            a, b = words[i], words[i+1]
            self(f"v_xor_b32 {a}, {ETAG}, {a}\nv_xor_b32 {b}, {ETAG}, {b}")
            if i == 0: self(f"v_or_b32 {acc}, {a}, {b}")
            else: self(f"v_or3_b32 {acc}, {a}, {b}, {acc}")
        self(f"v_and_b32 {acc}, 63, {acc}\nv_cmp_ne_u32 vcc, 0, {acc}\ns_cbranch_vccnz {retry}")
    def epack(self, d, v):
        self(f"v_bfi_b32 {d}, 63, {ETAG}, {v}")
    def spin_head(self, lab):
        self(f"s_mov_b32 s7, 0\n{lab}:\ns_add_u32 s7, s7, 1\ns_cmp_gt_u32 s7, {SPIN}\ns_cbranch_scc1 L_end")
    def row_reduce(self, op, regs, steps=4):
        for ctl in ("quad_perm:[1,0,3,2]", "quad_perm:[2,3,0,1]", "row_half_mirror", "row_mirror")[:steps]:
            if len(regs) < 3: self(f"s_nop {2 - len(regs)}")
            for r in regs:
                self(f"{op}_dpp {r}, {r}, {r} {ctl} {DPPM}")
    def lds_spin(self, off, val, vt, vbase, sleep=True):
        lab = self.label("LS")
        self.spin_head(lab)
        self(f"ds_read_b32 {vt}, {vbase} offset:{off}\ns_waitcnt lgkmcnt(0)\nv_readfirstlane_b32 s44, {vt}\ns_cmp_ge_u32 s44, {val}")
        done = self.label("LD")
        self(f"s_cbranch_scc1 {done}\n" + ("s_sleep 1\n" if sleep else "") + f"s_branch {lab}\n{done}:")
    def lds_inc(self, off, vbase, vone):
        self(f"s_mov_b64 exec, 1\nds_add_u32 {vbase}, {vone} offset:{off}\ns_mov_b64 exec, -1")

INV576 = f2h(1.0/576)
def ln_finish(A, mean, var, rs):
    A(f"v_max_f32 {var}, 0, {var}")
    A.r1(mean, var)
    A(f"v_add_f32 {var}, 0x3727c5ac, {var}")
    A.r1(var)
    A(f"v_sqrt_f32 {var}, {var}\ns_nop 0")
    A.r1(var)
    A(f"v_rcp_f32 {rs}, {var}\ns_nop 0")

def dma_tile(A, srd, voff, rowstride, ldsbase, ninstr=72):
    A(f"s_mul_i32 s44, s3, {8*rowstride}\ns_lshl_b32 s45, s3, 10\ns_add_u32 s45, s45, {ldsbase}")
    for i in range((ninstr + 15)//16):
        skip = None
        if (i+1)*16 > ninstr:
            skip = A.label("DS")
            A(f"s_cmp_ge_u32 s3, {ninstr - 16*i}\ns_cbranch_scc1 {skip}")
        A(f"s_mov_b32 m0, s45\ns_add_u32 s45, s45, 16384")
        A(f"buffer_load_dwordx4 {voff}, s[{srd}:{srd+3}], s44 offen{A.nt} lds")
        A(f"s_add_u32 s44, s44, {128*rowstride}")
        if skip: A(f"{skip}:")

def bfrags(A, vaddr, vb=52, nks=18):
    for ks in range(nks):
        for half in range(2):
            off = (ks*32 + half*16) * 128
            if off == 65536: A(f"v_add_u32 {vaddr}, 0x10000, {vaddr}")
            if off >= 65536: off -= 65536
            A(f"ds_read_b64_tr_b16 {vr(vb + ks*4 + half*2,2)}, {vaddr} offset:{off}")

def gemv_mfma(A, vaaddr, vb=52, va=24, vd=20, depth=7, nks=18):
    depth = min(depth, nks)
    def rd(ks):
        A(f"ds_read_b128 {vr(va + (ks % depth)*4,4)}, {vaaddr} offset:{ks*64}")
    for ks in range(depth): rd(ks)
    for ks in range(nks):
        issued = min(nks, depth + ks)
        A(f"s_waitcnt lgkmcnt({issued - ks - 1})")
        c = "0" if ks == 0 else vr(vd, 4)
        A(f"v_mfma_f32_16x16x32_bf16 {vr(vd,4)}, {vr(va + (ks % depth)*4,4)}, {vr(vb+ks*4,4)}, {c}")
        if ks + depth < nks: rd(ks + depth)

def fold8(A, n, a, b, t, swapb=True):
    for i in range(1, n):
        A(f"v_add_f32 v{a}, v{a}, v{a+2*i}\nv_add_f32 v{b}, v{b}, v{b+2*i}")
    A(f"""
    s_nop 1
    v_permlane32_swap_b32 v{a}, v{b}
    v_add_f32 v{a}, v{a}, v{b}
    v_mov_b32 v{t}, v{a}
    s_nop 1
    v_permlane16_swap_b32 v{a}, v{t}
    v_add_f32 v{a}, v{a}, v{t}
    s_nop 1
    v_add_f32_dpp v{a}, v{a}, v{a} row_ror:8 {DPPM}
    """)

def build(stamps=False, nt="nt", adelay=True, k1=9, k2=14):
    A = G(stamps, nt)
    NT = A.nt
    A.header(256, 1024, LDS_BYTES)
    A(f"""
    s_cmp_ge_u32 s2, 256
    s_cbranch_scc1 L_exit
    s_load_dwordx16 s[16:31], s[0:1], 0
    s_load_dwordx8 s[32:39], s[0:1], 64
    s_load_dwordx2 s[40:41], s[0:1], 96
    s_load_dwordx2 s[42:43], s[0:1], 112
    v_lshrrev_b32 v2, 6, v0
    v_and_b32 v1, 63, v0
    s_and_b32 s4, s2, 7
    v_readfirstlane_b32 s3, v2
    s_lshr_b32 s5, s2, 3
    v_mov_b32 v3, 0
    """)
    if stamps:
        A("v_mov_b32 v127, 0\ns_memrealtime s[98:99]")
    A(f"""
    s_cmp_lg_u32 s5, 31
    s_cbranch_scc1 L_nopf
    s_getpc_b64 s[44:45]
    L_pfbase:
    s_sub_u32 s44, s44, L_pfbase-{NAME}_kernel
    s_subb_u32 s45, s45, 0
    v_lshlrev_b32 v4, 7, v0
    v_cmp_gt_u32 vcc, L_codeend-{NAME}_kernel, v4
    s_and_saveexec_b64 s[46:47], vcc
    s_cbranch_execz L_exit
    global_load_dword v5, v4, s[44:45]
    s_waitcnt vmcnt(0)
    s_endpgm
    L_nopf:
    s_cmp_lt_u32 s5, 16
    s_cbranch_scc1 L_A
    s_sub_u32 s5, s5, 16                  ; u
    s_sub_u32 s47, s2, {24*8}             ; M idx = (u-8)*8+x
    s_mul_i32 s48, s47, 0xe39
    s_lshr_b32 s48, s48, 16               ; ksp
    s_mul_i32 s49, s48, 18
    s_sub_u32 s49, s47, s49               ; cgp
    s_mul_i32 s50, s48, {192*6912}
    s_lshl_b32 s51, s49, 7
    s_add_u32 s50, s50, s51               ; M offset
    s_lshl_b32 s51, s4, 3
    s_add_u32 s51, s51, s5                ; qb
    s_lshl_b32 s52, s51, 7                ; B offset
    v_lshrrev_b32 v4, 3, v1
    v_bfe_u32 v6, v1, 4, 2
    v_lshlrev_b32 v6, 1, v6
    v_and_b32 v7, 7, v1
    v_xor_b32 v6, v6, v7
    s_movk_i32 s53, 6912
    s_cmp_lt_u32 s5, 8
    s_cselect_b32 s50, s52, s50
    s_cselect_b32 s53, 8192, s53          ; stride
    s_cselect_b32 s54, 72, 24             ; count
    s_mul_i32 s10, s53, 576
    s_cselect_b32 s47, s51, s47
    s_cselect_b32 s55, 0, s47
    v_mul_u32_u24 v14, s53, v4
    v_lshl_add_u32 v14, v6, 4, v14
    v_add_u32 v15, s50, v14
    s_mov_b32 s11, 0x20000
    s_lshl_b32 s53, s53, 3
    s_mul_i32 s44, s3, s53
    s_lshl_b32 s53, s53, 4
    s_lshl_b32 s45, s3, 10
    s_mov_b32 s46, s3
    s_cmp_lt_u32 s5, 8
    s_waitcnt lgkmcnt(0)
    s_cselect_b32 s8, s{WQ_}, s{WM_}
    s_cselect_b32 s9, s{WQ_+1}, s{WM_+1}
    s_and_b32 s9, s9, 0xffff
    s_cmp_ge_u32 s55, 54
    s_cbranch_scc1 L_exit
    L_W_dma:
    s_mov_b32 m0, s45
    s_add_u32 s45, s45, 16384
    buffer_load_dwordx4 v15, s[8:11], s44 offen{NT} lds
    s_add_u32 s44, s44, s53
    s_add_u32 s46, s46, 16
    s_cmp_lt_u32 s46, s54
    s_cbranch_scc1 L_W_dma
    s_load_dword s6, {sp(WS_)}, {WS_EPOCH}
    s_branch L_W
    """)
    A(f"""
    L_A:
    ds_write2_b32 v3, v3, v3 offset0:{L_CNT//4} offset1:{L_CNT//4+1}
    ds_write_b32 v3, v3 offset:{L_CNT+8}
    s_lshr_b32 s44, s5, 3
    s_lshl_b32 s45, s4, 1
    s_add_u32 s46, s45, s44            ; hkv
    s_bfe_u32 s47, s5, 0x10002          ; b
    s_and_b32 s48, s5, 3                ; sp
    s_lshl_b32 s49, s47, 4
    s_add_u32 s49, s49, s46             ; b*16+hkv
    s_lshl_b32 s49, s49, 21
    s_lshl_b32 s50, s48, 17
    s_add_u32 s49, s49, s50
    s_lshl_b32 s50, s3, 13
    s_add_u32 s49, s49, s50
    s_add_u32 s49, s49, {6144*256 + 4096}
    v_bfe_u32 v5, v1, 2, 2
    v_lshlrev_b32 v5, 8, v5
    v_and_b32 v6, 48, v1
    v_lshl_or_b32 v5, v6, 2, v5
    v_and_b32 v9, 3, v1
    v_lshl_or_b32 v5, v9, 4, v5
    v_lshlrev_b32 v6, 4, v1
    s_waitcnt lgkmcnt(0)
    s_load_dword s6, {sp(WS_)}, {WS_EPOCH}
    s_add_u32 s52, s{K_}, s49
    s_addc_u32 s53, s{K_+1}, 0
    s_add_u32 s54, s{V_}, s49
    s_addc_u32 s55, s{V_+1}, 0
    """)
    def a_consts():
        A(f"""
        v_bfe_u32 v8, v1, 2, 1
        v_lshlrev_b32 v8, 8, v8
        v_and_b32 v10, 48, v1
        v_lshl_or_b32 v8, v10, 2, v8
        v_lshl_or_b32 v8, v9, 4, v8
        v_bfe_u32 v10, v1, 4, 1
        v_lshlrev_b32 v10, 7, v10
        v_bfe_u32 v11, v1, 2, 2
        v_lshl_or_b32 v10, v11, 5, v10
        v_lshl_or_b32 v10, v9, 3, v10
        v_lshrrev_b32 v11, 5, v1
        v_lshl_or_b32 v10, v11, 2, v10
        s_lshl_b32 s44, s3, 8
        v_add_u32 v10, s44, v10
        v_bfe_u32 v11, v1, 3, 1
        v_lshlrev_b32 v11, 7, v11
        v_lshrrev_b32 v12, 4, v1
        v_lshl_or_b32 v11, v12, 5, v11
        v_add_u32 v11, s44, v11
        ; masks M0..M3 (v12..v15)
        v_and_b32 v16, 1, v1
        v_mov_b32 v17, 0xffff
        v_mov_b32 v18, 0xffff0000
        v_cmp_eq_u32 vcc, 1, v16
        v_bfe_u32 v16, v1, 1, 2
        s_nop 0
        v_cndmask_b32 v17, v17, v18, vcc
        """)
        for qd in range(4):
            A(f"v_cmp_eq_u32 vcc, {qd}, v16\ns_nop 1\nv_cndmask_b32 v{12+qd}, 0, v17, vcc")
        A(f"""
        v_and_b32 v16, 15, v1
        v_lshlrev_b32 v18, 3, v16             ; (l&15)*8
        v_lshlrev_b32 v16, 5, v16
        v_bfe_u32 v17, v1, 4, 1
        v_lshl_or_b32 v16, v17, 4, v16
        v_lshlrev_b32 v19, 7, v17
        v_lshrrev_b32 v17, 5, v1
        v_lshl_or_b32 v16, v17, 9, v16
        v_lshl_or_b32 v18, v17, 7, v18
        v_lshlrev_b32 v28, 7, v17
        s_lshl_b32 s44, s3, 10
        v_add_u32 v16, s44, v16
        s_lshl_b32 s44, s3, 3
        v_add_u32 v19, s44, v19
        v_add_u32 v28, s44, v28
        v_mov_b32 v7, 1
        s_mov_b32 s58, 0x22222222
        s_mov_b32 s59, 0x22222222
        s_mov_b32 s60, 0x44444444
        s_mov_b32 s61, 0x44444444
        s_mov_b32 s62, 0x88888888
        s_mov_b32 s63, 0x88888888
        """)
    if adelay:
        a_consts()
        A("s_waitcnt lgkmcnt(0)")
    A("s_barrier")
    for t in range(8):
        A(f"global_load_dwordx4 {vr(32+4*t,4)}, v5, s[52:53] offset:{t*1024-4096}{NT}")
    for t in range(8):
        A(f"global_load_dwordx4 {vr(64+4*t,4)}, v6, s[54:55] offset:{t*1024-4096}{NT}")
    if stamps: A("s_waitcnt lgkmcnt(0)\nv_writelane_b32 v127, s98, 0")
    A.stamp(1)
    if not adelay: a_consts()
    A(f"""
    s_mov_b64 exec, 1
    ds_add_rtn_u32 v20, v3, v7 offset:{L_CNT+4}
    s_cmp_lt_u32 s5, 9
    s_cselect_b32 s45, {k2-1}, {k1-1}
    s_waitcnt lgkmcnt(0)
    """)
    A.mktag()
    A(f"""
    v_readfirstlane_b32 s44, v20
    s_cmp_eq_u32 s44, s45
    s_cbranch_scc0 L_A_notrig
    s_lshl_b32 s44, s4, 4
    s_add_u32 s44, s44, s5
    s_lshl_b32 s44, s44, 7
    s_add_u32 s44, s44, {WS_TRIG}
    v_mov_b32 v20, s44
    v_mov_b32 v21, {TAG}
    global_store_dword v20, v21, {sp(WS_)} sc1
    L_A_notrig:
    s_mov_b64 exec, -1
    s_cmp_ge_u32 s3, 8
    s_cbranch_scc1 L_A_qwait
    s_lshl_b32 s44, s47, 14
    s_lshl_b32 s45, s46, 10
    s_add_u32 s44, s44, s45
    s_lshl_b32 s45, s3, 7
    s_add_u32 s44, s44, s45
    s_add_u32 s44, s44, {WS_QG}
    s_add_u32 s56, s{WS_}, s44
    s_addc_u32 s57, s{WS_+1}, 0
    """)
    A.spin_head("L_A_qpoll")
    A("s_sleep 1\ns_load_dwordx16 s[64:79], s[56:57], 0 glc\ns_load_dwordx16 s[80:95], s[56:57], 64 glc\ns_waitcnt lgkmcnt(0)")
    for i in range(16):
        A(f"s_cmp_lg_u32 s{65+2*i}, {TAG}\ns_cbranch_scc1 L_A_qpoll")
    A("s_mov_b64 exec, 1")
    for i in range(16):
        A(f"v_mov_b32 v{96+i}, s{64+2*i}")
    A(f"s_lshl_b32 s44, s3, 6\nv_mov_b32 v20, s44")
    for i in range(4):
        A(f"ds_write_b128 v20, {vr(96+4*i,4)} offset:{L_Q+16*i}")
    A(f"""
    ds_add_u32 v3, v7 offset:{L_CNT}
    s_mov_b64 exec, -1
    L_A_qwait:
    s_mov_b32 s56, 0xff00ff00
    s_mov_b32 s57, 0xff00ff00
    """)
    A.lds_spin(L_CNT, 8, "v17", "v3")
    A.stamp(2)
    A(f"ds_read_b128 v[20:23], v8 offset:{L_Q}\ns_waitcnt lgkmcnt(0)")
    for i in range(4):
        A(f"v_cndmask_b32 v{24+i}, 0, v{20+i}, s[56:57]")
        A(f"v_cndmask_b32 v{20+i}, v{20+i}, 0, s[56:57]")
    A("s_nop 1")
    for u in range(4):
        A(f"s_waitcnt vmcnt({15-2*u})")
        A(f"v_mfma_f32_16x16x32_bf16 {vr(96+4*u,4)}, v[20:23], {vr(32+8*u,4)}, 0")
        A(f"s_waitcnt vmcnt({14-2*u})")
        A(f"v_mfma_f32_16x16x32_bf16 {vr(96+4*u,4)}, v[24:27], {vr(36+8*u,4)}, {vr(96+4*u,4)}")
    A.stamp(3)
    A("s_nop 4")
    for u in range(4):
        if u == 3: A("s_nop 1")
        A(f"v_mov_b32_dpp v{112+u}, v{96+4*u} quad_perm:[0,0,0,0] {DPPM}")
    for c in range(1, 4):
        for u in range(4):
            A(f"v_add_f32_dpp v{112+u}, v{96+4*u+c}, v{112+u} quad_perm:[{c},{c},{c},{c}] {DPPM}")
    A("""
    v_cndmask_b32 v112, v112, v113, s[58:59]
    v_cndmask_b32 v112, v112, v114, s[60:61]
    v_cndmask_b32 v112, v112, v115, s[62:63]
    """)
    A.r1("v112")
    A("v_mul_f32 v112, 0x3db504f3, v112")
    A.r1("v112")
    A("v_mov_b32 v116, v112")
    A.row_reduce("v_max_f32", ["v116"])
    A(f"""
    v_mov_b32 v114, v116
    s_nop 1
    v_permlane32_swap_b32 v116, v114
    v_max_f32 v116, v116, v114
    v_sub_f32 v112, v112, v116
    v_mul_f32 v112, {hex(LOG2E)}, v112
    v_exp_f32 v112, v112
    s_nop 0
    v_cvt_pk_bf16_f32 v115, v112, v112
    ds_write_b32 v10, v115 offset:{L_PW}
    ds_read_b128 v[96:99], v11 offset:{L_PW}
    ds_read_b128 v[100:103], v11 offset:{L_PW+16}
    """)
    A.row_reduce("v_add_f32", ["v112"])
    A(f"""
    v_mov_b32 v114, v112
    s_nop 1
    v_permlane32_swap_b32 v112, v114
    v_add_f32 v117, v112, v114
    s_mov_b32 exec_lo, 0x10001
    s_mov_b32 exec_hi, 0
    ds_write_b64 v19, v[116:117] offset:{L_ML}
    s_mov_b64 exec, 1
    ds_add_u32 v3, v7 offset:{L_CNT+8}
    s_mov_b64 exec, -1
    s_waitcnt lgkmcnt(2)
    """)
    for t in range(8):
        for qd in range(4):
            A(f"v_and_b32 v{32+4*t+qd}, v{96+t}, v{12+qd}")
    def scale():
        A.lds_spin(L_CNT+8, 16, "v17", "v3")
        A(f"""
        ds_read_b64 v[108:109], v18 offset:{L_ML}
        ds_read_b32 v110, v28 offset:{L_ML}
        s_waitcnt lgkmcnt(0)
        v_mov_b32 v111, v108
        """)
        A.row_reduce("v_max_f32", ["v111"])
        A(f"""
        v_sub_f32 v110, v110, v111
        v_mul_f32 v110, {hex(LOG2E)}, v110
        v_exp_f32 v110, v110
        """)
    def pv():
        A("s_nop 1")
        for t in range(8):
            A(f"s_waitcnt vmcnt({7-t})")
            c = "0" if t == 0 else "v[104:107]"
            A(f"v_mfma_f32_16x16x32_bf16 v[104:107], {vr(32+4*t,4)}, {vr(64+4*t,4)}, {c}")
    A("s_cmp_lt_u32 s3, 8\ns_cbranch_scc1 L_A_early")
    scale()
    pv()
    A("s_nop 7\ns_branch L_A_ow")
    A("L_A_early:")
    pv()
    A.srd(8, WO_, 4096*1152)
    A(f"""
    v_mul_u32_u24 v20, 0xe39, v1
    v_lshrrev_b32 v20, 16, v20            ; lane/18
    v_mul_u32_u24 v21, 18, v20
    v_sub_u32 v21, v1, v21                ; lane%18
    v_mul_u32_u24 v20, 1152, v20
    v_lshl_add_u32 v20, v21, 4, v20
    s_lshl_b32 s44, s46, 1
    s_add_u32 s44, s44, s47
    s_mul_i32 s44, s44, {128*1152}
    s_mul_i32 s45, s48, 288
    s_add_u32 s44, s44, s45
    s_mul_i32 s45, s3, 3456
    s_add_u32 s50, s44, s45
    s_mul_i32 s51, s3, 864
    s_add_u32 s51, s51, {L_WO}
    """)
    A.lds_spin(L_CNT+4, 16, "v17", "v3")
    A("s_mov_b32 exec_hi, 0x3fffff")
    for i in range(6):
        if i == 5: A("s_cmp_ge_u32 s3, 3\ns_cbranch_scc1 L_A_wodone")
        A(f"s_mov_b32 m0, s51\ns_add_u32 s51, s51, {8*864}")
        A(f"buffer_load_dwordx4 v20, s[8:11], s50 offen{NT} lds")
        A(f"s_add_u32 s50, s50, {8*3456}")
    A("L_A_wodone:\ns_mov_b64 exec, -1")
    scale()
    A(f"""
    s_cmp_lg_u32 s3, 0
    s_cbranch_scc1 L_A_ow
    v_sub_f32 v20, v108, v111
    v_mul_f32 v20, {hex(LOG2E)}, v20
    v_exp_f32 v20, v20
    s_lshl_b32 s50, s4, 4
    s_add_u32 s50, s50, s5
    s_lshl_b32 s50, s50, 7
    s_add_u32 s50, s50, {WS_MLG}
    v_mul_f32 v22, v20, v109
    """)
    A.row_reduce("v_add_f32", ["v22"])
    A(f"""
    v_lshl_add_u32 v24, v1, 1, s50
    v_mov_b32 v20, v111
    v_mov_b32 v21, {TAG}
    v_mov_b32 v23, {TAG}
    s_mov_b32 exec_lo, 1
    s_mov_b32 exec_hi, 1
    global_store_dwordx4 v24, v[20:23], {sp(WS_)} sc1
    s_mov_b64 exec, -1
    L_A_ow:
    v_mul_f32 v104, v104, v110
    v_mul_f32 v105, v105, v110
    v_mul_f32 v106, v106, v110
    v_mul_f32 v107, v107, v110
    ds_write_b128 v16, v[104:107] offset:{L_OW}
    s_sub_u32 s44, s3, 8
    s_lshl_b32 s45, s44, 8
    v_lshl_add_u32 v18, v1, 2, s45
    s_lshl_b32 s50, s4, 4
    s_add_u32 s50, s50, s5                ; a
    s_lshl_b32 s51, s50, 10
    s_add_u32 s51, s51, {WS_OG}
    v_add_u32 v19, s51, v18
    """)
    A.stamp(4)
    A(f"""
    s_cmp_ge_u32 s44, 4
    s_waitcnt lgkmcnt(0)
    s_barrier
    s_cbranch_scc1 L_A_b15
    """)
    for w in range(16):
        A(f"ds_read_b32 v{32+w}, v18 offset:{L_OW + w*1024}")
    for w in range(0, 16, 2):
        A(f"s_waitcnt lgkmcnt({14-w})")
        if w == 0: A("v_add_f32 v26, v32, v33")
        else: A(f"v_add_f32 v27, v{32+w}, v{33+w}\nv_add_f32 v26, v26, v27")
    A.epack("v26", "v26")
    A(f"global_store_dword v19, v26, {sp(WS_)} sc1")
    A("L_A_b15:")
    A.stamp(6)
    A(f"""
    s_cmp_lt_u32 s3, 9
    s_cbranch_scc1 L_A_s4m
    s_cmp_eq_u32 s3, 15
    s_cbranch_scc1 L_A_red
    s_sub_u32 s44, s3, 12
    s_cmp_ge_u32 s44, 2
    s_cbranch_scc1 L_end
    s_lshl_b32 s50, s4, 4
    s_and_b32 s45, s5, 8
    s_add_u32 s50, s50, s45
    s_lshl_b32 s45, s44, 2
    s_add_u32 s50, s50, s45
    s_lshl_b32 s51, s50, 7
    s_lshl_b32 s45, s47, 6
    s_add_u32 s51, s51, s45
    s_add_u32 s51, s51, {WS_MLG}
    v_mov_b32 v18, s51
    s_lshl_b32 s51, s50, 10
    s_lshl_b32 s45, s47, 9
    s_add_u32 s51, s51, s45
    s_add_u32 s51, s51, {WS_OG}
    v_lshl_add_u32 v17, v1, 3, s51
    """)
    def mlloads():
        for s_ in range(4):
            A(f"global_load_dwordx4 {vr(48+4*s_,4)}, v18, {sp(WS_)} offset:{s_*128} sc1")
    def oloads():
        for s_ in range(4):
            A(f"global_load_dwordx2 {vr(32+2*s_,2)}, v17, {sp(WS_)} offset:{s_*1024} sc1")
    mlloads()
    A(f"""
    v_lshrrev_b32 v19, 4, v1
    v_lshlrev_b32 v19, 6, v19
    v_bfe_u32 v20, v1, 1, 2
    v_lshl_or_b32 v19, v20, 4, v19
    v_bfe_u32 v20, v1, 3, 1
    v_lshl_or_b32 v19, v20, 3, v19
    v_and_b32 v20, 1, v1
    v_lshl_or_b32 v19, v20, 2, v19
    s_lshl_b32 s45, s44, 8
    v_add_u32 v19, s45, v19
    s_barrier
    s_mov_b32 s7, 0
    s_branch L_A_mlchk
    L_A_ml:
    s_add_u32 s7, s7, 1
    s_cmp_gt_u32 s7, {SPIN}
    s_cbranch_scc1 L_end
    """)
    mlloads()
    A("L_A_mlchk:")
    oloads()
    A("s_waitcnt vmcnt(4)")
    A.tagcheck([f"v{49+2*i}" for i in range(8)], "v20", "v21", "L_A_ml")
    A("v_max_f32 v20, v48, v52\nv_max3_f32 v20, v56, v60, v20")
    for s_ in range(4): A(f"v_sub_f32 v{21+s_}, v{48+4*s_}, v20")
    for s_ in range(4): A(f"v_mul_f32 v{21+s_}, {hex(LOG2E)}, v{21+s_}")
    for s_ in range(4): A(f"v_exp_f32 v{21+s_}, v{21+s_}")
    A("v_mul_f32 v25, v21, v50")
    for s_ in range(1, 4): A(f"v_fmac_f32 v25, v{21+s_}, v{50+4*s_}")
    A("v_rcp_f32 v25, v25\ns_nop 0")
    for s_ in range(4): A(f"v_mul_f32 v{21+s_}, v{21+s_}, v25")
    A("s_mov_b32 s7, 0\ns_branch L_A_ochk")
    A(f"L_A_h3:\ns_add_u32 s7, s7, 1\ns_cmp_gt_u32 s7, {SPIN}\ns_cbranch_scc1 L_end")
    oloads()
    A("L_A_ochk:\ns_waitcnt vmcnt(0)")
    A.etagcheck([f"v{32+i}" for i in range(8)], "v20", "L_A_h3")
    A("v_mul_f32 v26, v21, v32\nv_mul_f32 v27, v21, v33")
    for s_ in range(1, 4):
        A(f"v_fmac_f32 v26, v{21+s_}, v{32+2*s_}\nv_fmac_f32 v27, v{21+s_}, v{33+2*s_}")
    A(f"""
    v_cvt_pk_bf16_f32 v26, v26, v27
    ds_write_b32 v19, v26 offset:{L_ACT4}
    s_waitcnt lgkmcnt(0)
    s_barrier
    """)
    A.stamp(8)
    A("s_branch L_end")
    A(f"""
    L_A_s4m:
    v_lshrrev_b32 v17, 2, v1
    v_mul_u32_u24 v17, 288, v17
    v_lshl_add_u32 v17, v9, 3, v17
    s_lshl_b32 s44, s3, 5
    v_add_u32 v17, s44, v17
    v_and_b32 v18, 1, v1
    v_lshlrev_b32 v18, 8, v18
    v_and_b32 v19, 48, v1
    v_add_u32 v18, v18, v19
    s_mul_i32 s44, s48, 18
    s_lshl_b32 s45, s3, 1
    s_add_u32 s44, s44, s45
    s_lshl_b32 s44, s44, 11
    s_lshl_b32 s45, s46, 1
    s_add_u32 s45, s45, s47
    s_lshl_b32 s45, s45, 6
    s_add_u32 s44, s44, s45
    s_add_u32 s44, s44, {WS_PG}
    v_bfe_u32 v19, v1, 3, 1
    v_lshlrev_b32 v19, 11, v19
    v_and_b32 v20, 7, v1
    v_lshl_or_b32 v19, v20, 3, v19
    v_add_u32 v19, s44, v19
    s_cmp_eq_u32 s3, 8
    s_cbranch_scc1 L_A_s4b
    s_waitcnt vmcnt(0)
    L_A_s4b:
    s_barrier
    """)
    A.stamp(7)
    for ks in range(4):
        for half in range(2):
            A(f"ds_read_b64_tr_b16 {vr(32+ks*4+half*2,2)}, v17 offset:{L_WO + (ks*32+half*16)*288}")
    A("s_waitcnt lgkmcnt(0)\ns_barrier")
    for ks in range(4):
        A(f"ds_read_b128 {vr(48+4*ks,4)}, v18 offset:{L_ACT4 + ks*64}")
    for ks in range(4):
        c = "0" if ks == 0 else "v[20:23]"
        A(f"s_waitcnt lgkmcnt({3-ks})\nv_mfma_f32_16x16x32_bf16 v[20:23], {vr(48+4*ks,4)}, {vr(32+4*ks,4)}, {c}")
    A("s_mov_b64 exec, 0xffff\ns_nop 6")
    A.epack("v24", "v20"); A.epack("v25", "v21")
    A(f"global_store_dwordx2 v19, v[24:25], {sp(WS_)} sc1\ns_mov_b64 exec, -1")
    A.stamp(9)
    A("s_branch L_end")
    A(f"""
    L_A_red:
    s_cmp_ge_u32 s5, 9
    s_cbranch_scc1 L_end
    s_mul_i32 s50, s4, 9
    s_add_u32 s50, s50, s5                ; rho
    v_and_b32 v17, 7, v1
    s_lshl_b32 s44, s50, 3
    v_add_u32 v17, s44, v17               ; col
    v_lshrrev_b32 v18, 5, v1              ; b
    v_mul_u32_u24 v19, 1152, v18
    v_lshl_add_u32 v19, v17, 1, v19
    v_lshlrev_b32 v20, 1, v17
    global_load_ushort v21, v19, {sp(X_)}
    global_load_ushort v22, v20, {sp(B2_)}
    global_load_ushort v23, v19, {sp(OUT_)}
    v_lshlrev_b32 v20, 3, v17             ; col*8
    v_add_u32 v24, {WS_MG + 2304}, v20
    v_add_u32 v25, {WS_MG + 2304 + 9216}, v20
    v_add_u32 v26, {WS_XG}, v20
    s_lshl_b32 s44, s50, 11
    s_add_u32 s44, s44, {WS_PG}
    v_lshl_add_u32 v27, v1, 3, s44
    s_mul_i32 s44, s50, 4608
    s_add_u32 s44, s44, {WS_FG + 2048}
    v_lshl_add_u32 v28, v1, 3, s44
    s_lshl_b32 s44, s50, 6
    s_add_u32 s44, s44, {WS_SG}
    v_add_u32 v29, s44, v1
    v_lshlrev_b32 v18, 4, v18             ; 16*b
    s_mov_b32 s56, 0xffff0000             ; d>=2
    s_mov_b32 s57, 0xffff0000
    s_mov_b32 s58, 0xff00ff00             ; d odd
    s_mov_b32 s59, 0xff00ff00
    """)
    mgl = f"""
    global_load_dwordx2 v[32:33], v24, {sp(WS_)} offset:-2304 sc1
    global_load_dwordx2 v[34:35], v24, {sp(WS_)} offset:2304 sc1
    global_load_dwordx2 v[36:37], v25, {sp(WS_)} offset:-2304 sc1
    global_load_dwordx2 v[38:39], v25, {sp(WS_)} offset:2304 sc1
    """
    A(mgl)
    A(f"s_barrier\ns_barrier\ns_mov_b32 s7, 0\ns_branch L_A_mchk")
    A(f"L_A_mg:\ns_add_u32 s7, s7, 1\ns_cmp_gt_u32 s7, {SPIN}\ns_cbranch_scc1 L_end")
    A(mgl)
    A("L_A_mchk:\ns_waitcnt vmcnt(0)")
    A.tagcheck(["v33", "v35", "v37", "v39"], "v30", "v31", "L_A_mg")
    def pgloads():
        for i in range(4):
            A(f"global_load_dwordx2 {vr(40+2*i,2)}, v27, {sp(WS_)} offset:{i*512} sc1")
    pgloads()
    A("""
    v_lshrrev_b32 v32, v18, v32
    v_lshrrev_b32 v34, v18, v34
    v_lshrrev_b32 v36, v18, v36
    v_lshrrev_b32 v38, v18, v38
    v_lshlrev_b32 v24, 16, v32            ; ga
    v_lshlrev_b32 v34, 16, v34            ; sb
    v_lshlrev_b32 v36, 16, v36            ; cb
    v_lshlrev_b32 v25, 16, v38            ; gb
    v_add_f32 v36, 1.0, v36
    v_lshlrev_b32 v21, 16, v21            ; x
    v_lshlrev_b32 v22, 16, v22            ; b2
    """)
    A.r1("v36")
    A("v_cndmask_b32 v35, v36, v34, s[58:59]")
    A.stamp(8)
    A("s_mov_b32 s7, 0\ns_branch L_A_pchk")
    A(f"L_A_pg:\ns_add_u32 s7, s7, 1\ns_cmp_gt_u32 s7, {SPIN}\ns_cbranch_scc1 L_end")
    pgloads()
    A("L_A_pchk:\ns_waitcnt vmcnt(0)")
    A.etagcheck([f"v{40+i}" for i in range(8)], "v30", "L_A_pg")
    A.stamp(9)
    fold8(A, 4, 40, 41, 42)
    A.r1("v40")
    A("v_mul_f32 v40, v24, v40")
    A.r1("v40")
    A("v_add_f32 v40, v21, v40")
    A.rbf(("v21", "v40"))
    A("v_mul_f32 v40, v21, v36")
    A.r1("v40")
    A(f"""
    v_mov_b32 v32, v40
    v_mov_b32 v33, v40
    v_cndmask_b32 v42, v21, v40, s[56:57]         ; U
    v_mul_f32 v43, v40, v35                       ; Q = a*g | a*sb
    v_permlane32_swap_b32 v32, v33
    v_lshrrev_b32 v32, 16, v32
    v_or_b32 v32, v32, v33
    v_mov_b32 v33, {TAG}
    s_mov_b64 exec, 0xff
    global_store_dwordx2 v26, v[32:33], {sp(WS_)} sc1
    s_mov_b64 exec, -1
    v_cndmask_b32 v44, 1.0, v42, s[58:59]         ; W
    v_mul_f32 v42, v42, v44                       ; P
    """)
    A("s_nop 0")
    A.row_reduce("v_add_f32", ["v42", "v43"], steps=3)
    A.epack("v42", "v42"); A.epack("v43", "v43")
    A(f"""
    s_mov_b32 exec_lo, 0x01010101
    s_mov_b32 exec_hi, 0x01010101
    global_store_dwordx2 v29, v[42:43], {sp(WS_)} sc1
    s_mov_b64 exec, -1
    """)
    A.stamp(10)
    A.spin_head("L_A_fg")
    for i in range(9):
        A(f"global_load_dwordx2 {vr(40+2*i,2)}, v28, {sp(WS_)} offset:{i*512-2048} sc1")
    A("s_waitcnt vmcnt(0)")
    A.etagcheck([f"v{40+i}" for i in range(18)], "v30", "L_A_fg")
    A.stamp(11)
    fold8(A, 9, 40, 41, 42)
    A.r1("v40")
    A("v_add_f32 v40, v22, v40")
    A.r1("v40")
    A("v_mul_f32 v40, v25, v40")
    A.r1("v40")
    A(f"""
    v_add_f32 v40, v21, v40
    v_cvt_pk_bf16_f32 v40, v40, v40
    s_mov_b32 exec_lo, 0xff
    s_mov_b32 exec_hi, 0xff
    global_store_short v19, v40, {sp(OUT_)}
    s_cmp_lg_u32 s50, 0
    s_cbranch_scc1 L_A_fin
    s_mov_b64 exec, 1
    v_mov_b32 v33, {TAG}
    global_store_dword v3, v33, {sp(WS_)} sc1
    L_A_fin:
    s_mov_b64 exec, -1
    """)
    A.stamp(12)
    A("s_branch L_end")

    A("L_W:")
    if stamps: A("v_writelane_b32 v127, s98, 0")
    A.stamp(1)
    A(f"""
    v_mov_b32 v18, {L_WCNT}
    ds_write2_b32 v18, v3, v3 offset1:1
    v_lshrrev_b32 v8, 5, v0
    v_lshlrev_b32 v8, 6, v8
    v_bfe_u32 v9, v0, 2, 2
    v_lshl_or_b32 v8, v9, 4, v8
    v_bfe_u32 v9, v0, 4, 1
    v_lshl_or_b32 v8, v9, 3, v8
    v_and_b32 v9, 3, v0
    v_lshl_or_b32 v8, v9, 1, v8
    v_add_u32 v8, {L_ACT}, v8
    s_and_b32 s46, s3, 3
    v_bfe_u32 v10, v1, 3, 2
    v_xor_b32 v10, s46, v10
    v_lshlrev_b32 v10, 5, v10
    v_lshrrev_b32 v11, 2, v1
    v_lshl_or_b32 v10, v11, 7, v10
    v_lshl_or_b32 v10, v9, 3, v10
    v_and_b32 v11, 48, v1
    v_add_u32 v11, {L_ACT}, v11
    v_and_b32 v12, 1, v1
    v_mul_u32_u24 v12, {4*ASTR}, v12
    v_add_u32 v12, v11, v12
    v_and_b32 v13, 4, v1
    v_mul_u32_u24 v13, {ASTR}, v13
    v_add_u32 v13, v11, v13
    v_mov_b32 v17, 1
    s_cmp_ge_u32 s5, 8
    s_cbranch_scc1 L_M
    s_waitcnt lgkmcnt(0)
    """)
    A.mktag()
    A(f"""
    s_barrier
    s_cmp_ge_u32 s3, 9
    s_cbranch_scc1 L_B_nh
    v_lshlrev_b32 v15, 1, v0
    global_load_ushort v33, v15, {sp(X_)}
    global_load_ushort v34, v15, {sp(X_)} offset:1152
    v_mul_u32_u24 v15, 36, v1
    global_load_dwordx4 v[24:27], v15, {sp(X_)}
    global_load_dwordx4 v[28:31], v15, {sp(X_)} offset:16
    global_load_dword v32, v15, {sp(X_)} offset:32
    v_lshlrev_b32 v15, 3, v0
    v_add_u32 v52, {WS_AG + 2304}, v15
    v_add_u32 v53, {WS_AG + 2304 + 9216}, v15
    v_add_u32 v54, {WS_AG + 2304 + 18432}, v15
    """)
    def ag_loads():
        for k in range(3):
            A(f"global_load_dwordx2 {vr(40+4*k,2)}, v{52+k}, {sp(WS_)} offset:-2304 sc1")
            A(f"global_load_dwordx2 {vr(42+4*k,2)}, v{52+k}, {sp(WS_)} offset:2304 sc1")
    ag_loads()
    A(f"""
    s_mov_b32 s44, 0x3f803f80
    v_mov_b32 v35, 0
    v_mov_b32 v36, 0
    s_waitcnt vmcnt(6)
    """)
    A.lds_inc(0, "v18", "v17")
    A.stamp(2)
    for i in range(9):
        A(f"v_dot2_f32_bf16 v35, v{24+i}, s44, v35\nv_dot2_f32_bf16 v36, v{24+i}, v{24+i}, v36")
    A("s_nop 2")
    A.row_reduce("v_add_f32", ["v35", "v36"])
    A(f"""
    v_mov_b32 v37, v35
    v_mov_b32 v38, v36
    s_nop 0
    v_permlane16_swap_b32 v35, v37
    v_permlane16_swap_b32 v36, v38
    v_add_f32 v35, v35, v37
    v_add_f32 v36, v36, v38
    v_mul_f32 v35, {INV576}, v35
    v_mul_f32 v36, {INV576}, v36
    v_fma_f32 v36, -v35, v35, v36
    """)
    ln_finish(A, "v35", "v36", "v38")
    A("""
    v_readlane_b32 s48, v35, 0
    v_readlane_b32 s49, v35, 32
    v_readlane_b32 s50, v38, 0
    v_readlane_b32 s51, v38, 32
    v_lshlrev_b32 v33, 16, v33
    v_lshlrev_b32 v34, 16, v34
    v_subrev_f32 v33, s48, v33
    v_subrev_f32 v34, s49, v34
    """)
    A.r1("v33", "v34")
    A("v_mul_f32 v33, s50, v33\nv_mul_f32 v34, s51, v34")
    A.r1("v33", "v34")
    A("s_mov_b32 s7, 0\ns_branch L_B_chk")
    A(f"L_B_h:\ns_add_u32 s7, s7, 1\ns_cmp_gt_u32 s7, {SPIN}\ns_cbranch_scc1 L_end")
    ag_loads()
    A("L_B_chk:\ns_waitcnt vmcnt(0)")
    A.etagcheck([f"v{40+i}" for i in range(12)], "v39", "L_B_h")
    for i in range(4): A(f"v_add_f32 v{40+i}, v{40+i}, v{44+i}")
    for i in range(4): A(f"v_add_f32 v{40+i}, v{40+i}, v{48+i}")
    A.r1("v40", "v41", "v42", "v43")
    A("v_add_f32 v42, 1.0, v42\nv_add_f32 v43, 1.0, v43")
    A.r1("v42", "v43")
    A("v_mul_f32 v42, v33, v42\nv_mul_f32 v43, v34, v43")
    A.r1("v42", "v43")
    A(f"""
    v_add_f32 v42, v42, v40
    v_add_f32 v43, v43, v41
    v_cvt_pk_bf16_f32 v16, v42, v43
    ds_write_b16 v8, v16
    ds_write_b16_d16_hi v8, v16 offset:{4*ASTR}
    s_waitcnt lgkmcnt(0)
    """)
    A.stamp(3)
    A(f"""
    s_barrier
    s_branch L_S5
    L_B_nh:
    s_waitcnt vmcnt(0)
    """)
    A.lds_inc(0, "v18", "v17")
    A(f"""
    s_cmp_ge_u32 s3, 12
    s_cbranch_scc1 L_B_m
    s_waitcnt lgkmcnt(0)
    s_barrier
    s_branch L_S5
    L_B_m:
    """)
    A.lds_spin(0, 16, "v16", "v18")
    A.stamp(2)
    A("v_mov_b32 v15, v10")
    bfrags(A, "v15")
    A(f"""
    s_lshl_b32 s44, s47, 8
    s_lshl_b32 s45, s46, 6
    s_add_u32 s44, s44, s45
    s_add_u32 s44, s44, {WS_QG}
    v_and_b32 v15, 15, v1
    v_lshlrev_b32 v15, 2, v15
    v_bfe_u32 v16, v1, 4, 1
    v_lshl_or_b32 v15, v16, 14, v15
    v_add_u32 v15, s44, v15
    s_waitcnt lgkmcnt(0)
    s_barrier
    """)
    gemv_mfma(A, "v13")
    A(f"""
    s_nop 7
    v_mov_b32_dpp v21, v20 quad_perm:[1,0,3,2] {DPPM}
    v_mov_b32 v23, {TAG}
    v_cvt_pk_bf16_f32 v22, v20, v21
    s_mov_b32 exec_lo, 0x55555555
    s_mov_b32 exec_hi, 0
    global_store_dwordx2 v15, v[22:23], {sp(WS_)} sc1
    s_mov_b64 exec, -1
    """)
    A.stamp(4)
    A("s_branch L_S5")

    A(f"""
    L_M:
    s_cmp_ge_u32 s3, 9
    s_cbranch_scc1 L_M_bar0
    v_lshlrev_b32 v15, 1, v0
    global_load_ushort v16, v15, {sp(C_)}
    global_load_ushort v17, v15, {sp(C_)} offset:1152
    s_waitcnt vmcnt(0)
    v_lshlrev_b32 v16, 16, v16
    v_lshlrev_b32 v17, 16, v17
    v_mul_f32 v34, 0xbfb8aa3b, v16
    v_mul_f32 v35, 0xbfb8aa3b, v17
    v_exp_f32 v34, v34
    v_exp_f32 v35, v35
    s_nop 0
    v_add_f32 v34, 1.0, v34
    v_add_f32 v35, 1.0, v35
    v_rcp_f32 v34, v34
    v_rcp_f32 v35, v35
    s_nop 0
    v_mul_f32 v16, v16, v34
    v_mul_f32 v17, v17, v35
    v_cvt_pk_bf16_f32 v16, v16, v17
    ds_write_b16 v8, v16
    ds_write_b16_d16_hi v8, v16 offset:{4*ASTR}
    L_M_bar0:
    s_mul_i32 s44, s48, 384
    v_add_u32 v15, s44, v12
    s_mul_i32 s44, s48, 9216
    s_lshl_b32 s45, s49, 9
    s_add_u32 s44, s44, s45
    s_lshl_b32 s45, s46, 7
    s_add_u32 s44, s44, s45
    s_add_u32 s44, s44, {WS_AG}
    v_lshl_add_u32 v18, v1, 3, s44
    s_waitcnt vmcnt(0) lgkmcnt(0)
    """)
    A.mktag()
    A("s_barrier")
    A.stamp(2)
    A("s_cmp_lt_u32 s3, 12\ns_cbranch_scc1 L_M_bar1")
    bfrags(A, "v10", 52, 6)
    gemv_mfma(A, "v15", nks=6)
    A("s_mov_b64 exec, 0xffff\ns_nop 6")
    A.epack("v22", "v20"); A.epack("v23", "v21")
    A(f"global_store_dwordx2 v18, v[22:23], {sp(WS_)} sc1\ns_mov_b64 exec, -1")
    A.stamp(3)
    def trig_wait(lab):
        A(f"""
        s_cmp_lg_u32 s3, 0
        s_cbranch_scc1 {lab}_b
        s_lshl_b32 s44, s4, 4
        s_add_u32 s44, s44, s5
        s_lshl_b32 s44, s44, 7
        s_add_u32 s44, s44, {WS_TRIG}
        s_add_u32 s48, s{WS_}, s44
        s_addc_u32 s49, s{WS_+1}, 0
        """)
        A.spin_head(lab)
        A(f"""
        s_sleep 2
        s_load_dword s50, s[48:49], 0 glc
        s_waitcnt lgkmcnt(0)
        s_cmp_lg_u32 s50, {TAG}
        s_cbranch_scc1 {lab}
        {lab}_b:
        s_barrier
        """)
    A(f"""
    L_M_bar1:
    s_cmp_eq_u32 s5, 8
    s_cbranch_scc1 L_S5
    s_sub_u32 s47, s47, 8                 ; idx2
    s_cmp_ge_u32 s47, 36
    s_cbranch_scc1 L_end
    s_lshl_b32 s44, s47, 7
    s_add_u32 s44, s44, 2304
    v_add_u32 v14, s44, v14
    """)
    trig_wait("L_M_trig")
    A.stamp(6)
    dma_tile(A, 8, "v14", 6912, L_BUF0)
    A(f"""
    s_waitcnt vmcnt(0)
    s_barrier
    s_cmp_lt_u32 s3, 12
    s_cbranch_scc1 L_end
    v_mov_b32 v15, v10
    """)
    A.stamp(4)
    bfrags(A, "v15")
    A(f"""
    s_lshl_b32 s44, s47, 9
    s_lshl_b32 s45, s46, 7
    s_add_u32 s44, s44, s45
    s_add_u32 s44, s44, {WS_MG}
    v_lshl_add_u32 v18, v1, 3, s44
    """)
    gemv_mfma(A, "v12")
    A(f"""
    s_nop 7
    v_cvt_pk_bf16_f32 v22, v20, v21
    v_mov_b32 v23, {TAG}
    s_mov_b64 exec, 0xffff
    global_store_dwordx2 v18, v[22:23], {sp(WS_)} sc1
    s_mov_b64 exec, -1
    """)
    A.stamp(5)
    A("s_branch L_end")

    A(f"""
    L_S5:
    s_mul_i32 s47, s4, 9
    s_add_u32 s47, s47, s5                ; f
    """)
    A.srd(8, W1_, 576*9216)
    A.srd(12, W2_, 4608*1152)
    A(f"""
    s_lshl_b32 s44, s47, 7
    v_mul_u32_u24 v14, 9216, v4
    v_lshl_add_u32 v14, v6, 4, v14
    v_add_u32 v14, s44, v14
    s_lshl_b32 s45, s46, 5
    s_add_u32 s44, s44, s45
    v_and_b32 v15, 15, v1
    v_lshl_add_u32 v15, v15, 1, s44
    global_load_ushort v19, v15, {sp(B1_)}
    v_mul_u32_u24 v15, 0x38f, v0
    v_lshrrev_b32 v15, 16, v15
    v_mul_u32_u24 v16, 72, v15
    v_sub_u32 v16, v0, v16
    v_and_b32 v17, 6, v15
    v_xor_b32 v16, v16, v17
    v_mul_u32_u24 v15, 1152, v15
    v_lshl_add_u32 v15, v16, 4, v15
    """)
    trig_wait("L_S5_trig")
    A.stamp(5)
    dma_tile(A, 8, "v14", 9216, L_BUF0)
    A(f"""
    s_barrier
    s_cmp_ge_u32 s3, 9
    s_cbranch_scc1 L_S5_w2d
    s_mul_i32 s44, s47, {64*1152}
    s_lshl_b32 s45, s3, 10
    s_add_u32 s45, s45, {L_BUF1}
    """)
    for o in range(8):
        A(f"s_mov_b32 m0, s45\ns_add_u32 s45, s45, 9216")
        A(f"buffer_load_dwordx4 v15, s[12:15], s44 offen{NT} lds")
        A(f"s_add_u32 s44, s44, 9216")
    A(f"""
    v_lshlrev_b32 v16, 3, v0
    v_add_u32 v17, {WS_MG + 576*8 + 2304}, v16
    v_add_u32 v16, {WS_XG}, v16
    """)
    A.spin_head("L_S5_mg")
    A(f"""
    global_load_dwordx2 v[26:27], v17, {sp(WS_)} offset:-2304 sc1
    global_load_dwordx2 v[28:29], v17, {sp(WS_)} offset:2304 sc1
    s_waitcnt vmcnt(0)
    """)
    A.tagcheck(["v27", "v29"], "v30", "v31", "L_S5_mg")
    A(f"""
    v_lshlrev_b32 v34, 16, v28
    v_and_b32 v35, 0xffff0000, v28
    v_add_f32 v34, 1.0, v34
    v_add_f32 v35, 1.0, v35
    v_cvt_pk_bf16_f32 v34, v34, v35
    v_mov_b32 v35, 0x3f80
    ds_write_b16 v8, v34 offset:{ASTR}
    ds_write_b16_d16_hi v8, v34 offset:{5*ASTR}
    ds_write_b16 v8, v26 offset:{2*ASTR}
    ds_write_b16_d16_hi v8, v26 offset:{6*ASTR}
    ds_write_b16 v8, v35 offset:{3*ASTR}
    ds_write_b16 v8, v35 offset:{7*ASTR}
    L_S5_w2d:
    s_waitcnt vmcnt(0) lgkmcnt(0)
    s_barrier
    """)
    A.stamp(6)
    A(f"""
    s_cmp_ge_u32 s3, 12
    s_cbranch_scc1 L_S5_g1
    s_cmp_ge_u32 s3, 9
    s_cbranch_scc1 L_S5_nx0
    global_load_dwordx2 v[26:27], v16, {sp(WS_)} sc1
    L_S5_nx0:
    v_lshrrev_b32 v20, 2, v1
    v_mul_u32_u24 v20, 1152, v20
    v_lshl_add_u32 v20, v9, 3, v20
    v_add_u32 v20, {L_BUF1}, v20
    v_bfe_u32 v17, v1, 3, 2
    s_mul_i32 s48, s3, 3
    """)
    for i in range(3):
        A(f"s_add_u32 s44, s48, {i}\nv_xor_b32 v18, s44, v17\nv_lshl_add_u32 v18, v18, 5, v20")
        for ks in range(2):
            for half in range(2):
                A(f"ds_read_b64_tr_b16 {vr(52+i*8+ks*4+half*2,2)}, v18 offset:{(ks*32+half*16)*1152}")
    A(f"""
    s_mul_i32 s44, s48, {2*4608}
    s_lshl_b32 s45, s47, 6
    s_add_u32 s44, s44, s45
    s_add_u32 s44, s44, {WS_FG}
    v_mul_u32_u24 v20, 4608, v4
    v_lshl_add_u32 v20, v7, 3, v20
    v_add_u32 v76, s44, v20
    v_and_b32 v79, 1, v1
    v_lshlrev_b32 v79, 7, v79
    v_and_b32 v20, 48, v1
    v_add_u32 v79, v79, v20
    v_add_u32 v79, {L_H1}, v79
    s_cmp_eq_u32 s3, 9
    s_cbranch_scc1 L_S5_stat
    s_cmp_gt_u32 s3, 9
    s_cbranch_scc1 L_S5_g2
    v_mov_b32 v21, {L_WCNT}
    v_mov_b32 v22, 1
    s_mov_b32 s7, 0
    s_branch L_S5_xchk
    L_S5_xg:
    s_add_u32 s7, s7, 1
    s_cmp_gt_u32 s7, {SPIN}
    s_cbranch_scc1 L_end
    global_load_dwordx2 v[26:27], v16, {sp(WS_)} sc1
    L_S5_xchk:
    s_waitcnt vmcnt(0)
    """)
    A.tagcheck(["v27"], None, None, "L_S5_xg")
    A(f"""
    ds_write_b16 v8, v26
    ds_write_b16_d16_hi v8, v26 offset:{4*ASTR}
    """)
    A.lds_inc(4, "v21", "v22")
    A.stamp(8)
    A(f"""
    s_branch L_S5_g2
    L_S5_stat:
    v_and_b32 v20, 31, v1
    v_mul_u32_u24 v20, 36, v20
    v_lshrrev_b32 v21, 5, v1
    v_mul_u32_u24 v21, {4*ASTR}, v21
    v_add3_u32 v20, v20, v21, v3
    v_add_u32 v20, {L_ACT}, v20
    """)
    for i in range(9):
        A(f"ds_read_b32 v{80+i}, v20 offset:{ASTR + 4*i}\nds_read_b32 v{90+i}, v20 offset:{2*ASTR + 4*i}")
    A(f"""
    s_mov_b32 s44, 0x3f803f80
    v_lshlrev_b32 v21, 3, v1
    v_add_u32 v21, {WS_SG + 2048}, v21
    """)
    for r in range(100, 105): A(f"v_mov_b32 v{r}, 0")
    A("s_waitcnt lgkmcnt(0)")
    for i in range(9):
        A(f"""
        v_dot2_f32_bf16 v100, v{80+i}, s44, v100
        v_dot2_f32_bf16 v101, v{80+i}, v{80+i}, v101
        v_dot2_f32_bf16 v102, v{80+i}, v{90+i}, v102
        v_dot2_f32_bf16 v103, v{90+i}, s44, v103
        v_dot2_f32_bf16 v104, v{90+i}, v{90+i}, v104
        """)
    A("s_nop 2")
    cs = [f"v{r}" for r in range(100, 105)]
    A.row_reduce("v_add_f32", cs)
    for r in range(100, 105): A(f"v_mov_b32 v{r+5}, v{r}")
    for r in range(100, 105): A(f"v_permlane16_swap_b32 v{r}, v{r+5}")
    for r in range(100, 105): A(f"v_add_f32 v{r}, v{r}, v{r+5}")
    for r in range(100, 105): A(f"v_mul_f32 v{r}, {INV576}, v{r}")
    A.spin_head("L_S5_sg")
    for i in range(9):
        A(f"global_load_dwordx2 {vr(80+2*i,2)}, v21, {sp(WS_)} offset:{i*512-2048} sc1")
    A("s_waitcnt vmcnt(0)")
    A.etagcheck([f"v{80+i}" for i in range(18)], "v30", "L_S5_sg")
    A.stamp(8)
    fold8(A, 9, 80, 81, 82)
    A(f"s_nop 0\nv_mul_f32 v80, {INV576}, v80\ns_nop 0")
    names = [("Ex", 0), ("Exx", 1), ("Ea", 2), ("Eaa", 3), ("Eag", 32), ("Eas", 33)]
    for i, (nm, ln) in enumerate(names):
        A(f"v_readlane_b32 s{64+2*i}, v80, {ln}\nv_readlane_b32 s{65+2*i}, v80, {ln+4}")
    A("s_mov_b32 exec_hi, 0")
    for i in range(6): A(f"v_mov_b32 v{84+i}, s{64+2*i}")
    A("s_mov_b32 exec_hi, -1\ns_mov_b32 exec_lo, 0")
    for i in range(6): A(f"v_mov_b32 v{84+i}, s{65+2*i}")
    A("s_mov_b64 exec, -1")
    A("v_fma_f32 v85, -v84, v84, v85")
    ln_finish(A, "v84", "v85", "v90")
    A(f"""
    v_fma_f32 v86, -v84, v100, v86
    v_fma_f32 v89, -v84, v102, v89
    v_add_f32 v88, v88, v88
    v_fma_f32 v88, v84, v101, -v88
    v_fma_f32 v87, v84, v88, v87
    v_fma_f32 v86, v90, v86, v103         ; mean2
    v_add_f32 v89, v89, v89
    v_fma_f32 v87, v90, v87, v89
    v_fma_f32 v87, v90, v87, v104         ; E[h2^2]
    v_fma_f32 v87, -v86, v86, v87         ; var2
    """)
    ln_finish(A, "v86", "v87", "v94")
    A(f"""
    v_mul_f32 v92, v90, v94               ; c0
    v_mul_f32 v95, -v86, v94              ; c3
    v_mul_f32 v93, -v84, v92              ; c1
    v_lshrrev_b32 v20, 1, v1
    v_add_u32 v20, {L_CF}, v20
    s_mov_b32 exec_lo, 1
    s_mov_b32 exec_hi, 1
    ds_write_b128 v20, v[92:95]
    s_mov_b64 exec, -1
    s_waitcnt lgkmcnt(0)
    """)
    A.stamp(9)
    A(f"""
    L_S5_g2:
    s_mov_b32 s56, 0xffff0000
    s_mov_b32 s57, 0
    s_mov_b32 s58, 0
    s_mov_b32 s59, 0xffff
    s_waitcnt lgkmcnt(0)
    s_barrier
    s_barrier
    ds_read_b128 v[32:35], v79
    ds_read_b128 v[36:39], v79 offset:64
    s_waitcnt lgkmcnt(1)
    """)
    for i in range(3):
        A(f"v_mfma_f32_16x16x32_bf16 {vr(40+4*i,4)}, v[32:35], {vr(52+8*i,4)}, 0")
    A("s_waitcnt lgkmcnt(0)")
    for i in range(3):
        A(f"v_mfma_f32_16x16x32_bf16 {vr(40+4*i,4)}, v[36:39], {vr(56+8*i,4)}, {vr(40+4*i,4)}")
    A(f"""
    s_mov_b32 exec_hi, 0xffff
    s_nop 5
    v_cndmask_b32 v28, v40, v44, s[56:57]
    v_cndmask_b32 v29, v41, v45, s[56:57]
    v_cndmask_b32 v28, v28, v48, s[58:59]
    v_cndmask_b32 v29, v29, v49, s[58:59]
    """)
    A.epack("v28", "v28"); A.epack("v29", "v29")
    A(f"global_store_dwordx2 v76, v[28:29], {sp(WS_)} sc1\ns_mov_b64 exec, -1")
    A.stamp(11)
    A("s_branch L_end")
    A("L_S5_g1:\nv_mov_b32 v15, v10")
    bfrags(A, "v15")
    A(f"""
    v_bfe_u32 v16, v1, 4, 1
    v_lshlrev_b32 v15, 7, v16
    v_lshlrev_b32 v18, 4, v16
    v_add_u32 v18, {L_CF}, v18
    v_bfe_u32 v16, v1, 2, 2
    v_lshl_or_b32 v15, v16, 4, v15
    v_lshl_or_b32 v15, v9, 1, v15
    s_lshr_b32 s44, s46, 1
    s_lshl_b32 s44, s44, 6
    s_and_b32 s45, s46, 1
    s_lshl_b32 s45, s45, 3
    s_add_u32 s44, s44, s45
    s_add_u32 s44, s44, {L_H1}
    v_add_u32 v15, s44, v15
    v_lshlrev_b32 v19, 16, v19
    v_mul_u32_u24 v16, {ASTR}, v7
    v_add_u32 v16, v11, v16               ; A rows = i&7
    v_mov_b32 v17, {L_WCNT}
    """)
    A.lds_spin(4, 9, "v20", "v17", sleep=False)
    gemv_mfma(A, "v16")
    A.stamp(9)
    k0 = -2.0 * 1.4426950408889634 * 0.7978845608028654
    A(f"""
    s_barrier
    ds_read_b128 v[24:27], v18
    v_mov_b32 v30, {f2h(k0)}
    s_nop 4
    s_waitcnt lgkmcnt(0)
    v_mul_f32 v20, v20, v24
    v_fmac_f32 v20, v21, v25
    v_fmac_f32 v20, v22, v26
    v_fmac_f32 v20, v23, v27
    """)
    A.r1("v20")
    A("v_add_f32 v20, v20, v19")
    A.r1("v20")
    A(f"""
    v_mul_f32 v21, v20, v20
    v_fmamk_f32 v21, v21, {f2h(k0*0.044715)}, v30
    v_mul_f32 v21, v21, v20
    v_exp_f32 v21, v21
    s_nop 0
    v_add_f32 v21, 1.0, v21
    v_rcp_f32 v21, v21
    s_mov_b32 exec_hi, 0
    v_mul_f32 v21, v21, v20
    v_cvt_pk_bf16_f32 v21, v21, v21
    ds_write_b16 v15, v21
    s_mov_b64 exec, -1
    s_waitcnt lgkmcnt(0)
    s_barrier
    """)
    A.stamp(10)
    A("L_end:")
    if stamps:
        A(f"""
        s_mov_b64 exec, 0xffff
        s_lshl_b32 s44, s2, 4
        s_add_u32 s44, s44, s3
        s_lshl_b32 s44, s44, 6
        s_add_u32 s44, s44, {WS_STAMP}
        v_lshl_add_u32 v126, v1, 2, s44
        global_store_dword v126, v127, {sp(WS_)}
        """)
    A("L_exit:\ns_endpgm\nL_codeend:")
    A.footer(128, 102)
    return A

HEAD = """; Fused adaLN + sliding-window GQA decode attention + channel MLP, one persistent launch (gfx950).
"""
if __name__ == "__main__":
    out = sys.argv[1]
    kw = {}
    for o in sys.argv[2:]:
        if "=" in o:
            k, v = o.split("="); kw[k] = int(v)
        elif o == "stamps": kw["stamps"] = True
        elif o == "nont": kw["nt"] = ""
    A = build(**kw)
    open(out, "w").write(HEAD + A.text())
```

```python
import sys, struct
from asmlib import Asm, NAME

WS_EPOCH = 0x0
WS_QG    = 0x4000
WS_MG    = 0x10000
WS_TRIG  = 0x18000
WS_OG    = 0x20000
WS_MLG   = 0x60000
WS_PG    = 0x80000
WS_AG    = 0xC8000
WS_XG    = 0xD0000
WS_SG    = 0xD4000
WS_FG    = 0x100000
WS_STAMP = 0x8000000
L_Q = 0; L_CNT = 512; L_PW = 1024; L_ML = 5120; L_ACT4 = 5632; L_OW = 8192; L_WO = 24576
ASTR = 1216
L_BUF0 = 0; L_BUF1 = 73728; L_ACT = 147456; L_H1 = L_ACT + 8*ASTR; L_CF = L_H1 + 256; L_WCNT = L_CF + 64
LDS_BYTES = 157696
assert L_WCNT + 64 <= LDS_BYTES
SPIN = 40000
LOG2E = 0x3fb8aa3b
X_, K_, V_, WQ_, WO_, W1_, B1_, W2_, B2_, C_, WM_, OUT_, WS_ = 16, 18, 20, 22, 24, 28, 30, 32, 34, 36, 38, 40, 42
TAG = "s6"; ETAG = "s101"

def sp(n): return f"s[{n}:{n+1}]"
def vr(n, k): return f"v[{n}:{n+k-1}]"
def f2h(x): return hex(struct.unpack("<I", struct.pack("<f", x))[0])
DPPM = "row_mask:0xf bank_mask:0xf"

class G(Asm):
    def __init__(self, stamps=False, nt="nt"):
        super().__init__()
        self.stamps = stamps
        self.nt = (" " + nt) if nt else ""
    def stamp(self, i):
        if self.stamps:
            self(f"s_memrealtime s[96:97]\ns_waitcnt lgkmcnt(0)\nv_writelane_b32 v127, s96, {i}")
    def rbf(self, *pairs):
        for d, s in pairs: self(f"v_cvt_pk_bf16_f32 {d}, {s}, {s}")
        for d, s in pairs: self(f"v_and_b32 {d}, 0xffff0000, {d}")
    def r1(self, *regs): self.rbf(*[(r, r) for r in regs])
    def srd(self, b, ptr, nbytes):
        self(f"s_mov_b32 s{b}, s{ptr}\ns_and_b32 s{b+1}, s{ptr+1}, 0xffff\ns_mov_b32 s{b+2}, {nbytes}\ns_mov_b32 s{b+3}, 0x20000")
    def mktag(self):
        self(f"s_add_u32 s6, s6, 0x9e3779b9\ns_and_b32 {ETAG}, s6, 63")
    def tagcheck(self, tags, mn, mx, retry):
        if len(tags) == 1:
            self(f"v_cmp_ne_u32 vcc, {TAG}, {tags[0]}")
        else:
            assert len(tags) % 2 == 0
            for i in range(0, len(tags), 2):
                a, b = tags[i], tags[i+1]
                self(f"v_min3_u32 {mn}, {a}, {b}, {TAG if i == 0 else mn}")
                self(f"v_max3_u32 {mx}, {a}, {b}, {TAG if i == 0 else mx}")
            self(f"v_cmp_ne_u32 vcc, {mn}, {mx}")
        self(f"s_cbranch_vccnz {retry}")
    def etagcheck(self, words, acc, retry):
        assert len(words) % 2 == 0
        for i in range(0, len(words), 2):
            a, b = words[i], words[i+1]
            self(f"v_xor_b32 {a}, {ETAG}, {a}\nv_xor_b32 {b}, {ETAG}, {b}")
            if i == 0: self(f"v_or_b32 {acc}, {a}, {b}")
            else: self(f"v_or3_b32 {acc}, {a}, {b}, {acc}")
        self(f"v_and_b32 {acc}, 63, {acc}\nv_cmp_ne_u32 vcc, 0, {acc}\ns_cbranch_vccnz {retry}")
    def epack(self, d, v):
        self(f"v_bfi_b32 {d}, 63, {ETAG}, {v}")
    def spin_head(self, lab):
        self(f"s_mov_b32 s7, 0\n{lab}:\ns_add_u32 s7, s7, 1\ns_cmp_gt_u32 s7, {SPIN}\ns_cbranch_scc1 L_end")
    def row_reduce(self, op, regs, steps=4):
        for ctl in ("quad_perm:[1,0,3,2]", "quad_perm:[2,3,0,1]", "row_half_mirror", "row_mirror")[:steps]:
            if len(regs) < 3: self(f"s_nop {2 - len(regs)}")
            for r in regs:
                self(f"{op}_dpp {r}, {r}, {r} {ctl} {DPPM}")
    def lds_spin(self, off, val, vt, vbase, sleep=True):
        lab = self.label("LS")
        self.spin_head(lab)
        self(f"ds_read_b32 {vt}, {vbase} offset:{off}\ns_waitcnt lgkmcnt(0)\nv_readfirstlane_b32 s44, {vt}\ns_cmp_ge_u32 s44, {val}")
        done = self.label("LD")
        self(f"s_cbranch_scc1 {done}\n" + ("s_sleep 1\n" if sleep else "") + f"s_branch {lab}\n{done}:")
    def lds_inc(self, off, vbase, vone):
        self(f"s_mov_b64 exec, 1\nds_add_u32 {vbase}, {vone} offset:{off}\ns_mov_b64 exec, -1")

INV576 = f2h(1.0/576)
def ln_finish(A, mean, var, rs):
    A(f"v_max_f32 {var}, 0, {var}")
    A.r1(mean, var)
    A(f"v_add_f32 {var}, 0x3727c5ac, {var}")
    A.r1(var)
    A(f"v_sqrt_f32 {var}, {var}\ns_nop 0")
    A.r1(var)
    A(f"v_rcp_f32 {rs}, {var}\ns_nop 0")

def dma_tile(A, srd, voff, rowstride, ldsbase, ninstr=72):
    A(f"s_mul_i32 s44, s3, {8*rowstride}\ns_lshl_b32 s45, s3, 10\ns_add_u32 s45, s45, {ldsbase}")
    for i in range((ninstr + 15)//16):
        skip = None
        if (i+1)*16 > ninstr:
            skip = A.label("DS")
            A(f"s_cmp_ge_u32 s3, {ninstr - 16*i}\ns_cbranch_scc1 {skip}")
        A(f"s_mov_b32 m0, s45\ns_add_u32 s45, s45, 16384")
        A(f"buffer_load_dwordx4 {voff}, s[{srd}:{srd+3}], s44 offen{A.nt} lds")
        A(f"s_add_u32 s44, s44, {128*rowstride}")
        if skip: A(f"{skip}:")

def bfrags(A, vaddr, vb=52, nks=18):
    for ks in range(nks):
        for half in range(2):
            off = (ks*32 + half*16) * 128
            if off == 65536: A(f"v_add_u32 {vaddr}, 0x10000, {vaddr}")
            if off >= 65536: off -= 65536
            A(f"ds_read_b64_tr_b16 {vr(vb + ks*4 + half*2,2)}, {vaddr} offset:{off}")

def gemv_mfma(A, vaaddr, vb=52, va=24, vd=20, depth=7, nks=18):
    depth = min(depth, nks)
    def rd(ks):
        A(f"ds_read_b128 {vr(va + (ks % depth)*4,4)}, {vaaddr} offset:{ks*64}")
    for ks in range(depth): rd(ks)
    for ks in range(nks):
        issued = min(nks, depth + ks)
        A(f"s_waitcnt lgkmcnt({issued - ks - 1})")
        c = "0" if ks == 0 else vr(vd, 4)
        A(f"v_mfma_f32_16x16x32_bf16 {vr(vd,4)}, {vr(va + (ks % depth)*4,4)}, {vr(vb+ks*4,4)}, {c}")
        if ks + depth < nks: rd(ks + depth)

def fold8(A, n, a, b, t, swapb=True):
    for i in range(1, n):
        A(f"v_add_f32 v{a}, v{a}, v{a+2*i}\nv_add_f32 v{b}, v{b}, v{b+2*i}")
    A(f"""
    s_nop 1
    v_permlane32_swap_b32 v{a}, v{b}
    v_add_f32 v{a}, v{a}, v{b}
    v_mov_b32 v{t}, v{a}
    s_nop 1
    v_permlane16_swap_b32 v{a}, v{t}
    v_add_f32 v{a}, v{a}, v{t}
    s_nop 1
    v_add_f32_dpp v{a}, v{a}, v{a} row_ror:8 {DPPM}
    """)

def build(stamps=False, nt="nt", adelay=True, k1=5, k2=9, dbg=0):
    A = G(stamps, nt)
    NT = A.nt
    A.header(256, 1024, LDS_BYTES)
    A(f"""
    s_cmp_ge_u32 s2, 256
    s_cbranch_scc1 L_exit
    s_load_dwordx16 s[16:31], s[0:1], 0
    s_load_dwordx8 s[32:39], s[0:1], 64
    s_load_dwordx2 s[40:41], s[0:1], 96
    s_load_dwordx2 s[42:43], s[0:1], 112
    v_lshrrev_b32 v2, 6, v0
    v_and_b32 v1, 63, v0
    s_and_b32 s4, s2, 7
    v_readfirstlane_b32 s3, v2
    s_lshr_b32 s5, s2, 3
    v_mov_b32 v3, 0
    """)
    if stamps:
        A("v_mov_b32 v127, 0\ns_memrealtime s[98:99]")
    A(f"""
    s_cmp_lg_u32 s5, 31
    s_cbranch_scc1 L_nopf
    s_getpc_b64 s[44:45]
    L_pfbase:
    s_sub_u32 s44, s44, L_pfbase-{NAME}_kernel
    s_subb_u32 s45, s45, 0
    v_lshlrev_b32 v4, 7, v0
    v_cmp_gt_u32 vcc, L_codeend-{NAME}_kernel, v4
    s_and_saveexec_b64 s[46:47], vcc
    s_cbranch_execz L_exit
    global_load_dword v5, v4, s[44:45]
    s_waitcnt vmcnt(0)
    s_endpgm
    L_nopf:
    s_cmp_lt_u32 s5, 16
    s_cbranch_scc1 L_A
    s_sub_u32 s5, s5, 16                  ; u
    s_sub_u32 s47, s2, {24*8}             ; M idx = (u-8)*8+x
    s_mul_i32 s48, s47, 0xe39
    s_lshr_b32 s48, s48, 16               ; ksp
    s_mul_i32 s49, s48, 18
    s_sub_u32 s49, s47, s49               ; cgp
    s_mul_i32 s50, s48, {192*6912}
    s_lshl_b32 s51, s49, 7
    s_add_u32 s50, s50, s51               ; M offset
    s_lshl_b32 s51, s4, 3
    s_add_u32 s51, s51, s5                ; qb
    s_lshl_b32 s52, s51, 7                ; B offset
    v_lshrrev_b32 v4, 3, v1
    v_bfe_u32 v6, v1, 4, 2
    v_lshlrev_b32 v6, 1, v6
    v_and_b32 v7, 7, v1
    v_xor_b32 v6, v6, v7
    s_movk_i32 s53, 6912
    s_cmp_lt_u32 s5, 8
    s_cselect_b32 s50, s52, s50
    s_cselect_b32 s53, 8192, s53          ; stride
    s_cselect_b32 s54, 72, 24             ; count
    s_mul_i32 s10, s53, 576
    s_cselect_b32 s47, s51, s47
    s_cselect_b32 s55, 0, s47
    v_mul_u32_u24 v14, s53, v4
    v_lshl_add_u32 v14, v6, 4, v14
    v_add_u32 v15, s50, v14
    s_mov_b32 s11, 0x20000
    s_lshl_b32 s53, s53, 3
    s_mul_i32 s44, s3, s53
    s_lshl_b32 s53, s53, 4
    s_lshl_b32 s45, s3, 10
    s_mov_b32 s46, s3
    s_cmp_lt_u32 s5, 8
    s_waitcnt lgkmcnt(0)
    s_cselect_b32 s8, s{WQ_}, s{WM_}
    s_cselect_b32 s9, s{WQ_+1}, s{WM_+1}
    s_and_b32 s9, s9, 0xffff
    s_cmp_ge_u32 s55, 54
    s_cbranch_scc1 L_exit
    L_W_dma:
    s_mov_b32 m0, s45
    s_add_u32 s45, s45, 16384
    buffer_load_dwordx4 v15, s[8:11], s44 offen{NT} lds
    s_add_u32 s44, s44, s53
    s_add_u32 s46, s46, 16
    s_cmp_lt_u32 s46, s54
    s_cbranch_scc1 L_W_dma
    s_load_dword s6, {sp(WS_)}, {WS_EPOCH}
    s_branch L_W
    """)
    A(f"""
    L_A:
    ds_write2_b32 v3, v3, v3 offset0:{L_CNT//4} offset1:{L_CNT//4+1}
    ds_write_b32 v3, v3 offset:{L_CNT+8}
    s_lshr_b32 s44, s5, 3
    s_lshl_b32 s45, s4, 1
    s_add_u32 s46, s45, s44            ; hkv
    s_bfe_u32 s47, s5, 0x10002          ; b
    s_and_b32 s48, s5, 3                ; sp
    s_lshl_b32 s49, s47, 4
    s_add_u32 s49, s49, s46             ; b*16+hkv
    s_lshl_b32 s49, s49, 21
    s_lshl_b32 s50, s48, 17
    s_add_u32 s49, s49, s50
    s_lshl_b32 s50, s3, 13
    s_add_u32 s49, s49, s50
    s_add_u32 s49, s49, {6144*256 + 4096}
    v_bfe_u32 v5, v1, 2, 2
    v_lshlrev_b32 v5, 8, v5
    v_and_b32 v6, 48, v1
    v_lshl_or_b32 v5, v6, 2, v5
    v_and_b32 v9, 3, v1
    v_lshl_or_b32 v5, v9, 4, v5
    v_lshlrev_b32 v6, 4, v1
    s_waitcnt lgkmcnt(0)
    s_load_dword s6, {sp(WS_)}, {WS_EPOCH}
    s_add_u32 s52, s{K_}, s49
    s_addc_u32 s53, s{K_+1}, 0
    s_add_u32 s54, s{V_}, s49
    s_addc_u32 s55, s{V_+1}, 0
    """)
    def a_consts():
        A(f"""
        v_bfe_u32 v8, v1, 2, 1
        v_lshlrev_b32 v8, 8, v8
        v_and_b32 v10, 48, v1
        v_lshl_or_b32 v8, v10, 2, v8
        v_lshl_or_b32 v8, v9, 4, v8
        v_bfe_u32 v10, v1, 4, 1
        v_lshlrev_b32 v10, 7, v10
        v_bfe_u32 v11, v1, 2, 2
        v_lshl_or_b32 v10, v11, 5, v10
        v_lshl_or_b32 v10, v9, 3, v10
        v_lshrrev_b32 v11, 5, v1
        v_lshl_or_b32 v10, v11, 2, v10
        s_lshl_b32 s44, s3, 8
        v_add_u32 v10, s44, v10
        v_bfe_u32 v11, v1, 3, 1
        v_lshlrev_b32 v11, 7, v11
        v_lshrrev_b32 v12, 4, v1
        v_lshl_or_b32 v11, v12, 5, v11
        v_add_u32 v11, s44, v11
        ; masks M0..M3 (v12..v15)
        v_and_b32 v16, 1, v1
        v_mov_b32 v17, 0xffff
        v_mov_b32 v18, 0xffff0000
        v_cmp_eq_u32 vcc, 1, v16
        v_bfe_u32 v16, v1, 1, 2
        s_nop 0
        v_cndmask_b32 v17, v17, v18, vcc
        """)
        for qd in range(4):
            A(f"v_cmp_eq_u32 vcc, {qd}, v16\ns_nop 1\nv_cndmask_b32 v{12+qd}, 0, v17, vcc")
        A(f"""
        v_and_b32 v16, 15, v1
        v_lshlrev_b32 v18, 3, v16             ; (l&15)*8
        v_lshlrev_b32 v16, 5, v16
        v_bfe_u32 v17, v1, 4, 1
        v_lshl_or_b32 v16, v17, 4, v16
        v_lshlrev_b32 v19, 7, v17
        v_lshrrev_b32 v17, 5, v1
        v_lshl_or_b32 v16, v17, 9, v16
        v_lshl_or_b32 v18, v17, 7, v18
        v_lshlrev_b32 v28, 7, v17
        s_lshl_b32 s44, s3, 10
        v_add_u32 v16, s44, v16
        s_lshl_b32 s44, s3, 3
        v_add_u32 v19, s44, v19
        v_add_u32 v28, s44, v28
        v_mov_b32 v7, 1
        s_mov_b32 s58, 0x22222222
        s_mov_b32 s59, 0x22222222
        s_mov_b32 s60, 0x44444444
        s_mov_b32 s61, 0x44444444
        s_mov_b32 s62, 0x88888888
        s_mov_b32 s63, 0x88888888
        """)
    if adelay:
        a_consts()
        A("s_waitcnt lgkmcnt(0)")
    A("s_barrier")
    for t in range(8):
        A(f"global_load_dwordx4 {vr(32+4*t,4)}, v5, s[52:53] offset:{t*1024-4096}{NT}")
    for t in range(8):
        A(f"global_load_dwordx4 {vr(64+4*t,4)}, v6, s[54:55] offset:{t*1024-4096}{NT}")
    if stamps: A("s_waitcnt lgkmcnt(0)\nv_writelane_b32 v127, s98, 0")
    A.stamp(1)
    if not adelay: a_consts()
    A(f"""
    s_mov_b64 exec, 1
    ds_add_rtn_u32 v20, v3, v7 offset:{L_CNT+4}
    s_cmp_lt_u32 s5, 9
    s_cselect_b32 s45, {k2-1}, {k1-1}
    s_waitcnt lgkmcnt(0)
    """)
    A.mktag()
    A(f"""
    v_readfirstlane_b32 s44, v20
    s_cmp_eq_u32 s44, s45
    s_cbranch_scc0 L_A_notrig
    s_lshl_b32 s44, s4, 4
    s_add_u32 s44, s44, s5
    s_lshl_b32 s44, s44, 7
    s_add_u32 s44, s44, {WS_TRIG}
    v_mov_b32 v20, s44
    v_mov_b32 v21, {TAG}
    global_store_dword v20, v21, {sp(WS_)} sc1
    L_A_notrig:
    s_mov_b64 exec, -1
    s_cmp_ge_u32 s3, 8
    s_cbranch_scc1 L_A_qwait
    s_lshl_b32 s44, s47, 14
    s_lshl_b32 s45, s46, 10
    s_add_u32 s44, s44, s45
    s_lshl_b32 s45, s3, 7
    s_add_u32 s44, s44, s45
    s_add_u32 s44, s44, {WS_QG}
    s_add_u32 s56, s{WS_}, s44
    s_addc_u32 s57, s{WS_+1}, 0
    """)
    A.spin_head("L_A_qpoll")
    A("s_sleep 1\ns_load_dwordx16 s[64:79], s[56:57], 0 glc\ns_load_dwordx16 s[80:95], s[56:57], 64 glc\ns_waitcnt lgkmcnt(0)")
    for i in range(16):
        A(f"s_cmp_lg_u32 s{65+2*i}, {TAG}\ns_cbranch_scc1 L_A_qpoll")
    A("s_mov_b64 exec, 1")
    for i in range(16):
        A(f"v_mov_b32 v{96+i}, s{64+2*i}")
    A(f"s_lshl_b32 s44, s3, 6\nv_mov_b32 v20, s44")
    for i in range(4):
        A(f"ds_write_b128 v20, {vr(96+4*i,4)} offset:{L_Q+16*i}")
    A(f"""
    ds_add_u32 v3, v7 offset:{L_CNT}
    s_mov_b64 exec, -1
    L_A_qwait:
    s_mov_b32 s56, 0xff00ff00
    s_mov_b32 s57, 0xff00ff00
    """)
    A.lds_spin(L_CNT, 8, "v17", "v3")
    A.stamp(2)
    A(f"ds_read_b128 v[20:23], v8 offset:{L_Q}\ns_waitcnt lgkmcnt(0)")
    for i in range(4):
        A(f"v_cndmask_b32 v{24+i}, 0, v{20+i}, s[56:57]")
        A(f"v_cndmask_b32 v{20+i}, v{20+i}, 0, s[56:57]")
    A("s_nop 1")
    for u in range(4):
        A(f"s_waitcnt vmcnt({15-2*u})")
        A(f"v_mfma_f32_16x16x32_bf16 {vr(96+4*u,4)}, v[20:23], {vr(32+8*u,4)}, 0")
        A(f"s_waitcnt vmcnt({14-2*u})")
        A(f"v_mfma_f32_16x16x32_bf16 {vr(96+4*u,4)}, v[24:27], {vr(36+8*u,4)}, {vr(96+4*u,4)}")
    A.stamp(3)
    A("s_nop 4")
    for u in range(4):
        if u == 3: A("s_nop 1")
        A(f"v_mov_b32_dpp v{112+u}, v{96+4*u} quad_perm:[0,0,0,0] {DPPM}")
    for c in range(1, 4):
        for u in range(4):
            A(f"v_add_f32_dpp v{112+u}, v{96+4*u+c}, v{112+u} quad_perm:[{c},{c},{c},{c}] {DPPM}")
    A("""
    v_cndmask_b32 v112, v112, v113, s[58:59]
    v_cndmask_b32 v112, v112, v114, s[60:61]
    v_cndmask_b32 v112, v112, v115, s[62:63]
    """)
    A.r1("v112")
    A("v_mul_f32 v112, 0x3db504f3, v112")
    A.r1("v112")
    A("v_mov_b32 v116, v112")
    A.row_reduce("v_max_f32", ["v116"])
    A(f"""
    v_mov_b32 v114, v116
    s_nop 1
    v_permlane32_swap_b32 v116, v114
    v_max_f32 v116, v116, v114
    v_sub_f32 v112, v112, v116
    v_mul_f32 v112, {hex(LOG2E)}, v112
    v_exp_f32 v112, v112
    s_nop 0
    v_cvt_pk_bf16_f32 v115, v112, v112
    ds_write_b32 v10, v115 offset:{L_PW}
    ds_read_b128 v[96:99], v11 offset:{L_PW}
    ds_read_b128 v[100:103], v11 offset:{L_PW+16}
    """)
    A.row_reduce("v_add_f32", ["v112"])
    A(f"""
    v_mov_b32 v114, v112
    s_nop 1
    v_permlane32_swap_b32 v112, v114
    v_add_f32 v117, v112, v114
    s_mov_b32 exec_lo, 0x10001
    s_mov_b32 exec_hi, 0
    ds_write_b64 v19, v[116:117] offset:{L_ML}
    s_mov_b64 exec, 1
    ds_add_u32 v3, v7 offset:{L_CNT+8}
    s_mov_b64 exec, -1
    s_waitcnt lgkmcnt(2)
    """)
    for t in range(8):
        for qd in range(4):
            A(f"v_and_b32 v{32+4*t+qd}, v{96+t}, v{12+qd}")
    def scale():
        A.lds_spin(L_CNT+8, 16, "v17", "v3")
        A(f"""
        ds_read_b64 v[108:109], v18 offset:{L_ML}
        ds_read_b32 v110, v28 offset:{L_ML}
        s_waitcnt lgkmcnt(0)
        v_mov_b32 v111, v108
        """)
        A.row_reduce("v_max_f32", ["v111"])
        A(f"""
        v_sub_f32 v110, v110, v111
        v_mul_f32 v110, {hex(LOG2E)}, v110
        v_exp_f32 v110, v110
        """)
    def pv():
        A("s_nop 1")
        for t in range(8):
            A(f"s_waitcnt vmcnt({7-t})")
            c = "0" if t == 0 else "v[104:107]"
            A(f"v_mfma_f32_16x16x32_bf16 v[104:107], {vr(32+4*t,4)}, {vr(64+4*t,4)}, {c}")
    A("s_cmp_lt_u32 s3, 8\ns_cbranch_scc1 L_A_early")
    scale()
    pv()
    A("s_nop 7\ns_branch L_A_ow")
    A("L_A_early:")
    pv()
    A.srd(8, WO_, 4096*1152)
    A(f"""
    v_mul_u32_u24 v20, 0xe39, v1
    v_lshrrev_b32 v20, 16, v20            ; lane/18
    v_mul_u32_u24 v21, 18, v20
    v_sub_u32 v21, v1, v21                ; lane%18
    v_mul_u32_u24 v20, 1152, v20
    v_lshl_add_u32 v20, v21, 4, v20
    s_lshl_b32 s44, s46, 1
    s_add_u32 s44, s44, s47
    s_mul_i32 s44, s44, {128*1152}
    s_mul_i32 s45, s48, 288
    s_add_u32 s44, s44, s45
    s_mul_i32 s45, s3, 3456
    s_add_u32 s50, s44, s45
    s_mul_i32 s51, s3, 864
    s_add_u32 s51, s51, {L_WO}
    """)
    A.lds_spin(L_CNT+4, 16, "v17", "v3")
    A("s_mov_b32 exec_hi, 0x3fffff")
    for i in range(6):
        if i == 5: A("s_cmp_ge_u32 s3, 3\ns_cbranch_scc1 L_A_wodone")
        A(f"s_mov_b32 m0, s51\ns_add_u32 s51, s51, {8*864}")
        A(f"buffer_load_dwordx4 v20, s[8:11], s50 offen{NT} lds")
        A(f"s_add_u32 s50, s50, {8*3456}")
    A("L_A_wodone:\ns_mov_b64 exec, -1")
    scale()
    A(f"""
    s_cmp_lg_u32 s3, 0
    s_cbranch_scc1 L_A_ow
    v_sub_f32 v20, v108, v111
    v_mul_f32 v20, {hex(LOG2E)}, v20
    v_exp_f32 v20, v20
    s_lshl_b32 s50, s4, 4
    s_add_u32 s50, s50, s5
    s_lshl_b32 s50, s50, 7
    s_add_u32 s50, s50, {WS_MLG}
    v_mul_f32 v22, v20, v109
    """)
    A.row_reduce("v_add_f32", ["v22"])
    A(f"""
    v_lshl_add_u32 v24, v1, 1, s50
    v_mov_b32 v20, v111
    v_mov_b32 v21, {TAG}
    v_mov_b32 v23, {TAG}
    s_mov_b32 exec_lo, 1
    s_mov_b32 exec_hi, 1
    global_store_dwordx4 v24, v[20:23], {sp(WS_)} sc1
    s_mov_b64 exec, -1
    L_A_ow:
    v_mul_f32 v104, v104, v110
    v_mul_f32 v105, v105, v110
    v_mul_f32 v106, v106, v110
    v_mul_f32 v107, v107, v110
    ds_write_b128 v16, v[104:107] offset:{L_OW}
    s_sub_u32 s44, s3, 8
    s_lshl_b32 s45, s44, 8
    v_lshl_add_u32 v18, v1, 2, s45
    s_lshl_b32 s50, s4, 4
    s_add_u32 s50, s50, s5                ; a
    s_lshl_b32 s51, s50, 10
    s_add_u32 s51, s51, {WS_OG}
    v_add_u32 v19, s51, v18
    """)
    A.stamp(4)
    A(f"""
    s_cmp_ge_u32 s44, 4
    s_waitcnt lgkmcnt(0)
    s_barrier
    s_cbranch_scc1 L_A_b15
    """)
    for w in range(16):
        A(f"ds_read_b32 v{32+w}, v18 offset:{L_OW + w*1024}")
    for w in range(0, 16, 2):
        A(f"s_waitcnt lgkmcnt({14-w})")
        if w == 0: A("v_add_f32 v26, v32, v33")
        else: A(f"v_add_f32 v27, v{32+w}, v{33+w}\nv_add_f32 v26, v26, v27")
    A.epack("v26", "v26")
    A(f"global_store_dword v19, v26, {sp(WS_)} sc1")
    A("L_A_b15:")
    A.stamp(6)
    A(f"""
    s_cmp_lt_u32 s3, 9
    s_cbranch_scc1 L_A_s4m
    s_cmp_eq_u32 s3, 15
    s_cbranch_scc1 L_A_red
    s_sub_u32 s44, s3, 12
    s_cmp_ge_u32 s44, 2
    s_cbranch_scc1 L_end
    s_lshl_b32 s50, s4, 4
    s_and_b32 s45, s5, 8
    s_add_u32 s50, s50, s45
    s_lshl_b32 s45, s44, 2
    s_add_u32 s50, s50, s45
    s_lshl_b32 s51, s50, 7
    s_lshl_b32 s45, s47, 6
    s_add_u32 s51, s51, s45
    s_add_u32 s51, s51, {WS_MLG}
    v_mov_b32 v18, s51
    s_lshl_b32 s51, s50, 10
    s_lshl_b32 s45, s47, 9
    s_add_u32 s51, s51, s45
    s_add_u32 s51, s51, {WS_OG}
    v_lshl_add_u32 v17, v1, 3, s51
    """)
    def mlloads():
        for s_ in range(4):
            A(f"global_load_dwordx4 {vr(48+4*s_,4)}, v18, {sp(WS_)} offset:{s_*128} sc1")
    def oloads():
        for s_ in range(4):
            A(f"global_load_dwordx2 {vr(32+2*s_,2)}, v17, {sp(WS_)} offset:{s_*1024} sc1")
    mlloads()
    A(f"""
    v_lshrrev_b32 v19, 4, v1
    v_lshlrev_b32 v19, 6, v19
    v_bfe_u32 v20, v1, 1, 2
    v_lshl_or_b32 v19, v20, 4, v19
    v_bfe_u32 v20, v1, 3, 1
    v_lshl_or_b32 v19, v20, 3, v19
    v_and_b32 v20, 1, v1
    v_lshl_or_b32 v19, v20, 2, v19
    s_lshl_b32 s45, s44, 8
    v_add_u32 v19, s45, v19
    s_barrier
    s_mov_b32 s7, 0
    s_branch L_A_mlchk
    L_A_ml:
    s_add_u32 s7, s7, 1
    s_cmp_gt_u32 s7, {SPIN}
    s_cbranch_scc1 L_end
    """)
    mlloads()
    A("L_A_mlchk:")
    oloads()
    A("s_waitcnt vmcnt(4)")
    A.tagcheck([f"v{49+2*i}" for i in range(8)], "v20", "v21", "L_A_ml")
    A("v_max_f32 v20, v48, v52\nv_max3_f32 v20, v56, v60, v20")
    for s_ in range(4): A(f"v_sub_f32 v{21+s_}, v{48+4*s_}, v20")
    for s_ in range(4): A(f"v_mul_f32 v{21+s_}, {hex(LOG2E)}, v{21+s_}")
    for s_ in range(4): A(f"v_exp_f32 v{21+s_}, v{21+s_}")
    A("v_mul_f32 v25, v21, v50")
    for s_ in range(1, 4): A(f"v_fmac_f32 v25, v{21+s_}, v{50+4*s_}")
    A("v_rcp_f32 v25, v25\ns_nop 0")
    for s_ in range(4): A(f"v_mul_f32 v{21+s_}, v{21+s_}, v25")
    A("s_mov_b32 s7, 0\ns_branch L_A_ochk")
    A(f"L_A_h3:\ns_add_u32 s7, s7, 1\ns_cmp_gt_u32 s7, {SPIN}\ns_cbranch_scc1 L_end")
    oloads()
    A("L_A_ochk:\ns_waitcnt vmcnt(0)")
    A.etagcheck([f"v{32+i}" for i in range(8)], "v20", "L_A_h3")
    A("v_mul_f32 v26, v21, v32\nv_mul_f32 v27, v21, v33")
    for s_ in range(1, 4):
        A(f"v_fmac_f32 v26, v{21+s_}, v{32+2*s_}\nv_fmac_f32 v27, v{21+s_}, v{33+2*s_}")
    A(f"""
    v_cvt_pk_bf16_f32 v26, v26, v27
    ds_write_b32 v19, v26 offset:{L_ACT4}
    s_waitcnt lgkmcnt(0)
    s_barrier
    """)
    A.stamp(8)
    A("s_branch L_end")
    A(f"""
    L_A_s4m:
    v_lshrrev_b32 v17, 2, v1
    v_mul_u32_u24 v17, 288, v17
    v_lshl_add_u32 v17, v9, 3, v17
    s_lshl_b32 s44, s3, 5
    v_add_u32 v17, s44, v17
    v_and_b32 v18, 1, v1
    v_lshlrev_b32 v18, 8, v18
    v_and_b32 v19, 48, v1
    v_add_u32 v18, v18, v19
    s_mul_i32 s44, s48, 18
    s_lshl_b32 s45, s3, 1
    s_add_u32 s44, s44, s45
    s_lshl_b32 s44, s44, 11
    s_lshl_b32 s45, s46, 1
    s_add_u32 s45, s45, s47
    s_lshl_b32 s45, s45, 6
    s_add_u32 s44, s44, s45
    s_add_u32 s44, s44, {WS_PG}
    v_bfe_u32 v19, v1, 3, 1
    v_lshlrev_b32 v19, 11, v19
    v_and_b32 v20, 7, v1
    v_lshl_or_b32 v19, v20, 3, v19
    v_add_u32 v19, s44, v19
    s_cmp_eq_u32 s3, 8
    s_cbranch_scc1 L_A_s4b
    s_waitcnt vmcnt(0)
    L_A_s4b:
    s_barrier
    """)
    A.stamp(7)
    for ks in range(4):
        for half in range(2):
            A(f"ds_read_b64_tr_b16 {vr(32+ks*4+half*2,2)}, v17 offset:{L_WO + (ks*32+half*16)*288}")
    A("s_waitcnt lgkmcnt(0)\ns_barrier")
    for ks in range(4):
        A(f"ds_read_b128 {vr(48+4*ks,4)}, v18 offset:{L_ACT4 + ks*64}")
    for ks in range(4):
        c = "0" if ks == 0 else "v[20:23]"
        A(f"s_waitcnt lgkmcnt({3-ks})\nv_mfma_f32_16x16x32_bf16 v[20:23], {vr(48+4*ks,4)}, {vr(32+4*ks,4)}, {c}")
    A("s_mov_b64 exec, 0xffff\ns_nop 6")
    A.epack("v24", "v20"); A.epack("v25", "v21")
    A(f"global_store_dwordx2 v19, v[24:25], {sp(WS_)} sc1\ns_mov_b64 exec, -1")
    A.stamp(9)
    A("s_branch L_end")
    A(f"""
    L_A_red:
    s_cmp_ge_u32 s5, 9
    s_cbranch_scc1 L_end
    s_mul_i32 s50, s4, 9
    s_add_u32 s50, s50, s5                ; rho
    v_and_b32 v17, 7, v1
    s_lshl_b32 s44, s50, 3
    v_add_u32 v17, s44, v17               ; col
    v_lshrrev_b32 v18, 5, v1              ; b
    v_mul_u32_u24 v19, 1152, v18
    v_lshl_add_u32 v19, v17, 1, v19
    v_lshlrev_b32 v20, 1, v17
    global_load_ushort v21, v19, {sp(X_)}
    global_load_ushort v22, v20, {sp(B2_)}
    global_load_ushort v23, v19, {sp(OUT_)}
    v_lshlrev_b32 v20, 3, v17             ; col*8
    v_add_u32 v24, {WS_MG + 2304}, v20
    v_add_u32 v25, {WS_MG + 2304 + 9216}, v20
    v_add_u32 v26, {WS_XG}, v20
    s_lshl_b32 s44, s50, 11
    s_add_u32 s44, s44, {WS_PG}
    v_lshl_add_u32 v27, v1, 3, s44
    s_mul_i32 s44, s50, 4608
    s_add_u32 s44, s44, {WS_FG + 2048}
    v_lshl_add_u32 v28, v1, 3, s44
    s_lshl_b32 s44, s50, 6
    s_add_u32 s44, s44, {WS_SG}
    v_add_u32 v29, s44, v1
    v_lshlrev_b32 v18, 4, v18             ; 16*b
    s_mov_b32 s56, 0xffff0000             ; d>=2
    s_mov_b32 s57, 0xffff0000
    s_mov_b32 s58, 0xff00ff00             ; d odd
    s_mov_b32 s59, 0xff00ff00
    """)
    mgl = f"""
    global_load_dwordx2 v[32:33], v24, {sp(WS_)} offset:-2304 sc1
    global_load_dwordx2 v[34:35], v24, {sp(WS_)} offset:2304 sc1
    global_load_dwordx2 v[36:37], v25, {sp(WS_)} offset:-2304 sc1
    global_load_dwordx2 v[38:39], v25, {sp(WS_)} offset:2304 sc1
    """
    A(mgl)
    A(f"s_barrier\ns_barrier\ns_mov_b32 s7, 0\ns_branch L_A_mchk")
    A(f"L_A_mg:\ns_add_u32 s7, s7, 1\ns_cmp_gt_u32 s7, {SPIN}\ns_cbranch_scc1 L_end")
    A(mgl)
    A("L_A_mchk:\ns_waitcnt vmcnt(0)")
    A.tagcheck(["v33", "v35", "v37", "v39"], "v30", "v31", "L_A_mg")
    def pgloads():
        for i in range(4):
            A(f"global_load_dwordx2 {vr(40+2*i,2)}, v27, {sp(WS_)} offset:{i*512} sc1")
    pgloads()
    A("""
    v_lshrrev_b32 v32, v18, v32
    v_lshrrev_b32 v34, v18, v34
    v_lshrrev_b32 v36, v18, v36
    v_lshrrev_b32 v38, v18, v38
    v_lshlrev_b32 v24, 16, v32            ; ga
    v_lshlrev_b32 v34, 16, v34            ; sb
    v_lshlrev_b32 v36, 16, v36            ; cb
    v_lshlrev_b32 v25, 16, v38            ; gb
    v_add_f32 v36, 1.0, v36
    v_lshlrev_b32 v21, 16, v21            ; x
    v_lshlrev_b32 v22, 16, v22            ; b2
    """)
    A.r1("v36")
    A("v_cndmask_b32 v35, v36, v34, s[58:59]")
    A.stamp(8)
    A("s_mov_b32 s7, 0\ns_branch L_A_pchk")
    A(f"L_A_pg:\ns_add_u32 s7, s7, 1\ns_cmp_gt_u32 s7, {SPIN}\ns_cbranch_scc1 L_end")
    pgloads()
    A("L_A_pchk:\ns_waitcnt vmcnt(0)")
    A.etagcheck([f"v{40+i}" for i in range(8)], "v30", "L_A_pg")
    A.stamp(9)
    fold8(A, 4, 40, 41, 42)
    A.r1("v40")
    A("v_mul_f32 v40, v24, v40")
    A.r1("v40")
    A("v_add_f32 v40, v21, v40")
    A.rbf(("v21", "v40"))
    A("v_mul_f32 v40, v21, v36")
    A.r1("v40")
    A(f"""
    v_mov_b32 v32, v40
    v_mov_b32 v33, v40
    v_cndmask_b32 v42, v21, v40, s[56:57]         ; U
    v_mul_f32 v43, v40, v35                       ; Q = a*g | a*sb
    v_permlane32_swap_b32 v32, v33
    v_lshrrev_b32 v32, 16, v32
    v_or_b32 v32, v32, v33
    v_mov_b32 v33, {TAG}
    s_mov_b64 exec, 0xff
    global_store_dwordx2 v26, v[32:33], {sp(WS_)} sc1
    s_mov_b64 exec, -1
    v_cndmask_b32 v44, 1.0, v42, s[58:59]         ; W
    v_mul_f32 v42, v42, v44                       ; P
    """)
    A("s_nop 0")
    A.row_reduce("v_add_f32", ["v42", "v43"], steps=3)
    A.epack("v42", "v42"); A.epack("v43", "v43")
    A(f"""
    s_mov_b32 exec_lo, 0x01010101
    s_mov_b32 exec_hi, 0x01010101
    global_store_dwordx2 v29, v[42:43], {sp(WS_)} sc1
    s_mov_b64 exec, -1
    """)
    A.stamp(10)
    A.spin_head("L_A_fg")
    for i in range(9):
        A(f"global_load_dwordx2 {vr(40+2*i,2)}, v28, {sp(WS_)} offset:{i*512-2048} sc1")
    A("s_waitcnt vmcnt(0)")
    A.etagcheck([f"v{40+i}" for i in range(18)], "v30", "L_A_fg")
    A.stamp(11)
    fold8(A, 9, 40, 41, 42)
    A.r1("v40")
    A("v_add_f32 v40, v22, v40")
    A.r1("v40")
    A("v_mul_f32 v40, v25, v40")
    A.r1("v40")
    A(f"""
    v_add_f32 v40, v21, v40
    v_cvt_pk_bf16_f32 v40, v40, v40
    s_mov_b32 exec_lo, 0xff
    s_mov_b32 exec_hi, 0xff
    global_store_short v19, v40, {sp(OUT_)}
    s_cmp_lg_u32 s50, 0
    s_cbranch_scc1 L_A_fin
    s_mov_b64 exec, 1
    v_mov_b32 v33, {TAG}
    global_store_dword v3, v33, {sp(WS_)} sc1
    L_A_fin:
    s_mov_b64 exec, -1
    """)
    A.stamp(12)
    A("s_branch L_end")

    A("L_W:")
    if stamps: A("v_writelane_b32 v127, s98, 0")
    A.stamp(1)
    A(f"""
    v_mov_b32 v18, {L_WCNT}
    ds_write2_b32 v18, v3, v3 offset1:1
    v_lshrrev_b32 v8, 5, v0
    v_lshlrev_b32 v8, 6, v8
    v_bfe_u32 v9, v0, 2, 2
    v_lshl_or_b32 v8, v9, 4, v8
    v_bfe_u32 v9, v0, 4, 1
    v_lshl_or_b32 v8, v9, 3, v8
    v_and_b32 v9, 3, v0
    v_lshl_or_b32 v8, v9, 1, v8
    v_add_u32 v8, {L_ACT}, v8
    s_and_b32 s46, s3, 3
    v_bfe_u32 v10, v1, 3, 2
    v_xor_b32 v10, s46, v10
    v_lshlrev_b32 v10, 5, v10
    v_lshrrev_b32 v11, 2, v1
    v_lshl_or_b32 v10, v11, 7, v10
    v_lshl_or_b32 v10, v9, 3, v10
    v_and_b32 v11, 48, v1
    v_add_u32 v11, {L_ACT}, v11
    v_and_b32 v12, 1, v1
    v_mul_u32_u24 v12, {4*ASTR}, v12
    v_add_u32 v12, v11, v12
    v_and_b32 v13, 4, v1
    v_mul_u32_u24 v13, {ASTR}, v13
    v_add_u32 v13, v11, v13
    v_mov_b32 v17, 1
    s_cmp_ge_u32 s5, 8
    s_cbranch_scc1 L_M
    s_waitcnt lgkmcnt(0)
    """)
    A.mktag()
    A(f"""
    s_barrier
    s_cmp_ge_u32 s3, 9
    s_cbranch_scc1 L_B_nh
    v_lshlrev_b32 v15, 1, v0
    global_load_ushort v33, v15, {sp(X_)}
    global_load_ushort v34, v15, {sp(X_)} offset:1152
    v_mul_u32_u24 v15, 36, v1
    global_load_dwordx4 v[24:27], v15, {sp(X_)}
    global_load_dwordx4 v[28:31], v15, {sp(X_)} offset:16
    global_load_dword v32, v15, {sp(X_)} offset:32
    v_lshlrev_b32 v15, 3, v0
    v_add_u32 v52, {WS_AG + 2304}, v15
    v_add_u32 v53, {WS_AG + 2304 + 9216}, v15
    v_add_u32 v54, {WS_AG + 2304 + 18432}, v15
    """)
    def ag_loads():
        for k in range(3):
            A(f"global_load_dwordx2 {vr(40+4*k,2)}, v{52+k}, {sp(WS_)} offset:-2304 sc1")
            A(f"global_load_dwordx2 {vr(42+4*k,2)}, v{52+k}, {sp(WS_)} offset:2304 sc1")
    ag_loads()
    A(f"""
    s_mov_b32 s44, 0x3f803f80
    v_mov_b32 v35, 0
    v_mov_b32 v36, 0
    s_waitcnt vmcnt(6)
    """)
    A.lds_inc(0, "v18", "v17")
    A.stamp(2)
    for i in range(9):
        A(f"v_dot2_f32_bf16 v35, v{24+i}, s44, v35\nv_dot2_f32_bf16 v36, v{24+i}, v{24+i}, v36")
    A("s_nop 2")
    A.row_reduce("v_add_f32", ["v35", "v36"])
    A(f"""
    v_mov_b32 v37, v35
    v_mov_b32 v38, v36
    s_nop 0
    v_permlane16_swap_b32 v35, v37
    v_permlane16_swap_b32 v36, v38
    v_add_f32 v35, v35, v37
    v_add_f32 v36, v36, v38
    v_mul_f32 v35, {INV576}, v35
    v_mul_f32 v36, {INV576}, v36
    v_fma_f32 v36, -v35, v35, v36
    """)
    ln_finish(A, "v35", "v36", "v38")
    A("""
    v_readlane_b32 s48, v35, 0
    v_readlane_b32 s49, v35, 32
    v_readlane_b32 s50, v38, 0
    v_readlane_b32 s51, v38, 32
    v_lshlrev_b32 v33, 16, v33
    v_lshlrev_b32 v34, 16, v34
    v_subrev_f32 v33, s48, v33
    v_subrev_f32 v34, s49, v34
    """)
    A.r1("v33", "v34")
    A("v_mul_f32 v33, s50, v33\nv_mul_f32 v34, s51, v34")
    A.r1("v33", "v34")
    A("s_mov_b32 s7, 0\ns_branch L_B_chk")
    A(f"L_B_h:\ns_add_u32 s7, s7, 1\ns_cmp_gt_u32 s7, {SPIN}\ns_cbranch_scc1 L_end")
    ag_loads()
    A("L_B_chk:\ns_waitcnt vmcnt(0)")
    A.etagcheck([f"v{40+i}" for i in range(12)], "v39", "L_B_h")
    for i in range(4): A(f"v_add_f32 v{40+i}, v{40+i}, v{44+i}")
    for i in range(4): A(f"v_add_f32 v{40+i}, v{40+i}, v{48+i}")
    A.r1("v40", "v41", "v42", "v43")
    A("v_add_f32 v42, 1.0, v42\nv_add_f32 v43, 1.0, v43")
    A.r1("v42", "v43")
    A("v_mul_f32 v42, v33, v42\nv_mul_f32 v43, v34, v43")
    A.r1("v42", "v43")
    A(f"""
    v_add_f32 v42, v42, v40
    v_add_f32 v43, v43, v41
    v_cvt_pk_bf16_f32 v16, v42, v43
    ds_write_b16 v8, v16
    ds_write_b16_d16_hi v8, v16 offset:{4*ASTR}
    s_waitcnt lgkmcnt(0)
    """)
    A.stamp(3)
    A(f"""
    s_barrier
    s_branch L_S5
    L_B_nh:
    s_waitcnt vmcnt(0)
    """)
    A.lds_inc(0, "v18", "v17")
    A(f"""
    s_cmp_ge_u32 s3, 12
    s_cbranch_scc1 L_B_m
    s_waitcnt lgkmcnt(0)
    s_barrier
    s_branch L_S5
    L_B_m:
    """)
    A.lds_spin(0, 16, "v16", "v18")
    A.stamp(2)
    A("v_mov_b32 v15, v10")
    bfrags(A, "v15")
    A(f"""
    s_lshl_b32 s44, s47, 8
    s_lshl_b32 s45, s46, 6
    s_add_u32 s44, s44, s45
    s_add_u32 s44, s44, {WS_QG}
    v_and_b32 v15, 15, v1
    v_lshlrev_b32 v15, 2, v15
    v_bfe_u32 v16, v1, 4, 1
    v_lshl_or_b32 v15, v16, 14, v15
    v_add_u32 v15, s44, v15
    s_waitcnt lgkmcnt(0)
    s_barrier
    """)
    gemv_mfma(A, "v13")
    A(f"""
    s_nop 7
    v_mov_b32_dpp v21, v20 quad_perm:[1,0,3,2] {DPPM}
    v_mov_b32 v23, {TAG}
    v_cvt_pk_bf16_f32 v22, v20, v21
    s_mov_b32 exec_lo, 0x55555555
    s_mov_b32 exec_hi, 0
    global_store_dwordx2 v15, v[22:23], {sp(WS_)} sc1
    s_mov_b64 exec, -1
    """)
    A.stamp(4)
    A("s_branch L_S5")

    A(f"""
    L_M:
    s_cmp_ge_u32 s3, 9
    s_cbranch_scc1 L_M_bar0
    v_lshlrev_b32 v15, 1, v0
    global_load_ushort v16, v15, {sp(C_)}
    global_load_ushort v17, v15, {sp(C_)} offset:1152
    s_waitcnt vmcnt(0)
    v_lshlrev_b32 v16, 16, v16
    v_lshlrev_b32 v17, 16, v17
    v_mul_f32 v34, 0xbfb8aa3b, v16
    v_mul_f32 v35, 0xbfb8aa3b, v17
    v_exp_f32 v34, v34
    v_exp_f32 v35, v35
    s_nop 0
    v_add_f32 v34, 1.0, v34
    v_add_f32 v35, 1.0, v35
    v_rcp_f32 v34, v34
    v_rcp_f32 v35, v35
    s_nop 0
    v_mul_f32 v16, v16, v34
    v_mul_f32 v17, v17, v35
    v_cvt_pk_bf16_f32 v16, v16, v17
    ds_write_b16 v8, v16
    ds_write_b16_d16_hi v8, v16 offset:{4*ASTR}
    L_M_bar0:
    s_mul_i32 s44, s48, 384
    v_add_u32 v15, s44, v12
    s_mul_i32 s44, s48, 9216
    s_lshl_b32 s45, s49, 9
    s_add_u32 s44, s44, s45
    s_lshl_b32 s45, s46, 7
    s_add_u32 s44, s44, s45
    s_add_u32 s44, s44, {WS_AG}
    v_lshl_add_u32 v18, v1, 3, s44
    s_waitcnt vmcnt(0) lgkmcnt(0)
    """)
    A.mktag()
    A("s_barrier")
    A.stamp(2)
    A("s_cmp_lt_u32 s3, 12\ns_cbranch_scc1 L_M_bar1")
    bfrags(A, "v10", 52, 6)
    gemv_mfma(A, "v15", nks=6)
    A("s_mov_b64 exec, 0xffff\ns_nop 6")
    A.epack("v22", "v20"); A.epack("v23", "v21")
    A(f"global_store_dwordx2 v18, v[22:23], {sp(WS_)} sc1\ns_mov_b64 exec, -1")
    A.stamp(3)
    def trig_wait(lab):
        A(f"""
        s_cmp_lg_u32 s3, 0
        s_cbranch_scc1 {lab}_b
        s_lshl_b32 s44, s4, 4
        s_add_u32 s44, s44, s5
        s_lshl_b32 s44, s44, 7
        s_add_u32 s44, s44, {WS_TRIG}
        s_add_u32 s48, s{WS_}, s44
        s_addc_u32 s49, s{WS_+1}, 0
        """)
        A.spin_head(lab)
        A(f"""
        s_sleep 2
        s_load_dword s50, s[48:49], 0 glc
        s_waitcnt lgkmcnt(0)
        s_cmp_lg_u32 s50, {TAG}
        s_cbranch_scc1 {lab}
        {lab}_b:
        s_barrier
        """)
    A(f"""
    L_M_bar1:
    s_cmp_eq_u32 s5, 8
    s_cbranch_scc1 L_S5
    s_sub_u32 s47, s47, 8                 ; idx2
    s_cmp_ge_u32 s47, 36
    s_cbranch_scc1 L_end
    s_lshl_b32 s44, s47, 7
    s_add_u32 s44, s44, 2304
    v_add_u32 v14, s44, v14
    """)
    trig_wait("L_M_trig")
    A.stamp(6)
    dma_tile(A, 8, "v14", 6912, L_BUF0)
    A(f"""
    s_waitcnt vmcnt(0)
    s_barrier
    s_cmp_lt_u32 s3, 12
    s_cbranch_scc1 L_end
    v_mov_b32 v15, v10
    """)
    A.stamp(4)
    bfrags(A, "v15")
    A(f"""
    s_lshl_b32 s44, s47, 9
    s_lshl_b32 s45, s46, 7
    s_add_u32 s44, s44, s45
    s_add_u32 s44, s44, {WS_MG}
    v_lshl_add_u32 v18, v1, 3, s44
    """)
    gemv_mfma(A, "v12")
    A(f"""
    s_nop 7
    v_cvt_pk_bf16_f32 v22, v20, v21
    v_mov_b32 v23, {TAG}
    s_mov_b64 exec, 0xffff
    global_store_dwordx2 v18, v[22:23], {sp(WS_)} sc1
    s_mov_b64 exec, -1
    """)
    A.stamp(5)
    A("s_branch L_end")

    A(f"""
    L_S5:
    s_mul_i32 s47, s4, 9
    s_add_u32 s47, s47, s5                ; f
    """)
    A.srd(8, W1_, 576*9216)
    A.srd(12, W2_, 4608*1152)
    A(f"""
    s_lshl_b32 s44, s47, 7
    v_mul_u32_u24 v14, 9216, v4
    v_lshl_add_u32 v14, v6, 4, v14
    v_add_u32 v14, s44, v14
    s_lshl_b32 s45, s46, 5
    s_add_u32 s44, s44, s45
    v_and_b32 v15, 15, v1
    v_lshl_add_u32 v15, v15, 1, s44
    global_load_ushort v19, v15, {sp(B1_)}
    v_mul_u32_u24 v15, 0x38f, v0
    v_lshrrev_b32 v15, 16, v15
    v_mul_u32_u24 v16, 72, v15
    v_sub_u32 v16, v0, v16
    v_and_b32 v17, 6, v15
    v_xor_b32 v16, v16, v17
    v_mul_u32_u24 v15, 1152, v15
    v_lshl_add_u32 v15, v16, 4, v15
    """)
    trig_wait("L_S5_trig")
    A.stamp(5)
    dma_tile(A, 8, "v14", 9216, L_BUF0)
    A(f"""
    s_barrier
    s_cmp_ge_u32 s3, 9
    s_cbranch_scc1 L_S5_w2d
    s_mul_i32 s44, s47, {64*1152}
    s_lshl_b32 s45, s3, 10
    s_add_u32 s45, s45, {L_BUF1}
    """)
    for o in range(8):
        A(f"s_mov_b32 m0, s45\ns_add_u32 s45, s45, 9216")
        A(f"buffer_load_dwordx4 v15, s[12:15], s44 offen{NT} lds")
        A(f"s_add_u32 s44, s44, 9216")
    A(f"""
    v_lshlrev_b32 v16, 3, v0
    v_add_u32 v17, {WS_MG + 576*8 + 2304}, v16
    v_add_u32 v16, {WS_XG}, v16
    """)
    A.spin_head("L_S5_mg")
    A(f"""
    global_load_dwordx2 v[26:27], v17, {sp(WS_)} offset:-2304 sc1
    global_load_dwordx2 v[28:29], v17, {sp(WS_)} offset:2304 sc1
    s_waitcnt vmcnt(0)
    """)
    A.tagcheck(["v27", "v29"], "v30", "v31", "L_S5_mg")
    A(f"""
    v_lshlrev_b32 v34, 16, v28
    v_and_b32 v35, 0xffff0000, v28
    v_add_f32 v34, 1.0, v34
    v_add_f32 v35, 1.0, v35
    v_cvt_pk_bf16_f32 v34, v34, v35
    v_mov_b32 v35, 0x3f80
    ds_write_b16 v8, v34 offset:{ASTR}
    ds_write_b16_d16_hi v8, v34 offset:{5*ASTR}
    ds_write_b16 v8, v26 offset:{2*ASTR}
    ds_write_b16_d16_hi v8, v26 offset:{6*ASTR}
    ds_write_b16 v8, v35 offset:{3*ASTR}
    ds_write_b16 v8, v35 offset:{7*ASTR}
    L_S5_w2d:
    s_waitcnt vmcnt(0) lgkmcnt(0)
    s_barrier
    """)
    A.stamp(6)
    A(f"""
    s_cmp_ge_u32 s3, 12
    s_cbranch_scc1 L_S5_g1
    s_cmp_ge_u32 s3, 9
    s_cbranch_scc1 L_S5_nx0
    global_load_dwordx2 v[26:27], v16, {sp(WS_)} sc1
    L_S5_nx0:
    v_lshrrev_b32 v20, 2, v1
    v_mul_u32_u24 v20, 1152, v20
    v_lshl_add_u32 v20, v9, 3, v20
    v_add_u32 v20, {L_BUF1}, v20
    v_bfe_u32 v17, v1, 3, 2
    s_mul_i32 s48, s3, 3
    """)
    for i in range(3):
        A(f"s_add_u32 s44, s48, {i}\nv_xor_b32 v18, s44, v17\nv_lshl_add_u32 v18, v18, 5, v20")
        for ks in range(2):
            for half in range(2):
                A(f"ds_read_b64_tr_b16 {vr(52+i*8+ks*4+half*2,2)}, v18 offset:{(ks*32+half*16)*1152}")
    A(f"""
    s_mul_i32 s44, s48, {2*4608}
    s_lshl_b32 s45, s47, 6
    s_add_u32 s44, s44, s45
    s_add_u32 s44, s44, {WS_FG}
    v_mul_u32_u24 v20, 4608, v4
    v_lshl_add_u32 v20, v7, 3, v20
    v_add_u32 v76, s44, v20
    v_and_b32 v79, 1, v1
    v_lshlrev_b32 v79, 7, v79
    v_and_b32 v20, 48, v1
    v_add_u32 v79, v79, v20
    v_add_u32 v79, {L_H1}, v79
    s_cmp_eq_u32 s3, 9
    s_cbranch_scc1 L_S5_stat
    s_cmp_gt_u32 s3, 9
    s_cbranch_scc1 L_S5_g2
    v_mov_b32 v21, {L_WCNT}
    v_mov_b32 v22, 1
    s_mov_b32 s7, 0
    s_branch L_S5_xchk
    L_S5_xg:
    s_add_u32 s7, s7, 1
    s_cmp_gt_u32 s7, {SPIN}
    s_cbranch_scc1 L_end
    global_load_dwordx2 v[26:27], v16, {sp(WS_)} sc1
    L_S5_xchk:
    s_waitcnt vmcnt(0)
    """)
    A.tagcheck(["v27"], None, None, "L_S5_xg")
    A(f"""
    ds_write_b16 v8, v26
    ds_write_b16_d16_hi v8, v26 offset:{4*ASTR}
    """)
    A.lds_inc(4, "v21", "v22")
    A.stamp(8)
    A(f"""
    s_branch L_S5_g2
    L_S5_stat:
    v_and_b32 v20, 31, v1
    v_mul_u32_u24 v20, 36, v20
    v_lshrrev_b32 v21, 5, v1
    v_mul_u32_u24 v21, {4*ASTR}, v21
    v_add3_u32 v20, v20, v21, v3
    v_add_u32 v20, {L_ACT}, v20
    """)
    for i in range(9):
        A(f"ds_read_b32 v{80+i}, v20 offset:{ASTR + 4*i}\nds_read_b32 v{90+i}, v20 offset:{2*ASTR + 4*i}")
    A(f"""
    s_mov_b32 s44, 0x3f803f80
    v_lshlrev_b32 v21, 3, v1
    v_add_u32 v21, {WS_SG + 2048}, v21
    """)
    for r in range(100, 105): A(f"v_mov_b32 v{r}, 0")
    A("s_waitcnt lgkmcnt(0)")
    for i in range(9):
        A(f"""
        v_dot2_f32_bf16 v100, v{80+i}, s44, v100
        v_dot2_f32_bf16 v101, v{80+i}, v{80+i}, v101
        v_dot2_f32_bf16 v102, v{80+i}, v{90+i}, v102
        v_dot2_f32_bf16 v103, v{90+i}, s44, v103
        v_dot2_f32_bf16 v104, v{90+i}, v{90+i}, v104
        """)
    A("s_nop 2")
    cs = [f"v{r}" for r in range(100, 105)]
    A.row_reduce("v_add_f32", cs)
    for r in range(100, 105): A(f"v_mov_b32 v{r+5}, v{r}")
    for r in range(100, 105): A(f"v_permlane16_swap_b32 v{r}, v{r+5}")
    for r in range(100, 105): A(f"v_add_f32 v{r}, v{r}, v{r+5}")
    for r in range(100, 105): A(f"v_mul_f32 v{r}, {INV576}, v{r}")
    A.spin_head("L_S5_sg")
    for i in range(9):
        A(f"global_load_dwordx2 {vr(80+2*i,2)}, v21, {sp(WS_)} offset:{i*512-2048} sc1")
    A("s_waitcnt vmcnt(0)")
    A.etagcheck([f"v{80+i}" for i in range(18)], "v30", "L_S5_sg")
    A.stamp(8)
    fold8(A, 9, 80, 81, 82)
    A(f"s_nop 0\nv_mul_f32 v80, {INV576}, v80\ns_nop 0")
    names = [("Ex", 0), ("Exx", 1), ("Ea", 2), ("Eaa", 3), ("Eag", 32), ("Eas", 33)]
    for i, (nm, ln) in enumerate(names):
        A(f"v_readlane_b32 s{64+2*i}, v80, {ln}\nv_readlane_b32 s{65+2*i}, v80, {ln+4}")
    A("s_mov_b32 exec_hi, 0")
    for i in range(6): A(f"v_mov_b32 v{84+i}, s{64+2*i}")
    A("s_mov_b32 exec_hi, -1\ns_mov_b32 exec_lo, 0")
    for i in range(6): A(f"v_mov_b32 v{84+i}, s{65+2*i}")
    A("s_mov_b64 exec, -1")
    A("v_fma_f32 v85, -v84, v84, v85")
    ln_finish(A, "v84", "v85", "v90")
    A(f"""
    v_fma_f32 v86, -v84, v100, v86
    v_fma_f32 v89, -v84, v102, v89
    v_add_f32 v88, v88, v88
    v_fma_f32 v88, v84, v101, -v88
    v_fma_f32 v87, v84, v88, v87
    v_fma_f32 v86, v90, v86, v103         ; mean2
    v_add_f32 v89, v89, v89
    v_fma_f32 v87, v90, v87, v89
    v_fma_f32 v87, v90, v87, v104         ; E[h2^2]
    v_fma_f32 v87, -v86, v86, v87         ; var2
    """)
    ln_finish(A, "v86", "v87", "v94")
    A(f"""
    v_mul_f32 v92, v90, v94               ; c0
    v_mul_f32 v95, -v86, v94              ; c3
    v_mul_f32 v93, -v84, v92              ; c1
    v_lshrrev_b32 v20, 1, v1
    v_add_u32 v20, {L_CF}, v20
    s_mov_b32 exec_lo, 1
    s_mov_b32 exec_hi, 1
    ds_write_b128 v20, v[92:95]
    s_mov_b64 exec, -1
    s_waitcnt lgkmcnt(0)
    """)
    A.stamp(9)
    A(f"""
    L_S5_g2:
    s_mov_b32 s56, 0xffff0000
    s_mov_b32 s57, 0
    s_mov_b32 s58, 0
    s_mov_b32 s59, 0xffff
    s_waitcnt lgkmcnt(0)
    s_barrier
    s_barrier
    ds_read_b128 v[32:35], v79
    ds_read_b128 v[36:39], v79 offset:64
    s_waitcnt lgkmcnt(1)
    """)
    for i in range(3):
        A(f"v_mfma_f32_16x16x32_bf16 {vr(40+4*i,4)}, v[32:35], {vr(52+8*i,4)}, 0")
    A("s_waitcnt lgkmcnt(0)")
    for i in range(3):
        A(f"v_mfma_f32_16x16x32_bf16 {vr(40+4*i,4)}, v[36:39], {vr(56+8*i,4)}, {vr(40+4*i,4)}")
    A(f"""
    s_mov_b32 exec_hi, 0xffff
    s_nop 5
    v_cndmask_b32 v28, v40, v44, s[56:57]
    v_cndmask_b32 v29, v41, v45, s[56:57]
    v_cndmask_b32 v28, v28, v48, s[58:59]
    v_cndmask_b32 v29, v29, v49, s[58:59]
    """)
    A.epack("v28", "v28"); A.epack("v29", "v29")
    A(f"global_store_dwordx2 v76, v[28:29], {sp(WS_)} sc1\ns_mov_b64 exec, -1")
    A.stamp(11)
    A("s_branch L_end")
    A("L_S5_g1:\nv_mov_b32 v15, v10")
    bfrags(A, "v15")
    A(f"""
    v_bfe_u32 v16, v1, 4, 1
    v_lshlrev_b32 v15, 7, v16
    v_lshlrev_b32 v18, 4, v16
    v_add_u32 v18, {L_CF}, v18
    v_bfe_u32 v16, v1, 2, 2
    v_lshl_or_b32 v15, v16, 4, v15
    v_lshl_or_b32 v15, v9, 1, v15
    s_lshr_b32 s44, s46, 1
    s_lshl_b32 s44, s44, 6
    s_and_b32 s45, s46, 1
    s_lshl_b32 s45, s45, 3
    s_add_u32 s44, s44, s45
    s_add_u32 s44, s44, {L_H1}
    v_add_u32 v15, s44, v15
    v_lshlrev_b32 v19, 16, v19
    v_mul_u32_u24 v16, {ASTR}, v7
    v_add_u32 v16, v11, v16               ; A rows = i&7
    v_mov_b32 v17, {L_WCNT}
    """)
    A.lds_spin(4, 9, "v20", "v17", sleep=False)
    gemv_mfma(A, "v16")
    A.stamp(9)
    k0 = -2.0 * 1.4426950408889634 * 0.7978845608028654
    A(f"""
    s_barrier
    ds_read_b128 v[24:27], v18
    v_mov_b32 v30, {f2h(k0)}
    s_nop 4
    s_waitcnt lgkmcnt(0)
    v_mul_f32 v20, v20, v24
    v_fmac_f32 v20, v21, v25
    v_fmac_f32 v20, v22, v26
    v_fmac_f32 v20, v23, v27
    """)
    A.r1("v20")
    A("v_add_f32 v20, v20, v19")
    A.r1("v20")
    A(f"""
    v_mul_f32 v21, v20, v20
    v_fmamk_f32 v21, v21, {f2h(k0*0.044715)}, v30
    v_mul_f32 v21, v21, v20
    v_exp_f32 v21, v21
    s_nop 0
    v_add_f32 v21, 1.0, v21
    v_rcp_f32 v21, v21
    s_mov_b32 exec_hi, 0
    v_mul_f32 v21, v21, v20
    v_cvt_pk_bf16_f32 v21, v21, v21
    ds_write_b16 v15, v21
    s_mov_b64 exec, -1
    s_waitcnt lgkmcnt(0)
    s_barrier
    """)
    A.stamp(10)
    A("L_end:")
    if dbg:
        maps = {"A": {1: 4, 2: 5, 4: 6, 7: 7, 9: 8, 10: 9, 12: 14}, "B": {4: 3, 5: 10, 6: 11, 8: 12, 11: 13}, "M": {3: 2, 5: 15}}
        A(f"""
        s_mov_b64 exec, -1
        s_lshl_b32 s44, 1, s3
        s_and_b32 s44, s44, {(1<<0)|(1<<9)|(1<<12)|(1<<15)}
        s_cbranch_scc0 L_exit
        s_load_dwordx2 s[46:47], s[0:1], 104
        v_mov_b32 v125, 0x400
        v_readlane_b32 s44, v127, 0
        s_nop 3
        s_not_b32 s44, s44
        v_writelane_b32 v127, s44, 15
        v_writelane_b32 v125, 4, 0
        v_writelane_b32 v125, 0, 15
        s_lshr_b32 s45, s2, 3
        s_cmp_lt_u32 s45, 16
        s_cbranch_scc1 L_dbg_A
        s_cmp_lt_u32 s45, 25
        s_cbranch_scc1 L_dbg_B
        """)
        for nm in ("M", "B", "A"):
            A(f"L_dbg_{nm}:")
            for st, sl in maps[nm].items(): A(f"v_writelane_b32 v125, {sl*4}, {st}")
            A("s_branch L_dbg_go")
        A(f"""
        L_dbg_go:
        s_waitcnt lgkmcnt(0)
        v_cmp_gt_u32 vcc, 0x100, v125
        s_and_saveexec_b64 s[48:49], vcc
        global_atomic_umax v125, v127, s[46:47]
        s_endpgm
        """)
    elif stamps:
        A(f"""
        s_mov_b64 exec, 0xffff
        s_lshl_b32 s44, s2, 4
        s_add_u32 s44, s44, s3
        s_lshl_b32 s44, s44, 6
        s_add_u32 s44, s44, {WS_STAMP}
        v_lshl_add_u32 v126, v1, 2, s44
        global_store_dword v126, v127, {sp(WS_)}
        """)
    A("L_exit:\ns_endpgm\nL_codeend:")
    A.footer(128, 102)
    return A

HEAD = """; Fused adaLN + sliding-window GQA decode attention + channel MLP, one persistent launch (gfx950).
"""
if __name__ == "__main__":
    out = sys.argv[1]
    kw = {}
    for o in sys.argv[2:]:
        if "=" in o:
            k, v = o.split("="); kw[k] = int(v)
        elif o == "stamps": kw["stamps"] = True
        elif o == "nont": kw["nt"] = ""
    A = build(**kw)
    open(out, "w").write(HEAD + A.text())
```

```python
import sys, struct
from asmlib import Asm, NAME

WS_EPOCH = 0x0
WS_QG    = 0x4000
WS_TR    = 0x18000
WS_PX    = 0x20000
WS_AG    = 0x30000
AGS = 1152*8
WS_MG    = 0x40000
WS_FG    = 0x50000
WS_OG    = 0x100000
WS_MLG   = 0x120000
WS_RG    = 0x124000
WS_XA    = 0x136000
WS_CF    = 0x151000
WS_HL    = 0x152000
WS_GOFF  = 0x80000
WS_QL    = 0x200000
WS_STAMP = 0x8000000
AL = 131072; L_Q = 0; L_CNT = 512; L_MX = 640; L_LS = 704; L_P = 1024; PSTR = 1088
ASTR = 1184
L_BUF0 = 0; L_BUF1 = 73728; L_ACT = 147456; L_H1 = L_ACT + 8*ASTR; L_CF = L_H1 + 256; L_WCNT = L_CF + 64; L_ST = L_WCNT + 64; L_X1 = L_ST + 1536
LDS_BYTES = 160768
assert L_X1 <= LDS_BYTES
NLOC = 300
SPIN = 40000
LOG2E = 0x3fb8aa3b
X_, K_, V_, WQ_, WO_, W1_, B1_, W2_, B2_, C_, WM_, OUT_, WS_ = 16, 18, 20, 22, 24, 28, 30, 32, 34, 36, 38, 40, 42
TAG = "s6"; ETAG = "s101"

def sp(n): return f"s[{n}:{n+1}]"
def vr(n, k): return f"v[{n}:{n+k-1}]"
def f2h(x): return hex(struct.unpack("<I", struct.pack("<f", x))[0])
DPPM = "row_mask:0xf bank_mask:0xf"

class G(Asm):
    def __init__(self, stamps=False, nt="nt"):
        super().__init__()
        self.stamps = stamps
        self.nt = (" " + nt) if nt else ""
    def stamp(self, i):
        if self.stamps:
            self(f"s_memrealtime s[96:97]\ns_waitcnt lgkmcnt(0)\nv_writelane_b32 v127, s96, {i}")
    def rbf(self, *pairs):
        for d, s in pairs: self(f"v_cvt_pk_bf16_f32 {d}, {s}, {s}")
        for d, s in pairs: self(f"v_and_b32 {d}, 0xffff0000, {d}")
    def r1(self, *regs): self.rbf(*[(r, r) for r in regs])
    def srd(self, b, ptr, nbytes):
        self(f"s_mov_b32 s{b}, s{ptr}\ns_and_b32 s{b+1}, s{ptr+1}, 0xffff\ns_mov_b32 s{b+2}, {nbytes}\ns_mov_b32 s{b+3}, 0x20000")
    def mktag(self):
        self(f"s_add_u32 s6, s6, 0x9e3779b9\ns_and_b32 {ETAG}, s6, 63")
    def tagcheck(self, tags, mn, mx, retry):
        if len(tags) == 1:
            self(f"v_cmp_ne_u32 vcc, {TAG}, {tags[0]}")
        else:
            assert len(tags) % 2 == 0
            for i in range(0, len(tags), 2):
                a, b = tags[i], tags[i+1]
                self(f"v_min3_u32 {mn}, {a}, {b}, {TAG if i == 0 else mn}")
                self(f"v_max3_u32 {mx}, {a}, {b}, {TAG if i == 0 else mx}")
            self(f"v_cmp_ne_u32 vcc, {mn}, {mx}")
        self(f"s_cbranch_vccnz {retry}")
    def etagcheck(self, words, acc, retry):
        assert len(words) % 2 == 0
        for i in range(0, len(words), 2):
            a, b = words[i], words[i+1]
            self(f"v_xor_b32 {a}, {ETAG}, {a}\nv_xor_b32 {b}, {ETAG}, {b}")
            if i == 0: self(f"v_or_b32 {acc}, {a}, {b}")
            else: self(f"v_or3_b32 {acc}, {a}, {b}, {acc}")
        self(f"v_and_b32 {acc}, 63, {acc}\nv_cmp_ne_u32 vcc, 0, {acc}\ns_cbranch_vccnz {retry}")
    def epack(self, d, v):
        self(f"v_bfi_b32 {d}, 63, {ETAG}, {v}")
    def spin_head(self, lab):
        self(f"s_mov_b32 s7, 0\n{lab}:\ns_add_u32 s7, s7, 1\ns_cmp_gt_u32 s7, {SPIN}\ns_cbranch_scc1 L_end")
    def dual_head(self, lab, regs, init=True):
        if init: self("s_mov_b32 s7, 0")
        self(f"{lab}:\ns_add_u32 s7, s7, 1\ns_cmp_gt_u32 s7, {SPIN}\ns_cbranch_scc1 L_end")
        self(f"s_cmp_lg_u32 s7, {NLOC}\ns_cbranch_scc1 {lab}_k")
        for r in regs: self(f"v_add_u32 {r}, {WS_GOFF}, {r}")
        self(f"{lab}_k:")
    def dual_store(self, op, vaddr, data):
        self(f"{op} {vaddr}, {data}, {sp(WS_)}\nv_add_u32 {vaddr}, {WS_GOFF}, {vaddr}\n{op} {vaddr}, {data}, {sp(WS_)} sc1")
    def row_reduce(self, op, regs, steps=4):
        for ctl in ("quad_perm:[1,0,3,2]", "quad_perm:[2,3,0,1]", "row_half_mirror", "row_mirror")[:steps]:
            if len(regs) < 3: self(f"s_nop {2 - len(regs)}")
            for r in regs:
                self(f"{op}_dpp {r}, {r}, {r} {ctl} {DPPM}")
    def lds_spin(self, off, val, vt, vbase, sleep=True):
        lab = self.label("LS")
        self.spin_head(lab)
        self(f"ds_read_b32 {vt}, {vbase} offset:{off}\ns_waitcnt lgkmcnt(0)\nv_readfirstlane_b32 s44, {vt}\ns_cmp_ge_u32 s44, {val}")
        done = self.label("LD")
        self(f"s_cbranch_scc1 {done}\n" + ("s_sleep 1\n" if sleep else "") + f"s_branch {lab}\n{done}:")
    def lds_inc(self, off, vbase, vone):
        self(f"s_mov_b64 exec, 1\nds_add_u32 {vbase}, {vone} offset:{off}\ns_mov_b64 exec, -1")

INV576 = f2h(1.0/576)
def ln_finish(A, mean, var, rs):
    A(f"v_max_f32 {var}, 0, {var}")
    A.r1(mean, var)
    A(f"v_add_f32 {var}, 0x3727c5ac, {var}")
    A.r1(var)
    A(f"v_sqrt_f32 {var}, {var}\ns_nop 0")
    A.r1(var)
    A(f"v_rcp_f32 {rs}, {var}\ns_nop 0")

def dma_tile(A, srd, voff, rowstride, ldsbase, ninstr=72):
    A(f"s_mul_i32 s44, s3, {8*rowstride}\ns_lshl_b32 s45, s3, 10\ns_add_u32 s45, s45, {ldsbase}")
    for i in range((ninstr + 15)//16):
        skip = None
        if (i+1)*16 > ninstr:
            skip = A.label("DS")
            A(f"s_cmp_ge_u32 s3, {ninstr - 16*i}\ns_cbranch_scc1 {skip}")
        A(f"s_mov_b32 m0, s45\ns_add_u32 s45, s45, 16384")
        A(f"buffer_load_dwordx4 {voff}, s[{srd}:{srd+3}], s44 offen{A.nt} lds")
        A(f"s_add_u32 s44, s44, {128*rowstride}")
        if skip: A(f"{skip}:")

def bfrags(A, vaddr, vb=52, nks=18, rowb=128):
    base = 0
    for ks in range(nks):
        for half in range(2):
            off = (ks*32 + half*16) * rowb
            if off - base > 65535:
                A(f"v_add_u32 {vaddr}, {off - base}, {vaddr}"); base = off
            A(f"ds_read_b64_tr_b16 {vr(vb + ks*4 + half*2,2)}, {vaddr} offset:{off - base}")

def kv_chunk_base(A, rp, dst, t, il=1):
    A(f"""
    s_lshr_b32 {t}, {rp}, 3
    s_lshl_b32 {dst}, s4, 1
    s_add_u32 {dst}, {dst}, {t}
    s_bfe_u32 {t}, {rp}, 0x10002
    s_lshl_b32 {t}, {t}, 4
    s_add_u32 {dst}, {dst}, {t}
    s_lshl_b32 {dst}, {dst}, 21
    s_and_b32 {t}, {rp}, 3
    s_lshl_b32 {t}, {t}, {13 if il else 17}
    s_add_u32 {dst}, {dst}, {t}
    s_add_u32 {dst}, {dst}, {6144*256}
    """)

def gemv_mfma(A, vaaddr, vb=52, va=24, vd=20, depth=7, nks=18):
    depth = min(depth, nks)
    def rd(ks):
        A(f"ds_read_b128 {vr(va + (ks % depth)*4,4)}, {vaaddr} offset:{ks*64}")
    for ks in range(depth): rd(ks)
    for ks in range(nks):
        issued = min(nks, depth + ks)
        A(f"s_waitcnt lgkmcnt({issued - ks - 1})")
        c = "0" if ks == 0 else vr(vd, 4)
        A(f"v_mfma_f32_16x16x32_bf16 {vr(vd,4)}, {vr(va + (ks % depth)*4,4)}, {vr(vb+ks*4,4)}, {c}")
        if ks + depth < nks: rd(ks + depth)

def fold8(A, n, a, b, t, swapb=True):
    for i in range(1, n):
        A(f"v_add_f32 v{a}, v{a}, v{a+2*i}\nv_add_f32 v{b}, v{b}, v{b+2*i}")
    A(f"""
    s_nop 1
    v_permlane32_swap_b32 v{a}, v{b}
    v_add_f32 v{a}, v{a}, v{b}
    v_mov_b32 v{t}, v{a}
    s_nop 1
    v_permlane16_swap_b32 v{a}, v{t}
    v_add_f32 v{a}, v{a}, v{t}
    s_nop 1
    v_add_f32_dpp v{a}, v{a}, v{a} row_ror:8 {DPPM}
    """)

def build(stamps=False, nt="nt", adelay=True, dbg=0, w2first=0, qs=8, ps=2, pt=1, diag=0, ql=1, rgw=0, il=2):
    CH, BL, SP = {0: (15, 13, 17), 1: (17, 15, 13), 2: (17, 13, 15)}[il]
    global SPIN, NLOC
    if diag: SPIN = 60; NLOC = 100
    A = G(stamps, nt)
    NT = A.nt
    A.header(256, 1024, LDS_BYTES)
    A(f"""
    s_cmp_ge_u32 s2, 256
    s_cbranch_scc1 L_exit
    s_load_dwordx16 s[16:31], s[0:1], 0
    s_load_dwordx8 s[32:39], s[0:1], 64
    s_load_dwordx2 s[40:41], s[0:1], 96
    s_load_dwordx2 s[42:43], s[0:1], 112
    v_lshrrev_b32 v2, 6, v0
    v_and_b32 v1, 63, v0
    s_and_b32 s4, s2, 7
    v_readfirstlane_b32 s3, v2
    s_lshr_b32 s5, s2, 3
    v_mov_b32 v3, 0
    """)
    if stamps:
        A("v_mov_b32 v127, 0\ns_memrealtime s[98:99]")
    A(f"""
    s_cmp_lg_u32 s5, 24
    s_cbranch_scc1 L_nopf
    s_getpc_b64 s[44:45]
    L_pfbase:
    s_sub_u32 s44, s44, L_pfbase-{NAME}_kernel
    s_subb_u32 s45, s45, 0
    v_lshlrev_b32 v4, 7, v0
    v_cmp_gt_u32 vcc, L_codeend-{NAME}_kernel, v4
    s_and_saveexec_b64 s[46:47], vcc
    s_cbranch_execz L_pfd
    global_load_dword v5, v4, s[44:45]
    L_pfd:
    s_mov_b64 exec, -1
    L_nopf:
    s_cmp_lt_u32 s5, 16
    s_cbranch_scc1 L_A
    s_sub_u32 s5, s5, 16                  ; u
    s_sub_u32 s47, s2, {25*8}             ; M idx = (u-9)*8+x
    s_mul_i32 s48, s47, 0xe39
    s_lshr_b32 s48, s48, 16               ; ksp
    s_mul_i32 s49, s48, 18
    s_sub_u32 s49, s47, s49               ; cgp
    s_mul_i32 s50, s48, {288*6912}
    s_lshl_b32 s51, s49, 7
    s_add_u32 s50, s50, s51               ; M offset
    s_lshl_b32 s51, s4, 3
    s_add_u32 s51, s51, s5                ; qb
    s_lshl_b32 s52, s51, 7                ; B offset
    v_lshrrev_b32 v4, 3, v1
    v_bfe_u32 v6, v1, 4, 2
    v_lshlrev_b32 v6, 1, v6
    v_and_b32 v7, 7, v1
    v_xor_b32 v6, v6, v7
    s_movk_i32 s53, 6912
    s_cmp_lt_u32 s5, 8
    s_cselect_b32 s50, s52, s50
    s_cselect_b32 s53, 8192, s53          ; stride
    s_cselect_b32 s54, 72, 36             ; count
    s_mul_i32 s10, s53, 576
    s_cselect_b32 s47, s51, s47
    s_cselect_b32 s55, 0, s47
    v_mul_u32_u24 v14, s53, v4
    v_lshl_add_u32 v14, v6, 4, v14
    v_add_u32 v15, s50, v14
    s_mov_b32 s11, 0x20000
    s_lshl_b32 s53, s53, 3
    s_mul_i32 s44, s3, s53
    s_lshl_b32 s53, s53, 4
    s_lshl_b32 s45, s3, 10
    s_mov_b32 s46, s3
    s_cmp_lt_u32 s5, 8
    s_waitcnt lgkmcnt(0)
    s_cselect_b32 s8, s{WQ_}, s{WM_}
    s_cselect_b32 s9, s{WQ_+1}, s{WM_+1}
    s_and_b32 s9, s9, 0xffff
    s_cmp_ge_u32 s55, 36
    s_cbranch_scc1 L_W_nodma
    L_W_dma:
    s_mov_b32 m0, s45
    s_add_u32 s45, s45, 16384
    buffer_load_dwordx4 v15, s[8:11], s44 offen{NT} lds
    s_add_u32 s44, s44, s53
    s_add_u32 s46, s46, 16
    s_cmp_lt_u32 s46, s54
    s_cbranch_scc1 L_W_dma
    L_W_nodma:
    s_load_dword s6, {sp(WS_)}, {WS_EPOCH}
    s_branch L_W
    """)
    A(f"""
    L_A:
    v_mov_b32 v4, {AL}
    v_lshl_add_u32 v5, v1, 2, v4
    ds_write_b32 v5, v3 offset:{L_CNT}
    s_lshr_b32 s44, s5, 3
    s_lshl_b32 s45, s4, 1
    s_add_u32 s46, s45, s44            ; hkv
    s_bfe_u32 s47, s5, 0x10002          ; b
    s_and_b32 s48, s5, 3                ; sp
    s_lshl_b32 s49, s47, 4
    s_add_u32 s49, s49, s46             ; b*16+hkv
    s_lshl_b32 s49, s49, 21
    s_lshl_b32 s50, s48, {SP}
    s_add_u32 s49, s49, s50
    s_add_u32 s49, s49, {6144*256}
    s_bfe_u32 s51, s3, 0x10002            ; g
    s_and_b32 s44, s3, 3
    s_lshl_b32 s50, s51, {CH+1}
    s_add_u32 s49, s49, s50
    s_lshl_b32 s50, s44, {BL}
    s_add_u32 s49, s49, s50
    s_lshl_b32 s45, s51, 3
    s_add_u32 s48, s44, s45
    v_and_b32 v9, 3, v1
    v_mov_b32 v7, 1
    s_cmp_ge_u32 s3, 8
    s_cbranch_scc1 L_AV
    s_add_u32 s49, s49, 4096
    v_bfe_u32 v5, v1, 2, 2
    v_lshlrev_b32 v5, 8, v5
    v_and_b32 v6, 48, v1
    v_lshl_or_b32 v5, v6, 2, v5
    v_lshl_or_b32 v5, v9, 4, v5
    s_waitcnt lgkmcnt(0)
    s_load_dword s6, {sp(WS_)}, {WS_EPOCH}
    s_add_u32 s52, s{K_}, s49
    s_addc_u32 s53, s{K_+1}, 0
    s_add_u32 s54, s52, {1 << CH}
    s_addc_u32 s55, s53, 0
    """)
    if adelay: A("s_waitcnt lgkmcnt(0)")
    A("s_barrier")
    for t in range(16):
        A(f"global_load_dwordx4 {vr(32+4*t,4)}, v5, s[{52+2*(t>>3)}:{53+2*(t>>3)}] offset:{(t&7)*1024-4096}{NT}")
    if stamps: A("s_waitcnt lgkmcnt(0)\nv_writelane_b32 v127, s98, 0")
    A.stamp(1)
    A(f"""
    v_bfe_u32 v8, v1, 2, 1
    v_lshlrev_b32 v8, 8, v8
    v_lshl_or_b32 v8, v6, 2, v8
    v_lshl_or_b32 v8, v9, 4, v8
    v_add_u32 v8, v4, v8
    v_bfe_u32 v11, v1, 4, 1
    v_mul_u32_u24 v10, {PSTR}, v11
    v_and_b32 v12, 1, v1
    v_lshl_add_u32 v10, v12, 5, v10
    v_lshrrev_b32 v13, 5, v1
    v_lshl_add_u32 v10, v13, 4, v10
    v_bfe_u32 v13, v1, 1, 1
    v_lshl_add_u32 v10, v13, 3, v10
    v_bfe_u32 v13, v1, 2, 2
    v_lshl_add_u32 v10, v13, 1, v10
    s_lshl_b32 s44, s48, 6
    s_add_u32 s44, s44, {AL + L_P}
    v_add_u32 v10, s44, v10
    v_mul_u32_u24 v12, {PSTR}, v12
    v_add3_u32 v12, v12, v6, v4
    v_lshl_add_u32 v11, v11, 5, v4
    v_and_b32 v13, 7, v1
    v_lshl_add_u32 v13, v13, 2, v11
    s_lshl_b32 s44, s3, 2
    v_add_u32 v11, s44, v11
    v_bfe_u32 v14, v1, 2, 3
    v_xor_b32 v14, s3, v14
    v_lshlrev_b32 v14, 5, v14
    v_lshrrev_b32 v15, 2, v1
    v_lshl_or_b32 v14, v15, 8, v14
    v_lshl_or_b32 v14, v9, 3, v14
    v_add_u32 v15, 0x10000, v14
    s_mov_b32 s58, 0x22222222
    s_mov_b32 s59, 0x22222222
    s_mov_b32 s60, 0x44444444
    s_mov_b32 s61, 0x44444444
    s_mov_b32 s62, 0x88888888
    s_mov_b32 s63, 0x88888888
    s_lshl_b32 s44, s47, 14
    s_lshl_b32 s45, s46, 10
    s_add_u32 s44, s44, s45
    s_lshl_b32 s45, s3, 7
    s_add_u32 s44, s44, s45
    s_add_u32 s44, s44, {WS_QG}
    s_add_u32 s56, s{WS_}, s44
    s_addc_u32 s57, s{WS_+1}, 0
    s_lshl_b32 s50, s4, 4
    s_add_u32 s50, s50, s5
    s_lshl_b32 s50, s50, 10
    s_add_u32 s50, s50, s45
    s_add_u32 s50, s50, {WS_OG}
    v_lshl_add_u32 v6, v1, 3, s50
    s_waitcnt lgkmcnt(0)
    """)
    A.mktag()
    A(f"""
    s_add_u32 s52, s56, {WS_QL - WS_QG}
    s_addc_u32 s53, s57, 0
    s_mov_b32 s7, {0 if ql else 16}
    s_waitcnt vmcnt(0)
    L_A_qpoll:
    s_add_u32 s7, s7, 1
    s_cmp_gt_u32 s7, {SPIN}
    s_cbranch_scc1 L_end
    s_cmp_gt_u32 s7, 16
    s_cbranch_scc1 L_A_qg
    s_load_dwordx16 s[64:79], s[52:53], 0
    s_load_dwordx16 s[80:95], s[52:53], 64
    s_add_u32 s52, s52, 32768
    s_addc_u32 s53, s53, 0
    s_branch L_A_qc
    L_A_qr:
    s_sleep {qs}
    s_branch L_A_qpoll
    L_A_qg:
    s_load_dwordx16 s[64:79], s[56:57], 0 glc
    s_load_dwordx16 s[80:95], s[56:57], 64 glc
    L_A_qc:
    s_waitcnt lgkmcnt(0)
    """)
    for i in range(16):
        A(f"s_cmp_lg_u32 s{65+2*i}, {TAG}\ns_cbranch_scc1 L_A_qr")
    A("s_mov_b64 exec, 1")
    for i in range(16):
        A(f"v_mov_b32 v{96+i}, s{64+2*i}")
    A(f"s_lshl_b32 s44, s3, 6\nv_add_u32 v20, s44, v4")
    for i in range(4):
        A(f"ds_write_b128 v20, {vr(96+4*i,4)} offset:{L_Q+16*i}")
    A(f"""
    ds_add_u32 v4, v7 offset:{L_CNT}
    s_mov_b64 exec, -1
    s_mov_b32 s56, 0xff00ff00
    s_mov_b32 s57, 0xff00ff00
    """)
    A.lds_spin(L_CNT, 8, "v16", "v4", sleep=False)
    A.stamp(2)
    A(f"ds_read_b128 v[20:23], v8 offset:{L_Q}\ns_waitcnt lgkmcnt(0)")
    for i in range(4):
        A(f"v_cndmask_b32 v{24+i}, 0, v{20+i}, s[56:57]")
        A(f"v_cndmask_b32 v{20+i}, v{20+i}, 0, s[56:57]")
    A("s_waitcnt vmcnt(0)\ns_nop 0")
    D = [96, 32]
    for z in range(2):
        for u in range(4):
            A(f"v_mfma_f32_16x16x32_bf16 {vr(D[z]+4*u,4)}, v[20:23], {vr(32+32*z+8*u,4)}, 0")
        for u in range(4):
            A(f"v_mfma_f32_16x16x32_bf16 {vr(D[z]+4*u,4)}, v[24:27], {vr(36+32*z+8*u,4)}, {vr(D[z]+4*u,4)}")
    for z in range(2):
        t = 112 + 4*z
        for u in range(4):
            A(f"v_mov_b32_dpp v{t+u}, v{D[z]+4*u} quad_perm:[0,0,0,0] {DPPM}")
        for c in range(1, 4):
            for u in range(4):
                A(f"v_add_f32_dpp v{t+u}, v{D[z]+4*u+c}, v{t+u} quad_perm:[{c},{c},{c},{c}] {DPPM}")
    A.stamp(3)
    for k, m in ((1, 58), (2, 60), (3, 62)):
        A(f"v_cndmask_b32 v112, v112, v{112+k}, s[{m}:{m+1}]\nv_cndmask_b32 v116, v116, v{116+k}, s[{m}:{m+1}]")
    A.r1("v112", "v116")
    A("v_mul_f32 v112, 0x3db504f3, v112\nv_mul_f32 v116, 0x3db504f3, v116")
    A.r1("v112", "v116")
    A("v_max_f32 v113, v112, v116")
    A.row_reduce("v_max_f32", ["v113"])
    A(f"""
    v_mov_b32 v114, v113
    s_mov_b32 s56, 0x10001
    s_mov_b32 s57, 0
    v_permlane32_swap_b32 v113, v114
    v_max_f32 v113, v113, v114
    s_mov_b64 exec, s[56:57]
    ds_write_b32 v11, v113 offset:{L_MX}
    s_mov_b64 exec, 1
    ds_add_u32 v4, v7 offset:{L_CNT+4}
    s_mov_b64 exec, -1
    v_mul_f32 v112, {hex(LOG2E)}, v112
    v_mul_f32 v116, {hex(LOG2E)}, v116
    """)
    A.lds_spin(L_CNT+4, 8, "v16", "v4", sleep=False)
    A(f"ds_read_b32 v113, v13 offset:{L_MX}\ns_mov_b32 s45, {hex(LOG2E)}\ns_waitcnt lgkmcnt(0)")
    A.row_reduce("v_max_f32", ["v113"], steps=3)
    A(f"""
    v_fma_f32 v112, -v113, s45, v112
    v_fma_f32 v116, -v113, s45, v116
    v_exp_f32 v112, v112
    v_exp_f32 v116, v116
    s_nop 0
    v_cvt_pk_bf16_f32 v115, v112, v116
    ds_write_b16 v10, v115
    ds_write_b16_d16_hi v10, v115 offset:256
    s_mov_b64 exec, 1
    ds_add_u32 v4, v7 offset:{L_CNT+8}
    s_mov_b64 exec, -1
    v_add_f32 v112, v112, v116
    """)
    A.row_reduce("v_add_f32", ["v112"])
    A(f"""
    v_mov_b32 v114, v112
    s_nop 1
    v_permlane32_swap_b32 v112, v114
    v_add_f32 v112, v112, v114
    s_mov_b64 exec, s[56:57]
    ds_write_b32 v11, v112 offset:{L_LS}
    s_mov_b64 exec, 1
    ds_add_u32 v4, v7 offset:{L_CNT+12}
    s_mov_b64 exec, -1
    """)
    A.lds_spin(L_CNT+8, 8, "v16", "v4", sleep=False)
    A.stamp(4)
    A(f"ds_read_b128 v[116:119], v4 offset:{L_CNT+16}")
    for ks in range(16):
        A(f"ds_read_b128 {vr(32+4*ks,4)}, v12 offset:{L_P + ks*64}")
    A("s_waitcnt lgkmcnt(15)\ns_waitcnt lgkmcnt(15)")
    for L in range(4): A(f"v_readfirstlane_b32 s{64+L}, v{116+L}")
    SET = [96, 16]
    def vreads(L):
        for k in range(4):
            ks = 4*L + k
            for half in range(2):
                A(f"ds_read_b64_tr_b16 {vr(SET[L&1]+4*k+2*half,2)}, {'v14' if ks < 8 else 'v15'} offset:{(ks&7)*8192 + half*4096}")
    def vmfma(L):
        for k in range(4):
            c = "0" if (L == 0 and k == 0) else "v[112:115]"
            A(f"v_mfma_f32_16x16x32_bf16 v[112:115], {vr(32+4*(4*L+k),4)}, {vr(SET[L&1]+4*k,4)}, {c}")
    A("s_cmp_ge_u32 s64, 4\ns_cbranch_scc1 L_A_v0")
    A.lds_spin(L_CNT+16, 4, "v120", "v4", sleep=False)
    A("L_A_v0:")
    vreads(0)
    for L in range(1, 4):
        A(f"s_cmp_ge_u32 s{64+L}, 4\ns_cbranch_scc0 L_A_vn{L}")
        vreads(L)
        A("s_waitcnt lgkmcnt(8)")
        vmfma(L-1)
        A(f"s_branch L_A_vd{L}\nL_A_vn{L}:\ns_waitcnt lgkmcnt(0)")
        vmfma(L-1)
        A.lds_spin(L_CNT+16+4*L, 4, "v120", "v4", sleep=False)
        vreads(L)
        A(f"L_A_vd{L}:")
    for k in range(4):
        A(f"s_waitcnt lgkmcnt({6-2*k})")
        A(f"v_mfma_f32_16x16x32_bf16 v[112:115], {vr(32+4*(12+k),4)}, {vr(SET[1]+4*k,4)}, v[112:115]")
    A("s_mov_b64 exec, 0xffff\ns_nop 6")
    A.epack("v116", "v112"); A.epack("v117", "v113")
    A.dual_store("global_store_dwordx2", "v6", "v[116:117]")
    A("s_mov_b64 exec, -1")
    A.stamp(6)
    A("s_branch L_end")
    A(f"""
    L_AV:
    s_lshl_b32 s45, s48, 13
    s_mov_b32 s44, s49                    ; soffset
    v_lshrrev_b32 v5, 4, v1
    v_lshlrev_b32 v6, 1, v5
    v_and_b32 v8, 15, v1
    v_xor_b32 v6, v6, v8
    v_lshlrev_b32 v6, 4, v6
    v_lshl_or_b32 v5, v5, 8, v6
    v_xor_b32 v6, 128, v5
    s_waitcnt lgkmcnt(0)
    s_load_dword s6, {sp(WS_)}, {WS_EPOCH}
    """)
    A.srd(8, V_, 0x4000000)
    A("s_barrier")
    for hf in range(2):
        for q4 in range(2):
            A("s_mov_b32 m0, s45\ns_nop 0")
            for n in range(4):
                A(f"buffer_load_dwordx4 {'v6' if n & 1 else 'v5'}, s[8:11], s44 offen offset:{n*1024}{NT} lds")
            if q4 == 0: A("s_add_u32 s45, s45, 4096\ns_add_u32 s44, s44, 4096")
            elif hf == 0: A(f"s_add_u32 s45, s45, {4*8192 - 4096}\ns_add_u32 s44, s44, {(1 << CH) - 4096}")
    if stamps: A("s_waitcnt lgkmcnt(0)\nv_writelane_b32 v127, s98, 0")
    A.stamp(1)
    A(f"""
    s_lshl_b32 s44, s51, 3
    v_add_u32 v5, s44, v4
    s_mov_b64 exec, 1
    s_waitcnt vmcnt(8)
    ds_add_u32 v5, v7 offset:{L_CNT+16}
    s_waitcnt vmcnt(0)
    ds_add_u32 v5, v7 offset:{L_CNT+20}
    s_mov_b64 exec, -1
    """)
    A.stamp(5)
    A(f"""
    s_waitcnt lgkmcnt(0)
    s_cmp_lg_u32 s3, 8
    s_cbranch_scc1 L_end
    v_bfe_u32 v11, v1, 4, 1
    v_lshl_add_u32 v11, v11, 5, v4
    v_and_b32 v13, 7, v1
    v_lshl_add_u32 v13, v13, 2, v11
    s_lshl_b32 s50, s4, 4
    s_add_u32 s50, s50, s5
    s_lshl_b32 s50, s50, 7
    s_add_u32 s50, s50, {WS_MLG}
    v_mov_b32 v24, s50
    """)
    A.mktag()
    A.lds_spin(L_CNT+12, 8, "v16", "v4")
    A(f"ds_read_b32 v20, v13 offset:{L_MX}\nds_read_b32 v21, v13 offset:{L_LS}\ns_waitcnt lgkmcnt(0)")
    for ctl in ("quad_perm:[1,0,3,2]", "quad_perm:[2,3,0,1]", "row_half_mirror"):
        A(f"s_nop 0\nv_max_f32_dpp v20, v20, v20 {ctl} {DPPM}\nv_add_f32_dpp v21, v21, v21 {ctl} {DPPM}")
    A("""
    v_mov_b32 v22, v20
    v_mov_b32 v23, v21
    s_nop 0
    v_permlane16_swap_b32 v20, v22
    v_permlane16_swap_b32 v21, v23
    """)
    for r in range(20, 24): A.epack(f"v{r}", f"v{r}")
    A("s_mov_b64 exec, 1")
    A.dual_store("global_store_dwordx4", "v24", "v[20:23]")
    A("s_mov_b64 exec, -1")
    A.stamp(7)
    A("s_branch L_end")

    A("L_W:")
    if stamps: A("v_writelane_b32 v127, s98, 0")
    A.stamp(1)
    A(f"""
    v_mov_b32 v18, {L_WCNT}
    ds_write2_b32 v18, v3, v3 offset1:1
    ds_write_b32 v18, v3 offset:8
    v_lshrrev_b32 v8, 5, v0
    v_lshlrev_b32 v8, 6, v8
    v_bfe_u32 v9, v0, 2, 2
    v_lshl_or_b32 v8, v9, 4, v8
    v_bfe_u32 v9, v0, 4, 1
    v_lshl_or_b32 v8, v9, 3, v8
    v_and_b32 v9, 3, v0
    v_lshl_or_b32 v8, v9, 1, v8
    v_add_u32 v8, {L_ACT}, v8
    s_and_b32 s46, s3, 3
    v_bfe_u32 v10, v1, 3, 2
    v_xor_b32 v10, s46, v10
    v_lshlrev_b32 v10, 5, v10
    v_lshrrev_b32 v11, 2, v1
    v_lshl_or_b32 v10, v11, 7, v10
    v_lshl_or_b32 v10, v9, 3, v10
    v_and_b32 v11, 48, v1
    v_add_u32 v11, {L_ACT}, v11
    v_and_b32 v12, 1, v1
    v_mul_u32_u24 v12, {4*ASTR}, v12
    v_add_u32 v12, v11, v12
    v_and_b32 v13, 4, v1
    v_mul_u32_u24 v13, {ASTR}, v13
    v_add_u32 v13, v11, v13
    v_mov_b32 v17, 1
    s_cmp_eq_u32 s5, 8
    s_cbranch_scc1 L_KT
    s_cbranch_scc0 L_Wd
    L_Wd:
    s_cmp_gt_u32 s5, 8
    s_cbranch_scc1 L_M
    s_waitcnt lgkmcnt(0)
    """)
    A.mktag()
    A(f"""
    s_barrier
    {'s_waitcnt vmcnt(0)' + chr(10) + 's_branch L_end' if diag & 4 else ''}
    s_cmp_ge_u32 s3, 9
    s_cbranch_scc1 L_B_nh
    s_mul_i32 s44, s4, 4608
    s_add_u32 s44, s44, {WS_HL}
    v_lshl_add_u32 v15, v0, 3, s44
    global_load_dwordx2 v[24:25], v15, {sp(WS_)} sc1
    s_waitcnt vmcnt(0)
    """)
    A.lds_inc(0, "v18", "v17")
    A.stamp(2)
    A("s_mov_b32 s7, 0\ns_branch L_B_chk")
    A.dual_head("L_B_h", ["v15"], init=False)
    A(f"s_sleep {ps}")
    A(f"global_load_dwordx2 v[24:25], v15, {sp(WS_)} sc1\ns_waitcnt vmcnt(0)\nL_B_chk:")
    A.tagcheck(["v25"], None, None, "L_B_h")
    A(f"""
    ds_write_b16 v8, v24
    ds_write_b16_d16_hi v8, v24 offset:{4*ASTR}
    s_waitcnt lgkmcnt(0)
    """)
    A.stamp(3)
    A(f"""
    s_barrier
    s_branch L_S5
    L_B_nh:
    """)
    if ql:
        A(f"""
        s_cmp_lg_u32 s3, 9
        s_cbranch_scc1 L_B_npt
        v_lshrrev_b32 v15, 1, v1
        v_lshlrev_b32 v15, 14, v15            ; (replica*2+b)*16384
        v_and_b32 v16, 1, v1
        v_lshl_or_b32 v15, v16, 7, v15
        s_lshl_b32 s44, s47, 8
        s_add_u32 s44, s44, {WS_QL}
        v_add_u32 v15, s44, v15
        global_load_dword v16, v15, {sp(WS_)} sc1
        L_B_npt:
        """)
    A("s_waitcnt vmcnt(0)")
    A.lds_inc(0, "v18", "v17")
    A(f"""
    s_cmp_ge_u32 s3, 12
    s_cbranch_scc1 L_B_m
    s_waitcnt lgkmcnt(0)
    s_barrier
    s_branch L_S5
    L_B_m:
    """)
    A.lds_spin(0, 16, "v16", "v18")
    A.stamp(2)
    A("v_mov_b32 v15, v10")
    bfrags(A, "v15")
    A(f"""
    s_lshl_b32 s44, s47, 8
    s_lshl_b32 s45, s46, 6
    s_add_u32 s44, s44, s45
    s_add_u32 s44, s44, {WS_QG}
    v_and_b32 v15, 15, v1
    v_lshlrev_b32 v15, 2, v15
    v_bfe_u32 v16, v1, 4, 1
    v_lshl_or_b32 v15, v16, 14, v15
    v_add_u32 v15, s44, v15
    v_and_b32 v16, -8, v15
    v_and_b32 v17, 1, v1
    v_lshl_add_u32 v16, v17, 15, v16
    v_lshrrev_b32 v17, 5, v1
    v_lshl_add_u32 v16, v17, 16, v16
    v_add_u32 v16, {WS_QL - WS_QG}, v16
    s_waitcnt lgkmcnt(0)
    s_barrier
    """)
    gemv_mfma(A, "v13")
    A(f"""
    s_nop 7
    v_mov_b32_dpp v21, v20 quad_perm:[1,1,3,3] {DPPM}
    v_mov_b32_dpp v20, v20 quad_perm:[0,0,2,2] {DPPM}
    v_mov_b32 v23, {TAG}
    v_cvt_pk_bf16_f32 v22, v20, v21
    """)
    if ql:
        for i in range(4):
            A(f"global_store_dwordx2 v16, v[22:23], {sp(WS_)}")
            if i < 3: A(f"v_add_u32 v16, {4*32768}, v16")
    A(f"""
    s_mov_b32 exec_lo, 0x55555555
    s_mov_b32 exec_hi, 0
    global_store_dwordx2 v15, v[22:23], {sp(WS_)} sc1
    s_mov_b64 exec, -1
    """)
    A.stamp(4)
    A("s_branch L_S5")

    A(f"""
    L_M:
    s_cmp_ge_u32 s3, 9
    s_cbranch_scc1 L_M_bar0
    v_lshlrev_b32 v15, 1, v0
    global_load_ushort v16, v15, {sp(C_)}
    global_load_ushort v17, v15, {sp(C_)} offset:1152
    s_waitcnt vmcnt(0)
    v_lshlrev_b32 v16, 16, v16
    v_lshlrev_b32 v17, 16, v17
    v_mul_f32 v34, 0xbfb8aa3b, v16
    v_mul_f32 v35, 0xbfb8aa3b, v17
    v_exp_f32 v34, v34
    v_exp_f32 v35, v35
    s_nop 0
    v_add_f32 v34, 1.0, v34
    v_add_f32 v35, 1.0, v35
    v_rcp_f32 v34, v34
    v_rcp_f32 v35, v35
    s_nop 0
    v_mul_f32 v16, v16, v34
    v_mul_f32 v17, v17, v35
    v_cvt_pk_bf16_f32 v16, v16, v17
    ds_write_b16 v8, v16
    ds_write_b16_d16_hi v8, v16 offset:{4*ASTR}
    L_M_bar0:
    s_mul_i32 s44, s48, 576
    v_add_u32 v15, s44, v12
    s_mul_i32 s44, s48, {AGS}
    s_lshl_b32 s45, s49, 9
    s_add_u32 s44, s44, s45
    s_lshl_b32 s45, s46, 7
    s_add_u32 s44, s44, s45
    s_add_u32 s44, s44, {WS_AG}
    v_lshl_add_u32 v18, v1, 3, s44
    s_waitcnt vmcnt(0) lgkmcnt(0)
    """)
    A.mktag()
    A("s_barrier")
    A.stamp(2)
    A("s_cmp_lt_u32 s3, 12\ns_cbranch_scc1 L_M_bar1\ns_cmp_ge_u32 s55, 36\ns_cbranch_scc1 L_M_bar1")
    bfrags(A, "v10", 52, 9)
    gemv_mfma(A, "v15", nks=9)
    A("s_mov_b64 exec, 0xffff\ns_nop 6")
    A.epack("v22", "v20"); A.epack("v23", "v21")
    A(f"global_store_dwordx2 v18, v[22:23], {sp(WS_)} sc1\ns_mov_b64 exec, -1")
    A.stamp(3)
    A(f"""
    L_M_bar1:
    s_sub_u32 s44, s5, 9
    s_lshl_b32 s50, s44, 1                ; slot0 = 2(u-9)
    s_add_u32 s51, s50, 1
    s_add_u32 s45, s4, 44
    s_cmp_ge_u32 s4, 4
    s_cselect_b32 s45, s45, 255
    s_cmp_eq_u32 s5, 13
    s_cselect_b32 s51, s45, s51
    s_lshl_b32 s44, s5, 4
    s_add_u32 s44, s44, s4
    s_sub_u32 s44, s44, {14*16 - 16}
    s_add_u32 s45, s44, 8
    s_cmp_ge_u32 s5, 14
    s_cselect_b32 s50, s44, s50
    s_cselect_b32 s51, s45, s51
    v_mul_u32_u24 v19, 1152, v4
    v_lshl_add_u32 v19, v6, 4, v19
    s_mul_i32 s44, s4, {512*1152}
    v_add_u32 v19, s44, v19
    """)
    A.srd(12, WO_, 4096*1152)
    A("s_barrier")
    if pt:
        A(f"""
        s_cmp_ge_u32 s3, 3
        s_cbranch_scc1 L_M_pt
        s_cmp_lg_u32 s5, 13
        s_cbranch_scc1 L_M_pt
        s_lshl_b32 s44, s4, 14
        s_lshl_b32 s45, s3, 13
        s_add_u32 s44, s44, s45
        s_add_u32 s44, s44, {WS_OG}
        s_lshl_b32 s45, s4, 11
        s_add_u32 s45, s45, {WS_MLG}
        s_cmp_eq_u32 s3, 2
        s_cselect_b32 s44, s45, s44
        s_cselect_b32 s45, 15, 63
        v_and_b32 v16, s45, v1
        v_lshl_add_u32 v16, v16, 7, s44
        global_load_dword v20, v16, {sp(WS_)} sc1
        L_M_pt:
        """)
    for sl, (reg, buf) in enumerate((("s50", L_BUF0), ("s51", L_BUF1))):
        A(f"""
        s_lshl_b32 s52, {reg}, 7
        s_cmp_ge_u32 {reg}, 16
        s_cbranch_scc1 L_sl{sl}_m
        v_add_u32 v16, s52, v19
        """)
        dma_tile(A, 12, "v16", 1152, buf, 64)
        A(f"""
        s_branch L_sl{sl}_d
        L_sl{sl}_m:
        s_cmp_eq_u32 {reg}, 255
        s_cbranch_scc1 L_sl{sl}_d
        s_add_u32 s52, s52, {2304 - 16*128}
        v_add_u32 v16, s52, v14
        """)
        dma_tile(A, 8, "v16", 6912, buf, 72)
        A(f"L_sl{sl}_d:")
    A("s_waitcnt vmcnt(0)\ns_barrier")
    A.stamp(4)
    if diag & 8: A("s_branch L_end")
    A(f"""
    s_cmp_lt_u32 s3, 8
    s_cbranch_scc1 L_H_p
    s_cmp_ge_u32 s3, 12
    s_cselect_b32 s50, s51, s50
    s_cselect_b32 s44, {L_BUF1}, 0
    v_add_u32 v17, s44, v10
    s_cmp_lt_u32 s50, 16
    s_cbranch_scc1 L_A_s4m
    s_cmp_eq_u32 s50, 255
    s_cbranch_scc1 L_H_x
    s_lshl_b32 s44, s50, 9
    s_lshl_b32 s45, s46, 7
    s_add_u32 s44, s44, s45
    s_add_u32 s44, s44, {WS_MG - 16*512}
    v_lshl_add_u32 v18, v1, 3, s44
    """)
    bfrags(A, "v17")
    gemv_mfma(A, "v12")
    A(f"""
    s_mov_b64 exec, 0xffff
    s_nop 6
    v_cvt_pk_bf16_f32 v22, v20, v21
    v_mov_b32 v23, {TAG}
    global_store_dwordx2 v18, v[22:23], {sp(WS_)} sc1
    s_mov_b64 exec, -1
    """)
    A.stamp(5)
    A(f"""
    L_H_x:
    s_cmp_eq_u32 s5, 15
    s_cbranch_scc1 L_XR
    s_branch L_end
    L_H_p:
    s_cmp_ge_u32 s5, 14
    s_cbranch_scc1 L_H_x
    """)
    A(f"""
    s_lshl_b32 s50, s4, 4
    s_lshr_b32 s45, s3, 1
    s_lshl_b32 s45, s45, 2
    s_add_u32 s50, s50, s45
    s_and_b32 s44, s3, 1                  ; dh
    s_lshl_b32 s51, s50, 7
    s_add_u32 s51, s51, {WS_MLG}
    v_mov_b32 v18, s51
    s_lshl_b32 s51, s50, 10
    s_lshl_b32 s45, s44, 9
    s_add_u32 s51, s51, s45
    s_add_u32 s51, s51, {WS_OG}
    v_lshl_add_u32 v17, v1, 3, s51
    s_bfe_u32 s45, s3, 0x10001
    s_mul_i32 s45, s45, {ASTR}
    s_lshr_b32 s51, s3, 2
    s_lshl_b32 s51, s51, 9
    s_add_u32 s45, s45, s51
    s_and_b32 s51, s3, 6
    s_lshl_b32 s51, s51, 7
    s_sub_u32 s45, s45, s51
    s_add_u32 s45, s45, {ASTR}
    v_add_u32 v19, s45, v8
    """)
    def oloads():
        for s_ in range(4):
            A(f"global_load_dwordx2 {vr(32+2*s_,2)}, v17, {sp(WS_)} offset:{s_*1024} sc1")
    A.dual_head("L_A_ml", ["v17", "v18"])
    A(f"s_sleep {ps//2}")
    for s_ in range(4):
        A(f"global_load_dwordx4 {vr(48+4*s_,4)}, v18, {sp(WS_)} offset:{s_*128} sc1")
    A("s_waitcnt vmcnt(0)")
    A.etagcheck([f"v{48+i}" for i in range(16)], "v20", "L_A_ml")
    oloads()
    for h in range(2):
        A(f"v_max_f32 v{20+h}, v{48+2*h}, v{52+2*h}\nv_max3_f32 v{20+h}, v{56+2*h}, v{60+2*h}, v{20+h}")
    for s_ in range(4):
        for h in range(2): A(f"v_sub_f32 v{22+2*s_+h}, v{48+4*s_+2*h}, v{20+h}")
    for i in range(8): A(f"v_mul_f32 v{22+i}, {hex(LOG2E)}, v{22+i}")
    for i in range(8): A(f"v_exp_f32 v{22+i}, v{22+i}")
    for s_ in range(4):
        for h in range(2):
            A(f"{'v_mul_f32' if s_ == 0 else 'v_fmac_f32'} v{20+h}, v{22+2*s_+h}, v{49+4*s_+2*h}")
    A("v_rcp_f32 v20, v20\nv_rcp_f32 v21, v21\ns_nop 0")
    for i in range(8): A(f"v_mul_f32 v{22+i}, v{22+i}, v{20+(i&1)}")
    A.stamp(7)
    A("s_branch L_A_ochk")
    A.dual_head("L_A_h3", ["v17"], init=False)
    oloads()
    A("L_A_ochk:\ns_waitcnt vmcnt(0)")
    A.etagcheck([f"v{32+i}" for i in range(8)], "v20", "L_A_h3")
    A("v_mul_f32 v30, v22, v32\nv_mul_f32 v31, v23, v33")
    for s_ in range(1, 4):
        A(f"v_fmac_f32 v30, v{22+2*s_}, v{32+2*s_}\nv_fmac_f32 v31, v{23+2*s_}, v{33+2*s_}")
    A(f"""
    v_cvt_pk_bf16_f32 v30, v30, v31
    ds_write_b16 v19, v30
    ds_write_b16_d16_hi v19, v30 offset:256
    s_waitcnt lgkmcnt(0)
    s_barrier
    """)
    A.stamp(8)
    A("s_branch L_end")
    A(f"""
    L_A_s4m:
    v_and_b32 v18, 1, v1
    v_mul_u32_u24 v18, {ASTR}, v18
    v_add_u32 v18, v18, v11
    v_add_u32 v18, {ASTR}, v18
    s_mul_i32 s45, s4, 4608
    s_lshl_b32 s44, s50, 9
    s_add_u32 s45, s45, s44
    s_lshl_b32 s44, s46, 7
    s_add_u32 s45, s45, s44
    s_add_u32 s45, s45, {WS_PX}
    v_lshl_add_u32 v19, v1, 3, s45
    """)
    bfrags(A, "v17", 56, 16)
    A("s_waitcnt lgkmcnt(0)\ns_barrier")
    gemv_mfma(A, "v18", vb=56, depth=8, nks=16)
    A("s_mov_b64 exec, 0xffff\ns_nop 6")
    A.epack("v24", "v20"); A.epack("v25", "v21")
    A(f"global_store_dwordx2 v19, v[24:25], {sp(WS_)} sc1\ns_mov_b64 exec, -1")
    A.stamp(9)
    A("s_branch L_end")

    A("L_KT:\ns_waitcnt lgkmcnt(0)")
    A.mktag()
    A(f"""
    s_cmp_ge_u32 s3, 9
    s_cbranch_scc1 L_S5
    v_lshlrev_b32 v15, 1, v0
    global_load_ushort v33, v15, {sp(X_)}
    global_load_ushort v34, v15, {sp(X_)} offset:1152
    s_mul_i32 s44, s4, 4608
    s_add_u32 s44, s44, {WS_HL}
    v_lshl_add_u32 v55, v0, 3, s44
    global_load_dword v57, v55, {sp(WS_)} sc1
    v_mul_u32_u24 v15, 36, v1
    global_load_dwordx4 v[24:27], v15, {sp(X_)}
    global_load_dwordx4 v[28:31], v15, {sp(X_)} offset:16
    global_load_dword v32, v15, {sp(X_)} offset:32
    v_lshlrev_b32 v15, 3, v0
    v_add_u32 v52, {WS_AG + 2304}, v15
    v_add_u32 v53, {WS_AG + 2304 + AGS}, v15
    """)
    def ag_loads():
        for k in range(2):
            A(f"global_load_dwordx2 {vr(40+4*k,2)}, v{52+k}, {sp(WS_)} offset:-2304 sc1")
            A(f"global_load_dwordx2 {vr(42+4*k,2)}, v{52+k}, {sp(WS_)} offset:2304 sc1")
    A(f"""
    s_mov_b32 s44, 0x3f803f80
    v_mov_b32 v35, 0
    v_mov_b32 v36, 0
    s_waitcnt vmcnt(0)
    v_mov_b32 v61, {TAG}
    """)
    for i in range(9):
        A(f"v_dot2_f32_bf16 v35, v{24+i}, s44, v35\nv_dot2_f32_bf16 v36, v{24+i}, v{24+i}, v36")
    A("s_nop 2")
    A.row_reduce("v_add_f32", ["v35", "v36"])
    A(f"""
    v_mov_b32 v37, v35
    v_mov_b32 v38, v36
    s_nop 0
    v_permlane16_swap_b32 v35, v37
    v_permlane16_swap_b32 v36, v38
    v_add_f32 v35, v35, v37
    v_add_f32 v36, v36, v38
    v_mul_f32 v35, {INV576}, v35
    v_mul_f32 v36, {INV576}, v36
    v_fma_f32 v36, -v35, v35, v36
    """)
    ln_finish(A, "v35", "v36", "v38")
    A("""
    v_readlane_b32 s48, v35, 0
    v_readlane_b32 s49, v35, 32
    v_readlane_b32 s50, v38, 0
    v_readlane_b32 s51, v38, 32
    v_lshlrev_b32 v33, 16, v33
    v_lshlrev_b32 v34, 16, v34
    v_subrev_f32 v33, s48, v33
    v_subrev_f32 v34, s49, v34
    """)
    A.r1("v33", "v34")
    A("v_mul_f32 v33, s50, v33\nv_mul_f32 v34, s51, v34")
    A.r1("v33", "v34")
    A("s_mov_b32 s7, 0")
    A(f"L_HR_h:\ns_add_u32 s7, s7, 1\ns_cmp_gt_u32 s7, {SPIN}\ns_cbranch_scc1 L_end\ns_sleep {ps}")
    ag_loads()
    A("s_waitcnt vmcnt(0)")
    A.etagcheck([f"v{40+i}" for i in range(8)], "v39", "L_HR_h")
    for i in range(4): A(f"v_add_f32 v{40+i}, v{40+i}, v{44+i}")
    A.r1("v40", "v41", "v42", "v43")
    A("v_add_f32 v42, 1.0, v42\nv_add_f32 v43, 1.0, v43")
    A.r1("v42", "v43")
    A("v_mul_f32 v42, v33, v42\nv_mul_f32 v43, v34, v43")
    A.r1("v42", "v43")
    A(f"""
    v_add_f32 v42, v42, v40
    v_add_f32 v43, v43, v41
    v_cvt_pk_bf16_f32 v60, v42, v43
    """)
    A.dual_store("global_store_dwordx2", "v55", "v[60:61]")
    A.stamp(3)
    A("s_branch L_S5")
    A("L_XR:")
    if diag & 8: A("s_branch L_end")
    A(f"""
    v_lshlrev_b32 v16, 2, v0
    v_min_u32 v16, 1532, v16
    v_add_u32 v16, {L_ST}, v16
    ds_write_b32 v16, v3
    v_mov_b32 v21, {L_WCNT}
    v_mov_b32 v22, 1
    s_waitcnt lgkmcnt(0)
    s_barrier
    s_cmp_eq_u32 s3, 9
    s_cbranch_scc1 L_XR_stat
    s_cmp_gt_u32 s3, 9
    s_cbranch_scc1 L_end
    v_lshlrev_b32 v16, 1, v0
    global_load_ushort v80, v16, {sp(X_)}
    global_load_ushort v81, v16, {sp(X_)} offset:1152
    v_lshlrev_b32 v16, 3, v0
    v_add_u32 v17, {WS_MG + 2304}, v16
    v_add_u32 v18, {WS_MG + 9216}, v16
    """)
    for k in range(4): A(f"v_add_u32 v{88+k}, {WS_PX + 2304 + k*9216}, v16")
    A(f"""
    s_mul_i32 s44, s4, 4608
    s_lshl_b32 s44, s44, 1
    s_add_u32 s45, s44, {WS_RG}
    v_lshl_add_u32 v26, v0, 4, s45
    s_add_u32 s45, s44, {WS_XA}
    v_lshl_add_u32 v27, v0, 4, s45
    v_and_b32 v24, 48, v1
    v_lshlrev_b32 v24, 2, v24
    s_lshl_b32 s44, s3, 2
    s_add_u32 s44, s44, {L_ST}
    v_add_u32 v24, s44, v24
    s_mov_b32 s56, 0x00010001
    s_mov_b32 s57, 0x00010001
    """)
    A.spin_head("L_XR_mg")
    A("s_sleep 4")
    for j, (r, o) in enumerate((("v17", -2304), ("v17", 2304), ("v18", 0))):
        A(f"global_load_dwordx2 {vr((96, 34, 100)[j],2)}, {r}, {sp(WS_)} offset:{o} sc1")
    A("s_waitcnt vmcnt(0)")
    A.tagcheck(["v97", "v35", "v101", "v101"], "v30", "v31", "L_XR_mg")
    A(f"""
    v_lshlrev_b32 v82, 16, v96
    v_and_b32 v83, 0xffff0000, v96        ; ga
    v_and_b32 v101, 0xffff0000, v100
    v_lshlrev_b32 v100, 16, v100
    v_add_f32 v100, 1.0, v100
    v_add_f32 v101, 1.0, v101
    v_cvt_pk_bf16_f32 v32, v100, v101     ; g
    v_mov_b32 v33, {TAG}
    """)
    A.dual_store("global_store_dwordx4", "v26", "v[32:35]")
    A(f"""
    v_lshlrev_b32 v80, 16, v80
    v_lshlrev_b32 v81, 16, v81
    v_lshlrev_b32 v84, 16, v32
    v_and_b32 v85, 0xffff0000, v32
    v_lshlrev_b32 v86, 16, v34
    v_and_b32 v87, 0xffff0000, v34
    v_mov_b32 v96, v84
    v_mov_b32 v97, v85
    v_mul_f32 v98, v84, v84
    v_mul_f32 v99, v85, v85
    v_mov_b32 v100, v86
    v_mov_b32 v101, v87
    v_mul_f32 v102, v86, v86
    v_mul_f32 v103, v87, v87
    v_mul_f32 v104, v84, v86
    v_mul_f32 v105, v85, v87
    v_mov_b32 v106, 0
    v_mov_b32 v107, 0
    """)
    def partial_stats(off, cnt):
        for i in range(6): A(f"v_permlane32_swap_b32 v{96+2*i}, v{97+2*i}")
        for i in range(6): A(f"v_add_f32 v{96+2*i}, v{96+2*i}, v{97+2*i}")
        A("s_nop 0")
        for i in range(3): A(f"v_permlane16_swap_b32 v{96+4*i}, v{98+4*i}")
        for i in range(3): A(f"v_add_f32 v{96+4*i}, v{96+4*i}, v{98+4*i}")
        A.row_reduce("v_add_f32", ["v96", "v100", "v104"])
        A(f"""
        s_mov_b64 exec, s[56:57]
        ds_write_b32 v24, v96 offset:{off}
        ds_write_b32 v24, v100 offset:{off+256}
        ds_write_b32 v24, v104 offset:{off+512}
        s_mov_b64 exec, 1
        ds_add_u32 v21, v22 offset:{cnt}
        s_mov_b64 exec, -1
        """)
    partial_stats(0, 4)
    A.stamp(6)
    A(f"""
    s_mov_b32 s7, 0
    s_movk_i32 s60, 0xff
    L_XR_px:
    s_add_u32 s7, s7, 1
    s_cmp_gt_u32 s7, {SPIN}
    s_cbranch_scc1 L_end
    """)
    for k in range(8):
        A(f"s_bitcmp0_b32 s60, {k}\ns_cbranch_scc1 L_px_l{k}")
        A(f"global_load_dwordx2 {vr(96+2*k,2)}, v{88+k//2}, {sp(WS_)} offset:{2304 if k & 1 else -2304} sc1")
        A(f"L_px_l{k}:")
    A("s_waitcnt vmcnt(0)")
    for k in range(8):
        A(f"""
        s_bitcmp0_b32 s60, {k}
        s_cbranch_scc1 L_px_c{k}
        v_xor_b32 v{96+2*k}, {ETAG}, v{96+2*k}
        v_xor_b32 v{97+2*k}, {ETAG}, v{97+2*k}
        v_or_b32 v30, v{96+2*k}, v{97+2*k}
        v_and_b32 v30, 63, v30
        v_cmp_ne_u32 vcc, 0, v30
        s_cbranch_vccnz L_px_c{k}
        s_bitset0_b32 s60, {k}
        L_px_c{k}:
        """)
    A("s_cmp_lg_u32 s60, 0\ns_cbranch_scc1 L_XR_px")
    A.stamp(10)
    for i in range(4): A(f"v_add_f32 v{96+2*i}, v{96+2*i}, v{104+2*i}\nv_add_f32 v{97+2*i}, v{97+2*i}, v{105+2*i}")
    for i in range(2): A(f"v_add_f32 v{96+2*i}, v{96+2*i}, v{100+2*i}\nv_add_f32 v{97+2*i}, v{97+2*i}, v{101+2*i}")
    A("v_add_f32 v96, v96, v98\nv_add_f32 v97, v97, v99")
    A.r1("v96", "v97")
    A("v_mul_f32 v96, v82, v96\nv_mul_f32 v97, v83, v97")
    A.r1("v96", "v97")
    A(f"""
    v_add_f32 v96, v80, v96
    v_add_f32 v97, v81, v97
    v_cvt_pk_bf16_f32 v34, v96, v97
    v_lshlrev_b32 v96, 16, v34
    v_and_b32 v97, 0xffff0000, v34        ; x1
    v_mul_f32 v100, v96, v84
    v_mul_f32 v101, v97, v85
    v_cvt_pk_bf16_f32 v32, v100, v101
    global_store_dwordx4 v27, v[32:35], {sp(WS_)}
    v_lshlrev_b32 v100, 16, v32
    v_and_b32 v101, 0xffff0000, v32       ; a
    v_mul_f32 v98, v96, v96
    v_mul_f32 v99, v97, v97
    v_mul_f32 v102, v100, v100
    v_mul_f32 v103, v101, v101
    v_mul_f32 v104, v100, v84
    v_mul_f32 v105, v101, v85
    v_mul_f32 v106, v100, v86
    v_mul_f32 v107, v101, v87
    """)
    partial_stats(768, 8)
    A(f"v_add_u32 v27, {WS_GOFF}, v27\nglobal_store_dwordx4 v27, v[32:35], {sp(WS_)} sc1")
    A.stamp(11)
    A(f"""
    s_branch L_end
    L_XR_stat:
    v_lshlrev_b32 v22, 2, v1
    v_add_u32 v22, {L_ST}, v22
    v_lshrrev_b32 v20, 5, v1
    s_lshl_b32 s44, s4, 7
    s_add_u32 s44, s44, {WS_CF}
    v_lshl_add_u32 v20, v20, 4, s44
    global_load_dword v23, v20, {sp(WS_)} sc1
    """)
    def gather_stats(off, cnt, r, sleep):
        A.lds_spin(cnt, 9, "v23", "v21", sleep=sleep)
        A(f"""
        ds_read_b32 v{r}, v22 offset:{off}
        ds_read_b32 v{r+2}, v22 offset:{off+256}
        ds_read_b32 v{r+4}, v22 offset:{off+512}
        s_waitcnt lgkmcnt(0)
        """)
        A.row_reduce("v_add_f32", [f"v{r}", f"v{r+2}", f"v{r+4}"])
        for q in (r, r+2, r+4): A(f"v_mul_f32 v{q}, {INV576}, v{q}")
        for q in (r, r+2, r+4): A(f"v_mov_b32 v{q+1}, v{q}")
        for q in (r, r+2, r+4): A(f"v_permlane16_swap_b32 v{q}, v{q+1}")
    A("s_waitcnt vmcnt(0)")
    gather_stats(0, 4, 100, True)
    gather_stats(768, 8, 84, False)
    A("v_fma_f32 v85, -v84, v84, v85")
    ln_finish(A, "v84", "v85", "v90")
    A(f"""
    v_fma_f32 v86, -v84, v100, v86
    v_fma_f32 v89, -v84, v104, v89
    v_add_f32 v88, v88, v88
    v_fma_f32 v88, v84, v101, -v88
    v_fma_f32 v87, v84, v88, v87
    v_fma_f32 v86, v90, v86, v102         ; mean2
    v_add_f32 v89, v89, v89
    v_fma_f32 v87, v90, v87, v89
    v_fma_f32 v87, v90, v87, v103         ; E[h2^2]
    v_fma_f32 v87, -v86, v86, v87         ; var2
    """)
    ln_finish(A, "v86", "v87", "v94")
    A(f"""
    v_mul_f32 v92, v90, v94               ; c0
    v_mul_f32 v95, -v86, v94              ; c3
    v_mul_f32 v93, -v84, v92              ; c1
    """)
    for r in range(92, 96): A.epack(f"v{r}", f"v{r}")
    A("s_mov_b32 exec_lo, 1\ns_mov_b32 exec_hi, 1")
    A.dual_store("global_store_dwordx4", "v20", "v[92:95]")
    A("s_mov_b64 exec, -1")
    A.stamp(12)
    A("s_branch L_end")

    A(f"""
    L_S5:
    {'s_branch L_end' if diag & 8 else ''}
    s_mul_i32 s47, s4, 9
    s_add_u32 s47, s47, s5                ; f
    v_mov_b32 v82, 0
    v_mov_b32 v88, 0
    """)
    A.srd(8, W1_, 576*9216)
    A.srd(12, W2_, 4608*1152)
    A(f"""
    s_lshl_b32 s44, s47, 7
    v_mul_u32_u24 v14, 9216, v4
    v_lshl_add_u32 v14, v6, 4, v14
    v_add_u32 v14, s44, v14
    s_lshl_b32 s45, s46, 5
    s_add_u32 s44, s44, s45
    v_and_b32 v15, 15, v1
    v_lshl_add_u32 v15, v15, 1, s44
    global_load_ushort v19, v15, {sp(B1_)}
    v_mul_u32_u24 v15, 0x38f, v0
    v_lshrrev_b32 v15, 16, v15
    v_mul_u32_u24 v16, 72, v15
    v_sub_u32 v16, v0, v16
    v_and_b32 v17, 6, v15
    v_xor_b32 v16, v16, v17
    v_mul_u32_u24 v15, 1152, v15
    v_lshl_add_u32 v15, v16, 4, v15
    s_mul_i32 s49, s4, 9216
    s_add_u32 s45, s49, {WS_RG}
    v_lshl_add_u32 v80, v0, 4, s45
    s_add_u32 s45, s49, {WS_XA}
    v_lshl_add_u32 v81, v0, 4, s45
    """)
    def rgpoll():
        A("s_barrier\ns_cmp_ge_u32 s3, 9\ns_cbranch_scc1 L_S5_w2d")
        A.dual_head("L_S5_rg", ["v80", "v81"])
        A(f"s_sleep {ps}\nglobal_load_dwordx4 v[24:27], v80, {sp(WS_)} sc1\ns_waitcnt vmcnt(0)")
        A.tagcheck(["v25", "v27"], "v30", "v31", "L_S5_rg")
        A(f"""
        v_mov_b32 v35, 0x3f80
        ds_write_b16 v8, v24 offset:{ASTR}
        ds_write_b16_d16_hi v8, v24 offset:{5*ASTR}
        ds_write_b16 v8, v26 offset:{2*ASTR}
        ds_write_b16_d16_hi v8, v26 offset:{6*ASTR}
        ds_write_b16 v8, v35 offset:{3*ASTR}
        ds_write_b16 v8, v35 offset:{7*ASTR}
        L_S5_w2d:
        """)
    if rgw: rgpoll()
    A("s_barrier")
    A.stamp(5)
    if not w2first:
        dma_tile(A, 8, "v14", 9216, L_BUF0)
        A("s_barrier")
    A(f"""
    s_cmp_ge_u32 s3, 9
    s_cbranch_scc1 L_S5_w2x
    s_mul_i32 s44, s47, {64*1152}
    s_lshl_b32 s45, s3, 10
    s_add_u32 s45, s45, {L_BUF1}
    """)
    for o in range(8):
        A(f"s_mov_b32 m0, s45\ns_add_u32 s45, s45, 9216")
        A(f"buffer_load_dwordx4 v15, s[12:15], s44 offen{NT} lds")
        A(f"s_add_u32 s44, s44, 9216")
    A("L_S5_w2x:")
    if w2first:
        A("s_barrier")
        dma_tile(A, 8, "v14", 9216, L_BUF0)
    if not rgw: rgpoll()
    A(f"""
    s_waitcnt vmcnt(0) lgkmcnt(0)
    s_barrier
    """)
    A.stamp(6)
    A(f"""
    s_cmp_ge_u32 s3, 12
    s_cbranch_scc1 L_S5_g1
    v_lshrrev_b32 v20, 2, v1
    v_mul_u32_u24 v20, 1152, v20
    v_lshl_add_u32 v20, v9, 3, v20
    v_add_u32 v20, {L_BUF1}, v20
    v_bfe_u32 v17, v1, 3, 2
    s_mul_i32 s48, s3, 3
    """)
    for i in range(3):
        A(f"s_add_u32 s44, s48, {i}\nv_xor_b32 v18, s44, v17\nv_lshl_add_u32 v18, v18, 5, v20")
        for ks in range(2):
            for half in range(2):
                A(f"ds_read_b64_tr_b16 {vr(52+i*8+ks*4+half*2,2)}, v18 offset:{(ks*32+half*16)*1152}")
    A(f"""
    s_mul_i32 s44, s48, {2*4608}
    s_lshl_b32 s45, s47, 6
    s_add_u32 s44, s44, s45
    s_add_u32 s44, s44, {WS_FG}
    v_mul_u32_u24 v20, 4608, v4
    v_lshl_add_u32 v20, v7, 3, v20
    v_add_u32 v76, s44, v20
    v_and_b32 v79, 1, v1
    v_lshlrev_b32 v79, 7, v79
    v_and_b32 v20, 48, v1
    v_add_u32 v79, v79, v20
    v_add_u32 v79, {L_H1}, v79
    s_cmp_eq_u32 s3, 10
    s_cbranch_scc1 L_S5_fprep
    s_cmp_ge_u32 s3, 9
    s_cbranch_scc1 L_S5_g2
    """)
    A.dual_head("L_S5_xa", ["v81"], init=False)
    A(f"global_load_dwordx2 v[24:25], v81, {sp(WS_)} sc1\ns_waitcnt vmcnt(0)")
    A.tagcheck(["v25"], None, None, "L_S5_xa")
    A(f"""
    ds_write_b16 v8, v24
    ds_write_b16_d16_hi v8, v24 offset:{4*ASTR}
    """)
    A.stamp(7)
    A(f"""
    s_branch L_S5_g2
    L_S5_fprep:
    s_lshl_b32 s44, s47, 3
    v_add_u32 v80, s44, v7                ; col
    v_lshrrev_b32 v81, 5, v1              ; b
    v_mul_u32_u24 v82, 1152, v81
    v_lshl_add_u32 v82, v80, 1, v82
    v_lshlrev_b32 v83, 1, v80
    global_load_ushort v84, v83, {sp(B2_)}
    global_load_ushort v85, v82, {sp(OUT_)}
    v_lshlrev_b32 v83, 3, v80
    v_add_u32 v83, {WS_MG + 1728*8}, v83
    s_add_u32 s44, s49, {WS_XA + 8}
    v_lshl_add_u32 v80, v80, 4, s44
    v_lshlrev_b32 v81, 4, v81             ; 16*b
    s_mul_i32 s44, s47, 4608
    s_add_u32 s44, s44, {WS_FG + 2048}
    v_lshl_add_u32 v88, v1, 3, s44
    """)
    A.dual_head("L_S5_gb", ["v80"])
    A(f"""
    global_load_dwordx2 v[86:87], v83, {sp(WS_)} sc1
    global_load_dwordx2 v[90:91], v80, {sp(WS_)} sc1
    s_waitcnt vmcnt(0)
    """)
    A.tagcheck(["v87", "v91"], "v30", "v31", "L_S5_gb")
    A(f"""
    v_lshrrev_b32 v86, v81, v86
    v_lshrrev_b32 v85, v81, v90
    v_lshlrev_b32 v86, 16, v86            ; gb
    v_lshlrev_b32 v85, 16, v85            ; x1
    v_lshlrev_b32 v84, 16, v84            ; b2
    L_S5_g2:
    s_mov_b32 s56, 0xffff0000
    s_mov_b32 s57, 0
    s_mov_b32 s58, 0
    s_mov_b32 s59, 0xffff
    s_waitcnt lgkmcnt(0)
    s_barrier
    s_barrier
    ds_read_b128 v[32:35], v79
    ds_read_b128 v[36:39], v79 offset:64
    s_waitcnt lgkmcnt(1)
    """)
    for i in range(3):
        A(f"v_mfma_f32_16x16x32_bf16 {vr(40+4*i,4)}, v[32:35], {vr(52+8*i,4)}, 0")
    A("s_waitcnt lgkmcnt(0)")
    for i in range(3):
        A(f"v_mfma_f32_16x16x32_bf16 {vr(40+4*i,4)}, v[36:39], {vr(56+8*i,4)}, {vr(40+4*i,4)}")
    A(f"""
    s_mov_b32 exec_hi, 0xffff
    s_nop 5
    v_cndmask_b32 v28, v40, v44, s[56:57]
    v_cndmask_b32 v29, v41, v45, s[56:57]
    v_cndmask_b32 v28, v28, v48, s[58:59]
    v_cndmask_b32 v29, v29, v49, s[58:59]
    """)
    A.epack("v28", "v28"); A.epack("v29", "v29")
    A(f"global_store_dwordx2 v76, v[28:29], {sp(WS_)} sc1\ns_mov_b64 exec, -1")
    A.stamp(11)
    A(f"""
    s_cmp_lg_u32 s3, 10
    s_cbranch_scc1 L_end
    s_waitcnt vmcnt(0)
    """)
    A.spin_head("L_S5_fg")
    for i in range(9):
        A(f"global_load_dwordx2 {vr(40+2*i,2)}, v88, {sp(WS_)} offset:{i*512-2048} sc1")
    A("s_waitcnt vmcnt(0)")
    A.etagcheck([f"v{40+i}" for i in range(18)], "v30", "L_S5_fg")
    A.stamp(12)
    fold8(A, 9, 40, 41, 42)
    A.r1("v40")
    A("v_add_f32 v40, v84, v40")
    A.r1("v40")
    A("v_mul_f32 v40, v86, v40")
    A.r1("v40")
    A(f"""
    v_add_f32 v40, v85, v40
    v_cvt_pk_bf16_f32 v40, v40, v40
    s_mov_b32 exec_lo, 0xff
    s_mov_b32 exec_hi, 0xff
    global_store_short v82, v40, {sp(OUT_)}
    s_cmp_lg_u32 s47, 0
    s_cbranch_scc1 L_S5_fin
    s_mov_b64 exec, 1
    v_mov_b32 v33, {TAG}
    global_store_dword v3, v33, {sp(WS_)} sc1
    L_S5_fin:
    s_mov_b64 exec, -1
    """)
    A.stamp(13)
    A("s_branch L_end")
    A("L_S5_g1:\nv_mov_b32 v15, v10")
    bfrags(A, "v15")
    k0_ = -2.0 * 1.4426950408889634 * 0.7978845608028654
    A(f"""
    v_bfe_u32 v16, v1, 4, 1
    v_lshlrev_b32 v15, 7, v16
    s_lshl_b32 s44, s4, 7
    s_add_u32 s44, s44, {WS_CF}
    v_lshl_add_u32 v18, v16, 4, s44
    v_bfe_u32 v16, v1, 2, 2
    v_lshl_or_b32 v15, v16, 4, v15
    v_lshl_or_b32 v15, v9, 1, v15
    s_lshr_b32 s44, s46, 1
    s_lshl_b32 s44, s44, 6
    s_and_b32 s45, s46, 1
    s_lshl_b32 s45, s45, 3
    s_add_u32 s44, s44, s45
    s_add_u32 s44, s44, {L_H1}
    v_add_u32 v15, s44, v15
    v_lshlrev_b32 v19, 16, v19
    v_mul_u32_u24 v16, {ASTR}, v7
    v_add_u32 v16, v11, v16               ; A rows = i&7
    v_mov_b32 v17, {f2h(k0_)}
    s_waitcnt lgkmcnt(0)
    s_barrier
    """)
    gemv_mfma(A, "v16")
    A.stamp(9)
    A.dual_head("L_S5_cf", ["v18"])
    A(f"global_load_dwordx4 v[24:27], v18, {sp(WS_)} sc1\ns_waitcnt vmcnt(0)")
    A.etagcheck(["v24", "v25", "v26", "v27"], "v30", "L_S5_cf")
    A.stamp(8)
    A(f"""
    v_mul_f32 v20, v20, v24
    v_fmac_f32 v20, v21, v25
    v_fmac_f32 v20, v22, v26
    v_fmac_f32 v20, v23, v27
    """)
    A.r1("v20")
    A("v_add_f32 v20, v20, v19")
    A.r1("v20")
    A(f"""
    v_mul_f32 v21, v20, v20
    v_fmamk_f32 v21, v21, {f2h(k0_*0.044715)}, v17
    v_mul_f32 v21, v21, v20
    v_exp_f32 v21, v21
    s_nop 0
    v_add_f32 v21, 1.0, v21
    v_rcp_f32 v21, v21
    s_mov_b32 exec_hi, 0
    v_mul_f32 v21, v21, v20
    v_cvt_pk_bf16_f32 v21, v21, v21
    ds_write_b16 v15, v21
    s_mov_b64 exec, -1
    s_waitcnt lgkmcnt(0)
    s_barrier
    """)
    A.stamp(10)
    A("L_end:")
    if dbg:
        maps = {"A": {1: 4, 2: 5, 4: 6, 7: 7, 9: 8, 10: 9, 12: 14}, "B": {4: 3, 5: 10, 6: 11, 8: 12, 11: 13}, "M": {3: 2, 5: 15}}
        A(f"""
        s_mov_b64 exec, -1
        s_lshl_b32 s44, 1, s3
        s_and_b32 s44, s44, {(1<<0)|(1<<9)|(1<<12)|(1<<15)}
        s_cbranch_scc0 L_exit
        s_load_dwordx2 s[46:47], s[0:1], 104
        v_mov_b32 v125, 0x400
        v_readlane_b32 s44, v127, 0
        s_nop 3
        s_not_b32 s44, s44
        v_writelane_b32 v127, s44, 15
        v_writelane_b32 v125, 4, 0
        v_writelane_b32 v125, 0, 15
        s_lshr_b32 s45, s2, 3
        s_cmp_lt_u32 s45, 16
        s_cbranch_scc1 L_dbg_A
        s_cmp_lt_u32 s45, 25
        s_cbranch_scc1 L_dbg_B
        """)
        for nm in ("M", "B", "A"):
            A(f"L_dbg_{nm}:")
            for st, sl in maps[nm].items(): A(f"v_writelane_b32 v125, {sl*4}, {st}")
            A("s_branch L_dbg_go")
        A(f"""
        L_dbg_go:
        s_waitcnt lgkmcnt(0)
        v_cmp_gt_u32 vcc, 0x100, v125
        s_and_saveexec_b64 s[48:49], vcc
        global_atomic_umax v125, v127, s[46:47]
        s_endpgm
        """)
    elif stamps:
        A(f"""
        s_mov_b64 exec, 0xffff
        s_lshl_b32 s44, s2, 4
        s_add_u32 s44, s44, s3
        s_lshl_b32 s44, s44, 6
        s_add_u32 s44, s44, {WS_STAMP}
        v_lshl_add_u32 v126, v1, 2, s44
        global_store_dword v126, v127, {sp(WS_)}
        """)
    A("L_exit:\ns_endpgm\nL_codeend:")
    A.footer(128, 102)
    return A

HEAD = """; Fused adaLN + sliding-window GQA decode attention + channel MLP, one persistent launch (gfx950).
"""
if __name__ == "__main__":
    out = sys.argv[1]
    kw = {}
    for o in sys.argv[2:]:
        if "=" in o:
            k, v = o.split("="); kw[k] = int(v)
        elif o == "stamps": kw["stamps"] = True
        elif o == "nont": kw["nt"] = ""
    A = build(**kw)
    open(out, "w").write(HEAD + A.text())
```

```python
import sys, struct
from asmlib import Asm, NAME

WS_EPOCH = 0x0
WS_QG    = 0x4000
WS_TR    = 0x18000
WS_FL    = 0x1C000
WS_PX    = 0x20000
WS_AG    = 0x30000
AGS = 1152*8
WS_MG    = 0x40000
WS_FG    = 0x50000
WS_OG    = 0x100000
WS_MLG   = 0x120000
WS_RG    = 0x124000
WS_XA    = 0x136000
WS_CF    = 0x151000
WS_HL    = 0x152000
WS_GOFF  = 0x80000
WS_QL    = 0x200000
WS_STAMP = 0x8000000
AL = 131072; L_Q = 0; L_CNT = 512; L_MX = 640; L_LS = 704; L_P = 1024; PSTR = 1088
ASTR = 1184
L_BUF0 = 0; L_BUF1 = 73728; L_ACT = 147456; L_H1 = L_ACT + 8*ASTR; L_CF = L_H1 + 256; L_WCNT = L_CF + 64; L_ST = L_WCNT + 64; L_X1 = L_ST + 1536
LDS_BYTES = 160768
assert L_X1 <= LDS_BYTES
NLOC = 300
SPIN = 40000
LOG2E = 0x3fb8aa3b
X_, K_, V_, WQ_, WO_, W1_, B1_, W2_, B2_, C_, WM_, OUT_, WS_ = 16, 18, 20, 22, 24, 28, 30, 32, 34, 36, 38, 40, 42
TAG = "s6"; ETAG = "s101"

def sp(n): return f"s[{n}:{n+1}]"
def vr(n, k): return f"v[{n}:{n+k-1}]"
def f2h(x): return hex(struct.unpack("<I", struct.pack("<f", x))[0])
DPPM = "row_mask:0xf bank_mask:0xf"

class G(Asm):
    def __init__(self, stamps=False, nt="nt"):
        super().__init__()
        self.stamps = stamps
        self.nt = (" " + nt) if nt else ""
    def stamp(self, i):
        if self.stamps:
            self(f"s_memrealtime s[96:97]\ns_waitcnt lgkmcnt(0)\nv_writelane_b32 v127, s96, {i}")
    def rbf(self, *pairs):
        for d, s in pairs: self(f"v_cvt_pk_bf16_f32 {d}, {s}, {s}")
        for d, s in pairs: self(f"v_and_b32 {d}, 0xffff0000, {d}")
    def r1(self, *regs): self.rbf(*[(r, r) for r in regs])
    def srd(self, b, ptr, nbytes):
        self(f"s_mov_b32 s{b}, s{ptr}\ns_and_b32 s{b+1}, s{ptr+1}, 0xffff\ns_mov_b32 s{b+2}, {nbytes}\ns_mov_b32 s{b+3}, 0x20000")
    def mktag(self):
        self(f"s_add_u32 s6, s6, 0x9e3779b9\ns_and_b32 {ETAG}, s6, 63\ns_and_b32 s100, s6, 7")
    def tagcheck(self, tags, mn, mx, retry):
        if len(tags) == 1:
            self(f"v_cmp_ne_u32 vcc, {TAG}, {tags[0]}")
        else:
            assert len(tags) % 2 == 0
            for i in range(0, len(tags), 2):
                a, b = tags[i], tags[i+1]
                self(f"v_min3_u32 {mn}, {a}, {b}, {TAG if i == 0 else mn}")
                self(f"v_max3_u32 {mx}, {a}, {b}, {TAG if i == 0 else mx}")
            self(f"v_cmp_ne_u32 vcc, {mn}, {mx}")
        self(f"s_cbranch_vccnz {retry}")
    def etagcheck(self, words, acc, retry, ETAG=ETAG, mask=63):
        assert len(words) % 2 == 0
        for i in range(0, len(words), 2):
            a, b = words[i], words[i+1]
            self(f"v_xor_b32 {a}, {ETAG}, {a}\nv_xor_b32 {b}, {ETAG}, {b}")
            if i == 0: self(f"v_or_b32 {acc}, {a}, {b}")
            else: self(f"v_or3_b32 {acc}, {a}, {b}, {acc}")
        self(f"v_and_b32 {acc}, {mask}, {acc}\nv_cmp_ne_u32 vcc, 0, {acc}\ns_cbranch_vccnz {retry}")
    def epack(self, d, v, mask=63):
        self(f"v_bfi_b32 {d}, {mask}, {ETAG}, {v}")
    def spin_head(self, lab):
        self(f"s_mov_b32 s7, 0\n{lab}:\ns_add_u32 s7, s7, 1\ns_cmp_gt_u32 s7, {SPIN}\ns_cbranch_scc1 L_end")
    def dual_head(self, lab, regs, init=True):
        if init: self("s_mov_b32 s7, 0")
        self(f"{lab}:\ns_add_u32 s7, s7, 1\ns_cmp_gt_u32 s7, {SPIN}\ns_cbranch_scc1 L_end")
        self(f"s_cmp_lg_u32 s7, {NLOC}\ns_cbranch_scc1 {lab}_k")
        for r in regs: self(f"v_add_u32 {r}, {WS_GOFF}, {r}")
        self(f"{lab}_k:")
    def dual_store(self, op, vaddr, data):
        self(f"{op} {vaddr}, {data}, {sp(WS_)}\nv_add_u32 {vaddr}, {WS_GOFF}, {vaddr}\n{op} {vaddr}, {data}, {sp(WS_)} sc1")
    def row_reduce(self, op, regs, steps=4):
        for ctl in ("quad_perm:[1,0,3,2]", "quad_perm:[2,3,0,1]", "row_half_mirror", "row_mirror")[:steps]:
            if len(regs) < 3: self(f"s_nop {2 - len(regs)}")
            for r in regs:
                self(f"{op}_dpp {r}, {r}, {r} {ctl} {DPPM}")
    def lds_spin(self, off, val, vt, vbase, sleep=True):
        lab = self.label("LS")
        self.spin_head(lab)
        self(f"ds_read_b32 {vt}, {vbase} offset:{off}\ns_waitcnt lgkmcnt(0)\nv_readfirstlane_b32 s44, {vt}\ns_cmp_ge_u32 s44, {val}")
        done = self.label("LD")
        self(f"s_cbranch_scc1 {done}\n" + ("s_sleep 1\n" if sleep else "") + f"s_branch {lab}\n{done}:")
    def lds_inc(self, off, vbase, vone):
        self(f"s_mov_b64 exec, 1\nds_add_u32 {vbase}, {vone} offset:{off}\ns_mov_b64 exec, -1")

INV576 = f2h(1.0/576)
def ln_finish(A, mean, var, rs):
    A(f"v_max_f32 {var}, 0, {var}")
    A.r1(mean, var)
    A(f"v_add_f32 {var}, 0x3727c5ac, {var}")
    A.r1(var)
    A(f"v_sqrt_f32 {var}, {var}\ns_nop 0")
    A.r1(var)
    A(f"v_rcp_f32 {rs}, {var}\ns_nop 0")

def dma_tile(A, srd, voff, rowstride, ldsbase, ninstr=72):
    A(f"s_mul_i32 s44, s3, {8*rowstride}\ns_lshl_b32 s45, s3, 10\ns_add_u32 s45, s45, {ldsbase}")
    for i in range((ninstr + 15)//16):
        skip = None
        if (i+1)*16 > ninstr:
            skip = A.label("DS")
            A(f"s_cmp_ge_u32 s3, {ninstr - 16*i}\ns_cbranch_scc1 {skip}")
        A(f"s_mov_b32 m0, s45\ns_add_u32 s45, s45, 16384")
        A(f"buffer_load_dwordx4 {voff}, s[{srd}:{srd+3}], s44 offen{A.nt} lds")
        A(f"s_add_u32 s44, s44, {128*rowstride}")
        if skip: A(f"{skip}:")

def bfrags(A, vaddr, vb=52, nks=18, rowb=128):
    base = 0
    for ks in range(nks):
        for half in range(2):
            off = (ks*32 + half*16) * rowb
            if off - base > 65535:
                A(f"v_add_u32 {vaddr}, {off - base}, {vaddr}"); base = off
            A(f"ds_read_b64_tr_b16 {vr(vb + ks*4 + half*2,2)}, {vaddr} offset:{off - base}")

def kv_chunk_base(A, rp, dst, t, SP):
    A(f"""
    s_lshr_b32 {t}, {rp}, 3
    s_lshl_b32 {dst}, s4, 1
    s_add_u32 {dst}, {dst}, {t}
    s_bfe_u32 {t}, {rp}, 0x10002
    s_lshl_b32 {t}, {t}, 4
    s_add_u32 {dst}, {dst}, {t}
    s_lshl_b32 {dst}, {dst}, 21
    s_and_b32 {t}, {rp}, 3
    s_lshl_b32 {t}, {t}, {SP}
    s_add_u32 {dst}, {dst}, {t}
    s_add_u32 {dst}, {dst}, {6144*256}
    """)

def gemv_mfma(A, vaaddr, vb=52, va=24, vd=20, depth=7, nks=18, mid=None):
    depth = min(depth, nks)
    def rd(ks):
        A(f"ds_read_b128 {vr(va + (ks % depth)*4,4)}, {vaaddr} offset:{ks*64}")
    for ks in range(depth): rd(ks)
    for ks in range(nks):
        issued = min(nks, depth + ks)
        A(f"s_waitcnt lgkmcnt({issued - ks - 1})")
        c = "0" if ks == 0 else vr(vd, 4)
        A(f"v_mfma_f32_16x16x32_bf16 {vr(vd,4)}, {vr(va + (ks % depth)*4,4)}, {vr(vb+ks*4,4)}, {c}")
        if ks + depth < nks: rd(ks + depth)
        if mid and ks == mid[0]: A(mid[1])

def fold8(A, n, a, b, t, swapb=True):
    for i in range(1, n):
        A(f"v_add_f32 v{a}, v{a}, v{a+2*i}\nv_add_f32 v{b}, v{b}, v{b+2*i}")
    A(f"""
    s_nop 1
    v_permlane32_swap_b32 v{a}, v{b}
    v_add_f32 v{a}, v{a}, v{b}
    v_mov_b32 v{t}, v{a}
    s_nop 1
    v_permlane16_swap_b32 v{a}, v{t}
    v_add_f32 v{a}, v{a}, v{t}
    s_nop 1
    v_add_f32_dpp v{a}, v{a}, v{a} row_ror:8 {DPPM}
    """)

def build(stamps=False, nt="nt", adelay=True, dbg=0, w2first=0, qs=8, ps=2, pt=1, diag=0, ql=1, rgw=0, il=2, trig=1, pf=0, fgs=12, ordr=0, nb1=0, nb2=0, mlt=0, c3=1, hq=0, fl=0, ppt=0):
    CH, BL, SP = {0: (15, 13, 17), 1: (17, 15, 13), 2: (17, 13, 15)}[il]
    global SPIN, NLOC
    if diag: SPIN = 60; NLOC = 100
    A = G(stamps, nt)
    def vtail(n, level, w0):
        lab = A.label("VT")
        A(f"""
        s_sub_u32 s48, s3, {w0}
        s_cmp_ge_u32 s48, {n}
        s_cbranch_scc1 {lab}
        s_and_b32 s49, s48, 1
        s_lshl_b32 s50, s5, 1
        s_add_u32 s50, s50, s49
        """)
        kv_chunk_base(A, "s50", "s44", "s45", SP)
        A(f"""
        s_lshr_b32 s48, s48, 1
        s_sub_u32 s48, 3, s48
        s_lshl_b32 s48, s48, {BL}
        s_add_u32 s44, s44, s48
        s_add_u32 s44, s44, {level << CH}
        v_lshl_add_u32 v20, v1, 7, s44
        global_load_dword v22, v20, {sp(V_)}{A.nt}
        {lab}:
        """)
    NT = A.nt
    A.header(256, 1024, LDS_BYTES)
    A(f"""
    s_cmp_ge_u32 s2, 256
    s_cbranch_scc1 L_exit
    s_load_dwordx16 s[16:31], s[0:1], 0
    s_load_dwordx8 s[32:39], s[0:1], 64
    s_load_dwordx2 s[40:41], s[0:1], 96
    s_load_dwordx2 s[42:43], s[0:1], 112
    v_lshrrev_b32 v2, 6, v0
    v_and_b32 v1, 63, v0
    s_and_b32 s4, s2, 7
    v_readfirstlane_b32 s3, v2
    s_lshr_b32 s5, s2, 3
    v_mov_b32 v3, 0
    """)
    if stamps:
        A("v_mov_b32 v127, 0\ns_memrealtime s[98:99]")
    A(f"""
    s_cmp_lg_u32 s5, 24
    s_cbranch_scc1 L_nopf
    s_getpc_b64 s[44:45]
    L_pfbase:
    s_sub_u32 s44, s44, L_pfbase-{NAME}_kernel
    s_subb_u32 s45, s45, 0
    v_lshlrev_b32 v4, 7, v0
    v_cmp_gt_u32 vcc, L_codeend-{NAME}_kernel, v4
    s_and_saveexec_b64 s[46:47], vcc
    s_cbranch_execz L_pfd
    global_load_dword v5, v4, s[44:45]
    L_pfd:
    s_mov_b64 exec, -1
    L_nopf:
    s_cmp_lt_u32 s5, 16
    s_cbranch_scc1 L_A
    {'s_branch L_exit' if diag & 32 else ''}
    s_sub_u32 s5, s5, 16                  ; u
    s_sub_u32 s55, s2, {25*8}
    s_min_u32 s47, s4, 4
    s_lshl_b32 s48, s4, 2
    s_add_u32 s47, s47, s48
    s_add_u32 s47, s47, s5
    s_sub_u32 s47, s47, 9
    s_mul_i32 s48, s47, 0xe39
    s_lshr_b32 s48, s48, 16               ; ksp
    s_mul_i32 s49, s48, 18
    s_sub_u32 s49, s47, s49               ; cgp
    s_mul_i32 s50, s48, {288*6912}
    s_lshl_b32 s51, s49, 7
    s_add_u32 s50, s50, s51               ; M offset
    s_lshl_b32 s51, s4, 3
    s_add_u32 s51, s51, s5                ; qb
    s_lshl_b32 s52, s51, 7                ; B offset
    v_lshrrev_b32 v4, 3, v1
    v_bfe_u32 v6, v1, 4, 2
    v_lshlrev_b32 v6, 1, v6
    v_and_b32 v7, 7, v1
    v_xor_b32 v6, v6, v7
    s_movk_i32 s53, 6912
    s_cmp_lt_u32 s5, 8
    s_cselect_b32 s50, s52, s50
    s_cselect_b32 s53, 8192, s53          ; stride
    s_cselect_b32 s54, 72, 36             ; count
    s_mul_i32 s10, s53, 576
    s_cselect_b32 s47, s51, s47
    s_cselect_b32 s55, 0, s55
    v_mul_u32_u24 v14, s53, v4
    v_lshl_add_u32 v14, v6, 4, v14
    v_add_u32 v15, s50, v14
    s_mov_b32 s11, 0x20000
    s_lshl_b32 s53, s53, 3
    s_mul_i32 s44, s3, s53
    s_lshl_b32 s53, s53, 4
    s_lshl_b32 s45, s3, 10
    s_mov_b32 s46, s3
    s_cmp_lt_u32 s5, 8
    s_waitcnt lgkmcnt(0)
    s_cselect_b32 s8, s{WQ_}, s{WM_}
    s_cselect_b32 s9, s{WQ_+1}, s{WM_+1}
    s_and_b32 s9, s9, 0xffff
    s_cmp_ge_u32 s55, 36
    s_cbranch_scc1 L_W_nodma
    L_W_dma:
    s_mov_b32 m0, s45
    s_add_u32 s45, s45, 16384
    buffer_load_dwordx4 v15, s[8:11], s44 offen{NT} lds
    s_add_u32 s44, s44, s53
    s_add_u32 s46, s46, 16
    s_cmp_lt_u32 s46, s54
    s_cbranch_scc1 L_W_dma
    L_W_nodma:
    s_load_dword s6, {sp(WS_)}, {WS_EPOCH}
    s_branch L_W
    """)
    A(f"""
    L_A:
    """)
    if ordr:
        t0_, t1_ = {1: (0xd8, 0xd8), 2: (0xe4, 0xd2), 3: (0xd8, 0xd2)}[ordr]
        A(f"""
        s_bitcmp1_b32 s5, 0
        s_movk_i32 s44, {t0_}
        s_cselect_b32 s44, {t1_}, s44
        s_lshr_b32 s45, s3, 2
        s_lshl_b32 s45, s45, 1
        s_lshr_b32 s44, s44, s45
        s_and_b32 s44, s44, 3
        s_and_b32 s3, s3, 3
        s_lshl_b32 s44, s44, 2
        s_or_b32 s3, s3, s44
        """)
    A(f"""
    v_mov_b32 v4, {AL}
    v_lshl_add_u32 v5, v1, 2, v4
    ds_write_b32 v5, v3 offset:{L_CNT}
    s_lshr_b32 s44, s5, 3
    s_lshl_b32 s45, s4, 1
    s_add_u32 s46, s45, s44            ; hkv
    s_bfe_u32 s47, s5, 0x10002          ; b
    s_and_b32 s48, s5, 3                ; sp
    s_lshl_b32 s49, s47, 4
    s_add_u32 s49, s49, s46             ; b*16+hkv
    s_lshl_b32 s49, s49, 21
    s_lshl_b32 s50, s48, {SP}
    s_add_u32 s49, s49, s50
    s_add_u32 s49, s49, {6144*256}
    s_bfe_u32 s51, s3, 0x10002            ; g
    s_and_b32 s44, s3, 3
    s_lshl_b32 s50, s51, {CH+1}
    s_add_u32 s49, s49, s50
    s_lshl_b32 s50, s44, {BL}
    s_add_u32 s49, s49, s50
    s_lshl_b32 s45, s51, 3
    s_add_u32 s48, s44, s45
    v_and_b32 v9, 3, v1
    v_mov_b32 v7, 1
    s_cmp_ge_u32 s3, 8
    s_cbranch_scc1 L_AV
    s_add_u32 s49, s49, 4096
    v_bfe_u32 v5, v1, 2, 2
    v_lshlrev_b32 v5, 8, v5
    v_and_b32 v6, 48, v1
    v_lshl_or_b32 v5, v6, 2, v5
    v_lshl_or_b32 v5, v9, 4, v5
    s_waitcnt lgkmcnt(0)
    s_load_dword s6, {sp(WS_)}, {WS_EPOCH}
    s_add_u32 s52, s{K_}, s49
    s_addc_u32 s53, s{K_+1}, 0
    s_add_u32 s54, s52, {1 << CH}
    s_addc_u32 s55, s53, 0
    """)
    if adelay: A("s_waitcnt lgkmcnt(0)")
    A("s_barrier")
    for t in range(16):
        A(f"global_load_dwordx4 {vr(32+4*t,4)}, v5, s[{52+2*(t>>3)}:{53+2*(t>>3)}] offset:{(t&7)*1024-4096}{NT}")
    if stamps: A("s_waitcnt lgkmcnt(0)\nv_writelane_b32 v127, s98, 0")
    A.stamp(1)
    A(f"""
    v_bfe_u32 v8, v1, 2, 1
    v_lshlrev_b32 v8, 8, v8
    v_lshl_or_b32 v8, v6, 2, v8
    v_lshl_or_b32 v8, v9, 4, v8
    v_add_u32 v8, v4, v8
    v_bfe_u32 v11, v1, 4, 1
    v_mul_u32_u24 v10, {PSTR}, v11
    v_and_b32 v12, 1, v1
    v_lshl_add_u32 v10, v12, 5, v10
    v_lshrrev_b32 v13, 5, v1
    v_lshl_add_u32 v10, v13, 4, v10
    v_bfe_u32 v13, v1, 1, 1
    v_lshl_add_u32 v10, v13, 3, v10
    v_bfe_u32 v13, v1, 2, 2
    v_lshl_add_u32 v10, v13, 1, v10
    s_lshl_b32 s44, s48, 6
    s_add_u32 s44, s44, {AL + L_P}
    v_add_u32 v10, s44, v10
    v_mul_u32_u24 v12, {PSTR}, v12
    v_add3_u32 v12, v12, v6, v4
    v_lshl_add_u32 v11, v11, 5, v4
    v_and_b32 v13, 7, v1
    v_lshl_add_u32 v13, v13, 2, v11
    s_lshl_b32 s44, s3, 2
    v_add_u32 v11, s44, v11
    v_bfe_u32 v14, v1, 2, 3
    v_xor_b32 v14, s3, v14
    v_lshlrev_b32 v14, 5, v14
    v_lshrrev_b32 v15, 2, v1
    v_lshl_or_b32 v14, v15, 8, v14
    v_lshl_or_b32 v14, v9, 3, v14
    v_add_u32 v15, 0x10000, v14
    s_mov_b32 s58, 0x22222222
    s_mov_b32 s59, 0x22222222
    s_mov_b32 s60, 0x44444444
    s_mov_b32 s61, 0x44444444
    s_mov_b32 s62, 0x88888888
    s_mov_b32 s63, 0x88888888
    s_lshl_b32 s44, s47, 14
    s_lshl_b32 s45, s46, 10
    s_add_u32 s44, s44, s45
    s_lshl_b32 s45, s3, 7
    s_add_u32 s44, s44, s45
    s_add_u32 s44, s44, {WS_QG}
    s_add_u32 s56, s{WS_}, s44
    s_addc_u32 s57, s{WS_+1}, 0
    s_lshl_b32 s50, s4, 4
    s_add_u32 s50, s50, s5
    s_lshl_b32 s50, s50, 10
    s_add_u32 s50, s50, s45
    s_add_u32 s50, s50, {WS_OG}
    v_lshl_add_u32 v6, v1, 3, s50
    s_waitcnt lgkmcnt(0)
    """)
    A.mktag()
    A(f"""
    s_add_u32 s52, s56, {WS_QL - WS_QG}
    s_addc_u32 s53, s57, 0
    s_mov_b32 s7, {0 if ql else 16}
    s_waitcnt vmcnt(0)
    L_A_qpoll:
    s_add_u32 s7, s7, 1
    s_cmp_gt_u32 s7, {SPIN}
    s_cbranch_scc1 L_end
    s_cmp_gt_u32 s7, 16
    s_cbranch_scc1 L_A_qg
    s_load_dwordx16 s[64:79], s[52:53], 0
    s_load_dwordx16 s[80:95], s[52:53], 64
    s_add_u32 s52, s52, 32768
    s_addc_u32 s53, s53, 0
    s_branch L_A_qc
    L_A_qr:
    s_sleep {qs}
    s_branch L_A_qpoll
    L_A_qg:
    s_load_dwordx16 s[64:79], s[56:57], 0 glc
    s_load_dwordx16 s[80:95], s[56:57], 64 glc
    L_A_qc:
    s_waitcnt lgkmcnt(0)
    """)
    for i in range(16):
        A(f"s_cmp_lg_u32 s{65+2*i}, {TAG}\ns_cbranch_scc1 L_A_qr")
    A("s_mov_b64 exec, 1")
    for i in range(16):
        A(f"v_mov_b32 v{96+i}, s{64+2*i}")
    A(f"s_lshl_b32 s44, s3, 6\nv_add_u32 v20, s44, v4")
    for i in range(4):
        A(f"ds_write_b128 v20, {vr(96+4*i,4)} offset:{L_Q+16*i}")
    A(f"""
    ds_add_u32 v4, v7 offset:{L_CNT}
    s_mov_b64 exec, -1
    s_mov_b32 s56, 0xff00ff00
    s_mov_b32 s57, 0xff00ff00
    """)
    A.lds_spin(L_CNT, 8, "v16", "v4", sleep=False)
    A.stamp(2)
    A(f"ds_read_b128 v[20:23], v8 offset:{L_Q}\ns_waitcnt lgkmcnt(0)")
    for i in range(4):
        A(f"v_cndmask_b32 v{24+i}, 0, v{20+i}, s[56:57]")
        A(f"v_cndmask_b32 v{20+i}, v{20+i}, 0, s[56:57]")
    A("s_waitcnt vmcnt(0)\ns_nop 0")
    D = [96, 32]
    for z in range(2):
        for u in range(4):
            A(f"v_mfma_f32_16x16x32_bf16 {vr(D[z]+4*u,4)}, v[20:23], {vr(32+32*z+8*u,4)}, 0")
        for u in range(4):
            A(f"v_mfma_f32_16x16x32_bf16 {vr(D[z]+4*u,4)}, v[24:27], {vr(36+32*z+8*u,4)}, {vr(D[z]+4*u,4)}")
    for z in range(2):
        t = 112 + 4*z
        for u in range(4):
            A(f"v_mov_b32_dpp v{t+u}, v{D[z]+4*u} quad_perm:[0,0,0,0] {DPPM}")
        for c in range(1, 4):
            for u in range(4):
                A(f"v_add_f32_dpp v{t+u}, v{D[z]+4*u+c}, v{t+u} quad_perm:[{c},{c},{c},{c}] {DPPM}")
    A.stamp(3)
    for k, m in ((1, 58), (2, 60), (3, 62)):
        A(f"v_cndmask_b32 v112, v112, v{112+k}, s[{m}:{m+1}]\nv_cndmask_b32 v116, v116, v{116+k}, s[{m}:{m+1}]")
    A.r1("v112", "v116")
    A("v_mul_f32 v112, 0x3db504f3, v112\nv_mul_f32 v116, 0x3db504f3, v116")
    A.r1("v112", "v116")
    A("v_max_f32 v113, v112, v116")
    A.row_reduce("v_max_f32", ["v113"])
    A(f"""
    v_mov_b32 v114, v113
    s_mov_b32 s56, 0x10001
    s_mov_b32 s57, 0
    v_permlane32_swap_b32 v113, v114
    v_max_f32 v113, v113, v114
    s_mov_b64 exec, s[56:57]
    ds_write_b32 v11, v113 offset:{L_MX}
    s_mov_b64 exec, 1
    ds_add_u32 v4, v7 offset:{L_CNT+4}
    s_mov_b64 exec, -1
    v_mul_f32 v112, {hex(LOG2E)}, v112
    v_mul_f32 v116, {hex(LOG2E)}, v116
    """)
    A.lds_spin(L_CNT+4, 8, "v16", "v4", sleep=False)
    A(f"ds_read_b32 v113, v13 offset:{L_MX}\ns_mov_b32 s45, {hex(LOG2E)}\ns_waitcnt lgkmcnt(0)")
    A.row_reduce("v_max_f32", ["v113"], steps=3)
    A(f"""
    v_fma_f32 v112, -v113, s45, v112
    v_fma_f32 v116, -v113, s45, v116
    v_exp_f32 v112, v112
    v_exp_f32 v116, v116
    s_nop 0
    v_cvt_pk_bf16_f32 v115, v112, v116
    ds_write_b16 v10, v115
    ds_write_b16_d16_hi v10, v115 offset:256
    s_mov_b64 exec, 1
    ds_add_u32 v4, v7 offset:{L_CNT+8}
    s_mov_b64 exec, -1
    v_add_f32 v112, v112, v116
    """)
    A.row_reduce("v_add_f32", ["v112"])
    A(f"""
    v_mov_b32 v114, v112
    s_nop 1
    v_permlane32_swap_b32 v112, v114
    v_add_f32 v112, v112, v114
    s_mov_b64 exec, s[56:57]
    ds_write_b32 v11, v112 offset:{L_LS}
    s_mov_b64 exec, 1
    ds_add_u32 v4, v7 offset:{L_CNT+12}
    s_mov_b64 exec, -1
    """)
    A.lds_spin(L_CNT+8, 8, "v16", "v4", sleep=False)
    A.stamp(4)
    A(f"ds_read_b128 v[116:119], v4 offset:{L_CNT+16}")
    for ks in range(16):
        A(f"ds_read_b128 {vr(32+4*ks,4)}, v12 offset:{L_P + ks*64}")
    A("s_waitcnt lgkmcnt(15)\ns_waitcnt lgkmcnt(15)")
    for L in range(4): A(f"v_readfirstlane_b32 s{64+L}, v{116+L}")
    SET = [96, 16]
    def vreads(L):
        for k in range(4):
            ks = 4*L + k
            for half in range(2):
                A(f"ds_read_b64_tr_b16 {vr(SET[L&1]+4*k+2*half,2)}, {'v14' if ks < 8 else 'v15'} offset:{(ks&7)*8192 + half*4096}")
    def vmfma(L):
        for k in range(4):
            c = "0" if (L == 0 and k == 0) else "v[112:115]"
            A(f"v_mfma_f32_16x16x32_bf16 v[112:115], {vr(32+4*(4*L+k),4)}, {vr(SET[L&1]+4*k,4)}, {c}")
    A("s_cmp_ge_u32 s64, 4\ns_cbranch_scc1 L_A_v0")
    A.lds_spin(L_CNT+16, 4, "v120", "v4", sleep=False)
    A("L_A_v0:")
    vreads(0)
    for L in range(1, 4):
        A(f"s_cmp_ge_u32 s{64+L}, 4\ns_cbranch_scc0 L_A_vn{L}")
        vreads(L)
        A("s_waitcnt lgkmcnt(8)")
        vmfma(L-1)
        A(f"s_branch L_A_vd{L}\nL_A_vn{L}:\ns_waitcnt lgkmcnt(0)")
        vmfma(L-1)
        A.lds_spin(L_CNT+16+4*L, 4, "v120", "v4", sleep=False)
        vreads(L)
        A(f"L_A_vd{L}:")
    for k in range(4):
        A(f"s_waitcnt lgkmcnt({6-2*k})")
        A(f"v_mfma_f32_16x16x32_bf16 v[112:115], {vr(32+4*(12+k),4)}, {vr(SET[1]+4*k,4)}, v[112:115]")
    A("s_mov_b64 exec, 0xffff\ns_nop 6")
    A.epack("v116", "v112"); A.epack("v117", "v113")
    A.dual_store("global_store_dwordx2", "v6", "v[116:117]")
    A("s_mov_b64 exec, -1")
    A.stamp(6)
    A("s_branch L_end")
    A(f"""
    L_AV:
    s_lshl_b32 s45, s48, 13
    s_mov_b32 s44, s49                    ; soffset
    v_lshrrev_b32 v5, 4, v1
    v_lshlrev_b32 v6, 1, v5
    v_and_b32 v8, 15, v1
    v_xor_b32 v6, v6, v8
    v_lshlrev_b32 v6, 4, v6
    v_lshl_or_b32 v5, v5, 8, v6
    v_xor_b32 v6, 128, v5
    s_waitcnt lgkmcnt(0)
    s_load_dword s6, {sp(WS_)}, {WS_EPOCH}
    """)
    A.srd(8, V_, 0x4000000)
    A("s_barrier")
    for hf in range(2):
        for q4 in range(2):
            A("s_mov_b32 m0, s45\ns_nop 0")
            for n in range(4):
                A(f"buffer_load_dwordx4 {'v6' if n & 1 else 'v5'}, s[8:11], s44 offen offset:{n*1024}{NT} lds")
            if q4 == 0: A("s_add_u32 s45, s45, 4096\ns_add_u32 s44, s44, 4096")
            elif hf == 0: A(f"s_add_u32 s45, s45, {4*8192 - 4096}\ns_add_u32 s44, s44, {(1 << CH) - 4096}")
    if stamps: A("s_waitcnt lgkmcnt(0)\nv_writelane_b32 v127, s98, 0")
    A.stamp(1)
    if pf:
        A(f"""
        s_cmp_lt_u32 s3, 11
        s_cbranch_scc1 L_AV_np
        s_mul_i32 s45, s5, 5
        s_add_u32 s45, s45, s3
        s_lshl_b32 s50, s45, 6
        s_sub_u32 s50, s50, {10*64}
        s_lshl_b32 s44, s51, 3
        v_add_u32 v5, s44, v4
        v_add_u32 v20, s50, v1
        v_mul_u32_u24 v21, 0x1c72, v20
        v_lshrrev_b32 v21, 16, v21
        v_mul_u32_u24 v22, 9, v21
        v_sub_u32 v22, v20, v22
        v_mul_u32_u24 v21, 9216, v21
        v_lshl_add_u32 v21, v22, 7, v21
        s_mul_i32 s50, s4, 1152
        v_add_u32 v21, s50, v21
        global_load_dword v29, v21, {sp(W1_)}{NT}
        s_mov_b64 exec, 1
        s_waitcnt vmcnt(9)
        ds_add_u32 v5, v7 offset:{L_CNT+16}
        s_waitcnt vmcnt(1)
        ds_add_u32 v5, v7 offset:{L_CNT+20}
        s_mov_b64 exec, -1
        """)
        A.stamp(5)
        A("s_waitcnt vmcnt(0) lgkmcnt(0)\ns_branch L_end\nL_AV_np:")
    A(f"""
    s_lshl_b32 s44, s51, 3
    v_add_u32 v5, s44, v4
    s_mov_b64 exec, 1
    s_waitcnt vmcnt(8)
    ds_add_u32 v5, v7 offset:{L_CNT+16}
    s_waitcnt vmcnt(0)
    ds_add_u32 v5, v7 offset:{L_CNT+20}
    s_mov_b64 exec, -1
    """)
    A.stamp(5)
    A(f"""
    s_waitcnt lgkmcnt(0)
    s_cmp_lg_u32 s3, 8
    s_cbranch_scc1 L_end
    v_bfe_u32 v11, v1, 4, 1
    v_lshl_add_u32 v11, v11, 5, v4
    v_and_b32 v13, 7, v1
    v_lshl_add_u32 v13, v13, 2, v11
    s_lshl_b32 s50, s4, 4
    s_add_u32 s50, s50, s5
    s_lshl_b32 s50, s50, 7
    s_add_u32 s50, s50, {WS_MLG}
    v_mov_b32 v24, s50
    """)
    A.mktag()
    A.lds_spin(L_CNT+12, 8, "v16", "v4")
    A(f"ds_read_b32 v20, v13 offset:{L_MX}\nds_read_b32 v21, v13 offset:{L_LS}\ns_waitcnt lgkmcnt(0)")
    for ctl in ("quad_perm:[1,0,3,2]", "quad_perm:[2,3,0,1]", "row_half_mirror"):
        A(f"s_nop 0\nv_max_f32_dpp v20, v20, v20 {ctl} {DPPM}\nv_add_f32_dpp v21, v21, v21 {ctl} {DPPM}")
    A("""
    v_mov_b32 v22, v20
    v_mov_b32 v23, v21
    s_nop 0
    v_permlane16_swap_b32 v20, v22
    v_permlane16_swap_b32 v21, v23
    """)
    for r in range(20, 24): A.epack(f"v{r}", f"v{r}")
    A("s_mov_b64 exec, 1")
    A.dual_store("global_store_dwordx4", "v24", "v[20:23]")
    A("s_mov_b64 exec, -1")
    A.stamp(7)
    A("s_branch L_end")

    A("L_W:")
    if stamps: A("v_writelane_b32 v127, s98, 0")
    A.stamp(1)
    A(f"""
    v_mov_b32 v18, {L_WCNT}
    ds_write2_b32 v18, v3, v3 offset1:1
    ds_write_b32 v18, v3 offset:8
    v_lshrrev_b32 v8, 5, v0
    v_lshlrev_b32 v8, 6, v8
    v_bfe_u32 v9, v0, 2, 2
    v_lshl_or_b32 v8, v9, 4, v8
    v_bfe_u32 v9, v0, 4, 1
    v_lshl_or_b32 v8, v9, 3, v8
    v_and_b32 v9, 3, v0
    v_lshl_or_b32 v8, v9, 1, v8
    v_add_u32 v8, {L_ACT}, v8
    s_and_b32 s46, s3, 3
    v_bfe_u32 v10, v1, 3, 2
    v_xor_b32 v10, s46, v10
    v_lshlrev_b32 v10, 5, v10
    v_lshrrev_b32 v11, 2, v1
    v_lshl_or_b32 v10, v11, 7, v10
    v_lshl_or_b32 v10, v9, 3, v10
    v_and_b32 v11, 48, v1
    v_add_u32 v11, {L_ACT}, v11
    v_and_b32 v12, 1, v1
    v_mul_u32_u24 v12, {4*ASTR}, v12
    v_add_u32 v12, v11, v12
    v_and_b32 v13, 4, v1
    v_mul_u32_u24 v13, {ASTR}, v13
    v_add_u32 v13, v11, v13
    v_mov_b32 v17, 1
    s_cmp_eq_u32 s5, 8
    s_cbranch_scc1 L_KT
    s_cbranch_scc0 L_Wd
    L_Wd:
    s_cmp_gt_u32 s5, 8
    s_cbranch_scc1 L_M
    s_waitcnt lgkmcnt(0)
    """)
    A.mktag()
    A(f"""
    s_barrier
    {'s_waitcnt vmcnt(0)' + chr(10) + 's_branch L_end' if diag & 4 else ''}
    s_cmp_ge_u32 s3, 9
    s_cbranch_scc1 L_B_nh
    s_mul_i32 s44, s4, 4608
    s_add_u32 s44, s44, {WS_HL}
    v_lshl_add_u32 v15, v0, 3, s44
    global_load_dwordx2 v[24:25], v15, {sp(WS_)} sc1
    s_waitcnt vmcnt(0)
    """)
    A.lds_inc(0, "v18", "v17")
    A.stamp(2)
    if nb1: vtail(nb1, 2, 0)
    A("s_mov_b32 s7, 0\ns_branch L_B_chk")
    A.dual_head("L_B_h", ["v15"], init=False)
    A(f"s_sleep {ps}")
    A(f"global_load_dwordx2 v[24:25], v15, {sp(WS_)} sc1\ns_waitcnt vmcnt(0)\nL_B_chk:")
    A.tagcheck(["v25"], None, None, "L_B_h")
    A(f"""
    ds_write_b16 v8, v24
    ds_write_b16_d16_hi v8, v24 offset:{4*ASTR}
    s_waitcnt lgkmcnt(0)
    """)
    A.stamp(3)
    A(f"""
    s_barrier
    s_branch L_S5
    L_B_nh:
    """)
    if ql:
        A(f"""
        s_cmp_lg_u32 s3, 9
        s_cbranch_scc1 L_B_npt
        v_lshrrev_b32 v15, 1, v1
        v_lshlrev_b32 v15, 14, v15            ; (replica*2+b)*16384
        v_and_b32 v16, 1, v1
        v_lshl_or_b32 v15, v16, 7, v15
        s_lshl_b32 s44, s47, 8
        s_add_u32 s44, s44, {WS_QL}
        v_add_u32 v15, s44, v15
        global_load_dword v16, v15, {sp(WS_)} sc1
        L_B_npt:
        """)
    A("s_waitcnt vmcnt(0)")
    A.lds_inc(0, "v18", "v17")
    A(f"""
    s_cmp_ge_u32 s3, 12
    s_cbranch_scc1 L_B_m
    s_waitcnt lgkmcnt(0)
    s_barrier
    s_branch L_S5
    L_B_m:
    """)
    A.lds_spin(0, 16, "v16", "v18")
    A.stamp(2)
    A("v_mov_b32 v15, v10")
    bfrags(A, "v15")
    A(f"""
    s_lshl_b32 s44, s47, 8
    s_lshl_b32 s45, s46, 6
    s_add_u32 s44, s44, s45
    s_add_u32 s44, s44, {WS_QG}
    v_and_b32 v15, 15, v1
    v_lshlrev_b32 v15, 2, v15
    v_bfe_u32 v16, v1, 4, 1
    v_lshl_or_b32 v15, v16, 14, v15
    v_add_u32 v15, s44, v15
    v_and_b32 v16, -8, v15
    v_and_b32 v17, 1, v1
    v_lshl_add_u32 v16, v17, 15, v16
    v_lshrrev_b32 v17, 5, v1
    v_lshl_add_u32 v16, v17, 16, v16
    v_add_u32 v16, {WS_QL - WS_QG}, v16
    s_waitcnt lgkmcnt(0)
    s_barrier
    """)
    gemv_mfma(A, "v13")
    A(f"""
    s_nop 7
    v_mov_b32_dpp v21, v20 quad_perm:[1,1,3,3] {DPPM}
    v_mov_b32_dpp v20, v20 quad_perm:[0,0,2,2] {DPPM}
    v_mov_b32 v23, {TAG}
    v_cvt_pk_bf16_f32 v22, v20, v21
    """)
    if ql:
        for i in range(4):
            A(f"global_store_dwordx2 v16, v[22:23], {sp(WS_)}")
            if i < 3: A(f"v_add_u32 v16, {4*32768}, v16")
    A(f"""
    s_mov_b32 exec_lo, 0x55555555
    s_mov_b32 exec_hi, 0
    global_store_dwordx2 v15, v[22:23], {sp(WS_)} sc1
    s_mov_b64 exec, -1
    """)
    A.stamp(4)
    A("s_branch L_S5")

    A(f"""
    L_M:
    s_cmp_ge_u32 s3, 9
    s_cbranch_scc1 L_M_bar0
    v_lshlrev_b32 v15, 1, v0
    global_load_ushort v16, v15, {sp(C_)}
    global_load_ushort v17, v15, {sp(C_)} offset:1152
    s_waitcnt vmcnt(0)
    v_lshlrev_b32 v16, 16, v16
    v_lshlrev_b32 v17, 16, v17
    v_mul_f32 v34, 0xbfb8aa3b, v16
    v_mul_f32 v35, 0xbfb8aa3b, v17
    v_exp_f32 v34, v34
    v_exp_f32 v35, v35
    s_nop 0
    v_add_f32 v34, 1.0, v34
    v_add_f32 v35, 1.0, v35
    v_rcp_f32 v34, v34
    v_rcp_f32 v35, v35
    s_nop 0
    v_mul_f32 v16, v16, v34
    v_mul_f32 v17, v17, v35
    v_cvt_pk_bf16_f32 v16, v16, v17
    ds_write_b16 v8, v16
    ds_write_b16_d16_hi v8, v16 offset:{4*ASTR}
    L_M_bar0:
    s_mul_i32 s44, s48, 576
    v_add_u32 v15, s44, v12
    s_mul_i32 s44, s48, {AGS}
    s_lshl_b32 s45, s49, 9
    s_add_u32 s44, s44, s45
    s_lshl_b32 s45, s46, 7
    s_add_u32 s44, s44, s45
    s_add_u32 s44, s44, {WS_AG}
    v_lshl_add_u32 v18, v1, 3, s44
    s_waitcnt vmcnt(0) lgkmcnt(0)
    """)
    A.mktag()
    A("s_barrier")
    A.stamp(2)
    A("s_cmp_lt_u32 s3, 12\ns_cbranch_scc1 L_M_bar1\ns_cmp_ge_u32 s55, 36\ns_cbranch_scc1 L_M_bar1")
    bfrags(A, "v10", 52, 9)
    gemv_mfma(A, "v15", nks=9)
    A("s_mov_b64 exec, 0xffff\ns_nop 6\nv_add_u32 v20, 4, v20\nv_add_u32 v21, 4, v21")
    A.epack("v22", "v20", 7); A.epack("v23", "v21", 7)
    A(f"global_store_dwordx2 v18, v[22:23], {sp(WS_)} sc1\ns_mov_b64 exec, -1")
    A.stamp(3)
    A(f"""
    L_M_bar1:
    s_sub_u32 s44, s5, 9
    s_lshl_b32 s50, s44, 1                ; slot0 = 2(u-9)
    s_add_u32 s51, s50, 1
    s_add_u32 s45, s4, 44
    s_cmp_ge_u32 s4, 4
    s_cselect_b32 s45, s45, 255
    s_cmp_eq_u32 s5, 13
    s_cselect_b32 s51, s45, s51
    s_lshl_b32 s44, s4, 1
    s_add_u32 s44, s44, s5
    s_lshl_b32 s44, s44, 1
    s_sub_u32 s44, s44, {28 - 16}
    s_add_u32 s45, s44, 1
    s_cmp_ge_u32 s5, 14
    s_cselect_b32 s50, s44, s50
    s_cselect_b32 s51, s45, s51
    v_mul_u32_u24 v19, 1152, v4
    v_lshl_add_u32 v19, v6, 4, v19
    s_mul_i32 s44, s4, {512*1152}
    v_add_u32 v19, s44, v19
    """)
    A.srd(12, WO_, 4096*1152)
    A("s_barrier")
    if pt:
        A(f"""
        s_cmp_ge_u32 s3, 3
        s_cbranch_scc1 L_M_pt
        s_cmp_lg_u32 s5, 13
        s_cbranch_scc1 L_M_pt
        s_lshl_b32 s44, s4, 14
        s_lshl_b32 s45, s3, 13
        s_add_u32 s44, s44, s45
        s_add_u32 s44, s44, {WS_OG}
        s_lshl_b32 s45, s4, 11
        s_add_u32 s45, s45, {WS_MLG}
        s_cmp_eq_u32 s3, 2
        s_cselect_b32 s44, s45, s44
        s_cselect_b32 s45, 15, 63
        v_and_b32 v16, s45, v1
        v_lshl_add_u32 v16, v16, 7, s44
        global_load_dword v20, v16, {sp(WS_)} sc1
        L_M_pt:
        """)
    for sl, (reg, buf) in enumerate((("s50", L_BUF0), ("s51", L_BUF1))):
        A(f"""
        s_lshl_b32 s52, {reg}, 7
        s_cmp_ge_u32 {reg}, 16
        s_cbranch_scc1 L_sl{sl}_m
        v_add_u32 v16, s52, v19
        """)
        dma_tile(A, 12, "v16", 1152, buf, 64)
        A(f"""
        s_branch L_sl{sl}_d
        L_sl{sl}_m:
        s_cmp_eq_u32 {reg}, 255
        s_cbranch_scc1 L_sl{sl}_d
        s_add_u32 s52, s52, {2304 - 16*128}
        v_add_u32 v16, s52, v14
        """)
        dma_tile(A, 8, "v16", 6912, buf, 72)
        A(f"L_sl{sl}_d:")
    A("s_waitcnt vmcnt(0)\ns_barrier")
    A.stamp(4)
    if diag & 8: A("s_branch L_end")
    A(f"""
    s_cmp_lt_u32 s3, 8
    s_cbranch_scc1 L_H_p
    s_cmp_ge_u32 s3, 12
    s_cselect_b32 s50, s51, s50
    s_cselect_b32 s44, {L_BUF1}, 0
    v_add_u32 v17, s44, v10
    s_cmp_lt_u32 s50, 16
    s_cbranch_scc1 L_A_s4m
    s_cmp_eq_u32 s50, 255
    s_cbranch_scc1 L_H_x
    s_lshl_b32 s44, s50, 9
    s_lshl_b32 s45, s46, 7
    s_add_u32 s44, s44, s45
    s_add_u32 s44, s44, {WS_MG - 16*512}
    v_lshl_add_u32 v18, v1, 3, s44
    """)
    bfrags(A, "v17")
    gemv_mfma(A, "v12")
    A(f"""
    s_mov_b64 exec, 0xffff
    s_nop 6
    v_cvt_pk_bf16_f32 v22, v20, v21
    v_mov_b32 v23, {TAG}
    global_store_dwordx2 v18, v[22:23], {sp(WS_)} sc1
    s_mov_b64 exec, -1
    """)
    A.stamp(5)
    A(f"""
    L_H_x:
    s_cmp_eq_u32 s5, 15
    s_cbranch_scc1 L_XR
    s_branch L_end
    L_H_p:
    s_cmp_ge_u32 s5, 14
    s_cbranch_scc1 L_H_x
    """)
    if trig:
        A(f"""
        s_cmp_lg_u32 s3, 0
        s_cbranch_scc1 L_M_tr
        s_lshl_b32 s52, s4, 3
        s_add_u32 s52, s52, s5
        s_lshl_b32 s52, s52, 7
        s_add_u32 s52, s52, {WS_TR - 9*128}
        v_mov_b32 v20, s52
        v_mov_b32 v19, {TAG}
        global_store_dword v20, v19, {sp(WS_)}
        L_M_tr:
        """)
    A(f"""
    s_lshl_b32 s50, s4, 4
    s_lshr_b32 s45, s3, 1
    s_lshl_b32 s45, s45, 2
    s_add_u32 s50, s50, s45
    s_and_b32 s44, s3, 1                  ; dh
    s_lshl_b32 s51, s50, 7
    s_add_u32 s51, s51, {WS_MLG}
    v_mov_b32 v18, s51
    s_lshl_b32 s51, s50, 10
    s_lshl_b32 s45, s44, 9
    s_add_u32 s51, s51, s45
    s_add_u32 s51, s51, {WS_OG}
    v_lshl_add_u32 v17, v1, 3, s51
    s_bfe_u32 s45, s3, 0x10001
    s_mul_i32 s45, s45, {ASTR}
    s_lshr_b32 s51, s3, 2
    s_lshl_b32 s51, s51, 9
    s_add_u32 s45, s45, s51
    s_and_b32 s51, s3, 6
    s_lshl_b32 s51, s51, 7
    s_sub_u32 s45, s45, s51
    s_add_u32 s45, s45, {ASTR}
    v_add_u32 v19, s45, v8
    s_lshl_b32 s45, s4, 2
    s_add_u32 s45, s45, {WS_FL}
    v_lshl_add_u32 v40, v0, 7, s45
    v_mov_b32 v41, {TAG}
    """)
    def oloads():
        for s_ in range(4):
            A(f"global_load_dwordx2 {vr(32+2*s_,2)}, v17, {sp(WS_)} offset:{s_*1024} sc1")
    A.dual_head("L_A_ml", ["v17", "v18"])
    A(f"s_sleep {ps//2}")
    for s_ in range(4):
        A(f"global_load_dwordx4 {vr(48+4*s_,4)}, v18, {sp(WS_)} offset:{s_*128} sc1")
    oloads()
    A("s_waitcnt vmcnt(4)")
    A.etagcheck([f"v{48+i}" for i in range(16)], "v20", "L_A_ml")
    for h in range(2):
        A(f"v_max_f32 v{20+h}, v{48+2*h}, v{52+2*h}\nv_max3_f32 v{20+h}, v{56+2*h}, v{60+2*h}, v{20+h}")
    for s_ in range(4):
        for h in range(2): A(f"v_sub_f32 v{22+2*s_+h}, v{48+4*s_+2*h}, v{20+h}")
    for i in range(8): A(f"v_mul_f32 v{22+i}, {hex(LOG2E)}, v{22+i}")
    for i in range(8): A(f"v_exp_f32 v{22+i}, v{22+i}")
    for s_ in range(4):
        for h in range(2):
            A(f"{'v_mul_f32' if s_ == 0 else 'v_fmac_f32'} v{20+h}, v{22+2*s_+h}, v{49+4*s_+2*h}")
    A("v_rcp_f32 v20, v20\nv_rcp_f32 v21, v21\ns_nop 0")
    for i in range(8): A(f"v_mul_f32 v{22+i}, v{22+i}, v{20+(i&1)}")
    A.stamp(7)
    A("s_branch L_A_ochk")
    A.dual_head("L_A_h3", ["v17"], init=False)
    oloads()
    A("L_A_ochk:\ns_waitcnt vmcnt(0)")
    A.etagcheck([f"v{32+i}" for i in range(8)], "v20", "L_A_h3")
    A("v_mul_f32 v30, v22, v32\nv_mul_f32 v31, v23, v33")
    for s_ in range(1, 4):
        A(f"v_fmac_f32 v30, v{22+2*s_}, v{32+2*s_}\nv_fmac_f32 v31, v{23+2*s_}, v{33+2*s_}")
    A(f"""
    v_cvt_pk_bf16_f32 v30, v30, v31
    ds_write_b16 v19, v30
    ds_write_b16_d16_hi v19, v30 offset:256
    s_waitcnt lgkmcnt(0)
    s_barrier
    """)
    if fl:
        A(f"""
        s_cmp_lg_u32 s5, 9
        s_cbranch_scc1 L_H_nf
        s_cmp_gt_u32 s3, 1
        s_cbranch_scc1 L_H_nf
        v_cmp_gt_u32 vcc, 72, v0
        s_and_saveexec_b64 s[44:45], vcc
        global_store_dword v40, v41, {sp(WS_)} sc1
        s_mov_b64 exec, -1
        L_H_nf:
        """)
    A.stamp(8)
    A("s_branch L_end")
    A(f"""
    L_A_s4m:
    v_and_b32 v18, 1, v1
    v_mul_u32_u24 v18, {ASTR}, v18
    v_add_u32 v18, v18, v11
    v_add_u32 v18, {ASTR}, v18
    s_mul_i32 s45, s4, 4608
    s_lshl_b32 s44, s50, 9
    s_add_u32 s45, s45, s44
    s_lshl_b32 s44, s46, 7
    s_add_u32 s45, s45, s44
    s_add_u32 s45, s45, {WS_PX}
    v_lshl_add_u32 v19, v1, 3, s45
    {f's_mov_b64 exec, 0xffff' + chr(10) + f'global_load_dword v125, v19, {sp(WS_)} sc1' + chr(10) + 's_mov_b64 exec, -1' if ppt else ''}
    """)
    bfrags(A, "v17", 56, 16)
    A("s_waitcnt lgkmcnt(0)\ns_barrier")
    gemv_mfma(A, "v18", vb=56, depth=8, nks=16)
    A("s_mov_b64 exec, 0xffff\ns_nop 6")
    A.epack("v24", "v20"); A.epack("v25", "v21")
    A(f"global_store_dwordx2 v19, v[24:25], {sp(WS_)} sc1\ns_mov_b64 exec, -1")
    A.stamp(9)
    A("s_branch L_end")

    A("L_KT:\ns_waitcnt lgkmcnt(0)")
    A.mktag()
    A(f"""
    s_cmp_lt_u32 s3, 9
    s_cbranch_scc1 L_HR_go
    s_cmp_ge_u32 s3, {9 + hq}
    s_cbranch_scc1 L_S5
    s_lshr_b32 s44, s{WQ_}, 7
    s_sub_u32 s44, 3, s44
    s_and_b32 s44, s44, 7
    s_lshl_b32 s45, s4, 3
    s_add_u32 s44, s44, s45
    s_lshl_b32 s44, s44, 7
    s_sub_u32 s45, 24, s3
    v_lshlrev_b32 v15, 7, v4              ; (l>>3)*128 rows
    v_add_u32 v15, v15, v7
    s_lshl_b32 s45, s45, 3
    v_add_u32 v15, s45, v15               ; row = i*128 + w*8 + (l&7)
    v_subrev_u32 v16, {512 + 56}, v15
    v_cmp_gt_u32 vcc, 512, v15
    s_nop 1
    v_cndmask_b32 v15, v16, v15, vcc
    v_lshl_add_u32 v15, v15, 13, s44
    global_load_dword v125, v15, {sp(WQ_)}{NT}
    s_branch L_S5
    L_HR_go:
    v_lshlrev_b32 v15, 1, v0
    global_load_ushort v33, v15, {sp(X_)}
    global_load_ushort v34, v15, {sp(X_)} offset:1152
    s_mul_i32 s44, s4, 4608
    s_add_u32 s44, s44, {WS_HL}
    v_lshl_add_u32 v55, v0, 3, s44
    global_load_dword v57, v55, {sp(WS_)} sc1
    v_mul_u32_u24 v15, 36, v1
    global_load_dwordx4 v[24:27], v15, {sp(X_)}
    global_load_dwordx4 v[28:31], v15, {sp(X_)} offset:16
    global_load_dword v32, v15, {sp(X_)} offset:32
    v_lshlrev_b32 v15, 3, v0
    v_add_u32 v52, {WS_AG + 2304}, v15
    v_add_u32 v53, {WS_AG + 2304 + AGS}, v15
    """)
    def ag_loads():
        for k in range(2):
            A(f"global_load_dwordx2 {vr(40+4*k,2)}, v{52+k}, {sp(WS_)} offset:-2304 sc1")
            A(f"global_load_dwordx2 {vr(42+4*k,2)}, v{52+k}, {sp(WS_)} offset:2304 sc1")
    A(f"""
    s_mov_b32 s44, 0x3f803f80
    v_mov_b32 v35, 0
    v_mov_b32 v36, 0
    s_waitcnt vmcnt(0)
    v_mov_b32 v61, {TAG}
    """)
    for i in range(9):
        A(f"v_dot2_f32_bf16 v35, v{24+i}, s44, v35\nv_dot2_f32_bf16 v36, v{24+i}, v{24+i}, v36")
    A("s_nop 2")
    A.row_reduce("v_add_f32", ["v35", "v36"])
    A(f"""
    v_mov_b32 v37, v35
    v_mov_b32 v38, v36
    s_nop 0
    v_permlane16_swap_b32 v35, v37
    v_permlane16_swap_b32 v36, v38
    v_add_f32 v35, v35, v37
    v_add_f32 v36, v36, v38
    v_mul_f32 v35, {INV576}, v35
    v_mul_f32 v36, {INV576}, v36
    v_fma_f32 v36, -v35, v35, v36
    """)
    ln_finish(A, "v35", "v36", "v38")
    A("""
    v_readlane_b32 s48, v35, 0
    v_readlane_b32 s49, v35, 32
    v_readlane_b32 s50, v38, 0
    v_readlane_b32 s51, v38, 32
    v_lshlrev_b32 v33, 16, v33
    v_lshlrev_b32 v34, 16, v34
    v_subrev_f32 v33, s48, v33
    v_subrev_f32 v34, s49, v34
    """)
    A.r1("v33", "v34")
    A("v_mul_f32 v33, s50, v33\nv_mul_f32 v34, s51, v34")
    A.r1("v33", "v34")
    A("s_mov_b32 s7, 0")
    A(f"L_HR_h:\ns_add_u32 s7, s7, 1\ns_cmp_gt_u32 s7, {SPIN}\ns_cbranch_scc1 L_end\ns_sleep {ps}")
    ag_loads()
    A("s_waitcnt vmcnt(0)")
    A.etagcheck([f"v{40+i}" for i in range(8)], "v39", "L_HR_h", "s100", 7)
    for i in range(4): A(f"v_add_f32 v{40+i}, v{40+i}, v{44+i}")
    A.r1("v40", "v41", "v42", "v43")
    A("v_add_f32 v42, 1.0, v42\nv_add_f32 v43, 1.0, v43")
    A.r1("v42", "v43")
    A("v_mul_f32 v42, v33, v42\nv_mul_f32 v43, v34, v43")
    A.r1("v42", "v43")
    A(f"""
    v_add_f32 v42, v42, v40
    v_add_f32 v43, v43, v41
    v_cvt_pk_bf16_f32 v60, v42, v43
    """)
    A.dual_store("global_store_dwordx2", "v55", "v[60:61]")
    A.stamp(3)
    A("s_branch L_S5")
    A("L_XR:")
    if diag & 8: A("s_branch L_end")
    A(f"""
    v_lshlrev_b32 v16, 2, v0
    v_min_u32 v16, 1532, v16
    v_add_u32 v16, {L_ST}, v16
    ds_write_b32 v16, v3
    v_mov_b32 v21, {L_WCNT}
    v_mov_b32 v22, 1
    s_waitcnt lgkmcnt(0)
    s_barrier
    s_cmp_eq_u32 s3, 9
    s_cbranch_scc1 L_XR_stat
    s_cmp_gt_u32 s3, 9
    s_cbranch_scc1 L_end
    v_lshlrev_b32 v16, 1, v0
    global_load_ushort v80, v16, {sp(X_)}
    global_load_ushort v81, v16, {sp(X_)} offset:1152
    v_lshlrev_b32 v16, 3, v0
    v_add_u32 v17, {WS_MG + 2304}, v16
    v_add_u32 v18, {WS_MG + 9216}, v16
    """)
    for k in range(4): A(f"v_add_u32 v{88+k}, {WS_PX + 2304 + k*9216}, v16")
    A(f"""
    s_mul_i32 s44, s4, 4608
    s_lshl_b32 s44, s44, 1
    s_add_u32 s45, s44, {WS_RG}
    v_lshl_add_u32 v26, v0, 4, s45
    s_add_u32 s45, s44, {WS_XA}
    v_lshl_add_u32 v27, v0, 4, s45
    v_and_b32 v24, 48, v1
    v_lshlrev_b32 v24, 2, v24
    s_lshl_b32 s44, s3, 2
    s_add_u32 s44, s44, {L_ST}
    v_add_u32 v24, s44, v24
    s_mov_b32 s56, 0x00010001
    s_mov_b32 s57, 0x00010001
    """)
    A.spin_head("L_XR_mg")
    A("s_sleep 4")
    for j, (r, o) in enumerate((("v17", -2304), ("v17", 2304), ("v18", 0))):
        A(f"global_load_dwordx2 {vr((96, 34, 100)[j],2)}, {r}, {sp(WS_)} offset:{o} sc1")
    A("s_waitcnt vmcnt(0)")
    A.tagcheck(["v97", "v35", "v101", "v101"], "v30", "v31", "L_XR_mg")
    A(f"""
    v_lshlrev_b32 v82, 16, v96
    v_and_b32 v83, 0xffff0000, v96        ; ga
    v_and_b32 v101, 0xffff0000, v100
    v_lshlrev_b32 v100, 16, v100
    v_add_f32 v100, 1.0, v100
    v_add_f32 v101, 1.0, v101
    v_cvt_pk_bf16_f32 v32, v100, v101     ; g
    v_mov_b32 v33, {TAG}
    """)
    A.dual_store("global_store_dwordx4", "v26", "v[32:35]")
    A(f"""
    v_lshlrev_b32 v80, 16, v80
    v_lshlrev_b32 v81, 16, v81
    v_lshlrev_b32 v84, 16, v32
    v_and_b32 v85, 0xffff0000, v32
    v_lshlrev_b32 v86, 16, v34
    v_and_b32 v87, 0xffff0000, v34
    v_mov_b32 v96, v84
    v_mov_b32 v97, v85
    v_mul_f32 v98, v84, v84
    v_mul_f32 v99, v85, v85
    v_mov_b32 v100, v86
    v_mov_b32 v101, v87
    v_mul_f32 v102, v86, v86
    v_mul_f32 v103, v87, v87
    v_mul_f32 v104, v84, v86
    v_mul_f32 v105, v85, v87
    v_mov_b32 v106, 0
    v_mov_b32 v107, 0
    """)
    def partial_stats(off, cnt):
        for i in range(6): A(f"v_permlane32_swap_b32 v{96+2*i}, v{97+2*i}")
        for i in range(6): A(f"v_add_f32 v{96+2*i}, v{96+2*i}, v{97+2*i}")
        A("s_nop 0")
        for i in range(3): A(f"v_permlane16_swap_b32 v{96+4*i}, v{98+4*i}")
        for i in range(3): A(f"v_add_f32 v{96+4*i}, v{96+4*i}, v{98+4*i}")
        A.row_reduce("v_add_f32", ["v96", "v100", "v104"])
        A(f"""
        s_mov_b64 exec, s[56:57]
        ds_write_b32 v24, v96 offset:{off}
        ds_write_b32 v24, v100 offset:{off+256}
        ds_write_b32 v24, v104 offset:{off+512}
        s_mov_b64 exec, 1
        ds_add_u32 v21, v22 offset:{cnt}
        s_mov_b64 exec, -1
        """)
    partial_stats(0, 4)
    A.stamp(6)
    A(f"""
    s_mov_b32 s7, 0
    s_movk_i32 s60, 0xff
    s_movk_i32 s61, {0 if fl else 0xff}
    s_mul_i32 s44, s4, 9
    s_add_u32 s44, s44, s3
    s_lshl_b32 s44, s44, 7
    s_add_u32 s44, s44, {WS_FL}
    s_add_u32 s62, s{WS_}, s44
    s_addc_u32 s63, s{WS_+1}, 0
    L_XR_px:
    s_add_u32 s7, s7, 1
    s_cmp_gt_u32 s7, {SPIN}
    s_cbranch_scc1 L_end
    s_and_b32 s59, s60, s61
    """)
    for k in range(8):
        A(f"s_bitcmp0_b32 s59, {k}\ns_cbranch_scc1 L_px_l{k}")
        A(f"global_load_dwordx2 {vr(96+2*k,2)}, v{88+k//2}, {sp(WS_)} offset:{2304 if k & 1 else -2304} sc1")
        A(f"L_px_l{k}:")
    if fl:
        A("s_cmp_eq_u32 s61, 0xff\ns_cbranch_scc1 L_px_nf\ns_load_dwordx8 s[64:71], s[62:63], 0 glc\ns_waitcnt lgkmcnt(0)")
        for k in range(8):
            A(f"s_cmp_eq_u32 s{64+k}, {TAG}\ns_cselect_b32 s58, {1<<k}, 0\ns_or_b32 s61, s61, s58")
        A("s_cmp_eq_u32 s59, 0\ns_cbranch_scc1 L_XR_px\nL_px_nf:")
    A("s_waitcnt vmcnt(0)")
    for k in range(8):
        A(f"""
        s_bitcmp0_b32 s59, {k}
        s_cbranch_scc1 L_px_c{k}
        v_xor_b32 v{96+2*k}, {ETAG}, v{96+2*k}
        v_xor_b32 v{97+2*k}, {ETAG}, v{97+2*k}
        v_or_b32 v30, v{96+2*k}, v{97+2*k}
        v_and_b32 v30, 63, v30
        v_cmp_ne_u32 vcc, 0, v30
        s_cbranch_vccnz L_px_c{k}
        s_bitset0_b32 s60, {k}
        L_px_c{k}:
        """)
    A("s_cmp_lg_u32 s60, 0\ns_cbranch_scc1 L_XR_px")
    A.stamp(10)
    for i in range(4): A(f"v_add_f32 v{96+2*i}, v{96+2*i}, v{104+2*i}\nv_add_f32 v{97+2*i}, v{97+2*i}, v{105+2*i}")
    for i in range(2): A(f"v_add_f32 v{96+2*i}, v{96+2*i}, v{100+2*i}\nv_add_f32 v{97+2*i}, v{97+2*i}, v{101+2*i}")
    A("v_add_f32 v96, v96, v98\nv_add_f32 v97, v97, v99")
    A.r1("v96", "v97")
    A("v_mul_f32 v96, v82, v96\nv_mul_f32 v97, v83, v97")
    A.r1("v96", "v97")
    A(f"""
    v_add_f32 v96, v80, v96
    v_add_f32 v97, v81, v97
    v_cvt_pk_bf16_f32 v34, v96, v97
    v_lshlrev_b32 v96, 16, v34
    v_and_b32 v97, 0xffff0000, v34        ; x1
    v_mul_f32 v100, v96, v84
    v_mul_f32 v101, v97, v85
    v_cvt_pk_bf16_f32 v32, v100, v101
    global_store_dwordx4 v27, v[32:35], {sp(WS_)}
    v_lshlrev_b32 v100, 16, v32
    v_and_b32 v101, 0xffff0000, v32       ; a
    v_mul_f32 v98, v96, v96
    v_mul_f32 v99, v97, v97
    v_mul_f32 v102, v100, v100
    v_mul_f32 v103, v101, v101
    v_mul_f32 v104, v100, v84
    v_mul_f32 v105, v101, v85
    v_mul_f32 v106, v100, v86
    v_mul_f32 v107, v101, v87
    """)
    partial_stats(768, 8)
    A(f"v_add_u32 v27, {WS_GOFF}, v27\nglobal_store_dwordx4 v27, v[32:35], {sp(WS_)} sc1")
    A.stamp(11)
    A(f"""
    s_branch L_end
    L_XR_stat:
    v_lshlrev_b32 v22, 2, v1
    v_add_u32 v22, {L_ST}, v22
    v_lshrrev_b32 v20, 5, v1
    s_lshl_b32 s44, s4, 7
    s_add_u32 s44, s44, {WS_CF}
    v_lshl_add_u32 v20, v20, 4, s44
    global_load_dword v23, v20, {sp(WS_)} sc1
    """)
    def gather_stats(off, cnt, r, sleep):
        A.lds_spin(cnt, 9, "v23", "v21", sleep=sleep)
        A(f"""
        ds_read_b32 v{r}, v22 offset:{off}
        ds_read_b32 v{r+2}, v22 offset:{off+256}
        ds_read_b32 v{r+4}, v22 offset:{off+512}
        s_waitcnt lgkmcnt(0)
        """)
        A.row_reduce("v_add_f32", [f"v{r}", f"v{r+2}", f"v{r+4}"])
        for q in (r, r+2, r+4): A(f"v_mul_f32 v{q}, {INV576}, v{q}")
        for q in (r, r+2, r+4): A(f"v_mov_b32 v{q+1}, v{q}")
        for q in (r, r+2, r+4): A(f"v_permlane16_swap_b32 v{q}, v{q+1}")
    A("s_waitcnt vmcnt(0)")
    gather_stats(0, 4, 100, True)
    gather_stats(768, 8, 84, False)
    A("v_fma_f32 v85, -v84, v84, v85")
    ln_finish(A, "v84", "v85", "v90")
    A(f"""
    v_fma_f32 v86, -v84, v100, v86
    v_fma_f32 v89, -v84, v104, v89
    v_add_f32 v88, v88, v88
    v_fma_f32 v88, v84, v101, -v88
    v_fma_f32 v87, v84, v88, v87
    v_fma_f32 v86, v90, v86, v102         ; mean2
    v_add_f32 v89, v89, v89
    v_fma_f32 v87, v90, v87, v89
    v_fma_f32 v87, v90, v87, v103         ; E[h2^2]
    v_fma_f32 v87, -v86, v86, v87         ; var2
    """)
    ln_finish(A, "v86", "v87", "v94")
    A(f"""
    v_mul_f32 v92, v90, v94               ; c0
    v_mul_f32 v95, -v86, v94              ; c3
    v_mul_f32 v93, -v84, v92              ; c1
    """)
    for r in range(92, 96): A.epack(f"v{r}", f"v{r}")
    A("s_mov_b32 exec_lo, 1\ns_mov_b32 exec_hi, 1")
    A.dual_store("global_store_dwordx4", "v20", "v[92:95]")
    A("s_mov_b64 exec, -1")
    A.stamp(12)
    A("s_branch L_end")

    A(f"""
    L_S5:
    {'s_branch L_end' if diag & 8 else ''}
    s_mul_i32 s47, s4, 9
    s_add_u32 s47, s47, s5                ; f
    v_mov_b32 v82, 0
    v_mov_b32 v88, 0
    """)
    A.srd(8, W1_, 576*9216)
    A.srd(12, W2_, 4608*1152)
    A(f"""
    s_lshl_b32 s44, s47, 7
    v_mul_u32_u24 v14, 9216, v4
    v_lshl_add_u32 v14, v6, 4, v14
    v_add_u32 v14, s44, v14
    s_lshl_b32 s45, s46, 5
    s_add_u32 s44, s44, s45
    v_and_b32 v15, 15, v1
    v_lshl_add_u32 v15, v15, 1, s44
    global_load_ushort v19, v15, {sp(B1_)}
    v_mul_u32_u24 v15, 0x38f, v0
    v_lshrrev_b32 v15, 16, v15
    v_mul_u32_u24 v16, 72, v15
    v_sub_u32 v16, v0, v16
    v_and_b32 v17, 6, v15
    v_xor_b32 v16, v16, v17
    v_mul_u32_u24 v15, 1152, v15
    v_lshl_add_u32 v15, v16, 4, v15
    s_mul_i32 s49, s4, 9216
    s_add_u32 s45, s49, {WS_RG}
    v_lshl_add_u32 v80, v0, 4, s45
    s_add_u32 s45, s49, {WS_XA}
    v_lshl_add_u32 v81, v0, 4, s45
    """)
    def rgpoll():
        A("s_barrier\ns_cmp_ge_u32 s3, 9\ns_cbranch_scc1 L_S5_w2d")
        A.dual_head("L_S5_rg", ["v80", "v81"])
        A(f"s_sleep {ps}\nglobal_load_dwordx4 v[24:27], v80, {sp(WS_)} sc1\ns_waitcnt vmcnt(0)")
        A.tagcheck(["v25", "v27"], "v30", "v31", "L_S5_rg")
        A(f"""
        v_mov_b32 v35, 0x3f80
        ds_write_b16 v8, v24 offset:{ASTR}
        ds_write_b16_d16_hi v8, v24 offset:{5*ASTR}
        ds_write_b16 v8, v26 offset:{2*ASTR}
        ds_write_b16_d16_hi v8, v26 offset:{6*ASTR}
        ds_write_b16 v8, v35 offset:{3*ASTR}
        ds_write_b16 v8, v35 offset:{7*ASTR}
        L_S5_w2d:
        """)
    if nb2:
        A("s_barrier\ns_cmp_eq_u32 s5, 8\ns_cbranch_scc1 L_vt2")
        vtail(nb2, 3, 0)
        A(f"s_mul_i32 s49, s4, 9216\nL_vt2:")
    if mlt:
        A(f"""
        s_cmp_lg_u32 s3, 11
        s_cbranch_scc1 L_S5_tb2
        s_lshr_b32 s44, s{W1_}, 7
        s_add_u32 s44, s44, s47
        s_and_b32 s44, s44, 7
        s_cmp_eq_u32 s44, {3 if c3 else 9}
        s_cbranch_scc1 L_S5_tb2
        s_lshl_b32 s44, s4, 11
        s_add_u32 s44, s44, {WS_MLG}
        v_lshrrev_b32 v16, 2, v1
        v_lshlrev_b32 v16, 7, v16
        v_lshl_add_u32 v16, v9, 2, v16
        v_add_u32 v16, s44, v16
        s_mov_b32 s7, 0
        L_S5_trig2:
        s_sleep {ps}
        global_load_dword v17, v16, {sp(WS_)} sc1
        s_add_u32 s7, s7, 1
        s_cmp_gt_u32 s7, {NLOC//2}
        s_cbranch_scc1 L_S5_tb2
        s_waitcnt vmcnt(0)
        v_and_b32 v17, 63, v17
        v_cmp_eq_u32 vcc, {ETAG}, v17
        s_bcnt1_i32_b64 s44, vcc
        s_cmp_lt_u32 s44, {4*mlt + 3}
        s_cbranch_scc1 L_S5_trig2
        L_S5_tb2:
        """)
    if rgw: rgpoll()
    if trig:
        A(f"""
        s_cmp_lg_u32 s3, 11
        s_cbranch_scc1 L_S5_tb
        s_lshr_b32 s44, s{W1_}, 7
        s_add_u32 s44, s44, s47
        s_and_b32 s44, s44, 7
        s_cmp_eq_u32 s44, {3 if c3 else 9}
        s_cbranch_scc1 L_S5_tb
        s_lshl_b32 s44, s4, 10
        s_add_u32 s44, s44, {WS_TR}
        v_lshl_add_u32 v16, v7, 7, s44
        s_mov_b32 s7, 0
        L_S5_trig:
        s_sleep {ps}
        global_load_dword v17, v16, {sp(WS_)} sc1
        s_add_u32 s7, s7, 1
        s_cmp_gt_u32 s7, {NLOC//2}
        s_cbranch_scc1 L_S5_tb
        s_waitcnt vmcnt(0)
        v_cmp_eq_u32 vcc, {TAG}, v17
        s_bcnt1_i32_b32 s44, vcc_lo
        s_cmp_lt_u32 s44, {4*trig}
        s_cbranch_scc1 L_S5_trig
        L_S5_tb:
        """)
    A("s_barrier")
    A.stamp(5)
    if not w2first:
        dma_tile(A, 8, "v14", 9216, L_BUF0)
        A("s_barrier")
    A(f"""
    s_cmp_ge_u32 s3, 9
    s_cbranch_scc1 L_S5_w2x
    s_mul_i32 s44, s47, {64*1152}
    s_lshl_b32 s45, s3, 10
    s_add_u32 s45, s45, {L_BUF1}
    """)
    for o in range(8):
        A(f"s_mov_b32 m0, s45\ns_add_u32 s45, s45, 9216")
        A(f"buffer_load_dwordx4 v15, s[12:15], s44 offen{NT} lds")
        A(f"s_add_u32 s44, s44, 9216")
    A("L_S5_w2x:")
    if w2first:
        A("s_barrier")
        dma_tile(A, 8, "v14", 9216, L_BUF0)
    if not rgw: rgpoll()
    A(f"""
    s_waitcnt vmcnt(0) lgkmcnt(0)
    s_barrier
    """)
    A.stamp(6)
    A(f"""
    s_cmp_ge_u32 s3, 12
    s_cbranch_scc1 L_S5_g1
    v_lshrrev_b32 v20, 2, v1
    v_mul_u32_u24 v20, 1152, v20
    v_lshl_add_u32 v20, v9, 3, v20
    v_add_u32 v20, {L_BUF1}, v20
    v_bfe_u32 v17, v1, 3, 2
    s_mul_i32 s48, s3, 3
    """)
    for i in range(3):
        A(f"s_add_u32 s44, s48, {i}\nv_xor_b32 v18, s44, v17\nv_lshl_add_u32 v18, v18, 5, v20")
        for ks in range(2):
            for half in range(2):
                A(f"ds_read_b64_tr_b16 {vr(52+i*8+ks*4+half*2,2)}, v18 offset:{(ks*32+half*16)*1152}")
    A(f"""
    s_mul_i32 s44, s48, {2*4608}
    s_lshl_b32 s45, s47, 6
    s_add_u32 s44, s44, s45
    s_add_u32 s44, s44, {WS_FG}
    v_mul_u32_u24 v20, 4608, v4
    v_lshl_add_u32 v20, v7, 3, v20
    v_add_u32 v76, s44, v20
    v_and_b32 v79, 1, v1
    v_lshlrev_b32 v79, 7, v79
    v_and_b32 v20, 48, v1
    v_add_u32 v79, v79, v20
    v_add_u32 v79, {L_H1}, v79
    s_cmp_eq_u32 s3, 10
    s_cbranch_scc1 L_S5_fprep
    s_cmp_ge_u32 s3, 9
    s_cbranch_scc1 L_S5_g2
    """)
    A.dual_head("L_S5_xa", ["v81"], init=False)
    A(f"global_load_dwordx2 v[24:25], v81, {sp(WS_)} sc1\ns_waitcnt vmcnt(0)")
    A.tagcheck(["v25"], None, None, "L_S5_xa")
    A(f"""
    ds_write_b16 v8, v24
    ds_write_b16_d16_hi v8, v24 offset:{4*ASTR}
    """)
    A.stamp(7)
    A(f"""
    s_branch L_S5_g2
    L_S5_fprep:
    s_lshl_b32 s44, s47, 3
    v_add_u32 v80, s44, v7                ; col
    v_lshrrev_b32 v81, 5, v1              ; b
    v_mul_u32_u24 v82, 1152, v81
    v_lshl_add_u32 v82, v80, 1, v82
    v_lshlrev_b32 v83, 1, v80
    global_load_ushort v84, v83, {sp(B2_)}
    global_load_ushort v85, v82, {sp(OUT_)}
    v_lshlrev_b32 v83, 3, v80
    v_add_u32 v83, {WS_MG + 1728*8}, v83
    s_add_u32 s44, s49, {WS_XA + 8}
    v_lshl_add_u32 v80, v80, 4, s44
    v_lshlrev_b32 v81, 4, v81             ; 16*b
    s_mul_i32 s44, s47, 4608
    s_add_u32 s44, s44, {WS_FG + 2048}
    v_lshl_add_u32 v88, v1, 3, s44
    """)
    A.dual_head("L_S5_gb", ["v80"])
    A(f"""
    global_load_dwordx2 v[86:87], v83, {sp(WS_)} sc1
    global_load_dwordx2 v[90:91], v80, {sp(WS_)} sc1
    s_waitcnt vmcnt(0)
    """)
    A.tagcheck(["v87", "v91"], "v30", "v31", "L_S5_gb")
    A(f"""
    v_lshrrev_b32 v86, v81, v86
    v_lshrrev_b32 v85, v81, v90
    v_lshlrev_b32 v86, 16, v86            ; gb
    v_lshlrev_b32 v85, 16, v85            ; x1
    v_lshlrev_b32 v84, 16, v84            ; b2
    L_S5_g2:
    s_mov_b32 s56, 0xffff0000
    s_mov_b32 s57, 0
    s_mov_b32 s58, 0
    s_mov_b32 s59, 0xffff
    s_waitcnt lgkmcnt(0)
    s_barrier
    s_barrier
    ds_read_b128 v[32:35], v79
    ds_read_b128 v[36:39], v79 offset:64
    s_waitcnt lgkmcnt(1)
    """)
    for i in range(3):
        A(f"v_mfma_f32_16x16x32_bf16 {vr(40+4*i,4)}, v[32:35], {vr(52+8*i,4)}, 0")
    A("s_waitcnt lgkmcnt(0)")
    for i in range(3):
        A(f"v_mfma_f32_16x16x32_bf16 {vr(40+4*i,4)}, v[36:39], {vr(56+8*i,4)}, {vr(40+4*i,4)}")
    A(f"""
    s_mov_b32 exec_hi, 0xffff
    s_nop 5
    v_cndmask_b32 v28, v40, v44, s[56:57]
    v_cndmask_b32 v29, v41, v45, s[56:57]
    v_cndmask_b32 v28, v28, v48, s[58:59]
    v_cndmask_b32 v29, v29, v49, s[58:59]
    """)
    A.epack("v28", "v28"); A.epack("v29", "v29")
    A(f"global_store_dwordx2 v76, v[28:29], {sp(WS_)} sc1\ns_mov_b64 exec, -1")
    A.stamp(11)
    A(f"""
    s_cmp_lg_u32 s3, 10
    s_cbranch_scc1 L_end
    {f's_sleep {fgs}' if fgs else 's_waitcnt vmcnt(0)'}
    """)
    A.spin_head("L_S5_fg")
    for i in range(9):
        A(f"global_load_dwordx2 {vr(40+2*i,2)}, v88, {sp(WS_)} offset:{i*512-2048} sc1")
    A("s_waitcnt vmcnt(0)")
    A.etagcheck([f"v{40+i}" for i in range(18)], "v30", "L_S5_fg")
    A.stamp(12)
    fold8(A, 9, 40, 41, 42)
    A.r1("v40")
    A("v_add_f32 v40, v84, v40")
    A.r1("v40")
    A("v_mul_f32 v40, v86, v40")
    A.r1("v40")
    A(f"""
    v_add_f32 v40, v85, v40
    v_cvt_pk_bf16_f32 v40, v40, v40
    s_mov_b32 exec_lo, 0xff
    s_mov_b32 exec_hi, 0xff
    global_store_short v82, v40, {sp(OUT_)}
    s_cmp_lg_u32 s47, 0
    s_cbranch_scc1 L_S5_fin
    s_mov_b64 exec, 1
    v_mov_b32 v33, {TAG}
    global_store_dword v3, v33, {sp(WS_)} sc1
    L_S5_fin:
    s_mov_b64 exec, -1
    """)
    A.stamp(13)
    A("s_branch L_end")
    A("L_S5_g1:\nv_mov_b32 v15, v10")
    bfrags(A, "v15")
    k0_ = -2.0 * 1.4426950408889634 * 0.7978845608028654
    A(f"""
    v_bfe_u32 v16, v1, 4, 1
    v_lshlrev_b32 v15, 7, v16
    s_lshl_b32 s44, s4, 7
    s_add_u32 s44, s44, {WS_CF}
    v_lshl_add_u32 v18, v16, 4, s44
    v_bfe_u32 v16, v1, 2, 2
    v_lshl_or_b32 v15, v16, 4, v15
    v_lshl_or_b32 v15, v9, 1, v15
    s_lshr_b32 s44, s46, 1
    s_lshl_b32 s44, s44, 6
    s_and_b32 s45, s46, 1
    s_lshl_b32 s45, s45, 3
    s_add_u32 s44, s44, s45
    s_add_u32 s44, s44, {L_H1}
    v_add_u32 v15, s44, v15
    v_lshlrev_b32 v19, 16, v19
    v_mul_u32_u24 v16, {ASTR}, v7
    v_add_u32 v16, v11, v16               ; A rows = i&7
    v_mov_b32 v17, {f2h(k0_)}
    s_waitcnt lgkmcnt(0)
    s_barrier
    """)
    cfl = f"global_load_dwordx4 v[52:55], v18, {sp(WS_)} sc1"
    gemv_mfma(A, "v16", mid=(6, cfl))
    A.stamp(9)
    A("s_mov_b32 s7, 0\ns_branch L_S5_cfc")
    A.dual_head("L_S5_cf", ["v18"], init=False)
    A(f"{cfl}\nL_S5_cfc:\ns_waitcnt vmcnt(0)")
    A.etagcheck(["v52", "v53", "v54", "v55"], "v30", "L_S5_cf")
    A.stamp(8)
    A(f"""
    v_mul_f32 v20, v20, v52
    v_fmac_f32 v20, v21, v53
    v_fmac_f32 v20, v22, v54
    v_fmac_f32 v20, v23, v55
    """)
    A.r1("v20")
    A("v_add_f32 v20, v20, v19")
    A.r1("v20")
    A(f"""
    v_mul_f32 v21, v20, v20
    v_fmamk_f32 v21, v21, {f2h(k0_*0.044715)}, v17
    v_mul_f32 v21, v21, v20
    v_exp_f32 v21, v21
    s_nop 0
    v_add_f32 v21, 1.0, v21
    v_rcp_f32 v21, v21
    s_mov_b32 exec_hi, 0
    v_mul_f32 v21, v21, v20
    v_cvt_pk_bf16_f32 v21, v21, v21
    ds_write_b16 v15, v21
    s_mov_b64 exec, -1
    s_waitcnt lgkmcnt(0)
    s_barrier
    """)
    A.stamp(10)
    A("L_end:")
    if dbg:
        maps = {"A": {1: 4, 2: 5, 4: 6, 7: 7, 9: 8, 10: 9, 12: 14}, "B": {4: 3, 5: 10, 6: 11, 8: 12, 11: 13}, "M": {3: 2, 5: 15}}
        A(f"""
        s_mov_b64 exec, -1
        s_lshl_b32 s44, 1, s3
        s_and_b32 s44, s44, {(1<<0)|(1<<9)|(1<<12)|(1<<15)}
        s_cbranch_scc0 L_exit
        s_load_dwordx2 s[46:47], s[0:1], 104
        v_mov_b32 v125, 0x400
        v_readlane_b32 s44, v127, 0
        s_nop 3
        s_not_b32 s44, s44
        v_writelane_b32 v127, s44, 15
        v_writelane_b32 v125, 4, 0
        v_writelane_b32 v125, 0, 15
        s_lshr_b32 s45, s2, 3
        s_cmp_lt_u32 s45, 16
        s_cbranch_scc1 L_dbg_A
        s_cmp_lt_u32 s45, 25
        s_cbranch_scc1 L_dbg_B
        """)
        for nm in ("M", "B", "A"):
            A(f"L_dbg_{nm}:")
            for st, sl in maps[nm].items(): A(f"v_writelane_b32 v125, {sl*4}, {st}")
            A("s_branch L_dbg_go")
        A(f"""
        L_dbg_go:
        s_waitcnt lgkmcnt(0)
        v_cmp_gt_u32 vcc, 0x100, v125
        s_and_saveexec_b64 s[48:49], vcc
        global_atomic_umax v125, v127, s[46:47]
        s_endpgm
        """)
    elif stamps:
        A(f"""
        s_mov_b64 exec, 0xffff
        s_lshl_b32 s44, s2, 4
        s_add_u32 s44, s44, s3
        s_lshl_b32 s44, s44, 6
        s_add_u32 s44, s44, {WS_STAMP}
        v_lshl_add_u32 v126, v1, 2, s44
        global_store_dword v126, v127, {sp(WS_)}
        """)
    A("L_exit:\ns_endpgm\nL_codeend:")
    A.footer(128, 102)
    return A

HEAD = """; Fused adaLN + sliding-window GQA decode attention + channel MLP, one persistent launch (gfx950).
"""
if __name__ == "__main__":
    out = sys.argv[1]
    kw = {}
    for o in sys.argv[2:]:
        if "=" in o:
            k, v = o.split("="); kw[k] = int(v)
        elif o == "stamps": kw["stamps"] = True
        elif o == "nont": kw["nt"] = ""
    A = build(**kw)
    open(out, "w").write(HEAD + A.text())
```

```python
import sys, struct
from asmlib import Asm, NAME

WS_EPOCH = 0x0
WS_QG    = 0x4000
WS_TR    = 0x18000
WS_FL    = 0x1C000
WS_PX    = 0x20000
WS_AG    = 0x30000
AGS = 1152*8
WS_MG    = 0x40000
WS_FG    = 0x50000
WS_OG    = 0x100000
WS_MLG   = 0x120000
WS_RG    = 0x124000
WS_XA    = 0x136000
WS_CF    = 0x151000
WS_HL    = 0x152000
WS_GOFF  = 0x80000
WS_QL    = 0x200000
WS_STAMP = 0x8000000
AL = 131072; L_Q = 0; L_CNT = 512; L_MX = 640; L_LS = 704; L_P = 1024; PSTR = 1088
ASTR = 1184
L_BUF0 = 0; L_BUF1 = 73728; L_ACT = 147456; L_H1 = L_ACT + 8*ASTR; L_CF = L_H1 + 256; L_WCNT = L_CF + 64; L_ST = L_WCNT + 64; L_X1 = L_ST + 1536
LDS_BYTES = 160768
assert L_X1 <= LDS_BYTES
NLOC = 300
SPIN = 40000
LOG2E = 0x3fb8aa3b
X_, K_, V_, WQ_, WO_, W1_, B1_, W2_, B2_, C_, WM_, OUT_, WS_ = 16, 18, 20, 22, 24, 28, 30, 32, 34, 36, 38, 40, 42
TAG = "s6"; ETAG = "s101"

def sp(n): return f"s[{n}:{n+1}]"
def vr(n, k): return f"v[{n}:{n+k-1}]"
def f2h(x): return hex(struct.unpack("<I", struct.pack("<f", x))[0])
DPPM = "row_mask:0xf bank_mask:0xf"

class G(Asm):
    def __init__(self, stamps=False, nt="nt"):
        super().__init__()
        self.stamps = stamps
        self.nt = (" " + nt) if nt else ""
    def stamp(self, i):
        if self.stamps:
            self(f"s_memrealtime s[96:97]\ns_waitcnt lgkmcnt(0)\nv_writelane_b32 v127, s96, {i}")
    def rbf(self, *pairs):
        for d, s in pairs: self(f"v_cvt_pk_bf16_f32 {d}, {s}, {s}")
        for d, s in pairs: self(f"v_and_b32 {d}, 0xffff0000, {d}")
    def r1(self, *regs): self.rbf(*[(r, r) for r in regs])
    def srd(self, b, ptr, nbytes):
        self(f"s_mov_b32 s{b}, s{ptr}\ns_and_b32 s{b+1}, s{ptr+1}, 0xffff\ns_mov_b32 s{b+2}, {nbytes}\ns_mov_b32 s{b+3}, 0x20000")
    def mktag(self):
        self(f"s_add_u32 s6, s6, 0x9e3779b9\ns_and_b32 {ETAG}, s6, 63\ns_and_b32 s100, s6, 7")
    def tagcheck(self, tags, mn, mx, retry):
        if len(tags) == 1:
            self(f"v_cmp_ne_u32 vcc, {TAG}, {tags[0]}")
        else:
            assert len(tags) % 2 == 0
            for i in range(0, len(tags), 2):
                a, b = tags[i], tags[i+1]
                self(f"v_min3_u32 {mn}, {a}, {b}, {TAG if i == 0 else mn}")
                self(f"v_max3_u32 {mx}, {a}, {b}, {TAG if i == 0 else mx}")
            self(f"v_cmp_ne_u32 vcc, {mn}, {mx}")
        self(f"s_cbranch_vccnz {retry}")
    def etagcheck(self, words, acc, retry, ETAG=ETAG, mask=63):
        assert len(words) % 2 == 0
        for i in range(0, len(words), 2):
            a, b = words[i], words[i+1]
            self(f"v_xor_b32 {a}, {ETAG}, {a}\nv_xor_b32 {b}, {ETAG}, {b}")
            if i == 0: self(f"v_or_b32 {acc}, {a}, {b}")
            else: self(f"v_or3_b32 {acc}, {a}, {b}, {acc}")
        self(f"v_and_b32 {acc}, {mask}, {acc}\nv_cmp_ne_u32 vcc, 0, {acc}\ns_cbranch_vccnz {retry}")
    def epack(self, d, v, mask=63):
        self(f"v_bfi_b32 {d}, {mask}, {ETAG}, {v}")
    def spin_head(self, lab):
        self(f"s_mov_b32 s7, 0\n{lab}:\ns_add_u32 s7, s7, 1\ns_cmp_gt_u32 s7, {SPIN}\ns_cbranch_scc1 L_end")
    def dual_head(self, lab, regs, init=True):
        if init: self("s_mov_b32 s7, 0")
        self(f"{lab}:\ns_add_u32 s7, s7, 1\ns_cmp_gt_u32 s7, {SPIN}\ns_cbranch_scc1 L_end")
        self(f"s_cmp_lg_u32 s7, {NLOC}\ns_cbranch_scc1 {lab}_k")
        for r in regs: self(f"v_add_u32 {r}, {WS_GOFF}, {r}")
        self(f"{lab}_k:")
    def dual_store(self, op, vaddr, data):
        self(f"{op} {vaddr}, {data}, {sp(WS_)}\nv_add_u32 {vaddr}, {WS_GOFF}, {vaddr}\n{op} {vaddr}, {data}, {sp(WS_)} sc1")
    def row_reduce(self, op, regs, steps=4):
        for ctl in ("quad_perm:[1,0,3,2]", "quad_perm:[2,3,0,1]", "row_half_mirror", "row_mirror")[:steps]:
            if len(regs) < 3: self(f"s_nop {2 - len(regs)}")
            for r in regs:
                self(f"{op}_dpp {r}, {r}, {r} {ctl} {DPPM}")
    def lds_spin(self, off, val, vt, vbase, sleep=True):
        lab = self.label("LS")
        self.spin_head(lab)
        self(f"ds_read_b32 {vt}, {vbase} offset:{off}\ns_waitcnt lgkmcnt(0)\nv_readfirstlane_b32 s44, {vt}\ns_cmp_ge_u32 s44, {val}")
        done = self.label("LD")
        self(f"s_cbranch_scc1 {done}\n" + ("s_sleep 1\n" if sleep else "") + f"s_branch {lab}\n{done}:")
    def lds_inc(self, off, vbase, vone):
        self(f"s_mov_b64 exec, 1\nds_add_u32 {vbase}, {vone} offset:{off}\ns_mov_b64 exec, -1")

INV576 = f2h(1.0/576)
def ln_finish(A, mean, var, rs):
    A(f"v_max_f32 {var}, 0, {var}")
    A.r1(mean, var)
    A(f"v_add_f32 {var}, 0x3727c5ac, {var}")
    A.r1(var)
    A(f"v_sqrt_f32 {var}, {var}\ns_nop 0")
    A.r1(var)
    A(f"v_rcp_f32 {rs}, {var}\ns_nop 0")

def dma_tile(A, srd, voff, rowstride, ldsbase, ninstr=72):
    A(f"s_mul_i32 s44, s3, {8*rowstride}\ns_lshl_b32 s45, s3, 10\ns_add_u32 s45, s45, {ldsbase}")
    for i in range((ninstr + 15)//16):
        skip = None
        if (i+1)*16 > ninstr:
            skip = A.label("DS")
            A(f"s_cmp_ge_u32 s3, {ninstr - 16*i}\ns_cbranch_scc1 {skip}")
        A(f"s_mov_b32 m0, s45\ns_add_u32 s45, s45, 16384")
        A(f"buffer_load_dwordx4 {voff}, s[{srd}:{srd+3}], s44 offen{A.nt} lds")
        A(f"s_add_u32 s44, s44, {128*rowstride}")
        if skip: A(f"{skip}:")

def bfrags(A, vaddr, vb=52, nks=18, rowb=128):
    base = 0
    for ks in range(nks):
        for half in range(2):
            off = (ks*32 + half*16) * rowb
            if off - base > 65535:
                A(f"v_add_u32 {vaddr}, {off - base}, {vaddr}"); base = off
            A(f"ds_read_b64_tr_b16 {vr(vb + ks*4 + half*2,2)}, {vaddr} offset:{off - base}")

def kv_chunk_base(A, rp, dst, t, SP):
    A(f"""
    s_lshr_b32 {t}, {rp}, 3
    s_lshl_b32 {dst}, s4, 1
    s_add_u32 {dst}, {dst}, {t}
    s_bfe_u32 {t}, {rp}, 0x10002
    s_lshl_b32 {t}, {t}, 4
    s_add_u32 {dst}, {dst}, {t}
    s_lshl_b32 {dst}, {dst}, 21
    s_and_b32 {t}, {rp}, 3
    s_lshl_b32 {t}, {t}, {SP}
    s_add_u32 {dst}, {dst}, {t}
    s_add_u32 {dst}, {dst}, {6144*256}
    """)

def gemv_mfma(A, vaaddr, vb=52, va=24, vd=20, depth=7, nks=18, mid=None):
    depth = min(depth, nks)
    def rd(ks):
        A(f"ds_read_b128 {vr(va + (ks % depth)*4,4)}, {vaaddr} offset:{ks*64}")
    for ks in range(depth): rd(ks)
    for ks in range(nks):
        issued = min(nks, depth + ks)
        A(f"s_waitcnt lgkmcnt({issued - ks - 1})")
        c = "0" if ks == 0 else vr(vd, 4)
        A(f"v_mfma_f32_16x16x32_bf16 {vr(vd,4)}, {vr(va + (ks % depth)*4,4)}, {vr(vb+ks*4,4)}, {c}")
        if ks + depth < nks: rd(ks + depth)
        if mid and ks == mid[0]: A(mid[1])

def fold8(A, n, a, b, t, swapb=True):
    for i in range(1, n):
        A(f"v_add_f32 v{a}, v{a}, v{a+2*i}\nv_add_f32 v{b}, v{b}, v{b+2*i}")
    A(f"""
    s_nop 1
    v_permlane32_swap_b32 v{a}, v{b}
    v_add_f32 v{a}, v{a}, v{b}
    v_mov_b32 v{t}, v{a}
    s_nop 1
    v_permlane16_swap_b32 v{a}, v{t}
    v_add_f32 v{a}, v{a}, v{t}
    s_nop 1
    v_add_f32_dpp v{a}, v{a}, v{a} row_ror:8 {DPPM}
    """)

def build(stamps=False, nt="nt", adelay=True, dbg=0, w2first=0, qs=8, ps=2, pt=1, diag=0, ql=1, rgw=0, il=2, trig=1, pf=0, fgs=12, ordr=0, nb1=0, nb2=0, mlt=0, c3=1, hq=0, fl=0, ppt=0, probe=0):
    CH, BL, SP = {0: (15, 13, 17), 1: (17, 15, 13), 2: (17, 13, 15)}[il]
    global SPIN, NLOC
    if diag: SPIN = 60; NLOC = 100
    A = G(stamps, nt)
    def vtail(n, level, w0):
        lab = A.label("VT")
        A(f"""
        s_sub_u32 s48, s3, {w0}
        s_cmp_ge_u32 s48, {n}
        s_cbranch_scc1 {lab}
        s_and_b32 s49, s48, 1
        s_lshl_b32 s50, s5, 1
        s_add_u32 s50, s50, s49
        """)
        kv_chunk_base(A, "s50", "s44", "s45", SP)
        A(f"""
        s_lshr_b32 s48, s48, 1
        s_sub_u32 s48, 3, s48
        s_lshl_b32 s48, s48, {BL}
        s_add_u32 s44, s44, s48
        s_add_u32 s44, s44, {level << CH}
        v_lshl_add_u32 v20, v1, 7, s44
        global_load_dword v22, v20, {sp(V_)}{A.nt}
        {lab}:
        """)
    NT = A.nt
    A.header(256, 1024, LDS_BYTES)
    A(f"""
    s_cmp_ge_u32 s2, 256
    s_cbranch_scc1 L_exit
    s_load_dwordx16 s[16:31], s[0:1], 0
    s_load_dwordx8 s[32:39], s[0:1], 64
    s_load_dwordx2 s[40:41], s[0:1], 96
    s_load_dwordx2 s[42:43], s[0:1], 112
    v_lshrrev_b32 v2, 6, v0
    v_and_b32 v1, 63, v0
    s_and_b32 s4, s2, 7
    v_readfirstlane_b32 s3, v2
    s_lshr_b32 s5, s2, 3
    v_mov_b32 v3, 0
    """)
    if stamps:
        A("v_mov_b32 v127, 0\ns_memrealtime s[98:99]")
    A(f"""
    s_cmp_lg_u32 s5, 24
    s_cbranch_scc1 L_nopf
    s_getpc_b64 s[44:45]
    L_pfbase:
    s_sub_u32 s44, s44, L_pfbase-{NAME}_kernel
    s_subb_u32 s45, s45, 0
    v_lshlrev_b32 v4, 7, v0
    v_cmp_gt_u32 vcc, L_codeend-{NAME}_kernel, v4
    s_and_saveexec_b64 s[46:47], vcc
    s_cbranch_execz L_pfd
    global_load_dword v5, v4, s[44:45]
    L_pfd:
    s_mov_b64 exec, -1
    L_nopf:
    s_cmp_lt_u32 s5, 16
    s_cbranch_scc1 L_A
    {'s_branch L_exit' if diag & 32 else ''}
    s_sub_u32 s5, s5, 16                  ; u
    s_sub_u32 s55, s2, {25*8}
    s_min_u32 s47, s4, 4
    s_lshl_b32 s48, s4, 2
    s_add_u32 s47, s47, s48
    s_add_u32 s47, s47, s5
    s_sub_u32 s47, s47, 9
    s_mul_i32 s48, s47, 0xe39
    s_lshr_b32 s48, s48, 16               ; ksp
    s_mul_i32 s49, s48, 18
    s_sub_u32 s49, s47, s49               ; cgp
    s_mul_i32 s50, s48, {288*6912}
    s_lshl_b32 s51, s49, 7
    s_add_u32 s50, s50, s51               ; M offset
    s_lshl_b32 s51, s4, 3
    s_add_u32 s51, s51, s5                ; qb
    s_lshl_b32 s52, s51, 7                ; B offset
    v_lshrrev_b32 v4, 3, v1
    v_bfe_u32 v6, v1, 4, 2
    v_lshlrev_b32 v6, 1, v6
    v_and_b32 v7, 7, v1
    v_xor_b32 v6, v6, v7
    s_movk_i32 s53, 6912
    s_cmp_lt_u32 s5, 8
    s_cselect_b32 s50, s52, s50
    s_cselect_b32 s53, 8192, s53          ; stride
    s_cselect_b32 s54, 72, 36             ; count
    s_mul_i32 s10, s53, 576
    s_cselect_b32 s47, s51, s47
    s_cselect_b32 s55, 0, s55
    v_mul_u32_u24 v14, s53, v4
    v_lshl_add_u32 v14, v6, 4, v14
    v_add_u32 v15, s50, v14
    s_mov_b32 s11, 0x20000
    s_lshl_b32 s53, s53, 3
    s_mul_i32 s44, s3, s53
    s_lshl_b32 s53, s53, 4
    s_lshl_b32 s45, s3, 10
    s_mov_b32 s46, s3
    s_cmp_lt_u32 s5, 8
    s_waitcnt lgkmcnt(0)
    s_cselect_b32 s8, s{WQ_}, s{WM_}
    s_cselect_b32 s9, s{WQ_+1}, s{WM_+1}
    s_and_b32 s9, s9, 0xffff
    s_cmp_ge_u32 s55, 36
    s_cbranch_scc1 L_W_nodma
    L_W_dma:
    s_mov_b32 m0, s45
    s_add_u32 s45, s45, 16384
    buffer_load_dwordx4 v15, s[8:11], s44 offen{NT} lds
    s_add_u32 s44, s44, s53
    s_add_u32 s46, s46, 16
    s_cmp_lt_u32 s46, s54
    s_cbranch_scc1 L_W_dma
    L_W_nodma:
    s_load_dword s6, {sp(WS_)}, {WS_EPOCH}
    s_branch L_W
    """)
    A(f"""
    L_A:
    """)
    if ordr:
        t0_, t1_ = {1: (0xd8, 0xd8), 2: (0xe4, 0xd2), 3: (0xd8, 0xd2)}[ordr]
        A(f"""
        s_bitcmp1_b32 s5, 0
        s_movk_i32 s44, {t0_}
        s_cselect_b32 s44, {t1_}, s44
        s_lshr_b32 s45, s3, 2
        s_lshl_b32 s45, s45, 1
        s_lshr_b32 s44, s44, s45
        s_and_b32 s44, s44, 3
        s_and_b32 s3, s3, 3
        s_lshl_b32 s44, s44, 2
        s_or_b32 s3, s3, s44
        """)
    A(f"""
    v_mov_b32 v4, {AL}
    v_lshl_add_u32 v5, v1, 2, v4
    ds_write_b32 v5, v3 offset:{L_CNT}
    s_lshr_b32 s44, s5, 3
    s_lshl_b32 s45, s4, 1
    s_add_u32 s46, s45, s44            ; hkv
    s_bfe_u32 s47, s5, 0x10002          ; b
    s_and_b32 s48, s5, 3                ; sp
    s_lshl_b32 s49, s47, 4
    s_add_u32 s49, s49, s46             ; b*16+hkv
    s_lshl_b32 s49, s49, 21
    s_lshl_b32 s50, s48, {SP}
    s_add_u32 s49, s49, s50
    s_add_u32 s49, s49, {6144*256}
    s_bfe_u32 s51, s3, 0x10002            ; g
    s_and_b32 s44, s3, 3
    s_lshl_b32 s50, s51, {CH+1}
    s_add_u32 s49, s49, s50
    s_lshl_b32 s50, s44, {BL}
    s_add_u32 s49, s49, s50
    s_lshl_b32 s45, s51, 3
    s_add_u32 s48, s44, s45
    v_and_b32 v9, 3, v1
    v_mov_b32 v7, 1
    s_cmp_ge_u32 s3, 8
    s_cbranch_scc1 L_AV
    s_add_u32 s49, s49, 4096
    v_bfe_u32 v5, v1, 2, 2
    v_lshlrev_b32 v5, 8, v5
    v_and_b32 v6, 48, v1
    v_lshl_or_b32 v5, v6, 2, v5
    v_lshl_or_b32 v5, v9, 4, v5
    s_waitcnt lgkmcnt(0)
    s_load_dword s6, {sp(WS_)}, {WS_EPOCH}
    s_add_u32 s52, s{K_}, s49
    s_addc_u32 s53, s{K_+1}, 0
    s_add_u32 s54, s52, {1 << CH}
    s_addc_u32 s55, s53, 0
    """)
    if adelay: A("s_waitcnt lgkmcnt(0)")
    A("s_barrier")
    for t in range(16):
        A(f"global_load_dwordx4 {vr(32+4*t,4)}, v5, s[{52+2*(t>>3)}:{53+2*(t>>3)}] offset:{(t&7)*1024-4096}{NT}")
    if stamps: A("s_waitcnt lgkmcnt(0)\nv_writelane_b32 v127, s98, 0")
    A.stamp(1)
    A(f"""
    v_bfe_u32 v8, v1, 2, 1
    v_lshlrev_b32 v8, 8, v8
    v_lshl_or_b32 v8, v6, 2, v8
    v_lshl_or_b32 v8, v9, 4, v8
    v_add_u32 v8, v4, v8
    v_bfe_u32 v11, v1, 4, 1
    v_mul_u32_u24 v10, {PSTR}, v11
    v_and_b32 v12, 1, v1
    v_lshl_add_u32 v10, v12, 5, v10
    v_lshrrev_b32 v13, 5, v1
    v_lshl_add_u32 v10, v13, 4, v10
    v_bfe_u32 v13, v1, 1, 1
    v_lshl_add_u32 v10, v13, 3, v10
    v_bfe_u32 v13, v1, 2, 2
    v_lshl_add_u32 v10, v13, 1, v10
    s_lshl_b32 s44, s48, 6
    s_add_u32 s44, s44, {AL + L_P}
    v_add_u32 v10, s44, v10
    v_mul_u32_u24 v12, {PSTR}, v12
    v_add3_u32 v12, v12, v6, v4
    v_lshl_add_u32 v11, v11, 5, v4
    v_and_b32 v13, 7, v1
    v_lshl_add_u32 v13, v13, 2, v11
    s_lshl_b32 s44, s3, 2
    v_add_u32 v11, s44, v11
    v_bfe_u32 v14, v1, 2, 3
    v_xor_b32 v14, s3, v14
    v_lshlrev_b32 v14, 5, v14
    v_lshrrev_b32 v15, 2, v1
    v_lshl_or_b32 v14, v15, 8, v14
    v_lshl_or_b32 v14, v9, 3, v14
    v_add_u32 v15, 0x10000, v14
    s_mov_b32 s58, 0x22222222
    s_mov_b32 s59, 0x22222222
    s_mov_b32 s60, 0x44444444
    s_mov_b32 s61, 0x44444444
    s_mov_b32 s62, 0x88888888
    s_mov_b32 s63, 0x88888888
    s_lshl_b32 s44, s47, 14
    s_lshl_b32 s45, s46, 10
    s_add_u32 s44, s44, s45
    s_lshl_b32 s45, s3, 7
    s_add_u32 s44, s44, s45
    s_add_u32 s44, s44, {WS_QG}
    s_add_u32 s56, s{WS_}, s44
    s_addc_u32 s57, s{WS_+1}, 0
    s_lshl_b32 s50, s4, 4
    s_add_u32 s50, s50, s5
    s_lshl_b32 s50, s50, 10
    s_add_u32 s50, s50, s45
    s_add_u32 s50, s50, {WS_OG}
    v_lshl_add_u32 v6, v1, 3, s50
    s_waitcnt lgkmcnt(0)
    """)
    A.mktag()
    A(f"""
    s_add_u32 s52, s56, {WS_QL - WS_QG}
    s_addc_u32 s53, s57, 0
    s_mov_b32 s7, {0 if ql else 16}
    s_waitcnt vmcnt(0)
    L_A_qpoll:
    s_add_u32 s7, s7, 1
    s_cmp_gt_u32 s7, {SPIN}
    s_cbranch_scc1 L_end
    s_cmp_gt_u32 s7, 16
    s_cbranch_scc1 L_A_qg
    s_load_dwordx16 s[64:79], s[52:53], 0
    s_load_dwordx16 s[80:95], s[52:53], 64
    s_add_u32 s52, s52, 32768
    s_addc_u32 s53, s53, 0
    s_branch L_A_qc
    L_A_qr:
    s_sleep {qs}
    s_branch L_A_qpoll
    L_A_qg:
    s_load_dwordx16 s[64:79], s[56:57], 0 glc
    s_load_dwordx16 s[80:95], s[56:57], 64 glc
    L_A_qc:
    s_waitcnt lgkmcnt(0)
    """)
    for i in range(16):
        A(f"s_cmp_lg_u32 s{65+2*i}, {TAG}\ns_cbranch_scc1 L_A_qr")
    A("s_mov_b64 exec, 1")
    for i in range(16):
        A(f"v_mov_b32 v{96+i}, s{64+2*i}")
    A(f"s_lshl_b32 s44, s3, 6\nv_add_u32 v20, s44, v4")
    for i in range(4):
        A(f"ds_write_b128 v20, {vr(96+4*i,4)} offset:{L_Q+16*i}")
    A(f"""
    ds_add_u32 v4, v7 offset:{L_CNT}
    s_mov_b64 exec, -1
    s_mov_b32 s56, 0xff00ff00
    s_mov_b32 s57, 0xff00ff00
    """)
    A.lds_spin(L_CNT, 8, "v16", "v4", sleep=False)
    A.stamp(2)
    A(f"ds_read_b128 v[20:23], v8 offset:{L_Q}\ns_waitcnt lgkmcnt(0)")
    for i in range(4):
        A(f"v_cndmask_b32 v{24+i}, 0, v{20+i}, s[56:57]")
        A(f"v_cndmask_b32 v{20+i}, v{20+i}, 0, s[56:57]")
    A("s_waitcnt vmcnt(0)\ns_nop 0")
    D = [96, 32]
    for z in range(2):
        for u in range(4):
            A(f"v_mfma_f32_16x16x32_bf16 {vr(D[z]+4*u,4)}, v[20:23], {vr(32+32*z+8*u,4)}, 0")
        for u in range(4):
            A(f"v_mfma_f32_16x16x32_bf16 {vr(D[z]+4*u,4)}, v[24:27], {vr(36+32*z+8*u,4)}, {vr(D[z]+4*u,4)}")
    for z in range(2):
        t = 112 + 4*z
        for u in range(4):
            A(f"v_mov_b32_dpp v{t+u}, v{D[z]+4*u} quad_perm:[0,0,0,0] {DPPM}")
        for c in range(1, 4):
            for u in range(4):
                A(f"v_add_f32_dpp v{t+u}, v{D[z]+4*u+c}, v{t+u} quad_perm:[{c},{c},{c},{c}] {DPPM}")
    A.stamp(3)
    for k, m in ((1, 58), (2, 60), (3, 62)):
        A(f"v_cndmask_b32 v112, v112, v{112+k}, s[{m}:{m+1}]\nv_cndmask_b32 v116, v116, v{116+k}, s[{m}:{m+1}]")
    A.r1("v112", "v116")
    A("v_mul_f32 v112, 0x3db504f3, v112\nv_mul_f32 v116, 0x3db504f3, v116")
    A.r1("v112", "v116")
    A("v_max_f32 v113, v112, v116")
    A.row_reduce("v_max_f32", ["v113"])
    A(f"""
    v_mov_b32 v114, v113
    s_mov_b32 s56, 0x10001
    s_mov_b32 s57, 0
    v_permlane32_swap_b32 v113, v114
    v_max_f32 v113, v113, v114
    s_mov_b64 exec, s[56:57]
    ds_write_b32 v11, v113 offset:{L_MX}
    s_mov_b64 exec, 1
    ds_add_u32 v4, v7 offset:{L_CNT+4}
    s_mov_b64 exec, -1
    v_mul_f32 v112, {hex(LOG2E)}, v112
    v_mul_f32 v116, {hex(LOG2E)}, v116
    """)
    A.lds_spin(L_CNT+4, 8, "v16", "v4", sleep=False)
    A(f"ds_read_b32 v113, v13 offset:{L_MX}\ns_mov_b32 s45, {hex(LOG2E)}\ns_waitcnt lgkmcnt(0)")
    A.row_reduce("v_max_f32", ["v113"], steps=3)
    A(f"""
    v_fma_f32 v112, -v113, s45, v112
    v_fma_f32 v116, -v113, s45, v116
    v_exp_f32 v112, v112
    v_exp_f32 v116, v116
    s_nop 0
    v_cvt_pk_bf16_f32 v115, v112, v116
    ds_write_b16 v10, v115
    ds_write_b16_d16_hi v10, v115 offset:256
    s_mov_b64 exec, 1
    ds_add_u32 v4, v7 offset:{L_CNT+8}
    s_mov_b64 exec, -1
    v_add_f32 v112, v112, v116
    """)
    A.row_reduce("v_add_f32", ["v112"])
    A(f"""
    v_mov_b32 v114, v112
    s_nop 1
    v_permlane32_swap_b32 v112, v114
    v_add_f32 v112, v112, v114
    s_mov_b64 exec, s[56:57]
    ds_write_b32 v11, v112 offset:{L_LS}
    s_mov_b64 exec, 1
    ds_add_u32 v4, v7 offset:{L_CNT+12}
    s_mov_b64 exec, -1
    """)
    A.lds_spin(L_CNT+8, 8, "v16", "v4", sleep=False)
    A.stamp(4)
    A(f"ds_read_b128 v[116:119], v4 offset:{L_CNT+16}")
    for ks in range(16):
        A(f"ds_read_b128 {vr(32+4*ks,4)}, v12 offset:{L_P + ks*64}")
    A("s_waitcnt lgkmcnt(15)\ns_waitcnt lgkmcnt(15)")
    for L in range(4): A(f"v_readfirstlane_b32 s{64+L}, v{116+L}")
    SET = [96, 16]
    def vreads(L):
        for k in range(4):
            ks = 4*L + k
            for half in range(2):
                A(f"ds_read_b64_tr_b16 {vr(SET[L&1]+4*k+2*half,2)}, {'v14' if ks < 8 else 'v15'} offset:{(ks&7)*8192 + half*4096}")
    def vmfma(L):
        for k in range(4):
            c = "0" if (L == 0 and k == 0) else "v[112:115]"
            A(f"v_mfma_f32_16x16x32_bf16 v[112:115], {vr(32+4*(4*L+k),4)}, {vr(SET[L&1]+4*k,4)}, {c}")
    A("s_cmp_ge_u32 s64, 4\ns_cbranch_scc1 L_A_v0")
    A.lds_spin(L_CNT+16, 4, "v120", "v4", sleep=False)
    A("L_A_v0:")
    vreads(0)
    for L in range(1, 4):
        A(f"s_cmp_ge_u32 s{64+L}, 4\ns_cbranch_scc0 L_A_vn{L}")
        vreads(L)
        A("s_waitcnt lgkmcnt(8)")
        vmfma(L-1)
        A(f"s_branch L_A_vd{L}\nL_A_vn{L}:\ns_waitcnt lgkmcnt(0)")
        vmfma(L-1)
        A.lds_spin(L_CNT+16+4*L, 4, "v120", "v4", sleep=False)
        vreads(L)
        A(f"L_A_vd{L}:")
    for k in range(4):
        A(f"s_waitcnt lgkmcnt({6-2*k})")
        A(f"v_mfma_f32_16x16x32_bf16 v[112:115], {vr(32+4*(12+k),4)}, {vr(SET[1]+4*k,4)}, v[112:115]")
    A("s_mov_b64 exec, 0xffff\ns_nop 6")
    A.epack("v116", "v112"); A.epack("v117", "v113")
    A.dual_store("global_store_dwordx2", "v6", "v[116:117]")
    A("s_mov_b64 exec, -1")
    A.stamp(6)
    A("s_branch L_end")
    A(f"""
    L_AV:
    s_lshl_b32 s45, s48, 13
    s_mov_b32 s44, s49                    ; soffset
    v_lshrrev_b32 v5, 4, v1
    v_lshlrev_b32 v6, 1, v5
    v_and_b32 v8, 15, v1
    v_xor_b32 v6, v6, v8
    v_lshlrev_b32 v6, 4, v6
    v_lshl_or_b32 v5, v5, 8, v6
    v_xor_b32 v6, 128, v5
    s_waitcnt lgkmcnt(0)
    s_load_dword s6, {sp(WS_)}, {WS_EPOCH}
    """)
    A.srd(8, V_, 0x4000000)
    A("s_barrier")
    for hf in range(2):
        for q4 in range(2):
            A("s_mov_b32 m0, s45\ns_nop 0")
            for n in range(4):
                A(f"buffer_load_dwordx4 {'v6' if n & 1 else 'v5'}, s[8:11], s44 offen offset:{n*1024}{NT} lds")
            if q4 == 0: A("s_add_u32 s45, s45, 4096\ns_add_u32 s44, s44, 4096")
            elif hf == 0: A(f"s_add_u32 s45, s45, {4*8192 - 4096}\ns_add_u32 s44, s44, {(1 << CH) - 4096}")
    if stamps: A("s_waitcnt lgkmcnt(0)\nv_writelane_b32 v127, s98, 0")
    A.stamp(1)
    if pf:
        A(f"""
        s_cmp_lt_u32 s3, 11
        s_cbranch_scc1 L_AV_np
        s_mul_i32 s45, s5, 5
        s_add_u32 s45, s45, s3
        s_lshl_b32 s50, s45, 6
        s_sub_u32 s50, s50, {10*64}
        s_lshl_b32 s44, s51, 3
        v_add_u32 v5, s44, v4
        v_add_u32 v20, s50, v1
        v_mul_u32_u24 v21, 0x1c72, v20
        v_lshrrev_b32 v21, 16, v21
        v_mul_u32_u24 v22, 9, v21
        v_sub_u32 v22, v20, v22
        v_mul_u32_u24 v21, 9216, v21
        v_lshl_add_u32 v21, v22, 7, v21
        s_mul_i32 s50, s4, 1152
        v_add_u32 v21, s50, v21
        global_load_dword v29, v21, {sp(W1_)}{NT}
        s_mov_b64 exec, 1
        s_waitcnt vmcnt(9)
        ds_add_u32 v5, v7 offset:{L_CNT+16}
        s_waitcnt vmcnt(1)
        ds_add_u32 v5, v7 offset:{L_CNT+20}
        s_mov_b64 exec, -1
        """)
        A.stamp(5)
        A("s_waitcnt vmcnt(0) lgkmcnt(0)\ns_branch L_end\nL_AV_np:")
    A(f"""
    s_lshl_b32 s44, s51, 3
    v_add_u32 v5, s44, v4
    s_mov_b64 exec, 1
    s_waitcnt vmcnt(8)
    ds_add_u32 v5, v7 offset:{L_CNT+16}
    s_waitcnt vmcnt(0)
    ds_add_u32 v5, v7 offset:{L_CNT+20}
    s_mov_b64 exec, -1
    """)
    A.stamp(5)
    A(f"""
    s_waitcnt lgkmcnt(0)
    s_cmp_lg_u32 s3, 8
    s_cbranch_scc1 L_end
    v_bfe_u32 v11, v1, 4, 1
    v_lshl_add_u32 v11, v11, 5, v4
    v_and_b32 v13, 7, v1
    v_lshl_add_u32 v13, v13, 2, v11
    s_lshl_b32 s50, s4, 4
    s_add_u32 s50, s50, s5
    s_lshl_b32 s50, s50, 7
    s_add_u32 s50, s50, {WS_MLG}
    v_mov_b32 v24, s50
    """)
    A.mktag()
    A.lds_spin(L_CNT+12, 8, "v16", "v4")
    A(f"ds_read_b32 v20, v13 offset:{L_MX}\nds_read_b32 v21, v13 offset:{L_LS}\ns_waitcnt lgkmcnt(0)")
    for ctl in ("quad_perm:[1,0,3,2]", "quad_perm:[2,3,0,1]", "row_half_mirror"):
        A(f"s_nop 0\nv_max_f32_dpp v20, v20, v20 {ctl} {DPPM}\nv_add_f32_dpp v21, v21, v21 {ctl} {DPPM}")
    A("""
    v_mov_b32 v22, v20
    v_mov_b32 v23, v21
    s_nop 0
    v_permlane16_swap_b32 v20, v22
    v_permlane16_swap_b32 v21, v23
    """)
    for r in range(20, 24): A.epack(f"v{r}", f"v{r}")
    A("s_mov_b64 exec, 1")
    A.dual_store("global_store_dwordx4", "v24", "v[20:23]")
    A("s_mov_b64 exec, -1")
    A.stamp(7)
    A("s_branch L_end")

    A("L_W:")
    if stamps: A("v_writelane_b32 v127, s98, 0")
    A.stamp(1)
    A(f"""
    v_mov_b32 v18, {L_WCNT}
    ds_write2_b32 v18, v3, v3 offset1:1
    ds_write_b32 v18, v3 offset:8
    v_lshrrev_b32 v8, 5, v0
    v_lshlrev_b32 v8, 6, v8
    v_bfe_u32 v9, v0, 2, 2
    v_lshl_or_b32 v8, v9, 4, v8
    v_bfe_u32 v9, v0, 4, 1
    v_lshl_or_b32 v8, v9, 3, v8
    v_and_b32 v9, 3, v0
    v_lshl_or_b32 v8, v9, 1, v8
    v_add_u32 v8, {L_ACT}, v8
    s_and_b32 s46, s3, 3
    v_bfe_u32 v10, v1, 3, 2
    v_xor_b32 v10, s46, v10
    v_lshlrev_b32 v10, 5, v10
    v_lshrrev_b32 v11, 2, v1
    v_lshl_or_b32 v10, v11, 7, v10
    v_lshl_or_b32 v10, v9, 3, v10
    v_and_b32 v11, 48, v1
    v_add_u32 v11, {L_ACT}, v11
    v_and_b32 v12, 1, v1
    v_mul_u32_u24 v12, {4*ASTR}, v12
    v_add_u32 v12, v11, v12
    v_and_b32 v13, 4, v1
    v_mul_u32_u24 v13, {ASTR}, v13
    v_add_u32 v13, v11, v13
    v_mov_b32 v17, 1
    s_cmp_eq_u32 s5, 8
    s_cbranch_scc1 L_KT
    s_cbranch_scc0 L_Wd
    L_Wd:
    s_cmp_gt_u32 s5, 8
    s_cbranch_scc1 L_M
    s_waitcnt lgkmcnt(0)
    """)
    A.mktag()
    A(f"""
    s_barrier
    {'s_waitcnt vmcnt(0)' + chr(10) + 's_branch L_end' if diag & 4 else ''}
    s_cmp_ge_u32 s3, 9
    s_cbranch_scc1 L_B_nh
    s_mul_i32 s44, s4, 4608
    s_add_u32 s44, s44, {WS_HL}
    v_lshl_add_u32 v15, v0, 3, s44
    global_load_dwordx2 v[24:25], v15, {sp(WS_)} sc1
    s_waitcnt vmcnt(0)
    """)
    A.lds_inc(0, "v18", "v17")
    A.stamp(2)
    if nb1: vtail(nb1, 2, 0)
    A("s_mov_b32 s7, 0\ns_branch L_B_chk")
    A.dual_head("L_B_h", ["v15"], init=False)
    A(f"s_sleep {ps}")
    A(f"global_load_dwordx2 v[24:25], v15, {sp(WS_)} sc1\ns_waitcnt vmcnt(0)\nL_B_chk:")
    A.tagcheck(["v25"], None, None, "L_B_h")
    A(f"""
    ds_write_b16 v8, v24
    ds_write_b16_d16_hi v8, v24 offset:{4*ASTR}
    s_waitcnt lgkmcnt(0)
    """)
    A.stamp(3)
    A(f"""
    s_barrier
    s_branch L_S5
    L_B_nh:
    """)
    if ql:
        A(f"""
        s_cmp_lg_u32 s3, 9
        s_cbranch_scc1 L_B_npt
        v_lshrrev_b32 v15, 1, v1
        v_lshlrev_b32 v15, 14, v15            ; (replica*2+b)*16384
        v_and_b32 v16, 1, v1
        v_lshl_or_b32 v15, v16, 7, v15
        s_lshl_b32 s44, s47, 8
        s_add_u32 s44, s44, {WS_QL}
        v_add_u32 v15, s44, v15
        global_load_dword v16, v15, {sp(WS_)} sc1
        L_B_npt:
        """)
    A("s_waitcnt vmcnt(0)")
    A.lds_inc(0, "v18", "v17")
    A(f"""
    s_cmp_ge_u32 s3, 12
    s_cbranch_scc1 L_B_m
    s_waitcnt lgkmcnt(0)
    s_barrier
    s_branch L_S5
    L_B_m:
    """)
    A.lds_spin(0, 16, "v16", "v18")
    A.stamp(2)
    A("v_mov_b32 v15, v10")
    bfrags(A, "v15")
    A(f"""
    s_lshl_b32 s44, s47, 8
    s_lshl_b32 s45, s46, 6
    s_add_u32 s44, s44, s45
    s_add_u32 s44, s44, {WS_QG}
    v_and_b32 v15, 15, v1
    v_lshlrev_b32 v15, 2, v15
    v_bfe_u32 v16, v1, 4, 1
    v_lshl_or_b32 v15, v16, 14, v15
    v_add_u32 v15, s44, v15
    v_and_b32 v16, -8, v15
    v_and_b32 v17, 1, v1
    v_lshl_add_u32 v16, v17, 15, v16
    v_lshrrev_b32 v17, 5, v1
    v_lshl_add_u32 v16, v17, 16, v16
    v_add_u32 v16, {WS_QL - WS_QG}, v16
    s_waitcnt lgkmcnt(0)
    s_barrier
    """)
    gemv_mfma(A, "v13")
    A(f"""
    s_nop 7
    v_mov_b32_dpp v21, v20 quad_perm:[1,1,3,3] {DPPM}
    v_mov_b32_dpp v20, v20 quad_perm:[0,0,2,2] {DPPM}
    v_mov_b32 v23, {TAG}
    v_cvt_pk_bf16_f32 v22, v20, v21
    """)
    if ql:
        for i in range(4):
            A(f"global_store_dwordx2 v16, v[22:23], {sp(WS_)}")
            if i < 3: A(f"v_add_u32 v16, {4*32768}, v16")
    A(f"""
    s_mov_b32 exec_lo, 0x55555555
    s_mov_b32 exec_hi, 0
    global_store_dwordx2 v15, v[22:23], {sp(WS_)} sc1
    s_mov_b64 exec, -1
    """)
    A.stamp(4)
    A("s_branch L_S5")

    A(f"""
    L_M:
    s_cmp_ge_u32 s3, 9
    s_cbranch_scc1 L_M_bar0
    v_lshlrev_b32 v15, 1, v0
    global_load_ushort v16, v15, {sp(C_)}
    global_load_ushort v17, v15, {sp(C_)} offset:1152
    s_waitcnt vmcnt(0)
    v_lshlrev_b32 v16, 16, v16
    v_lshlrev_b32 v17, 16, v17
    v_mul_f32 v34, 0xbfb8aa3b, v16
    v_mul_f32 v35, 0xbfb8aa3b, v17
    v_exp_f32 v34, v34
    v_exp_f32 v35, v35
    s_nop 0
    v_add_f32 v34, 1.0, v34
    v_add_f32 v35, 1.0, v35
    v_rcp_f32 v34, v34
    v_rcp_f32 v35, v35
    s_nop 0
    v_mul_f32 v16, v16, v34
    v_mul_f32 v17, v17, v35
    v_cvt_pk_bf16_f32 v16, v16, v17
    ds_write_b16 v8, v16
    ds_write_b16_d16_hi v8, v16 offset:{4*ASTR}
    L_M_bar0:
    s_mul_i32 s44, s48, 576
    v_add_u32 v15, s44, v12
    s_mul_i32 s44, s48, {AGS}
    s_lshl_b32 s45, s49, 9
    s_add_u32 s44, s44, s45
    s_lshl_b32 s45, s46, 7
    s_add_u32 s44, s44, s45
    s_add_u32 s44, s44, {WS_AG}
    v_lshl_add_u32 v18, v1, 3, s44
    s_waitcnt vmcnt(0) lgkmcnt(0)
    """)
    A.mktag()
    A("s_barrier")
    A.stamp(2)
    A("s_cmp_lt_u32 s3, 12\ns_cbranch_scc1 L_M_bar1\ns_cmp_ge_u32 s55, 36\ns_cbranch_scc1 L_M_bar1")
    bfrags(A, "v10", 52, 9)
    gemv_mfma(A, "v15", nks=9)
    A("s_mov_b64 exec, 0xffff\ns_nop 6\nv_add_u32 v20, 4, v20\nv_add_u32 v21, 4, v21")
    A.epack("v22", "v20", 7); A.epack("v23", "v21", 7)
    A(f"global_store_dwordx2 v18, v[22:23], {sp(WS_)} sc1\ns_mov_b64 exec, -1")
    A.stamp(3)
    A(f"""
    L_M_bar1:
    s_sub_u32 s44, s5, 9
    s_lshl_b32 s50, s44, 1                ; slot0 = 2(u-9)
    s_add_u32 s51, s50, 1
    s_add_u32 s45, s4, 44
    s_cmp_ge_u32 s4, 4
    s_cselect_b32 s45, s45, 255
    s_cmp_eq_u32 s5, 13
    s_cselect_b32 s51, s45, s51
    s_lshl_b32 s44, s4, 1
    s_add_u32 s44, s44, s5
    s_lshl_b32 s44, s44, 1
    s_sub_u32 s44, s44, {28 - 16}
    s_add_u32 s45, s44, 1
    s_cmp_ge_u32 s5, 14
    s_cselect_b32 s50, s44, s50
    s_cselect_b32 s51, s45, s51
    v_mul_u32_u24 v19, 1152, v4
    v_lshl_add_u32 v19, v6, 4, v19
    s_mul_i32 s44, s4, {512*1152}
    v_add_u32 v19, s44, v19
    """)
    A.srd(12, WO_, 4096*1152)
    A("s_barrier")
    if pt:
        A(f"""
        s_cmp_ge_u32 s3, 3
        s_cbranch_scc1 L_M_pt
        s_cmp_lg_u32 s5, 13
        s_cbranch_scc1 L_M_pt
        s_lshl_b32 s44, s4, 14
        s_lshl_b32 s45, s3, 13
        s_add_u32 s44, s44, s45
        s_add_u32 s44, s44, {WS_OG}
        s_lshl_b32 s45, s4, 11
        s_add_u32 s45, s45, {WS_MLG}
        s_cmp_eq_u32 s3, 2
        s_cselect_b32 s44, s45, s44
        s_cselect_b32 s45, 15, 63
        v_and_b32 v16, s45, v1
        v_lshl_add_u32 v16, v16, 7, s44
        global_load_dword v20, v16, {sp(WS_)} sc1
        L_M_pt:
        """)
    for sl, (reg, buf) in enumerate((("s50", L_BUF0), ("s51", L_BUF1))):
        A(f"""
        s_lshl_b32 s52, {reg}, 7
        s_cmp_ge_u32 {reg}, 16
        s_cbranch_scc1 L_sl{sl}_m
        v_add_u32 v16, s52, v19
        """)
        dma_tile(A, 12, "v16", 1152, buf, 64)
        A(f"""
        s_branch L_sl{sl}_d
        L_sl{sl}_m:
        s_cmp_eq_u32 {reg}, 255
        s_cbranch_scc1 L_sl{sl}_d
        s_add_u32 s52, s52, {2304 - 16*128}
        v_add_u32 v16, s52, v14
        """)
        dma_tile(A, 8, "v16", 6912, buf, 72)
        A(f"L_sl{sl}_d:")
    A("s_waitcnt vmcnt(0)\ns_barrier")
    A.stamp(4)
    if diag & 8: A("s_branch L_end")
    A(f"""
    s_cmp_lt_u32 s3, 8
    s_cbranch_scc1 L_H_p
    s_cmp_ge_u32 s3, 12
    s_cselect_b32 s50, s51, s50
    s_cselect_b32 s44, {L_BUF1}, 0
    v_add_u32 v17, s44, v10
    s_cmp_lt_u32 s50, 16
    s_cbranch_scc1 L_A_s4m
    s_cmp_eq_u32 s50, 255
    s_cbranch_scc1 L_H_x
    s_lshl_b32 s44, s50, 9
    s_lshl_b32 s45, s46, 7
    s_add_u32 s44, s44, s45
    s_add_u32 s44, s44, {WS_MG - 16*512}
    v_lshl_add_u32 v18, v1, 3, s44
    """)
    bfrags(A, "v17")
    gemv_mfma(A, "v12")
    A(f"""
    s_mov_b64 exec, 0xffff
    s_nop 6
    v_cvt_pk_bf16_f32 v22, v20, v21
    v_mov_b32 v23, {TAG}
    global_store_dwordx2 v18, v[22:23], {sp(WS_)} sc1
    s_mov_b64 exec, -1
    """)
    A.stamp(5)
    A(f"""
    L_H_x:
    s_cmp_eq_u32 s5, 15
    s_cbranch_scc1 L_XR
    s_branch L_end
    L_H_p:
    s_cmp_ge_u32 s5, 14
    s_cbranch_scc1 L_H_x
    """)
    if trig:
        A(f"""
        s_cmp_lg_u32 s3, 0
        s_cbranch_scc1 L_M_tr
        s_lshl_b32 s52, s4, 3
        s_add_u32 s52, s52, s5
        s_lshl_b32 s52, s52, 7
        s_add_u32 s52, s52, {WS_TR - 9*128}
        v_mov_b32 v20, s52
        v_mov_b32 v19, {TAG}
        global_store_dword v20, v19, {sp(WS_)}
        L_M_tr:
        """)
    A(f"""
    s_lshl_b32 s50, s4, 4
    s_lshr_b32 s45, s3, 1
    s_lshl_b32 s45, s45, 2
    s_add_u32 s50, s50, s45
    s_and_b32 s44, s3, 1                  ; dh
    s_lshl_b32 s51, s50, 7
    s_add_u32 s51, s51, {WS_MLG}
    v_mov_b32 v18, s51
    s_lshl_b32 s51, s50, 10
    s_lshl_b32 s45, s44, 9
    s_add_u32 s51, s51, s45
    s_add_u32 s51, s51, {WS_OG}
    v_lshl_add_u32 v17, v1, 3, s51
    s_bfe_u32 s45, s3, 0x10001
    s_mul_i32 s45, s45, {ASTR}
    s_lshr_b32 s51, s3, 2
    s_lshl_b32 s51, s51, 9
    s_add_u32 s45, s45, s51
    s_and_b32 s51, s3, 6
    s_lshl_b32 s51, s51, 7
    s_sub_u32 s45, s45, s51
    s_add_u32 s45, s45, {ASTR}
    v_add_u32 v19, s45, v8
    s_lshl_b32 s45, s4, 2
    s_add_u32 s45, s45, {WS_FL}
    v_lshl_add_u32 v40, v0, 7, s45
    v_mov_b32 v41, {TAG}
    """)
    def oloads():
        for s_ in range(4):
            A(f"global_load_dwordx2 {vr(32+2*s_,2)}, v17, {sp(WS_)} offset:{s_*1024} sc1")
    A.dual_head("L_A_ml", ["v17", "v18"])
    A(f"s_sleep {ps//2}")
    for s_ in range(4):
        A(f"global_load_dwordx4 {vr(48+4*s_,4)}, v18, {sp(WS_)} offset:{s_*128} sc1")
    oloads()
    A("s_waitcnt vmcnt(4)")
    A.etagcheck([f"v{48+i}" for i in range(16)], "v20", "L_A_ml")
    for h in range(2):
        A(f"v_max_f32 v{20+h}, v{48+2*h}, v{52+2*h}\nv_max3_f32 v{20+h}, v{56+2*h}, v{60+2*h}, v{20+h}")
    for s_ in range(4):
        for h in range(2): A(f"v_sub_f32 v{22+2*s_+h}, v{48+4*s_+2*h}, v{20+h}")
    for i in range(8): A(f"v_mul_f32 v{22+i}, {hex(LOG2E)}, v{22+i}")
    for i in range(8): A(f"v_exp_f32 v{22+i}, v{22+i}")
    for s_ in range(4):
        for h in range(2):
            A(f"{'v_mul_f32' if s_ == 0 else 'v_fmac_f32'} v{20+h}, v{22+2*s_+h}, v{49+4*s_+2*h}")
    A("v_rcp_f32 v20, v20\nv_rcp_f32 v21, v21\ns_nop 0")
    for i in range(8): A(f"v_mul_f32 v{22+i}, v{22+i}, v{20+(i&1)}")
    A.stamp(7)
    A("s_branch L_A_ochk")
    A.dual_head("L_A_h3", ["v17"], init=False)
    oloads()
    A("L_A_ochk:\ns_waitcnt vmcnt(0)")
    A.etagcheck([f"v{32+i}" for i in range(8)], "v20", "L_A_h3")
    A("v_mul_f32 v30, v22, v32\nv_mul_f32 v31, v23, v33")
    for s_ in range(1, 4):
        A(f"v_fmac_f32 v30, v{22+2*s_}, v{32+2*s_}\nv_fmac_f32 v31, v{23+2*s_}, v{33+2*s_}")
    A(f"""
    v_cvt_pk_bf16_f32 v30, v30, v31
    ds_write_b16 v19, v30
    ds_write_b16_d16_hi v19, v30 offset:256
    s_waitcnt lgkmcnt(0)
    s_barrier
    """)
    if fl:
        A(f"""
        s_cmp_lg_u32 s5, 9
        s_cbranch_scc1 L_H_nf
        s_cmp_gt_u32 s3, 1
        s_cbranch_scc1 L_H_nf
        v_cmp_gt_u32 vcc, 72, v0
        s_and_saveexec_b64 s[44:45], vcc
        global_store_dword v40, v41, {sp(WS_)} sc1
        s_mov_b64 exec, -1
        L_H_nf:
        """)
    A.stamp(8)
    A("s_branch L_end")
    A(f"""
    L_A_s4m:
    v_and_b32 v18, 1, v1
    v_mul_u32_u24 v18, {ASTR}, v18
    v_add_u32 v18, v18, v11
    v_add_u32 v18, {ASTR}, v18
    s_mul_i32 s45, s4, 4608
    s_lshl_b32 s44, s50, 9
    s_add_u32 s45, s45, s44
    s_lshl_b32 s44, s46, 7
    s_add_u32 s45, s45, s44
    s_add_u32 s45, s45, {WS_PX}
    v_lshl_add_u32 v19, v1, 3, s45
    {f's_mov_b64 exec, 0xffff' + chr(10) + f'global_load_dword v125, v19, {sp(WS_)} sc1' + chr(10) + 's_mov_b64 exec, -1' if ppt else ''}
    """)
    bfrags(A, "v17", 56, 16)
    A("s_waitcnt lgkmcnt(0)\ns_barrier")
    gemv_mfma(A, "v18", vb=56, depth=8, nks=16)
    A("s_mov_b64 exec, 0xffff\ns_nop 6")
    A.epack("v24", "v20"); A.epack("v25", "v21")
    A(f"global_store_dwordx2 v19, v[24:25], {sp(WS_)} sc1\ns_mov_b64 exec, -1")
    A.stamp(9)
    A("s_branch L_end")

    A("L_KT:\ns_waitcnt lgkmcnt(0)")
    A.mktag()
    A(f"""
    s_cmp_lt_u32 s3, 9
    s_cbranch_scc1 L_HR_go
    s_cmp_ge_u32 s3, {9 + hq}
    s_cbranch_scc1 L_S5
    s_lshr_b32 s44, s{WQ_}, 7
    s_sub_u32 s44, 3, s44
    s_and_b32 s44, s44, 7
    s_lshl_b32 s45, s4, 3
    s_add_u32 s44, s44, s45
    s_lshl_b32 s44, s44, 7
    s_sub_u32 s45, 24, s3
    v_lshlrev_b32 v15, 7, v4              ; (l>>3)*128 rows
    v_add_u32 v15, v15, v7
    s_lshl_b32 s45, s45, 3
    v_add_u32 v15, s45, v15               ; row = i*128 + w*8 + (l&7)
    v_subrev_u32 v16, {512 + 56}, v15
    v_cmp_gt_u32 vcc, 512, v15
    s_nop 1
    v_cndmask_b32 v15, v16, v15, vcc
    v_lshl_add_u32 v15, v15, 13, s44
    global_load_dword v125, v15, {sp(WQ_)}{NT}
    s_branch L_S5
    L_HR_go:
    v_lshlrev_b32 v15, 1, v0
    global_load_ushort v33, v15, {sp(X_)}
    global_load_ushort v34, v15, {sp(X_)} offset:1152
    s_mul_i32 s44, s4, 4608
    s_add_u32 s44, s44, {WS_HL}
    v_lshl_add_u32 v55, v0, 3, s44
    global_load_dword v57, v55, {sp(WS_)} sc1
    v_mul_u32_u24 v15, 36, v1
    global_load_dwordx4 v[24:27], v15, {sp(X_)}
    global_load_dwordx4 v[28:31], v15, {sp(X_)} offset:16
    global_load_dword v32, v15, {sp(X_)} offset:32
    v_lshlrev_b32 v15, 3, v0
    v_add_u32 v52, {WS_AG + 2304}, v15
    v_add_u32 v53, {WS_AG + 2304 + AGS}, v15
    """)
    def ag_loads():
        for k in range(2):
            A(f"global_load_dwordx2 {vr(40+4*k,2)}, v{52+k}, {sp(WS_)} offset:-2304 sc1")
            A(f"global_load_dwordx2 {vr(42+4*k,2)}, v{52+k}, {sp(WS_)} offset:2304 sc1")
    A(f"""
    s_mov_b32 s44, 0x3f803f80
    v_mov_b32 v35, 0
    v_mov_b32 v36, 0
    s_waitcnt vmcnt(0)
    v_mov_b32 v61, {TAG}
    """)
    for i in range(9):
        A(f"v_dot2_f32_bf16 v35, v{24+i}, s44, v35\nv_dot2_f32_bf16 v36, v{24+i}, v{24+i}, v36")
    A("s_nop 2")
    A.row_reduce("v_add_f32", ["v35", "v36"])
    A(f"""
    v_mov_b32 v37, v35
    v_mov_b32 v38, v36
    s_nop 0
    v_permlane16_swap_b32 v35, v37
    v_permlane16_swap_b32 v36, v38
    v_add_f32 v35, v35, v37
    v_add_f32 v36, v36, v38
    v_mul_f32 v35, {INV576}, v35
    v_mul_f32 v36, {INV576}, v36
    v_fma_f32 v36, -v35, v35, v36
    """)
    ln_finish(A, "v35", "v36", "v38")
    A("""
    v_readlane_b32 s48, v35, 0
    v_readlane_b32 s49, v35, 32
    v_readlane_b32 s50, v38, 0
    v_readlane_b32 s51, v38, 32
    v_lshlrev_b32 v33, 16, v33
    v_lshlrev_b32 v34, 16, v34
    v_subrev_f32 v33, s48, v33
    v_subrev_f32 v34, s49, v34
    """)
    A.r1("v33", "v34")
    A("v_mul_f32 v33, s50, v33\nv_mul_f32 v34, s51, v34")
    A.r1("v33", "v34")
    A("s_mov_b32 s7, 0")
    A(f"L_HR_h:\ns_add_u32 s7, s7, 1\ns_cmp_gt_u32 s7, {SPIN}\ns_cbranch_scc1 L_end\ns_sleep {ps}")
    ag_loads()
    A("s_waitcnt vmcnt(0)")
    A.etagcheck([f"v{40+i}" for i in range(8)], "v39", "L_HR_h", "s100", 7)
    for i in range(4): A(f"v_add_f32 v{40+i}, v{40+i}, v{44+i}")
    A.r1("v40", "v41", "v42", "v43")
    A("v_add_f32 v42, 1.0, v42\nv_add_f32 v43, 1.0, v43")
    A.r1("v42", "v43")
    A("v_mul_f32 v42, v33, v42\nv_mul_f32 v43, v34, v43")
    A.r1("v42", "v43")
    A(f"""
    v_add_f32 v42, v42, v40
    v_add_f32 v43, v43, v41
    v_cvt_pk_bf16_f32 v60, v42, v43
    """)
    A.dual_store("global_store_dwordx2", "v55", "v[60:61]")
    A.stamp(3)
    A("s_branch L_S5")
    A("L_XR:")
    if diag & 8: A("s_branch L_end")
    A(f"""
    v_lshlrev_b32 v16, 2, v0
    v_min_u32 v16, 1532, v16
    v_add_u32 v16, {L_ST}, v16
    ds_write_b32 v16, v3
    v_mov_b32 v21, {L_WCNT}
    v_mov_b32 v22, 1
    s_waitcnt lgkmcnt(0)
    s_barrier
    s_cmp_eq_u32 s3, 9
    s_cbranch_scc1 L_XR_stat
    s_cmp_gt_u32 s3, 9
    s_cbranch_scc1 L_end
    v_lshlrev_b32 v16, 1, v0
    global_load_ushort v80, v16, {sp(X_)}
    global_load_ushort v81, v16, {sp(X_)} offset:1152
    v_lshlrev_b32 v16, 3, v0
    v_add_u32 v17, {WS_MG + 2304}, v16
    v_add_u32 v18, {WS_MG + 9216}, v16
    """)
    for k in range(4): A(f"v_add_u32 v{88+k}, {WS_PX + 2304 + k*9216}, v16")
    A(f"""
    s_mul_i32 s44, s4, 4608
    s_lshl_b32 s44, s44, 1
    s_add_u32 s45, s44, {WS_RG}
    v_lshl_add_u32 v26, v0, 4, s45
    s_add_u32 s45, s44, {WS_XA}
    v_lshl_add_u32 v27, v0, 4, s45
    v_and_b32 v24, 48, v1
    v_lshlrev_b32 v24, 2, v24
    s_lshl_b32 s44, s3, 2
    s_add_u32 s44, s44, {L_ST}
    v_add_u32 v24, s44, v24
    s_mov_b32 s56, 0x00010001
    s_mov_b32 s57, 0x00010001
    """)
    A.spin_head("L_XR_mg")
    A("s_sleep 4")
    for j, (r, o) in enumerate((("v17", -2304), ("v17", 2304), ("v18", 0))):
        A(f"global_load_dwordx2 {vr((96, 34, 100)[j],2)}, {r}, {sp(WS_)} offset:{o} sc1")
    A("s_waitcnt vmcnt(0)")
    A.tagcheck(["v97", "v35", "v101", "v101"], "v30", "v31", "L_XR_mg")
    A(f"""
    v_lshlrev_b32 v82, 16, v96
    v_and_b32 v83, 0xffff0000, v96        ; ga
    v_and_b32 v101, 0xffff0000, v100
    v_lshlrev_b32 v100, 16, v100
    v_add_f32 v100, 1.0, v100
    v_add_f32 v101, 1.0, v101
    v_cvt_pk_bf16_f32 v32, v100, v101     ; g
    v_mov_b32 v33, {TAG}
    """)
    A.dual_store("global_store_dwordx4", "v26", "v[32:35]")
    A(f"""
    v_lshlrev_b32 v80, 16, v80
    v_lshlrev_b32 v81, 16, v81
    v_lshlrev_b32 v84, 16, v32
    v_and_b32 v85, 0xffff0000, v32
    v_lshlrev_b32 v86, 16, v34
    v_and_b32 v87, 0xffff0000, v34
    v_mov_b32 v96, v84
    v_mov_b32 v97, v85
    v_mul_f32 v98, v84, v84
    v_mul_f32 v99, v85, v85
    v_mov_b32 v100, v86
    v_mov_b32 v101, v87
    v_mul_f32 v102, v86, v86
    v_mul_f32 v103, v87, v87
    v_mul_f32 v104, v84, v86
    v_mul_f32 v105, v85, v87
    v_mov_b32 v106, 0
    v_mov_b32 v107, 0
    """)
    def partial_stats(off, cnt):
        for i in range(6): A(f"v_permlane32_swap_b32 v{96+2*i}, v{97+2*i}")
        for i in range(6): A(f"v_add_f32 v{96+2*i}, v{96+2*i}, v{97+2*i}")
        A("s_nop 0")
        for i in range(3): A(f"v_permlane16_swap_b32 v{96+4*i}, v{98+4*i}")
        for i in range(3): A(f"v_add_f32 v{96+4*i}, v{96+4*i}, v{98+4*i}")
        A.row_reduce("v_add_f32", ["v96", "v100", "v104"])
        A(f"""
        s_mov_b64 exec, s[56:57]
        ds_write_b32 v24, v96 offset:{off}
        ds_write_b32 v24, v100 offset:{off+256}
        ds_write_b32 v24, v104 offset:{off+512}
        s_mov_b64 exec, 1
        ds_add_u32 v21, v22 offset:{cnt}
        s_mov_b64 exec, -1
        """)
    partial_stats(0, 4)
    A.stamp(6)
    A(f"""
    s_mov_b32 s7, 0
    s_movk_i32 s60, 0xff
    s_movk_i32 s61, {0 if fl else 0xff}
    s_mul_i32 s44, s4, 9
    s_add_u32 s44, s44, s3
    s_lshl_b32 s44, s44, 7
    s_add_u32 s44, s44, {WS_FL}
    s_add_u32 s62, s{WS_}, s44
    s_addc_u32 s63, s{WS_+1}, 0
    L_XR_px:
    s_add_u32 s7, s7, 1
    s_cmp_gt_u32 s7, {SPIN}
    s_cbranch_scc1 L_end
    s_and_b32 s59, s60, s61
    """)
    for k in range(8):
        A(f"s_bitcmp0_b32 s59, {k}\ns_cbranch_scc1 L_px_l{k}")
        A(f"global_load_dwordx2 {vr(96+2*k,2)}, v{88+k//2}, {sp(WS_)} offset:{2304 if k & 1 else -2304} sc1")
        A(f"L_px_l{k}:")
    if fl:
        A("s_cmp_eq_u32 s61, 0xff\ns_cbranch_scc1 L_px_nf\ns_load_dwordx8 s[64:71], s[62:63], 0 glc\ns_waitcnt lgkmcnt(0)")
        for k in range(8):
            A(f"s_cmp_eq_u32 s{64+k}, {TAG}\ns_cselect_b32 s58, {1<<k}, 0\ns_or_b32 s61, s61, s58")
        A("s_cmp_eq_u32 s59, 0\ns_cbranch_scc1 L_XR_px\nL_px_nf:")
    A("s_waitcnt vmcnt(0)")
    for k in range(8):
        A(f"""
        s_bitcmp0_b32 s59, {k}
        s_cbranch_scc1 L_px_c{k}
        v_xor_b32 v{96+2*k}, {ETAG}, v{96+2*k}
        v_xor_b32 v{97+2*k}, {ETAG}, v{97+2*k}
        v_or_b32 v30, v{96+2*k}, v{97+2*k}
        v_and_b32 v30, 63, v30
        v_cmp_ne_u32 vcc, 0, v30
        s_cbranch_vccnz L_px_c{k}
        s_bitset0_b32 s60, {k}
        L_px_c{k}:
        """)
    A("s_cmp_lg_u32 s60, 0\ns_cbranch_scc1 L_XR_px")
    A.stamp(10)
    for i in range(4): A(f"v_add_f32 v{96+2*i}, v{96+2*i}, v{104+2*i}\nv_add_f32 v{97+2*i}, v{97+2*i}, v{105+2*i}")
    for i in range(2): A(f"v_add_f32 v{96+2*i}, v{96+2*i}, v{100+2*i}\nv_add_f32 v{97+2*i}, v{97+2*i}, v{101+2*i}")
    A("v_add_f32 v96, v96, v98\nv_add_f32 v97, v97, v99")
    A.r1("v96", "v97")
    A("v_mul_f32 v96, v82, v96\nv_mul_f32 v97, v83, v97")
    A.r1("v96", "v97")
    A(f"""
    v_add_f32 v96, v80, v96
    v_add_f32 v97, v81, v97
    v_cvt_pk_bf16_f32 v34, v96, v97
    v_lshlrev_b32 v96, 16, v34
    v_and_b32 v97, 0xffff0000, v34        ; x1
    v_mul_f32 v100, v96, v84
    v_mul_f32 v101, v97, v85
    v_cvt_pk_bf16_f32 v32, v100, v101
    global_store_dwordx4 v27, v[32:35], {sp(WS_)}
    v_lshlrev_b32 v100, 16, v32
    v_and_b32 v101, 0xffff0000, v32       ; a
    v_mul_f32 v98, v96, v96
    v_mul_f32 v99, v97, v97
    v_mul_f32 v102, v100, v100
    v_mul_f32 v103, v101, v101
    v_mul_f32 v104, v100, v84
    v_mul_f32 v105, v101, v85
    v_mul_f32 v106, v100, v86
    v_mul_f32 v107, v101, v87
    """)
    partial_stats(768, 8)
    A(f"v_add_u32 v27, {WS_GOFF}, v27\nglobal_store_dwordx4 v27, v[32:35], {sp(WS_)} sc1")
    A.stamp(11)
    A(f"""
    s_branch L_end
    L_XR_stat:
    v_lshlrev_b32 v22, 2, v1
    v_add_u32 v22, {L_ST}, v22
    v_lshrrev_b32 v20, 5, v1
    s_lshl_b32 s44, s4, 7
    s_add_u32 s44, s44, {WS_CF}
    v_lshl_add_u32 v20, v20, 4, s44
    global_load_dword v23, v20, {sp(WS_)} sc1
    """)
    def gather_stats(off, cnt, r, sleep):
        A.lds_spin(cnt, 9, "v23", "v21", sleep=sleep)
        A(f"""
        ds_read_b32 v{r}, v22 offset:{off}
        ds_read_b32 v{r+2}, v22 offset:{off+256}
        ds_read_b32 v{r+4}, v22 offset:{off+512}
        s_waitcnt lgkmcnt(0)
        """)
        A.row_reduce("v_add_f32", [f"v{r}", f"v{r+2}", f"v{r+4}"])
        for q in (r, r+2, r+4): A(f"v_mul_f32 v{q}, {INV576}, v{q}")
        for q in (r, r+2, r+4): A(f"v_mov_b32 v{q+1}, v{q}")
        for q in (r, r+2, r+4): A(f"v_permlane16_swap_b32 v{q}, v{q+1}")
    A("s_waitcnt vmcnt(0)")
    gather_stats(0, 4, 100, True)
    gather_stats(768, 8, 84, False)
    A("v_fma_f32 v85, -v84, v84, v85")
    ln_finish(A, "v84", "v85", "v90")
    A(f"""
    v_fma_f32 v86, -v84, v100, v86
    v_fma_f32 v89, -v84, v104, v89
    v_add_f32 v88, v88, v88
    v_fma_f32 v88, v84, v101, -v88
    v_fma_f32 v87, v84, v88, v87
    v_fma_f32 v86, v90, v86, v102         ; mean2
    v_add_f32 v89, v89, v89
    v_fma_f32 v87, v90, v87, v89
    v_fma_f32 v87, v90, v87, v103         ; E[h2^2]
    v_fma_f32 v87, -v86, v86, v87         ; var2
    """)
    ln_finish(A, "v86", "v87", "v94")
    A(f"""
    v_mul_f32 v92, v90, v94               ; c0
    v_mul_f32 v95, -v86, v94              ; c3
    v_mul_f32 v93, -v84, v92              ; c1
    """)
    for r in range(92, 96): A.epack(f"v{r}", f"v{r}")
    A("s_mov_b32 exec_lo, 1\ns_mov_b32 exec_hi, 1")
    A.dual_store("global_store_dwordx4", "v20", "v[92:95]")
    A("s_mov_b64 exec, -1")
    A.stamp(12)
    A("s_branch L_end")

    A(f"""
    L_S5:
    {'s_branch L_end' if diag & 8 else ''}
    s_mul_i32 s47, s4, 9
    s_add_u32 s47, s47, s5                ; f
    v_mov_b32 v82, 0
    v_mov_b32 v88, 0
    """)
    A.srd(8, W1_, 576*9216)
    A.srd(12, W2_, 4608*1152)
    A(f"""
    s_lshl_b32 s44, s47, 7
    v_mul_u32_u24 v14, 9216, v4
    v_lshl_add_u32 v14, v6, 4, v14
    v_add_u32 v14, s44, v14
    s_lshl_b32 s45, s46, 5
    s_add_u32 s44, s44, s45
    v_and_b32 v15, 15, v1
    v_lshl_add_u32 v15, v15, 1, s44
    global_load_ushort v19, v15, {sp(B1_)}
    v_mul_u32_u24 v15, 0x38f, v0
    v_lshrrev_b32 v15, 16, v15
    v_mul_u32_u24 v16, 72, v15
    v_sub_u32 v16, v0, v16
    v_and_b32 v17, 6, v15
    v_xor_b32 v16, v16, v17
    v_mul_u32_u24 v15, 1152, v15
    v_lshl_add_u32 v15, v16, 4, v15
    s_mul_i32 s49, s4, 9216
    s_add_u32 s45, s49, {WS_RG}
    v_lshl_add_u32 v80, v0, 4, s45
    s_add_u32 s45, s49, {WS_XA}
    v_lshl_add_u32 v81, v0, 4, s45
    """)
    def rgpoll():
        A("s_barrier\ns_cmp_ge_u32 s3, 9\ns_cbranch_scc1 L_S5_w2d")
        A.dual_head("L_S5_rg", ["v80", "v81"])
        A(f"s_sleep {ps}\nglobal_load_dwordx4 v[24:27], v80, {sp(WS_)} sc1\ns_waitcnt vmcnt(0)")
        A.tagcheck(["v25", "v27"], "v30", "v31", "L_S5_rg")
        A(f"""
        v_mov_b32 v35, 0x3f80
        ds_write_b16 v8, v24 offset:{ASTR}
        ds_write_b16_d16_hi v8, v24 offset:{5*ASTR}
        ds_write_b16 v8, v26 offset:{2*ASTR}
        ds_write_b16_d16_hi v8, v26 offset:{6*ASTR}
        ds_write_b16 v8, v35 offset:{3*ASTR}
        ds_write_b16 v8, v35 offset:{7*ASTR}
        L_S5_w2d:
        """)
    if nb2:
        A("s_barrier\ns_cmp_eq_u32 s5, 8\ns_cbranch_scc1 L_vt2")
        vtail(nb2, 3, 0)
        A(f"s_mul_i32 s49, s4, 9216\nL_vt2:")
    if mlt:
        A(f"""
        s_cmp_lg_u32 s3, 11
        s_cbranch_scc1 L_S5_tb2
        s_lshr_b32 s44, s{W1_}, 7
        s_add_u32 s44, s44, s47
        s_and_b32 s44, s44, 7
        s_cmp_eq_u32 s44, {3 if c3 else 9}
        s_cbranch_scc1 L_S5_tb2
        s_lshl_b32 s44, s4, 11
        s_add_u32 s44, s44, {WS_MLG}
        v_lshrrev_b32 v16, 2, v1
        v_lshlrev_b32 v16, 7, v16
        v_lshl_add_u32 v16, v9, 2, v16
        v_add_u32 v16, s44, v16
        s_mov_b32 s7, 0
        L_S5_trig2:
        s_sleep {ps}
        global_load_dword v17, v16, {sp(WS_)} sc1
        s_add_u32 s7, s7, 1
        s_cmp_gt_u32 s7, {NLOC//2}
        s_cbranch_scc1 L_S5_tb2
        s_waitcnt vmcnt(0)
        v_and_b32 v17, 63, v17
        v_cmp_eq_u32 vcc, {ETAG}, v17
        s_bcnt1_i32_b64 s44, vcc
        s_cmp_lt_u32 s44, {4*mlt + 3}
        s_cbranch_scc1 L_S5_trig2
        L_S5_tb2:
        """)
    if rgw: rgpoll()
    if trig:
        A(f"""
        s_cmp_lg_u32 s3, 11
        s_cbranch_scc1 L_S5_tb
        s_lshr_b32 s44, s{W1_}, 7
        s_add_u32 s44, s44, s47
        s_and_b32 s44, s44, 7
        s_cmp_eq_u32 s44, {3 if c3 else 9}
        s_cbranch_scc1 L_S5_tb
        s_lshl_b32 s44, s4, 10
        s_add_u32 s44, s44, {WS_TR}
        v_lshl_add_u32 v16, v7, 7, s44
        s_mov_b32 s7, 0
        L_S5_trig:
        s_sleep {ps}
        global_load_dword v17, v16, {sp(WS_)} sc1
        s_add_u32 s7, s7, 1
        s_cmp_gt_u32 s7, {NLOC//2}
        s_cbranch_scc1 L_S5_tb
        s_waitcnt vmcnt(0)
        v_cmp_eq_u32 vcc, {TAG}, v17
        s_bcnt1_i32_b32 s44, vcc_lo
        s_cmp_lt_u32 s44, {4*trig}
        s_cbranch_scc1 L_S5_trig
        L_S5_tb:
        """)
    A("s_barrier")
    A.stamp(5)
    if not w2first:
        dma_tile(A, 8, "v14", 9216, L_BUF0)
        A("s_barrier")
    A(f"""
    s_cmp_ge_u32 s3, 9
    s_cbranch_scc1 L_S5_w2x
    s_mul_i32 s44, s47, {64*1152}
    s_lshl_b32 s45, s3, 10
    s_add_u32 s45, s45, {L_BUF1}
    """)
    for o in range(8):
        A(f"s_mov_b32 m0, s45\ns_add_u32 s45, s45, 9216")
        A(f"buffer_load_dwordx4 v15, s[12:15], s44 offen{NT} lds")
        A(f"s_add_u32 s44, s44, 9216")
    A("L_S5_w2x:")
    if w2first:
        A("s_barrier")
        dma_tile(A, 8, "v14", 9216, L_BUF0)
    if not rgw: rgpoll()
    A(f"""
    s_waitcnt vmcnt(0) lgkmcnt(0)
    s_barrier
    """)
    A.stamp(6)
    A(f"""
    s_cmp_ge_u32 s3, 12
    s_cbranch_scc1 L_S5_g1
    v_lshrrev_b32 v20, 2, v1
    v_mul_u32_u24 v20, 1152, v20
    v_lshl_add_u32 v20, v9, 3, v20
    v_add_u32 v20, {L_BUF1}, v20
    v_bfe_u32 v17, v1, 3, 2
    s_mul_i32 s48, s3, 3
    """)
    for i in range(3):
        A(f"s_add_u32 s44, s48, {i}\nv_xor_b32 v18, s44, v17\nv_lshl_add_u32 v18, v18, 5, v20")
        for ks in range(2):
            for half in range(2):
                A(f"ds_read_b64_tr_b16 {vr(52+i*8+ks*4+half*2,2)}, v18 offset:{(ks*32+half*16)*1152}")
    A(f"""
    s_mul_i32 s44, s48, {2*4608}
    s_lshl_b32 s45, s47, 6
    s_add_u32 s44, s44, s45
    s_add_u32 s44, s44, {WS_FG}
    v_mul_u32_u24 v20, 4608, v4
    v_lshl_add_u32 v20, v7, 3, v20
    v_add_u32 v76, s44, v20
    v_and_b32 v79, 1, v1
    v_lshlrev_b32 v79, 7, v79
    v_and_b32 v20, 48, v1
    v_add_u32 v79, v79, v20
    v_add_u32 v79, {L_H1}, v79
    s_cmp_eq_u32 s3, 10
    s_cbranch_scc1 L_S5_fprep
    s_cmp_ge_u32 s3, 9
    s_cbranch_scc1 L_S5_g2
    """)
    A.dual_head("L_S5_xa", ["v81"], init=False)
    A(f"global_load_dwordx2 v[24:25], v81, {sp(WS_)} sc1\ns_waitcnt vmcnt(0)")
    A.tagcheck(["v25"], None, None, "L_S5_xa")
    A(f"""
    ds_write_b16 v8, v24
    ds_write_b16_d16_hi v8, v24 offset:{4*ASTR}
    """)
    A.stamp(7)
    A(f"""
    s_branch L_S5_g2
    L_S5_fprep:
    s_lshl_b32 s44, s47, 3
    v_add_u32 v80, s44, v7                ; col
    v_lshrrev_b32 v81, 5, v1              ; b
    v_mul_u32_u24 v82, 1152, v81
    v_lshl_add_u32 v82, v80, 1, v82
    v_lshlrev_b32 v83, 1, v80
    global_load_ushort v84, v83, {sp(B2_)}
    global_load_ushort v85, v82, {sp(OUT_)}
    v_lshlrev_b32 v83, 3, v80
    v_add_u32 v83, {WS_MG + 1728*8}, v83
    s_add_u32 s44, s49, {WS_XA + 8}
    v_lshl_add_u32 v80, v80, 4, s44
    v_lshlrev_b32 v81, 4, v81             ; 16*b
    s_mul_i32 s44, s47, 4608
    s_add_u32 s44, s44, {WS_FG + 2048}
    v_lshl_add_u32 v88, v1, 3, s44
    """)
    A.dual_head("L_S5_gb", ["v80"])
    A(f"""
    global_load_dwordx2 v[86:87], v83, {sp(WS_)} sc1
    global_load_dwordx2 v[90:91], v80, {sp(WS_)} sc1
    s_waitcnt vmcnt(0)
    """)
    A.tagcheck(["v87", "v91"], "v30", "v31", "L_S5_gb")
    A(f"""
    v_lshrrev_b32 v86, v81, v86
    v_lshrrev_b32 v85, v81, v90
    v_lshlrev_b32 v86, 16, v86            ; gb
    v_lshlrev_b32 v85, 16, v85            ; x1
    v_lshlrev_b32 v84, 16, v84            ; b2
    L_S5_g2:
    s_mov_b32 s56, 0xffff0000
    s_mov_b32 s57, 0
    s_mov_b32 s58, 0
    s_mov_b32 s59, 0xffff
    s_waitcnt lgkmcnt(0)
    s_barrier
    s_barrier
    ds_read_b128 v[32:35], v79
    ds_read_b128 v[36:39], v79 offset:64
    s_waitcnt lgkmcnt(1)
    """)
    for i in range(3):
        A(f"v_mfma_f32_16x16x32_bf16 {vr(40+4*i,4)}, v[32:35], {vr(52+8*i,4)}, 0")
    A("s_waitcnt lgkmcnt(0)")
    for i in range(3):
        A(f"v_mfma_f32_16x16x32_bf16 {vr(40+4*i,4)}, v[36:39], {vr(56+8*i,4)}, {vr(40+4*i,4)}")
    A(f"""
    s_mov_b32 exec_hi, 0xffff
    s_nop 5
    v_cndmask_b32 v28, v40, v44, s[56:57]
    v_cndmask_b32 v29, v41, v45, s[56:57]
    v_cndmask_b32 v28, v28, v48, s[58:59]
    v_cndmask_b32 v29, v29, v49, s[58:59]
    """)
    A.epack("v28", "v28"); A.epack("v29", "v29")
    A(f"global_store_dwordx2 v76, v[28:29], {sp(WS_)} sc1\ns_mov_b64 exec, -1")
    A.stamp(11)
    A(f"""
    s_cmp_lg_u32 s3, 10
    s_cbranch_scc1 L_end
    {f's_sleep {fgs}' if fgs else 's_waitcnt vmcnt(0)'}
    """)
    A.spin_head("L_S5_fg")
    for i in range(9):
        A(f"global_load_dwordx2 {vr(40+2*i,2)}, v88, {sp(WS_)} offset:{i*512-2048} sc1")
    A("s_waitcnt vmcnt(0)")
    A.etagcheck([f"v{40+i}" for i in range(18)], "v30", "L_S5_fg")
    A.stamp(12)
    fold8(A, 9, 40, 41, 42)
    A.r1("v40")
    A("v_add_f32 v40, v84, v40")
    A.r1("v40")
    A("v_mul_f32 v40, v86, v40")
    A.r1("v40")
    A(f"""
    v_add_f32 v40, v85, v40
    v_cvt_pk_bf16_f32 v40, v40, v40
    s_mov_b32 exec_lo, 0xff
    s_mov_b32 exec_hi, 0xff
    global_store_short v82, v40, {sp(OUT_)}
    s_cmp_lg_u32 s47, 0
    s_cbranch_scc1 L_S5_fin
    s_mov_b64 exec, 1
    v_mov_b32 v33, {TAG}
    global_store_dword v3, v33, {sp(WS_)} sc1
    L_S5_fin:
    s_mov_b64 exec, -1
    """)
    if probe:
        base, stride = {1: (0xB0000, 128*72), 2: (0x400000, 65536), 3: (0x1000000, 0x200000), 4: (0xB0000, 128*72)}[probe]
        A(f"s_lshl_b32 s44, s47, 7\ns_add_u32 s44, s44, {base}\nv_mov_b32 v60, s44\ns_waitcnt vmcnt(0)\ns_mov_b64 exec, 1")
        for i in range(8):
            if probe == 1: A(f"global_store_dword v60, v3, {sp(WS_)} sc1")
            else: A(f"global_load_dword v61, v60, {sp(WS_)} nt")
            A(f"s_waitcnt vmcnt(0)\nv_add_u32 v60, {stride}, v60")
        A("s_mov_b64 exec, -1")
    A.stamp(13)
    A("s_branch L_end")
    A("L_S5_g1:\nv_mov_b32 v15, v10")
    bfrags(A, "v15")
    k0_ = -2.0 * 1.4426950408889634 * 0.7978845608028654
    A(f"""
    v_bfe_u32 v16, v1, 4, 1
    v_lshlrev_b32 v15, 7, v16
    s_lshl_b32 s44, s4, 7
    s_add_u32 s44, s44, {WS_CF}
    v_lshl_add_u32 v18, v16, 4, s44
    v_bfe_u32 v16, v1, 2, 2
    v_lshl_or_b32 v15, v16, 4, v15
    v_lshl_or_b32 v15, v9, 1, v15
    s_lshr_b32 s44, s46, 1
    s_lshl_b32 s44, s44, 6
    s_and_b32 s45, s46, 1
    s_lshl_b32 s45, s45, 3
    s_add_u32 s44, s44, s45
    s_add_u32 s44, s44, {L_H1}
    v_add_u32 v15, s44, v15
    v_lshlrev_b32 v19, 16, v19
    v_mul_u32_u24 v16, {ASTR}, v7
    v_add_u32 v16, v11, v16               ; A rows = i&7
    v_mov_b32 v17, {f2h(k0_)}
    s_waitcnt lgkmcnt(0)
    s_barrier
    """)
    cfl = f"global_load_dwordx4 v[52:55], v18, {sp(WS_)} sc1"
    gemv_mfma(A, "v16", mid=(6, cfl))
    A.stamp(9)
    A("s_mov_b32 s7, 0\ns_branch L_S5_cfc")
    A.dual_head("L_S5_cf", ["v18"], init=False)
    A(f"{cfl}\nL_S5_cfc:\ns_waitcnt vmcnt(0)")
    A.etagcheck(["v52", "v53", "v54", "v55"], "v30", "L_S5_cf")
    A.stamp(8)
    A(f"""
    v_mul_f32 v20, v20, v52
    v_fmac_f32 v20, v21, v53
    v_fmac_f32 v20, v22, v54
    v_fmac_f32 v20, v23, v55
    """)
    A.r1("v20")
    A("v_add_f32 v20, v20, v19")
    A.r1("v20")
    A(f"""
    v_mul_f32 v21, v20, v20
    v_fmamk_f32 v21, v21, {f2h(k0_*0.044715)}, v17
    v_mul_f32 v21, v21, v20
    v_exp_f32 v21, v21
    s_nop 0
    v_add_f32 v21, 1.0, v21
    v_rcp_f32 v21, v21
    s_mov_b32 exec_hi, 0
    v_mul_f32 v21, v21, v20
    v_cvt_pk_bf16_f32 v21, v21, v21
    ds_write_b16 v15, v21
    s_mov_b64 exec, -1
    s_waitcnt lgkmcnt(0)
    s_barrier
    """)
    A.stamp(10)
    A("L_end:")
    if dbg:
        maps = {"A": {1: 4, 2: 5, 4: 6, 7: 7, 9: 8, 10: 9, 12: 14}, "B": {4: 3, 5: 10, 6: 11, 8: 12, 11: 13}, "M": {3: 2, 5: 15}}
        A(f"""
        s_mov_b64 exec, -1
        s_lshl_b32 s44, 1, s3
        s_and_b32 s44, s44, {(1<<0)|(1<<9)|(1<<12)|(1<<15)}
        s_cbranch_scc0 L_exit
        s_load_dwordx2 s[46:47], s[0:1], 104
        v_mov_b32 v125, 0x400
        v_readlane_b32 s44, v127, 0
        s_nop 3
        s_not_b32 s44, s44
        v_writelane_b32 v127, s44, 15
        v_writelane_b32 v125, 4, 0
        v_writelane_b32 v125, 0, 15
        s_lshr_b32 s45, s2, 3
        s_cmp_lt_u32 s45, 16
        s_cbranch_scc1 L_dbg_A
        s_cmp_lt_u32 s45, 25
        s_cbranch_scc1 L_dbg_B
        """)
        for nm in ("M", "B", "A"):
            A(f"L_dbg_{nm}:")
            for st, sl in maps[nm].items(): A(f"v_writelane_b32 v125, {sl*4}, {st}")
            A("s_branch L_dbg_go")
        A(f"""
        L_dbg_go:
        s_waitcnt lgkmcnt(0)
        v_cmp_gt_u32 vcc, 0x100, v125
        s_and_saveexec_b64 s[48:49], vcc
        global_atomic_umax v125, v127, s[46:47]
        s_endpgm
        """)
    elif stamps:
        A(f"""
        s_mov_b64 exec, 0xffff
        s_lshl_b32 s44, s2, 4
        s_add_u32 s44, s44, s3
        s_lshl_b32 s44, s44, 6
        s_add_u32 s44, s44, {WS_STAMP}
        v_lshl_add_u32 v126, v1, 2, s44
        global_store_dword v126, v127, {sp(WS_)}
        """)
    A("L_exit:\ns_endpgm\nL_codeend:")
    A.footer(128, 102)
    return A

HEAD = """; Fused adaLN + sliding-window GQA decode attention + channel MLP, one persistent launch (gfx950).
"""
if __name__ == "__main__":
    out = sys.argv[1]
    kw = {}
    for o in sys.argv[2:]:
        if "=" in o:
            k, v = o.split("="); kw[k] = int(v)
        elif o == "stamps": kw["stamps"] = True
        elif o == "nont": kw["nt"] = ""
    A = build(**kw)
    open(out, "w").write(HEAD + A.text())
```

```python
import sys, struct
from asmlib import Asm, NAME

WS_EPOCH = 0x0
WS_QG    = 0x4000
WS_TR    = 0x18000
WS_FL    = 0x1C000
WS_PX    = 0x20000
WS_AG    = 0x30000
AGS = 1152*8
WS_MG    = 0x40000
WS_FG    = 0x50000
WS_OG    = 0x100000
WS_MLG   = 0x120000
WS_RG    = 0x124000
WS_XA    = 0x136000
WS_CF    = 0x151000
WS_HL    = 0x152000
WS_GOFF  = 0x80000
WS_QL    = 0x200000
WS_STAMP = 0x8000000
AL = 131072; L_Q = 0; L_CNT = 512; L_MX = 640; L_LS = 704; L_P = 1024; PSTR = 1088
ASTR = 1184
L_BUF0 = 0; L_BUF1 = 73728; L_ACT = 147456; L_H1 = L_ACT + 8*ASTR; L_CF = L_H1 + 256; L_WCNT = L_CF + 64; L_ST = L_WCNT + 64; L_X1 = L_ST + 1536
LDS_BYTES = 160768
assert L_X1 <= LDS_BYTES
NLOC = 300
SPIN = 40000
LOG2E = 0x3fb8aa3b
X_, K_, V_, WQ_, WO_, W1_, B1_, W2_, B2_, C_, WM_, OUT_, WS_ = 16, 18, 20, 22, 24, 28, 30, 32, 34, 36, 38, 40, 42
TAG = "s6"; ETAG = "s101"

def sp(n): return f"s[{n}:{n+1}]"
def vr(n, k): return f"v[{n}:{n+k-1}]"
def f2h(x): return hex(struct.unpack("<I", struct.pack("<f", x))[0])
DPPM = "row_mask:0xf bank_mask:0xf"

class G(Asm):
    def __init__(self, stamps=False, nt="nt"):
        super().__init__()
        self.stamps = stamps
        self.nt = (" " + nt) if nt else ""
    def stamp(self, i):
        if self.stamps:
            self(f"s_memrealtime s[96:97]\ns_waitcnt lgkmcnt(0)\nv_writelane_b32 v127, s96, {i}")
    def rbf(self, *pairs):
        for d, s in pairs: self(f"v_cvt_pk_bf16_f32 {d}, {s}, {s}")
        for d, s in pairs: self(f"v_and_b32 {d}, 0xffff0000, {d}")
    def r1(self, *regs): self.rbf(*[(r, r) for r in regs])
    def srd(self, b, ptr, nbytes):
        self(f"s_mov_b32 s{b}, s{ptr}\ns_and_b32 s{b+1}, s{ptr+1}, 0xffff\ns_mov_b32 s{b+2}, {nbytes}\ns_mov_b32 s{b+3}, 0x20000")
    def mktag(self):
        self(f"s_add_u32 s6, s6, 0x9e3779b9\ns_and_b32 {ETAG}, s6, 63\ns_and_b32 s100, s6, 7")
    def tagcheck(self, tags, mn, mx, retry):
        if len(tags) == 1:
            self(f"v_cmp_ne_u32 vcc, {TAG}, {tags[0]}")
        else:
            assert len(tags) % 2 == 0
            for i in range(0, len(tags), 2):
                a, b = tags[i], tags[i+1]
                self(f"v_min3_u32 {mn}, {a}, {b}, {TAG if i == 0 else mn}")
                self(f"v_max3_u32 {mx}, {a}, {b}, {TAG if i == 0 else mx}")
            self(f"v_cmp_ne_u32 vcc, {mn}, {mx}")
        self(f"s_cbranch_vccnz {retry}")
    def etagcheck(self, words, acc, retry, ETAG=ETAG, mask=63):
        assert len(words) % 2 == 0
        for i in range(0, len(words), 2):
            a, b = words[i], words[i+1]
            self(f"v_xor_b32 {a}, {ETAG}, {a}\nv_xor_b32 {b}, {ETAG}, {b}")
            if i == 0: self(f"v_or_b32 {acc}, {a}, {b}")
            else: self(f"v_or3_b32 {acc}, {a}, {b}, {acc}")
        self(f"v_and_b32 {acc}, {mask}, {acc}\nv_cmp_ne_u32 vcc, 0, {acc}\ns_cbranch_vccnz {retry}")
    def epack(self, d, v, mask=63):
        self(f"v_bfi_b32 {d}, {mask}, {ETAG}, {v}")
    def spin_head(self, lab):
        self(f"s_mov_b32 s7, 0\n{lab}:\ns_add_u32 s7, s7, 1\ns_cmp_gt_u32 s7, {SPIN}\ns_cbranch_scc1 L_end")
    def dual_head(self, lab, regs, init=True):
        if init: self("s_mov_b32 s7, 0")
        self(f"{lab}:\ns_add_u32 s7, s7, 1\ns_cmp_gt_u32 s7, {SPIN}\ns_cbranch_scc1 L_end")
        self(f"s_cmp_lg_u32 s7, {NLOC}\ns_cbranch_scc1 {lab}_k")
        for r in regs: self(f"v_add_u32 {r}, {WS_GOFF}, {r}")
        self(f"{lab}_k:")
    def dual_store(self, op, vaddr, data):
        self(f"{op} {vaddr}, {data}, {sp(WS_)}\nv_add_u32 {vaddr}, {WS_GOFF}, {vaddr}\n{op} {vaddr}, {data}, {sp(WS_)} sc1")
    def row_reduce(self, op, regs, steps=4):
        for ctl in ("quad_perm:[1,0,3,2]", "quad_perm:[2,3,0,1]", "row_half_mirror", "row_mirror")[:steps]:
            if len(regs) < 3: self(f"s_nop {2 - len(regs)}")
            for r in regs:
                self(f"{op}_dpp {r}, {r}, {r} {ctl} {DPPM}")
    def lds_spin(self, off, val, vt, vbase, sleep=True):
        lab = self.label("LS")
        self.spin_head(lab)
        self(f"ds_read_b32 {vt}, {vbase} offset:{off}\ns_waitcnt lgkmcnt(0)\nv_readfirstlane_b32 s44, {vt}\ns_cmp_ge_u32 s44, {val}")
        done = self.label("LD")
        self(f"s_cbranch_scc1 {done}\n" + ("s_sleep 1\n" if sleep else "") + f"s_branch {lab}\n{done}:")
    def lds_inc(self, off, vbase, vone):
        self(f"s_mov_b64 exec, 1\nds_add_u32 {vbase}, {vone} offset:{off}\ns_mov_b64 exec, -1")

INV576 = f2h(1.0/576)
def ln_finish(A, mean, var, rs):
    A(f"v_max_f32 {var}, 0, {var}")
    A.r1(mean, var)
    A(f"v_add_f32 {var}, 0x3727c5ac, {var}")
    A.r1(var)
    A(f"v_sqrt_f32 {var}, {var}\ns_nop 0")
    A.r1(var)
    A(f"v_rcp_f32 {rs}, {var}\ns_nop 0")

def dma_tile(A, srd, voff, rowstride, ldsbase, ninstr=72):
    A(f"s_mul_i32 s44, s3, {8*rowstride}\ns_lshl_b32 s45, s3, 10\ns_add_u32 s45, s45, {ldsbase}")
    for i in range((ninstr + 15)//16):
        skip = None
        if (i+1)*16 > ninstr:
            skip = A.label("DS")
            A(f"s_cmp_ge_u32 s3, {ninstr - 16*i}\ns_cbranch_scc1 {skip}")
        A(f"s_mov_b32 m0, s45\ns_add_u32 s45, s45, 16384")
        A(f"buffer_load_dwordx4 {voff}, s[{srd}:{srd+3}], s44 offen{A.nt} lds")
        A(f"s_add_u32 s44, s44, {128*rowstride}")
        if skip: A(f"{skip}:")

def bfrags(A, vaddr, vb=52, nks=18, rowb=128):
    base = 0
    for ks in range(nks):
        for half in range(2):
            off = (ks*32 + half*16) * rowb
            if off - base > 65535:
                A(f"v_add_u32 {vaddr}, {off - base}, {vaddr}"); base = off
            A(f"ds_read_b64_tr_b16 {vr(vb + ks*4 + half*2,2)}, {vaddr} offset:{off - base}")

def kv_chunk_base(A, rp, dst, t, SP):
    A(f"""
    s_lshr_b32 {t}, {rp}, 3
    s_lshl_b32 {dst}, s4, 1
    s_add_u32 {dst}, {dst}, {t}
    s_bfe_u32 {t}, {rp}, 0x10002
    s_lshl_b32 {t}, {t}, 4
    s_add_u32 {dst}, {dst}, {t}
    s_lshl_b32 {dst}, {dst}, 21
    s_and_b32 {t}, {rp}, 3
    s_lshl_b32 {t}, {t}, {SP}
    s_add_u32 {dst}, {dst}, {t}
    s_add_u32 {dst}, {dst}, {6144*256}
    """)

def gemv_mfma(A, vaaddr, vb=52, va=24, vd=20, depth=7, nks=18, mid=None):
    depth = min(depth, nks)
    def rd(ks):
        A(f"ds_read_b128 {vr(va + (ks % depth)*4,4)}, {vaaddr} offset:{ks*64}")
    for ks in range(depth): rd(ks)
    for ks in range(nks):
        issued = min(nks, depth + ks)
        A(f"s_waitcnt lgkmcnt({issued - ks - 1})")
        c = "0" if ks == 0 else vr(vd, 4)
        A(f"v_mfma_f32_16x16x32_bf16 {vr(vd,4)}, {vr(va + (ks % depth)*4,4)}, {vr(vb+ks*4,4)}, {c}")
        if ks + depth < nks: rd(ks + depth)
        if mid and ks == mid[0]: A(mid[1])

def fold8(A, n, a, b, t, swapb=True):
    for i in range(1, n):
        A(f"v_add_f32 v{a}, v{a}, v{a+2*i}\nv_add_f32 v{b}, v{b}, v{b+2*i}")
    A(f"""
    s_nop 1
    v_permlane32_swap_b32 v{a}, v{b}
    v_add_f32 v{a}, v{a}, v{b}
    v_mov_b32 v{t}, v{a}
    s_nop 1
    v_permlane16_swap_b32 v{a}, v{t}
    v_add_f32 v{a}, v{a}, v{t}
    s_nop 1
    v_add_f32_dpp v{a}, v{a}, v{a} row_ror:8 {DPPM}
    """)

def build(stamps=False, nt="nt", adelay=True, dbg=0, w2first=0, qs=8, ps=2, pt=1, diag=0, ql=1, rgw=0, il=2, trig=1, pf=0, fgs=12, ordr=0, nb1=0, nb2=0, mlt=0, c3=1, hq=0, fl=0, ppt=0, probe=0, cfm=6, x4=1, me=0, tm=96, dq=0, dv=0, ds5=0):
    CH, BL, SP = {0: (15, 13, 17), 1: (17, 15, 13), 2: (17, 13, 15)}[il]
    global SPIN, NLOC
    if diag: SPIN = 60; NLOC = 100
    A = G(stamps, nt)
    def vtail(n, level, w0):
        lab = A.label("VT")
        A(f"""
        s_sub_u32 s48, s3, {w0}
        s_cmp_ge_u32 s48, {n}
        s_cbranch_scc1 {lab}
        s_and_b32 s49, s48, 1
        s_lshl_b32 s50, s5, 1
        s_add_u32 s50, s50, s49
        """)
        kv_chunk_base(A, "s50", "s44", "s45", SP)
        A(f"""
        s_lshr_b32 s48, s48, 1
        s_sub_u32 s48, 3, s48
        s_lshl_b32 s48, s48, {BL}
        s_add_u32 s44, s44, s48
        s_add_u32 s44, s44, {level << CH}
        v_lshl_add_u32 v20, v1, 7, s44
        global_load_dword v22, v20, {sp(V_)}{A.nt}
        {lab}:
        """)
    NT = A.nt
    A.header(256, 1024, LDS_BYTES)
    A(f"""
    s_cmp_ge_u32 s2, 256
    s_cbranch_scc1 L_exit
    s_load_dwordx16 s[16:31], s[0:1], 0
    s_load_dwordx8 s[32:39], s[0:1], 64
    s_load_dwordx2 s[40:41], s[0:1], 96
    s_load_dwordx2 s[42:43], s[0:1], 112
    v_lshrrev_b32 v2, 6, v0
    v_and_b32 v1, 63, v0
    s_and_b32 s4, s2, 7
    v_readfirstlane_b32 s3, v2
    s_lshr_b32 s5, s2, 3
    v_mov_b32 v3, 0
    """)
    if stamps:
        A("v_mov_b32 v127, 0\ns_memrealtime s[98:99]")
    A(f"""
    s_cmp_lg_u32 s5, 24
    s_cbranch_scc1 L_nopf
    s_getpc_b64 s[44:45]
    L_pfbase:
    s_sub_u32 s44, s44, L_pfbase-{NAME}_kernel
    s_subb_u32 s45, s45, 0
    v_lshlrev_b32 v4, 7, v0
    v_cmp_gt_u32 vcc, L_codeend-{NAME}_kernel, v4
    s_and_saveexec_b64 s[46:47], vcc
    s_cbranch_execz L_pfd
    global_load_dword v5, v4, s[44:45]
    L_pfd:
    s_mov_b64 exec, -1
    L_nopf:
    s_cmp_lt_u32 s5, 16
    s_cbranch_scc1 L_A
    {'s_branch L_exit' if diag & 32 else ''}
    s_sub_u32 s5, s5, 16                  ; u
    s_sub_u32 s55, s2, {25*8}
    s_min_u32 s47, s4, 4
    s_lshl_b32 s48, s4, 2
    s_add_u32 s47, s47, s48
    s_add_u32 s47, s47, s5
    s_sub_u32 s47, s47, 9
    s_mul_i32 s48, s47, 0xe39
    s_lshr_b32 s48, s48, 16               ; ksp
    s_mul_i32 s49, s48, 18
    s_sub_u32 s49, s47, s49               ; cgp
    s_mul_i32 s50, s48, {288*6912}
    s_lshl_b32 s51, s49, 7
    s_add_u32 s50, s50, s51               ; M offset
    s_lshl_b32 s51, s4, 3
    s_add_u32 s51, s51, s5                ; qb
    s_lshl_b32 s52, s51, 7                ; B offset
    v_lshrrev_b32 v4, 3, v1
    v_bfe_u32 v6, v1, 4, 2
    v_lshlrev_b32 v6, 1, v6
    v_and_b32 v7, 7, v1
    v_xor_b32 v6, v6, v7
    s_movk_i32 s53, 6912
    s_lshl_b32 s44, s4, 1
    s_add_u32 s44, s44, s5
    s_lshl_b32 s44, s44, 8
    s_sub_u32 s44, s44, {28*128 - 2304}
    s_sub_u32 s45, s5, 8
    s_cmp_ge_u32 s45, {6 if me else 99}   ; u < 8 or u >= 14
    s_cselect_b32 s54, 72, 36             ; count
    s_cselect_b32 s50, s44, s50
    s_cselect_b32 s56, 0, s55
    s_cmp_lt_u32 s5, 8
    s_cselect_b32 s50, s52, s50
    s_cselect_b32 s53, 8192, s53          ; stride
    s_mul_i32 s10, s53, 576
    s_cselect_b32 s47, s51, s47
    s_cselect_b32 s55, 0, s55
    v_mul_u32_u24 v14, s53, v4
    v_lshl_add_u32 v14, v6, 4, v14
    v_add_u32 v15, s50, v14
    s_mov_b32 s11, 0x20000
    s_lshl_b32 s53, s53, 3
    s_mul_i32 s44, s3, s53
    s_lshl_b32 s53, s53, 4
    s_lshl_b32 s45, s3, 10
    s_mov_b32 s46, s3
    s_cmp_lt_u32 s5, 8
    s_waitcnt lgkmcnt(0)
    s_cselect_b32 s8, s{WQ_}, s{WM_}
    s_cselect_b32 s9, s{WQ_+1}, s{WM_+1}
    s_and_b32 s9, s9, 0xffff
    s_cmp_ge_u32 s56, 36
    s_cbranch_scc1 L_W_nodma
    L_W_dma:
    s_mov_b32 m0, s45
    s_add_u32 s45, s45, 16384
    buffer_load_dwordx4 v15, s[8:11], s44 offen{NT} lds
    s_add_u32 s44, s44, s53
    s_add_u32 s46, s46, 16
    s_cmp_lt_u32 s46, s54
    s_cbranch_scc1 L_W_dma
    L_W_nodma:
    s_load_dword s6, {sp(WS_)}, {WS_EPOCH}
    s_branch L_W
    """)
    A(f"""
    L_A:
    """)
    if ordr:
        t0_, t1_ = {1: (0xd8, 0xd8), 2: (0xe4, 0xd2), 3: (0xd8, 0xd2)}[ordr]
        A(f"""
        s_bitcmp1_b32 s5, 0
        s_movk_i32 s44, {t0_}
        s_cselect_b32 s44, {t1_}, s44
        s_lshr_b32 s45, s3, 2
        s_lshl_b32 s45, s45, 1
        s_lshr_b32 s44, s44, s45
        s_and_b32 s44, s44, 3
        s_and_b32 s3, s3, 3
        s_lshl_b32 s44, s44, 2
        s_or_b32 s3, s3, s44
        """)
    A(f"""
    v_mov_b32 v4, {AL}
    v_lshl_add_u32 v5, v1, 2, v4
    ds_write_b32 v5, v3 offset:{L_CNT}
    s_lshr_b32 s44, s5, 3
    s_lshl_b32 s45, s4, 1
    s_add_u32 s46, s45, s44            ; hkv
    s_bfe_u32 s47, s5, 0x10002          ; b
    s_and_b32 s48, s5, 3                ; sp
    s_lshl_b32 s49, s47, 4
    s_add_u32 s49, s49, s46             ; b*16+hkv
    s_lshl_b32 s49, s49, 21
    s_lshl_b32 s50, s48, {SP}
    s_add_u32 s49, s49, s50
    s_add_u32 s49, s49, {6144*256}
    s_bfe_u32 s51, s3, 0x10002            ; g
    s_and_b32 s44, s3, 3
    s_lshl_b32 s50, s51, {CH+1}
    s_add_u32 s49, s49, s50
    s_lshl_b32 s50, s44, {BL}
    s_add_u32 s49, s49, s50
    s_lshl_b32 s45, s51, 3
    s_add_u32 s48, s44, s45
    v_and_b32 v9, 3, v1
    v_mov_b32 v7, 1
    s_cmp_ge_u32 s3, 8
    s_cbranch_scc1 L_AV
    s_add_u32 s49, s49, 4096
    v_bfe_u32 v5, v1, 2, 2
    v_lshlrev_b32 v5, 8, v5
    v_and_b32 v6, 48, v1
    v_lshl_or_b32 v5, v6, 2, v5
    v_lshl_or_b32 v5, v9, 4, v5
    s_waitcnt lgkmcnt(0)
    s_load_dword s6, {sp(WS_)}, {WS_EPOCH}
    s_add_u32 s52, s{K_}, s49
    s_addc_u32 s53, s{K_+1}, 0
    s_add_u32 s54, s52, {1 << CH}
    s_addc_u32 s55, s53, 0
    """)
    if adelay: A("s_waitcnt lgkmcnt(0)")
    A("s_barrier")
    for t in range(16):
        A(f"global_load_dwordx4 {vr(32+4*t,4)}, v5, s[{52+2*(t>>3)}:{53+2*(t>>3)}] offset:{(t&7)*1024-4096}{NT}")
    if stamps: A("s_waitcnt lgkmcnt(0)\nv_writelane_b32 v127, s98, 0")
    A.stamp(1)
    A(f"""
    v_bfe_u32 v8, v1, 2, 1
    v_lshlrev_b32 v8, 8, v8
    v_lshl_or_b32 v8, v6, 2, v8
    v_lshl_or_b32 v8, v9, 4, v8
    v_add_u32 v8, v4, v8
    v_bfe_u32 v11, v1, 4, 1
    v_mul_u32_u24 v10, {PSTR}, v11
    v_and_b32 v12, 1, v1
    v_lshl_add_u32 v10, v12, 5, v10
    v_lshrrev_b32 v13, 5, v1
    v_lshl_add_u32 v10, v13, 4, v10
    v_bfe_u32 v13, v1, 1, 1
    v_lshl_add_u32 v10, v13, 3, v10
    v_bfe_u32 v13, v1, 2, 2
    v_lshl_add_u32 v10, v13, 1, v10
    s_lshl_b32 s44, s48, 6
    s_add_u32 s44, s44, {AL + L_P}
    v_add_u32 v10, s44, v10
    v_mul_u32_u24 v12, {PSTR}, v12
    v_add3_u32 v12, v12, v6, v4
    v_lshl_add_u32 v11, v11, 5, v4
    v_and_b32 v13, 7, v1
    v_lshl_add_u32 v13, v13, 2, v11
    s_lshl_b32 s44, s3, 2
    v_add_u32 v11, s44, v11
    v_bfe_u32 v14, v1, 2, 3
    v_xor_b32 v14, s3, v14
    v_lshlrev_b32 v14, 5, v14
    v_lshrrev_b32 v15, 2, v1
    v_lshl_or_b32 v14, v15, 8, v14
    v_lshl_or_b32 v14, v9, 3, v14
    v_add_u32 v15, 0x10000, v14
    s_mov_b32 s58, 0x22222222
    s_mov_b32 s59, 0x22222222
    s_mov_b32 s60, 0x44444444
    s_mov_b32 s61, 0x44444444
    s_mov_b32 s62, 0x88888888
    s_mov_b32 s63, 0x88888888
    s_lshl_b32 s44, s47, 14
    s_lshl_b32 s45, s46, 10
    s_add_u32 s44, s44, s45
    s_lshl_b32 s45, s3, 7
    s_add_u32 s44, s44, s45
    s_add_u32 s44, s44, {WS_QG}
    s_add_u32 s56, s{WS_}, s44
    s_addc_u32 s57, s{WS_+1}, 0
    s_lshl_b32 s50, s4, 4
    s_add_u32 s50, s50, s5
    s_lshl_b32 s50, s50, 10
    s_add_u32 s50, s50, s45
    s_add_u32 s50, s50, {WS_OG}
    v_lshl_add_u32 v6, v1, 3, s50
    s_waitcnt lgkmcnt(0)
    """)
    A.mktag()
    A(f"""
    s_add_u32 s52, s56, {WS_QL - WS_QG}
    s_addc_u32 s53, s57, 0
    s_mov_b32 s7, {0 if ql else 16}
    s_waitcnt vmcnt(0)
    L_A_qpoll:
    s_add_u32 s7, s7, 1
    s_cmp_gt_u32 s7, {SPIN}
    s_cbranch_scc1 L_end
    s_cmp_gt_u32 s7, 16
    s_cbranch_scc1 L_A_qg
    s_load_dwordx16 s[64:79], s[52:53], 0
    s_load_dwordx16 s[80:95], s[52:53], 64
    s_add_u32 s52, s52, 32768
    s_addc_u32 s53, s53, 0
    s_branch L_A_qc
    L_A_qr:
    s_sleep {qs}
    s_branch L_A_qpoll
    L_A_qg:
    s_load_dwordx16 s[64:79], s[56:57], 0 glc
    s_load_dwordx16 s[80:95], s[56:57], 64 glc
    L_A_qc:
    s_waitcnt lgkmcnt(0)
    """)
    for i in range(16):
        A(f"s_cmp_lg_u32 s{65+2*i}, {TAG}\ns_cbranch_scc1 L_A_qr")
    A("s_mov_b64 exec, 1")
    for i in range(16):
        A(f"v_mov_b32 v{96+i}, s{64+2*i}")
    A(f"s_lshl_b32 s44, s3, 6\nv_add_u32 v20, s44, v4")
    for i in range(4):
        A(f"ds_write_b128 v20, {vr(96+4*i,4)} offset:{L_Q+16*i}")
    A(f"""
    ds_add_u32 v4, v7 offset:{L_CNT}
    s_mov_b64 exec, -1
    s_mov_b32 s56, 0xff00ff00
    s_mov_b32 s57, 0xff00ff00
    """)
    A.lds_spin(L_CNT, 8, "v16", "v4", sleep=False)
    A.stamp(2)
    A(f"ds_read_b128 v[20:23], v8 offset:{L_Q}\ns_waitcnt lgkmcnt(0)")
    for i in range(4):
        A(f"v_cndmask_b32 v{24+i}, 0, v{20+i}, s[56:57]")
        A(f"v_cndmask_b32 v{20+i}, v{20+i}, 0, s[56:57]")
    A("s_waitcnt vmcnt(0)\ns_nop 0")
    D = [96, 32]
    for z in range(2):
        for u in range(4):
            A(f"v_mfma_f32_16x16x32_bf16 {vr(D[z]+4*u,4)}, v[20:23], {vr(32+32*z+8*u,4)}, 0")
        for u in range(4):
            A(f"v_mfma_f32_16x16x32_bf16 {vr(D[z]+4*u,4)}, v[24:27], {vr(36+32*z+8*u,4)}, {vr(D[z]+4*u,4)}")
    for z in range(2):
        t = 112 + 4*z
        for u in range(4):
            A(f"v_mov_b32_dpp v{t+u}, v{D[z]+4*u} quad_perm:[0,0,0,0] {DPPM}")
        for c in range(1, 4):
            for u in range(4):
                A(f"v_add_f32_dpp v{t+u}, v{D[z]+4*u+c}, v{t+u} quad_perm:[{c},{c},{c},{c}] {DPPM}")
    A.stamp(3)
    for k, m in ((1, 58), (2, 60), (3, 62)):
        A(f"v_cndmask_b32 v112, v112, v{112+k}, s[{m}:{m+1}]\nv_cndmask_b32 v116, v116, v{116+k}, s[{m}:{m+1}]")
    A.r1("v112", "v116")
    A("v_mul_f32 v112, 0x3db504f3, v112\nv_mul_f32 v116, 0x3db504f3, v116")
    A.r1("v112", "v116")
    A("v_max_f32 v113, v112, v116")
    A.row_reduce("v_max_f32", ["v113"])
    A(f"""
    v_mov_b32 v114, v113
    s_mov_b32 s56, 0x10001
    s_mov_b32 s57, 0
    v_permlane32_swap_b32 v113, v114
    v_max_f32 v113, v113, v114
    s_mov_b64 exec, s[56:57]
    ds_write_b32 v11, v113 offset:{L_MX}
    s_mov_b64 exec, 1
    ds_add_u32 v4, v7 offset:{L_CNT+4}
    s_mov_b64 exec, -1
    v_mul_f32 v112, {hex(LOG2E)}, v112
    v_mul_f32 v116, {hex(LOG2E)}, v116
    """)
    A.lds_spin(L_CNT+4, 8, "v16", "v4", sleep=False)
    A(f"ds_read_b32 v113, v13 offset:{L_MX}\ns_mov_b32 s45, {hex(LOG2E)}\ns_waitcnt lgkmcnt(0)")
    A.row_reduce("v_max_f32", ["v113"], steps=3)
    A(f"""
    v_fma_f32 v112, -v113, s45, v112
    v_fma_f32 v116, -v113, s45, v116
    v_exp_f32 v112, v112
    v_exp_f32 v116, v116
    s_nop 0
    v_cvt_pk_bf16_f32 v115, v112, v116
    ds_write_b16 v10, v115
    ds_write_b16_d16_hi v10, v115 offset:256
    s_mov_b64 exec, 1
    ds_add_u32 v4, v7 offset:{L_CNT+8}
    s_mov_b64 exec, -1
    v_add_f32 v112, v112, v116
    """)
    A.row_reduce("v_add_f32", ["v112"])
    A(f"""
    v_mov_b32 v114, v112
    s_nop 1
    v_permlane32_swap_b32 v112, v114
    v_add_f32 v112, v112, v114
    s_mov_b64 exec, s[56:57]
    ds_write_b32 v11, v112 offset:{L_LS}
    s_mov_b64 exec, 1
    ds_add_u32 v4, v7 offset:{L_CNT+12}
    s_mov_b64 exec, -1
    """)
    A.lds_spin(L_CNT+8, 8, "v16", "v4", sleep=False)
    A.stamp(4)
    A(f"ds_read_b128 v[116:119], v4 offset:{L_CNT+16}")
    for ks in range(16):
        A(f"ds_read_b128 {vr(32+4*ks,4)}, v12 offset:{L_P + ks*64}")
    A("s_waitcnt lgkmcnt(15)\ns_waitcnt lgkmcnt(15)")
    for L in range(4): A(f"v_readfirstlane_b32 s{64+L}, v{116+L}")
    SET = [96, 16]
    def vreads(L):
        for k in range(4):
            ks = 4*L + k
            for half in range(2):
                A(f"ds_read_b64_tr_b16 {vr(SET[L&1]+4*k+2*half,2)}, {'v14' if ks < 8 else 'v15'} offset:{(ks&7)*8192 + half*4096}")
    def vmfma(L):
        for k in range(4):
            c = "0" if (L == 0 and k == 0) else "v[112:115]"
            A(f"v_mfma_f32_16x16x32_bf16 v[112:115], {vr(32+4*(4*L+k),4)}, {vr(SET[L&1]+4*k,4)}, {c}")
    A("s_cmp_ge_u32 s64, 4\ns_cbranch_scc1 L_A_v0")
    A.lds_spin(L_CNT+16, 4, "v120", "v4", sleep=False)
    A("L_A_v0:")
    vreads(0)
    for L in range(1, 4):
        A(f"s_cmp_ge_u32 s{64+L}, 4\ns_cbranch_scc0 L_A_vn{L}")
        vreads(L)
        A("s_waitcnt lgkmcnt(8)")
        vmfma(L-1)
        A(f"s_branch L_A_vd{L}\nL_A_vn{L}:\ns_waitcnt lgkmcnt(0)")
        vmfma(L-1)
        A.lds_spin(L_CNT+16+4*L, 4, "v120", "v4", sleep=False)
        vreads(L)
        A(f"L_A_vd{L}:")
    for k in range(4):
        A(f"s_waitcnt lgkmcnt({6-2*k})")
        A(f"v_mfma_f32_16x16x32_bf16 v[112:115], {vr(32+4*(12+k),4)}, {vr(SET[1]+4*k,4)}, v[112:115]")
    A("s_mov_b64 exec, 0xffff\ns_nop 6")
    A.epack("v116", "v112"); A.epack("v117", "v113")
    A.dual_store("global_store_dwordx2", "v6", "v[116:117]")
    A("s_mov_b64 exec, -1")
    A.stamp(6)
    A("s_branch L_end")
    A(f"""
    L_AV:
    s_lshl_b32 s45, s48, 13
    s_mov_b32 s44, s49                    ; soffset
    v_lshrrev_b32 v5, 4, v1
    v_lshlrev_b32 v6, 1, v5
    v_and_b32 v8, 15, v1
    v_xor_b32 v6, v6, v8
    v_lshlrev_b32 v6, 4, v6
    v_lshl_or_b32 v5, v5, 8, v6
    v_xor_b32 v6, 128, v5
    s_waitcnt lgkmcnt(0)
    s_load_dword s6, {sp(WS_)}, {WS_EPOCH}
    """)
    A.srd(8, V_, 0x4000000)
    A("s_barrier")
    for hf in range(2):
        for q4 in range(2):
            A("s_mov_b32 m0, s45\ns_nop 0")
            for n in range(4):
                A(f"buffer_load_dwordx4 {'v6' if n & 1 else 'v5'}, s[8:11], s44 offen offset:{n*1024}{NT} lds")
            if q4 == 0: A("s_add_u32 s45, s45, 4096\ns_add_u32 s44, s44, 4096")
            elif hf == 0: A(f"s_add_u32 s45, s45, {4*8192 - 4096}\ns_add_u32 s44, s44, {(1 << CH) - 4096}")
    if stamps: A("s_waitcnt lgkmcnt(0)\nv_writelane_b32 v127, s98, 0")
    A.stamp(1)
    if pf:
        A(f"""
        s_cmp_lt_u32 s3, 11
        s_cbranch_scc1 L_AV_np
        s_mul_i32 s45, s5, 5
        s_add_u32 s45, s45, s3
        s_lshl_b32 s50, s45, 6
        s_sub_u32 s50, s50, {10*64}
        s_lshl_b32 s44, s51, 3
        v_add_u32 v5, s44, v4
        v_add_u32 v20, s50, v1
        v_mul_u32_u24 v21, 0x1c72, v20
        v_lshrrev_b32 v21, 16, v21
        v_mul_u32_u24 v22, 9, v21
        v_sub_u32 v22, v20, v22
        v_mul_u32_u24 v21, 9216, v21
        v_lshl_add_u32 v21, v22, 7, v21
        s_mul_i32 s50, s4, 1152
        v_add_u32 v21, s50, v21
        global_load_dword v29, v21, {sp(W1_)}{NT}
        s_mov_b64 exec, 1
        s_waitcnt vmcnt(9)
        ds_add_u32 v5, v7 offset:{L_CNT+16}
        s_waitcnt vmcnt(1)
        ds_add_u32 v5, v7 offset:{L_CNT+20}
        s_mov_b64 exec, -1
        """)
        A.stamp(5)
        A("s_waitcnt vmcnt(0) lgkmcnt(0)\ns_branch L_end\nL_AV_np:")
    A(f"""
    s_lshl_b32 s44, s51, 3
    v_add_u32 v5, s44, v4
    s_mov_b64 exec, 1
    s_waitcnt vmcnt(8)
    ds_add_u32 v5, v7 offset:{L_CNT+16}
    s_waitcnt vmcnt(0)
    {f's_sleep {dv}' if dv else ''}
    ds_add_u32 v5, v7 offset:{L_CNT+20}
    s_mov_b64 exec, -1
    """)
    A.stamp(5)
    A(f"""
    s_waitcnt lgkmcnt(0)
    s_cmp_lg_u32 s3, 8
    s_cbranch_scc1 L_end
    v_bfe_u32 v11, v1, 4, 1
    v_lshl_add_u32 v11, v11, 5, v4
    v_and_b32 v13, 7, v1
    v_lshl_add_u32 v13, v13, 2, v11
    s_lshl_b32 s50, s4, 4
    s_add_u32 s50, s50, s5
    s_lshl_b32 s50, s50, 7
    s_add_u32 s50, s50, {WS_MLG}
    v_mov_b32 v24, s50
    """)
    A.mktag()
    A.lds_spin(L_CNT+12, 8, "v16", "v4")
    A(f"ds_read_b32 v20, v13 offset:{L_MX}\nds_read_b32 v21, v13 offset:{L_LS}\ns_waitcnt lgkmcnt(0)")
    for ctl in ("quad_perm:[1,0,3,2]", "quad_perm:[2,3,0,1]", "row_half_mirror"):
        A(f"s_nop 0\nv_max_f32_dpp v20, v20, v20 {ctl} {DPPM}\nv_add_f32_dpp v21, v21, v21 {ctl} {DPPM}")
    A("""
    v_mov_b32 v22, v20
    v_mov_b32 v23, v21
    s_nop 0
    v_permlane16_swap_b32 v20, v22
    v_permlane16_swap_b32 v21, v23
    """)
    for r in range(20, 24): A.epack(f"v{r}", f"v{r}")
    A("s_mov_b64 exec, 1")
    A.dual_store("global_store_dwordx4", "v24", "v[20:23]")
    A("s_mov_b64 exec, -1")
    A.stamp(7)
    A("s_branch L_end")

    A("L_W:")
    if stamps: A("v_writelane_b32 v127, s98, 0")
    A.stamp(1)
    A(f"""
    v_mov_b32 v18, {L_WCNT}
    ds_write2_b32 v18, v3, v3 offset1:1
    ds_write_b32 v18, v3 offset:8
    v_lshrrev_b32 v8, 5, v0
    v_lshlrev_b32 v8, 6, v8
    v_bfe_u32 v9, v0, 2, 2
    v_lshl_or_b32 v8, v9, 4, v8
    v_bfe_u32 v9, v0, 4, 1
    v_lshl_or_b32 v8, v9, 3, v8
    v_and_b32 v9, 3, v0
    v_lshl_or_b32 v8, v9, 1, v8
    v_add_u32 v8, {L_ACT}, v8
    s_and_b32 s46, s3, 3
    v_bfe_u32 v10, v1, 3, 2
    v_xor_b32 v10, s46, v10
    v_lshlrev_b32 v10, 5, v10
    v_lshrrev_b32 v11, 2, v1
    v_lshl_or_b32 v10, v11, 7, v10
    v_lshl_or_b32 v10, v9, 3, v10
    v_and_b32 v11, 48, v1
    v_add_u32 v11, {L_ACT}, v11
    v_and_b32 v12, 1, v1
    v_mul_u32_u24 v12, {4*ASTR}, v12
    v_add_u32 v12, v11, v12
    v_and_b32 v13, 4, v1
    v_mul_u32_u24 v13, {ASTR}, v13
    v_add_u32 v13, v11, v13
    v_mov_b32 v17, 1
    s_cmp_eq_u32 s5, 8
    s_cbranch_scc1 L_KT
    s_cbranch_scc0 L_Wd
    L_Wd:
    s_cmp_gt_u32 s5, 8
    s_cbranch_scc1 L_M
    s_waitcnt lgkmcnt(0)
    """)
    A.mktag()
    A(f"""
    s_barrier
    {'s_waitcnt vmcnt(0)' + chr(10) + 's_branch L_end' if diag & 4 else ''}
    s_cmp_ge_u32 s3, 9
    s_cbranch_scc1 L_B_nh
    s_mul_i32 s44, s4, 4608
    s_add_u32 s44, s44, {WS_HL}
    v_lshl_add_u32 v15, v0, 3, s44
    global_load_dwordx2 v[24:25], v15, {sp(WS_)} sc1
    s_waitcnt vmcnt(0)
    """)
    A.lds_inc(0, "v18", "v17")
    A.stamp(2)
    if nb1: vtail(nb1, 2, 0)
    A("s_mov_b32 s7, 0\ns_branch L_B_chk")
    A.dual_head("L_B_h", ["v15"], init=False)
    A(f"s_sleep {ps}")
    A(f"global_load_dwordx2 v[24:25], v15, {sp(WS_)} sc1\ns_waitcnt vmcnt(0)\nL_B_chk:")
    A.tagcheck(["v25"], None, None, "L_B_h")
    A(f"""
    ds_write_b16 v8, v24
    ds_write_b16_d16_hi v8, v24 offset:{4*ASTR}
    s_waitcnt lgkmcnt(0)
    """)
    A.stamp(3)
    A(f"""
    s_barrier
    s_branch L_S5
    L_B_nh:
    """)
    if ql:
        A(f"""
        s_cmp_lg_u32 s3, 9
        s_cbranch_scc1 L_B_npt
        v_lshrrev_b32 v15, 1, v1
        v_lshlrev_b32 v15, 14, v15            ; (replica*2+b)*16384
        v_and_b32 v16, 1, v1
        v_lshl_or_b32 v15, v16, 7, v15
        s_lshl_b32 s44, s47, 8
        s_add_u32 s44, s44, {WS_QL}
        v_add_u32 v15, s44, v15
        global_load_dword v16, v15, {sp(WS_)} sc1
        L_B_npt:
        """)
    A("s_waitcnt vmcnt(0)")
    A.lds_inc(0, "v18", "v17")
    A(f"""
    s_cmp_ge_u32 s3, 12
    s_cbranch_scc1 L_B_m
    s_waitcnt lgkmcnt(0)
    s_barrier
    s_branch L_S5
    L_B_m:
    """)
    A.lds_spin(0, 16, "v16", "v18")
    A.stamp(2)
    A("v_mov_b32 v15, v10")
    bfrags(A, "v15")
    A(f"""
    s_lshl_b32 s44, s47, 8
    s_lshl_b32 s45, s46, 6
    s_add_u32 s44, s44, s45
    s_add_u32 s44, s44, {WS_QG}
    v_and_b32 v15, 15, v1
    v_lshlrev_b32 v15, 2, v15
    v_bfe_u32 v16, v1, 4, 1
    v_lshl_or_b32 v15, v16, 14, v15
    v_add_u32 v15, s44, v15
    v_and_b32 v16, -8, v15
    v_and_b32 v17, 1, v1
    v_lshl_add_u32 v16, v17, 15, v16
    v_lshrrev_b32 v17, 5, v1
    v_lshl_add_u32 v16, v17, 16, v16
    v_add_u32 v16, {WS_QL - WS_QG}, v16
    s_waitcnt lgkmcnt(0)
    s_barrier
    """)
    gemv_mfma(A, "v13")
    A(f"""
    s_nop 7
    v_mov_b32_dpp v21, v20 quad_perm:[1,1,3,3] {DPPM}
    v_mov_b32_dpp v20, v20 quad_perm:[0,0,2,2] {DPPM}
    v_mov_b32 v23, {TAG}
    v_cvt_pk_bf16_f32 v22, v20, v21
    """)
    if ql:
        for i in range(4):
            A(f"global_store_dwordx2 v16, v[22:23], {sp(WS_)}")
            if i < 3: A(f"v_add_u32 v16, {4*32768}, v16")
    A(f"""
    s_mov_b32 exec_lo, 0x55555555
    s_mov_b32 exec_hi, 0
    global_store_dwordx2 v15, v[22:23], {sp(WS_)} sc1
    s_mov_b64 exec, -1
    """)
    A.stamp(4)
    A("s_branch L_S5")

    A(f"""
    L_M:
    """)
    if me:
        A(f"s_cmp_lt_u32 s5, 14\ns_cbranch_scc1 L_M_n2\nv_add_u32 v16, 128, v15\ns_barrier")
        dma_tile(A, 8, "v16", 6912, L_BUF1, 72)
        A("s_barrier\nL_M_n2:")
    A(f"""
    s_cmp_ge_u32 s3, 9
    s_cbranch_scc1 L_M_bar0
    v_lshlrev_b32 v15, 1, v0
    global_load_ushort v16, v15, {sp(C_)}
    global_load_ushort v17, v15, {sp(C_)} offset:1152
    s_waitcnt vmcnt(0)
    v_lshlrev_b32 v16, 16, v16
    v_lshlrev_b32 v17, 16, v17
    v_mul_f32 v34, 0xbfb8aa3b, v16
    v_mul_f32 v35, 0xbfb8aa3b, v17
    v_exp_f32 v34, v34
    v_exp_f32 v35, v35
    s_nop 0
    v_add_f32 v34, 1.0, v34
    v_add_f32 v35, 1.0, v35
    v_rcp_f32 v34, v34
    v_rcp_f32 v35, v35
    s_nop 0
    v_mul_f32 v16, v16, v34
    v_mul_f32 v17, v17, v35
    v_cvt_pk_bf16_f32 v16, v16, v17
    ds_write_b16 v8, v16
    ds_write_b16_d16_hi v8, v16 offset:{4*ASTR}
    L_M_bar0:
    s_mul_i32 s44, s48, 576
    v_add_u32 v15, s44, v12
    s_mul_i32 s44, s48, {AGS}
    s_lshl_b32 s45, s49, 9
    s_add_u32 s44, s44, s45
    s_lshl_b32 s45, s46, 7
    s_add_u32 s44, s44, s45
    s_add_u32 s44, s44, {WS_AG}
    v_lshl_add_u32 v18, v1, {4 if x4 else 3}, s44
    s_waitcnt vmcnt(0) lgkmcnt(0)
    L_M_skip:
    """)
    A.mktag()
    A("s_barrier")
    A.stamp(2)
    A("s_cmp_lt_u32 s3, 12\ns_cbranch_scc1 L_M_bar1\ns_cmp_ge_u32 s55, 36\ns_cbranch_scc1 L_M_bar1")
    bfrags(A, "v10", 52, 9)
    gemv_mfma(A, "v15", nks=9)
    A("s_mov_b64 exec, 0xffff\ns_nop 6\nv_add_u32 v20, 4, v20\nv_add_u32 v21, 4, v21")
    A.epack("v22", "v20", 7); A.epack("v23", "v21", 7)
    if x4:
        A(f"s_nop 0\nv_mov_b32_dpp v24, v22 row_ror:8 {DPPM}\nv_mov_b32_dpp v25, v23 row_ror:8 {DPPM}\ns_mov_b64 exec, 0xff")
        A(f"global_store_dwordx4 v18, v[22:25], {sp(WS_)} sc1\ns_mov_b64 exec, -1")
    else:
        A(f"global_store_dwordx2 v18, v[22:23], {sp(WS_)} sc1\ns_mov_b64 exec, -1")
    A.stamp(3)
    A(f"""
    L_M_bar1:
    s_sub_u32 s44, s5, 9
    s_lshl_b32 s50, s44, 1                ; slot0 = 2(u-9)
    s_add_u32 s51, s50, 1
    s_add_u32 s45, s4, 44
    s_cmp_ge_u32 s4, 4
    s_cselect_b32 s45, s45, 255
    s_cmp_eq_u32 s5, 13
    s_cselect_b32 s51, s45, s51
    s_lshl_b32 s44, s4, 1
    s_add_u32 s44, s44, s5
    s_lshl_b32 s44, s44, 1
    s_sub_u32 s44, s44, {28 - 16}
    s_add_u32 s45, s44, 1
    s_cmp_ge_u32 s5, 14
    s_cselect_b32 s50, s44, s50
    s_cselect_b32 s51, s45, s51
    v_mul_u32_u24 v19, 1152, v4
    v_lshl_add_u32 v19, v6, 4, v19
    s_mul_i32 s44, s4, {512*1152}
    v_add_u32 v19, s44, v19
    """)
    A.srd(12, WO_, 4096*1152)
    A("s_barrier")
    if pt:
        A(f"""
        s_cmp_ge_u32 s3, 3
        s_cbranch_scc1 L_M_pt
        s_cmp_lg_u32 s5, 13
        s_cbranch_scc1 L_M_pt
        s_lshl_b32 s44, s4, 14
        s_lshl_b32 s45, s3, 13
        s_add_u32 s44, s44, s45
        s_add_u32 s44, s44, {WS_OG}
        s_lshl_b32 s45, s4, 11
        s_add_u32 s45, s45, {WS_MLG}
        s_cmp_eq_u32 s3, 2
        s_cselect_b32 s44, s45, s44
        s_cselect_b32 s45, 15, 63
        v_and_b32 v16, s45, v1
        v_lshl_add_u32 v16, v16, 7, s44
        global_load_dword v20, v16, {sp(WS_)} sc1
        L_M_pt:
        """)
    if me: A("s_cmp_ge_u32 s5, 14\ns_cbranch_scc1 L_sl1_d")
    for sl, (reg, buf) in enumerate((("s50", L_BUF0), ("s51", L_BUF1))):
        A(f"""
        s_lshl_b32 s52, {reg}, 7
        s_cmp_ge_u32 {reg}, 16
        s_cbranch_scc1 L_sl{sl}_m
        v_add_u32 v16, s52, v19
        """)
        dma_tile(A, 12, "v16", 1152, buf, 64)
        A(f"""
        s_branch L_sl{sl}_d
        L_sl{sl}_m:
        s_cmp_eq_u32 {reg}, 255
        s_cbranch_scc1 L_sl{sl}_d
        s_add_u32 s52, s52, {2304 - 16*128}
        v_add_u32 v16, s52, v14
        """)
        dma_tile(A, 8, "v16", 6912, buf, 72)
        A(f"L_sl{sl}_d:")
    A("s_waitcnt vmcnt(0)\ns_barrier")
    A.stamp(4)
    if diag & 8: A("s_branch L_end")
    A(f"""
    s_cmp_lt_u32 s3, 8
    s_cbranch_scc1 L_H_p
    s_cmp_ge_u32 s3, 12
    s_cselect_b32 s50, s51, s50
    s_cselect_b32 s44, {L_BUF1}, 0
    v_add_u32 v17, s44, v10
    s_cmp_lt_u32 s50, 16
    s_cbranch_scc1 L_A_s4m
    s_cmp_eq_u32 s50, 255
    s_cbranch_scc1 L_H_x
    s_lshl_b32 s44, s50, 9
    s_lshl_b32 s45, s46, 7
    s_add_u32 s44, s44, s45
    s_add_u32 s44, s44, {WS_MG - 16*512}
    v_lshl_add_u32 v18, v1, 3, s44
    """)
    bfrags(A, "v17")
    gemv_mfma(A, "v12")
    A(f"""
    s_mov_b64 exec, 0xffff
    s_nop 6
    v_cvt_pk_bf16_f32 v22, v20, v21
    v_mov_b32 v23, {TAG}
    global_store_dwordx2 v18, v[22:23], {sp(WS_)} sc1
    s_mov_b64 exec, -1
    """)
    A.stamp(5)
    A(f"""
    L_H_x:
    s_cmp_eq_u32 s5, 15
    s_cbranch_scc1 L_XR
    s_branch L_end
    L_H_p:
    """)
    if trig:
        A(f"""
        s_cmp_lg_u32 s3, 0
        s_cbranch_scc1 L_M_tr
        s_lshl_b32 s52, s4, 3
        s_add_u32 s52, s52, s5
        s_lshl_b32 s52, s52, 7
        s_add_u32 s52, s52, {WS_TR - 9*128}
        v_mov_b32 v20, s52
        v_mov_b32 v19, {TAG}
        global_store_dword v20, v19, {sp(WS_)}
        L_M_tr:
        """)
    A("s_cmp_ge_u32 s5, 14\ns_cbranch_scc1 L_H_x")
    A(f"""
    s_lshl_b32 s50, s4, 4
    s_lshr_b32 s45, s3, 1
    s_lshl_b32 s45, s45, 2
    s_add_u32 s50, s50, s45
    s_and_b32 s44, s3, 1                  ; dh
    s_lshl_b32 s51, s50, 7
    s_add_u32 s51, s51, {WS_MLG}
    v_mov_b32 v18, s51
    s_lshl_b32 s51, s50, 10
    s_lshl_b32 s45, s44, 9
    s_add_u32 s51, s51, s45
    s_add_u32 s51, s51, {WS_OG}
    v_lshl_add_u32 v17, v1, 3, s51
    s_bfe_u32 s45, s3, 0x10001
    s_mul_i32 s45, s45, {ASTR}
    s_lshr_b32 s51, s3, 2
    s_lshl_b32 s51, s51, 9
    s_add_u32 s45, s45, s51
    s_and_b32 s51, s3, 6
    s_lshl_b32 s51, s51, 7
    s_sub_u32 s45, s45, s51
    s_add_u32 s45, s45, {ASTR}
    v_add_u32 v19, s45, v8
    """)
    def oloads():
        for s_ in range(4):
            A(f"global_load_dwordx2 {vr(32+2*s_,2)}, v17, {sp(WS_)} offset:{s_*1024} sc1")
    A.dual_head("L_A_ml", ["v17", "v18"])
    A(f"s_sleep {ps//2}")
    for s_ in range(4):
        A(f"global_load_dwordx4 {vr(48+4*s_,4)}, v18, {sp(WS_)} offset:{s_*128} sc1")
    oloads()
    A("s_waitcnt vmcnt(4)")
    A.etagcheck([f"v{48+i}" for i in range(16)], "v20", "L_A_ml")
    for h in range(2):
        A(f"v_max_f32 v{20+h}, v{48+2*h}, v{52+2*h}\nv_max3_f32 v{20+h}, v{56+2*h}, v{60+2*h}, v{20+h}")
    for s_ in range(4):
        for h in range(2): A(f"v_sub_f32 v{22+2*s_+h}, v{48+4*s_+2*h}, v{20+h}")
    for i in range(8): A(f"v_mul_f32 v{22+i}, {hex(LOG2E)}, v{22+i}")
    for i in range(8): A(f"v_exp_f32 v{22+i}, v{22+i}")
    for s_ in range(4):
        for h in range(2):
            A(f"{'v_mul_f32' if s_ == 0 else 'v_fmac_f32'} v{20+h}, v{22+2*s_+h}, v{49+4*s_+2*h}")
    A("v_rcp_f32 v20, v20\nv_rcp_f32 v21, v21\ns_nop 0")
    for i in range(8): A(f"v_mul_f32 v{22+i}, v{22+i}, v{20+(i&1)}")
    A.stamp(7)
    A("s_branch L_A_ochk")
    A.dual_head("L_A_h3", ["v17"], init=False)
    oloads()
    A("L_A_ochk:\ns_waitcnt vmcnt(0)")
    A.etagcheck([f"v{32+i}" for i in range(8)], "v20", "L_A_h3")
    A("v_mul_f32 v30, v22, v32\nv_mul_f32 v31, v23, v33")
    for s_ in range(1, 4):
        A(f"v_fmac_f32 v30, v{22+2*s_}, v{32+2*s_}\nv_fmac_f32 v31, v{23+2*s_}, v{33+2*s_}")
    A(f"""
    v_cvt_pk_bf16_f32 v30, v30, v31
    ds_write_b16 v19, v30
    ds_write_b16_d16_hi v19, v30 offset:256
    s_waitcnt lgkmcnt(0)
    s_barrier
    """)
    A.stamp(8)
    A("s_branch L_end")
    A(f"""
    L_A_s4m:
    v_and_b32 v18, 1, v1
    v_mul_u32_u24 v18, {ASTR}, v18
    v_add_u32 v18, v18, v11
    v_add_u32 v18, {ASTR}, v18
    s_mul_i32 s45, s4, 4608
    s_lshl_b32 s44, s50, 9
    s_add_u32 s45, s45, s44
    s_lshl_b32 s44, s46, 7
    s_add_u32 s45, s45, s44
    s_add_u32 s45, s45, {WS_PX}
    v_lshl_add_u32 v19, v1, {4 if x4 else 3}, s45
    {f's_mov_b64 exec, 0xffff' + chr(10) + f'global_load_dword v125, v19, {sp(WS_)} sc1' + chr(10) + 's_mov_b64 exec, -1' if ppt else ''}
    """)
    bfrags(A, "v17", 56, 16)
    A("s_waitcnt lgkmcnt(0)\ns_barrier")
    gemv_mfma(A, "v18", vb=56, depth=8, nks=16)
    A("s_mov_b64 exec, 0xffff\ns_nop 6")
    A.epack("v24", "v20"); A.epack("v25", "v21")
    if x4:
        A(f"s_nop 0\nv_mov_b32_dpp v26, v24 row_ror:8 {DPPM}\nv_mov_b32_dpp v27, v25 row_ror:8 {DPPM}\ns_mov_b64 exec, 0xff")
        A(f"global_store_dwordx4 v19, v[24:27], {sp(WS_)} sc1\ns_mov_b64 exec, -1")
    else:
        A(f"global_store_dwordx2 v19, v[24:25], {sp(WS_)} sc1\ns_mov_b64 exec, -1")
    A.stamp(9)
    A("s_branch L_end")

    A("L_KT:\ns_waitcnt lgkmcnt(0)")
    A.mktag()
    A(f"""
    s_cmp_lt_u32 s3, 9
    s_cbranch_scc1 L_HR_go
    s_cmp_ge_u32 s3, {9 + hq}
    s_cbranch_scc1 L_S5
    s_lshr_b32 s44, s{WQ_}, 7
    s_sub_u32 s44, 3, s44
    s_and_b32 s44, s44, 7
    s_lshl_b32 s45, s4, 3
    s_add_u32 s44, s44, s45
    s_lshl_b32 s44, s44, 7
    s_sub_u32 s45, 24, s3
    v_lshlrev_b32 v15, 7, v4              ; (l>>3)*128 rows
    v_add_u32 v15, v15, v7
    s_lshl_b32 s45, s45, 3
    v_add_u32 v15, s45, v15               ; row = i*128 + w*8 + (l&7)
    v_subrev_u32 v16, {512 + 56}, v15
    v_cmp_gt_u32 vcc, 512, v15
    s_nop 1
    v_cndmask_b32 v15, v16, v15, vcc
    v_lshl_add_u32 v15, v15, 13, s44
    global_load_dword v125, v15, {sp(WQ_)}{NT}
    s_branch L_S5
    L_HR_go:
    v_lshlrev_b32 v15, 1, v0
    global_load_ushort v33, v15, {sp(X_)}
    global_load_ushort v34, v15, {sp(X_)} offset:1152
    s_mul_i32 s44, s4, 4608
    s_add_u32 s44, s44, {WS_HL}
    v_lshl_add_u32 v55, v0, 3, s44
    global_load_dword v57, v55, {sp(WS_)} sc1
    v_mul_u32_u24 v15, 36, v1
    global_load_dwordx4 v[24:27], v15, {sp(X_)}
    global_load_dwordx4 v[28:31], v15, {sp(X_)} offset:16
    global_load_dword v32, v15, {sp(X_)} offset:32
    v_lshlrev_b32 v15, 3, v0
    """)
    if x4: A("""    v_and_b32 v15, -16, v0
    v_lshlrev_b32 v15, 3, v15
    v_lshl_or_b32 v15, v7, 4, v15
    v_and_b32 v39, 8, v0
    v_or_b32 v15, v15, v39
""")
    A(f"""
    v_add_u32 v52, {WS_AG + 2304}, v15
    v_add_u32 v53, {WS_AG + 2304 + AGS}, v15
    """)
    def ag_loads():
        for k in range(2):
            A(f"global_load_dwordx2 {vr(40+4*k,2)}, v{52+k}, {sp(WS_)} offset:-2304 sc1")
            A(f"global_load_dwordx2 {vr(42+4*k,2)}, v{52+k}, {sp(WS_)} offset:2304 sc1")
    A(f"""
    s_mov_b32 s44, 0x3f803f80
    v_mov_b32 v35, 0
    v_mov_b32 v36, 0
    s_waitcnt vmcnt(0)
    v_mov_b32 v61, {TAG}
    """)
    for i in range(9):
        A(f"v_dot2_f32_bf16 v35, v{24+i}, s44, v35\nv_dot2_f32_bf16 v36, v{24+i}, v{24+i}, v36")
    A("s_nop 2")
    A.row_reduce("v_add_f32", ["v35", "v36"])
    A(f"""
    v_mov_b32 v37, v35
    v_mov_b32 v38, v36
    s_nop 0
    v_permlane16_swap_b32 v35, v37
    v_permlane16_swap_b32 v36, v38
    v_add_f32 v35, v35, v37
    v_add_f32 v36, v36, v38
    v_mul_f32 v35, {INV576}, v35
    v_mul_f32 v36, {INV576}, v36
    v_fma_f32 v36, -v35, v35, v36
    """)
    ln_finish(A, "v35", "v36", "v38")
    A("""
    v_readlane_b32 s48, v35, 0
    v_readlane_b32 s49, v35, 32
    v_readlane_b32 s50, v38, 0
    v_readlane_b32 s51, v38, 32
    v_lshlrev_b32 v33, 16, v33
    v_lshlrev_b32 v34, 16, v34
    v_subrev_f32 v33, s48, v33
    v_subrev_f32 v34, s49, v34
    """)
    A.r1("v33", "v34")
    A("v_mul_f32 v33, s50, v33\nv_mul_f32 v34, s51, v34")
    A.r1("v33", "v34")
    A("s_mov_b32 s7, 0")
    A(f"L_HR_h:\ns_add_u32 s7, s7, 1\ns_cmp_gt_u32 s7, {SPIN}\ns_cbranch_scc1 L_end\ns_sleep {ps}")
    ag_loads()
    A("s_waitcnt vmcnt(0)")
    A.etagcheck([f"v{40+i}" for i in range(8)], "v39", "L_HR_h", "s100", 7)
    for i in range(4): A(f"v_add_f32 v{40+i}, v{40+i}, v{44+i}")
    A.r1("v40", "v41", "v42", "v43")
    A("v_add_f32 v42, 1.0, v42\nv_add_f32 v43, 1.0, v43")
    A.r1("v42", "v43")
    A("v_mul_f32 v42, v33, v42\nv_mul_f32 v43, v34, v43")
    A.r1("v42", "v43")
    A(f"""
    v_add_f32 v42, v42, v40
    v_add_f32 v43, v43, v41
    v_cvt_pk_bf16_f32 v60, v42, v43
    """)
    if dq: A(f"s_sleep {dq}")
    A.dual_store("global_store_dwordx2", "v55", "v[60:61]")
    A.stamp(3)
    A("s_branch L_S5")
    A("L_XR:")
    if diag & 8: A("s_branch L_end")
    A(f"""
    v_lshlrev_b32 v16, 2, v0
    v_min_u32 v16, 1532, v16
    v_add_u32 v16, {L_ST}, v16
    ds_write_b32 v16, v3
    v_mov_b32 v21, {L_WCNT}
    v_mov_b32 v22, 1
    s_waitcnt lgkmcnt(0)
    s_barrier
    s_cmp_eq_u32 s3, 9
    s_cbranch_scc1 L_XR_stat
    s_cmp_gt_u32 s3, 9
    s_cbranch_scc1 L_end
    v_lshlrev_b32 v16, 1, v0
    global_load_ushort v80, v16, {sp(X_)}
    global_load_ushort v81, v16, {sp(X_)} offset:1152
    v_lshlrev_b32 v16, 3, v0
    v_add_u32 v17, {WS_MG + 2304}, v16
    v_add_u32 v18, {WS_MG + 9216}, v16
    """)
    if x4: A("""    v_and_b32 v16, -16, v0
    v_lshlrev_b32 v16, 3, v16
    v_lshl_or_b32 v16, v7, 4, v16
    v_and_b32 v30, 8, v0
    v_or_b32 v16, v16, v30
""")
    for k in range(4): A(f"v_add_u32 v{88+k}, {WS_PX + 2304 + k*9216}, v16")
    A(f"""
    s_mul_i32 s44, s4, 4608
    s_lshl_b32 s44, s44, 1
    s_add_u32 s45, s44, {WS_RG}
    v_lshl_add_u32 v26, v0, 4, s45
    s_add_u32 s45, s44, {WS_XA}
    v_lshl_add_u32 v27, v0, 4, s45
    v_and_b32 v24, 48, v1
    v_lshlrev_b32 v24, 2, v24
    s_lshl_b32 s44, s3, 2
    s_add_u32 s44, s44, {L_ST}
    v_add_u32 v24, s44, v24
    s_mov_b32 s56, 0x00010001
    s_mov_b32 s57, 0x00010001
    """)
    def partial_stats(off, r):
        for i in range(6): A(f"v_permlane32_swap_b32 v{r+2*i}, v{r+1+2*i}")
        for i in range(6): A(f"v_add_f32 v{r+2*i}, v{r+2*i}, v{r+1+2*i}")
        A("s_nop 0")
        for i in range(3): A(f"v_permlane16_swap_b32 v{r+4*i}, v{r+2+4*i}")
        for i in range(3): A(f"v_add_f32 v{r+4*i}, v{r+4*i}, v{r+2+4*i}")
        A.row_reduce("v_add_f32", [f"v{r}", f"v{r+4}", f"v{r+8}"])
        A(f"""
        s_mov_b64 exec, s[56:57]
        ds_write_b32 v24, v{r} offset:{off}
        ds_write_b32 v24, v{r+4} offset:{off+256}
        ds_write_b32 v24, v{r+8} offset:{off+512}
        s_mov_b64 exec, -1
        """)
    A(f"""
    s_mov_b32 s7, 0
    s_movk_i32 s60, 0x1ff
    L_XR_px:
    s_add_u32 s7, s7, 1
    s_cmp_gt_u32 s7, {SPIN}
    s_cbranch_scc1 L_end
    """)
    for k in range(8):
        A(f"s_bitcmp0_b32 s60, {k}\ns_cbranch_scc1 L_px_l{k}")
        A(f"global_load_dwordx2 {vr(96+2*k,2)}, v{88+k//2}, {sp(WS_)} offset:{2304 if k & 1 else -2304} sc1")
        A(f"L_px_l{k}:")
    A("s_bitcmp0_b32 s60, 8\ns_cbranch_scc1 L_px_m")
    for j, (r, o) in enumerate((("v17", -2304), ("v17", 2304), ("v18", 0))):
        A(f"global_load_dwordx2 {vr((40, 34, 42)[j],2)}, {r}, {sp(WS_)} offset:{o} sc1")
    A("s_waitcnt vmcnt(0)")
    A.tagcheck(["v41", "v35", "v43", "v43"], "v30", "v31", "L_px_m")
    A(f"""
    s_bitset0_b32 s60, 8
    v_lshlrev_b32 v82, 16, v40
    v_and_b32 v83, 0xffff0000, v40        ; ga
    v_and_b32 v43, 0xffff0000, v42
    v_lshlrev_b32 v42, 16, v42
    v_add_f32 v42, 1.0, v42
    v_add_f32 v43, 1.0, v43
    v_cvt_pk_bf16_f32 v32, v42, v43       ; g
    v_mov_b32 v33, {TAG}
    """)
    A(f"""
    global_store_dwordx4 v26, v[32:35], {sp(WS_)}
    v_mov_b32 v36, v32
    v_mov_b32 v37, v33
    v_mov_b32 v38, v34
    v_mov_b32 v39, v35
    v_lshlrev_b32 v80, 16, v80
    v_lshlrev_b32 v81, 16, v81
    v_lshlrev_b32 v84, 16, v32
    v_and_b32 v85, 0xffff0000, v32
    v_lshlrev_b32 v86, 16, v34
    v_and_b32 v87, 0xffff0000, v34
    v_mov_b32 v44, v84
    v_mov_b32 v45, v85
    v_mul_f32 v46, v84, v84
    v_mul_f32 v47, v85, v85
    v_mov_b32 v48, v86
    v_mov_b32 v49, v87
    v_mul_f32 v50, v86, v86
    v_mul_f32 v51, v87, v87
    v_mul_f32 v52, v84, v86
    v_mul_f32 v53, v85, v87
    v_mov_b32 v54, 0
    v_mov_b32 v55, 0
    """)
    partial_stats(0, 44)
    A.lds_inc(4, "v21", "v22")
    A.stamp(6)
    A("s_branch L_px_m2\nL_px_m:\ns_waitcnt vmcnt(0)\nL_px_m2:")
    for k in range(8):
        A(f"""
        s_bitcmp0_b32 s60, {k}
        s_cbranch_scc1 L_px_c{k}
        v_xor_b32 v{96+2*k}, {ETAG}, v{96+2*k}
        v_xor_b32 v{97+2*k}, {ETAG}, v{97+2*k}
        v_or_b32 v30, v{96+2*k}, v{97+2*k}
        v_and_b32 v30, 63, v30
        v_cmp_ne_u32 vcc, 0, v30
        s_cbranch_vccnz L_px_c{k}
        s_bitset0_b32 s60, {k}
        L_px_c{k}:
        """)
    A("s_cmp_lg_u32 s60, 0\ns_cbranch_scc1 L_XR_px")
    A.stamp(10)
    for i in range(4): A(f"v_add_f32 v{96+2*i}, v{96+2*i}, v{104+2*i}\nv_add_f32 v{97+2*i}, v{97+2*i}, v{105+2*i}")
    for i in range(2): A(f"v_add_f32 v{96+2*i}, v{96+2*i}, v{100+2*i}\nv_add_f32 v{97+2*i}, v{97+2*i}, v{101+2*i}")
    A("v_add_f32 v96, v96, v98\nv_add_f32 v97, v97, v99")
    A.r1("v96", "v97")
    A("v_mul_f32 v96, v82, v96\nv_mul_f32 v97, v83, v97")
    A.r1("v96", "v97")
    A(f"""
    v_add_f32 v96, v80, v96
    v_add_f32 v97, v81, v97
    v_cvt_pk_bf16_f32 v34, v96, v97
    v_lshlrev_b32 v96, 16, v34
    v_and_b32 v97, 0xffff0000, v34        ; x1
    v_mul_f32 v100, v96, v84
    v_mul_f32 v101, v97, v85
    v_cvt_pk_bf16_f32 v32, v100, v101
    global_store_dwordx4 v27, v[32:35], {sp(WS_)}
    v_lshlrev_b32 v100, 16, v32
    v_and_b32 v101, 0xffff0000, v32       ; a
    v_mul_f32 v98, v96, v96
    v_mul_f32 v99, v97, v97
    v_mul_f32 v102, v100, v100
    v_mul_f32 v103, v101, v101
    v_mul_f32 v104, v100, v84
    v_mul_f32 v105, v101, v85
    v_mul_f32 v106, v100, v86
    v_mul_f32 v107, v101, v87
    """)
    partial_stats(768, 96)
    A("s_waitcnt lgkmcnt(0)\ns_barrier")
    A("s_barrier")
    A(f"v_add_u32 v27, {WS_GOFF}, v27\nglobal_store_dwordx4 v27, v[32:35], {sp(WS_)} sc1")
    A(f"v_add_u32 v26, {WS_GOFF}, v26\nglobal_store_dwordx4 v26, v[36:39], {sp(WS_)} sc1")
    A.stamp(11)
    A(f"""
    s_branch L_end
    L_XR_stat:
    v_lshlrev_b32 v22, 2, v1
    v_add_u32 v22, {L_ST}, v22
    v_lshrrev_b32 v20, 5, v1
    s_lshl_b32 s44, s4, 7
    s_add_u32 s44, s44, {WS_CF}
    v_lshl_add_u32 v20, v20, 4, s44
    global_load_dword v23, v20, {sp(WS_)} sc1
    """)
    def gather_stats(off, cnt, r, sleep):
        if sleep: A.lds_spin(cnt, 9, "v23", "v21")
        else: A("s_barrier")
        A(f"""
        ds_read_b32 v{r}, v22 offset:{off}
        ds_read_b32 v{r+2}, v22 offset:{off+256}
        ds_read_b32 v{r+4}, v22 offset:{off+512}
        s_waitcnt lgkmcnt(0)
        """)
        A.row_reduce("v_add_f32", [f"v{r}", f"v{r+2}", f"v{r+4}"])
        for q in (r, r+2, r+4): A(f"v_mul_f32 v{q}, {INV576}, v{q}")
        for q in (r, r+2, r+4): A(f"v_mov_b32 v{q+1}, v{q}")
        for q in (r, r+2, r+4): A(f"v_permlane16_swap_b32 v{q}, v{q+1}")
    A("s_waitcnt vmcnt(0)")
    gather_stats(0, 4, 100, True)
    gather_stats(768, 8, 84, False)
    A("v_fma_f32 v85, -v84, v84, v85")
    ln_finish(A, "v84", "v85", "v90")
    A(f"""
    v_fma_f32 v86, -v84, v100, v86
    v_fma_f32 v89, -v84, v104, v89
    v_add_f32 v88, v88, v88
    v_fma_f32 v88, v84, v101, -v88
    v_fma_f32 v87, v84, v88, v87
    v_fma_f32 v86, v90, v86, v102         ; mean2
    v_add_f32 v89, v89, v89
    v_fma_f32 v87, v90, v87, v89
    v_fma_f32 v87, v90, v87, v103         ; E[h2^2]
    v_fma_f32 v87, -v86, v86, v87         ; var2
    """)
    ln_finish(A, "v86", "v87", "v94")
    A(f"""
    v_mul_f32 v92, v90, v94               ; c0
    v_mul_f32 v95, -v86, v94              ; c3
    v_mul_f32 v93, -v84, v92              ; c1
    """)
    for r in range(92, 96): A.epack(f"v{r}", f"v{r}")
    A("s_mov_b32 exec_lo, 1\ns_mov_b32 exec_hi, 1")
    A.dual_store("global_store_dwordx4", "v20", "v[92:95]")
    A("s_mov_b64 exec, -1\ns_barrier")
    A.stamp(12)
    A("s_branch L_end")

    A(f"""
    L_S5:
    {'s_branch L_end' if diag & 8 else ''}
    s_mul_i32 s47, s4, 9
    s_add_u32 s47, s47, s5                ; f
    """)
    A.srd(8, W1_, 576*9216)
    A.srd(12, W2_, 4608*1152)
    A(f"""
    s_lshl_b32 s44, s47, 7
    v_mul_u32_u24 v14, 9216, v4
    v_lshl_add_u32 v14, v6, 4, v14
    v_add_u32 v14, s44, v14
    s_lshl_b32 s45, s46, 5
    s_add_u32 s44, s44, s45
    v_and_b32 v15, 15, v1
    v_lshl_add_u32 v15, v15, 1, s44
    global_load_ushort v19, v15, {sp(B1_)}
    v_mul_u32_u24 v15, 0x38f, v0
    v_lshrrev_b32 v15, 16, v15
    v_mul_u32_u24 v16, 72, v15
    v_sub_u32 v16, v0, v16
    v_and_b32 v17, 6, v15
    v_xor_b32 v16, v16, v17
    v_mul_u32_u24 v15, 1152, v15
    v_lshl_add_u32 v15, v16, 4, v15
    s_mul_i32 s49, s4, 9216
    s_add_u32 s45, s49, {WS_RG}
    v_lshl_add_u32 v80, v0, 4, s45
    s_add_u32 s45, s49, {WS_XA}
    v_lshl_add_u32 v81, v0, 4, s45
    v_lshrrev_b32 v20, 2, v1
    v_mul_u32_u24 v20, 1152, v20
    v_lshl_add_u32 v20, v9, 3, v20
    v_add_u32 v20, {L_BUF1}, v20
    v_bfe_u32 v17, v1, 3, 2
    s_mul_i32 s48, s3, 3
    """)
    for i in range(3):
        A(f"s_add_u32 s44, s48, {i}\nv_xor_b32 v{92+i}, s44, v17\nv_lshl_add_u32 v{92+i}, v{92+i}, 5, v20")
    A(f"""
    s_mul_i32 s44, s48, {2*4608}
    s_lshl_b32 s45, s47, 6
    s_add_u32 s44, s44, s45
    s_add_u32 s44, s44, {WS_FG}
    v_mul_u32_u24 v20, 4608, v4
    v_lshl_add_u32 v20, v7, 3, v20
    v_add_u32 v76, s44, v20
    v_and_b32 v79, 1, v1
    v_lshlrev_b32 v79, 7, v79
    v_and_b32 v20, 48, v1
    v_add_u32 v79, v79, v20
    v_add_u32 v79, {L_H1}, v79
    s_lshl_b32 s44, s47, 3
    v_add_u32 v77, s44, v7                ; col
    v_lshrrev_b32 v78, 5, v1              ; b
    v_mul_u32_u24 v82, 1152, v78
    v_lshl_add_u32 v82, v77, 1, v82
    v_lshlrev_b32 v83, 1, v77
    s_cmp_lg_u32 s3, 10
    s_cbranch_scc1 L_S5_nf
    global_load_ushort v84, v83, {sp(B2_)}
    global_load_ushort v85, v82, {sp(OUT_)}
    L_S5_nf:
    v_lshlrev_b32 v83, 3, v77
    v_add_u32 v83, {WS_MG + 1728*8}, v83
    s_add_u32 s44, s49, {WS_XA + 8}
    v_lshl_add_u32 v77, v77, 4, s44
    v_lshlrev_b32 v78, 4, v78             ; 16*b
    s_mul_i32 s44, s47, 4608
    s_add_u32 s44, s44, {WS_FG + 2048}
    v_lshl_add_u32 v88, v1, 3, s44
    v_mov_b32 v21, {L_WCNT}
    v_mov_b32 v22, 1
    """)
    if trig:
        A(f"""
        s_cmp_lg_u32 s3, 11
        s_cbranch_scc1 L_S5_tb
        s_lshr_b32 s44, s{W1_}, 7
        s_add_u32 s44, s44, s47
        s_and_b32 s44, s44, 7
        s_cmp_eq_u32 s44, {3 if c3 else 9}
        s_cbranch_scc1 L_S5_tb
        s_lshl_b32 s44, s4, 10
        s_add_u32 s44, s44, {WS_TR}
        v_lshl_add_u32 v16, v7, 7, s44
        s_mov_b32 s7, 0
        L_S5_trig:
        s_sleep {ps}
        global_load_dword v17, v16, {sp(WS_)} sc1
        s_add_u32 s7, s7, 1
        s_cmp_gt_u32 s7, {NLOC//2}
        s_cbranch_scc1 L_S5_tb
        s_waitcnt vmcnt(0)
        v_cmp_eq_u32 vcc, {TAG}, v17
        s_and_b32 s44, vcc_lo, {tm}
        s_bcnt1_i32_b32 s44, s44
        s_cmp_lt_u32 s44, {trig}
        s_cbranch_scc1 L_S5_trig
        L_S5_tb:
        """)
    A("s_barrier")
    A.stamp(5)
    dma_tile(A, 8, "v14", 9216, L_BUF0)
    A(f"""
    s_barrier
    s_cmp_ge_u32 s3, 9
    s_cbranch_scc1 L_S5_hi
    s_mul_i32 s44, s47, {64*1152}
    s_lshl_b32 s45, s3, 10
    s_add_u32 s45, s45, {L_BUF1}
    """)
    for o in range(8):
        A(f"s_mov_b32 m0, s45\ns_add_u32 s45, s45, 9216")
        A(f"buffer_load_dwordx4 v15, s[12:15], s44 offen{NT} lds")
        A(f"s_add_u32 s44, s44, 9216")
    A(f"global_load_dwordx4 v[24:27], v80, {sp(WS_)} sc1\ns_waitcnt vmcnt(9)")
    A.lds_inc(4, "v21", "v22")
    A("s_mov_b32 s7, 0\ns_branch L_S5_rgc")
    A.dual_head("L_S5_rg", ["v80", "v81"], init=False)
    A(f"s_sleep {ps}\nglobal_load_dwordx4 v[24:27], v80, {sp(WS_)} sc1\nL_S5_rgc:\ns_waitcnt vmcnt(0)")
    A.tagcheck(["v25", "v27"], "v30", "v31", "L_S5_rg")
    A(f"""
    v_mov_b32 v35, 0x3f80
    ds_write_b16 v8, v24 offset:{ASTR}
    ds_write_b16_d16_hi v8, v24 offset:{5*ASTR}
    ds_write_b16 v8, v26 offset:{2*ASTR}
    ds_write_b16_d16_hi v8, v26 offset:{6*ASTR}
    ds_write_b16 v8, v35 offset:{3*ASTR}
    ds_write_b16 v8, v35 offset:{7*ASTR}
    s_waitcnt lgkmcnt(0)
    {f's_sleep {ds5}' if ds5 else ''}
    s_barrier
    global_load_dwordx2 v[24:25], v81, {sp(WS_)} sc1
    """)
    A.stamp(6)
    def w2frags():
        for i in range(3):
            for ks in range(2):
                for half in range(2):
                    A(f"ds_read_b64_tr_b16 {vr(52+i*8+ks*4+half*2,2)}, v{92+i} offset:{(ks*32+half*16)*1152}")
    w2frags()
    A("s_branch L_S5_xac")
    A.dual_head("L_S5_xa", ["v81"], init=False)
    A(f"global_load_dwordx2 v[24:25], v81, {sp(WS_)} sc1\nL_S5_xac:\ns_waitcnt vmcnt(0)")
    A.tagcheck(["v25"], None, None, "L_S5_xa")
    A(f"""
    ds_write_b16 v8, v24
    ds_write_b16_d16_hi v8, v24 offset:{4*ASTR}
    s_waitcnt lgkmcnt(0)
    s_barrier
    """)
    A.stamp(7)
    A(f"""
    s_branch L_S5_g2
    L_S5_hi:
    s_waitcnt vmcnt(0)
    """)
    A.lds_inc(4, "v21", "v22")
    A(f"""
    s_cmp_ge_u32 s3, 12
    s_cbranch_scc1 L_S5_g1
    s_barrier
    """)
    w2frags()
    A(f"""
    s_cmp_lg_u32 s3, 10
    s_cbranch_scc1 L_S5_h2
    global_load_dwordx2 v[86:87], v83, {sp(WS_)} sc1
    s_barrier
    s_mov_b32 s7, 0
    s_branch L_S5_gb1
    """)
    A.dual_head("L_S5_gb", ["v77"], init=False)
    A(f"""
    global_load_dwordx2 v[86:87], v83, {sp(WS_)} sc1
    L_S5_gb1:
    global_load_dwordx2 v[90:91], v77, {sp(WS_)} sc1
    s_waitcnt vmcnt(0)
    """)
    A.tagcheck(["v87", "v91"], "v30", "v31", "L_S5_gb")
    A(f"""
    v_lshrrev_b32 v86, v78, v86
    v_lshrrev_b32 v85, v78, v90
    v_lshlrev_b32 v86, 16, v86            ; gb
    v_lshlrev_b32 v85, 16, v85            ; x1
    v_lshlrev_b32 v84, 16, v84            ; b2
    s_branch L_S5_g2
    L_S5_h2:
    s_barrier
    L_S5_g2:
    s_mov_b32 s56, 0xffff0000
    s_mov_b32 s57, 0
    s_mov_b32 s58, 0
    s_mov_b32 s59, 0xffff
    s_waitcnt lgkmcnt(0)
    s_barrier
    ds_read_b128 v[32:35], v79
    ds_read_b128 v[36:39], v79 offset:64
    s_waitcnt lgkmcnt(1)
    """)
    for i in range(3):
        A(f"v_mfma_f32_16x16x32_bf16 {vr(40+4*i,4)}, v[32:35], {vr(52+8*i,4)}, 0")
    A("s_waitcnt lgkmcnt(0)")
    for i in range(3):
        A(f"v_mfma_f32_16x16x32_bf16 {vr(40+4*i,4)}, v[36:39], {vr(56+8*i,4)}, {vr(40+4*i,4)}")
    A(f"""
    s_mov_b32 exec_hi, 0xffff
    s_nop 5
    v_cndmask_b32 v28, v40, v44, s[56:57]
    v_cndmask_b32 v29, v41, v45, s[56:57]
    v_cndmask_b32 v28, v28, v48, s[58:59]
    v_cndmask_b32 v29, v29, v49, s[58:59]
    """)
    A.epack("v28", "v28"); A.epack("v29", "v29")
    A(f"global_store_dwordx2 v76, v[28:29], {sp(WS_)} sc1\ns_mov_b64 exec, -1")
    A.stamp(11)
    A(f"""
    s_cmp_lg_u32 s3, 10
    s_cbranch_scc1 L_end
    {f's_sleep {fgs}' if fgs else 's_waitcnt vmcnt(0)'}
    """)
    A.spin_head("L_S5_fg")
    for i in range(9):
        A(f"global_load_dwordx2 {vr(40+2*i,2)}, v88, {sp(WS_)} offset:{i*512-2048} sc1")
    A("s_waitcnt vmcnt(0)")
    A.etagcheck([f"v{40+i}" for i in range(18)], "v30", "L_S5_fg")
    A.stamp(12)
    fold8(A, 9, 40, 41, 42)
    A.r1("v40")
    A("v_add_f32 v40, v84, v40")
    A.r1("v40")
    A("v_mul_f32 v40, v86, v40")
    A.r1("v40")
    A(f"""
    v_add_f32 v40, v85, v40
    v_cvt_pk_bf16_f32 v40, v40, v40
    s_mov_b32 exec_lo, 0xff
    s_mov_b32 exec_hi, 0xff
    global_store_short v82, v40, {sp(OUT_)}
    s_cmp_lg_u32 s47, 0
    s_cbranch_scc1 L_S5_fin
    s_mov_b64 exec, 1
    v_mov_b32 v33, {TAG}
    global_store_dword v3, v33, {sp(WS_)} sc1
    L_S5_fin:
    s_mov_b64 exec, -1
    """)
    if probe:
        base, stride = {1: (0xB0000, 128*72), 2: (0x400000, 65536), 3: (0x1000000, 0x200000), 4: (0xB0000, 128*72)}[probe]
        A(f"s_lshl_b32 s44, s47, 7\ns_add_u32 s44, s44, {base}\nv_mov_b32 v60, s44\ns_waitcnt vmcnt(0)\ns_mov_b64 exec, 1")
        for i in range(8):
            if probe == 1: A(f"global_store_dword v60, v3, {sp(WS_)} sc1")
            else: A(f"global_load_dword v61, v60, {sp(WS_)} nt")
            A(f"s_waitcnt vmcnt(0)\nv_add_u32 v60, {stride}, v60")
        A("s_mov_b64 exec, -1")
    A.stamp(13)
    A("s_branch L_end")
    A("L_S5_g1:\nv_mov_b32 v15, v10")
    A.lds_spin(4, 16, "v16", "v21")
    bfrags(A, "v15")
    k0_ = -2.0 * 1.4426950408889634 * 0.7978845608028654
    A(f"""
    v_bfe_u32 v16, v1, 4, 1
    v_lshlrev_b32 v15, 7, v16
    s_lshl_b32 s44, s4, 7
    s_add_u32 s44, s44, {WS_CF}
    v_lshl_add_u32 v18, v16, 4, s44
    v_bfe_u32 v16, v1, 2, 2
    v_lshl_or_b32 v15, v16, 4, v15
    v_lshl_or_b32 v15, v9, 1, v15
    s_lshr_b32 s44, s46, 1
    s_lshl_b32 s44, s44, 6
    s_and_b32 s45, s46, 1
    s_lshl_b32 s45, s45, 3
    s_add_u32 s44, s44, s45
    s_add_u32 s44, s44, {L_H1}
    v_add_u32 v15, s44, v15
    v_lshlrev_b32 v19, 16, v19
    v_mul_u32_u24 v16, {ASTR}, v7
    v_add_u32 v16, v11, v16               ; A rows = i&7
    v_mov_b32 v17, {f2h(k0_)}
    s_waitcnt lgkmcnt(0)
    s_barrier
    s_barrier
    """)
    cfl = f"global_load_dwordx4 v[52:55], v18, {sp(WS_)} sc1"
    gemv_mfma(A, "v16", mid=(cfm, cfl))
    A.stamp(9)
    A("s_mov_b32 s7, 0\ns_branch L_S5_cfc")
    A.dual_head("L_S5_cf", ["v18"], init=False)
    A(f"{cfl}\nL_S5_cfc:\ns_waitcnt vmcnt(0)")
    A.etagcheck(["v52", "v53", "v54", "v55"], "v30", "L_S5_cf")
    A.stamp(8)
    A(f"""
    v_mul_f32 v20, v20, v52
    v_mul_f32 v22, v22, v54
    v_fmac_f32 v20, v21, v53
    v_fmac_f32 v22, v23, v55
    v_add_f32 v20, v20, v22
    """)
    A.r1("v20")
    A("v_add_f32 v20, v20, v19")
    A.r1("v20")
    A(f"""
    v_mul_f32 v21, v20, v20
    v_fmamk_f32 v21, v21, {f2h(k0_*0.044715)}, v17
    v_mul_f32 v21, v21, v20
    v_exp_f32 v21, v21
    s_nop 0
    v_add_f32 v21, 1.0, v21
    v_rcp_f32 v21, v21
    s_mov_b32 exec_hi, 0
    v_mul_f32 v21, v21, v20
    v_cvt_pk_bf16_f32 v21, v21, v21
    ds_write_b16 v15, v21
    s_mov_b64 exec, -1
    s_waitcnt lgkmcnt(0)
    s_barrier
    """)
    A.stamp(10)
    A("L_end:")
    if dbg:
        maps = {"A": {1: 4, 2: 5, 4: 6, 7: 7, 9: 8, 10: 9, 12: 14}, "B": {4: 3, 5: 10, 6: 11, 8: 12, 11: 13}, "M": {3: 2, 5: 15}}
        A(f"""
        s_mov_b64 exec, -1
        s_lshl_b32 s44, 1, s3
        s_and_b32 s44, s44, {(1<<0)|(1<<9)|(1<<12)|(1<<15)}
        s_cbranch_scc0 L_exit
        s_load_dwordx2 s[46:47], s[0:1], 104
        v_mov_b32 v125, 0x400
        v_readlane_b32 s44, v127, 0
        s_nop 3
        s_not_b32 s44, s44
        v_writelane_b32 v127, s44, 15
        v_writelane_b32 v125, 4, 0
        v_writelane_b32 v125, 0, 15
        s_lshr_b32 s45, s2, 3
        s_cmp_lt_u32 s45, 16
        s_cbranch_scc1 L_dbg_A
        s_cmp_lt_u32 s45, 25
        s_cbranch_scc1 L_dbg_B
        """)
        for nm in ("M", "B", "A"):
            A(f"L_dbg_{nm}:")
            for st, sl in maps[nm].items(): A(f"v_writelane_b32 v125, {sl*4}, {st}")
            A("s_branch L_dbg_go")
        A(f"""
        L_dbg_go:
        s_waitcnt lgkmcnt(0)
        v_cmp_gt_u32 vcc, 0x100, v125
        s_and_saveexec_b64 s[48:49], vcc
        global_atomic_umax v125, v127, s[46:47]
        s_endpgm
        """)
    elif stamps:
        A(f"""
        s_mov_b64 exec, 0xffff
        s_lshl_b32 s44, s2, 4
        s_add_u32 s44, s44, s3
        s_lshl_b32 s44, s44, 6
        s_add_u32 s44, s44, {WS_STAMP}
        v_lshl_add_u32 v126, v1, 2, s44
        global_store_dword v126, v127, {sp(WS_)}
        """)
    A("L_exit:\ns_endpgm\nL_codeend:")
    A.footer(128, 102)
    return A

HEAD = """; Fused adaLN + sliding-window GQA decode attention + channel MLP, one persistent launch (gfx950).
"""
if __name__ == "__main__":
    out = sys.argv[1]
    kw = {}
    for o in sys.argv[2:]:
        if "=" in o:
            k, v = o.split("="); kw[k] = int(v)
        elif o == "stamps": kw["stamps"] = True
        elif o == "nont": kw["nt"] = ""
    A = build(**kw)
    open(out, "w").write(HEAD + A.text())
```

```python
import sys, struct
from asmlib import Asm, NAME

WS_EPOCH = 0x0
WS_QG    = 0x4000
WS_TR    = 0x18000
WS_FL    = 0x1C000
WS_PX    = 0x20000
WS_AG    = 0x30000
AGS = 1152*8
WS_MG    = 0x40000
WS_FG    = 0x50000
WS_OG    = 0x100000
WS_MLG   = 0x120000
WS_RG    = 0x124000
WS_XA    = 0x136000
WS_CF    = 0x151000
WS_HL    = 0x152000
WS_GOFF  = 0x80000
WS_QL    = 0x200000
WS_PC    = 0xA2000
WS_STAMP = 0x8000000
AL = 131072; L_Q = 0; L_CNT = 512; L_MX = 640; L_LS = 704; L_P = 1024; PSTR = 1088
ASTR = 1184
L_BUF0 = 0; L_BUF1 = 73728; L_ACT = 147456; L_H1 = L_ACT + 8*ASTR; L_CF = L_H1 + 256; L_WCNT = L_CF + 64; L_ST = L_WCNT + 64; L_X1 = L_ST + 1536
LDS_BYTES = 160768
assert L_X1 <= LDS_BYTES
NLOC = 300
SPIN = 40000
LOG2E = 0x3fb8aa3b
X_, K_, V_, WQ_, WO_, W1_, B1_, W2_, B2_, C_, WM_, OUT_, WS_ = 16, 18, 20, 22, 24, 28, 30, 32, 34, 36, 38, 40, 42
TAG = "s6"; ETAG = "s101"

def sp(n): return f"s[{n}:{n+1}]"
def vr(n, k): return f"v[{n}:{n+k-1}]"
def f2h(x): return hex(struct.unpack("<I", struct.pack("<f", x))[0])
DPPM = "row_mask:0xf bank_mask:0xf"

class G(Asm):
    def __init__(self, stamps=False, nt="nt"):
        super().__init__()
        self.stamps = stamps
        self.nt = (" " + nt) if nt else ""
    def stamp(self, i):
        if self.stamps:
            self(f"s_memrealtime s[96:97]\ns_waitcnt lgkmcnt(0)\nv_writelane_b32 v127, s96, {i}")
    def rbf(self, *pairs):
        for d, s in pairs: self(f"v_cvt_pk_bf16_f32 {d}, {s}, {s}")
        for d, s in pairs: self(f"v_and_b32 {d}, 0xffff0000, {d}")
    def r1(self, *regs): self.rbf(*[(r, r) for r in regs])
    def srd(self, b, ptr, nbytes):
        self(f"s_mov_b32 s{b}, s{ptr}\ns_and_b32 s{b+1}, s{ptr+1}, 0xffff\ns_mov_b32 s{b+2}, {nbytes}\ns_mov_b32 s{b+3}, 0x20000")
    def mktag(self):
        self(f"s_add_u32 s6, s6, 0x9e3779b9\ns_and_b32 {ETAG}, s6, 63\ns_and_b32 s100, s6, 7")
    def tagcheck(self, tags, mn, mx, retry):
        if len(tags) == 1:
            self(f"v_cmp_ne_u32 vcc, {TAG}, {tags[0]}")
        else:
            assert len(tags) % 2 == 0
            for i in range(0, len(tags), 2):
                a, b = tags[i], tags[i+1]
                self(f"v_min3_u32 {mn}, {a}, {b}, {TAG if i == 0 else mn}")
                self(f"v_max3_u32 {mx}, {a}, {b}, {TAG if i == 0 else mx}")
            self(f"v_cmp_ne_u32 vcc, {mn}, {mx}")
        self(f"s_cbranch_vccnz {retry}")
    def etagcheck(self, words, acc, retry, ETAG=ETAG, mask=63):
        assert len(words) % 2 == 0
        for i in range(0, len(words), 2):
            a, b = words[i], words[i+1]
            self(f"v_xor_b32 {a}, {ETAG}, {a}\nv_xor_b32 {b}, {ETAG}, {b}")
            if i == 0: self(f"v_or_b32 {acc}, {a}, {b}")
            else: self(f"v_or3_b32 {acc}, {a}, {b}, {acc}")
        self(f"v_and_b32 {acc}, {mask}, {acc}\nv_cmp_ne_u32 vcc, 0, {acc}\ns_cbranch_vccnz {retry}")
    def epack(self, d, v, mask=63):
        self(f"v_bfi_b32 {d}, {mask}, {ETAG}, {v}")
    def spin_head(self, lab):
        self(f"s_mov_b32 s7, 0\n{lab}:\ns_add_u32 s7, s7, 1\ns_cmp_gt_u32 s7, {SPIN}\ns_cbranch_scc1 L_end")
    def dual_head(self, lab, regs, init=True):
        if init: self("s_mov_b32 s7, 0")
        self(f"{lab}:\ns_add_u32 s7, s7, 1\ns_cmp_gt_u32 s7, {SPIN}\ns_cbranch_scc1 L_end")
        self(f"s_cmp_lg_u32 s7, {NLOC}\ns_cbranch_scc1 {lab}_k")
        for r in regs: self(f"v_add_u32 {r}, {WS_GOFF}, {r}")
        self(f"{lab}_k:")
    def dual_store(self, op, vaddr, data):
        self(f"{op} {vaddr}, {data}, {sp(WS_)}\nv_add_u32 {vaddr}, {WS_GOFF}, {vaddr}\n{op} {vaddr}, {data}, {sp(WS_)} sc1")
    def row_reduce(self, op, regs, steps=4):
        for ctl in ("quad_perm:[1,0,3,2]", "quad_perm:[2,3,0,1]", "row_half_mirror", "row_mirror")[:steps]:
            if len(regs) < 3: self(f"s_nop {2 - len(regs)}")
            for r in regs:
                self(f"{op}_dpp {r}, {r}, {r} {ctl} {DPPM}")
    def lds_spin(self, off, val, vt, vbase, sleep=True):
        lab = self.label("LS")
        self.spin_head(lab)
        self(f"ds_read_b32 {vt}, {vbase} offset:{off}\ns_waitcnt lgkmcnt(0)\nv_readfirstlane_b32 s44, {vt}\ns_cmp_ge_u32 s44, {val}")
        done = self.label("LD")
        self(f"s_cbranch_scc1 {done}\n" + ("s_sleep 1\n" if sleep else "") + f"s_branch {lab}\n{done}:")
    def lds_inc(self, off, vbase, vone):
        self(f"s_mov_b64 exec, 1\nds_add_u32 {vbase}, {vone} offset:{off}\ns_mov_b64 exec, -1")

INV576 = f2h(1.0/576)
def ln_finish(A, mean, var, rs):
    A(f"v_max_f32 {var}, 0, {var}")
    A.r1(mean, var)
    A(f"v_add_f32 {var}, 0x3727c5ac, {var}")
    A.r1(var)
    A(f"v_sqrt_f32 {var}, {var}\ns_nop 0")
    A.r1(var)
    A(f"v_rcp_f32 {rs}, {var}\ns_nop 0")

def dma_tile(A, srd, voff, rowstride, ldsbase, ninstr=72):
    A(f"s_mul_i32 s44, s3, {8*rowstride}\ns_lshl_b32 s45, s3, 10\ns_add_u32 s45, s45, {ldsbase}")
    for i in range((ninstr + 15)//16):
        skip = None
        if (i+1)*16 > ninstr:
            skip = A.label("DS")
            A(f"s_cmp_ge_u32 s3, {ninstr - 16*i}\ns_cbranch_scc1 {skip}")
        A(f"s_mov_b32 m0, s45\ns_add_u32 s45, s45, 16384")
        A(f"buffer_load_dwordx4 {voff}, s[{srd}:{srd+3}], s44 offen{A.nt} lds")
        A(f"s_add_u32 s44, s44, {128*rowstride}")
        if skip: A(f"{skip}:")

def bfrags(A, vaddr, vb=52, nks=18, rowb=128):
    base = 0
    for ks in range(nks):
        for half in range(2):
            off = (ks*32 + half*16) * rowb
            if off - base > 65535:
                A(f"v_add_u32 {vaddr}, {off - base}, {vaddr}"); base = off
            A(f"ds_read_b64_tr_b16 {vr(vb + ks*4 + half*2,2)}, {vaddr} offset:{off - base}")

def kv_chunk_base(A, rp, dst, t, SP):
    A(f"""
    s_lshr_b32 {t}, {rp}, 3
    s_lshl_b32 {dst}, s4, 1
    s_add_u32 {dst}, {dst}, {t}
    s_bfe_u32 {t}, {rp}, 0x10002
    s_lshl_b32 {t}, {t}, 4
    s_add_u32 {dst}, {dst}, {t}
    s_lshl_b32 {dst}, {dst}, 21
    s_and_b32 {t}, {rp}, 3
    s_lshl_b32 {t}, {t}, {SP}
    s_add_u32 {dst}, {dst}, {t}
    s_add_u32 {dst}, {dst}, {6144*256}
    """)

def gemv_mfma(A, vaaddr, vb=52, va=24, vd=20, depth=7, nks=18, mid=None):
    depth = min(depth, nks)
    def rd(ks):
        A(f"ds_read_b128 {vr(va + (ks % depth)*4,4)}, {vaaddr} offset:{ks*64}")
    for ks in range(depth): rd(ks)
    for ks in range(nks):
        issued = min(nks, depth + ks)
        A(f"s_waitcnt lgkmcnt({issued - ks - 1})")
        c = "0" if ks == 0 else vr(vd, 4)
        A(f"v_mfma_f32_16x16x32_bf16 {vr(vd,4)}, {vr(va + (ks % depth)*4,4)}, {vr(vb+ks*4,4)}, {c}")
        if ks + depth < nks: rd(ks + depth)
        if mid and ks == mid[0]: A(mid[1])

def fold8(A, n, a, b, t, swapb=True):
    for i in range(1, n):
        A(f"v_add_f32 v{a}, v{a}, v{a+2*i}\nv_add_f32 v{b}, v{b}, v{b+2*i}")
    A(f"""
    s_nop 1
    v_permlane32_swap_b32 v{a}, v{b}
    v_add_f32 v{a}, v{a}, v{b}
    v_mov_b32 v{t}, v{a}
    s_nop 1
    v_permlane16_swap_b32 v{a}, v{t}
    v_add_f32 v{a}, v{a}, v{t}
    s_nop 1
    v_add_f32_dpp v{a}, v{a}, v{a} row_ror:8 {DPPM}
    """)

def build(stamps=False, nt="nt", adelay=True, dbg=0, w2first=0, qs=2, ps=2, pt=1, diag=0, ql=0, rgw=0, il=2, trig=1, pf=0, fgs=12, ordr=0, nb1=0, nb2=0, mlt=0, c3=1, hq=0, fl=0, ppt=0, probe=0, cfm=6, x4=1, me=0, tm=96, dq=0, dv=0, ds5=0, nr=8, qpt=0, qv=1, qlay=1, pc=0, fpos=0, hs=0, hp=2):
    CH, BL, SP = {0: (15, 13, 17), 1: (17, 15, 13), 2: (17, 13, 15)}[il]
    global SPIN, NLOC
    if diag: SPIN = 60; NLOC = 100
    A = G(stamps, nt)
    def vtail(n, level, w0):
        lab = A.label("VT")
        A(f"""
        s_sub_u32 s48, s3, {w0}
        s_cmp_ge_u32 s48, {n}
        s_cbranch_scc1 {lab}
        s_and_b32 s49, s48, 1
        s_lshl_b32 s50, s5, 1
        s_add_u32 s50, s50, s49
        """)
        kv_chunk_base(A, "s50", "s44", "s45", SP)
        A(f"""
        s_lshr_b32 s48, s48, 1
        s_sub_u32 s48, 3, s48
        s_lshl_b32 s48, s48, {BL}
        s_add_u32 s44, s44, s48
        s_add_u32 s44, s44, {level << CH}
        v_lshl_add_u32 v20, v1, 7, s44
        global_load_dword v22, v20, {sp(V_)}{A.nt}
        {lab}:
        """)
    NT = A.nt
    A.header(256, 1024, LDS_BYTES)
    A(f"""
    s_cmp_ge_u32 s2, 256
    s_cbranch_scc1 L_exit
    s_load_dwordx16 s[16:31], s[0:1], 0
    s_load_dwordx8 s[32:39], s[0:1], 64
    s_load_dwordx2 s[40:41], s[0:1], 96
    s_load_dwordx2 s[42:43], s[0:1], 112
    v_lshrrev_b32 v2, 6, v0
    v_and_b32 v1, 63, v0
    s_and_b32 s4, s2, 7
    v_readfirstlane_b32 s3, v2
    s_lshr_b32 s5, s2, 3
    v_mov_b32 v3, 0
    """)
    if stamps:
        A("v_mov_b32 v127, 0\ns_memrealtime s[98:99]")
    A(f"""
    s_cmp_lg_u32 s5, 24
    s_cbranch_scc1 L_nopf
    s_getpc_b64 s[44:45]
    L_pfbase:
    s_sub_u32 s44, s44, L_pfbase-{NAME}_kernel
    s_subb_u32 s45, s45, 0
    v_lshlrev_b32 v4, 7, v0
    v_cmp_gt_u32 vcc, L_codeend-{NAME}_kernel, v4
    s_and_saveexec_b64 s[46:47], vcc
    s_cbranch_execz L_pfd
    global_load_dword v5, v4, s[44:45]
    L_pfd:
    s_mov_b64 exec, -1
    L_nopf:
    s_cmp_lt_u32 s5, 16
    s_cbranch_scc1 L_A
    {'s_branch L_exit' if diag & 32 else ''}
    s_sub_u32 s5, s5, 16                  ; u
    s_sub_u32 s55, s2, {25*8}
    s_min_u32 s47, s4, 4
    s_lshl_b32 s48, s4, 2
    s_add_u32 s47, s47, s48
    s_add_u32 s47, s47, s5
    s_sub_u32 s47, s47, 9
    s_mul_i32 s48, s47, 0xe39
    s_lshr_b32 s48, s48, 16               ; ksp
    s_mul_i32 s49, s48, 18
    s_sub_u32 s49, s47, s49               ; cgp
    s_mul_i32 s50, s48, {288*6912}
    s_lshl_b32 s51, s49, 7
    s_add_u32 s50, s50, s51               ; M offset
    s_lshl_b32 s51, s4, 3
    s_add_u32 s51, s51, s5                ; qb
    s_lshl_b32 s52, s51, 7                ; B offset
    v_lshrrev_b32 v4, 3, v1
    v_bfe_u32 v6, v1, 4, 2
    v_lshlrev_b32 v6, 1, v6
    v_and_b32 v7, 7, v1
    v_xor_b32 v6, v6, v7
    s_movk_i32 s53, 6912
    s_lshl_b32 s44, s4, 1
    s_add_u32 s44, s44, s5
    s_lshl_b32 s44, s44, 8
    s_sub_u32 s44, s44, {28*128 - 2304}
    s_sub_u32 s45, s5, 8
    s_cmp_ge_u32 s45, {6 if me else 99}   ; u < 8 or u >= 14
    s_cselect_b32 s54, 72, 36             ; count
    s_cselect_b32 s50, s44, s50
    s_cselect_b32 s56, 0, s55
    s_cmp_lt_u32 s5, 8
    s_cselect_b32 s50, s52, s50
    s_cselect_b32 s53, 8192, s53          ; stride
    s_mul_i32 s10, s53, 576
    s_cselect_b32 s47, s51, s47
    s_cselect_b32 s55, 0, s55
    v_mul_u32_u24 v14, s53, v4
    v_lshl_add_u32 v14, v6, 4, v14
    v_add_u32 v15, s50, v14
    s_mov_b32 s11, 0x20000
    s_lshl_b32 s53, s53, 3
    s_mul_i32 s44, s3, s53
    s_lshl_b32 s53, s53, 4
    s_lshl_b32 s45, s3, 10
    s_mov_b32 s46, s3
    s_cmp_lt_u32 s5, 8
    s_waitcnt lgkmcnt(0)
    s_cselect_b32 s8, s{WQ_}, s{WM_}
    s_cselect_b32 s9, s{WQ_+1}, s{WM_+1}
    s_and_b32 s9, s9, 0xffff
    s_cmp_ge_u32 s56, 36
    s_cbranch_scc1 L_W_nodma
    L_W_dma:
    s_mov_b32 m0, s45
    s_add_u32 s45, s45, 16384
    buffer_load_dwordx4 v15, s[8:11], s44 offen{NT} lds
    s_add_u32 s44, s44, s53
    s_add_u32 s46, s46, 16
    s_cmp_lt_u32 s46, s54
    s_cbranch_scc1 L_W_dma
    L_W_nodma:
    s_load_dword s6, {sp(WS_)}, {WS_EPOCH}
    s_branch L_W
    """)
    A(f"""
    L_A:
    """)
    if ordr:
        t0_, t1_ = {1: (0xd8, 0xd8), 2: (0xe4, 0xd2), 3: (0xd8, 0xd2)}[ordr]
        A(f"""
        s_bitcmp1_b32 s5, 0
        s_movk_i32 s44, {t0_}
        s_cselect_b32 s44, {t1_}, s44
        s_lshr_b32 s45, s3, 2
        s_lshl_b32 s45, s45, 1
        s_lshr_b32 s44, s44, s45
        s_and_b32 s44, s44, 3
        s_and_b32 s3, s3, 3
        s_lshl_b32 s44, s44, 2
        s_or_b32 s3, s3, s44
        """)
    A(f"""
    v_mov_b32 v4, {AL}
    v_lshl_add_u32 v5, v1, 2, v4
    ds_write_b32 v5, v3 offset:{L_CNT}
    s_lshr_b32 s44, s5, 3
    s_lshl_b32 s45, s4, 1
    s_add_u32 s46, s45, s44            ; hkv
    s_bfe_u32 s47, s5, 0x10002          ; b
    s_and_b32 s48, s5, 3                ; sp
    s_lshl_b32 s49, s47, 4
    s_add_u32 s49, s49, s46             ; b*16+hkv
    s_lshl_b32 s49, s49, 21
    s_lshl_b32 s50, s48, {SP}
    s_add_u32 s49, s49, s50
    s_add_u32 s49, s49, {6144*256}
    s_bfe_u32 s51, s3, 0x10002            ; g
    s_and_b32 s44, s3, 3
    s_lshl_b32 s50, s51, {CH+1}
    s_add_u32 s49, s49, s50
    s_lshl_b32 s50, s44, {BL}
    s_add_u32 s49, s49, s50
    s_lshl_b32 s45, s51, 3
    s_add_u32 s48, s44, s45
    v_and_b32 v9, 3, v1
    v_mov_b32 v7, 1
    s_cmp_ge_u32 s3, 8
    s_cbranch_scc1 L_AV
    s_add_u32 s49, s49, 4096
    v_bfe_u32 v5, v1, 2, 2
    v_lshlrev_b32 v5, 8, v5
    v_and_b32 v6, 48, v1
    v_lshl_or_b32 v5, v6, 2, v5
    v_lshl_or_b32 v5, v9, 4, v5
    s_waitcnt lgkmcnt(0)
    s_load_dword s6, {sp(WS_)}, {WS_EPOCH}
    s_add_u32 s52, s{K_}, s49
    s_addc_u32 s53, s{K_+1}, 0
    s_add_u32 s54, s52, {1 << CH}
    s_addc_u32 s55, s53, 0
    """)
    if adelay: A("s_waitcnt lgkmcnt(0)")
    A("s_barrier")
    for t in range(16):
        A(f"global_load_dwordx4 {vr(32+4*t,4)}, v5, s[{52+2*(t>>3)}:{53+2*(t>>3)}] offset:{(t&7)*1024-4096}{NT}")
    if stamps: A("s_waitcnt lgkmcnt(0)\nv_writelane_b32 v127, s98, 0")
    A.stamp(1)
    A(f"""
    v_bfe_u32 v8, v1, 2, 1
    v_lshlrev_b32 v8, 8, v8
    v_lshl_or_b32 v8, v6, 2, v8
    v_lshl_or_b32 v8, v9, 4, v8
    v_add_u32 v8, v4, v8
    v_bfe_u32 v11, v1, 4, 1
    v_mul_u32_u24 v10, {PSTR}, v11
    v_and_b32 v12, 1, v1
    v_lshl_add_u32 v10, v12, 5, v10
    v_lshrrev_b32 v13, 5, v1
    v_lshl_add_u32 v10, v13, 4, v10
    v_bfe_u32 v13, v1, 1, 1
    v_lshl_add_u32 v10, v13, 3, v10
    v_bfe_u32 v13, v1, 2, 2
    v_lshl_add_u32 v10, v13, 1, v10
    s_lshl_b32 s44, s48, 6
    s_add_u32 s44, s44, {AL + L_P}
    v_add_u32 v10, s44, v10
    v_mul_u32_u24 v12, {PSTR}, v12
    v_add3_u32 v12, v12, v6, v4
    v_lshl_add_u32 v11, v11, 5, v4
    v_and_b32 v13, 7, v1
    v_lshl_add_u32 v13, v13, 2, v11
    s_lshl_b32 s44, s3, 2
    v_add_u32 v11, s44, v11
    v_bfe_u32 v17, v1, 4, 1
    v_lshl_add_u32 v17, v17, 5, v11
    v_and_b32 v18, 32, v1
    v_add_u32 v17, v17, v18
    v_bfe_u32 v14, v1, 2, 3
    v_xor_b32 v14, s3, v14
    v_lshlrev_b32 v14, 5, v14
    v_lshrrev_b32 v15, 2, v1
    v_lshl_or_b32 v14, v15, 8, v14
    v_lshl_or_b32 v14, v9, 3, v14
    v_add_u32 v15, 0x10000, v14
    s_mov_b32 s58, 0x22222222
    s_mov_b32 s59, 0x22222222
    s_mov_b32 s60, 0x44444444
    s_mov_b32 s61, 0x44444444
    s_mov_b32 s62, 0x88888888
    s_mov_b32 s63, 0x88888888
    s_lshl_b32 s44, s47, 14
    s_lshl_b32 s45, s46, 10
    s_add_u32 s44, s44, s45
    s_lshl_b32 s45, s3, 7
    s_add_u32 s44, s44, s45
    s_add_u32 s44, s44, {WS_QG}
    s_add_u32 s56, s{WS_}, s44
    s_addc_u32 s57, s{WS_+1}, 0
    s_lshl_b32 s50, s4, 4
    s_add_u32 s50, s50, s5
    s_lshl_b32 s50, s50, 10
    s_add_u32 s50, s50, s45
    s_add_u32 s50, s50, {WS_OG}
    v_lshl_add_u32 v6, v1, 3, s50
    s_waitcnt lgkmcnt(0)
    """)
    A.mktag()
    A(f"""
    """)
    if qlay:
        A(f"""
        s_sub_u32 s44, s44, {WS_QG}
        s_lshl_b32 s44, s44, 3
        s_add_u32 s44, s44, {WS_QL}
        s_add_u32 s52, s{WS_}, s44
        s_addc_u32 s53, s{WS_+1}, 0
        """)
    else:
        A(f"s_add_u32 s52, s56, {WS_QL - WS_QG}\ns_addc_u32 s53, s57, 0")
    A(f"""
    s_waitcnt vmcnt(0)
    """)
    if qv:
        A.lds_inc(L_CNT+32, "v4", "v7")
        A.lds_spin(L_CNT+32, 8, "v16", "v4")
    A(f"""
    s_mov_b32 s7, {0 if ql else nr}
    L_A_qpoll:
    s_add_u32 s7, s7, 1
    s_cmp_gt_u32 s7, {SPIN}
    s_cbranch_scc1 L_end
    s_cmp_gt_u32 s7, {nr}
    s_cbranch_scc1 L_A_qg
    s_load_dwordx16 s[64:79], s[52:53], 0
    s_load_dwordx16 s[80:95], s[52:53], 64
    s_add_u32 s52, s52, {128 if qlay else 32768}
    s_addc_u32 s53, s53, 0
    s_branch L_A_qc
    L_A_qr:
    s_sleep {qs}
    s_branch L_A_qpoll
    L_A_qg:
    s_load_dwordx16 s[64:79], s[56:57], 0 glc
    s_load_dwordx16 s[80:95], s[56:57], 64 glc
    L_A_qc:
    s_waitcnt lgkmcnt(0)
    """)
    for i in range(16):
        A(f"s_cmp_lg_u32 s{65+2*i}, {TAG}\ns_cbranch_scc1 L_A_qr")
    A("s_mov_b64 exec, 1")
    for i in range(16):
        A(f"v_mov_b32 v{96+i}, s{64+2*i}")
    A(f"s_lshl_b32 s44, s3, 6\nv_add_u32 v20, s44, v4")
    for i in range(4):
        A(f"ds_write_b128 v20, {vr(96+4*i,4)} offset:{L_Q+16*i}")
    A(f"""
    ds_add_u32 v4, v7 offset:{L_CNT}
    s_mov_b64 exec, -1
    s_mov_b32 s56, 0xff00ff00
    s_mov_b32 s57, 0xff00ff00
    """)
    A.lds_spin(L_CNT, 8, "v16", "v4", sleep=False)
    A.stamp(2)
    A(f"ds_read_b128 v[20:23], v8 offset:{L_Q}\ns_waitcnt lgkmcnt(0)")
    for i in range(4):
        A(f"v_cndmask_b32 v{24+i}, 0, v{20+i}, s[56:57]")
        A(f"v_cndmask_b32 v{20+i}, v{20+i}, 0, s[56:57]")
    A("s_waitcnt vmcnt(0)\ns_nop 0")
    D = [96, 32]
    for z in range(2):
        for u in range(4):
            A(f"v_mfma_f32_16x16x32_bf16 {vr(D[z]+4*u,4)}, v[20:23], {vr(32+32*z+8*u,4)}, 0")
        for u in range(4):
            A(f"v_mfma_f32_16x16x32_bf16 {vr(D[z]+4*u,4)}, v[24:27], {vr(36+32*z+8*u,4)}, {vr(D[z]+4*u,4)}")
    for z in range(2):
        t = 112 + 4*z
        for u in range(4):
            A(f"v_mov_b32_dpp v{t+u}, v{D[z]+4*u} quad_perm:[0,0,0,0] {DPPM}")
        for c in range(1, 4):
            for u in range(4):
                A(f"v_add_f32_dpp v{t+u}, v{D[z]+4*u+c}, v{t+u} quad_perm:[{c},{c},{c},{c}] {DPPM}")
    A.stamp(3)
    for k, m in ((1, 58), (2, 60), (3, 62)):
        A(f"v_cndmask_b32 v112, v112, v{112+k}, s[{m}:{m+1}]\nv_cndmask_b32 v116, v116, v{116+k}, s[{m}:{m+1}]")
    A.r1("v112", "v116")
    A("v_mul_f32 v112, 0x3db504f3, v112\nv_mul_f32 v116, 0x3db504f3, v116")
    A.r1("v112", "v116")
    A("v_max_f32 v113, v112, v116")
    A.row_reduce("v_max_f32", ["v113"])
    A(f"""
    v_mov_b32 v114, v113
    s_mov_b32 s56, 0x10001
    s_mov_b32 s57, 0
    v_permlane32_swap_b32 v113, v114
    v_max_f32 v113, v113, v114
    s_mov_b64 exec, s[56:57]
    ds_write_b32 v11, v113 offset:{L_MX}
    s_mov_b64 exec, 1
    ds_add_u32 v4, v7 offset:{L_CNT+4}
    s_mov_b64 exec, -1
    v_mul_f32 v112, {hex(LOG2E)}, v112
    v_mul_f32 v116, {hex(LOG2E)}, v116
    """)
    A.lds_spin(L_CNT+4, 8, "v16", "v4", sleep=False)
    A(f"ds_read_b32 v113, v13 offset:{L_MX}\ns_mov_b32 s45, {hex(LOG2E)}\ns_waitcnt lgkmcnt(0)")
    A.row_reduce("v_max_f32", ["v113"], steps=3)
    A(f"""
    v_fma_f32 v112, -v113, s45, v112
    v_fma_f32 v116, -v113, s45, v116
    v_exp_f32 v112, v112
    v_exp_f32 v116, v116
    s_nop 0
    v_cvt_pk_bf16_f32 v115, v112, v116
    ds_write_b16 v10, v115
    ds_write_b16_d16_hi v10, v115 offset:256
    v_add_f32 v112, v112, v116
    """)
    A.row_reduce("v_add_f32", ["v112"])
    A(f"""
    s_mov_b32 exec_lo, 0x10001
    s_mov_b32 exec_hi, 0x10001
    ds_write_b32 v17, v112 offset:{L_LS}
    s_mov_b64 exec, 1
    ds_add_u32 v4, v7 offset:{L_CNT+8}
    s_mov_b64 exec, -1
    """)
    A.lds_spin(L_CNT+8, 8, "v16", "v4", sleep=False)
    A.stamp(4)
    A(f"ds_read_b128 v[116:119], v4 offset:{L_CNT+16}")
    for ks in range(16):
        A(f"ds_read_b128 {vr(32+4*ks,4)}, v12 offset:{L_P + ks*64}")
    A("s_waitcnt lgkmcnt(15)\ns_waitcnt lgkmcnt(15)")
    for L in range(4): A(f"v_readfirstlane_b32 s{64+L}, v{116+L}")
    SET = [96, 16]
    def vreads(L):
        for k in range(4):
            ks = 4*L + k
            for half in range(2):
                A(f"ds_read_b64_tr_b16 {vr(SET[L&1]+4*k+2*half,2)}, {'v14' if ks < 8 else 'v15'} offset:{(ks&7)*8192 + half*4096}")
    def vmfma(L):
        for k in range(4):
            c = "0" if (L == 0 and k == 0) else "v[112:115]"
            A(f"v_mfma_f32_16x16x32_bf16 v[112:115], {vr(32+4*(4*L+k),4)}, {vr(SET[L&1]+4*k,4)}, {c}")
    A("s_cmp_ge_u32 s64, 4\ns_cbranch_scc1 L_A_v0")
    A.lds_spin(L_CNT+16, 4, "v120", "v4", sleep=False)
    A("L_A_v0:")
    vreads(0)
    for L in range(1, 4):
        A(f"s_cmp_ge_u32 s{64+L}, 4\ns_cbranch_scc0 L_A_vn{L}")
        vreads(L)
        A("s_waitcnt lgkmcnt(8)")
        vmfma(L-1)
        A(f"s_branch L_A_vd{L}\nL_A_vn{L}:\ns_waitcnt lgkmcnt(0)")
        vmfma(L-1)
        A.lds_spin(L_CNT+16+4*L, 4, "v120", "v4", sleep=False)
        vreads(L)
        A(f"L_A_vd{L}:")
    for k in range(4):
        A(f"s_waitcnt lgkmcnt({6-2*k})")
        A(f"v_mfma_f32_16x16x32_bf16 v[112:115], {vr(32+4*(12+k),4)}, {vr(SET[1]+4*k,4)}, v[112:115]")
    A("s_mov_b64 exec, 0xffff\ns_nop 6")
    A.epack("v116", "v112"); A.epack("v117", "v113")
    A.dual_store("global_store_dwordx2", "v6", "v[116:117]")
    A("s_mov_b64 exec, -1")
    A.stamp(6)
    A("s_branch L_end")
    A(f"""
    L_AV:
    s_lshl_b32 s45, s48, 13
    s_mov_b32 s44, s49                    ; soffset
    v_lshrrev_b32 v5, 4, v1
    v_lshlrev_b32 v6, 1, v5
    v_and_b32 v8, 15, v1
    v_xor_b32 v6, v6, v8
    v_lshlrev_b32 v6, 4, v6
    v_lshl_or_b32 v5, v5, 8, v6
    v_xor_b32 v6, 128, v5
    s_waitcnt lgkmcnt(0)
    s_load_dword s6, {sp(WS_)}, {WS_EPOCH}
    """)
    A.srd(8, V_, 0x4000000)
    A("s_barrier")
    for hf in range(2):
        for q4 in range(2):
            A("s_mov_b32 m0, s45\ns_nop 0")
            for n in range(4):
                A(f"buffer_load_dwordx4 {'v6' if n & 1 else 'v5'}, s[8:11], s44 offen offset:{n*1024}{NT} lds")
            if q4 == 0: A("s_add_u32 s45, s45, 4096\ns_add_u32 s44, s44, 4096")
            elif hf == 0: A(f"s_add_u32 s45, s45, {4*8192 - 4096}\ns_add_u32 s44, s44, {(1 << CH) - 4096}")
    if stamps: A("s_waitcnt lgkmcnt(0)\nv_writelane_b32 v127, s98, 0")
    A.stamp(1)
    if pf:
        A(f"""
        s_cmp_lt_u32 s3, 11
        s_cbranch_scc1 L_AV_np
        s_mul_i32 s45, s5, 5
        s_add_u32 s45, s45, s3
        s_lshl_b32 s50, s45, 6
        s_sub_u32 s50, s50, {10*64}
        s_lshl_b32 s44, s51, 3
        v_add_u32 v5, s44, v4
        v_add_u32 v20, s50, v1
        v_mul_u32_u24 v21, 0x1c72, v20
        v_lshrrev_b32 v21, 16, v21
        v_mul_u32_u24 v22, 9, v21
        v_sub_u32 v22, v20, v22
        v_mul_u32_u24 v21, 9216, v21
        v_lshl_add_u32 v21, v22, 7, v21
        s_mul_i32 s50, s4, 1152
        v_add_u32 v21, s50, v21
        global_load_dword v29, v21, {sp(W1_)}{NT}
        s_mov_b64 exec, 1
        s_waitcnt vmcnt(9)
        ds_add_u32 v5, v7 offset:{L_CNT+16}
        s_waitcnt vmcnt(1)
        ds_add_u32 v5, v7 offset:{L_CNT+20}
        s_mov_b64 exec, -1
        """)
        A.stamp(5)
        A("s_waitcnt vmcnt(0) lgkmcnt(0)\ns_branch L_end\nL_AV_np:")
    A(f"""
    s_lshl_b32 s44, s51, 3
    v_add_u32 v5, s44, v4
    s_mov_b64 exec, 1
    s_waitcnt vmcnt(8)
    ds_add_u32 v5, v7 offset:{L_CNT+16}
    s_waitcnt vmcnt(0)
    {f's_sleep {dv}' if dv else ''}
    ds_add_u32 v5, v7 offset:{L_CNT+20}
    s_mov_b64 exec, -1
    """)
    A.stamp(5)
    A(f"""
    s_waitcnt lgkmcnt(0)
    s_cmp_lg_u32 s3, 8
    s_cbranch_scc1 L_end
    v_bfe_u32 v11, v1, 4, 1
    v_lshl_add_u32 v11, v11, 5, v4
    v_and_b32 v13, 7, v1
    v_lshl_add_u32 v13, v13, 2, v11
    s_lshl_b32 s50, s4, 4
    s_add_u32 s50, s50, s5
    s_lshl_b32 s50, s50, 7
    s_add_u32 s50, s50, {WS_MLG}
    v_mov_b32 v24, s50
    """)
    A.mktag()
    A("v_and_b32 v12, 31, v1\nv_lshl_add_u32 v12, v12, 2, v4")
    A.lds_spin(L_CNT+4, 8, "v16", "v4")
    A(f"ds_read_b32 v20, v13 offset:{L_MX}\ns_waitcnt lgkmcnt(0)")
    A.row_reduce("v_max_f32", ["v20"], steps=3)
    A.lds_spin(L_CNT+8, 8, "v16", "v4", sleep=False)
    A(f"ds_read_b32 v21, v12 offset:{L_LS}\ns_waitcnt lgkmcnt(0)")
    A.row_reduce("v_add_f32", ["v21"])
    A("""
    v_mov_b32 v22, v20
    v_mov_b32 v23, v21
    s_nop 0
    v_permlane16_swap_b32 v20, v22
    v_permlane16_swap_b32 v21, v23
    """)
    for r in range(20, 24): A.epack(f"v{r}", f"v{r}")
    A("s_mov_b64 exec, 1")
    A.dual_store("global_store_dwordx4", "v24", "v[20:23]")
    A("s_mov_b64 exec, -1")
    A.stamp(7)
    A("s_branch L_end")

    A("L_W:")
    if stamps: A("v_writelane_b32 v127, s98, 0")
    A.stamp(1)
    A(f"""
    v_mov_b32 v18, {L_WCNT}
    ds_write2_b32 v18, v3, v3 offset1:1
    ds_write_b32 v18, v3 offset:8
    v_lshrrev_b32 v8, 5, v0
    v_lshlrev_b32 v8, 6, v8
    v_bfe_u32 v9, v0, 2, 2
    v_lshl_or_b32 v8, v9, 4, v8
    v_bfe_u32 v9, v0, 4, 1
    v_lshl_or_b32 v8, v9, 3, v8
    v_and_b32 v9, 3, v0
    v_lshl_or_b32 v8, v9, 1, v8
    v_add_u32 v8, {L_ACT}, v8
    s_and_b32 s46, s3, 3
    v_bfe_u32 v10, v1, 3, 2
    v_xor_b32 v10, s46, v10
    v_lshlrev_b32 v10, 5, v10
    v_lshrrev_b32 v11, 2, v1
    v_lshl_or_b32 v10, v11, 7, v10
    v_lshl_or_b32 v10, v9, 3, v10
    v_and_b32 v11, 48, v1
    v_add_u32 v11, {L_ACT}, v11
    v_and_b32 v12, 1, v1
    v_mul_u32_u24 v12, {4*ASTR}, v12
    v_add_u32 v12, v11, v12
    v_and_b32 v13, 4, v1
    v_mul_u32_u24 v13, {ASTR}, v13
    v_add_u32 v13, v11, v13
    v_mov_b32 v17, 1
    s_cmp_eq_u32 s5, 8
    s_cbranch_scc1 L_KT
    s_cbranch_scc0 L_Wd
    L_Wd:
    s_cmp_gt_u32 s5, 8
    s_cbranch_scc1 L_M
    s_waitcnt lgkmcnt(0)
    """)
    A.mktag()
    A(f"""
    s_barrier
    {'s_waitcnt vmcnt(0)' + chr(10) + 's_branch L_end' if diag & 4 else ''}
    s_cmp_ge_u32 s3, 9
    s_cbranch_scc1 L_B_nh
    s_mul_i32 s44, s4, 4608
    s_add_u32 s44, s44, {WS_HL}
    v_lshl_add_u32 v15, v0, 3, s44
    global_load_dwordx2 v[24:25], v15, {sp(WS_)} sc1
    s_waitcnt vmcnt(0)
    """)
    A.lds_inc(0, "v18", "v17")
    A.stamp(2)
    if nb1: vtail(nb1, 2, 0)
    A("s_mov_b32 s7, 0\ns_branch L_B_chk")
    A.dual_head("L_B_h", ["v15"], init=False)
    A(f"s_sleep {ps}")
    A(f"global_load_dwordx2 v[24:25], v15, {sp(WS_)} sc1\ns_waitcnt vmcnt(0)\nL_B_chk:")
    A.tagcheck(["v25"], None, None, "L_B_h")
    A(f"""
    ds_write_b16 v8, v24
    ds_write_b16_d16_hi v8, v24 offset:{4*ASTR}
    s_waitcnt lgkmcnt(0)
    """)
    A.stamp(3)
    A(f"""
    s_barrier
    s_branch L_S5
    L_B_nh:
    """)
    if ql and qpt:
        A(f"""
        s_cmp_lg_u32 s3, 9
        s_cbranch_scc1 L_B_npt
        v_bfe_u32 v15, v1, 4, 1
        v_lshlrev_b32 v15, 17, v15            ; b*16384*8
        v_and_b32 v16, 15, v1
        v_lshl_or_b32 v15, v16, 7, v15
        s_lshl_b32 s44, s47, 11
        s_add_u32 s44, s44, {WS_QL}
        v_add_u32 v15, s44, v15
        global_load_dword v16, v15, {sp(WS_)}{' nt' if qpt == 2 else ' sc1'}
        L_B_npt:
        """)
    A("s_waitcnt vmcnt(0)")
    A.lds_inc(0, "v18", "v17")
    A(f"""
    s_cmp_ge_u32 s3, 12
    s_cbranch_scc1 L_B_m
    s_waitcnt lgkmcnt(0)
    s_barrier
    s_branch L_S5
    L_B_m:
    """)
    A.lds_spin(0, 16, "v16", "v18")
    A.stamp(2)
    A("v_mov_b32 v15, v10")
    bfrags(A, "v15")
    A(f"""
    s_lshl_b32 s44, s47, 8
    s_lshl_b32 s45, s46, 6
    s_add_u32 s44, s44, s45
    s_add_u32 s44, s44, {WS_QG}
    v_and_b32 v15, 15, v1
    v_lshlrev_b32 v15, 2, v15
    v_bfe_u32 v16, v1, 4, 1
    v_lshl_or_b32 v15, v16, 14, v15
    v_add_u32 v15, s44, v15
    """)
    if qlay:
        A(f"""
        v_subrev_u32 v16, {WS_QG}, v15
        v_and_b32 v17, 0x78, v16
        v_and_b32 v16, 0xffffff80, v16
        v_lshl_or_b32 v16, v16, 3, v17
        v_and_b32 v17, 1, v1
        v_lshl_add_u32 v16, v17, 7, v16
        v_lshrrev_b32 v17, 5, v1
        v_lshl_add_u32 v16, v17, 8, v16
        v_add_u32 v16, {WS_QL}, v16
        """)
    else:
        A(f"""
    v_and_b32 v16, -8, v15
    v_and_b32 v17, 1, v1
    v_lshl_add_u32 v16, v17, 15, v16
    v_lshrrev_b32 v17, 5, v1
    v_lshl_add_u32 v16, v17, 16, v16
    v_add_u32 v16, {WS_QL - WS_QG}, v16
""")
    A(f"""
    s_waitcnt lgkmcnt(0)
    s_barrier
    """)
    gemv_mfma(A, "v13")
    A(f"""
    s_nop 7
    v_mov_b32_dpp v21, v20 quad_perm:[1,1,3,3] {DPPM}
    v_mov_b32_dpp v20, v20 quad_perm:[0,0,2,2] {DPPM}
    v_mov_b32 v23, {TAG}
    v_cvt_pk_bf16_f32 v22, v20, v21
    """)
    if ql:
        for i in range(nr//4):
            A(f"global_store_dwordx2 v16, v[22:23], {sp(WS_)}")
            if i < nr//4 - 1: A(f"v_add_u32 v16, {512 if qlay else 4*32768}, v16")
    A(f"""
    s_mov_b32 exec_lo, 0x55555555
    s_mov_b32 exec_hi, 0
    global_store_dwordx2 v15, v[22:23], {sp(WS_)} sc1
    s_mov_b64 exec, -1
    """)
    A.stamp(4)
    A("s_branch L_S5")

    A(f"""
    L_M:
    """)
    if me:
        A(f"s_cmp_lt_u32 s5, 14\ns_cbranch_scc1 L_M_n2\nv_add_u32 v16, 128, v15\ns_barrier")
        dma_tile(A, 8, "v16", 6912, L_BUF1, 72)
        A("s_barrier\nL_M_n2:")
    A(f"""
    s_cmp_ge_u32 s3, 9
    s_cbranch_scc1 L_M_bar0
    v_lshlrev_b32 v15, 1, v0
    global_load_ushort v16, v15, {sp(C_)}
    global_load_ushort v17, v15, {sp(C_)} offset:1152
    s_waitcnt vmcnt(0)
    v_lshlrev_b32 v16, 16, v16
    v_lshlrev_b32 v17, 16, v17
    v_mul_f32 v34, 0xbfb8aa3b, v16
    v_mul_f32 v35, 0xbfb8aa3b, v17
    v_exp_f32 v34, v34
    v_exp_f32 v35, v35
    s_nop 0
    v_add_f32 v34, 1.0, v34
    v_add_f32 v35, 1.0, v35
    v_rcp_f32 v34, v34
    v_rcp_f32 v35, v35
    s_nop 0
    v_mul_f32 v16, v16, v34
    v_mul_f32 v17, v17, v35
    v_cvt_pk_bf16_f32 v16, v16, v17
    ds_write_b16 v8, v16
    ds_write_b16_d16_hi v8, v16 offset:{4*ASTR}
    L_M_bar0:
    s_mul_i32 s44, s48, 576
    v_add_u32 v15, s44, v12
    s_mul_i32 s44, s48, {AGS}
    s_lshl_b32 s45, s49, 9
    s_add_u32 s44, s44, s45
    s_lshl_b32 s45, s46, 7
    s_add_u32 s44, s44, s45
    s_add_u32 s44, s44, {WS_AG}
    v_lshl_add_u32 v18, v1, {4 if x4 else 3}, s44
    s_waitcnt vmcnt(0) lgkmcnt(0)
    L_M_skip:
    """)
    A.mktag()
    A("s_barrier")
    A.stamp(2)
    A("s_cmp_lt_u32 s3, 12\ns_cbranch_scc1 L_M_bar1\ns_cmp_ge_u32 s55, 36\ns_cbranch_scc1 L_M_bar1")
    bfrags(A, "v10", 52, 9)
    gemv_mfma(A, "v15", nks=9)
    A("s_mov_b64 exec, 0xffff\ns_nop 6\nv_add_u32 v20, 4, v20\nv_add_u32 v21, 4, v21")
    A.epack("v22", "v20", 7); A.epack("v23", "v21", 7)
    if x4:
        A(f"s_nop 0\nv_mov_b32_dpp v24, v22 row_ror:8 {DPPM}\nv_mov_b32_dpp v25, v23 row_ror:8 {DPPM}\ns_mov_b64 exec, 0xff")
        A(f"global_store_dwordx4 v18, v[22:25], {sp(WS_)} sc1\ns_mov_b64 exec, -1")
    else:
        A(f"global_store_dwordx2 v18, v[22:23], {sp(WS_)} sc1\ns_mov_b64 exec, -1")
    A.stamp(3)
    A(f"""
    L_M_bar1:
    s_sub_u32 s44, s5, 9
    s_lshl_b32 s50, s44, 1                ; slot0 = 2(u-9)
    s_add_u32 s51, s50, 1
    s_add_u32 s45, s4, 44
    s_cmp_ge_u32 s4, 4
    s_cselect_b32 s45, s45, 255
    s_cmp_eq_u32 s5, 13
    s_cselect_b32 s51, s45, s51
    s_lshl_b32 s44, s4, 1
    s_add_u32 s44, s44, s5
    s_lshl_b32 s44, s44, 1
    s_sub_u32 s44, s44, {28 - 16}
    s_add_u32 s45, s44, 1
    s_cmp_ge_u32 s5, 14
    s_cselect_b32 s50, s44, s50
    s_cselect_b32 s51, s45, s51
    v_mul_u32_u24 v19, 1152, v4
    v_lshl_add_u32 v19, v6, 4, v19
    s_mul_i32 s44, s4, {512*1152}
    v_add_u32 v19, s44, v19
    """)
    A.srd(12, WO_, 4096*1152)
    A("s_barrier")
    if pt:
        A(f"""
        s_cmp_ge_u32 s3, 3
        s_cbranch_scc1 L_M_pt
        s_cmp_lg_u32 s5, 13
        s_cbranch_scc1 L_M_pt
        s_lshl_b32 s44, s4, 14
        s_lshl_b32 s45, s3, 13
        s_add_u32 s44, s44, s45
        s_add_u32 s44, s44, {WS_OG}
        s_lshl_b32 s45, s4, 11
        s_add_u32 s45, s45, {WS_MLG}
        s_cmp_eq_u32 s3, 2
        s_cselect_b32 s44, s45, s44
        s_cselect_b32 s45, 15, 63
        v_and_b32 v16, s45, v1
        v_lshl_add_u32 v16, v16, 7, s44
        global_load_dword v20, v16, {sp(WS_)} sc1
        L_M_pt:
        """)
    if me: A("s_cmp_ge_u32 s5, 14\ns_cbranch_scc1 L_sl1_d")
    for sl, (reg, buf) in enumerate((("s50", L_BUF0), ("s51", L_BUF1))):
        A(f"""
        s_lshl_b32 s52, {reg}, 7
        s_cmp_ge_u32 {reg}, 16
        s_cbranch_scc1 L_sl{sl}_m
        v_add_u32 v16, s52, v19
        """)
        dma_tile(A, 12, "v16", 1152, buf, 64)
        A(f"""
        s_branch L_sl{sl}_d
        L_sl{sl}_m:
        s_cmp_eq_u32 {reg}, 255
        s_cbranch_scc1 L_sl{sl}_d
        s_add_u32 s52, s52, {2304 - 16*128}
        v_add_u32 v16, s52, v14
        """)
        dma_tile(A, 8, "v16", 6912, buf, 72)
        A(f"L_sl{sl}_d:")
    A("s_waitcnt vmcnt(0)\ns_barrier")
    A.stamp(4)
    if diag & 8: A("s_branch L_end")
    A(f"""
    s_cmp_lt_u32 s3, 8
    s_cbranch_scc1 L_H_p
    s_cmp_ge_u32 s3, 12
    s_cselect_b32 s50, s51, s50
    s_cselect_b32 s44, {L_BUF1}, 0
    v_add_u32 v17, s44, v10
    s_cmp_lt_u32 s50, 16
    s_cbranch_scc1 L_A_s4m
    s_cmp_eq_u32 s50, 255
    s_cbranch_scc1 L_H_x
    s_lshl_b32 s44, s50, 9
    s_lshl_b32 s45, s46, 7
    s_add_u32 s44, s44, s45
    s_add_u32 s44, s44, {WS_MG - 16*512}
    v_lshl_add_u32 v18, v1, 3, s44
    """)
    bfrags(A, "v17")
    gemv_mfma(A, "v12")
    A(f"""
    s_mov_b64 exec, 0xffff
    s_nop 6
    v_cvt_pk_bf16_f32 v22, v20, v21
    v_mov_b32 v23, {TAG}
    global_store_dwordx2 v18, v[22:23], {sp(WS_)} sc1
    s_mov_b64 exec, -1
    """)
    A.stamp(5)
    A(f"""
    L_H_x:
    s_cmp_eq_u32 s5, 15
    s_cbranch_scc1 L_XR
    s_branch L_end
    L_H_p:
    """)
    if trig:
        A(f"""
        s_cmp_lg_u32 s3, 0
        s_cbranch_scc1 L_M_tr
        s_lshl_b32 s52, s4, 3
        s_add_u32 s52, s52, s5
        s_lshl_b32 s52, s52, 7
        s_add_u32 s52, s52, {WS_TR - 9*128}
        v_mov_b32 v20, s52
        v_mov_b32 v19, {TAG}
        global_store_dword v20, v19, {sp(WS_)}
        L_M_tr:
        """)
    A("s_cmp_ge_u32 s5, 14\ns_cbranch_scc1 L_H_x")
    A(f"""
    s_lshl_b32 s50, s4, 4
    s_lshr_b32 s45, s3, 1
    s_lshl_b32 s45, s45, 2
    s_add_u32 s50, s50, s45
    s_and_b32 s44, s3, 1                  ; dh
    s_lshl_b32 s51, s50, 7
    s_add_u32 s51, s51, {WS_MLG}
    v_bfe_u32 v18, v1, 2, 2
    v_lshlrev_b32 v18, 7, v18
    v_lshl_add_u32 v18, v9, 2, v18
    v_add_u32 v18, s51, v18
    s_lshl_b32 s51, s50, 10
    s_lshl_b32 s45, s44, 9
    s_add_u32 s51, s51, s45
    s_add_u32 s51, s51, {WS_OG}
    v_lshl_add_u32 v17, v1, 3, s51
    s_bfe_u32 s45, s3, 0x10001
    s_mul_i32 s45, s45, {ASTR}
    s_lshr_b32 s51, s3, 2
    s_lshl_b32 s51, s51, 9
    s_add_u32 s45, s45, s51
    s_and_b32 s51, s3, 6
    s_lshl_b32 s51, s51, 7
    s_sub_u32 s45, s45, s51
    s_add_u32 s45, s45, {ASTR}
    v_add_u32 v19, s45, v8
    s_lshl_b32 s45, s4, 2
    s_add_u32 s45, s45, {WS_FL}
    v_lshl_add_u32 v40, v0, 7, s45
    v_mov_b32 v41, {TAG}
    """)
    def oloads():
        for s_ in range(4):
            A(f"global_load_dwordx2 {vr(32+2*s_,2)}, v17, {sp(WS_)} offset:{s_*1024} sc1")
    A.dual_head("L_A_ml", ["v17", "v18"])
    A(f"""
    global_load_dword v20, v18, {sp(WS_)} sc1
    s_waitcnt vmcnt(0)
    v_xor_b32 v20, {ETAG}, v20
    v_and_b32 v21, 63, v20
    v_cmp_ne_u32 vcc, 0, v21
    s_cbranch_vccnz L_A_ml
    """)
    oloads()
    A(f"""
    v_max_f32_dpp v21, v20, v20 row_ror:4 {DPPM}
    v_mov_b32_dpp v23, v20 quad_perm:[1,1,3,3] {DPPM}
    s_nop 0
    v_max_f32_dpp v21, v21, v21 row_ror:8 {DPPM}
    v_sub_f32 v22, v20, v21
    v_mul_f32 v22, {hex(LOG2E)}, v22
    v_exp_f32 v22, v22
    s_nop 0
    v_mul_f32 v23, v22, v23
    s_nop 1
    v_add_f32_dpp v23, v23, v23 row_ror:4 {DPPM}
    s_nop 1
    v_add_f32_dpp v23, v23, v23 row_ror:8 {DPPM}
    v_rcp_f32 v23, v23
    s_nop 0
    v_mul_f32 v22, v22, v23
    """)
    A.stamp(7)
    A("s_branch L_A_ochk")
    A.dual_head("L_A_h3", ["v17"], init=False)
    oloads()
    A("L_A_ochk:\ns_waitcnt vmcnt(0)")
    A.etagcheck([f"v{32+i}" for i in range(8)], "v20", "L_A_h3")
    for s_ in range(4):
        op = "v_mul_f32_dpp" if s_ == 0 else "v_fmac_f32_dpp"
        A(f"{op} v30, v22, v{32+2*s_} row_newbcast:{4*s_} {DPPM}\n{op} v31, v22, v{33+2*s_} row_newbcast:{4*s_+2} {DPPM}")
    A(f"""
    v_cvt_pk_bf16_f32 v30, v30, v31
    ds_write_b16 v19, v30
    ds_write_b16_d16_hi v19, v30 offset:256
    s_waitcnt lgkmcnt(0)
    s_barrier
    """)
    if fl: A(f"""
        s_cmp_lg_u32 s5, 9
        s_cbranch_scc1 L_H_nf
        s_cmp_gt_u32 s3, 1
        s_cbranch_scc1 L_H_nf
        v_cmp_gt_u32 vcc, 72, v0
        s_and_saveexec_b64 s[44:45], vcc
        {f's_sleep {fpos}' if fpos else ''}
        global_store_dword v40, v41, {sp(WS_)} sc1
        s_mov_b64 exec, -1
        L_H_nf:
        """)
    A.stamp(8)
    A("s_branch L_end")
    A(f"""
    L_A_s4m:
    v_and_b32 v18, 1, v1
    v_mul_u32_u24 v18, {ASTR}, v18
    v_add_u32 v18, v18, v11
    v_add_u32 v18, {ASTR}, v18
    s_mul_i32 s45, s4, 4608
    s_lshl_b32 s44, s50, 9
    s_add_u32 s45, s45, s44
    s_lshl_b32 s44, s46, 7
    s_add_u32 s45, s45, s44
    s_add_u32 s45, s45, {WS_PC if pc else WS_PX}
    v_lshl_add_u32 v19, {'v7' if pc else 'v1'}, {4 if x4 else 3}, s45
    {'v_mul_u32_u24 v16, 36864, v4' + chr(10) + 'v_add_u32 v19, v19, v16' + chr(10) + 's_mov_b32 s56, 0xff00ff00' + chr(10) + 's_mov_b32 s57, 0xff00ff00' if pc else ''}
    {f's_mov_b64 exec, 0xffff' + chr(10) + f'global_load_dword v125, v19, {sp(WS_)} sc1' + chr(10) + 's_mov_b64 exec, -1' if ppt else ''}
    """)
    bfrags(A, "v17", 56, 16)
    A("s_waitcnt lgkmcnt(0)\ns_barrier")
    gemv_mfma(A, "v18", vb=56, depth=8, nks=16)
    A("s_nop 7" if pc else "s_mov_b64 exec, 0xffff\ns_nop 6")
    A.epack("v24", "v20"); A.epack("v25", "v21")
    if pc:
        A(f"""
        v_mov_b32 v26, v24
        v_mov_b32 v27, v25
        v_mov_b32_dpp v24, v24 row_ror:8 row_mask:0xf bank_mask:0xc
        v_mov_b32_dpp v25, v25 row_ror:8 row_mask:0xf bank_mask:0xc
        v_mov_b32_dpp v26, v26 row_ror:8 row_mask:0xf bank_mask:0x3
        v_mov_b32_dpp v27, v27 row_ror:8 row_mask:0xf bank_mask:0x3
        global_store_dwordx4 v19, v[24:27], {sp(WS_)} sc1
        """)
    elif x4:
        A(f"s_nop 0\nv_mov_b32_dpp v26, v24 row_ror:8 {DPPM}\nv_mov_b32_dpp v27, v25 row_ror:8 {DPPM}\ns_mov_b64 exec, 0xff")
        A(f"global_store_dwordx4 v19, v[24:27], {sp(WS_)} sc1\ns_mov_b64 exec, -1")
    else:
        A(f"global_store_dwordx2 v19, v[24:25], {sp(WS_)} sc1\ns_mov_b64 exec, -1")
    A.stamp(9)
    A("s_branch L_end")

    A("L_KT:\ns_waitcnt lgkmcnt(0)")
    A.mktag()
    A(f"""
    s_cmp_lt_u32 s3, 9
    s_cbranch_scc1 L_HR_go
    s_cmp_ge_u32 s3, {9 + hq}
    s_cbranch_scc1 L_S5
    s_lshr_b32 s44, s{WQ_}, 7
    s_sub_u32 s44, 3, s44
    s_and_b32 s44, s44, 7
    s_lshl_b32 s45, s4, 3
    s_add_u32 s44, s44, s45
    s_lshl_b32 s44, s44, 7
    s_sub_u32 s45, 24, s3
    v_lshlrev_b32 v15, 7, v4              ; (l>>3)*128 rows
    v_add_u32 v15, v15, v7
    s_lshl_b32 s45, s45, 3
    v_add_u32 v15, s45, v15               ; row = i*128 + w*8 + (l&7)
    v_subrev_u32 v16, {512 + 56}, v15
    v_cmp_gt_u32 vcc, 512, v15
    s_nop 1
    v_cndmask_b32 v15, v16, v15, vcc
    v_lshl_add_u32 v15, v15, 13, s44
    global_load_dword v125, v15, {sp(WQ_)}{NT}
    s_branch L_S5
    L_HR_go:
    v_lshlrev_b32 v15, 1, v0
    global_load_ushort v33, v15, {sp(X_)}
    global_load_ushort v34, v15, {sp(X_)} offset:1152
    s_mul_i32 s44, s4, 4608
    s_add_u32 s44, s44, {WS_HL}
    v_lshl_add_u32 v55, v0, 3, s44
    global_load_dword v57, v55, {sp(WS_)} sc1
    v_mul_u32_u24 v15, 36, v1
    global_load_dwordx4 v[24:27], v15, {sp(X_)}
    global_load_dwordx4 v[28:31], v15, {sp(X_)} offset:16
    global_load_dword v32, v15, {sp(X_)} offset:32
    v_lshlrev_b32 v15, 3, v0
    """)
    if x4: A("""    v_and_b32 v15, -16, v0
    v_lshlrev_b32 v15, 3, v15
    v_lshl_or_b32 v15, v7, 4, v15
    v_and_b32 v39, 8, v0
    v_or_b32 v15, v15, v39
""")
    A(f"""
    v_add_u32 v52, {WS_AG + 2304}, v15
    v_add_u32 v53, {WS_AG + 2304 + AGS}, v15
    """)
    def ag_loads():
        for k in range(2):
            A(f"global_load_dwordx2 {vr(40+4*k,2)}, v{52+k}, {sp(WS_)} offset:-2304 sc1")
            A(f"global_load_dwordx2 {vr(42+4*k,2)}, v{52+k}, {sp(WS_)} offset:2304 sc1")
    A(f"""
    s_mov_b32 s44, 0x3f803f80
    v_mov_b32 v35, 0
    v_mov_b32 v36, 0
    s_waitcnt vmcnt(0)
    v_mov_b32 v61, {TAG}
    """)
    for i in range(9):
        A(f"v_dot2_f32_bf16 v35, v{24+i}, s44, v35\nv_dot2_f32_bf16 v36, v{24+i}, v{24+i}, v36")
    A("s_nop 2")
    A.row_reduce("v_add_f32", ["v35", "v36"])
    A(f"""
    v_mov_b32 v37, v35
    v_mov_b32 v38, v36
    s_nop 0
    v_permlane16_swap_b32 v35, v37
    v_permlane16_swap_b32 v36, v38
    v_add_f32 v35, v35, v37
    v_add_f32 v36, v36, v38
    v_mul_f32 v35, {INV576}, v35
    v_mul_f32 v36, {INV576}, v36
    v_fma_f32 v36, -v35, v35, v36
    """)
    ln_finish(A, "v35", "v36", "v38")
    A("""
    v_readlane_b32 s48, v35, 0
    v_readlane_b32 s49, v35, 32
    v_readlane_b32 s50, v38, 0
    v_readlane_b32 s51, v38, 32
    v_lshlrev_b32 v33, 16, v33
    v_lshlrev_b32 v34, 16, v34
    v_subrev_f32 v33, s48, v33
    v_subrev_f32 v34, s49, v34
    """)
    A.r1("v33", "v34")
    A("v_mul_f32 v33, s50, v33\nv_mul_f32 v34, s51, v34")
    A.r1("v33", "v34")
    A("s_mov_b32 s7, 0")
    if hs: A(f"s_sleep {hs}")
    A(f"L_HR_h:\ns_add_u32 s7, s7, 1\ns_cmp_gt_u32 s7, {SPIN}\ns_cbranch_scc1 L_end\ns_sleep {hp}")
    ag_loads()
    A("s_waitcnt vmcnt(0)")
    A.etagcheck([f"v{40+i}" for i in range(8)], "v39", "L_HR_h", "s100", 7)
    for i in range(4): A(f"v_add_f32 v{40+i}, v{40+i}, v{44+i}")
    A.r1("v40", "v41", "v42", "v43")
    A("v_add_f32 v42, 1.0, v42\nv_add_f32 v43, 1.0, v43")
    A.r1("v42", "v43")
    A("v_mul_f32 v42, v33, v42\nv_mul_f32 v43, v34, v43")
    A.r1("v42", "v43")
    A(f"""
    v_add_f32 v42, v42, v40
    v_add_f32 v43, v43, v41
    v_cvt_pk_bf16_f32 v60, v42, v43
    """)
    if dq: A(f"s_sleep {dq}")
    A.dual_store("global_store_dwordx2", "v55", "v[60:61]")
    A.stamp(3)
    A("s_branch L_S5")
    A("L_XR:")
    if diag & 8: A("s_branch L_end")
    A(f"""
    v_lshlrev_b32 v16, 2, v0
    v_min_u32 v16, 1532, v16
    v_add_u32 v16, {L_ST}, v16
    ds_write_b32 v16, v3
    v_mov_b32 v21, {L_WCNT}
    v_mov_b32 v22, 1
    s_waitcnt lgkmcnt(0)
    s_barrier
    s_cmp_eq_u32 s3, 9
    s_cbranch_scc1 L_XR_stat
    s_cmp_gt_u32 s3, 9
    s_cbranch_scc1 L_end
    v_lshlrev_b32 v16, 1, v0
    global_load_ushort v80, v16, {sp(X_)}
    global_load_ushort v81, v16, {sp(X_)} offset:1152
    v_lshlrev_b32 v16, 3, v0
    v_add_u32 v17, {WS_MG + 2304}, v16
    v_add_u32 v18, {WS_MG + 9216}, v16
    """)
    if x4: A("""    v_and_b32 v16, -16, v0
    v_lshlrev_b32 v16, 3, v16
    v_lshl_or_b32 v16, v7, 4, v16
    v_and_b32 v30, 8, v0
    v_or_b32 v16, v16, v30
""")
    if pc: A("s_mul_i32 s44, s4, 36864\nv_add_u32 v16, s44, v16")
    for k in range(4): A(f"v_add_u32 v{88+k}, {(WS_PC if pc else WS_PX) + 2304 + k*9216}, v16")
    A(f"""
    s_mul_i32 s44, s4, 4608
    s_lshl_b32 s44, s44, 1
    s_add_u32 s45, s44, {WS_RG}
    v_lshl_add_u32 v26, v0, 4, s45
    s_add_u32 s45, s44, {WS_XA}
    v_lshl_add_u32 v27, v0, 4, s45
    v_and_b32 v24, 48, v1
    v_lshlrev_b32 v24, 2, v24
    s_lshl_b32 s44, s3, 2
    s_add_u32 s44, s44, {L_ST}
    v_add_u32 v24, s44, v24
    s_mov_b32 s56, 0x00010001
    s_mov_b32 s57, 0x00010001
    """)
    def partial_stats(off, r):
        for i in range(6): A(f"v_permlane32_swap_b32 v{r+2*i}, v{r+1+2*i}")
        for i in range(6): A(f"v_add_f32 v{r+2*i}, v{r+2*i}, v{r+1+2*i}")
        A("s_nop 0")
        for i in range(3): A(f"v_permlane16_swap_b32 v{r+4*i}, v{r+2+4*i}")
        for i in range(3): A(f"v_add_f32 v{r+4*i}, v{r+4*i}, v{r+2+4*i}")
        A.row_reduce("v_add_f32", [f"v{r}", f"v{r+4}", f"v{r+8}"])
        A(f"""
        s_mov_b64 exec, s[56:57]
        ds_write_b32 v24, v{r} offset:{off}
        ds_write_b32 v24, v{r+4} offset:{off+256}
        ds_write_b32 v24, v{r+8} offset:{off+512}
        s_mov_b64 exec, -1
        """)
    A(f"""
    s_mov_b32 s7, 0
    s_movk_i32 s60, {0x100 if fl else 0x1ff}
    s_mov_b32 s61, 0
    L_XR_px:
    s_add_u32 s7, s7, 1
    s_cmp_gt_u32 s7, {SPIN}
    s_cbranch_scc1 L_end
    """)
    for k in range(8):
        A(f"s_bitcmp0_b32 s60, {k}\ns_cbranch_scc1 L_px_l{k}")
        A(f"global_load_dwordx2 {vr(96+2*k,2)}, v{88+k//2}, {sp(WS_)} offset:{2304 if k & 1 else -2304} sc1")
        A(f"L_px_l{k}:")
    A("s_bitcmp0_b32 s60, 8\ns_cbranch_scc1 L_px_m")
    for j, (r, o) in enumerate((("v17", -2304), ("v17", 2304), ("v18", 0))):
        A(f"global_load_dwordx2 {vr((40, 34, 42)[j],2)}, {r}, {sp(WS_)} offset:{o} sc1")
    A("s_waitcnt vmcnt(0)")
    A.tagcheck(["v41", "v35", "v43", "v43"], "v30", "v31", "L_px_m")
    A(f"""
    s_bitset0_b32 s60, 8
    v_lshlrev_b32 v82, 16, v40
    v_and_b32 v83, 0xffff0000, v40        ; ga
    v_and_b32 v43, 0xffff0000, v42
    v_lshlrev_b32 v42, 16, v42
    v_add_f32 v42, 1.0, v42
    v_add_f32 v43, 1.0, v43
    v_cvt_pk_bf16_f32 v32, v42, v43       ; g
    v_mov_b32 v33, {TAG}
    """)
    A(f"""
    global_store_dwordx4 v26, v[32:35], {sp(WS_)}
    v_mov_b32 v36, v32
    v_mov_b32 v37, v33
    v_mov_b32 v38, v34
    v_mov_b32 v39, v35
    v_lshlrev_b32 v80, 16, v80
    v_lshlrev_b32 v81, 16, v81
    v_lshlrev_b32 v84, 16, v32
    v_and_b32 v85, 0xffff0000, v32
    v_lshlrev_b32 v86, 16, v34
    v_and_b32 v87, 0xffff0000, v34
    v_mov_b32 v44, v84
    v_mov_b32 v45, v85
    v_mul_f32 v46, v84, v84
    v_mul_f32 v47, v85, v85
    v_mov_b32 v48, v86
    v_mov_b32 v49, v87
    v_mul_f32 v50, v86, v86
    v_mul_f32 v51, v87, v87
    v_mul_f32 v52, v84, v86
    v_mul_f32 v53, v85, v87
    v_mov_b32 v54, 0
    v_mov_b32 v55, 0
    """)
    partial_stats(0, 44)
    A.lds_inc(4, "v21", "v22")
    A.stamp(6)
    A("s_branch L_px_m2\nL_px_m:\ns_waitcnt vmcnt(0)\nL_px_m2:")
    for k in range(8):
        A(f"""
        s_bitcmp0_b32 s60, {k}
        s_cbranch_scc1 L_px_c{k}
        v_xor_b32 v{96+2*k}, {ETAG}, v{96+2*k}
        v_xor_b32 v{97+2*k}, {ETAG}, v{97+2*k}
        v_or_b32 v30, v{96+2*k}, v{97+2*k}
        v_and_b32 v30, 63, v30
        v_cmp_ne_u32 vcc, 0, v30
        s_cbranch_vccnz L_px_c{k}
        s_bitset0_b32 s60, {k}
        L_px_c{k}:
        """)
    A("s_cmp_lg_u32 s60, 0\ns_cbranch_scc1 L_XR_px")
    if fl:
        A(f"""
        s_cmp_lg_u32 s61, 0
        s_cbranch_scc1 L_XR_done
        s_mul_i32 s44, s4, 9
        s_add_u32 s44, s44, s3
        s_lshl_b32 s44, s44, 7
        s_add_u32 s44, s44, {WS_FL}
        s_add_u32 s62, s{WS_}, s44
        s_addc_u32 s63, s{WS_+1}, 0
        L_XR_fl:
        s_add_u32 s7, s7, 1
        s_cmp_gt_u32 s7, {SPIN}
        s_cbranch_scc1 L_end
        s_load_dwordx8 s[64:71], s[62:63], 0 glc
        s_waitcnt lgkmcnt(0)
        """)
        for k in range(8):
            A(f"""
            s_bitcmp1_b32 s61, {k}
            s_cselect_b32 s58, 0, s{64+k}
            s_cmp_lg_u32 s58, {TAG}
            s_cbranch_scc1 L_fl_{k}
            global_load_dwordx2 {vr(96+2*k,2)}, v{88+k//2}, {sp(WS_)} offset:{2304 if k & 1 else -2304} sc1
            s_bitset1_b32 s61, {k}
            L_fl_{k}:
            """)
        A(f"""
        s_cmp_lg_u32 s61, 0xff
        s_cbranch_scc1 L_XR_fl
        s_movk_i32 s60, 0xff
        s_branch L_px_m
        L_XR_done:
        """)
    A.stamp(10)
    for i in range(4): A(f"v_add_f32 v{96+2*i}, v{96+2*i}, v{104+2*i}\nv_add_f32 v{97+2*i}, v{97+2*i}, v{105+2*i}")
    for i in range(2): A(f"v_add_f32 v{96+2*i}, v{96+2*i}, v{100+2*i}\nv_add_f32 v{97+2*i}, v{97+2*i}, v{101+2*i}")
    A("v_add_f32 v96, v96, v98\nv_add_f32 v97, v97, v99")
    A.r1("v96", "v97")
    A("v_mul_f32 v96, v82, v96\nv_mul_f32 v97, v83, v97")
    A.r1("v96", "v97")
    A(f"""
    v_add_f32 v96, v80, v96
    v_add_f32 v97, v81, v97
    v_cvt_pk_bf16_f32 v34, v96, v97
    v_lshlrev_b32 v96, 16, v34
    v_and_b32 v97, 0xffff0000, v34        ; x1
    v_mul_f32 v100, v96, v84
    v_mul_f32 v101, v97, v85
    v_cvt_pk_bf16_f32 v32, v100, v101
    global_store_dwordx4 v27, v[32:35], {sp(WS_)}
    v_lshlrev_b32 v100, 16, v32
    v_and_b32 v101, 0xffff0000, v32       ; a
    v_mul_f32 v98, v96, v96
    v_mul_f32 v99, v97, v97
    v_mul_f32 v102, v100, v100
    v_mul_f32 v103, v101, v101
    v_mul_f32 v104, v100, v84
    v_mul_f32 v105, v101, v85
    v_mul_f32 v106, v100, v86
    v_mul_f32 v107, v101, v87
    """)
    partial_stats(768, 96)
    A("s_waitcnt lgkmcnt(0)\ns_barrier")
    A("s_barrier")
    A(f"v_add_u32 v27, {WS_GOFF}, v27\nglobal_store_dwordx4 v27, v[32:35], {sp(WS_)} sc1")
    A(f"v_add_u32 v26, {WS_GOFF}, v26\nglobal_store_dwordx4 v26, v[36:39], {sp(WS_)} sc1")
    A.stamp(11)
    A(f"""
    s_branch L_end
    L_XR_stat:
    v_lshlrev_b32 v22, 2, v1
    v_add_u32 v22, {L_ST}, v22
    v_lshrrev_b32 v20, 5, v1
    s_lshl_b32 s44, s4, 7
    s_add_u32 s44, s44, {WS_CF}
    v_lshl_add_u32 v20, v20, 4, s44
    global_load_dword v23, v20, {sp(WS_)} sc1
    """)
    def gather_stats(off, cnt, r, sleep):
        if sleep: A.lds_spin(cnt, 9, "v23", "v21")
        else: A("s_barrier")
        A(f"""
        ds_read_b32 v{r}, v22 offset:{off}
        ds_read_b32 v{r+2}, v22 offset:{off+256}
        ds_read_b32 v{r+4}, v22 offset:{off+512}
        s_waitcnt lgkmcnt(0)
        """)
        A.row_reduce("v_add_f32", [f"v{r}", f"v{r+2}", f"v{r+4}"])
        for q in (r, r+2, r+4): A(f"v_mul_f32 v{q}, {INV576}, v{q}")
        for q in (r, r+2, r+4): A(f"v_mov_b32 v{q+1}, v{q}")
        for q in (r, r+2, r+4): A(f"v_permlane16_swap_b32 v{q}, v{q+1}")
    A("s_waitcnt vmcnt(0)")
    gather_stats(0, 4, 100, True)
    gather_stats(768, 8, 84, False)
    A("v_fma_f32 v85, -v84, v84, v85")
    ln_finish(A, "v84", "v85", "v90")
    A(f"""
    v_fma_f32 v86, -v84, v100, v86
    v_fma_f32 v89, -v84, v104, v89
    v_add_f32 v88, v88, v88
    v_fma_f32 v88, v84, v101, -v88
    v_fma_f32 v87, v84, v88, v87
    v_fma_f32 v86, v90, v86, v102         ; mean2
    v_add_f32 v89, v89, v89
    v_fma_f32 v87, v90, v87, v89
    v_fma_f32 v87, v90, v87, v103         ; E[h2^2]
    v_fma_f32 v87, -v86, v86, v87         ; var2
    """)
    ln_finish(A, "v86", "v87", "v94")
    A(f"""
    v_mul_f32 v92, v90, v94               ; c0
    v_mul_f32 v95, -v86, v94              ; c3
    v_mul_f32 v93, -v84, v92              ; c1
    """)
    for r in range(92, 96): A.epack(f"v{r}", f"v{r}")
    A("s_mov_b32 exec_lo, 1\ns_mov_b32 exec_hi, 1")
    A.dual_store("global_store_dwordx4", "v20", "v[92:95]")
    A("s_mov_b64 exec, -1\ns_barrier")
    A.stamp(12)
    A("s_branch L_end")

    A(f"""
    L_S5:
    {'s_branch L_end' if diag & 8 else ''}
    s_mul_i32 s47, s4, 9
    s_add_u32 s47, s47, s5                ; f
    """)
    A.srd(8, W1_, 576*9216)
    A.srd(12, W2_, 4608*1152)
    A(f"""
    s_lshl_b32 s44, s47, 7
    v_mul_u32_u24 v14, 9216, v4
    v_lshl_add_u32 v14, v6, 4, v14
    v_add_u32 v14, s44, v14
    s_lshl_b32 s45, s46, 5
    s_add_u32 s44, s44, s45
    v_and_b32 v15, 15, v1
    v_lshl_add_u32 v15, v15, 1, s44
    global_load_ushort v19, v15, {sp(B1_)}
    v_mul_u32_u24 v15, 0x38f, v0
    v_lshrrev_b32 v15, 16, v15
    v_mul_u32_u24 v16, 72, v15
    v_sub_u32 v16, v0, v16
    v_and_b32 v17, 6, v15
    v_xor_b32 v16, v16, v17
    v_mul_u32_u24 v15, 1152, v15
    v_lshl_add_u32 v15, v16, 4, v15
    s_mul_i32 s49, s4, 9216
    s_add_u32 s45, s49, {WS_RG}
    v_lshl_add_u32 v80, v0, 4, s45
    s_add_u32 s45, s49, {WS_XA}
    v_lshl_add_u32 v81, v0, 4, s45
    v_lshrrev_b32 v20, 2, v1
    v_mul_u32_u24 v20, 1152, v20
    v_lshl_add_u32 v20, v9, 3, v20
    v_add_u32 v20, {L_BUF1}, v20
    v_bfe_u32 v17, v1, 3, 2
    s_mul_i32 s48, s3, 3
    """)
    for i in range(3):
        A(f"s_add_u32 s44, s48, {i}\nv_xor_b32 v{92+i}, s44, v17\nv_lshl_add_u32 v{92+i}, v{92+i}, 5, v20")
    A(f"""
    s_mul_i32 s44, s48, {2*4608}
    s_lshl_b32 s45, s47, 6
    s_add_u32 s44, s44, s45
    s_add_u32 s44, s44, {WS_FG}
    v_mul_u32_u24 v20, 4608, v4
    v_lshl_add_u32 v20, v7, 3, v20
    v_add_u32 v76, s44, v20
    v_and_b32 v79, 1, v1
    v_lshlrev_b32 v79, 7, v79
    v_and_b32 v20, 48, v1
    v_add_u32 v79, v79, v20
    v_add_u32 v79, {L_H1}, v79
    s_lshl_b32 s44, s47, 3
    v_add_u32 v77, s44, v7                ; col
    v_lshrrev_b32 v78, 5, v1              ; b
    v_mul_u32_u24 v82, 1152, v78
    v_lshl_add_u32 v82, v77, 1, v82
    v_lshlrev_b32 v83, 1, v77
    s_cmp_lg_u32 s3, 10
    s_cbranch_scc1 L_S5_nf
    global_load_ushort v84, v83, {sp(B2_)}
    global_load_ushort v85, v82, {sp(OUT_)}
    L_S5_nf:
    v_lshlrev_b32 v83, 3, v77
    v_add_u32 v83, {WS_MG + 1728*8}, v83
    s_add_u32 s44, s49, {WS_XA + 8}
    v_lshl_add_u32 v77, v77, 4, s44
    v_lshlrev_b32 v78, 4, v78             ; 16*b
    s_mul_i32 s44, s47, 4608
    s_add_u32 s44, s44, {WS_FG + 2048}
    v_lshl_add_u32 v88, v1, 3, s44
    v_mov_b32 v21, {L_WCNT}
    v_mov_b32 v22, 1
    """)
    if trig:
        A(f"""
        s_cmp_lg_u32 s3, 11
        s_cbranch_scc1 L_S5_tb
        s_lshr_b32 s44, s{W1_}, 7
        s_add_u32 s44, s44, s47
        s_and_b32 s44, s44, 7
        s_cmp_eq_u32 s44, {3 if c3 else 9}
        s_cbranch_scc1 L_S5_tb
        s_lshl_b32 s44, s4, 10
        s_add_u32 s44, s44, {WS_TR}
        v_lshl_add_u32 v16, v7, 7, s44
        s_mov_b32 s7, 0
        L_S5_trig:
        s_sleep {ps}
        global_load_dword v17, v16, {sp(WS_)} sc1
        s_add_u32 s7, s7, 1
        s_cmp_gt_u32 s7, {NLOC//2}
        s_cbranch_scc1 L_S5_tb
        s_waitcnt vmcnt(0)
        v_cmp_eq_u32 vcc, {TAG}, v17
        s_and_b32 s44, vcc_lo, {tm}
        s_bcnt1_i32_b32 s44, s44
        s_cmp_lt_u32 s44, {trig}
        s_cbranch_scc1 L_S5_trig
        L_S5_tb:
        """)
    A("s_barrier")
    A.stamp(5)
    dma_tile(A, 8, "v14", 9216, L_BUF0)
    A(f"""
    s_barrier
    s_cmp_ge_u32 s3, 9
    s_cbranch_scc1 L_S5_hi
    s_mul_i32 s44, s47, {64*1152}
    s_lshl_b32 s45, s3, 10
    s_add_u32 s45, s45, {L_BUF1}
    """)
    for o in range(8):
        A(f"s_mov_b32 m0, s45\ns_add_u32 s45, s45, 9216")
        A(f"buffer_load_dwordx4 v15, s[12:15], s44 offen{NT} lds")
        A(f"s_add_u32 s44, s44, 9216")
    A(f"global_load_dwordx4 v[24:27], v80, {sp(WS_)} sc1\ns_waitcnt vmcnt(9)")
    A.lds_inc(4, "v21", "v22")
    A("s_mov_b32 s7, 0\ns_branch L_S5_rgc")
    A.dual_head("L_S5_rg", ["v80", "v81"], init=False)
    A(f"s_sleep {ps}\nglobal_load_dwordx4 v[24:27], v80, {sp(WS_)} sc1\nL_S5_rgc:\ns_waitcnt vmcnt(0)")
    A.tagcheck(["v25", "v27"], "v30", "v31", "L_S5_rg")
    A(f"""
    v_mov_b32 v35, 0x3f80
    ds_write_b16 v8, v24 offset:{ASTR}
    ds_write_b16_d16_hi v8, v24 offset:{5*ASTR}
    ds_write_b16 v8, v26 offset:{2*ASTR}
    ds_write_b16_d16_hi v8, v26 offset:{6*ASTR}
    ds_write_b16 v8, v35 offset:{3*ASTR}
    ds_write_b16 v8, v35 offset:{7*ASTR}
    s_waitcnt lgkmcnt(0)
    {f's_sleep {ds5}' if ds5 else ''}
    s_barrier
    global_load_dwordx2 v[24:25], v81, {sp(WS_)} sc1
    """)
    A.stamp(6)
    def w2frags():
        for i in range(3):
            for ks in range(2):
                for half in range(2):
                    A(f"ds_read_b64_tr_b16 {vr(52+i*8+ks*4+half*2,2)}, v{92+i} offset:{(ks*32+half*16)*1152}")
    w2frags()
    A("s_branch L_S5_xac")
    A.dual_head("L_S5_xa", ["v81"], init=False)
    A(f"global_load_dwordx2 v[24:25], v81, {sp(WS_)} sc1\nL_S5_xac:\ns_waitcnt vmcnt(0)")
    A.tagcheck(["v25"], None, None, "L_S5_xa")
    A(f"""
    ds_write_b16 v8, v24
    ds_write_b16_d16_hi v8, v24 offset:{4*ASTR}
    s_waitcnt lgkmcnt(0)
    s_barrier
    """)
    A.stamp(7)
    A(f"""
    s_branch L_S5_g2
    L_S5_hi:
    s_waitcnt vmcnt(0)
    """)
    A.lds_inc(4, "v21", "v22")
    A(f"""
    s_cmp_ge_u32 s3, 12
    s_cbranch_scc1 L_S5_g1
    s_barrier
    """)
    w2frags()
    A(f"""
    s_cmp_lg_u32 s3, 10
    s_cbranch_scc1 L_S5_h2
    global_load_dwordx2 v[86:87], v83, {sp(WS_)} sc1
    s_barrier
    s_mov_b32 s7, 0
    s_branch L_S5_gb1
    """)
    A.dual_head("L_S5_gb", ["v77"], init=False)
    A(f"""
    global_load_dwordx2 v[86:87], v83, {sp(WS_)} sc1
    L_S5_gb1:
    global_load_dwordx2 v[90:91], v77, {sp(WS_)} sc1
    s_waitcnt vmcnt(0)
    """)
    A.tagcheck(["v87", "v91"], "v30", "v31", "L_S5_gb")
    A(f"""
    v_lshrrev_b32 v86, v78, v86
    v_lshrrev_b32 v85, v78, v90
    v_lshlrev_b32 v86, 16, v86            ; gb
    v_lshlrev_b32 v85, 16, v85            ; x1
    v_lshlrev_b32 v84, 16, v84            ; b2
    s_branch L_S5_g2
    L_S5_h2:
    s_barrier
    L_S5_g2:
    s_mov_b32 s56, 0xffff0000
    s_mov_b32 s57, 0
    s_mov_b32 s58, 0
    s_mov_b32 s59, 0xffff
    s_waitcnt lgkmcnt(0)
    s_barrier
    ds_read_b128 v[32:35], v79
    ds_read_b128 v[36:39], v79 offset:64
    s_waitcnt lgkmcnt(1)
    """)
    for i in range(3):
        A(f"v_mfma_f32_16x16x32_bf16 {vr(40+4*i,4)}, v[32:35], {vr(52+8*i,4)}, 0")
    A("s_waitcnt lgkmcnt(0)")
    for i in range(3):
        A(f"v_mfma_f32_16x16x32_bf16 {vr(40+4*i,4)}, v[36:39], {vr(56+8*i,4)}, {vr(40+4*i,4)}")
    A(f"""
    s_mov_b32 exec_hi, 0xffff
    s_nop 5
    v_cndmask_b32 v28, v40, v44, s[56:57]
    v_cndmask_b32 v29, v41, v45, s[56:57]
    v_cndmask_b32 v28, v28, v48, s[58:59]
    v_cndmask_b32 v29, v29, v49, s[58:59]
    """)
    A.epack("v28", "v28"); A.epack("v29", "v29")
    A(f"global_store_dwordx2 v76, v[28:29], {sp(WS_)} sc1\ns_mov_b64 exec, -1")
    A.stamp(11)
    A(f"""
    s_cmp_lg_u32 s3, 10
    s_cbranch_scc1 L_end
    {f's_sleep {fgs}' if fgs else 's_waitcnt vmcnt(0)'}
    """)
    A.spin_head("L_S5_fg")
    for i in range(9):
        A(f"global_load_dwordx2 {vr(40+2*i,2)}, v88, {sp(WS_)} offset:{i*512-2048} sc1")
    A("s_waitcnt vmcnt(0)")
    A.etagcheck([f"v{40+i}" for i in range(18)], "v30", "L_S5_fg")
    A.stamp(12)
    fold8(A, 9, 40, 41, 42)
    A.r1("v40")
    A("v_add_f32 v40, v84, v40")
    A.r1("v40")
    A("v_mul_f32 v40, v86, v40")
    A.r1("v40")
    A(f"""
    v_add_f32 v40, v85, v40
    v_cvt_pk_bf16_f32 v40, v40, v40
    s_mov_b32 exec_lo, 0xff
    s_mov_b32 exec_hi, 0xff
    global_store_short v82, v40, {sp(OUT_)}
    s_cmp_lg_u32 s47, 0
    s_cbranch_scc1 L_S5_fin
    s_mov_b64 exec, 1
    v_mov_b32 v33, {TAG}
    global_store_dword v3, v33, {sp(WS_)} sc1
    L_S5_fin:
    s_mov_b64 exec, -1
    """)
    if probe:
        base, stride = {1: (0xB0000, 128*72), 2: (0x400000, 65536), 3: (0x1000000, 0x200000), 4: (0xB0000, 128*72)}[probe]
        A(f"s_lshl_b32 s44, s47, 7\ns_add_u32 s44, s44, {base}\nv_mov_b32 v60, s44\ns_waitcnt vmcnt(0)\ns_mov_b64 exec, 1")
        for i in range(8):
            if probe == 1: A(f"global_store_dword v60, v3, {sp(WS_)} sc1")
            else: A(f"global_load_dword v61, v60, {sp(WS_)} nt")
            A(f"s_waitcnt vmcnt(0)\nv_add_u32 v60, {stride}, v60")
        A("s_mov_b64 exec, -1")
    A.stamp(13)
    A("s_branch L_end")
    A("L_S5_g1:\nv_mov_b32 v15, v10")
    A.lds_spin(4, 16, "v16", "v21")
    bfrags(A, "v15")
    k0_ = -2.0 * 1.4426950408889634 * 0.7978845608028654
    A(f"""
    v_bfe_u32 v16, v1, 4, 1
    v_lshlrev_b32 v15, 7, v16
    s_lshl_b32 s44, s4, 7
    s_add_u32 s44, s44, {WS_CF}
    v_lshl_add_u32 v18, v16, 4, s44
    v_bfe_u32 v16, v1, 2, 2
    v_lshl_or_b32 v15, v16, 4, v15
    v_lshl_or_b32 v15, v9, 1, v15
    s_lshr_b32 s44, s46, 1
    s_lshl_b32 s44, s44, 6
    s_and_b32 s45, s46, 1
    s_lshl_b32 s45, s45, 3
    s_add_u32 s44, s44, s45
    s_add_u32 s44, s44, {L_H1}
    v_add_u32 v15, s44, v15
    v_lshlrev_b32 v19, 16, v19
    v_mul_u32_u24 v16, {ASTR}, v7
    v_add_u32 v16, v11, v16               ; A rows = i&7
    v_mov_b32 v17, {f2h(k0_)}
    s_waitcnt lgkmcnt(0)
    s_barrier
    s_barrier
    """)
    cfl = f"global_load_dwordx4 v[52:55], v18, {sp(WS_)} sc1"
    gemv_mfma(A, "v16", mid=(cfm, cfl))
    A.stamp(9)
    A("s_mov_b32 s7, 0\ns_branch L_S5_cfc")
    A.dual_head("L_S5_cf", ["v18"], init=False)
    A(f"{cfl}\nL_S5_cfc:\ns_waitcnt vmcnt(0)")
    A.etagcheck(["v52", "v53", "v54", "v55"], "v30", "L_S5_cf")
    A.stamp(8)
    A(f"""
    v_mul_f32 v20, v20, v52
    v_mul_f32 v22, v22, v54
    v_fmac_f32 v20, v21, v53
    v_fmac_f32 v22, v23, v55
    v_add_f32 v20, v20, v22
    """)
    A.r1("v20")
    A("v_add_f32 v20, v20, v19")
    A.r1("v20")
    A(f"""
    v_mul_f32 v21, v20, v20
    v_fmamk_f32 v21, v21, {f2h(k0_*0.044715)}, v17
    v_mul_f32 v21, v21, v20
    v_exp_f32 v21, v21
    s_nop 0
    v_add_f32 v21, 1.0, v21
    v_rcp_f32 v21, v21
    s_mov_b32 exec_hi, 0
    v_mul_f32 v21, v21, v20
    v_cvt_pk_bf16_f32 v21, v21, v21
    ds_write_b16 v15, v21
    s_mov_b64 exec, -1
    s_waitcnt lgkmcnt(0)
    s_barrier
    """)
    A.stamp(10)
    A("L_end:")
    if dbg:
        maps = {"A": {1: 4, 2: 5, 4: 6, 7: 7, 9: 8, 10: 9, 12: 14}, "B": {4: 3, 5: 10, 6: 11, 8: 12, 11: 13}, "M": {3: 2, 5: 15}}
        A(f"""
        s_mov_b64 exec, -1
        s_lshl_b32 s44, 1, s3
        s_and_b32 s44, s44, {(1<<0)|(1<<9)|(1<<12)|(1<<15)}
        s_cbranch_scc0 L_exit
        s_load_dwordx2 s[46:47], s[0:1], 104
        v_mov_b32 v125, 0x400
        v_readlane_b32 s44, v127, 0
        s_nop 3
        s_not_b32 s44, s44
        v_writelane_b32 v127, s44, 15
        v_writelane_b32 v125, 4, 0
        v_writelane_b32 v125, 0, 15
        s_lshr_b32 s45, s2, 3
        s_cmp_lt_u32 s45, 16
        s_cbranch_scc1 L_dbg_A
        s_cmp_lt_u32 s45, 25
        s_cbranch_scc1 L_dbg_B
        """)
        for nm in ("M", "B", "A"):
            A(f"L_dbg_{nm}:")
            for st, sl in maps[nm].items(): A(f"v_writelane_b32 v125, {sl*4}, {st}")
            A("s_branch L_dbg_go")
        A(f"""
        L_dbg_go:
        s_waitcnt lgkmcnt(0)
        v_cmp_gt_u32 vcc, 0x100, v125
        s_and_saveexec_b64 s[48:49], vcc
        global_atomic_umax v125, v127, s[46:47]
        s_endpgm
        """)
    elif stamps:
        A(f"""
        s_mov_b64 exec, 0xffff
        s_lshl_b32 s44, s2, 4
        s_add_u32 s44, s44, s3
        s_lshl_b32 s44, s44, 6
        s_add_u32 s44, s44, {WS_STAMP}
        v_lshl_add_u32 v126, v1, 2, s44
        global_store_dword v126, v127, {sp(WS_)}
        """)
    A("L_exit:\ns_endpgm\nL_codeend:")
    A.footer(128, 102)
    return A

HEAD = """; Fused adaLN + sliding-window GQA decode attention + channel MLP, one persistent launch (gfx950).
"""
if __name__ == "__main__":
    out = sys.argv[1]
    kw = {}
    for o in sys.argv[2:]:
        if "=" in o:
            k, v = o.split("="); kw[k] = int(v)
        elif o == "stamps": kw["stamps"] = True
        elif o == "nont": kw["nt"] = ""
    A = build(**kw)
    open(out, "w").write(HEAD + A.text())
```

```python
import sys, struct
from asmlib import Asm, NAME

WS_EPOCH = 0x0
WS_QG    = 0x4000
WS_TR    = 0x18000
WS_FL    = 0x1C000
WS_PX    = 0x20000
WS_AG    = 0x30000
AGS = 1152*8
WS_MG    = 0x40000
WS_FG    = 0x50000
WS_OG    = 0x100000
WS_MLG   = 0x120000
WS_RG    = 0x124000
WS_XA    = 0x136000
WS_CF    = 0x151000
WS_HL    = 0x152000
WS_GOFF  = 0x80000
WS_QL    = 0x200000
WS_PC    = 0xA2000
WS_STAMP = 0x8000000
AL = 131072; L_Q = 0; L_CNT = 512; L_MX = 640; L_LS = 768; L_P = 1024; PSTR = 1088; L_PD = 3328
ASTR = 1184
L_BUF0 = 0; L_BUF1 = 73728; L_ACT = 147456; L_H1 = L_ACT + 8*ASTR; L_CF = L_H1 + 256; L_WCNT = L_CF + 64; L_ST = L_WCNT + 64; L_X1 = L_ST + 1536
LDS_BYTES = 160768
assert L_X1 <= LDS_BYTES
NLOC = 300
SPIN = 40000
LITE = False
LOG2E = 0x3fb8aa3b
X_, K_, V_, WQ_, WO_, W1_, B1_, W2_, B2_, C_, WM_, OUT_, WS_ = 16, 18, 20, 22, 24, 28, 30, 32, 34, 36, 38, 40, 42
TAG = "s6"; ETAG = "s101"

def sp(n): return f"s[{n}:{n+1}]"
def vr(n, k): return f"v[{n}:{n+k-1}]"
def f2h(x): return hex(struct.unpack("<I", struct.pack("<f", x))[0])
DPPM = "row_mask:0xf bank_mask:0xf"

class G(Asm):
    def __init__(self, stamps=False, nt="nt"):
        super().__init__()
        self.stamps = stamps
        self.nt = (" " + nt) if nt else ""
    def stamp(self, i):
        if self.stamps and (not LITE or i == 13):
            self(f"s_memrealtime s[96:97]\ns_waitcnt lgkmcnt(0)\nv_writelane_b32 v127, s96, {i}")
    def rbf(self, *pairs):
        for d, s in pairs: self(f"v_cvt_pk_bf16_f32 {d}, {s}, {s}")
        for d, s in pairs: self(f"v_and_b32 {d}, 0xffff0000, {d}")
    def r1(self, *regs): self.rbf(*[(r, r) for r in regs])
    def srd(self, b, ptr, nbytes):
        self(f"s_mov_b32 s{b}, s{ptr}\ns_and_b32 s{b+1}, s{ptr+1}, 0xffff\ns_mov_b32 s{b+2}, {nbytes}\ns_mov_b32 s{b+3}, 0x20000")
    def mktag(self):
        self(f"s_add_u32 s6, s6, 0x9e3779b9\ns_and_b32 {ETAG}, s6, 63\ns_and_b32 s100, s6, 7")
    def tagcheck(self, tags, mn, mx, retry):
        if len(tags) == 1:
            self(f"v_cmp_ne_u32 vcc, {TAG}, {tags[0]}")
        else:
            assert len(tags) % 2 == 0
            for i in range(0, len(tags), 2):
                a, b = tags[i], tags[i+1]
                self(f"v_min3_u32 {mn}, {a}, {b}, {TAG if i == 0 else mn}")
                self(f"v_max3_u32 {mx}, {a}, {b}, {TAG if i == 0 else mx}")
            self(f"v_cmp_ne_u32 vcc, {mn}, {mx}")
        self(f"s_cbranch_vccnz {retry}")
    def etagcheck(self, words, acc, retry, ETAG=ETAG, mask=63):
        assert len(words) % 2 == 0
        for i in range(0, len(words), 2):
            a, b = words[i], words[i+1]
            self(f"v_xor_b32 {a}, {ETAG}, {a}\nv_xor_b32 {b}, {ETAG}, {b}")
            if i == 0: self(f"v_or_b32 {acc}, {a}, {b}")
            else: self(f"v_or3_b32 {acc}, {a}, {b}, {acc}")
        self(f"v_and_b32 {acc}, {mask}, {acc}\nv_cmp_ne_u32 vcc, 0, {acc}\ns_cbranch_vccnz {retry}")
    def epack(self, d, v, mask=63):
        self(f"v_bfi_b32 {d}, {mask}, {ETAG}, {v}")
    def spin_head(self, lab):
        self(f"s_mov_b32 s7, 0\n{lab}:\ns_add_u32 s7, s7, 1\ns_cmp_gt_u32 s7, {SPIN}\ns_cbranch_scc1 L_end")
    def dual_head(self, lab, regs, init=True):
        if init: self("s_mov_b32 s7, 0")
        self(f"{lab}:\ns_add_u32 s7, s7, 1\ns_cmp_gt_u32 s7, {SPIN}\ns_cbranch_scc1 L_end")
        self(f"s_cmp_lg_u32 s7, {NLOC}\ns_cbranch_scc1 {lab}_k")
        for r in regs: self(f"v_add_u32 {r}, {WS_GOFF}, {r}")
        self(f"{lab}_k:")
    def dual_store(self, op, vaddr, data):
        self(f"{op} {vaddr}, {data}, {sp(WS_)}\nv_add_u32 {vaddr}, {WS_GOFF}, {vaddr}\n{op} {vaddr}, {data}, {sp(WS_)} sc1")
    def row_reduce(self, op, regs, steps=4):
        for ctl in ("quad_perm:[1,0,3,2]", "quad_perm:[2,3,0,1]", "row_half_mirror", "row_mirror")[:steps]:
            if len(regs) < 3: self(f"s_nop {2 - len(regs)}")
            for r in regs:
                self(f"{op}_dpp {r}, {r}, {r} {ctl} {DPPM}")
    def lds_spin(self, off, val, vt, vbase, sleep=True):
        lab = self.label("LS")
        self.spin_head(lab)
        self(f"ds_read_b32 {vt}, {vbase} offset:{off}\ns_waitcnt lgkmcnt(0)\nv_readfirstlane_b32 s44, {vt}\ns_cmp_ge_u32 s44, {val}")
        done = self.label("LD")
        self(f"s_cbranch_scc1 {done}\n" + ("s_sleep 1\n" if sleep else "") + f"s_branch {lab}\n{done}:")
    def lds_inc(self, off, vbase, vone):
        self(f"s_mov_b64 exec, 1\nds_add_u32 {vbase}, {vone} offset:{off}\ns_mov_b64 exec, -1")

INV576 = f2h(1.0/576)
def ln_finish(A, mean, var, rs):
    A(f"v_max_f32 {var}, 0, {var}")
    A.r1(mean, var)
    A(f"v_add_f32 {var}, 0x3727c5ac, {var}")
    A.r1(var)
    A(f"v_sqrt_f32 {var}, {var}\ns_nop 0")
    A.r1(var)
    A(f"v_rcp_f32 {rs}, {var}\ns_nop 0")

def dma_tile(A, srd, voff, rowstride, ldsbase, ninstr=72, nt=None):
    if nt is None: nt = A.nt
    A(f"s_mul_i32 s44, s3, {8*rowstride}\ns_lshl_b32 s45, s3, 10\ns_add_u32 s45, s45, {ldsbase}")
    for i in range((ninstr + 15)//16):
        skip = None
        if (i+1)*16 > ninstr:
            skip = A.label("DS")
            A(f"s_cmp_ge_u32 s3, {ninstr - 16*i}\ns_cbranch_scc1 {skip}")
        A(f"s_mov_b32 m0, s45\ns_add_u32 s45, s45, 16384")
        A(f"buffer_load_dwordx4 {voff}, s[{srd}:{srd+3}], s44 offen{nt} lds")
        A(f"s_add_u32 s44, s44, {128*rowstride}")
        if skip: A(f"{skip}:")

def bfrags(A, vaddr, vb=52, nks=18, rowb=128):
    base = 0
    for ks in range(nks):
        for half in range(2):
            off = (ks*32 + half*16) * rowb
            if off - base > 65535:
                A(f"v_add_u32 {vaddr}, {off - base}, {vaddr}"); base = off
            A(f"ds_read_b64_tr_b16 {vr(vb + ks*4 + half*2,2)}, {vaddr} offset:{off - base}")

def kv_chunk_base(A, rp, dst, t, SP):
    A(f"""
    s_lshr_b32 {t}, {rp}, 3
    s_lshl_b32 {dst}, s4, 1
    s_add_u32 {dst}, {dst}, {t}
    s_bfe_u32 {t}, {rp}, 0x10002
    s_lshl_b32 {t}, {t}, 4
    s_add_u32 {dst}, {dst}, {t}
    s_lshl_b32 {dst}, {dst}, 21
    s_and_b32 {t}, {rp}, 3
    s_lshl_b32 {t}, {t}, {SP}
    s_add_u32 {dst}, {dst}, {t}
    s_add_u32 {dst}, {dst}, {6144*256}
    """)

def gemv_mfma(A, vaaddr, vb=52, va=24, vd=20, depth=7, nks=18, mid=None):
    depth = min(depth, nks)
    def rd(ks):
        A(f"ds_read_b128 {vr(va + (ks % depth)*4,4)}, {vaaddr} offset:{ks*64}")
    for ks in range(depth): rd(ks)
    for ks in range(nks):
        issued = min(nks, depth + ks)
        A(f"s_waitcnt lgkmcnt({issued - ks - 1})")
        c = "0" if ks == 0 else vr(vd, 4)
        A(f"v_mfma_f32_16x16x32_bf16 {vr(vd,4)}, {vr(va + (ks % depth)*4,4)}, {vr(vb+ks*4,4)}, {c}")
        if ks + depth < nks: rd(ks + depth)
        if mid and ks == mid[0]: A(mid[1])

def fold8(A, n, a, b, t, swapb=True):
    for i in range(1, n):
        A(f"v_add_f32 v{a}, v{a}, v{a+2*i}\nv_add_f32 v{b}, v{b}, v{b+2*i}")
    A(f"""
    s_nop 1
    v_permlane32_swap_b32 v{a}, v{b}
    v_add_f32 v{a}, v{a}, v{b}
    v_mov_b32 v{t}, v{a}
    s_nop 1
    v_permlane16_swap_b32 v{a}, v{t}
    v_add_f32 v{a}, v{a}, v{t}
    s_nop 1
    v_add_f32_dpp v{a}, v{a}, v{a} row_ror:8 {DPPM}
    """)

def build(stamps=False, nt="nt", adelay=True, dbg=0, w2first=0, qs=2, ps=2, pt=1, diag=0, ql=0, rgw=0, il=2, trig=1, pf=0, fgs=13, ordr=0, nb1=0, nb2=0, mlt=0, c3=1, hq=0, fl=0, ppt=0, probe=0, cfm=6, x4=1, me=0, tm=96, dq=0, dv=0, ds5=0, nr=8, qpt=0, qv=1, qlay=1, pc=0, fpos=0, hs=0, hp=2, xk=0, wm=0, at=0, an=2, ks=2):
    NJ = 18*ks; RW = 576//ks; JX = 4 if ks == 2 else 6
    CH, BL, SP = {0: (15, 13, 17), 1: (17, 15, 13), 2: (17, 13, 15)}[il]
    global SPIN, NLOC
    if diag: SPIN = 60; NLOC = 100
    A = G(stamps, nt)
    def vtail(n, level, w0):
        lab = A.label("VT")
        A(f"""
        s_sub_u32 s48, s3, {w0}
        s_cmp_ge_u32 s48, {n}
        s_cbranch_scc1 {lab}
        s_and_b32 s49, s48, 1
        s_lshl_b32 s50, s5, 1
        s_add_u32 s50, s50, s49
        """)
        kv_chunk_base(A, "s50", "s44", "s45", SP)
        A(f"""
        s_lshr_b32 s48, s48, 1
        s_sub_u32 s48, 3, s48
        s_lshl_b32 s48, s48, {BL}
        s_add_u32 s44, s44, s48
        s_add_u32 s44, s44, {level << CH}
        v_lshl_add_u32 v20, v1, 7, s44
        global_load_dword v125, v20, {sp(V_)}{A.nt}
        {lab}:
        """)
    NT = A.nt
    A.header(256, 1024, LDS_BYTES)
    A(f"""
    s_cmp_ge_u32 s2, 256
    s_cbranch_scc1 L_exit
    s_load_dwordx16 s[16:31], s[0:1], 0
    s_load_dwordx8 s[32:39], s[0:1], 64
    s_load_dwordx2 s[40:41], s[0:1], 96
    s_load_dwordx2 s[42:43], s[0:1], 112
    {'s_load_dwordx2 s[94:95], s[0:1], 104' if at else ''}
    v_lshrrev_b32 v2, 6, v0
    v_and_b32 v1, 63, v0
    s_and_b32 s4, s2, 7
    v_readfirstlane_b32 s3, v2
    s_lshr_b32 s5, s2, 3
    v_mov_b32 v3, 0
    """)
    if stamps:
        A("v_mov_b32 v127, 0\ns_memrealtime s[98:99]")
    A(f"""
    s_cmp_lg_u32 s5, 24
    s_cbranch_scc1 L_nopf
    s_getpc_b64 s[44:45]
    L_pfbase:
    s_sub_u32 s44, s44, L_pfbase-{NAME}_kernel
    s_subb_u32 s45, s45, 0
    v_lshlrev_b32 v4, 7, v0
    v_cmp_gt_u32 vcc, L_codeend-{NAME}_kernel, v4
    s_and_saveexec_b64 s[46:47], vcc
    s_cbranch_execz L_pfd
    global_load_dword v5, v4, s[44:45]
    L_pfd:
    s_mov_b64 exec, -1
    L_nopf:
    s_cmp_lt_u32 s5, 16
    s_cbranch_scc1 L_A
    {'s_branch L_exit' if diag & 32 else ''}
    s_sub_u32 s5, s5, 16                  ; u
    s_sub_u32 s55, s2, {25*8}
    s_min_u32 s47, s4, {JX}
    s_mul_i32 s48, s4, {JX}
    s_add_u32 s47, s47, s48
    s_add_u32 s47, s47, s5
    s_sub_u32 s47, s47, 9
    s_mul_i32 s48, s47, 0xe39
    s_lshr_b32 s48, s48, 16               ; ksp
    s_mul_i32 s49, s48, 18
    s_sub_u32 s49, s47, s49               ; cgp
    s_mul_i32 s50, s48, {RW*6912}
    s_lshl_b32 s51, s49, 7
    s_add_u32 s50, s50, s51               ; M offset
    s_lshl_b32 s51, s4, 3
    s_add_u32 s51, s51, s5                ; qb
    s_lshl_b32 s52, s51, 7                ; B offset
    v_lshrrev_b32 v4, 3, v1
    v_bfe_u32 v6, v1, 4, 2
    v_lshlrev_b32 v6, 1, v6
    v_and_b32 v7, 7, v1
    v_xor_b32 v6, v6, v7
    s_movk_i32 s53, 6912
    s_lshl_b32 s44, s4, 1
    s_add_u32 s44, s44, s5
    s_lshl_b32 s44, s44, 8
    s_sub_u32 s44, s44, {28*128 - 2304}
    s_sub_u32 s45, s5, 8
    s_cmp_ge_u32 s45, {6 if me else 99}   ; u < 8 or u >= 14
    s_cselect_b32 s54, 72, {RW//8}             ; count
    s_cselect_b32 s50, s44, s50
    s_cselect_b32 s56, 0, s55
    s_cmp_lt_u32 s5, 8
    s_cselect_b32 s50, s52, s50
    s_cselect_b32 s53, 8192, s53          ; stride
    s_mul_i32 s10, s53, 576
    s_cselect_b32 s47, s51, s47
    s_cselect_b32 s55, 0, s55
    v_mul_u32_u24 v14, s53, v4
    v_lshl_add_u32 v14, v6, 4, v14
    v_add_u32 v15, s50, v14
    s_mov_b32 s11, 0x20000
    s_lshl_b32 s53, s53, 3
    s_mul_i32 s44, s3, s53
    s_lshl_b32 s53, s53, 4
    s_lshl_b32 s45, s3, 10
    s_mov_b32 s46, s3
    s_cmp_lt_u32 s5, 8
    s_waitcnt lgkmcnt(0)
    s_cselect_b32 s8, s{WQ_}, s{WM_}
    s_cselect_b32 s9, s{WQ_+1}, s{WM_+1}
    s_and_b32 s9, s9, 0xffff
    s_cmp_ge_u32 s56, {NJ}
    s_cbranch_scc1 L_W_nodma
    L_W_dma:
    s_mov_b32 m0, s45
    s_add_u32 s45, s45, 16384
    buffer_load_dwordx4 v15, s[8:11], s44 offen{'' if wm & 1 else NT} lds
    s_add_u32 s44, s44, s53
    s_add_u32 s46, s46, 16
    s_cmp_lt_u32 s46, s54
    s_cbranch_scc1 L_W_dma
    L_W_nodma:
    s_load_dword s6, {sp(WS_)}, {WS_EPOCH}
    s_branch L_W
    """)
    A(f"""
    L_A:
    """)
    if ordr:
        t0_, t1_ = {1: (0xd8, 0xd8), 2: (0xe4, 0xd2), 3: (0xd8, 0xd2)}[ordr]
        A(f"""
        s_bitcmp1_b32 s5, 0
        s_movk_i32 s44, {t0_}
        s_cselect_b32 s44, {t1_}, s44
        s_lshr_b32 s45, s3, 2
        s_lshl_b32 s45, s45, 1
        s_lshr_b32 s44, s44, s45
        s_and_b32 s44, s44, 3
        s_and_b32 s3, s3, 3
        s_lshl_b32 s44, s44, 2
        s_or_b32 s3, s3, s44
        """)
    A(f"""
    v_mov_b32 v4, {AL}
    v_lshl_add_u32 v5, v1, 2, v4
    v_bfe_i32 v6, v1, 5, 1
    ds_write_b32 v5, v6 offset:{L_CNT}
    s_lshr_b32 s44, s5, 3
    s_lshl_b32 s45, s4, 1
    s_add_u32 s46, s45, s44            ; hkv
    s_bfe_u32 s47, s5, 0x10002          ; b
    s_and_b32 s48, s5, 3                ; sp
    s_lshl_b32 s49, s47, 4
    s_add_u32 s49, s49, s46             ; b*16+hkv
    s_lshl_b32 s49, s49, 21
    s_lshl_b32 s50, s48, {SP}
    s_add_u32 s49, s49, s50
    s_add_u32 s49, s49, {6144*256}
    s_bfe_u32 s51, s3, 0x10002            ; g
    s_and_b32 s44, s3, 3
    s_lshl_b32 s50, s51, {CH+1}
    s_add_u32 s49, s49, s50
    s_lshl_b32 s50, s44, {BL}
    s_add_u32 s49, s49, s50
    s_lshl_b32 s45, s51, 3
    s_add_u32 s48, s44, s45
    v_and_b32 v9, 3, v1
    v_mov_b32 v7, 1
    s_cmp_ge_u32 s3, 8
    s_cbranch_scc1 L_AV
    s_add_u32 s49, s49, 4096
    v_bfe_u32 v5, v1, 2, 2
    v_lshlrev_b32 v5, 8, v5
    v_and_b32 v6, 48, v1
    v_lshl_or_b32 v5, v6, 2, v5
    v_lshl_or_b32 v5, v9, 4, v5
    s_waitcnt lgkmcnt(0)
    s_load_dword s6, {sp(WS_)}, {WS_EPOCH}
    s_add_u32 s52, s{K_}, s49
    s_addc_u32 s53, s{K_+1}, 0
    s_add_u32 s54, s52, {1 << CH}
    s_addc_u32 s55, s53, 0
    """)
    if adelay: A("s_waitcnt lgkmcnt(0)")
    A("s_barrier")
    if xk:
        A("s_sub_u32 s58, s52, 0x80000\ns_subb_u32 s59, s53, 0\ns_sub_u32 s60, s54, 0x80000\ns_subb_u32 s61, s55, 0")
        for t in range(16):
            A(f"global_load_dwordx4 {vr(32+4*t,4)}, v5, s[{58+2*(t>>3)}:{59+2*(t>>3)}] offset:{(t&7)*1024-4096}{NT}")
    for t in range(16):
        A(f"global_load_dwordx4 {vr(32+4*t,4)}, v5, s[{52+2*(t>>3)}:{53+2*(t>>3)}] offset:{(t&7)*1024-4096}{NT}")
    if stamps: A("s_waitcnt lgkmcnt(0)\nv_writelane_b32 v127, s98, 0")
    A.stamp(1)
    A(f"""
    v_bfe_u32 v8, v1, 2, 1
    v_lshlrev_b32 v8, 8, v8
    v_lshl_or_b32 v8, v6, 2, v8
    v_lshl_or_b32 v8, v9, 4, v8
    v_add_u32 v8, v4, v8
    v_bfe_u32 v11, v1, 4, 1
    v_mul_u32_u24 v10, {PSTR}, v11
    v_and_b32 v12, 1, v1
    v_lshl_add_u32 v10, v12, 5, v10
    v_lshrrev_b32 v13, 5, v1
    v_lshl_add_u32 v10, v13, 4, v10
    v_bfe_u32 v13, v1, 1, 1
    v_lshl_add_u32 v10, v13, 3, v10
    v_bfe_u32 v13, v1, 2, 2
    v_lshl_add_u32 v10, v13, 1, v10
    s_lshl_b32 s44, s48, 6
    s_add_u32 s44, s44, {AL + L_P}
    v_add_u32 v10, s44, v10
    v_mul_u32_u24 v12, {PSTR}, v12
    v_add3_u32 v12, v12, v6, v4
    v_lshl_add_u32 v11, v11, 5, v4
    v_and_b32 v13, 31, v1
    v_lshl_add_u32 v13, v13, 2, v4
    s_lshl_b32 s44, s3, 2
    v_add_u32 v11, s44, v11
    v_bfe_u32 v17, v1, 4, 1
    v_lshl_add_u32 v17, v17, 5, v11
    v_and_b32 v18, 32, v1
    v_add_u32 v17, v17, v18
    v_bfe_u32 v14, v1, 2, 3
    v_xor_b32 v14, s3, v14
    v_lshlrev_b32 v14, 5, v14
    v_lshrrev_b32 v15, 2, v1
    v_lshl_or_b32 v14, v15, 8, v14
    v_lshl_or_b32 v14, v9, 3, v14
    v_add_u32 v15, {12*8192}, v14
    v_and_b32 v14, 15, v1
    v_lshl_add_u32 v14, v14, 3, v4
    s_lshl_b32 s44, s3, 7
    v_add_u32 v14, s44, v14
    s_mov_b32 s58, 0x22222222
    s_mov_b32 s59, 0x22222222
    s_mov_b32 s60, 0x44444444
    s_mov_b32 s61, 0x44444444
    s_mov_b32 s62, 0x88888888
    s_mov_b32 s63, 0x88888888
    s_lshl_b32 s44, s47, 14
    s_lshl_b32 s45, s46, 10
    s_add_u32 s44, s44, s45
    s_lshl_b32 s45, s3, 7
    s_add_u32 s44, s44, s45
    s_add_u32 s44, s44, {WS_QG}
    s_add_u32 s56, s{WS_}, s44
    s_addc_u32 s57, s{WS_+1}, 0
    s_lshl_b32 s50, s4, 4
    s_add_u32 s50, s50, s5
    s_lshl_b32 s50, s50, 10
    s_add_u32 s50, s50, s45
    s_add_u32 s50, s50, {WS_OG}
    v_lshl_add_u32 v6, v1, 3, s50
    s_waitcnt lgkmcnt(0)
    """)
    A.mktag()
    A(f"""
    """)
    if qlay:
        A(f"""
        s_sub_u32 s44, s44, {WS_QG}
        s_lshl_b32 s44, s44, 3
        s_add_u32 s44, s44, {WS_QL}
        s_add_u32 s52, s{WS_}, s44
        s_addc_u32 s53, s{WS_+1}, 0
        """)
    else:
        A(f"s_add_u32 s52, s56, {WS_QL - WS_QG}\ns_addc_u32 s53, s57, 0")
    A(f"""
    s_waitcnt vmcnt(0)
    """)
    if qv:
        A.lds_inc(L_CNT+12, "v4", "v7")
        A.lds_spin(L_CNT+12, 8, "v16", "v4")
    A(f"""
    s_mov_b32 s7, {0 if ql else nr}
    L_A_qpoll:
    s_add_u32 s7, s7, 1
    s_cmp_gt_u32 s7, {SPIN}
    s_cbranch_scc1 L_end
    s_cmp_gt_u32 s7, {nr}
    s_cbranch_scc1 L_A_qg
    s_load_dwordx16 s[64:79], s[52:53], 0
    s_load_dwordx16 s[80:95], s[52:53], 64
    s_add_u32 s52, s52, {128 if qlay else 32768}
    s_addc_u32 s53, s53, 0
    s_branch L_A_qc
    L_A_qr:
    s_sleep {qs}
    s_branch L_A_qpoll
    L_A_qg:
    s_load_dwordx16 s[64:79], s[56:57], 0 glc
    s_load_dwordx16 s[80:95], s[56:57], 64 glc
    L_A_qc:
    s_waitcnt lgkmcnt(0)
    """)
    for i in range(16):
        A(f"s_cmp_lg_u32 s{65+2*i}, {TAG}\ns_cbranch_scc1 L_A_qr")
    A("s_mov_b64 exec, 1")
    for i in range(16):
        A(f"v_mov_b32 v{96+i}, s{64+2*i}")
    A(f"s_lshl_b32 s44, s3, 6\nv_add_u32 v20, s44, v4")
    for i in range(4):
        A(f"ds_write_b128 v20, {vr(96+4*i,4)} offset:{L_Q+16*i}")
    A(f"""
    ds_add_u32 v4, v7 offset:{L_CNT}
    s_mov_b64 exec, -1
    s_mov_b32 s56, 0xff00ff00
    s_mov_b32 s57, 0xff00ff00
    """)
    A.lds_spin(L_CNT, 8, "v16", "v4", sleep=False)
    A.stamp(2)
    A(f"ds_read_b128 v[20:23], v8 offset:{L_Q}\ns_waitcnt lgkmcnt(0)")
    for i in range(4):
        A(f"v_cndmask_b32 v{24+i}, 0, v{20+i}, s[56:57]")
        A(f"v_cndmask_b32 v{20+i}, v{20+i}, 0, s[56:57]")
    A("s_waitcnt vmcnt(0)\ns_nop 0")
    D = [96, 32]
    def qk(z, i):
        u = i & 3
        if i < 4: A(f"v_mfma_f32_16x16x32_bf16 {vr(D[z]+4*u,4)}, v[20:23], {vr(32+32*z+8*u,4)}, 0")
        else: A(f"v_mfma_f32_16x16x32_bf16 {vr(D[z]+4*u,4)}, v[24:27], {vr(36+32*z+8*u,4)}, {vr(D[z]+4*u,4)}")
    def red(z, u):
        t = 112 + 4*z
        A(f"v_mov_b32_dpp v{t+u}, v{D[z]+4*u} quad_perm:[0,0,0,0] {DPPM}")
        for c in range(1, 4):
            A(f"v_add_f32_dpp v{t+u}, v{D[z]+4*u+c}, v{t+u} quad_perm:[{c},{c},{c},{c}] {DPPM}")
    for i in range(8): qk(0, i)
    for i in range(5): qk(1, i)
    for u in range(3):
        red(0, u); qk(1, 5+u)
    red(0, 3)
    for k, m in ((1, 58), (2, 60), (3, 62)):
        A(f"v_cndmask_b32 v112, v112, v{112+k}, s[{m}:{m+1}]")
    for u in range(4): red(1, u)
    A.stamp(3)
    for k, m in ((1, 58), (2, 60), (3, 62)):
        A(f"v_cndmask_b32 v116, v116, v{116+k}, s[{m}:{m+1}]")
    A.r1("v112", "v116")
    A("v_mul_f32 v112, 0x3db504f3, v112\nv_mul_f32 v116, 0x3db504f3, v116")
    A.r1("v112", "v116")
    A("v_max_f32 v113, v112, v116")
    A.row_reduce("v_max_f32", ["v113"])
    A(f"""
    s_mov_b32 exec_lo, 0x10001
    s_mov_b32 exec_hi, 0x10001
    ds_write_b32 v17, v113 offset:{L_MX}
    s_mov_b64 exec, -1
    ds_read_b32 v118, v4 offset:{L_CNT+28}
    v_mul_f32 v112, {hex(LOG2E)}, v112
    v_mul_f32 v116, {hex(LOG2E)}, v116
    s_mov_b32 s45, {hex(LOG2E)}
    """)
    A.spin_head("L_A_mx")
    A(f"""
    ds_read_b32 v113, v13 offset:{L_MX}
    s_waitcnt lgkmcnt(0)
    v_cmp_eq_u32 vcc, -1, v113
    s_cbranch_vccnz L_A_mx
    v_readfirstlane_b32 s67, v118
    """)
    A.row_reduce("v_max_f32", ["v113"])
    A(f"""
    v_fma_f32 v112, -v113, s45, v112
    v_fma_f32 v116, -v113, s45, v116
    v_exp_f32 v112, v112
    v_exp_f32 v116, v116
    s_nop 0
    v_cvt_pk_bf16_f32 v115, v112, v116
    ds_write_b16 v10, v115
    ds_write_b16_d16_hi v10, v115 offset:256
    v_add_f32 v112, v112, v116
    """)
    A.row_reduce("v_add_f32", ["v112"])
    A(f"""
    s_mov_b32 exec_lo, 0x10001
    s_mov_b32 exec_hi, 0x10001
    ds_write_b32 v17, v112 offset:{L_LS}
    s_mov_b64 exec, 1
    ds_add_u32 v4, v7 offset:{L_CNT+8}
    s_mov_b64 exec, -1
    v_mov_b32 v20, v113
    """)
    def vreads3():
        for k in range(4):
            for half in range(2):
                A(f"ds_read_b64_tr_b16 {vr(32+4*k+2*half,2)}, v15 offset:{k*8192 + half*4096}")
    A("s_cmp_lt_u32 s67, 4\ns_cbranch_scc1 L_A_np")
    vreads3()
    A("L_A_np:")
    A.lds_spin(L_CNT+8, 8, "v16", "v4", sleep=False)
    A.stamp(4)
    for k in range(4):
        A(f"ds_read_b128 {vr(64+4*k,4)}, v12 offset:{L_P + (12+k)*64}")
    A(f"""
    s_cmp_lg_u32 s3, 0
    s_cbranch_scc1 L_A_nml
    ds_read_b32 v21, v13 offset:{L_LS}
    s_lshl_b32 s50, s4, 4
    s_add_u32 s50, s50, s5
    s_lshl_b32 s50, s50, 7
    s_add_u32 s50, s50, {WS_MLG}
    v_mov_b32 v24, s50
    v_mov_b32 v22, v20
    s_waitcnt lgkmcnt(0)
    """)
    A.row_reduce("v_add_f32", ["v21"])
    A("""
    v_mov_b32 v23, v21
    v_permlane16_swap_b32 v20, v22
    s_nop 0
    v_permlane16_swap_b32 v21, v23
    """)
    for r in range(20, 24): A.epack(f"v{r}", f"v{r}")
    A("s_mov_b64 exec, 1")
    A.dual_store("global_store_dwordx4", "v24", "v[20:23]")
    A("s_mov_b64 exec, -1")
    A.stamp(7)
    A("L_A_nml:")
    def vm(k, wait):
        A(f"s_waitcnt lgkmcnt({wait})")
        A(f"v_mfma_f32_16x16x32_bf16 v[112:115], {vr(64+4*k,4)}, {vr(32+4*k,4)}, {'0' if k == 0 else 'v[112:115]'}")
    def pd():
        A.lds_spin(L_CNT+32, 4, "v120", "v4", sleep=False)
        A(f"ds_read_b64 v[118:119], v14 offset:{L_PD}")
    A("s_cmp_lt_u32 s67, 4\ns_cbranch_scc1 L_A_slow")
    for k in range(4): vm(k, 3-k)
    A("L_A_pd:")
    pd()
    A("s_waitcnt lgkmcnt(0)\ns_branch L_A_fin\nL_A_slow:")
    A.spin_head("L_A_w")
    A(f"""
    ds_read2_b32 v[120:121], v4 offset0:{(L_CNT+28)//4} offset1:{(L_CNT+32)//4}
    s_waitcnt lgkmcnt(0)
    v_readfirstlane_b32 s44, v120
    v_readfirstlane_b32 s45, v121
    s_cmp_ge_u32 s45, 4
    s_cbranch_scc1 L_A_y
    s_cmp_lt_u32 s44, 4
    s_cbranch_scc1 L_A_w
    """)
    vreads3()
    for k in range(4): vm(k, 6-2*k)
    A(f"s_branch L_A_pd\nL_A_y:\nds_read_b64 v[118:119], v14 offset:{L_PD}\ns_cmp_ge_u32 s44, 4\ns_cbranch_scc1 L_A_y2")
    A.lds_spin(L_CNT+28, 4, "v120", "v4", sleep=False)
    A("L_A_y2:")
    vreads3()
    for k in range(4): vm(k, 6-2*k)
    A("s_nop 6\nL_A_fin:\ns_mov_b64 exec, 0xffff\nv_add_f32 v112, v112, v118\nv_add_f32 v113, v113, v119")
    A.epack("v116", "v112"); A.epack("v117", "v113")
    A.dual_store("global_store_dwordx2", "v6", "v[116:117]")
    A("s_mov_b64 exec, -1")
    A.stamp(6)
    A("s_branch L_end")
    A(f"""
    L_AV:
    s_lshl_b32 s45, s48, 13
    s_mov_b32 s44, s49                    ; soffset
    v_lshrrev_b32 v5, 4, v1
    v_lshlrev_b32 v6, 1, v5
    v_and_b32 v8, 15, v1
    v_xor_b32 v6, v6, v8
    v_lshlrev_b32 v6, 4, v6
    v_lshl_or_b32 v5, v5, 8, v6
    v_xor_b32 v6, 128, v5
    s_waitcnt lgkmcnt(0)
    s_load_dword s6, {sp(WS_)}, {WS_EPOCH}
    """)
    A.srd(8, V_, 0x4000000)
    A("s_barrier")
    for hf in range(2):
        for q4 in range(2):
            A("s_mov_b32 m0, s45\ns_nop 0")
            for n in range(4):
                A(f"buffer_load_dwordx4 {'v6' if n & 1 else 'v5'}, s[8:11], s44 offen offset:{n*1024}{NT} lds")
            if q4 == 0: A("s_add_u32 s45, s45, 4096\ns_add_u32 s44, s44, 4096")
            elif hf == 0: A(f"s_add_u32 s45, s45, {4*8192 - 4096}\ns_add_u32 s44, s44, {(1 << CH) - 4096}")
    if stamps: A("s_waitcnt lgkmcnt(0)\nv_writelane_b32 v127, s98, 0")
    A.stamp(1)
    if pf:
        A(f"""
        s_cmp_lt_u32 s3, 11
        s_cbranch_scc1 L_AV_np
        s_mul_i32 s45, s5, 5
        s_add_u32 s45, s45, s3
        s_lshl_b32 s50, s45, 6
        s_sub_u32 s50, s50, {10*64}
        s_lshl_b32 s44, s51, 3
        v_add_u32 v5, s44, v4
        v_add_u32 v20, s50, v1
        v_mul_u32_u24 v21, 0x1c72, v20
        v_lshrrev_b32 v21, 16, v21
        v_mul_u32_u24 v22, 9, v21
        v_sub_u32 v22, v20, v22
        v_mul_u32_u24 v21, 9216, v21
        v_lshl_add_u32 v21, v22, 7, v21
        s_mul_i32 s50, s4, 1152
        v_add_u32 v21, s50, v21
        global_load_dword v29, v21, {sp(W1_)}{NT}
        s_mov_b64 exec, 1
        s_waitcnt vmcnt(9)
        ds_add_u32 v5, v7 offset:{L_CNT+16}
        s_waitcnt vmcnt(1)
        ds_add_u32 v5, v7 offset:{L_CNT+20}
        s_mov_b64 exec, -1
        """)
        A.stamp(5)
        A("s_waitcnt vmcnt(0) lgkmcnt(0)\ns_branch L_end\nL_AV_np:")
    if at == 3: A("""
        s_and_b32 s44, s5, 3
        s_cmp_lg_u32 s44, 0
        s_cbranch_scc1 L_AV_ns
        s_cmp_lg_u32 s3, 12
        s_cbranch_scc1 L_AV_ns
        s_lshl_b32 s44, s4, 5
        s_add_u32 s94, s94, s44
        s_addc_u32 s95, s95, 0
        s_mov_b32 s44, 1
        s_atomic_add s44, s[94:95], 0
        L_AV_ns:
        """)
    A(f"""
    s_lshl_b32 s44, s51, 3
    v_add_u32 v5, s44, v4
    s_mov_b64 exec, 1
    s_waitcnt vmcnt(8)
    ds_add_u32 v5, v7 offset:{L_CNT+16}
    """)
    if at == 1: A("""
        s_and_b32 s44, s5, 3
        s_cmp_lg_u32 s44, 0
        s_cbranch_scc1 L_AV_ns
        s_cmp_lg_u32 s3, 8
        s_cbranch_scc1 L_AV_ns
        s_lshl_b32 s44, s4, 5
        s_add_u32 s94, s94, s44
        s_addc_u32 s95, s95, 0
        s_mov_b32 s44, 1
        s_atomic_add s44, s[94:95], 0
        L_AV_ns:
        """)
    A(f"""
    s_waitcnt vmcnt(0)
    {f's_sleep {dv}' if dv else ''}
    ds_add_u32 v5, v7 offset:{L_CNT+20}
    s_mov_b64 exec, -1
    """)
    if at == 2: A("""
        s_and_b32 s44, s5, 3
        s_cmp_lg_u32 s44, 0
        s_cbranch_scc1 L_AV_ns
        s_cmp_lg_u32 s3, 8
        s_cbranch_scc1 L_AV_ns
        s_lshl_b32 s44, s4, 5
        s_add_u32 s94, s94, s44
        s_addc_u32 s95, s95, 0
        s_mov_b32 s44, 1
        s_atomic_add s44, s[94:95], 0
        L_AV_ns:
        """)
    A.stamp(5)
    A(f"""
    s_waitcnt lgkmcnt(0)
    s_cmp_ge_u32 s3, 12
    s_cbranch_scc1 L_end
    s_and_b32 s45, s3, 3
    s_lshl_b32 s45, s45, 1
    v_bfe_u32 v5, v1, 2, 3
    v_xor_b32 v5, s45, v5
    v_lshlrev_b32 v5, 5, v5
    v_lshrrev_b32 v6, 2, v1
    v_lshl_or_b32 v5, v6, 8, v5
    v_lshl_or_b32 v5, v9, 3, v5
    v_xor_b32 v6, 32, v5
    v_and_b32 v3, 1, v1
    v_mul_u32_u24 v3, {PSTR}, v3
    v_and_b32 v2, 48, v1
    v_add3_u32 v3, v3, v2, v4
    v_lshl_add_u32 v2, v8, 3, v4
    s_lshl_b32 s45, s45, 7
    v_add_u32 v2, s45, v2
    """)
    def B(t, ks): return 16 + 8*ks + 4*t
    def tr(ks0, ks1):
        for ks in range(ks0, ks1):
            for t in range(2):
                for half in range(2):
                    A(f"ds_read_b64_tr_b16 {vr(B(t,ks)+2*half,2)}, v{5+t} offset:{(ks&7)*8192 + half*4096}")
    def chain(ks0, ks1):
        n = ks1 - ks0
        free = [112, 116, 120]; loc = {}; issued = 0
        def issue():
            nonlocal issued
            while free and issued < n:
                loc[issued] = free.pop(0)
                A(f"ds_read_b128 {vr(loc[issued],4)}, v3 offset:{L_P + (ks0+issued)*64}")
                issued += 1
        issue()
        for i in range(n):
            ks = ks0 + i
            A(f"s_waitcnt lgkmcnt({issued - i - 1})")
            for t in range(2):
                A(f"v_mfma_f32_16x16x32_bf16 {vr(8+4*t,4)}, {vr(loc[i],4)}, {vr(B(t,ks),4)}, {'0' if ks == 0 else vr(8+4*t,4)}")
            free += [B(0, ks), loc[i], B(1, ks)]
            issue()
    A.lds_spin(L_CNT+20, 4, "v124", "v4")
    tr(0, 8)
    A("v_add_u32 v5, 0x10000, v5\nv_add_u32 v6, 0x10000, v6")
    A.spin_head("L_AV_w")
    A(f"""
    ds_read2_b32 v[124:125], v4 offset0:{(L_CNT+8)//4} offset1:{(L_CNT+24)//4}
    s_waitcnt lgkmcnt(0)
    v_readfirstlane_b32 s44, v125
    v_readfirstlane_b32 s45, v124
    s_cmp_ge_u32 s44, 4
    s_cbranch_scc1 L_AV_x
    s_cmp_lt_u32 s45, 8
    s_cbranch_scc1 L_AV_w
    """)
    chain(0, 8)
    A.lds_spin(L_CNT+24, 4, "v124", "v4", sleep=False)
    tr(8, 12)
    chain(8, 12)
    A("s_branch L_AV_f\nL_AV_x:")
    tr(8, 12)
    A.lds_spin(L_CNT+8, 8, "v124", "v4", sleep=False)
    chain(0, 12)
    A(f"""
    L_AV_f:
    s_mov_b64 exec, 0xffff
    s_nop 6
    ds_write_b64 v2, v[8:9] offset:{L_PD}
    ds_write_b64 v2, v[12:13] offset:{L_PD+128}
    s_mov_b64 exec, 1
    ds_add_u32 v4, v7 offset:{L_CNT+32}
    s_mov_b64 exec, -1
    s_waitcnt lgkmcnt(0)
    """)
    A.stamp(8)
    A("s_branch L_end")

    A("L_W:")
    if stamps: A("v_writelane_b32 v127, s98, 0")
    A.stamp(1)
    A(f"""
    v_mov_b32 v18, {L_WCNT}
    ds_write2_b32 v18, v3, v3 offset1:1
    ds_write_b32 v18, v3 offset:8
    v_lshrrev_b32 v8, 5, v0
    v_lshlrev_b32 v8, 6, v8
    v_bfe_u32 v9, v0, 2, 2
    v_lshl_or_b32 v8, v9, 4, v8
    v_bfe_u32 v9, v0, 4, 1
    v_lshl_or_b32 v8, v9, 3, v8
    v_and_b32 v9, 3, v0
    v_lshl_or_b32 v8, v9, 1, v8
    v_add_u32 v8, {L_ACT}, v8
    s_and_b32 s46, s3, 3
    v_bfe_u32 v10, v1, 3, 2
    v_xor_b32 v10, s46, v10
    v_lshlrev_b32 v10, 5, v10
    v_lshrrev_b32 v11, 2, v1
    v_lshl_or_b32 v10, v11, 7, v10
    v_lshl_or_b32 v10, v9, 3, v10
    v_and_b32 v11, 48, v1
    v_add_u32 v11, {L_ACT}, v11
    v_and_b32 v12, 1, v1
    v_mul_u32_u24 v12, {4*ASTR}, v12
    v_add_u32 v12, v11, v12
    v_and_b32 v13, 4, v1
    v_mul_u32_u24 v13, {ASTR}, v13
    v_add_u32 v13, v11, v13
    v_mov_b32 v17, 1
    s_cmp_eq_u32 s5, 8
    s_cbranch_scc1 L_KT
    s_cbranch_scc0 L_Wd
    L_Wd:
    s_cmp_gt_u32 s5, 8
    s_cbranch_scc1 L_M
    s_waitcnt lgkmcnt(0)
    """)
    A.mktag()
    A(f"""
    s_barrier
    {'s_waitcnt vmcnt(0)' + chr(10) + 's_branch L_end' if diag & 4 else ''}
    s_cmp_ge_u32 s3, 9
    s_cbranch_scc1 L_B_nh
    s_mul_i32 s44, s4, 4608
    s_add_u32 s44, s44, {WS_HL}
    v_lshl_add_u32 v15, v0, 3, s44
    global_load_dwordx2 v[24:25], v15, {sp(WS_)} sc1
    s_waitcnt vmcnt(0)
    """)
    A.lds_inc(0, "v18", "v17")
    A.stamp(2)
    if nb1: vtail(nb1, 2, 0)
    A("s_mov_b32 s7, 0\ns_branch L_B_chk")
    A.dual_head("L_B_h", ["v15"], init=False)
    A(f"s_sleep {ps}")
    A(f"global_load_dwordx2 v[24:25], v15, {sp(WS_)} sc1\ns_waitcnt vmcnt(0)\nL_B_chk:")
    A.tagcheck(["v25"], None, None, "L_B_h")
    A(f"""
    ds_write_b16 v8, v24
    ds_write_b16_d16_hi v8, v24 offset:{4*ASTR}
    s_waitcnt lgkmcnt(0)
    """)
    A.stamp(3)
    A(f"""
    s_barrier
    s_branch L_S5
    L_B_nh:
    """)
    if ql and qpt:
        A(f"""
        s_cmp_lg_u32 s3, 9
        s_cbranch_scc1 L_B_npt
        v_bfe_u32 v15, v1, 4, 1
        v_lshlrev_b32 v15, 17, v15            ; b*16384*8
        v_and_b32 v16, 15, v1
        v_lshl_or_b32 v15, v16, 7, v15
        s_lshl_b32 s44, s47, 11
        s_add_u32 s44, s44, {WS_QL}
        v_add_u32 v15, s44, v15
        global_load_dword v16, v15, {sp(WS_)}{' nt' if qpt == 2 else ' sc1'}
        L_B_npt:
        """)
    A("s_waitcnt vmcnt(0)")
    A.lds_inc(0, "v18", "v17")
    A(f"""
    s_cmp_ge_u32 s3, 12
    s_cbranch_scc1 L_B_m
    s_waitcnt lgkmcnt(0)
    s_barrier
    s_branch L_S5
    L_B_m:
    """)
    A.lds_spin(0, 16, "v16", "v18")
    A.stamp(2)
    A("v_mov_b32 v15, v10")
    bfrags(A, "v15")
    A(f"""
    s_lshl_b32 s44, s47, 8
    s_lshl_b32 s45, s46, 6
    s_add_u32 s44, s44, s45
    s_add_u32 s44, s44, {WS_QG}
    v_and_b32 v15, 15, v1
    v_lshlrev_b32 v15, 2, v15
    v_bfe_u32 v16, v1, 4, 1
    v_lshl_or_b32 v15, v16, 14, v15
    v_add_u32 v15, s44, v15
    """)
    if qlay:
        A(f"""
        v_subrev_u32 v16, {WS_QG}, v15
        v_and_b32 v17, 0x78, v16
        v_and_b32 v16, 0xffffff80, v16
        v_lshl_or_b32 v16, v16, 3, v17
        v_and_b32 v17, 1, v1
        v_lshl_add_u32 v16, v17, 7, v16
        v_lshrrev_b32 v17, 5, v1
        v_lshl_add_u32 v16, v17, 8, v16
        v_add_u32 v16, {WS_QL}, v16
        """)
    else:
        A(f"""
    v_and_b32 v16, -8, v15
    v_and_b32 v17, 1, v1
    v_lshl_add_u32 v16, v17, 15, v16
    v_lshrrev_b32 v17, 5, v1
    v_lshl_add_u32 v16, v17, 16, v16
    v_add_u32 v16, {WS_QL - WS_QG}, v16
""")
    A(f"""
    s_waitcnt lgkmcnt(0)
    s_barrier
    """)
    gemv_mfma(A, "v13")
    A(f"""
    s_nop 7
    v_mov_b32_dpp v21, v20 quad_perm:[1,1,3,3] {DPPM}
    v_mov_b32_dpp v20, v20 quad_perm:[0,0,2,2] {DPPM}
    v_mov_b32 v23, {TAG}
    v_cvt_pk_bf16_f32 v22, v20, v21
    """)
    if ql:
        for i in range(nr//4):
            A(f"global_store_dwordx2 v16, v[22:23], {sp(WS_)}")
            if i < nr//4 - 1: A(f"v_add_u32 v16, {512 if qlay else 4*32768}, v16")
    A(f"""
    s_mov_b32 exec_lo, 0x55555555
    s_mov_b32 exec_hi, 0
    global_store_dwordx2 v15, v[22:23], {sp(WS_)} sc1
    s_mov_b64 exec, -1
    """)
    A.stamp(4)
    A("s_branch L_S5")

    A(f"""
    L_M:
    """)
    if me:
        A(f"s_cmp_lt_u32 s5, 14\ns_cbranch_scc1 L_M_n2\nv_add_u32 v16, 128, v15\ns_barrier")
        dma_tile(A, 8, "v16", 6912, L_BUF1, 72)
        A("s_barrier\nL_M_n2:")
    A(f"""
    s_cmp_ge_u32 s3, 9
    s_cbranch_scc1 L_M_bar0
    v_lshlrev_b32 v15, 1, v0
    global_load_ushort v16, v15, {sp(C_)}
    global_load_ushort v17, v15, {sp(C_)} offset:1152
    s_waitcnt vmcnt(0)
    v_lshlrev_b32 v16, 16, v16
    v_lshlrev_b32 v17, 16, v17
    v_mul_f32 v34, 0xbfb8aa3b, v16
    v_mul_f32 v35, 0xbfb8aa3b, v17
    v_exp_f32 v34, v34
    v_exp_f32 v35, v35
    s_nop 0
    v_add_f32 v34, 1.0, v34
    v_add_f32 v35, 1.0, v35
    v_rcp_f32 v34, v34
    v_rcp_f32 v35, v35
    s_nop 0
    v_mul_f32 v16, v16, v34
    v_mul_f32 v17, v17, v35
    v_cvt_pk_bf16_f32 v16, v16, v17
    ds_write_b16 v8, v16
    ds_write_b16_d16_hi v8, v16 offset:{4*ASTR}
    L_M_bar0:
    s_mul_i32 s44, s48, {RW*2}
    v_add_u32 v15, s44, v12
    s_mul_i32 s44, s48, {AGS}
    s_lshl_b32 s45, s49, 9
    s_add_u32 s44, s44, s45
    s_lshl_b32 s45, s46, 7
    s_add_u32 s44, s44, s45
    s_add_u32 s44, s44, {WS_AG}
    v_lshl_add_u32 v18, v1, {4 if x4 else 3}, s44
    s_waitcnt vmcnt(0) lgkmcnt(0)
    L_M_skip:
    """)
    A.mktag()
    A("s_barrier")
    A.stamp(2)
    A(f"s_cmp_lt_u32 s3, 12\ns_cbranch_scc1 L_M_bar1\ns_cmp_ge_u32 s55, {NJ}\ns_cbranch_scc1 L_M_bar1")
    bfrags(A, "v10", 52, RW//32)
    gemv_mfma(A, "v15", nks=RW//32)
    A("s_mov_b64 exec, 0xffff\ns_nop 6\nv_add_u32 v20, 4, v20\nv_add_u32 v21, 4, v21")
    A.epack("v22", "v20", 7); A.epack("v23", "v21", 7)
    if x4:
        A(f"s_nop 0\nv_mov_b32_dpp v24, v22 row_ror:8 {DPPM}\nv_mov_b32_dpp v25, v23 row_ror:8 {DPPM}\ns_mov_b64 exec, 0xff")
        A(f"global_store_dwordx4 v18, v[22:25], {sp(WS_)} sc1\ns_mov_b64 exec, -1")
    else:
        A(f"global_store_dwordx2 v18, v[22:23], {sp(WS_)} sc1\ns_mov_b64 exec, -1")
    A.stamp(3)
    A(f"""
    L_M_bar1:
    s_sub_u32 s44, s5, 9
    s_lshl_b32 s50, s44, 1                ; slot0 = 2(u-9)
    s_add_u32 s51, s50, 1
    s_add_u32 s45, s4, 44
    s_cmp_ge_u32 s4, 4
    s_cselect_b32 s45, s45, 255
    s_cmp_eq_u32 s5, 13
    s_cselect_b32 s51, s45, s51
    s_lshl_b32 s44, s4, 1
    s_add_u32 s44, s44, s5
    s_lshl_b32 s44, s44, 1
    s_sub_u32 s44, s44, {28 - 16}
    s_add_u32 s45, s44, 1
    s_cmp_ge_u32 s5, 14
    s_cselect_b32 s50, s44, s50
    s_cselect_b32 s51, s45, s51
    v_mul_u32_u24 v19, 1152, v4
    v_lshl_add_u32 v19, v6, 4, v19
    s_mul_i32 s44, s4, {512*1152}
    v_add_u32 v19, s44, v19
    """)
    A.srd(12, WO_, 4096*1152)
    A("s_barrier")
    if pt:
        A(f"""
        s_cmp_ge_u32 s3, 3
        s_cbranch_scc1 L_M_pt
        s_cmp_lg_u32 s5, 13
        s_cbranch_scc1 L_M_pt
        s_lshl_b32 s44, s4, 14
        s_lshl_b32 s45, s3, 13
        s_add_u32 s44, s44, s45
        s_add_u32 s44, s44, {WS_OG}
        s_lshl_b32 s45, s4, 11
        s_add_u32 s45, s45, {WS_MLG}
        s_cmp_eq_u32 s3, 2
        s_cselect_b32 s44, s45, s44
        s_cselect_b32 s45, 15, 63
        v_and_b32 v16, s45, v1
        v_lshl_add_u32 v16, v16, 7, s44
        global_load_dword v20, v16, {sp(WS_)} sc1
        L_M_pt:
        """)
    if me: A("s_cmp_ge_u32 s5, 14\ns_cbranch_scc1 L_sl1_d")
    for sl, (reg, buf) in enumerate((("s50", L_BUF0), ("s51", L_BUF1))):
        A(f"""
        s_lshl_b32 s52, {reg}, 7
        s_cmp_ge_u32 {reg}, 16
        s_cbranch_scc1 L_sl{sl}_m
        v_add_u32 v16, s52, v19
        """)
        dma_tile(A, 12, "v16", 1152, buf, 64, '' if wm & 2 else NT)
        A(f"""
        s_branch L_sl{sl}_d
        L_sl{sl}_m:
        s_cmp_eq_u32 {reg}, 255
        s_cbranch_scc1 L_sl{sl}_d
        s_add_u32 s52, s52, {2304 - 16*128}
        v_add_u32 v16, s52, v14
        """)
        dma_tile(A, 8, "v16", 6912, buf, 72, '' if wm & 2 else NT)
        A(f"L_sl{sl}_d:")
    A("s_waitcnt vmcnt(0)\ns_barrier")
    A.stamp(4)
    if diag & 8: A("s_branch L_end")
    A(f"""
    s_cmp_lt_u32 s3, 8
    s_cbranch_scc1 L_H_p
    s_cmp_ge_u32 s3, 12
    s_cselect_b32 s50, s51, s50
    s_cselect_b32 s44, {L_BUF1}, 0
    v_add_u32 v17, s44, v10
    s_cmp_lt_u32 s50, 16
    s_cbranch_scc1 L_A_s4m
    s_cmp_eq_u32 s50, 255
    s_cbranch_scc1 L_H_x
    s_lshl_b32 s44, s50, 9
    s_lshl_b32 s45, s46, 7
    s_add_u32 s44, s44, s45
    s_add_u32 s44, s44, {WS_MG - 16*512}
    v_lshl_add_u32 v18, v1, 3, s44
    """)
    bfrags(A, "v17")
    gemv_mfma(A, "v12")
    A(f"""
    s_mov_b64 exec, 0xffff
    s_nop 6
    v_cvt_pk_bf16_f32 v22, v20, v21
    v_mov_b32 v23, {TAG}
    global_store_dwordx2 v18, v[22:23], {sp(WS_)} sc1
    s_mov_b64 exec, -1
    """)
    A.stamp(5)
    A(f"""
    L_H_x:
    s_cmp_eq_u32 s5, 15
    s_cbranch_scc1 L_XR
    s_branch L_end
    L_H_p:
    """)
    if trig and not at:
        A(f"""
        s_cmp_lg_u32 s3, 0
        s_cbranch_scc1 L_M_tr
        s_lshl_b32 s52, s4, 3
        s_add_u32 s52, s52, s5
        s_lshl_b32 s52, s52, 7
        s_add_u32 s52, s52, {WS_TR - 9*128}
        v_mov_b32 v20, s52
        v_mov_b32 v19, {TAG}
        global_store_dword v20, v19, {sp(WS_)}
        L_M_tr:
        """)
    A("s_cmp_ge_u32 s5, 14\ns_cbranch_scc1 L_H_x")
    A(f"""
    s_lshl_b32 s50, s4, 4
    s_lshr_b32 s45, s3, 1
    s_lshl_b32 s45, s45, 2
    s_add_u32 s50, s50, s45
    s_and_b32 s44, s3, 1                  ; dh
    s_lshl_b32 s51, s50, 7
    s_add_u32 s51, s51, {WS_MLG}
    v_bfe_u32 v18, v1, 2, 2
    v_lshlrev_b32 v18, 7, v18
    v_lshl_add_u32 v18, v9, 2, v18
    v_add_u32 v18, s51, v18
    s_lshl_b32 s51, s50, 10
    s_lshl_b32 s45, s44, 9
    s_add_u32 s51, s51, s45
    s_add_u32 s51, s51, {WS_OG}
    v_lshl_add_u32 v17, v1, 3, s51
    s_bfe_u32 s45, s3, 0x10001
    s_mul_i32 s45, s45, {ASTR}
    s_lshr_b32 s51, s3, 2
    s_lshl_b32 s51, s51, 9
    s_add_u32 s45, s45, s51
    s_and_b32 s51, s3, 6
    s_lshl_b32 s51, s51, 7
    s_sub_u32 s45, s45, s51
    s_add_u32 s45, s45, {ASTR}
    v_add_u32 v19, s45, v8
    s_lshl_b32 s45, s4, 2
    s_add_u32 s45, s45, {WS_FL}
    v_lshl_add_u32 v40, v0, 7, s45
    v_mov_b32 v41, {TAG}
    """)
    def oloads():
        for s_ in range(4):
            A(f"global_load_dwordx2 {vr(32+2*s_,2)}, v17, {sp(WS_)} offset:{s_*1024} sc1")
    A.dual_head("L_A_ml", ["v17", "v18"])
    A(f"""
    global_load_dword v20, v18, {sp(WS_)} sc1
    s_waitcnt vmcnt(0)
    v_xor_b32 v20, {ETAG}, v20
    v_and_b32 v21, 63, v20
    v_cmp_ne_u32 vcc, 0, v21
    s_cbranch_vccnz L_A_ml
    """)
    oloads()
    A(f"""
    v_max_f32_dpp v21, v20, v20 row_ror:4 {DPPM}
    v_mov_b32_dpp v23, v20 quad_perm:[1,1,3,3] {DPPM}
    s_nop 0
    v_max_f32_dpp v21, v21, v21 row_ror:8 {DPPM}
    v_sub_f32 v22, v20, v21
    v_mul_f32 v22, {hex(LOG2E)}, v22
    v_exp_f32 v22, v22
    s_nop 0
    v_mul_f32 v23, v22, v23
    s_nop 1
    v_add_f32_dpp v23, v23, v23 row_ror:4 {DPPM}
    s_nop 1
    v_add_f32_dpp v23, v23, v23 row_ror:8 {DPPM}
    v_rcp_f32 v23, v23
    s_nop 0
    v_mul_f32 v22, v22, v23
    """)
    A.stamp(7)
    A("s_branch L_A_ochk")
    A.dual_head("L_A_h3", ["v17"], init=False)
    oloads()
    A("L_A_ochk:\ns_waitcnt vmcnt(0)")
    A.etagcheck([f"v{32+i}" for i in range(8)], "v20", "L_A_h3")
    for s_ in range(4):
        op = "v_mul_f32_dpp" if s_ == 0 else "v_fmac_f32_dpp"
        A(f"{op} v30, v22, v{32+2*s_} row_newbcast:{4*s_} {DPPM}\n{op} v31, v22, v{33+2*s_} row_newbcast:{4*s_+2} {DPPM}")
    A(f"""
    v_cvt_pk_bf16_f32 v30, v30, v31
    ds_write_b16 v19, v30
    ds_write_b16_d16_hi v19, v30 offset:256
    s_waitcnt lgkmcnt(0)
    s_barrier
    """)
    if fl: A(f"""
        s_cmp_lg_u32 s5, 9
        s_cbranch_scc1 L_H_nf
        s_cmp_gt_u32 s3, 1
        s_cbranch_scc1 L_H_nf
        v_cmp_gt_u32 vcc, 72, v0
        s_and_saveexec_b64 s[44:45], vcc
        {f's_sleep {fpos}' if fpos else ''}
        global_store_dword v40, v41, {sp(WS_)} sc1
        s_mov_b64 exec, -1
        L_H_nf:
        """)
    A.stamp(8)
    A("s_branch L_end")
    A(f"""
    L_A_s4m:
    v_and_b32 v18, 1, v1
    v_mul_u32_u24 v18, {ASTR}, v18
    v_add_u32 v18, v18, v11
    v_add_u32 v18, {ASTR}, v18
    s_mul_i32 s45, s4, 4608
    s_lshl_b32 s44, s50, 9
    s_add_u32 s45, s45, s44
    s_lshl_b32 s44, s46, 7
    s_add_u32 s45, s45, s44
    s_add_u32 s45, s45, {WS_PC if pc else WS_PX}
    v_lshl_add_u32 v19, {'v7' if pc else 'v1'}, {4 if x4 else 3}, s45
    {'v_mul_u32_u24 v16, 36864, v4' + chr(10) + 'v_add_u32 v19, v19, v16' + chr(10) + 's_mov_b32 s56, 0xff00ff00' + chr(10) + 's_mov_b32 s57, 0xff00ff00' if pc else ''}
    {f's_mov_b64 exec, 0xffff' + chr(10) + f'global_load_dword v125, v19, {sp(WS_)} sc1' + chr(10) + 's_mov_b64 exec, -1' if ppt else ''}
    """)
    bfrags(A, "v17", 56, 16)
    A("s_waitcnt lgkmcnt(0)\ns_barrier")
    gemv_mfma(A, "v18", vb=56, depth=8, nks=16)
    A("s_nop 7" if pc else "s_mov_b64 exec, 0xffff\ns_nop 6")
    A.epack("v24", "v20"); A.epack("v25", "v21")
    if pc:
        A(f"""
        v_mov_b32 v26, v24
        v_mov_b32 v27, v25
        v_mov_b32_dpp v24, v24 row_ror:8 row_mask:0xf bank_mask:0xc
        v_mov_b32_dpp v25, v25 row_ror:8 row_mask:0xf bank_mask:0xc
        v_mov_b32_dpp v26, v26 row_ror:8 row_mask:0xf bank_mask:0x3
        v_mov_b32_dpp v27, v27 row_ror:8 row_mask:0xf bank_mask:0x3
        global_store_dwordx4 v19, v[24:27], {sp(WS_)} sc1
        """)
    elif x4:
        A(f"s_nop 0\nv_mov_b32_dpp v26, v24 row_ror:8 {DPPM}\nv_mov_b32_dpp v27, v25 row_ror:8 {DPPM}\ns_mov_b64 exec, 0xff")
        A(f"global_store_dwordx4 v19, v[24:27], {sp(WS_)} sc1\ns_mov_b64 exec, -1")
    else:
        A(f"global_store_dwordx2 v19, v[24:25], {sp(WS_)} sc1\ns_mov_b64 exec, -1")
    A.stamp(9)
    A("s_branch L_end")

    A("L_KT:\ns_waitcnt lgkmcnt(0)")
    A.mktag()
    A(f"""
    s_cmp_lt_u32 s3, 9
    s_cbranch_scc1 L_HR_go
    s_cmp_ge_u32 s3, {9 + hq}
    s_cbranch_scc1 L_S5
    s_lshr_b32 s44, s{WQ_}, 7
    s_sub_u32 s44, 3, s44
    s_and_b32 s44, s44, 7
    s_lshl_b32 s45, s4, 3
    s_add_u32 s44, s44, s45
    s_lshl_b32 s44, s44, 7
    s_sub_u32 s45, 24, s3
    v_lshlrev_b32 v15, 7, v4              ; (l>>3)*128 rows
    v_add_u32 v15, v15, v7
    s_lshl_b32 s45, s45, 3
    v_add_u32 v15, s45, v15               ; row = i*128 + w*8 + (l&7)
    v_subrev_u32 v16, {512 + 56}, v15
    v_cmp_gt_u32 vcc, 512, v15
    s_nop 1
    v_cndmask_b32 v15, v16, v15, vcc
    v_lshl_add_u32 v15, v15, 13, s44
    global_load_dword v125, v15, {sp(WQ_)}{NT}
    s_branch L_S5
    L_HR_go:
    v_lshlrev_b32 v15, 1, v0
    global_load_ushort v33, v15, {sp(X_)}
    global_load_ushort v34, v15, {sp(X_)} offset:1152
    s_mul_i32 s44, s4, 4608
    s_add_u32 s44, s44, {WS_HL}
    v_lshl_add_u32 v55, v0, 3, s44
    global_load_dword v57, v55, {sp(WS_)} sc1
    v_mul_u32_u24 v15, 36, v1
    global_load_dwordx4 v[24:27], v15, {sp(X_)}
    global_load_dwordx4 v[28:31], v15, {sp(X_)} offset:16
    global_load_dword v32, v15, {sp(X_)} offset:32
    v_lshlrev_b32 v15, 3, v0
    """)
    if x4: A("""    v_and_b32 v15, -16, v0
    v_lshlrev_b32 v15, 3, v15
    v_lshl_or_b32 v15, v7, 4, v15
    v_and_b32 v39, 8, v0
    v_or_b32 v15, v15, v39
""")
    A(f"""
    v_add_u32 v52, {WS_AG + 2304}, v15
    v_add_u32 v53, {WS_AG + 2304 + AGS}, v15
    v_add_u32 v54, {WS_AG + 2304 + 2*AGS}, v15
    """)
    def ag_loads():
        for k in range(ks):
            A(f"global_load_dwordx2 {vr(40+4*k,2)}, v{52+k}, {sp(WS_)} offset:-2304 sc1")
            A(f"global_load_dwordx2 {vr(42+4*k,2)}, v{52+k}, {sp(WS_)} offset:2304 sc1")
    A(f"""
    s_mov_b32 s44, 0x3f803f80
    v_mov_b32 v35, 0
    v_mov_b32 v36, 0
    s_waitcnt vmcnt(0)
    v_mov_b32 v61, {TAG}
    """)
    for i in range(9):
        A(f"v_dot2_f32_bf16 v35, v{24+i}, s44, v35\nv_dot2_f32_bf16 v36, v{24+i}, v{24+i}, v36")
    A("s_nop 2")
    A.row_reduce("v_add_f32", ["v35", "v36"])
    A(f"""
    v_mov_b32 v37, v35
    v_mov_b32 v38, v36
    s_nop 0
    v_permlane16_swap_b32 v35, v37
    v_permlane16_swap_b32 v36, v38
    v_add_f32 v35, v35, v37
    v_add_f32 v36, v36, v38
    v_mul_f32 v35, {INV576}, v35
    v_mul_f32 v36, {INV576}, v36
    v_fma_f32 v36, -v35, v35, v36
    """)
    ln_finish(A, "v35", "v36", "v38")
    A("""
    v_readlane_b32 s48, v35, 0
    v_readlane_b32 s49, v35, 32
    v_readlane_b32 s50, v38, 0
    v_readlane_b32 s51, v38, 32
    v_lshlrev_b32 v33, 16, v33
    v_lshlrev_b32 v34, 16, v34
    v_subrev_f32 v33, s48, v33
    v_subrev_f32 v34, s49, v34
    """)
    A.r1("v33", "v34")
    A("v_mul_f32 v33, s50, v33\nv_mul_f32 v34, s51, v34")
    A.r1("v33", "v34")
    A("s_mov_b32 s7, 0")
    if hs: A(f"s_sleep {hs}")
    A(f"L_HR_h:\ns_add_u32 s7, s7, 1\ns_cmp_gt_u32 s7, {SPIN}\ns_cbranch_scc1 L_end\ns_sleep {hp}")
    ag_loads()
    A("s_waitcnt vmcnt(0)")
    A.etagcheck([f"v{40+i}" for i in range(4*ks)], "v39", "L_HR_h", "s100", 7)
    for i in range(4): A(f"v_add_f32 v{40+i}, v{40+i}, v{44+i}")
    if ks == 3:
        for i in range(4): A(f"v_add_f32 v{40+i}, v{40+i}, v{48+i}")
    A.r1("v40", "v41", "v42", "v43")
    A("v_add_f32 v42, 1.0, v42\nv_add_f32 v43, 1.0, v43")
    A.r1("v42", "v43")
    A("v_mul_f32 v42, v33, v42\nv_mul_f32 v43, v34, v43")
    A.r1("v42", "v43")
    A(f"""
    v_add_f32 v42, v42, v40
    v_add_f32 v43, v43, v41
    v_cvt_pk_bf16_f32 v60, v42, v43
    """)
    if dq: A(f"s_sleep {dq}")
    A.dual_store("global_store_dwordx2", "v55", "v[60:61]")
    A.stamp(3)
    A("s_branch L_S5")
    A("L_XR:")
    if diag & 8: A("s_branch L_end")
    A(f"""
    v_lshlrev_b32 v16, 2, v0
    v_min_u32 v16, 1532, v16
    v_add_u32 v16, {L_ST}, v16
    ds_write_b32 v16, v3
    v_mov_b32 v21, {L_WCNT}
    v_mov_b32 v22, 1
    s_waitcnt lgkmcnt(0)
    s_barrier
    s_cmp_eq_u32 s3, 9
    s_cbranch_scc1 L_XR_stat
    s_cmp_gt_u32 s3, 9
    s_cbranch_scc1 L_end
    v_lshlrev_b32 v16, 1, v0
    global_load_ushort v80, v16, {sp(X_)}
    global_load_ushort v81, v16, {sp(X_)} offset:1152
    v_lshlrev_b32 v16, 3, v0
    v_add_u32 v17, {WS_MG + 2304}, v16
    v_add_u32 v18, {WS_MG + 9216}, v16
    """)
    if x4: A("""    v_and_b32 v16, -16, v0
    v_lshlrev_b32 v16, 3, v16
    v_lshl_or_b32 v16, v7, 4, v16
    v_and_b32 v30, 8, v0
    v_or_b32 v16, v16, v30
""")
    if pc: A("s_mul_i32 s44, s4, 36864\nv_add_u32 v16, s44, v16")
    for k in range(4): A(f"v_add_u32 v{88+k}, {(WS_PC if pc else WS_PX) + 2304 + k*9216}, v16")
    A(f"""
    s_mul_i32 s44, s4, 4608
    s_lshl_b32 s44, s44, 1
    s_add_u32 s45, s44, {WS_RG}
    v_lshl_add_u32 v26, v0, 4, s45
    s_add_u32 s45, s44, {WS_XA}
    v_lshl_add_u32 v27, v0, 4, s45
    v_and_b32 v24, 48, v1
    v_lshlrev_b32 v24, 2, v24
    s_lshl_b32 s44, s3, 2
    s_add_u32 s44, s44, {L_ST}
    v_add_u32 v24, s44, v24
    s_mov_b32 s56, 0x00010001
    s_mov_b32 s57, 0x00010001
    """)
    def partial_stats(off, r):
        for i in range(6): A(f"v_permlane32_swap_b32 v{r+2*i}, v{r+1+2*i}")
        for i in range(6): A(f"v_add_f32 v{r+2*i}, v{r+2*i}, v{r+1+2*i}")
        A("s_nop 0")
        for i in range(3): A(f"v_permlane16_swap_b32 v{r+4*i}, v{r+2+4*i}")
        for i in range(3): A(f"v_add_f32 v{r+4*i}, v{r+4*i}, v{r+2+4*i}")
        A.row_reduce("v_add_f32", [f"v{r}", f"v{r+4}", f"v{r+8}"])
        A(f"""
        s_mov_b64 exec, s[56:57]
        ds_write_b32 v24, v{r} offset:{off}
        ds_write_b32 v24, v{r+4} offset:{off+256}
        ds_write_b32 v24, v{r+8} offset:{off+512}
        s_mov_b64 exec, -1
        """)
    A(f"""
    s_mov_b32 s7, 0
    s_movk_i32 s60, {0x100 if fl else 0x1ff}
    s_mov_b32 s61, 0
    L_XR_px:
    s_add_u32 s7, s7, 1
    s_cmp_gt_u32 s7, {SPIN}
    s_cbranch_scc1 L_end
    """)
    for k in range(8):
        A(f"s_bitcmp0_b32 s60, {k}\ns_cbranch_scc1 L_px_l{k}")
        A(f"global_load_dwordx2 {vr(96+2*k,2)}, v{88+k//2}, {sp(WS_)} offset:{2304 if k & 1 else -2304} sc1")
        A(f"L_px_l{k}:")
    A("s_bitcmp0_b32 s60, 8\ns_cbranch_scc1 L_px_m")
    for j, (r, o) in enumerate((("v17", -2304), ("v17", 2304), ("v18", 0))):
        A(f"global_load_dwordx2 {vr((40, 34, 42)[j],2)}, {r}, {sp(WS_)} offset:{o} sc1")
    A("s_waitcnt vmcnt(0)")
    A.tagcheck(["v41", "v35", "v43", "v43"], "v30", "v31", "L_px_m")
    A(f"""
    s_bitset0_b32 s60, 8
    v_lshlrev_b32 v82, 16, v40
    v_and_b32 v83, 0xffff0000, v40        ; ga
    v_and_b32 v43, 0xffff0000, v42
    v_lshlrev_b32 v42, 16, v42
    v_add_f32 v42, 1.0, v42
    v_add_f32 v43, 1.0, v43
    v_cvt_pk_bf16_f32 v32, v42, v43       ; g
    v_mov_b32 v33, {TAG}
    """)
    A(f"""
    global_store_dwordx4 v26, v[32:35], {sp(WS_)}
    v_mov_b32 v36, v32
    v_mov_b32 v37, v33
    v_mov_b32 v38, v34
    v_mov_b32 v39, v35
    v_lshlrev_b32 v80, 16, v80
    v_lshlrev_b32 v81, 16, v81
    v_lshlrev_b32 v84, 16, v32
    v_and_b32 v85, 0xffff0000, v32
    v_lshlrev_b32 v86, 16, v34
    v_and_b32 v87, 0xffff0000, v34
    v_mov_b32 v44, v84
    v_mov_b32 v45, v85
    v_mul_f32 v46, v84, v84
    v_mul_f32 v47, v85, v85
    v_mov_b32 v48, v86
    v_mov_b32 v49, v87
    v_mul_f32 v50, v86, v86
    v_mul_f32 v51, v87, v87
    v_mul_f32 v52, v84, v86
    v_mul_f32 v53, v85, v87
    v_mov_b32 v54, 0
    v_mov_b32 v55, 0
    """)
    partial_stats(0, 44)
    A.lds_inc(4, "v21", "v22")
    A.stamp(6)
    A("s_branch L_px_m2\nL_px_m:\ns_waitcnt vmcnt(0)\nL_px_m2:")
    for k in range(8):
        A(f"""
        s_bitcmp0_b32 s60, {k}
        s_cbranch_scc1 L_px_c{k}
        v_xor_b32 v{96+2*k}, {ETAG}, v{96+2*k}
        v_xor_b32 v{97+2*k}, {ETAG}, v{97+2*k}
        v_or_b32 v30, v{96+2*k}, v{97+2*k}
        v_and_b32 v30, 63, v30
        v_cmp_ne_u32 vcc, 0, v30
        s_cbranch_vccnz L_px_c{k}
        s_bitset0_b32 s60, {k}
        L_px_c{k}:
        """)
    A("s_cmp_lg_u32 s60, 0\ns_cbranch_scc1 L_XR_px")
    if fl:
        A(f"""
        s_cmp_lg_u32 s61, 0
        s_cbranch_scc1 L_XR_done
        s_mul_i32 s44, s4, 9
        s_add_u32 s44, s44, s3
        s_lshl_b32 s44, s44, 7
        s_add_u32 s44, s44, {WS_FL}
        s_add_u32 s62, s{WS_}, s44
        s_addc_u32 s63, s{WS_+1}, 0
        L_XR_fl:
        s_add_u32 s7, s7, 1
        s_cmp_gt_u32 s7, {SPIN}
        s_cbranch_scc1 L_end
        s_load_dwordx8 s[64:71], s[62:63], 0 glc
        s_waitcnt lgkmcnt(0)
        """)
        for k in range(8):
            A(f"""
            s_bitcmp1_b32 s61, {k}
            s_cselect_b32 s58, 0, s{64+k}
            s_cmp_lg_u32 s58, {TAG}
            s_cbranch_scc1 L_fl_{k}
            global_load_dwordx2 {vr(96+2*k,2)}, v{88+k//2}, {sp(WS_)} offset:{2304 if k & 1 else -2304} sc1
            s_bitset1_b32 s61, {k}
            L_fl_{k}:
            """)
        A(f"""
        s_cmp_lg_u32 s61, 0xff
        s_cbranch_scc1 L_XR_fl
        s_movk_i32 s60, 0xff
        s_branch L_px_m
        L_XR_done:
        """)
    A.stamp(10)
    for i in range(4): A(f"v_add_f32 v{96+2*i}, v{96+2*i}, v{104+2*i}\nv_add_f32 v{97+2*i}, v{97+2*i}, v{105+2*i}")
    for i in range(2): A(f"v_add_f32 v{96+2*i}, v{96+2*i}, v{100+2*i}\nv_add_f32 v{97+2*i}, v{97+2*i}, v{101+2*i}")
    A("v_add_f32 v96, v96, v98\nv_add_f32 v97, v97, v99")
    A.r1("v96", "v97")
    A("v_mul_f32 v96, v82, v96\nv_mul_f32 v97, v83, v97")
    A.r1("v96", "v97")
    A(f"""
    v_add_f32 v96, v80, v96
    v_add_f32 v97, v81, v97
    v_cvt_pk_bf16_f32 v34, v96, v97
    v_lshlrev_b32 v96, 16, v34
    v_and_b32 v97, 0xffff0000, v34        ; x1
    v_mul_f32 v100, v96, v84
    v_mul_f32 v101, v97, v85
    v_cvt_pk_bf16_f32 v32, v100, v101
    global_store_dwordx4 v27, v[32:35], {sp(WS_)}
    v_lshlrev_b32 v100, 16, v32
    v_and_b32 v101, 0xffff0000, v32       ; a
    v_mul_f32 v98, v96, v96
    v_mul_f32 v99, v97, v97
    v_mul_f32 v102, v100, v100
    v_mul_f32 v103, v101, v101
    v_mul_f32 v104, v100, v84
    v_mul_f32 v105, v101, v85
    v_mul_f32 v106, v100, v86
    v_mul_f32 v107, v101, v87
    """)
    partial_stats(768, 96)
    A("s_waitcnt lgkmcnt(0)\ns_barrier")
    A("s_barrier")
    A(f"v_add_u32 v27, {WS_GOFF}, v27\nglobal_store_dwordx4 v27, v[32:35], {sp(WS_)} sc1")
    A(f"v_add_u32 v26, {WS_GOFF}, v26\nglobal_store_dwordx4 v26, v[36:39], {sp(WS_)} sc1")
    A.stamp(11)
    A(f"""
    s_branch L_end
    L_XR_stat:
    v_lshlrev_b32 v22, 2, v1
    v_add_u32 v22, {L_ST}, v22
    v_lshrrev_b32 v20, 5, v1
    s_lshl_b32 s44, s4, 7
    s_add_u32 s44, s44, {WS_CF}
    v_lshl_add_u32 v20, v20, 4, s44
    global_load_dword v23, v20, {sp(WS_)} sc1
    """)
    def gather_stats(off, cnt, r, sleep):
        if sleep: A.lds_spin(cnt, 9, "v23", "v21")
        else: A("s_barrier")
        A(f"""
        ds_read_b32 v{r}, v22 offset:{off}
        ds_read_b32 v{r+2}, v22 offset:{off+256}
        ds_read_b32 v{r+4}, v22 offset:{off+512}
        s_waitcnt lgkmcnt(0)
        """)
        A.row_reduce("v_add_f32", [f"v{r}", f"v{r+2}", f"v{r+4}"])
        for q in (r, r+2, r+4): A(f"v_mul_f32 v{q}, {INV576}, v{q}")
        for q in (r, r+2, r+4): A(f"v_mov_b32 v{q+1}, v{q}")
        for q in (r, r+2, r+4): A(f"v_permlane16_swap_b32 v{q}, v{q+1}")
    A("s_waitcnt vmcnt(0)")
    gather_stats(0, 4, 100, True)
    gather_stats(768, 8, 84, False)
    A("v_fma_f32 v85, -v84, v84, v85")
    ln_finish(A, "v84", "v85", "v90")
    A(f"""
    v_fma_f32 v86, -v84, v100, v86
    v_fma_f32 v89, -v84, v104, v89
    v_add_f32 v88, v88, v88
    v_fma_f32 v88, v84, v101, -v88
    v_fma_f32 v87, v84, v88, v87
    v_fma_f32 v86, v90, v86, v102         ; mean2
    v_add_f32 v89, v89, v89
    v_fma_f32 v87, v90, v87, v89
    v_fma_f32 v87, v90, v87, v103         ; E[h2^2]
    v_fma_f32 v87, -v86, v86, v87         ; var2
    """)
    ln_finish(A, "v86", "v87", "v94")
    A(f"""
    v_mul_f32 v92, v90, v94               ; c0
    v_mul_f32 v95, -v86, v94              ; c3
    v_mul_f32 v93, -v84, v92              ; c1
    """)
    for r in range(92, 96): A.epack(f"v{r}", f"v{r}")
    A("s_mov_b32 exec_lo, 1\ns_mov_b32 exec_hi, 1")
    A.dual_store("global_store_dwordx4", "v20", "v[92:95]")
    A("s_mov_b64 exec, -1\ns_barrier")
    A.stamp(12)
    A("s_branch L_end")

    A(f"""
    L_S5:
    {'s_branch L_end' if diag & 8 else ''}
    s_mul_i32 s47, s4, 9
    s_add_u32 s47, s47, s5                ; f
    """)
    A.srd(8, W1_, 576*9216)
    A.srd(12, W2_, 4608*1152)
    A(f"""
    s_lshl_b32 s44, s47, 7
    v_mul_u32_u24 v14, 9216, v4
    v_lshl_add_u32 v14, v6, 4, v14
    v_add_u32 v14, s44, v14
    s_lshl_b32 s45, s46, 5
    s_add_u32 s44, s44, s45
    v_and_b32 v15, 15, v1
    v_lshl_add_u32 v15, v15, 1, s44
    global_load_ushort v19, v15, {sp(B1_)}
    v_mul_u32_u24 v15, 0x38f, v0
    v_lshrrev_b32 v15, 16, v15
    v_mul_u32_u24 v16, 72, v15
    v_sub_u32 v16, v0, v16
    v_and_b32 v17, 6, v15
    v_xor_b32 v16, v16, v17
    v_mul_u32_u24 v15, 1152, v15
    v_lshl_add_u32 v15, v16, 4, v15
    s_mul_i32 s49, s4, 9216
    s_add_u32 s45, s49, {WS_RG}
    v_lshl_add_u32 v80, v0, 4, s45
    s_add_u32 s45, s49, {WS_XA}
    v_lshl_add_u32 v81, v0, 4, s45
    v_lshrrev_b32 v20, 2, v1
    v_mul_u32_u24 v20, 1152, v20
    v_lshl_add_u32 v20, v9, 3, v20
    v_add_u32 v20, {L_BUF1}, v20
    v_bfe_u32 v17, v1, 3, 2
    s_mul_i32 s48, s3, 3
    """)
    for i in range(3):
        A(f"s_add_u32 s44, s48, {i}\nv_xor_b32 v{92+i}, s44, v17\nv_lshl_add_u32 v{92+i}, v{92+i}, 5, v20")
    A(f"""
    s_mul_i32 s44, s48, {2*4608}
    s_lshl_b32 s45, s47, 6
    s_add_u32 s44, s44, s45
    s_add_u32 s44, s44, {WS_FG}
    v_mul_u32_u24 v20, 4608, v4
    v_lshl_add_u32 v20, v7, 3, v20
    v_add_u32 v76, s44, v20
    v_and_b32 v79, 1, v1
    v_lshlrev_b32 v79, 7, v79
    v_and_b32 v20, 48, v1
    v_add_u32 v79, v79, v20
    v_add_u32 v79, {L_H1}, v79
    s_lshl_b32 s44, s47, 3
    v_add_u32 v77, s44, v7                ; col
    v_lshrrev_b32 v78, 5, v1              ; b
    v_mul_u32_u24 v82, 1152, v78
    v_lshl_add_u32 v82, v77, 1, v82
    v_lshlrev_b32 v83, 1, v77
    s_cmp_lg_u32 s3, 10
    s_cbranch_scc1 L_S5_nf
    global_load_ushort v84, v83, {sp(B2_)}
    global_load_ushort v85, v82, {sp(OUT_)}
    L_S5_nf:
    v_lshlrev_b32 v83, 3, v77
    v_add_u32 v83, {WS_MG + 1728*8}, v83
    s_add_u32 s44, s49, {WS_XA + 8}
    v_lshl_add_u32 v77, v77, 4, s44
    v_lshlrev_b32 v78, 4, v78             ; 16*b
    s_mul_i32 s44, s47, 4608
    s_add_u32 s44, s44, {WS_FG + 2048}
    v_lshl_add_u32 v88, v1, 3, s44
    v_mov_b32 v21, {L_WCNT}
    v_mov_b32 v22, 1
    """)
    if nb2:
        A(f"""
        s_barrier
        s_cmp_eq_u32 s5, 8
        s_cbranch_scc1 L_vt2
        s_lshr_b32 s44, s{W1_}, 7
        s_add_u32 s44, s44, s47
        s_and_b32 s44, s44, 7
        s_cmp_eq_u32 s44, 3
        s_cbranch_scc1 L_vt2
        """)
        vtail(nb2, 3, 0)
        A("L_vt2:")
    if trig:
        A(f"""
        s_cmp_lg_u32 s3, 11
        s_cbranch_scc1 L_S5_tb
        s_lshr_b32 s44, s{W1_}, 7
        s_add_u32 s44, s44, s47
        s_and_b32 s44, s44, 7
        s_cmp_eq_u32 s44, {3 if c3 else 9}
        s_cbranch_scc1 L_S5_tb
        """)
        if at:
            A(f"""
            s_lshl_b32 s44, s4, 5
            v_mov_b32 v16, s44
            s_mov_b32 s7, 0
            L_S5_trig:
            s_sleep {ps}
            global_load_dword v17, v16, s[94:95] sc1
            s_add_u32 s7, s7, 1
            s_cmp_gt_u32 s7, {NLOC//2}
            s_cbranch_scc1 L_S5_tb
            s_waitcnt vmcnt(0)
            v_readfirstlane_b32 s44, v17
            s_cmp_lt_u32 s44, {an}
            """)
        else:
            A(f"""
        s_lshl_b32 s44, s4, 10
        s_add_u32 s44, s44, {WS_TR}
        v_lshl_add_u32 v16, v7, 7, s44
        s_mov_b32 s7, 0
        L_S5_trig:
        s_sleep {ps}
        global_load_dword v17, v16, {sp(WS_)} sc1
        s_add_u32 s7, s7, 1
        s_cmp_gt_u32 s7, {NLOC//2}
        s_cbranch_scc1 L_S5_tb
        s_waitcnt vmcnt(0)
        v_cmp_eq_u32 vcc, {TAG}, v17
        s_and_b32 s44, vcc_lo, {tm}
        s_bcnt1_i32_b32 s44, s44
        s_cmp_lt_u32 s44, {trig}
""")
        A(f"""
        s_cbranch_scc1 L_S5_trig
        L_S5_tb:
        """)
    A("s_barrier")
    A.stamp(5)
    dma_tile(A, 8, "v14", 9216, L_BUF0, 72, '' if wm & 4 else NT)
    A(f"""
    s_barrier
    s_cmp_ge_u32 s3, 9
    s_cbranch_scc1 L_S5_hi
    s_mul_i32 s44, s47, {64*1152}
    s_lshl_b32 s45, s3, 10
    s_add_u32 s45, s45, {L_BUF1}
    """)
    for o in range(8):
        A(f"s_mov_b32 m0, s45\ns_add_u32 s45, s45, 9216")
        A(f"buffer_load_dwordx4 v15, s[12:15], s44 offen{'' if wm & 8 else NT} lds")
        A(f"s_add_u32 s44, s44, 9216")
    A(f"global_load_dwordx4 v[24:27], v80, {sp(WS_)} sc1\ns_waitcnt vmcnt(9)")
    A.lds_inc(4, "v21", "v22")
    A("s_mov_b32 s7, 0\ns_branch L_S5_rgc")
    A.dual_head("L_S5_rg", ["v80", "v81"], init=False)
    A(f"s_sleep {ps}\nglobal_load_dwordx4 v[24:27], v80, {sp(WS_)} sc1\nL_S5_rgc:\ns_waitcnt vmcnt(0)")
    A.tagcheck(["v25", "v27"], "v30", "v31", "L_S5_rg")
    A(f"""
    v_mov_b32 v35, 0x3f80
    ds_write_b16 v8, v24 offset:{ASTR}
    ds_write_b16_d16_hi v8, v24 offset:{5*ASTR}
    ds_write_b16 v8, v26 offset:{2*ASTR}
    ds_write_b16_d16_hi v8, v26 offset:{6*ASTR}
    ds_write_b16 v8, v35 offset:{3*ASTR}
    ds_write_b16 v8, v35 offset:{7*ASTR}
    s_waitcnt lgkmcnt(0)
    {f's_sleep {ds5}' if ds5 else ''}
    s_barrier
    global_load_dwordx2 v[24:25], v81, {sp(WS_)} sc1
    """)
    A.stamp(6)
    def w2frags():
        for i in range(3):
            for ks in range(2):
                for half in range(2):
                    A(f"ds_read_b64_tr_b16 {vr(52+i*8+ks*4+half*2,2)}, v{92+i} offset:{(ks*32+half*16)*1152}")
    w2frags()
    A("s_branch L_S5_xac")
    A.dual_head("L_S5_xa", ["v81"], init=False)
    A(f"global_load_dwordx2 v[24:25], v81, {sp(WS_)} sc1\nL_S5_xac:\ns_waitcnt vmcnt(0)")
    A.tagcheck(["v25"], None, None, "L_S5_xa")
    A(f"""
    ds_write_b16 v8, v24
    ds_write_b16_d16_hi v8, v24 offset:{4*ASTR}
    s_waitcnt lgkmcnt(0)
    s_barrier
    """)
    A.stamp(7)
    A(f"""
    s_branch L_S5_g2
    L_S5_hi:
    s_waitcnt vmcnt(0)
    """)
    A.lds_inc(4, "v21", "v22")
    A(f"""
    s_cmp_ge_u32 s3, 12
    s_cbranch_scc1 L_S5_g1
    s_barrier
    """)
    w2frags()
    A(f"""
    s_cmp_lg_u32 s3, 10
    s_cbranch_scc1 L_S5_h2
    global_load_dwordx2 v[86:87], v83, {sp(WS_)} sc1
    s_barrier
    s_mov_b32 s7, 0
    s_branch L_S5_gb1
    """)
    A.dual_head("L_S5_gb", ["v77"], init=False)
    A(f"""
    global_load_dwordx2 v[86:87], v83, {sp(WS_)} sc1
    L_S5_gb1:
    global_load_dwordx2 v[90:91], v77, {sp(WS_)} sc1
    s_waitcnt vmcnt(0)
    """)
    A.tagcheck(["v87", "v91"], "v30", "v31", "L_S5_gb")
    A(f"""
    v_lshrrev_b32 v86, v78, v86
    v_lshrrev_b32 v85, v78, v90
    v_lshlrev_b32 v86, 16, v86            ; gb
    v_lshlrev_b32 v85, 16, v85            ; x1
    v_lshlrev_b32 v84, 16, v84            ; b2
    s_branch L_S5_g2
    L_S5_h2:
    s_barrier
    L_S5_g2:
    s_mov_b32 s56, 0xffff0000
    s_mov_b32 s57, 0
    s_mov_b32 s58, 0
    s_mov_b32 s59, 0xffff
    s_waitcnt lgkmcnt(0)
    s_barrier
    ds_read_b128 v[32:35], v79
    ds_read_b128 v[36:39], v79 offset:64
    s_waitcnt lgkmcnt(1)
    """)
    for i in range(3):
        A(f"v_mfma_f32_16x16x32_bf16 {vr(40+4*i,4)}, v[32:35], {vr(52+8*i,4)}, 0")
    A("s_waitcnt lgkmcnt(0)")
    for i in range(3):
        A(f"v_mfma_f32_16x16x32_bf16 {vr(40+4*i,4)}, v[36:39], {vr(56+8*i,4)}, {vr(40+4*i,4)}")
    A(f"""
    s_mov_b32 exec_hi, 0xffff
    s_nop 5
    v_cndmask_b32 v28, v40, v44, s[56:57]
    v_cndmask_b32 v29, v41, v45, s[56:57]
    v_cndmask_b32 v28, v28, v48, s[58:59]
    v_cndmask_b32 v29, v29, v49, s[58:59]
    """)
    A.epack("v28", "v28"); A.epack("v29", "v29")
    A(f"global_store_dwordx2 v76, v[28:29], {sp(WS_)} sc1\ns_mov_b64 exec, -1")
    A.stamp(11)
    A(f"""
    s_cmp_lg_u32 s3, 10
    s_cbranch_scc1 L_end
    {f's_sleep {fgs}' if fgs else 's_waitcnt vmcnt(0)'}
    """)
    A.spin_head("L_S5_fg")
    for i in range(9):
        A(f"global_load_dwordx2 {vr(40+2*i,2)}, v88, {sp(WS_)} offset:{i*512-2048} sc1")
    A("s_waitcnt vmcnt(0)")
    A.etagcheck([f"v{40+i}" for i in range(18)], "v30", "L_S5_fg")
    A.stamp(12)
    fold8(A, 9, 40, 41, 42)
    A.r1("v40")
    A("v_add_f32 v40, v84, v40")
    A.r1("v40")
    A("v_mul_f32 v40, v86, v40")
    A.r1("v40")
    A(f"""
    v_add_f32 v40, v85, v40
    v_cvt_pk_bf16_f32 v40, v40, v40
    s_mov_b32 exec_lo, 0xff
    s_mov_b32 exec_hi, 0xff
    global_store_short v82, v40, {sp(OUT_)}
    s_cmp_lg_u32 s47, 0
    s_cbranch_scc1 L_S5_fin
    s_mov_b64 exec, 1
    v_mov_b32 v33, {TAG}
    global_store_dword v3, v33, {sp(WS_)} sc1
    L_S5_fin:
    s_mov_b64 exec, -1
    """)
    if probe:
        base, stride = {1: (0xB0000, 128*72), 2: (0x400000, 65536), 3: (0x1000000, 0x200000), 4: (0xB0000, 128*72)}[probe]
        A(f"s_lshl_b32 s44, s47, 7\ns_add_u32 s44, s44, {base}\nv_mov_b32 v60, s44\ns_waitcnt vmcnt(0)\ns_mov_b64 exec, 1")
        for i in range(8):
            if probe == 1: A(f"global_store_dword v60, v3, {sp(WS_)} sc1")
            else: A(f"global_load_dword v61, v60, {sp(WS_)} nt")
            A(f"s_waitcnt vmcnt(0)\nv_add_u32 v60, {stride}, v60")
        A("s_mov_b64 exec, -1")
    A.stamp(13)
    A("s_branch L_end")
    A("L_S5_g1:\nv_mov_b32 v15, v10")
    A.lds_spin(4, 16, "v16", "v21")
    bfrags(A, "v15")
    k0_ = -2.0 * 1.4426950408889634 * 0.7978845608028654
    A(f"""
    v_bfe_u32 v16, v1, 4, 1
    v_lshlrev_b32 v15, 7, v16
    s_lshl_b32 s44, s4, 7
    s_add_u32 s44, s44, {WS_CF}
    v_lshl_add_u32 v18, v16, 4, s44
    v_bfe_u32 v16, v1, 2, 2
    v_lshl_or_b32 v15, v16, 4, v15
    v_lshl_or_b32 v15, v9, 1, v15
    s_lshr_b32 s44, s46, 1
    s_lshl_b32 s44, s44, 6
    s_and_b32 s45, s46, 1
    s_lshl_b32 s45, s45, 3
    s_add_u32 s44, s44, s45
    s_add_u32 s44, s44, {L_H1}
    v_add_u32 v15, s44, v15
    v_lshlrev_b32 v19, 16, v19
    v_mul_u32_u24 v16, {ASTR}, v7
    v_add_u32 v16, v11, v16               ; A rows = i&7
    v_mov_b32 v17, {f2h(k0_)}
    s_waitcnt lgkmcnt(0)
    s_barrier
    s_barrier
    """)
    cfl = f"global_load_dwordx4 v[52:55], v18, {sp(WS_)} sc1"
    gemv_mfma(A, "v16", mid=(cfm, cfl))
    A.stamp(9)
    A("s_mov_b32 s7, 0\ns_branch L_S5_cfc")
    A.dual_head("L_S5_cf", ["v18"], init=False)
    A(f"{cfl}\nL_S5_cfc:\ns_waitcnt vmcnt(0)")
    A.etagcheck(["v52", "v53", "v54", "v55"], "v30", "L_S5_cf")
    A.stamp(8)
    A(f"""
    v_mul_f32 v20, v20, v52
    v_mul_f32 v22, v22, v54
    v_fmac_f32 v20, v21, v53
    v_fmac_f32 v22, v23, v55
    v_add_f32 v20, v20, v22
    """)
    A.r1("v20")
    A("v_add_f32 v20, v20, v19")
    A.r1("v20")
    A(f"""
    v_mul_f32 v21, v20, v20
    v_fmamk_f32 v21, v21, {f2h(k0_*0.044715)}, v17
    v_mul_f32 v21, v21, v20
    v_exp_f32 v21, v21
    s_nop 0
    v_add_f32 v21, 1.0, v21
    v_rcp_f32 v21, v21
    s_mov_b32 exec_hi, 0
    v_mul_f32 v21, v21, v20
    v_cvt_pk_bf16_f32 v21, v21, v21
    ds_write_b16 v15, v21
    s_mov_b64 exec, -1
    s_waitcnt lgkmcnt(0)
    s_barrier
    """)
    A.stamp(10)
    A("L_end:")
    if dbg:
        maps = {"A": {1: 4, 2: 5, 4: 6, 7: 7, 9: 8, 10: 9, 12: 14}, "B": {4: 3, 5: 10, 6: 11, 8: 12, 11: 13}, "M": {3: 2, 5: 15}}
        A(f"""
        s_mov_b64 exec, -1
        s_lshl_b32 s44, 1, s3
        s_and_b32 s44, s44, {(1<<0)|(1<<9)|(1<<12)|(1<<15)}
        s_cbranch_scc0 L_exit
        s_load_dwordx2 s[46:47], s[0:1], 104
        v_mov_b32 v125, 0x400
        v_readlane_b32 s44, v127, 0
        s_nop 3
        s_not_b32 s44, s44
        v_writelane_b32 v127, s44, 15
        v_writelane_b32 v125, 4, 0
        v_writelane_b32 v125, 0, 15
        s_lshr_b32 s45, s2, 3
        s_cmp_lt_u32 s45, 16
        s_cbranch_scc1 L_dbg_A
        s_cmp_lt_u32 s45, 25
        s_cbranch_scc1 L_dbg_B
        """)
        for nm in ("M", "B", "A"):
            A(f"L_dbg_{nm}:")
            for st, sl in maps[nm].items(): A(f"v_writelane_b32 v125, {sl*4}, {st}")
            A("s_branch L_dbg_go")
        A(f"""
        L_dbg_go:
        s_waitcnt lgkmcnt(0)
        v_cmp_gt_u32 vcc, 0x100, v125
        s_and_saveexec_b64 s[48:49], vcc
        global_atomic_umax v125, v127, s[46:47]
        s_endpgm
        """)
    elif stamps:
        A(f"""
        s_mov_b64 exec, 0xffff
        s_lshl_b32 s44, s2, 4
        s_add_u32 s44, s44, s3
        s_lshl_b32 s44, s44, 6
        s_add_u32 s44, s44, {WS_STAMP}
        v_lshl_add_u32 v126, v1, 2, s44
        global_store_dword v126, v127, {sp(WS_)}
        """)
    A("L_exit:\ns_endpgm\nL_codeend:")
    A.footer(128, 102)
    return A

HEAD = """; Fused adaLN + sliding-window GQA decode attention + channel MLP, one persistent launch (gfx950).
"""
if __name__ == "__main__":
    out = sys.argv[1]
    kw = {}
    for o in sys.argv[2:]:
        if "=" in o:
            k, v = o.split("="); kw[k] = int(v)
        elif o == "stamps": kw["stamps"] = True
        elif o == "lite": kw["stamps"] = True; LITE = True
        elif o == "nont": kw["nt"] = ""
    A = build(**kw)
    open(out, "w").write(HEAD + A.text())
```

```python
import sys, struct
from asmlib import Asm, NAME

WS_EPOCH = 0x0
WS_QG    = 0x4000
WS_TR    = 0x18000
WS_FL    = 0x1C000
WS_PX    = 0x20000
WS_AG    = 0x30000
AGS = 1152*8
WS_MG    = 0x40000
WS_FG    = 0x50000
WS_OG    = 0x100000
WS_MLG   = 0x120000
WS_RG    = 0x124000
WS_XA    = 0x136000
WS_CF    = 0x151000
WS_HL    = 0x152000
WS_GOFF  = 0x80000
WS_QL    = 0x200000
WS_PC    = 0xA2000
WS_STAMP = 0x8000000
AL = 131072; L_Q = 0; L_CNT = 512; L_MX = 640; L_LS = 768; L_P = 1024; PSTR = 1088; L_PD = 3328
ASTR = 1184
L_BUF0 = 0; L_BUF1 = 73728; L_ACT = 147456; L_H1 = L_ACT + 8*ASTR; L_CF = L_H1 + 256; L_WCNT = L_CF + 64; L_ST = L_WCNT + 64; L_X1 = L_ST + 1536
LDS_BYTES = 160768
assert L_X1 <= LDS_BYTES
NLOC = 300
SPIN = 40000
LITE = False
LOG2E = 0x3fb8aa3b
X_, K_, V_, WQ_, WO_, W1_, B1_, W2_, B2_, C_, WM_, OUT_, WS_ = 16, 18, 20, 22, 24, 28, 30, 32, 34, 36, 38, 40, 42
TAG = "s6"; ETAG = "s101"

def sp(n): return f"s[{n}:{n+1}]"
def vr(n, k): return f"v[{n}:{n+k-1}]"
def f2h(x): return hex(struct.unpack("<I", struct.pack("<f", x))[0])
DPPM = "row_mask:0xf bank_mask:0xf"

class G(Asm):
    def __init__(self, stamps=False, nt="nt"):
        super().__init__()
        self.stamps = stamps
        self.nt = (" " + nt) if nt else ""
    def stamp(self, i):
        if self.stamps and (not LITE or i == 13):
            self(f"s_memrealtime s[96:97]\ns_waitcnt lgkmcnt(0)\nv_writelane_b32 v127, s96, {i}")
    def rbf(self, *pairs):
        for d, s in pairs: self(f"v_cvt_pk_bf16_f32 {d}, {s}, {s}")
        for d, s in pairs: self(f"v_and_b32 {d}, 0xffff0000, {d}")
    def r1(self, *regs): self.rbf(*[(r, r) for r in regs])
    def srd(self, b, ptr, nbytes):
        self(f"s_mov_b32 s{b}, s{ptr}\ns_and_b32 s{b+1}, s{ptr+1}, 0xffff\ns_mov_b32 s{b+2}, {nbytes}\ns_mov_b32 s{b+3}, 0x20000")
    def mktag(self):
        self(f"s_add_u32 s6, s6, 0x9e3779b9\ns_and_b32 {ETAG}, s6, 63\ns_and_b32 s100, s6, 7")
    def tagcheck(self, tags, mn, mx, retry):
        if len(tags) == 1:
            self(f"v_cmp_ne_u32 vcc, {TAG}, {tags[0]}")
        else:
            assert len(tags) % 2 == 0
            for i in range(0, len(tags), 2):
                a, b = tags[i], tags[i+1]
                self(f"v_min3_u32 {mn}, {a}, {b}, {TAG if i == 0 else mn}")
                self(f"v_max3_u32 {mx}, {a}, {b}, {TAG if i == 0 else mx}")
            self(f"v_cmp_ne_u32 vcc, {mn}, {mx}")
        self(f"s_cbranch_vccnz {retry}")
    def etagcheck(self, words, acc, retry, ETAG=ETAG, mask=63):
        assert len(words) % 2 == 0
        for i in range(0, len(words), 2):
            a, b = words[i], words[i+1]
            self(f"v_xor_b32 {a}, {ETAG}, {a}\nv_xor_b32 {b}, {ETAG}, {b}")
            if i == 0: self(f"v_or_b32 {acc}, {a}, {b}")
            else: self(f"v_or3_b32 {acc}, {a}, {b}, {acc}")
        self(f"v_and_b32 {acc}, {mask}, {acc}\nv_cmp_ne_u32 vcc, 0, {acc}\ns_cbranch_vccnz {retry}")
    def epack(self, d, v, mask=63):
        self(f"v_bfi_b32 {d}, {mask}, {ETAG}, {v}")
    def spin_head(self, lab):
        self(f"s_mov_b32 s7, 0\n{lab}:\ns_add_u32 s7, s7, 1\ns_cmp_gt_u32 s7, {SPIN}\ns_cbranch_scc1 L_end")
    def dual_head(self, lab, regs, init=True):
        if init: self("s_mov_b32 s7, 0")
        self(f"{lab}:\ns_add_u32 s7, s7, 1\ns_cmp_gt_u32 s7, {SPIN}\ns_cbranch_scc1 L_end")
        self(f"s_cmp_lg_u32 s7, {NLOC}\ns_cbranch_scc1 {lab}_k")
        for r in regs: self(f"v_add_u32 {r}, {WS_GOFF}, {r}")
        self(f"{lab}_k:")
    def dual_store(self, op, vaddr, data):
        self(f"{op} {vaddr}, {data}, {sp(WS_)}\nv_add_u32 {vaddr}, {WS_GOFF}, {vaddr}\n{op} {vaddr}, {data}, {sp(WS_)} sc1")
    def row_reduce(self, op, regs, steps=4):
        for ctl in ("quad_perm:[1,0,3,2]", "quad_perm:[2,3,0,1]", "row_half_mirror", "row_mirror")[:steps]:
            if len(regs) < 3: self(f"s_nop {2 - len(regs)}")
            for r in regs:
                self(f"{op}_dpp {r}, {r}, {r} {ctl} {DPPM}")
    def lds_spin(self, off, val, vt, vbase, sleep=True):
        lab = self.label("LS")
        self.spin_head(lab)
        self(f"ds_read_b32 {vt}, {vbase} offset:{off}\ns_waitcnt lgkmcnt(0)\nv_readfirstlane_b32 s44, {vt}\ns_cmp_ge_u32 s44, {val}")
        done = self.label("LD")
        self(f"s_cbranch_scc1 {done}\n" + ("s_sleep 1\n" if sleep else "") + f"s_branch {lab}\n{done}:")
    def lds_inc(self, off, vbase, vone):
        self(f"s_mov_b64 exec, 1\nds_add_u32 {vbase}, {vone} offset:{off}\ns_mov_b64 exec, -1")

INV576 = f2h(1.0/576)
def ln_finish(A, mean, var, rs):
    A(f"v_max_f32 {var}, 0, {var}")
    A.r1(mean, var)
    A(f"v_add_f32 {var}, 0x3727c5ac, {var}")
    A.r1(var)
    A(f"v_sqrt_f32 {var}, {var}\ns_nop 0")
    A.r1(var)
    A(f"v_rcp_f32 {rs}, {var}\ns_nop 0")

def dma_tile(A, srd, voff, rowstride, ldsbase, ninstr=72, nt=None):
    if nt is None: nt = A.nt
    A(f"s_mul_i32 s44, s3, {8*rowstride}\ns_lshl_b32 s45, s3, 10\ns_add_u32 s45, s45, {ldsbase}")
    for i in range((ninstr + 15)//16):
        skip = None
        if (i+1)*16 > ninstr:
            skip = A.label("DS")
            A(f"s_cmp_ge_u32 s3, {ninstr - 16*i}\ns_cbranch_scc1 {skip}")
        A(f"s_mov_b32 m0, s45\ns_add_u32 s45, s45, 16384")
        A(f"buffer_load_dwordx4 {voff}, s[{srd}:{srd+3}], s44 offen{nt} lds")
        A(f"s_add_u32 s44, s44, {128*rowstride}")
        if skip: A(f"{skip}:")

def bfrags(A, vaddr, vb=52, nks=18, rowb=128):
    base = 0
    for ks in range(nks):
        for half in range(2):
            off = (ks*32 + half*16) * rowb
            if off - base > 65535:
                A(f"v_add_u32 {vaddr}, {off - base}, {vaddr}"); base = off
            A(f"ds_read_b64_tr_b16 {vr(vb + ks*4 + half*2,2)}, {vaddr} offset:{off - base}")

def kv_chunk_base(A, rp, dst, t, SP):
    A(f"""
    s_lshr_b32 {t}, {rp}, 3
    s_lshl_b32 {dst}, s4, 1
    s_add_u32 {dst}, {dst}, {t}
    s_bfe_u32 {t}, {rp}, 0x10002
    s_lshl_b32 {t}, {t}, 4
    s_add_u32 {dst}, {dst}, {t}
    s_lshl_b32 {dst}, {dst}, 21
    s_and_b32 {t}, {rp}, 3
    s_lshl_b32 {t}, {t}, {SP}
    s_add_u32 {dst}, {dst}, {t}
    s_add_u32 {dst}, {dst}, {6144*256}
    """)

def gemv_mfma(A, vaaddr, vb=52, va=24, vd=20, depth=7, nks=18, mid=None):
    depth = min(depth, nks)
    def rd(ks):
        A(f"ds_read_b128 {vr(va + (ks % depth)*4,4)}, {vaaddr} offset:{ks*64}")
    for ks in range(depth): rd(ks)
    for ks in range(nks):
        issued = min(nks, depth + ks)
        A(f"s_waitcnt lgkmcnt({issued - ks - 1})")
        c = "0" if ks == 0 else vr(vd, 4)
        A(f"v_mfma_f32_16x16x32_bf16 {vr(vd,4)}, {vr(va + (ks % depth)*4,4)}, {vr(vb+ks*4,4)}, {c}")
        if ks + depth < nks: rd(ks + depth)
        if mid and ks == mid[0]: A(mid[1])

def fold8(A, n, a, b, t, swapb=True):
    for i in range(1, n):
        A(f"v_add_f32 v{a}, v{a}, v{a+2*i}\nv_add_f32 v{b}, v{b}, v{b+2*i}")
    A(f"""
    s_nop 1
    v_permlane32_swap_b32 v{a}, v{b}
    v_add_f32 v{a}, v{a}, v{b}
    v_mov_b32 v{t}, v{a}
    s_nop 1
    v_permlane16_swap_b32 v{a}, v{t}
    v_add_f32 v{a}, v{a}, v{t}
    s_nop 1
    v_add_f32_dpp v{a}, v{a}, v{a} row_ror:8 {DPPM}
    """)

def build(stamps=False, nt="nt", adelay=True, dbg=0, w2first=0, qs=2, ps=2, pt=1, diag=0, ql=0, rgw=0, il=2, trig=1, pf=0, fgs=13, ordr=0, nb1=0, nb2=0, mlt=0, c3=1, hq=0, fl=0, ppt=0, probe=0, cfm=6, x4=1, me=0, tm=96, dq=0, dv=0, ds5=0, nr=8, qpt=0, qv=1, qlay=1, pc=0, fpos=0, hs=0, hp=2, xk=0, wm=0, at=0, an=2, ks=2, tp=1):
    NJ = 18*ks; RW = 576//ks; JX = 4 if ks == 2 else 6
    CH, BL, SP = {0: (15, 13, 17), 1: (17, 15, 13), 2: (17, 13, 15)}[il]
    global SPIN, NLOC
    if diag: SPIN = 60; NLOC = 100
    A = G(stamps, nt)
    def vtail(n, level, w0):
        lab = A.label("VT")
        A(f"""
        s_sub_u32 s48, s3, {w0}
        s_cmp_ge_u32 s48, {n}
        s_cbranch_scc1 {lab}
        s_and_b32 s49, s48, 1
        s_lshl_b32 s50, s5, 1
        s_add_u32 s50, s50, s49
        """)
        kv_chunk_base(A, "s50", "s44", "s45", SP)
        A(f"""
        s_lshr_b32 s48, s48, 1
        s_sub_u32 s48, 3, s48
        s_lshl_b32 s48, s48, {BL}
        s_add_u32 s44, s44, s48
        s_add_u32 s44, s44, {level << CH}
        v_lshl_add_u32 v20, v1, 7, s44
        global_load_dword v125, v20, {sp(V_)}{A.nt}
        {lab}:
        """)
    NT = A.nt
    A.header(256, 1024, LDS_BYTES)
    A(f"""
    s_cmp_ge_u32 s2, 256
    s_cbranch_scc1 L_exit
    s_load_dwordx16 s[16:31], s[0:1], 0
    s_load_dwordx8 s[32:39], s[0:1], 64
    s_load_dwordx2 s[40:41], s[0:1], 96
    s_load_dwordx2 s[42:43], s[0:1], 112
    {'s_load_dwordx2 s[94:95], s[0:1], 104' if at else ''}
    v_lshrrev_b32 v2, 6, v0
    v_and_b32 v1, 63, v0
    s_and_b32 s4, s2, 7
    v_readfirstlane_b32 s3, v2
    s_lshr_b32 s5, s2, 3
    v_mov_b32 v3, 0
    """)
    if stamps:
        A("v_mov_b32 v127, 0\ns_memrealtime s[98:99]")
    A(f"""
    s_cmp_lg_u32 s5, 24
    s_cbranch_scc1 L_nopf
    s_getpc_b64 s[44:45]
    L_pfbase:
    s_sub_u32 s44, s44, L_pfbase-{NAME}_kernel
    s_subb_u32 s45, s45, 0
    v_lshlrev_b32 v4, 7, v0
    v_cmp_gt_u32 vcc, L_codeend-{NAME}_kernel, v4
    s_and_saveexec_b64 s[46:47], vcc
    s_cbranch_execz L_pfd
    global_load_dword v5, v4, s[44:45]
    L_pfd:
    s_mov_b64 exec, -1
    """)
    if tp:
        A(f"""
        s_min_u32 s44, s3, 14
        s_lshl_b32 s45, s44, 3
        s_load_dwordx2 s[60:61], s[0:1], s45
        s_lshl_b32 s44, s44, 1
        s_lshr_b32 s44, {(2<<6)|(2<<8)|(2<<12)|(2<<16)|(1<<22)}, s44
        s_and_b32 s44, s44, 3
        v_min_u32 v4, s44, v1
        v_lshlrev_b32 v4, 21, v4
        v_and_b32 v6, 1, v1
        v_bfe_u32 v7, v1, 1, 1
        v_lshl_or_b32 v6, v7, 4, v6
        s_lshl_b32 s44, s4, 1
        v_add_u32 v6, s44, v6
        v_lshlrev_b32 v6, 21, v6
        s_cmp_eq_u32 s3, 2
        s_cselect_b64 vcc, -1, 0
        v_or_b32 v6, 0x180000, v6
        v_cndmask_b32 v4, v4, v6, vcc
        s_mov_b64 exec, 15
        s_waitcnt lgkmcnt(0)
        global_load_dword v126, v4, s[60:61] nt
        s_mov_b64 exec, -1
        """)
    A(f"""
    L_nopf:
    s_cmp_lt_u32 s5, 16
    s_cbranch_scc1 L_A
    {'s_branch L_exit' if diag & 32 else ''}
    s_sub_u32 s5, s5, 16                  ; u
    s_sub_u32 s55, s2, {25*8}
    s_min_u32 s47, s4, {JX}
    s_mul_i32 s48, s4, {JX}
    s_add_u32 s47, s47, s48
    s_add_u32 s47, s47, s5
    s_sub_u32 s47, s47, 9
    s_mul_i32 s48, s47, 0xe39
    s_lshr_b32 s48, s48, 16               ; ksp
    s_mul_i32 s49, s48, 18
    s_sub_u32 s49, s47, s49               ; cgp
    s_mul_i32 s50, s48, {RW*6912}
    s_lshl_b32 s51, s49, 7
    s_add_u32 s50, s50, s51               ; M offset
    s_lshl_b32 s51, s4, 3
    s_add_u32 s51, s51, s5                ; qb
    s_lshl_b32 s52, s51, 7                ; B offset
    v_lshrrev_b32 v4, 3, v1
    v_bfe_u32 v6, v1, 4, 2
    v_lshlrev_b32 v6, 1, v6
    v_and_b32 v7, 7, v1
    v_xor_b32 v6, v6, v7
    s_movk_i32 s53, 6912
    s_lshl_b32 s44, s4, 1
    s_add_u32 s44, s44, s5
    s_lshl_b32 s44, s44, 8
    s_sub_u32 s44, s44, {28*128 - 2304}
    s_sub_u32 s45, s5, 8
    s_cmp_ge_u32 s45, {6 if me else 99}   ; u < 8 or u >= 14
    s_cselect_b32 s54, 72, {RW//8}             ; count
    s_cselect_b32 s50, s44, s50
    s_cselect_b32 s56, 0, s55
    s_cmp_lt_u32 s5, 8
    s_cselect_b32 s50, s52, s50
    s_cselect_b32 s53, 8192, s53          ; stride
    s_mul_i32 s10, s53, 576
    s_cselect_b32 s47, s51, s47
    s_cselect_b32 s55, 0, s55
    v_mul_u32_u24 v14, s53, v4
    v_lshl_add_u32 v14, v6, 4, v14
    v_add_u32 v15, s50, v14
    s_mov_b32 s11, 0x20000
    s_lshl_b32 s53, s53, 3
    s_mul_i32 s44, s3, s53
    s_lshl_b32 s53, s53, 4
    s_lshl_b32 s45, s3, 10
    s_mov_b32 s46, s3
    s_cmp_lt_u32 s5, 8
    s_waitcnt lgkmcnt(0)
    s_cselect_b32 s8, s{WQ_}, s{WM_}
    s_cselect_b32 s9, s{WQ_+1}, s{WM_+1}
    s_and_b32 s9, s9, 0xffff
    s_cmp_ge_u32 s56, {NJ}
    s_cbranch_scc1 L_W_nodma
    L_W_dma:
    s_mov_b32 m0, s45
    s_add_u32 s45, s45, 16384
    buffer_load_dwordx4 v15, s[8:11], s44 offen{'' if wm & 1 else NT} lds
    s_add_u32 s44, s44, s53
    s_add_u32 s46, s46, 16
    s_cmp_lt_u32 s46, s54
    s_cbranch_scc1 L_W_dma
    L_W_nodma:
    s_load_dword s6, {sp(WS_)}, {WS_EPOCH}
    s_branch L_W
    """)
    A(f"""
    L_A:
    """)
    if ordr:
        t0_, t1_ = {1: (0xd8, 0xd8), 2: (0xe4, 0xd2), 3: (0xd8, 0xd2)}[ordr]
        A(f"""
        s_bitcmp1_b32 s5, 0
        s_movk_i32 s44, {t0_}
        s_cselect_b32 s44, {t1_}, s44
        s_lshr_b32 s45, s3, 2
        s_lshl_b32 s45, s45, 1
        s_lshr_b32 s44, s44, s45
        s_and_b32 s44, s44, 3
        s_and_b32 s3, s3, 3
        s_lshl_b32 s44, s44, 2
        s_or_b32 s3, s3, s44
        """)
    A(f"""
    v_mov_b32 v4, {AL}
    v_lshl_add_u32 v5, v1, 2, v4
    v_bfe_i32 v6, v1, 5, 1
    ds_write_b32 v5, v6 offset:{L_CNT}
    s_lshr_b32 s44, s5, 3
    s_lshl_b32 s45, s4, 1
    s_add_u32 s46, s45, s44            ; hkv
    s_bfe_u32 s47, s5, 0x10002          ; b
    s_and_b32 s48, s5, 3                ; sp
    s_lshl_b32 s49, s47, 4
    s_add_u32 s49, s49, s46             ; b*16+hkv
    s_lshl_b32 s49, s49, 21
    s_lshl_b32 s50, s48, {SP}
    s_add_u32 s49, s49, s50
    s_add_u32 s49, s49, {6144*256}
    s_bfe_u32 s51, s3, 0x10002            ; g
    s_and_b32 s44, s3, 3
    s_lshl_b32 s50, s51, {CH+1}
    s_add_u32 s49, s49, s50
    s_lshl_b32 s50, s44, {BL}
    s_add_u32 s49, s49, s50
    s_lshl_b32 s45, s51, 3
    s_add_u32 s48, s44, s45
    v_and_b32 v9, 3, v1
    v_mov_b32 v7, 1
    s_cmp_ge_u32 s3, 8
    s_cbranch_scc1 L_AV
    s_add_u32 s49, s49, 4096
    v_bfe_u32 v5, v1, 2, 2
    v_lshlrev_b32 v5, 8, v5
    v_and_b32 v6, 48, v1
    v_lshl_or_b32 v5, v6, 2, v5
    v_lshl_or_b32 v5, v9, 4, v5
    s_waitcnt lgkmcnt(0)
    s_load_dword s6, {sp(WS_)}, {WS_EPOCH}
    s_add_u32 s52, s{K_}, s49
    s_addc_u32 s53, s{K_+1}, 0
    s_add_u32 s54, s52, {1 << CH}
    s_addc_u32 s55, s53, 0
    """)
    if adelay: A("s_waitcnt lgkmcnt(0)")
    A("s_barrier")
    if xk:
        A("s_sub_u32 s58, s52, 0x80000\ns_subb_u32 s59, s53, 0\ns_sub_u32 s60, s54, 0x80000\ns_subb_u32 s61, s55, 0")
        for t in range(16):
            A(f"global_load_dwordx4 {vr(32+4*t,4)}, v5, s[{58+2*(t>>3)}:{59+2*(t>>3)}] offset:{(t&7)*1024-4096}{NT}")
    for t in range(16):
        A(f"global_load_dwordx4 {vr(32+4*t,4)}, v5, s[{52+2*(t>>3)}:{53+2*(t>>3)}] offset:{(t&7)*1024-4096}{NT}")
    if stamps: A("s_waitcnt lgkmcnt(0)\nv_writelane_b32 v127, s98, 0")
    A.stamp(1)
    A(f"""
    v_bfe_u32 v8, v1, 2, 1
    v_lshlrev_b32 v8, 8, v8
    v_lshl_or_b32 v8, v6, 2, v8
    v_lshl_or_b32 v8, v9, 4, v8
    v_add_u32 v8, v4, v8
    v_bfe_u32 v11, v1, 4, 1
    v_mul_u32_u24 v10, {PSTR}, v11
    v_and_b32 v12, 1, v1
    v_lshl_add_u32 v10, v12, 5, v10
    v_lshrrev_b32 v13, 5, v1
    v_lshl_add_u32 v10, v13, 4, v10
    v_bfe_u32 v13, v1, 1, 1
    v_lshl_add_u32 v10, v13, 3, v10
    v_bfe_u32 v13, v1, 2, 2
    v_lshl_add_u32 v10, v13, 1, v10
    s_lshl_b32 s44, s48, 6
    s_add_u32 s44, s44, {AL + L_P}
    v_add_u32 v10, s44, v10
    v_mul_u32_u24 v12, {PSTR}, v12
    v_add3_u32 v12, v12, v6, v4
    v_lshl_add_u32 v11, v11, 5, v4
    v_and_b32 v13, 31, v1
    v_lshl_add_u32 v13, v13, 2, v4
    s_lshl_b32 s44, s3, 2
    v_add_u32 v11, s44, v11
    v_bfe_u32 v17, v1, 4, 1
    v_lshl_add_u32 v17, v17, 5, v11
    v_and_b32 v18, 32, v1
    v_add_u32 v17, v17, v18
    v_bfe_u32 v14, v1, 2, 3
    v_xor_b32 v14, s3, v14
    v_lshlrev_b32 v14, 5, v14
    v_lshrrev_b32 v15, 2, v1
    v_lshl_or_b32 v14, v15, 8, v14
    v_lshl_or_b32 v14, v9, 3, v14
    v_add_u32 v15, {12*8192}, v14
    v_and_b32 v14, 15, v1
    v_lshl_add_u32 v14, v14, 3, v4
    s_lshl_b32 s44, s3, 7
    v_add_u32 v14, s44, v14
    s_mov_b32 s58, 0x22222222
    s_mov_b32 s59, 0x22222222
    s_mov_b32 s60, 0x44444444
    s_mov_b32 s61, 0x44444444
    s_mov_b32 s62, 0x88888888
    s_mov_b32 s63, 0x88888888
    s_lshl_b32 s44, s47, 14
    s_lshl_b32 s45, s46, 10
    s_add_u32 s44, s44, s45
    s_lshl_b32 s45, s3, 7
    s_add_u32 s44, s44, s45
    s_add_u32 s44, s44, {WS_QG}
    s_add_u32 s56, s{WS_}, s44
    s_addc_u32 s57, s{WS_+1}, 0
    s_lshl_b32 s50, s4, 4
    s_add_u32 s50, s50, s5
    s_lshl_b32 s50, s50, 10
    s_add_u32 s50, s50, s45
    s_add_u32 s50, s50, {WS_OG}
    v_lshl_add_u32 v6, v1, 3, s50
    s_waitcnt lgkmcnt(0)
    """)
    A.mktag()
    A(f"""
    """)
    if qlay:
        A(f"""
        s_sub_u32 s44, s44, {WS_QG}
        s_lshl_b32 s44, s44, 3
        s_add_u32 s44, s44, {WS_QL}
        s_add_u32 s52, s{WS_}, s44
        s_addc_u32 s53, s{WS_+1}, 0
        """)
    else:
        A(f"s_add_u32 s52, s56, {WS_QL - WS_QG}\ns_addc_u32 s53, s57, 0")
    A(f"""
    s_waitcnt vmcnt(0)
    """)
    if qv:
        A.lds_inc(L_CNT+12, "v4", "v7")
        A.lds_spin(L_CNT+12, 8, "v16", "v4")
    A(f"""
    s_mov_b32 s7, {0 if ql else nr}
    L_A_qpoll:
    s_add_u32 s7, s7, 1
    s_cmp_gt_u32 s7, {SPIN}
    s_cbranch_scc1 L_end
    s_cmp_gt_u32 s7, {nr}
    s_cbranch_scc1 L_A_qg
    s_load_dwordx16 s[64:79], s[52:53], 0
    s_load_dwordx16 s[80:95], s[52:53], 64
    s_add_u32 s52, s52, {128 if qlay else 32768}
    s_addc_u32 s53, s53, 0
    s_branch L_A_qc
    L_A_qr:
    s_sleep {qs}
    s_branch L_A_qpoll
    L_A_qg:
    s_load_dwordx16 s[64:79], s[56:57], 0 glc
    s_load_dwordx16 s[80:95], s[56:57], 64 glc
    L_A_qc:
    s_waitcnt lgkmcnt(0)
    """)
    for i in range(16):
        A(f"s_cmp_lg_u32 s{65+2*i}, {TAG}\ns_cbranch_scc1 L_A_qr")
    A("s_mov_b64 exec, 1")
    for i in range(16):
        A(f"v_mov_b32 v{96+i}, s{64+2*i}")
    A(f"s_lshl_b32 s44, s3, 6\nv_add_u32 v20, s44, v4")
    for i in range(4):
        A(f"ds_write_b128 v20, {vr(96+4*i,4)} offset:{L_Q+16*i}")
    A(f"""
    ds_add_u32 v4, v7 offset:{L_CNT}
    s_mov_b64 exec, -1
    s_mov_b32 s56, 0xff00ff00
    s_mov_b32 s57, 0xff00ff00
    """)
    A.lds_spin(L_CNT, 8, "v16", "v4", sleep=False)
    A.stamp(2)
    A(f"ds_read_b128 v[20:23], v8 offset:{L_Q}\ns_waitcnt lgkmcnt(0)")
    for i in range(4):
        A(f"v_cndmask_b32 v{24+i}, 0, v{20+i}, s[56:57]")
        A(f"v_cndmask_b32 v{20+i}, v{20+i}, 0, s[56:57]")
    A("s_waitcnt vmcnt(0)\ns_nop 0")
    D = [96, 32]
    def qk(z, i):
        u = i & 3
        if i < 4: A(f"v_mfma_f32_16x16x32_bf16 {vr(D[z]+4*u,4)}, v[20:23], {vr(32+32*z+8*u,4)}, 0")
        else: A(f"v_mfma_f32_16x16x32_bf16 {vr(D[z]+4*u,4)}, v[24:27], {vr(36+32*z+8*u,4)}, {vr(D[z]+4*u,4)}")
    def red(z, u):
        t = 112 + 4*z
        A(f"v_mov_b32_dpp v{t+u}, v{D[z]+4*u} quad_perm:[0,0,0,0] {DPPM}")
        for c in range(1, 4):
            A(f"v_add_f32_dpp v{t+u}, v{D[z]+4*u+c}, v{t+u} quad_perm:[{c},{c},{c},{c}] {DPPM}")
    for i in range(8): qk(0, i)
    for i in range(5): qk(1, i)
    for u in range(3):
        red(0, u); qk(1, 5+u)
    red(0, 3)
    for k, m in ((1, 58), (2, 60), (3, 62)):
        A(f"v_cndmask_b32 v112, v112, v{112+k}, s[{m}:{m+1}]")
    for u in range(4): red(1, u)
    A.stamp(3)
    for k, m in ((1, 58), (2, 60), (3, 62)):
        A(f"v_cndmask_b32 v116, v116, v{116+k}, s[{m}:{m+1}]")
    A.r1("v112", "v116")
    A("v_mul_f32 v112, 0x3db504f3, v112\nv_mul_f32 v116, 0x3db504f3, v116")
    A.r1("v112", "v116")
    A("v_max_f32 v113, v112, v116")
    A.row_reduce("v_max_f32", ["v113"])
    A(f"""
    s_mov_b32 exec_lo, 0x10001
    s_mov_b32 exec_hi, 0x10001
    ds_write_b32 v17, v113 offset:{L_MX}
    s_mov_b64 exec, -1
    ds_read_b32 v118, v4 offset:{L_CNT+28}
    v_mul_f32 v112, {hex(LOG2E)}, v112
    v_mul_f32 v116, {hex(LOG2E)}, v116
    s_mov_b32 s45, {hex(LOG2E)}
    """)
    A.spin_head("L_A_mx")
    A(f"""
    ds_read_b32 v113, v13 offset:{L_MX}
    s_waitcnt lgkmcnt(0)
    v_cmp_eq_u32 vcc, -1, v113
    s_cbranch_vccnz L_A_mx
    v_readfirstlane_b32 s67, v118
    """)
    A.row_reduce("v_max_f32", ["v113"])
    A(f"""
    v_fma_f32 v112, -v113, s45, v112
    v_fma_f32 v116, -v113, s45, v116
    v_exp_f32 v112, v112
    v_exp_f32 v116, v116
    s_nop 0
    v_cvt_pk_bf16_f32 v115, v112, v116
    ds_write_b16 v10, v115
    ds_write_b16_d16_hi v10, v115 offset:256
    v_add_f32 v112, v112, v116
    """)
    A.row_reduce("v_add_f32", ["v112"])
    A(f"""
    s_mov_b32 exec_lo, 0x10001
    s_mov_b32 exec_hi, 0x10001
    ds_write_b32 v17, v112 offset:{L_LS}
    s_mov_b64 exec, 1
    ds_add_u32 v4, v7 offset:{L_CNT+8}
    s_mov_b64 exec, -1
    v_mov_b32 v20, v113
    """)
    def vreads3():
        for k in range(4):
            for half in range(2):
                A(f"ds_read_b64_tr_b16 {vr(32+4*k+2*half,2)}, v15 offset:{k*8192 + half*4096}")
    A("s_cmp_lt_u32 s67, 4\ns_cbranch_scc1 L_A_np")
    vreads3()
    A("L_A_np:")
    A.lds_spin(L_CNT+8, 8, "v16", "v4", sleep=False)
    A.stamp(4)
    for k in range(4):
        A(f"ds_read_b128 {vr(64+4*k,4)}, v12 offset:{L_P + (12+k)*64}")
    A(f"""
    s_cmp_lg_u32 s3, 0
    s_cbranch_scc1 L_A_nml
    ds_read_b32 v21, v13 offset:{L_LS}
    s_lshl_b32 s50, s4, 4
    s_add_u32 s50, s50, s5
    s_lshl_b32 s50, s50, 7
    s_add_u32 s50, s50, {WS_MLG}
    v_mov_b32 v24, s50
    v_mov_b32 v22, v20
    s_waitcnt lgkmcnt(0)
    """)
    A.row_reduce("v_add_f32", ["v21"])
    A("""
    v_mov_b32 v23, v21
    v_permlane16_swap_b32 v20, v22
    s_nop 0
    v_permlane16_swap_b32 v21, v23
    """)
    for r in range(20, 24): A.epack(f"v{r}", f"v{r}")
    A("s_mov_b64 exec, 1")
    A.dual_store("global_store_dwordx4", "v24", "v[20:23]")
    A("s_mov_b64 exec, -1")
    A.stamp(7)
    A("L_A_nml:")
    def vm(k, wait):
        A(f"s_waitcnt lgkmcnt({wait})")
        A(f"v_mfma_f32_16x16x32_bf16 v[112:115], {vr(64+4*k,4)}, {vr(32+4*k,4)}, {'0' if k == 0 else 'v[112:115]'}")
    def pd():
        A.lds_spin(L_CNT+32, 4, "v120", "v4", sleep=False)
        A(f"ds_read_b64 v[118:119], v14 offset:{L_PD}")
    A("s_cmp_lt_u32 s67, 4\ns_cbranch_scc1 L_A_slow")
    for k in range(4): vm(k, 3-k)
    A("L_A_pd:")
    pd()
    A("s_waitcnt lgkmcnt(0)\ns_branch L_A_fin\nL_A_slow:")
    A.spin_head("L_A_w")
    A(f"""
    ds_read2_b32 v[120:121], v4 offset0:{(L_CNT+28)//4} offset1:{(L_CNT+32)//4}
    s_waitcnt lgkmcnt(0)
    v_readfirstlane_b32 s44, v120
    v_readfirstlane_b32 s45, v121
    s_cmp_ge_u32 s45, 4
    s_cbranch_scc1 L_A_y
    s_cmp_lt_u32 s44, 4
    s_cbranch_scc1 L_A_w
    """)
    vreads3()
    for k in range(4): vm(k, 6-2*k)
    A(f"s_branch L_A_pd\nL_A_y:\nds_read_b64 v[118:119], v14 offset:{L_PD}\ns_cmp_ge_u32 s44, 4\ns_cbranch_scc1 L_A_y2")
    A.lds_spin(L_CNT+28, 4, "v120", "v4", sleep=False)
    A("L_A_y2:")
    vreads3()
    for k in range(4): vm(k, 6-2*k)
    A("s_nop 6\nL_A_fin:\ns_mov_b64 exec, 0xffff\nv_add_f32 v112, v112, v118\nv_add_f32 v113, v113, v119")
    A.epack("v116", "v112"); A.epack("v117", "v113")
    A.dual_store("global_store_dwordx2", "v6", "v[116:117]")
    A("s_mov_b64 exec, -1")
    A.stamp(6)
    A("s_branch L_end")
    A(f"""
    L_AV:
    s_lshl_b32 s45, s48, 13
    s_mov_b32 s44, s49                    ; soffset
    v_lshrrev_b32 v5, 4, v1
    v_lshlrev_b32 v6, 1, v5
    v_and_b32 v8, 15, v1
    v_xor_b32 v6, v6, v8
    v_lshlrev_b32 v6, 4, v6
    v_lshl_or_b32 v5, v5, 8, v6
    v_xor_b32 v6, 128, v5
    s_waitcnt lgkmcnt(0)
    s_load_dword s6, {sp(WS_)}, {WS_EPOCH}
    """)
    A.srd(8, V_, 0x4000000)
    A("s_barrier")
    for hf in range(2):
        for q4 in range(2):
            A("s_mov_b32 m0, s45\ns_nop 0")
            for n in range(4):
                A(f"buffer_load_dwordx4 {'v6' if n & 1 else 'v5'}, s[8:11], s44 offen offset:{n*1024}{NT} lds")
            if q4 == 0: A("s_add_u32 s45, s45, 4096\ns_add_u32 s44, s44, 4096")
            elif hf == 0: A(f"s_add_u32 s45, s45, {4*8192 - 4096}\ns_add_u32 s44, s44, {(1 << CH) - 4096}")
    if stamps: A("s_waitcnt lgkmcnt(0)\nv_writelane_b32 v127, s98, 0")
    A.stamp(1)
    if pf:
        A(f"""
        s_cmp_lt_u32 s3, 11
        s_cbranch_scc1 L_AV_np
        s_mul_i32 s45, s5, 5
        s_add_u32 s45, s45, s3
        s_lshl_b32 s50, s45, 6
        s_sub_u32 s50, s50, {10*64}
        s_lshl_b32 s44, s51, 3
        v_add_u32 v5, s44, v4
        v_add_u32 v20, s50, v1
        v_mul_u32_u24 v21, 0x1c72, v20
        v_lshrrev_b32 v21, 16, v21
        v_mul_u32_u24 v22, 9, v21
        v_sub_u32 v22, v20, v22
        v_mul_u32_u24 v21, 9216, v21
        v_lshl_add_u32 v21, v22, 7, v21
        s_mul_i32 s50, s4, 1152
        v_add_u32 v21, s50, v21
        global_load_dword v29, v21, {sp(W1_)}{NT}
        s_mov_b64 exec, 1
        s_waitcnt vmcnt(9)
        ds_add_u32 v5, v7 offset:{L_CNT+16}
        s_waitcnt vmcnt(1)
        ds_add_u32 v5, v7 offset:{L_CNT+20}
        s_mov_b64 exec, -1
        """)
        A.stamp(5)
        A("s_waitcnt vmcnt(0) lgkmcnt(0)\ns_branch L_end\nL_AV_np:")
    if at == 3: A("""
        s_and_b32 s44, s5, 3
        s_cmp_lg_u32 s44, 0
        s_cbranch_scc1 L_AV_ns
        s_cmp_lg_u32 s3, 12
        s_cbranch_scc1 L_AV_ns
        s_lshl_b32 s44, s4, 5
        s_add_u32 s94, s94, s44
        s_addc_u32 s95, s95, 0
        s_mov_b32 s44, 1
        s_atomic_add s44, s[94:95], 0
        L_AV_ns:
        """)
    A(f"""
    s_lshl_b32 s44, s51, 3
    v_add_u32 v5, s44, v4
    s_mov_b64 exec, 1
    s_waitcnt vmcnt(8)
    ds_add_u32 v5, v7 offset:{L_CNT+16}
    """)
    if at == 1: A("""
        s_and_b32 s44, s5, 3
        s_cmp_lg_u32 s44, 0
        s_cbranch_scc1 L_AV_ns
        s_cmp_lg_u32 s3, 8
        s_cbranch_scc1 L_AV_ns
        s_lshl_b32 s44, s4, 5
        s_add_u32 s94, s94, s44
        s_addc_u32 s95, s95, 0
        s_mov_b32 s44, 1
        s_atomic_add s44, s[94:95], 0
        L_AV_ns:
        """)
    A(f"""
    s_waitcnt vmcnt(0)
    {f's_sleep {dv}' if dv else ''}
    ds_add_u32 v5, v7 offset:{L_CNT+20}
    s_mov_b64 exec, -1
    """)
    if at == 2: A("""
        s_and_b32 s44, s5, 3
        s_cmp_lg_u32 s44, 0
        s_cbranch_scc1 L_AV_ns
        s_cmp_lg_u32 s3, 8
        s_cbranch_scc1 L_AV_ns
        s_lshl_b32 s44, s4, 5
        s_add_u32 s94, s94, s44
        s_addc_u32 s95, s95, 0
        s_mov_b32 s44, 1
        s_atomic_add s44, s[94:95], 0
        L_AV_ns:
        """)
    A.stamp(5)
    A(f"""
    s_waitcnt lgkmcnt(0)
    s_cmp_ge_u32 s3, 12
    s_cbranch_scc1 L_end
    s_and_b32 s45, s3, 3
    s_lshl_b32 s45, s45, 1
    v_bfe_u32 v5, v1, 2, 3
    v_xor_b32 v5, s45, v5
    v_lshlrev_b32 v5, 5, v5
    v_lshrrev_b32 v6, 2, v1
    v_lshl_or_b32 v5, v6, 8, v5
    v_lshl_or_b32 v5, v9, 3, v5
    v_xor_b32 v6, 32, v5
    v_and_b32 v3, 1, v1
    v_mul_u32_u24 v3, {PSTR}, v3
    v_and_b32 v2, 48, v1
    v_add3_u32 v3, v3, v2, v4
    v_lshl_add_u32 v2, v8, 3, v4
    s_lshl_b32 s45, s45, 7
    v_add_u32 v2, s45, v2
    """)
    def B(t, ks): return 16 + 8*ks + 4*t
    def tr(ks0, ks1):
        for ks in range(ks0, ks1):
            for t in range(2):
                for half in range(2):
                    A(f"ds_read_b64_tr_b16 {vr(B(t,ks)+2*half,2)}, v{5+t} offset:{(ks&7)*8192 + half*4096}")
    def chain(ks0, ks1):
        n = ks1 - ks0
        free = [112, 116, 120]; loc = {}; issued = 0
        def issue():
            nonlocal issued
            while free and issued < n:
                loc[issued] = free.pop(0)
                A(f"ds_read_b128 {vr(loc[issued],4)}, v3 offset:{L_P + (ks0+issued)*64}")
                issued += 1
        issue()
        for i in range(n):
            ks = ks0 + i
            A(f"s_waitcnt lgkmcnt({issued - i - 1})")
            for t in range(2):
                A(f"v_mfma_f32_16x16x32_bf16 {vr(8+4*t,4)}, {vr(loc[i],4)}, {vr(B(t,ks),4)}, {'0' if ks == 0 else vr(8+4*t,4)}")
            free += [B(0, ks), loc[i], B(1, ks)]
            issue()
    A.lds_spin(L_CNT+20, 4, "v124", "v4")
    tr(0, 8)
    A("v_add_u32 v5, 0x10000, v5\nv_add_u32 v6, 0x10000, v6")
    A.spin_head("L_AV_w")
    A(f"""
    ds_read2_b32 v[124:125], v4 offset0:{(L_CNT+8)//4} offset1:{(L_CNT+24)//4}
    s_waitcnt lgkmcnt(0)
    v_readfirstlane_b32 s44, v125
    v_readfirstlane_b32 s45, v124
    s_cmp_ge_u32 s44, 4
    s_cbranch_scc1 L_AV_x
    s_cmp_lt_u32 s45, 8
    s_cbranch_scc1 L_AV_w
    """)
    chain(0, 8)
    A.lds_spin(L_CNT+24, 4, "v124", "v4", sleep=False)
    tr(8, 12)
    chain(8, 12)
    A("s_branch L_AV_f\nL_AV_x:")
    tr(8, 12)
    A.lds_spin(L_CNT+8, 8, "v124", "v4", sleep=False)
    chain(0, 12)
    A(f"""
    L_AV_f:
    s_mov_b64 exec, 0xffff
    s_nop 6
    ds_write_b64 v2, v[8:9] offset:{L_PD}
    ds_write_b64 v2, v[12:13] offset:{L_PD+128}
    s_mov_b64 exec, 1
    ds_add_u32 v4, v7 offset:{L_CNT+32}
    s_mov_b64 exec, -1
    s_waitcnt lgkmcnt(0)
    """)
    A.stamp(8)
    A("s_branch L_end")

    A("L_W:")
    if stamps: A("v_writelane_b32 v127, s98, 0")
    A.stamp(1)
    A(f"""
    v_mov_b32 v18, {L_WCNT}
    ds_write2_b32 v18, v3, v3 offset1:1
    ds_write_b32 v18, v3 offset:8
    v_lshrrev_b32 v8, 5, v0
    v_lshlrev_b32 v8, 6, v8
    v_bfe_u32 v9, v0, 2, 2
    v_lshl_or_b32 v8, v9, 4, v8
    v_bfe_u32 v9, v0, 4, 1
    v_lshl_or_b32 v8, v9, 3, v8
    v_and_b32 v9, 3, v0
    v_lshl_or_b32 v8, v9, 1, v8
    v_add_u32 v8, {L_ACT}, v8
    s_and_b32 s46, s3, 3
    v_bfe_u32 v10, v1, 3, 2
    v_xor_b32 v10, s46, v10
    v_lshlrev_b32 v10, 5, v10
    v_lshrrev_b32 v11, 2, v1
    v_lshl_or_b32 v10, v11, 7, v10
    v_lshl_or_b32 v10, v9, 3, v10
    v_and_b32 v11, 48, v1
    v_add_u32 v11, {L_ACT}, v11
    v_and_b32 v12, 1, v1
    v_mul_u32_u24 v12, {4*ASTR}, v12
    v_add_u32 v12, v11, v12
    v_and_b32 v13, 4, v1
    v_mul_u32_u24 v13, {ASTR}, v13
    v_add_u32 v13, v11, v13
    v_mov_b32 v17, 1
    s_cmp_eq_u32 s5, 8
    s_cbranch_scc1 L_KT
    s_cbranch_scc0 L_Wd
    L_Wd:
    s_cmp_gt_u32 s5, 8
    s_cbranch_scc1 L_M
    s_waitcnt lgkmcnt(0)
    """)
    A.mktag()
    A(f"""
    s_barrier
    {'s_waitcnt vmcnt(0)' + chr(10) + 's_branch L_end' if diag & 4 else ''}
    s_cmp_ge_u32 s3, 9
    s_cbranch_scc1 L_B_nh
    s_mul_i32 s44, s4, 4608
    s_add_u32 s44, s44, {WS_HL}
    v_lshl_add_u32 v15, v0, 3, s44
    global_load_dwordx2 v[24:25], v15, {sp(WS_)} sc1
    s_waitcnt vmcnt(0)
    """)
    A.lds_inc(0, "v18", "v17")
    A.stamp(2)
    if nb1: vtail(nb1, 2, 0)
    A("s_mov_b32 s7, 0\ns_branch L_B_chk")
    A.dual_head("L_B_h", ["v15"], init=False)
    A(f"s_sleep {ps}")
    A(f"global_load_dwordx2 v[24:25], v15, {sp(WS_)} sc1\ns_waitcnt vmcnt(0)\nL_B_chk:")
    A.tagcheck(["v25"], None, None, "L_B_h")
    A(f"""
    ds_write_b16 v8, v24
    ds_write_b16_d16_hi v8, v24 offset:{4*ASTR}
    s_waitcnt lgkmcnt(0)
    """)
    A.stamp(3)
    A(f"""
    s_barrier
    s_branch L_S5
    L_B_nh:
    """)
    if ql and qpt:
        A(f"""
        s_cmp_lg_u32 s3, 9
        s_cbranch_scc1 L_B_npt
        v_bfe_u32 v15, v1, 4, 1
        v_lshlrev_b32 v15, 17, v15            ; b*16384*8
        v_and_b32 v16, 15, v1
        v_lshl_or_b32 v15, v16, 7, v15
        s_lshl_b32 s44, s47, 11
        s_add_u32 s44, s44, {WS_QL}
        v_add_u32 v15, s44, v15
        global_load_dword v16, v15, {sp(WS_)}{' nt' if qpt == 2 else ' sc1'}
        L_B_npt:
        """)
    A("s_waitcnt vmcnt(0)")
    A.lds_inc(0, "v18", "v17")
    A(f"""
    s_cmp_ge_u32 s3, 12
    s_cbranch_scc1 L_B_m
    s_waitcnt lgkmcnt(0)
    s_barrier
    s_branch L_S5
    L_B_m:
    """)
    A.lds_spin(0, 16, "v16", "v18")
    A.stamp(2)
    A("v_mov_b32 v15, v10")
    bfrags(A, "v15")
    A(f"""
    s_lshl_b32 s44, s47, 8
    s_lshl_b32 s45, s46, 6
    s_add_u32 s44, s44, s45
    s_add_u32 s44, s44, {WS_QG}
    v_and_b32 v15, 15, v1
    v_lshlrev_b32 v15, 2, v15
    v_bfe_u32 v16, v1, 4, 1
    v_lshl_or_b32 v15, v16, 14, v15
    v_add_u32 v15, s44, v15
    """)
    if qlay:
        A(f"""
        v_subrev_u32 v16, {WS_QG}, v15
        v_and_b32 v17, 0x78, v16
        v_and_b32 v16, 0xffffff80, v16
        v_lshl_or_b32 v16, v16, 3, v17
        v_and_b32 v17, 1, v1
        v_lshl_add_u32 v16, v17, 7, v16
        v_lshrrev_b32 v17, 5, v1
        v_lshl_add_u32 v16, v17, 8, v16
        v_add_u32 v16, {WS_QL}, v16
        """)
    else:
        A(f"""
    v_and_b32 v16, -8, v15
    v_and_b32 v17, 1, v1
    v_lshl_add_u32 v16, v17, 15, v16
    v_lshrrev_b32 v17, 5, v1
    v_lshl_add_u32 v16, v17, 16, v16
    v_add_u32 v16, {WS_QL - WS_QG}, v16
""")
    A(f"""
    s_waitcnt lgkmcnt(0)
    s_barrier
    """)
    gemv_mfma(A, "v13")
    A(f"""
    s_nop 7
    v_mov_b32_dpp v21, v20 quad_perm:[1,1,3,3] {DPPM}
    v_mov_b32_dpp v20, v20 quad_perm:[0,0,2,2] {DPPM}
    v_mov_b32 v23, {TAG}
    v_cvt_pk_bf16_f32 v22, v20, v21
    """)
    if ql:
        for i in range(nr//4):
            A(f"global_store_dwordx2 v16, v[22:23], {sp(WS_)}")
            if i < nr//4 - 1: A(f"v_add_u32 v16, {512 if qlay else 4*32768}, v16")
    A(f"""
    s_mov_b32 exec_lo, 0x55555555
    s_mov_b32 exec_hi, 0
    global_store_dwordx2 v15, v[22:23], {sp(WS_)} sc1
    s_mov_b64 exec, -1
    """)
    A.stamp(4)
    A("s_branch L_S5")

    A(f"""
    L_M:
    """)
    if me:
        A(f"s_cmp_lt_u32 s5, 14\ns_cbranch_scc1 L_M_n2\nv_add_u32 v16, 128, v15\ns_barrier")
        dma_tile(A, 8, "v16", 6912, L_BUF1, 72)
        A("s_barrier\nL_M_n2:")
    A(f"""
    s_cmp_ge_u32 s3, 9
    s_cbranch_scc1 L_M_bar0
    v_lshlrev_b32 v15, 1, v0
    global_load_ushort v16, v15, {sp(C_)}
    global_load_ushort v17, v15, {sp(C_)} offset:1152
    s_waitcnt vmcnt(0)
    v_lshlrev_b32 v16, 16, v16
    v_lshlrev_b32 v17, 16, v17
    v_mul_f32 v34, 0xbfb8aa3b, v16
    v_mul_f32 v35, 0xbfb8aa3b, v17
    v_exp_f32 v34, v34
    v_exp_f32 v35, v35
    s_nop 0
    v_add_f32 v34, 1.0, v34
    v_add_f32 v35, 1.0, v35
    v_rcp_f32 v34, v34
    v_rcp_f32 v35, v35
    s_nop 0
    v_mul_f32 v16, v16, v34
    v_mul_f32 v17, v17, v35
    v_cvt_pk_bf16_f32 v16, v16, v17
    ds_write_b16 v8, v16
    ds_write_b16_d16_hi v8, v16 offset:{4*ASTR}
    L_M_bar0:
    s_mul_i32 s44, s48, {RW*2}
    v_add_u32 v15, s44, v12
    s_mul_i32 s44, s48, {AGS}
    s_lshl_b32 s45, s49, 9
    s_add_u32 s44, s44, s45
    s_lshl_b32 s45, s46, 7
    s_add_u32 s44, s44, s45
    s_add_u32 s44, s44, {WS_AG}
    v_lshl_add_u32 v18, v1, {4 if x4 else 3}, s44
    s_waitcnt vmcnt(0) lgkmcnt(0)
    L_M_skip:
    """)
    A.mktag()
    A("s_barrier")
    A.stamp(2)
    A(f"s_cmp_lt_u32 s3, 12\ns_cbranch_scc1 L_M_bar1\ns_cmp_ge_u32 s55, {NJ}\ns_cbranch_scc1 L_M_bar1")
    bfrags(A, "v10", 52, RW//32)
    gemv_mfma(A, "v15", nks=RW//32)
    A("s_mov_b64 exec, 0xffff\ns_nop 6\nv_add_u32 v20, 4, v20\nv_add_u32 v21, 4, v21")
    A.epack("v22", "v20", 7); A.epack("v23", "v21", 7)
    if x4:
        A(f"s_nop 0\nv_mov_b32_dpp v24, v22 row_ror:8 {DPPM}\nv_mov_b32_dpp v25, v23 row_ror:8 {DPPM}\ns_mov_b64 exec, 0xff")
        A(f"global_store_dwordx4 v18, v[22:25], {sp(WS_)} sc1\ns_mov_b64 exec, -1")
    else:
        A(f"global_store_dwordx2 v18, v[22:23], {sp(WS_)} sc1\ns_mov_b64 exec, -1")
    A.stamp(3)
    A(f"""
    L_M_bar1:
    s_sub_u32 s44, s5, 9
    s_lshl_b32 s50, s44, 1                ; slot0 = 2(u-9)
    s_add_u32 s51, s50, 1
    s_add_u32 s45, s4, 44
    s_cmp_ge_u32 s4, 4
    s_cselect_b32 s45, s45, 255
    s_cmp_eq_u32 s5, 13
    s_cselect_b32 s51, s45, s51
    s_lshl_b32 s44, s4, 1
    s_add_u32 s44, s44, s5
    s_lshl_b32 s44, s44, 1
    s_sub_u32 s44, s44, {28 - 16}
    s_add_u32 s45, s44, 1
    s_cmp_ge_u32 s5, 14
    s_cselect_b32 s50, s44, s50
    s_cselect_b32 s51, s45, s51
    v_mul_u32_u24 v19, 1152, v4
    v_lshl_add_u32 v19, v6, 4, v19
    s_mul_i32 s44, s4, {512*1152}
    v_add_u32 v19, s44, v19
    """)
    A.srd(12, WO_, 4096*1152)
    A("s_barrier")
    if pt:
        A(f"""
        s_cmp_ge_u32 s3, 3
        s_cbranch_scc1 L_M_pt
        s_cmp_lg_u32 s5, 13
        s_cbranch_scc1 L_M_pt
        s_lshl_b32 s44, s4, 14
        s_lshl_b32 s45, s3, 13
        s_add_u32 s44, s44, s45
        s_add_u32 s44, s44, {WS_OG}
        s_lshl_b32 s45, s4, 11
        s_add_u32 s45, s45, {WS_MLG}
        s_cmp_eq_u32 s3, 2
        s_cselect_b32 s44, s45, s44
        s_cselect_b32 s45, 15, 63
        v_and_b32 v16, s45, v1
        v_lshl_add_u32 v16, v16, 7, s44
        global_load_dword v20, v16, {sp(WS_)} sc1
        L_M_pt:
        """)
    if me: A("s_cmp_ge_u32 s5, 14\ns_cbranch_scc1 L_sl1_d")
    for sl, (reg, buf) in enumerate((("s50", L_BUF0), ("s51", L_BUF1))):
        A(f"""
        s_lshl_b32 s52, {reg}, 7
        s_cmp_ge_u32 {reg}, 16
        s_cbranch_scc1 L_sl{sl}_m
        v_add_u32 v16, s52, v19
        """)
        dma_tile(A, 12, "v16", 1152, buf, 64, '' if wm & 2 else NT)
        A(f"""
        s_branch L_sl{sl}_d
        L_sl{sl}_m:
        s_cmp_eq_u32 {reg}, 255
        s_cbranch_scc1 L_sl{sl}_d
        s_add_u32 s52, s52, {2304 - 16*128}
        v_add_u32 v16, s52, v14
        """)
        dma_tile(A, 8, "v16", 6912, buf, 72, '' if wm & 2 else NT)
        A(f"L_sl{sl}_d:")
    A("s_waitcnt vmcnt(0)\ns_barrier")
    A.stamp(4)
    if diag & 8: A("s_branch L_end")
    A(f"""
    s_cmp_lt_u32 s3, 8
    s_cbranch_scc1 L_H_p
    s_cmp_ge_u32 s3, 12
    s_cselect_b32 s50, s51, s50
    s_cselect_b32 s44, {L_BUF1}, 0
    v_add_u32 v17, s44, v10
    s_cmp_lt_u32 s50, 16
    s_cbranch_scc1 L_A_s4m
    s_cmp_eq_u32 s50, 255
    s_cbranch_scc1 L_H_x
    s_lshl_b32 s44, s50, 9
    s_lshl_b32 s45, s46, 7
    s_add_u32 s44, s44, s45
    s_add_u32 s44, s44, {WS_MG - 16*512}
    v_lshl_add_u32 v18, v1, 3, s44
    """)
    bfrags(A, "v17")
    gemv_mfma(A, "v12")
    A(f"""
    s_mov_b64 exec, 0xffff
    s_nop 6
    v_cvt_pk_bf16_f32 v22, v20, v21
    v_mov_b32 v23, {TAG}
    global_store_dwordx2 v18, v[22:23], {sp(WS_)} sc1
    s_mov_b64 exec, -1
    """)
    A.stamp(5)
    A(f"""
    L_H_x:
    s_cmp_eq_u32 s5, 15
    s_cbranch_scc1 L_XR
    s_branch L_end
    L_H_p:
    """)
    if trig and not at:
        A(f"""
        s_cmp_lg_u32 s3, 0
        s_cbranch_scc1 L_M_tr
        s_lshl_b32 s52, s4, 3
        s_add_u32 s52, s52, s5
        s_lshl_b32 s52, s52, 7
        s_add_u32 s52, s52, {WS_TR - 9*128}
        v_mov_b32 v20, s52
        v_mov_b32 v19, {TAG}
        global_store_dword v20, v19, {sp(WS_)}
        L_M_tr:
        """)
    A("s_cmp_ge_u32 s5, 14\ns_cbranch_scc1 L_H_x")
    A(f"""
    s_lshl_b32 s50, s4, 4
    s_lshr_b32 s45, s3, 1
    s_lshl_b32 s45, s45, 2
    s_add_u32 s50, s50, s45
    s_and_b32 s44, s3, 1                  ; dh
    s_lshl_b32 s51, s50, 7
    s_add_u32 s51, s51, {WS_MLG}
    v_bfe_u32 v18, v1, 2, 2
    v_lshlrev_b32 v18, 7, v18
    v_lshl_add_u32 v18, v9, 2, v18
    v_add_u32 v18, s51, v18
    s_lshl_b32 s51, s50, 10
    s_lshl_b32 s45, s44, 9
    s_add_u32 s51, s51, s45
    s_add_u32 s51, s51, {WS_OG}
    v_lshl_add_u32 v17, v1, 3, s51
    s_bfe_u32 s45, s3, 0x10001
    s_mul_i32 s45, s45, {ASTR}
    s_lshr_b32 s51, s3, 2
    s_lshl_b32 s51, s51, 9
    s_add_u32 s45, s45, s51
    s_and_b32 s51, s3, 6
    s_lshl_b32 s51, s51, 7
    s_sub_u32 s45, s45, s51
    s_add_u32 s45, s45, {ASTR}
    v_add_u32 v19, s45, v8
    s_lshl_b32 s45, s4, 2
    s_add_u32 s45, s45, {WS_FL}
    v_lshl_add_u32 v40, v0, 7, s45
    v_mov_b32 v41, {TAG}
    """)
    def oloads():
        for s_ in range(4):
            A(f"global_load_dwordx2 {vr(32+2*s_,2)}, v17, {sp(WS_)} offset:{s_*1024} sc1")
    A.dual_head("L_A_ml", ["v17", "v18"])
    A(f"""
    global_load_dword v20, v18, {sp(WS_)} sc1
    s_waitcnt vmcnt(0)
    v_xor_b32 v20, {ETAG}, v20
    v_and_b32 v21, 63, v20
    v_cmp_ne_u32 vcc, 0, v21
    s_cbranch_vccnz L_A_ml
    """)
    oloads()
    A(f"""
    v_max_f32_dpp v21, v20, v20 row_ror:4 {DPPM}
    v_mov_b32_dpp v23, v20 quad_perm:[1,1,3,3] {DPPM}
    s_nop 0
    v_max_f32_dpp v21, v21, v21 row_ror:8 {DPPM}
    v_sub_f32 v22, v20, v21
    v_mul_f32 v22, {hex(LOG2E)}, v22
    v_exp_f32 v22, v22
    s_nop 0
    v_mul_f32 v23, v22, v23
    s_nop 1
    v_add_f32_dpp v23, v23, v23 row_ror:4 {DPPM}
    s_nop 1
    v_add_f32_dpp v23, v23, v23 row_ror:8 {DPPM}
    v_rcp_f32 v23, v23
    s_nop 0
    v_mul_f32 v22, v22, v23
    """)
    A.stamp(7)
    A("s_branch L_A_ochk")
    A.dual_head("L_A_h3", ["v17"], init=False)
    oloads()
    A("L_A_ochk:\ns_waitcnt vmcnt(0)")
    A.etagcheck([f"v{32+i}" for i in range(8)], "v20", "L_A_h3")
    for s_ in range(4):
        op = "v_mul_f32_dpp" if s_ == 0 else "v_fmac_f32_dpp"
        A(f"{op} v30, v22, v{32+2*s_} row_newbcast:{4*s_} {DPPM}\n{op} v31, v22, v{33+2*s_} row_newbcast:{4*s_+2} {DPPM}")
    A(f"""
    v_cvt_pk_bf16_f32 v30, v30, v31
    ds_write_b16 v19, v30
    ds_write_b16_d16_hi v19, v30 offset:256
    s_waitcnt lgkmcnt(0)
    s_barrier
    """)
    if fl: A(f"""
        s_cmp_lg_u32 s5, 9
        s_cbranch_scc1 L_H_nf
        s_cmp_gt_u32 s3, 1
        s_cbranch_scc1 L_H_nf
        v_cmp_gt_u32 vcc, 72, v0
        s_and_saveexec_b64 s[44:45], vcc
        {f's_sleep {fpos}' if fpos else ''}
        global_store_dword v40, v41, {sp(WS_)} sc1
        s_mov_b64 exec, -1
        L_H_nf:
        """)
    A.stamp(8)
    A("s_branch L_end")
    A(f"""
    L_A_s4m:
    v_and_b32 v18, 1, v1
    v_mul_u32_u24 v18, {ASTR}, v18
    v_add_u32 v18, v18, v11
    v_add_u32 v18, {ASTR}, v18
    s_mul_i32 s45, s4, 4608
    s_lshl_b32 s44, s50, 9
    s_add_u32 s45, s45, s44
    s_lshl_b32 s44, s46, 7
    s_add_u32 s45, s45, s44
    s_add_u32 s45, s45, {WS_PC if pc else WS_PX}
    v_lshl_add_u32 v19, {'v7' if pc else 'v1'}, {4 if x4 else 3}, s45
    {'v_mul_u32_u24 v16, 36864, v4' + chr(10) + 'v_add_u32 v19, v19, v16' + chr(10) + 's_mov_b32 s56, 0xff00ff00' + chr(10) + 's_mov_b32 s57, 0xff00ff00' if pc else ''}
    {f's_mov_b64 exec, 0xffff' + chr(10) + f'global_load_dword v125, v19, {sp(WS_)} sc1' + chr(10) + 's_mov_b64 exec, -1' if ppt else ''}
    """)
    bfrags(A, "v17", 56, 16)
    A("s_waitcnt lgkmcnt(0)\ns_barrier")
    gemv_mfma(A, "v18", vb=56, depth=8, nks=16)
    A("s_nop 7" if pc else "s_mov_b64 exec, 0xffff\ns_nop 6")
    A.epack("v24", "v20"); A.epack("v25", "v21")
    if pc:
        A(f"""
        v_mov_b32 v26, v24
        v_mov_b32 v27, v25
        v_mov_b32_dpp v24, v24 row_ror:8 row_mask:0xf bank_mask:0xc
        v_mov_b32_dpp v25, v25 row_ror:8 row_mask:0xf bank_mask:0xc
        v_mov_b32_dpp v26, v26 row_ror:8 row_mask:0xf bank_mask:0x3
        v_mov_b32_dpp v27, v27 row_ror:8 row_mask:0xf bank_mask:0x3
        global_store_dwordx4 v19, v[24:27], {sp(WS_)} sc1
        """)
    elif x4:
        A(f"s_nop 0\nv_mov_b32_dpp v26, v24 row_ror:8 {DPPM}\nv_mov_b32_dpp v27, v25 row_ror:8 {DPPM}\ns_mov_b64 exec, 0xff")
        A(f"global_store_dwordx4 v19, v[24:27], {sp(WS_)} sc1\ns_mov_b64 exec, -1")
    else:
        A(f"global_store_dwordx2 v19, v[24:25], {sp(WS_)} sc1\ns_mov_b64 exec, -1")
    A.stamp(9)
    A("s_branch L_end")

    A("L_KT:\ns_waitcnt lgkmcnt(0)")
    A.mktag()
    A(f"""
    s_cmp_lt_u32 s3, 9
    s_cbranch_scc1 L_HR_go
    s_cmp_ge_u32 s3, {9 + hq}
    s_cbranch_scc1 L_S5
    s_lshr_b32 s44, s{WQ_}, 7
    s_sub_u32 s44, 3, s44
    s_and_b32 s44, s44, 7
    s_lshl_b32 s45, s4, 3
    s_add_u32 s44, s44, s45
    s_lshl_b32 s44, s44, 7
    s_sub_u32 s45, 24, s3
    v_lshlrev_b32 v15, 7, v4              ; (l>>3)*128 rows
    v_add_u32 v15, v15, v7
    s_lshl_b32 s45, s45, 3
    v_add_u32 v15, s45, v15               ; row = i*128 + w*8 + (l&7)
    v_subrev_u32 v16, {512 + 56}, v15
    v_cmp_gt_u32 vcc, 512, v15
    s_nop 1
    v_cndmask_b32 v15, v16, v15, vcc
    v_lshl_add_u32 v15, v15, 13, s44
    global_load_dword v125, v15, {sp(WQ_)}{NT}
    s_branch L_S5
    L_HR_go:
    v_lshlrev_b32 v15, 1, v0
    global_load_ushort v33, v15, {sp(X_)}
    global_load_ushort v34, v15, {sp(X_)} offset:1152
    s_mul_i32 s44, s4, 4608
    s_add_u32 s44, s44, {WS_HL}
    v_lshl_add_u32 v55, v0, 3, s44
    global_load_dword v57, v55, {sp(WS_)} sc1
    v_mul_u32_u24 v15, 36, v1
    global_load_dwordx4 v[24:27], v15, {sp(X_)}
    global_load_dwordx4 v[28:31], v15, {sp(X_)} offset:16
    global_load_dword v32, v15, {sp(X_)} offset:32
    v_lshlrev_b32 v15, 3, v0
    """)
    if x4: A("""    v_and_b32 v15, -16, v0
    v_lshlrev_b32 v15, 3, v15
    v_lshl_or_b32 v15, v7, 4, v15
    v_and_b32 v39, 8, v0
    v_or_b32 v15, v15, v39
""")
    A(f"""
    v_add_u32 v52, {WS_AG + 2304}, v15
    v_add_u32 v53, {WS_AG + 2304 + AGS}, v15
    v_add_u32 v54, {WS_AG + 2304 + 2*AGS}, v15
    """)
    def ag_loads():
        for k in range(ks):
            A(f"global_load_dwordx2 {vr(40+4*k,2)}, v{52+k}, {sp(WS_)} offset:-2304 sc1")
            A(f"global_load_dwordx2 {vr(42+4*k,2)}, v{52+k}, {sp(WS_)} offset:2304 sc1")
    A(f"""
    s_mov_b32 s44, 0x3f803f80
    v_mov_b32 v35, 0
    v_mov_b32 v36, 0
    s_waitcnt vmcnt(0)
    v_mov_b32 v61, {TAG}
    """)
    for i in range(9):
        A(f"v_dot2_f32_bf16 v35, v{24+i}, s44, v35\nv_dot2_f32_bf16 v36, v{24+i}, v{24+i}, v36")
    A("s_nop 2")
    A.row_reduce("v_add_f32", ["v35", "v36"])
    A(f"""
    v_mov_b32 v37, v35
    v_mov_b32 v38, v36
    s_nop 0
    v_permlane16_swap_b32 v35, v37
    v_permlane16_swap_b32 v36, v38
    v_add_f32 v35, v35, v37
    v_add_f32 v36, v36, v38
    v_mul_f32 v35, {INV576}, v35
    v_mul_f32 v36, {INV576}, v36
    v_fma_f32 v36, -v35, v35, v36
    """)
    ln_finish(A, "v35", "v36", "v38")
    A("""
    v_readlane_b32 s48, v35, 0
    v_readlane_b32 s49, v35, 32
    v_readlane_b32 s50, v38, 0
    v_readlane_b32 s51, v38, 32
    v_lshlrev_b32 v33, 16, v33
    v_lshlrev_b32 v34, 16, v34
    v_subrev_f32 v33, s48, v33
    v_subrev_f32 v34, s49, v34
    """)
    A.r1("v33", "v34")
    A("v_mul_f32 v33, s50, v33\nv_mul_f32 v34, s51, v34")
    A.r1("v33", "v34")
    A("s_mov_b32 s7, 0")
    if hs: A(f"s_sleep {hs}")
    A(f"L_HR_h:\ns_add_u32 s7, s7, 1\ns_cmp_gt_u32 s7, {SPIN}\ns_cbranch_scc1 L_end\ns_sleep {hp}")
    ag_loads()
    A("s_waitcnt vmcnt(0)")
    A.etagcheck([f"v{40+i}" for i in range(4*ks)], "v39", "L_HR_h", "s100", 7)
    for i in range(4): A(f"v_add_f32 v{40+i}, v{40+i}, v{44+i}")
    if ks == 3:
        for i in range(4): A(f"v_add_f32 v{40+i}, v{40+i}, v{48+i}")
    A.r1("v40", "v41", "v42", "v43")
    A("v_add_f32 v42, 1.0, v42\nv_add_f32 v43, 1.0, v43")
    A.r1("v42", "v43")
    A("v_mul_f32 v42, v33, v42\nv_mul_f32 v43, v34, v43")
    A.r1("v42", "v43")
    A(f"""
    v_add_f32 v42, v42, v40
    v_add_f32 v43, v43, v41
    v_cvt_pk_bf16_f32 v60, v42, v43
    """)
    if dq: A(f"s_sleep {dq}")
    A.dual_store("global_store_dwordx2", "v55", "v[60:61]")
    A.stamp(3)
    A("s_branch L_S5")
    A("L_XR:")
    if diag & 8: A("s_branch L_end")
    A(f"""
    v_lshlrev_b32 v16, 2, v0
    v_min_u32 v16, 1532, v16
    v_add_u32 v16, {L_ST}, v16
    ds_write_b32 v16, v3
    v_mov_b32 v21, {L_WCNT}
    v_mov_b32 v22, 1
    s_waitcnt lgkmcnt(0)
    s_barrier
    s_cmp_eq_u32 s3, 9
    s_cbranch_scc1 L_XR_stat
    s_cmp_gt_u32 s3, 9
    s_cbranch_scc1 L_end
    v_lshlrev_b32 v16, 1, v0
    global_load_ushort v80, v16, {sp(X_)}
    global_load_ushort v81, v16, {sp(X_)} offset:1152
    v_lshlrev_b32 v16, 3, v0
    v_add_u32 v17, {WS_MG + 2304}, v16
    v_add_u32 v18, {WS_MG + 9216}, v16
    """)
    if x4: A("""    v_and_b32 v16, -16, v0
    v_lshlrev_b32 v16, 3, v16
    v_lshl_or_b32 v16, v7, 4, v16
    v_and_b32 v30, 8, v0
    v_or_b32 v16, v16, v30
""")
    if pc: A("s_mul_i32 s44, s4, 36864\nv_add_u32 v16, s44, v16")
    for k in range(4): A(f"v_add_u32 v{88+k}, {(WS_PC if pc else WS_PX) + 2304 + k*9216}, v16")
    A(f"""
    s_mul_i32 s44, s4, 4608
    s_lshl_b32 s44, s44, 1
    s_add_u32 s45, s44, {WS_RG}
    v_lshl_add_u32 v26, v0, 4, s45
    s_add_u32 s45, s44, {WS_XA}
    v_lshl_add_u32 v27, v0, 4, s45
    v_and_b32 v24, 48, v1
    v_lshlrev_b32 v24, 2, v24
    s_lshl_b32 s44, s3, 2
    s_add_u32 s44, s44, {L_ST}
    v_add_u32 v24, s44, v24
    s_mov_b32 s56, 0x00010001
    s_mov_b32 s57, 0x00010001
    """)
    def partial_stats(off, r):
        for i in range(6): A(f"v_permlane32_swap_b32 v{r+2*i}, v{r+1+2*i}")
        for i in range(6): A(f"v_add_f32 v{r+2*i}, v{r+2*i}, v{r+1+2*i}")
        A("s_nop 0")
        for i in range(3): A(f"v_permlane16_swap_b32 v{r+4*i}, v{r+2+4*i}")
        for i in range(3): A(f"v_add_f32 v{r+4*i}, v{r+4*i}, v{r+2+4*i}")
        A.row_reduce("v_add_f32", [f"v{r}", f"v{r+4}", f"v{r+8}"])
        A(f"""
        s_mov_b64 exec, s[56:57]
        ds_write_b32 v24, v{r} offset:{off}
        ds_write_b32 v24, v{r+4} offset:{off+256}
        ds_write_b32 v24, v{r+8} offset:{off+512}
        s_mov_b64 exec, -1
        """)
    A(f"""
    s_mov_b32 s7, 0
    s_movk_i32 s60, {0x100 if fl else 0x1ff}
    s_mov_b32 s61, 0
    L_XR_px:
    s_add_u32 s7, s7, 1
    s_cmp_gt_u32 s7, {SPIN}
    s_cbranch_scc1 L_end
    """)
    for k in range(8):
        A(f"s_bitcmp0_b32 s60, {k}\ns_cbranch_scc1 L_px_l{k}")
        A(f"global_load_dwordx2 {vr(96+2*k,2)}, v{88+k//2}, {sp(WS_)} offset:{2304 if k & 1 else -2304} sc1")
        A(f"L_px_l{k}:")
    A("s_bitcmp0_b32 s60, 8\ns_cbranch_scc1 L_px_m")
    for j, (r, o) in enumerate((("v17", -2304), ("v17", 2304), ("v18", 0))):
        A(f"global_load_dwordx2 {vr((40, 34, 42)[j],2)}, {r}, {sp(WS_)} offset:{o} sc1")
    A("s_waitcnt vmcnt(0)")
    A.tagcheck(["v41", "v35", "v43", "v43"], "v30", "v31", "L_px_m")
    A(f"""
    s_bitset0_b32 s60, 8
    v_lshlrev_b32 v82, 16, v40
    v_and_b32 v83, 0xffff0000, v40        ; ga
    v_and_b32 v43, 0xffff0000, v42
    v_lshlrev_b32 v42, 16, v42
    v_add_f32 v42, 1.0, v42
    v_add_f32 v43, 1.0, v43
    v_cvt_pk_bf16_f32 v32, v42, v43       ; g
    v_mov_b32 v33, {TAG}
    """)
    A(f"""
    global_store_dwordx4 v26, v[32:35], {sp(WS_)}
    v_mov_b32 v36, v32
    v_mov_b32 v37, v33
    v_mov_b32 v38, v34
    v_mov_b32 v39, v35
    v_lshlrev_b32 v80, 16, v80
    v_lshlrev_b32 v81, 16, v81
    v_lshlrev_b32 v84, 16, v32
    v_and_b32 v85, 0xffff0000, v32
    v_lshlrev_b32 v86, 16, v34
    v_and_b32 v87, 0xffff0000, v34
    v_mov_b32 v44, v84
    v_mov_b32 v45, v85
    v_mul_f32 v46, v84, v84
    v_mul_f32 v47, v85, v85
    v_mov_b32 v48, v86
    v_mov_b32 v49, v87
    v_mul_f32 v50, v86, v86
    v_mul_f32 v51, v87, v87
    v_mul_f32 v52, v84, v86
    v_mul_f32 v53, v85, v87
    v_mov_b32 v54, 0
    v_mov_b32 v55, 0
    """)
    partial_stats(0, 44)
    A.lds_inc(4, "v21", "v22")
    A.stamp(6)
    A("s_branch L_px_m2\nL_px_m:\ns_waitcnt vmcnt(0)\nL_px_m2:")
    for k in range(8):
        A(f"""
        s_bitcmp0_b32 s60, {k}
        s_cbranch_scc1 L_px_c{k}
        v_xor_b32 v{96+2*k}, {ETAG}, v{96+2*k}
        v_xor_b32 v{97+2*k}, {ETAG}, v{97+2*k}
        v_or_b32 v30, v{96+2*k}, v{97+2*k}
        v_and_b32 v30, 63, v30
        v_cmp_ne_u32 vcc, 0, v30
        s_cbranch_vccnz L_px_c{k}
        s_bitset0_b32 s60, {k}
        L_px_c{k}:
        """)
    A("s_cmp_lg_u32 s60, 0\ns_cbranch_scc1 L_XR_px")
    if fl:
        A(f"""
        s_cmp_lg_u32 s61, 0
        s_cbranch_scc1 L_XR_done
        s_mul_i32 s44, s4, 9
        s_add_u32 s44, s44, s3
        s_lshl_b32 s44, s44, 7
        s_add_u32 s44, s44, {WS_FL}
        s_add_u32 s62, s{WS_}, s44
        s_addc_u32 s63, s{WS_+1}, 0
        L_XR_fl:
        s_add_u32 s7, s7, 1
        s_cmp_gt_u32 s7, {SPIN}
        s_cbranch_scc1 L_end
        s_load_dwordx8 s[64:71], s[62:63], 0 glc
        s_waitcnt lgkmcnt(0)
        """)
        for k in range(8):
            A(f"""
            s_bitcmp1_b32 s61, {k}
            s_cselect_b32 s58, 0, s{64+k}
            s_cmp_lg_u32 s58, {TAG}
            s_cbranch_scc1 L_fl_{k}
            global_load_dwordx2 {vr(96+2*k,2)}, v{88+k//2}, {sp(WS_)} offset:{2304 if k & 1 else -2304} sc1
            s_bitset1_b32 s61, {k}
            L_fl_{k}:
            """)
        A(f"""
        s_cmp_lg_u32 s61, 0xff
        s_cbranch_scc1 L_XR_fl
        s_movk_i32 s60, 0xff
        s_branch L_px_m
        L_XR_done:
        """)
    A.stamp(10)
    for i in range(4): A(f"v_add_f32 v{96+2*i}, v{96+2*i}, v{104+2*i}\nv_add_f32 v{97+2*i}, v{97+2*i}, v{105+2*i}")
    for i in range(2): A(f"v_add_f32 v{96+2*i}, v{96+2*i}, v{100+2*i}\nv_add_f32 v{97+2*i}, v{97+2*i}, v{101+2*i}")
    A("v_add_f32 v96, v96, v98\nv_add_f32 v97, v97, v99")
    A.r1("v96", "v97")
    A("v_mul_f32 v96, v82, v96\nv_mul_f32 v97, v83, v97")
    A.r1("v96", "v97")
    A(f"""
    v_add_f32 v96, v80, v96
    v_add_f32 v97, v81, v97
    v_cvt_pk_bf16_f32 v34, v96, v97
    v_lshlrev_b32 v96, 16, v34
    v_and_b32 v97, 0xffff0000, v34        ; x1
    v_mul_f32 v100, v96, v84
    v_mul_f32 v101, v97, v85
    v_cvt_pk_bf16_f32 v32, v100, v101
    global_store_dwordx4 v27, v[32:35], {sp(WS_)}
    v_lshlrev_b32 v100, 16, v32
    v_and_b32 v101, 0xffff0000, v32       ; a
    v_mul_f32 v98, v96, v96
    v_mul_f32 v99, v97, v97
    v_mul_f32 v102, v100, v100
    v_mul_f32 v103, v101, v101
    v_mul_f32 v104, v100, v84
    v_mul_f32 v105, v101, v85
    v_mul_f32 v106, v100, v86
    v_mul_f32 v107, v101, v87
    """)
    partial_stats(768, 96)
    A("s_waitcnt lgkmcnt(0)\ns_barrier")
    A("s_barrier")
    A(f"v_add_u32 v27, {WS_GOFF}, v27\nglobal_store_dwordx4 v27, v[32:35], {sp(WS_)} sc1")
    A(f"v_add_u32 v26, {WS_GOFF}, v26\nglobal_store_dwordx4 v26, v[36:39], {sp(WS_)} sc1")
    A.stamp(11)
    A(f"""
    s_branch L_end
    L_XR_stat:
    v_lshlrev_b32 v22, 2, v1
    v_add_u32 v22, {L_ST}, v22
    v_lshrrev_b32 v20, 5, v1
    s_lshl_b32 s44, s4, 7
    s_add_u32 s44, s44, {WS_CF}
    v_lshl_add_u32 v20, v20, 4, s44
    global_load_dword v23, v20, {sp(WS_)} sc1
    """)
    def gather_stats(off, cnt, r, sleep):
        if sleep: A.lds_spin(cnt, 9, "v23", "v21")
        else: A("s_barrier")
        A(f"""
        ds_read_b32 v{r}, v22 offset:{off}
        ds_read_b32 v{r+2}, v22 offset:{off+256}
        ds_read_b32 v{r+4}, v22 offset:{off+512}
        s_waitcnt lgkmcnt(0)
        """)
        A.row_reduce("v_add_f32", [f"v{r}", f"v{r+2}", f"v{r+4}"])
        for q in (r, r+2, r+4): A(f"v_mul_f32 v{q}, {INV576}, v{q}")
        for q in (r, r+2, r+4): A(f"v_mov_b32 v{q+1}, v{q}")
        for q in (r, r+2, r+4): A(f"v_permlane16_swap_b32 v{q}, v{q+1}")
    A("s_waitcnt vmcnt(0)")
    gather_stats(0, 4, 100, True)
    gather_stats(768, 8, 84, False)
    A("v_fma_f32 v85, -v84, v84, v85")
    ln_finish(A, "v84", "v85", "v90")
    A(f"""
    v_fma_f32 v86, -v84, v100, v86
    v_fma_f32 v89, -v84, v104, v89
    v_add_f32 v88, v88, v88
    v_fma_f32 v88, v84, v101, -v88
    v_fma_f32 v87, v84, v88, v87
    v_fma_f32 v86, v90, v86, v102         ; mean2
    v_add_f32 v89, v89, v89
    v_fma_f32 v87, v90, v87, v89
    v_fma_f32 v87, v90, v87, v103         ; E[h2^2]
    v_fma_f32 v87, -v86, v86, v87         ; var2
    """)
    ln_finish(A, "v86", "v87", "v94")
    A(f"""
    v_mul_f32 v92, v90, v94               ; c0
    v_mul_f32 v95, -v86, v94              ; c3
    v_mul_f32 v93, -v84, v92              ; c1
    """)
    for r in range(92, 96): A.epack(f"v{r}", f"v{r}")
    A("s_mov_b32 exec_lo, 1\ns_mov_b32 exec_hi, 1")
    A.dual_store("global_store_dwordx4", "v20", "v[92:95]")
    A("s_mov_b64 exec, -1\ns_barrier")
    A.stamp(12)
    A("s_branch L_end")

    A(f"""
    L_S5:
    {'s_branch L_end' if diag & 8 else ''}
    s_mul_i32 s47, s4, 9
    s_add_u32 s47, s47, s5                ; f
    """)
    A.srd(8, W1_, 576*9216)
    A.srd(12, W2_, 4608*1152)
    A(f"""
    s_lshl_b32 s44, s47, 7
    v_mul_u32_u24 v14, 9216, v4
    v_lshl_add_u32 v14, v6, 4, v14
    v_add_u32 v14, s44, v14
    s_lshl_b32 s45, s46, 5
    s_add_u32 s44, s44, s45
    v_and_b32 v15, 15, v1
    v_lshl_add_u32 v15, v15, 1, s44
    global_load_ushort v19, v15, {sp(B1_)}
    v_mul_u32_u24 v15, 0x38f, v0
    v_lshrrev_b32 v15, 16, v15
    v_mul_u32_u24 v16, 72, v15
    v_sub_u32 v16, v0, v16
    v_and_b32 v17, 6, v15
    v_xor_b32 v16, v16, v17
    v_mul_u32_u24 v15, 1152, v15
    v_lshl_add_u32 v15, v16, 4, v15
    s_mul_i32 s49, s4, 9216
    s_add_u32 s45, s49, {WS_RG}
    v_lshl_add_u32 v80, v0, 4, s45
    s_add_u32 s45, s49, {WS_XA}
    v_lshl_add_u32 v81, v0, 4, s45
    v_lshrrev_b32 v20, 2, v1
    v_mul_u32_u24 v20, 1152, v20
    v_lshl_add_u32 v20, v9, 3, v20
    v_add_u32 v20, {L_BUF1}, v20
    v_bfe_u32 v17, v1, 3, 2
    s_mul_i32 s48, s3, 3
    """)
    for i in range(3):
        A(f"s_add_u32 s44, s48, {i}\nv_xor_b32 v{92+i}, s44, v17\nv_lshl_add_u32 v{92+i}, v{92+i}, 5, v20")
    A(f"""
    s_mul_i32 s44, s48, {2*4608}
    s_lshl_b32 s45, s47, 6
    s_add_u32 s44, s44, s45
    s_add_u32 s44, s44, {WS_FG}
    v_mul_u32_u24 v20, 4608, v4
    v_lshl_add_u32 v20, v7, 3, v20
    v_add_u32 v76, s44, v20
    v_and_b32 v79, 1, v1
    v_lshlrev_b32 v79, 7, v79
    v_and_b32 v20, 48, v1
    v_add_u32 v79, v79, v20
    v_add_u32 v79, {L_H1}, v79
    s_lshl_b32 s44, s47, 3
    v_add_u32 v77, s44, v7                ; col
    v_lshrrev_b32 v78, 5, v1              ; b
    v_mul_u32_u24 v82, 1152, v78
    v_lshl_add_u32 v82, v77, 1, v82
    v_lshlrev_b32 v83, 1, v77
    s_cmp_lg_u32 s3, 10
    s_cbranch_scc1 L_S5_nf
    global_load_ushort v84, v83, {sp(B2_)}
    global_load_ushort v85, v82, {sp(OUT_)}
    L_S5_nf:
    v_lshlrev_b32 v83, 3, v77
    v_add_u32 v83, {WS_MG + 1728*8}, v83
    s_add_u32 s44, s49, {WS_XA + 8}
    v_lshl_add_u32 v77, v77, 4, s44
    v_lshlrev_b32 v78, 4, v78             ; 16*b
    s_mul_i32 s44, s47, 4608
    s_add_u32 s44, s44, {WS_FG + 2048}
    v_lshl_add_u32 v88, v1, 3, s44
    v_mov_b32 v21, {L_WCNT}
    v_mov_b32 v22, 1
    """)
    if nb2:
        A(f"""
        s_barrier
        s_cmp_eq_u32 s5, 8
        s_cbranch_scc1 L_vt2
        s_lshr_b32 s44, s{W1_}, 7
        s_add_u32 s44, s44, s47
        s_and_b32 s44, s44, 7
        s_cmp_eq_u32 s44, 3
        s_cbranch_scc1 L_vt2
        """)
        vtail(nb2, 3, 0)
        A("L_vt2:")
    if trig:
        A(f"""
        s_cmp_lg_u32 s3, 11
        s_cbranch_scc1 L_S5_tb
        s_lshr_b32 s44, s{W1_}, 7
        s_add_u32 s44, s44, s47
        s_and_b32 s44, s44, 7
        s_cmp_eq_u32 s44, {3 if c3 else 9}
        s_cbranch_scc1 L_S5_tb
        """)
        if at:
            A(f"""
            s_lshl_b32 s44, s4, 5
            v_mov_b32 v16, s44
            s_mov_b32 s7, 0
            L_S5_trig:
            s_sleep {ps}
            global_load_dword v17, v16, s[94:95] sc1
            s_add_u32 s7, s7, 1
            s_cmp_gt_u32 s7, {NLOC//2}
            s_cbranch_scc1 L_S5_tb
            s_waitcnt vmcnt(0)
            v_readfirstlane_b32 s44, v17
            s_cmp_lt_u32 s44, {an}
            """)
        else:
            A(f"""
        s_lshl_b32 s44, s4, 10
        s_add_u32 s44, s44, {WS_TR}
        v_lshl_add_u32 v16, v7, 7, s44
        s_mov_b32 s7, 0
        L_S5_trig:
        s_sleep {ps}
        global_load_dword v17, v16, {sp(WS_)} sc1
        s_add_u32 s7, s7, 1
        s_cmp_gt_u32 s7, {NLOC//2}
        s_cbranch_scc1 L_S5_tb
        s_waitcnt vmcnt(0)
        v_cmp_eq_u32 vcc, {TAG}, v17
        s_and_b32 s44, vcc_lo, {tm}
        s_bcnt1_i32_b32 s44, s44
        s_cmp_lt_u32 s44, {trig}
""")
        A(f"""
        s_cbranch_scc1 L_S5_trig
        L_S5_tb:
        """)
    A("s_barrier")
    A.stamp(5)
    dma_tile(A, 8, "v14", 9216, L_BUF0, 72, '' if wm & 4 else NT)
    A(f"""
    s_barrier
    s_cmp_ge_u32 s3, 9
    s_cbranch_scc1 L_S5_hi
    s_mul_i32 s44, s47, {64*1152}
    s_lshl_b32 s45, s3, 10
    s_add_u32 s45, s45, {L_BUF1}
    """)
    for o in range(8):
        A(f"s_mov_b32 m0, s45\ns_add_u32 s45, s45, 9216")
        A(f"buffer_load_dwordx4 v15, s[12:15], s44 offen{'' if wm & 8 else NT} lds")
        A(f"s_add_u32 s44, s44, 9216")
    A(f"global_load_dwordx4 v[24:27], v80, {sp(WS_)} sc1\ns_waitcnt vmcnt(9)")
    A.lds_inc(4, "v21", "v22")
    A("s_mov_b32 s7, 0\ns_branch L_S5_rgc")
    A.dual_head("L_S5_rg", ["v80", "v81"], init=False)
    A(f"s_sleep {ps}\nglobal_load_dwordx4 v[24:27], v80, {sp(WS_)} sc1\nL_S5_rgc:\ns_waitcnt vmcnt(0)")
    A.tagcheck(["v25", "v27"], "v30", "v31", "L_S5_rg")
    A(f"""
    v_mov_b32 v35, 0x3f80
    ds_write_b16 v8, v24 offset:{ASTR}
    ds_write_b16_d16_hi v8, v24 offset:{5*ASTR}
    ds_write_b16 v8, v26 offset:{2*ASTR}
    ds_write_b16_d16_hi v8, v26 offset:{6*ASTR}
    ds_write_b16 v8, v35 offset:{3*ASTR}
    ds_write_b16 v8, v35 offset:{7*ASTR}
    s_waitcnt lgkmcnt(0)
    {f's_sleep {ds5}' if ds5 else ''}
    s_barrier
    global_load_dwordx2 v[24:25], v81, {sp(WS_)} sc1
    """)
    A.stamp(6)
    def w2frags():
        for i in range(3):
            for ks in range(2):
                for half in range(2):
                    A(f"ds_read_b64_tr_b16 {vr(52+i*8+ks*4+half*2,2)}, v{92+i} offset:{(ks*32+half*16)*1152}")
    w2frags()
    A("s_branch L_S5_xac")
    A.dual_head("L_S5_xa", ["v81"], init=False)
    A(f"global_load_dwordx2 v[24:25], v81, {sp(WS_)} sc1\nL_S5_xac:\ns_waitcnt vmcnt(0)")
    A.tagcheck(["v25"], None, None, "L_S5_xa")
    A(f"""
    ds_write_b16 v8, v24
    ds_write_b16_d16_hi v8, v24 offset:{4*ASTR}
    s_waitcnt lgkmcnt(0)
    s_barrier
    """)
    A.stamp(7)
    A(f"""
    s_branch L_S5_g2
    L_S5_hi:
    s_waitcnt vmcnt(0)
    """)
    A.lds_inc(4, "v21", "v22")
    A(f"""
    s_cmp_ge_u32 s3, 12
    s_cbranch_scc1 L_S5_g1
    s_barrier
    """)
    w2frags()
    A(f"""
    s_cmp_lg_u32 s3, 10
    s_cbranch_scc1 L_S5_h2
    global_load_dwordx2 v[86:87], v83, {sp(WS_)} sc1
    s_barrier
    s_mov_b32 s7, 0
    s_branch L_S5_gb1
    """)
    A.dual_head("L_S5_gb", ["v77"], init=False)
    A(f"""
    global_load_dwordx2 v[86:87], v83, {sp(WS_)} sc1
    L_S5_gb1:
    global_load_dwordx2 v[90:91], v77, {sp(WS_)} sc1
    s_waitcnt vmcnt(0)
    """)
    A.tagcheck(["v87", "v91"], "v30", "v31", "L_S5_gb")
    A(f"""
    v_lshrrev_b32 v86, v78, v86
    v_lshrrev_b32 v85, v78, v90
    v_lshlrev_b32 v86, 16, v86            ; gb
    v_lshlrev_b32 v85, 16, v85            ; x1
    v_lshlrev_b32 v84, 16, v84            ; b2
    s_branch L_S5_g2
    L_S5_h2:
    s_barrier
    L_S5_g2:
    s_mov_b32 s56, 0xffff0000
    s_mov_b32 s57, 0
    s_mov_b32 s58, 0
    s_mov_b32 s59, 0xffff
    s_waitcnt lgkmcnt(0)
    s_barrier
    ds_read_b128 v[32:35], v79
    ds_read_b128 v[36:39], v79 offset:64
    s_waitcnt lgkmcnt(1)
    """)
    for i in range(3):
        A(f"v_mfma_f32_16x16x32_bf16 {vr(40+4*i,4)}, v[32:35], {vr(52+8*i,4)}, 0")
    A("s_waitcnt lgkmcnt(0)")
    for i in range(3):
        A(f"v_mfma_f32_16x16x32_bf16 {vr(40+4*i,4)}, v[36:39], {vr(56+8*i,4)}, {vr(40+4*i,4)}")
    A(f"""
    s_mov_b32 exec_hi, 0xffff
    s_nop 5
    v_cndmask_b32 v28, v40, v44, s[56:57]
    v_cndmask_b32 v29, v41, v45, s[56:57]
    v_cndmask_b32 v28, v28, v48, s[58:59]
    v_cndmask_b32 v29, v29, v49, s[58:59]
    """)
    A.epack("v28", "v28"); A.epack("v29", "v29")
    A(f"global_store_dwordx2 v76, v[28:29], {sp(WS_)} sc1\ns_mov_b64 exec, -1")
    A.stamp(11)
    A(f"""
    s_cmp_lg_u32 s3, 10
    s_cbranch_scc1 L_end
    {f's_sleep {fgs}' if fgs else 's_waitcnt vmcnt(0)'}
    """)
    A.spin_head("L_S5_fg")
    for i in range(9):
        A(f"global_load_dwordx2 {vr(40+2*i,2)}, v88, {sp(WS_)} offset:{i*512-2048} sc1")
    A("s_waitcnt vmcnt(0)")
    A.etagcheck([f"v{40+i}" for i in range(18)], "v30", "L_S5_fg")
    A.stamp(12)
    fold8(A, 9, 40, 41, 42)
    A.r1("v40")
    A("v_add_f32 v40, v84, v40")
    A.r1("v40")
    A("v_mul_f32 v40, v86, v40")
    A.r1("v40")
    A(f"""
    v_add_f32 v40, v85, v40
    v_cvt_pk_bf16_f32 v40, v40, v40
    s_mov_b32 exec_lo, 0xff
    s_mov_b32 exec_hi, 0xff
    global_store_short v82, v40, {sp(OUT_)}
    s_cmp_lg_u32 s47, 0
    s_cbranch_scc1 L_S5_fin
    s_mov_b64 exec, 1
    v_mov_b32 v33, {TAG}
    global_store_dword v3, v33, {sp(WS_)} sc1
    L_S5_fin:
    s_mov_b64 exec, -1
    """)
    if probe:
        base, stride = {1: (0xB0000, 128*72), 2: (0x400000, 65536), 3: (0x1000000, 0x200000), 4: (0xB0000, 128*72)}[probe]
        A(f"s_lshl_b32 s44, s47, 7\ns_add_u32 s44, s44, {base}\nv_mov_b32 v60, s44\ns_waitcnt vmcnt(0)\ns_mov_b64 exec, 1")
        for i in range(8):
            if probe == 1: A(f"global_store_dword v60, v3, {sp(WS_)} sc1")
            else: A(f"global_load_dword v61, v60, {sp(WS_)} nt")
            A(f"s_waitcnt vmcnt(0)\nv_add_u32 v60, {stride}, v60")
        A("s_mov_b64 exec, -1")
    A.stamp(13)
    A("s_branch L_end")
    A("L_S5_g1:\nv_mov_b32 v15, v10")
    A.lds_spin(4, 16, "v16", "v21")
    bfrags(A, "v15")
    k0_ = -2.0 * 1.4426950408889634 * 0.7978845608028654
    A(f"""
    v_bfe_u32 v16, v1, 4, 1
    v_lshlrev_b32 v15, 7, v16
    s_lshl_b32 s44, s4, 7
    s_add_u32 s44, s44, {WS_CF}
    v_lshl_add_u32 v18, v16, 4, s44
    v_bfe_u32 v16, v1, 2, 2
    v_lshl_or_b32 v15, v16, 4, v15
    v_lshl_or_b32 v15, v9, 1, v15
    s_lshr_b32 s44, s46, 1
    s_lshl_b32 s44, s44, 6
    s_and_b32 s45, s46, 1
    s_lshl_b32 s45, s45, 3
    s_add_u32 s44, s44, s45
    s_add_u32 s44, s44, {L_H1}
    v_add_u32 v15, s44, v15
    v_lshlrev_b32 v19, 16, v19
    v_mul_u32_u24 v16, {ASTR}, v7
    v_add_u32 v16, v11, v16               ; A rows = i&7
    v_mov_b32 v17, {f2h(k0_)}
    s_waitcnt lgkmcnt(0)
    s_barrier
    s_barrier
    """)
    cfl = f"global_load_dwordx4 v[52:55], v18, {sp(WS_)} sc1"
    gemv_mfma(A, "v16", mid=(cfm, cfl))
    A.stamp(9)
    A("s_mov_b32 s7, 0\ns_branch L_S5_cfc")
    A.dual_head("L_S5_cf", ["v18"], init=False)
    A(f"{cfl}\nL_S5_cfc:\ns_waitcnt vmcnt(0)")
    A.etagcheck(["v52", "v53", "v54", "v55"], "v30", "L_S5_cf")
    A.stamp(8)
    A(f"""
    v_mul_f32 v20, v20, v52
    v_mul_f32 v22, v22, v54
    v_fmac_f32 v20, v21, v53
    v_fmac_f32 v22, v23, v55
    v_add_f32 v20, v20, v22
    """)
    A.r1("v20")
    A("v_add_f32 v20, v20, v19")
    A.r1("v20")
    A(f"""
    v_mul_f32 v21, v20, v20
    v_fmamk_f32 v21, v21, {f2h(k0_*0.044715)}, v17
    v_mul_f32 v21, v21, v20
    v_exp_f32 v21, v21
    s_nop 0
    v_add_f32 v21, 1.0, v21
    v_rcp_f32 v21, v21
    s_mov_b32 exec_hi, 0
    v_mul_f32 v21, v21, v20
    v_cvt_pk_bf16_f32 v21, v21, v21
    ds_write_b16 v15, v21
    s_mov_b64 exec, -1
    s_waitcnt lgkmcnt(0)
    s_barrier
    """)
    A.stamp(10)
    A("L_end:")
    if dbg:
        maps = {"A": {1: 4, 2: 5, 4: 6, 7: 7, 9: 8, 10: 9, 12: 14}, "B": {4: 3, 5: 10, 6: 11, 8: 12, 11: 13}, "M": {3: 2, 5: 15}}
        A(f"""
        s_mov_b64 exec, -1
        s_lshl_b32 s44, 1, s3
        s_and_b32 s44, s44, {(1<<0)|(1<<9)|(1<<12)|(1<<15)}
        s_cbranch_scc0 L_exit
        s_load_dwordx2 s[46:47], s[0:1], 104
        v_mov_b32 v125, 0x400
        v_readlane_b32 s44, v127, 0
        s_nop 3
        s_not_b32 s44, s44
        v_writelane_b32 v127, s44, 15
        v_writelane_b32 v125, 4, 0
        v_writelane_b32 v125, 0, 15
        s_lshr_b32 s45, s2, 3
        s_cmp_lt_u32 s45, 16
        s_cbranch_scc1 L_dbg_A
        s_cmp_lt_u32 s45, 25
        s_cbranch_scc1 L_dbg_B
        """)
        for nm in ("M", "B", "A"):
            A(f"L_dbg_{nm}:")
            for st, sl in maps[nm].items(): A(f"v_writelane_b32 v125, {sl*4}, {st}")
            A("s_branch L_dbg_go")
        A(f"""
        L_dbg_go:
        s_waitcnt lgkmcnt(0)
        v_cmp_gt_u32 vcc, 0x100, v125
        s_and_saveexec_b64 s[48:49], vcc
        global_atomic_umax v125, v127, s[46:47]
        s_endpgm
        """)
    elif stamps:
        A(f"""
        s_mov_b64 exec, 0xffff
        s_lshl_b32 s44, s2, 4
        s_add_u32 s44, s44, s3
        s_lshl_b32 s44, s44, 6
        s_add_u32 s44, s44, {WS_STAMP}
        v_lshl_add_u32 v126, v1, 2, s44
        global_store_dword v126, v127, {sp(WS_)}
        """)
    A("L_exit:\ns_endpgm\nL_codeend:")
    A.footer(128, 102)
    return A

HEAD = """; Fused adaLN + sliding-window GQA decode attention + channel MLP, one persistent launch (gfx950).
"""
if __name__ == "__main__":
    out = sys.argv[1]
    kw = {}
    for o in sys.argv[2:]:
        if "=" in o:
            k, v = o.split("="); kw[k] = int(v)
        elif o == "stamps": kw["stamps"] = True
        elif o == "lite": kw["stamps"] = True; LITE = True
        elif o == "nont": kw["nt"] = ""
    A = build(**kw)
    open(out, "w").write(HEAD + A.text())
```

```python
import sys, struct
from asmlib import Asm, NAME

WS_EPOCH = 0x0
WS_QG    = 0x4000
WS_TR    = 0x18000
WS_FL    = 0x1C000
WS_PX    = 0x20000
WS_AG    = 0x30000
AGS = 1152*8
WS_MG    = 0x40000
WS_FG    = 0x50000
WS_OG    = 0x100000
WS_MLG   = 0x120000
WS_RG    = 0x124000
WS_XA    = 0x136000
WS_CF    = 0x151000
WS_HL    = 0x152000
WS_GOFF  = 0x80000
WS_QL    = 0x200000
WS_PC    = 0xA2000
WS_STAMP = 0x8000000
AL = 131072; L_Q = 0; L_CNT = 512; L_MX = 640; L_LS = 768; L_P = 1024; PSTR = 1088; L_PD = 3328
ASTR = 1184
L_BUF0 = 0; L_BUF1 = 73728; L_ACT = 147456; L_H1 = L_ACT + 8*ASTR; L_CF = L_H1 + 256; L_WCNT = L_CF + 64; L_ST = L_WCNT + 64; L_X1 = L_ST + 1536
LDS_BYTES = 160768
assert L_X1 <= LDS_BYTES
NLOC = 300
SPIN = 40000
LITE = False
LOG2E = 0x3fb8aa3b
X_, K_, V_, WQ_, WO_, W1_, B1_, W2_, B2_, C_, WM_, OUT_, WS_ = 16, 18, 20, 22, 24, 28, 30, 32, 34, 36, 38, 40, 42
TAG = "s6"; ETAG = "s101"

def sp(n): return f"s[{n}:{n+1}]"
def vr(n, k): return f"v[{n}:{n+k-1}]"
def f2h(x): return hex(struct.unpack("<I", struct.pack("<f", x))[0])
DPPM = "row_mask:0xf bank_mask:0xf"

class G(Asm):
    def __init__(self, stamps=False, nt="nt"):
        super().__init__()
        self.stamps = stamps
        self.nt = (" " + nt) if nt else ""
    def stamp(self, i):
        if self.stamps and (not LITE or i == 13):
            self(f"s_memrealtime s[96:97]\ns_waitcnt lgkmcnt(0)\nv_writelane_b32 v127, s96, {i}")
    def rbf(self, *pairs):
        for d, s in pairs: self(f"v_cvt_pk_bf16_f32 {d}, {s}, {s}")
        for d, s in pairs: self(f"v_and_b32 {d}, 0xffff0000, {d}")
    def r1(self, *regs): self.rbf(*[(r, r) for r in regs])
    def srd(self, b, ptr, nbytes):
        self(f"s_mov_b32 s{b}, s{ptr}\ns_and_b32 s{b+1}, s{ptr+1}, 0xffff\ns_mov_b32 s{b+2}, {nbytes}\ns_mov_b32 s{b+3}, 0x20000")
    def mktag(self):
        self(f"s_add_u32 s6, s6, 0x9e3779b9\ns_and_b32 {ETAG}, s6, 63\ns_and_b32 s100, s6, 7")
    def tagcheck(self, tags, mn, mx, retry):
        if len(tags) == 1:
            self(f"v_cmp_ne_u32 vcc, {TAG}, {tags[0]}")
        else:
            assert len(tags) % 2 == 0
            for i in range(0, len(tags), 2):
                a, b = tags[i], tags[i+1]
                self(f"v_min3_u32 {mn}, {a}, {b}, {TAG if i == 0 else mn}")
                self(f"v_max3_u32 {mx}, {a}, {b}, {TAG if i == 0 else mx}")
            self(f"v_cmp_ne_u32 vcc, {mn}, {mx}")
        self(f"s_cbranch_vccnz {retry}")
    def etagcheck(self, words, acc, retry, ETAG=ETAG, mask=63):
        assert len(words) % 2 == 0
        for i in range(0, len(words), 2):
            a, b = words[i], words[i+1]
            self(f"v_xor_b32 {a}, {ETAG}, {a}\nv_xor_b32 {b}, {ETAG}, {b}")
            if i == 0: self(f"v_or_b32 {acc}, {a}, {b}")
            else: self(f"v_or3_b32 {acc}, {a}, {b}, {acc}")
        self(f"v_and_b32 {acc}, {mask}, {acc}\nv_cmp_ne_u32 vcc, 0, {acc}\ns_cbranch_vccnz {retry}")
    def epack(self, d, v, mask=63):
        self(f"v_bfi_b32 {d}, {mask}, {ETAG}, {v}")
    def spin_head(self, lab):
        self(f"s_mov_b32 s7, 0\n{lab}:\ns_add_u32 s7, s7, 1\ns_cmp_gt_u32 s7, {SPIN}\ns_cbranch_scc1 L_end")
    def dual_head(self, lab, regs, init=True):
        if init: self("s_mov_b32 s7, 0")
        self(f"{lab}:\ns_add_u32 s7, s7, 1\ns_cmp_gt_u32 s7, {SPIN}\ns_cbranch_scc1 L_end")
        self(f"s_cmp_lg_u32 s7, {NLOC}\ns_cbranch_scc1 {lab}_k")
        for r in regs: self(f"v_add_u32 {r}, {WS_GOFF}, {r}")
        self(f"{lab}_k:")
    def dual_store(self, op, vaddr, data):
        self(f"{op} {vaddr}, {data}, {sp(WS_)}\nv_add_u32 {vaddr}, {WS_GOFF}, {vaddr}\n{op} {vaddr}, {data}, {sp(WS_)} sc1")
    def row_reduce(self, op, regs, steps=4):
        for ctl in ("quad_perm:[1,0,3,2]", "quad_perm:[2,3,0,1]", "row_half_mirror", "row_mirror")[:steps]:
            if len(regs) < 3: self(f"s_nop {2 - len(regs)}")
            for r in regs:
                self(f"{op}_dpp {r}, {r}, {r} {ctl} {DPPM}")
    def lds_spin(self, off, val, vt, vbase, sleep=True):
        lab = self.label("LS")
        self.spin_head(lab)
        self(f"ds_read_b32 {vt}, {vbase} offset:{off}\ns_waitcnt lgkmcnt(0)\nv_readfirstlane_b32 s44, {vt}\ns_cmp_ge_u32 s44, {val}")
        done = self.label("LD")
        self(f"s_cbranch_scc1 {done}\n" + ("s_sleep 1\n" if sleep else "") + f"s_branch {lab}\n{done}:")
    def lds_inc(self, off, vbase, vone):
        self(f"s_mov_b64 exec, 1\nds_add_u32 {vbase}, {vone} offset:{off}\ns_mov_b64 exec, -1")

INV576 = f2h(1.0/576)
def ln_finish(A, mean, var, rs):
    A(f"v_max_f32 {var}, 0, {var}")
    A.r1(mean, var)
    A(f"v_add_f32 {var}, 0x3727c5ac, {var}")
    A.r1(var)
    A(f"v_sqrt_f32 {var}, {var}\ns_nop 0")
    A.r1(var)
    A(f"v_rcp_f32 {rs}, {var}\ns_nop 0")

def dma_tile(A, srd, voff, rowstride, ldsbase, ninstr=72, nt=None):
    if nt is None: nt = A.nt
    A(f"s_mul_i32 s44, s3, {8*rowstride}\ns_lshl_b32 s45, s3, 10\ns_add_u32 s45, s45, {ldsbase}")
    for i in range((ninstr + 15)//16):
        skip = None
        if (i+1)*16 > ninstr:
            skip = A.label("DS")
            A(f"s_cmp_ge_u32 s3, {ninstr - 16*i}\ns_cbranch_scc1 {skip}")
        A(f"s_mov_b32 m0, s45\ns_add_u32 s45, s45, 16384")
        A(f"buffer_load_dwordx4 {voff}, s[{srd}:{srd+3}], s44 offen{nt} lds")
        A(f"s_add_u32 s44, s44, {128*rowstride}")
        if skip: A(f"{skip}:")

def bfrags(A, vaddr, vb=52, nks=18, rowb=128):
    base = 0
    for ks in range(nks):
        for half in range(2):
            off = (ks*32 + half*16) * rowb
            if off - base > 65535:
                A(f"v_add_u32 {vaddr}, {off - base}, {vaddr}"); base = off
            A(f"ds_read_b64_tr_b16 {vr(vb + ks*4 + half*2,2)}, {vaddr} offset:{off - base}")

def kv_chunk_base(A, rp, dst, t, SP):
    A(f"""
    s_lshr_b32 {t}, {rp}, 3
    s_lshl_b32 {dst}, s4, 1
    s_add_u32 {dst}, {dst}, {t}
    s_bfe_u32 {t}, {rp}, 0x10002
    s_lshl_b32 {t}, {t}, 4
    s_add_u32 {dst}, {dst}, {t}
    s_lshl_b32 {dst}, {dst}, 21
    s_and_b32 {t}, {rp}, 3
    s_lshl_b32 {t}, {t}, {SP}
    s_add_u32 {dst}, {dst}, {t}
    s_add_u32 {dst}, {dst}, {6144*256}
    """)

def gemv_mfma(A, vaaddr, vb=52, va=24, vd=20, depth=7, nks=18, mid=None):
    depth = min(depth, nks)
    def rd(ks):
        A(f"ds_read_b128 {vr(va + (ks % depth)*4,4)}, {vaaddr} offset:{ks*64}")
    for ks in range(depth): rd(ks)
    for ks in range(nks):
        issued = min(nks, depth + ks)
        A(f"s_waitcnt lgkmcnt({issued - ks - 1})")
        c = "0" if ks == 0 else vr(vd, 4)
        A(f"v_mfma_f32_16x16x32_bf16 {vr(vd,4)}, {vr(va + (ks % depth)*4,4)}, {vr(vb+ks*4,4)}, {c}")
        if ks + depth < nks: rd(ks + depth)
        if mid and ks == mid[0]: A(mid[1])

def fold8(A, n, a, b, t, swapb=True):
    for i in range(1, n):
        A(f"v_add_f32 v{a}, v{a}, v{a+2*i}\nv_add_f32 v{b}, v{b}, v{b+2*i}")
    A(f"""
    s_nop 1
    v_permlane32_swap_b32 v{a}, v{b}
    v_add_f32 v{a}, v{a}, v{b}
    v_mov_b32 v{t}, v{a}
    s_nop 1
    v_permlane16_swap_b32 v{a}, v{t}
    v_add_f32 v{a}, v{a}, v{t}
    s_nop 1
    v_add_f32_dpp v{a}, v{a}, v{a} row_ror:8 {DPPM}
    """)

def build(stamps=False, nt="nt", adelay=True, dbg=0, w2first=0, qs=2, ps=2, pt=1, diag=0, ql=0, rgw=0, il=2, trig=1, pf=0, fgs=13, ordr=0, nb1=0, nb2=0, mlt=0, c3=1, hq=0, fl=0, ppt=0, probe=0, cfm=6, x4=1, me=0, tm=96, dq=0, dv=0, ds5=0, nr=8, qpt=0, qv=1, qlay=1, pc=0, fpos=0, hs=0, hp=2, xk=0, wm=0, at=0, an=2, ks=2, tp=0, osc=1, wb=0, wb0=0, ot=0):
    NJ = 18*ks; RW = 576//ks; JX = 4 if ks == 2 else 6
    CH, BL, SP = {0: (15, 13, 17), 1: (17, 15, 13), 2: (17, 13, 15)}[il]
    global SPIN, NLOC
    if diag: SPIN = 60; NLOC = 100
    A = G(stamps, nt)
    def vtail(n, level, w0):
        lab = A.label("VT")
        A(f"""
        s_sub_u32 s48, s3, {w0}
        s_cmp_ge_u32 s48, {n}
        s_cbranch_scc1 {lab}
        s_and_b32 s49, s48, 1
        s_lshl_b32 s50, s5, 1
        s_add_u32 s50, s50, s49
        """)
        kv_chunk_base(A, "s50", "s44", "s45", SP)
        A(f"""
        s_lshr_b32 s48, s48, 1
        s_sub_u32 s48, 3, s48
        s_lshl_b32 s48, s48, {BL}
        s_add_u32 s44, s44, s48
        s_add_u32 s44, s44, {level << CH}
        v_lshl_add_u32 v20, v1, 7, s44
        global_load_dword v125, v20, {sp(V_)}{A.nt}
        {lab}:
        """)
    NT = A.nt
    A.header(256, 1024, LDS_BYTES)
    A(f"""
    s_cmp_ge_u32 s2, 256
    s_cbranch_scc1 L_exit
    s_load_dwordx16 s[16:31], s[0:1], 0
    s_load_dwordx8 s[32:39], s[0:1], 64
    s_load_dwordx2 s[40:41], s[0:1], 96
    s_load_dwordx2 s[42:43], s[0:1], 112
    {'s_load_dwordx2 s[94:95], s[0:1], 104' if at else ''}
    v_lshrrev_b32 v2, 6, v0
    v_and_b32 v1, 63, v0
    s_and_b32 s4, s2, 7
    v_readfirstlane_b32 s3, v2
    s_lshr_b32 s5, s2, 3
    v_mov_b32 v3, 0
    """)
    if stamps:
        A("v_mov_b32 v127, 0\ns_memrealtime s[98:99]")
    A(f"""
    s_cmp_lg_u32 s5, 24
    s_cbranch_scc1 L_nopf
    s_getpc_b64 s[44:45]
    L_pfbase:
    s_sub_u32 s44, s44, L_pfbase-{NAME}_kernel
    s_subb_u32 s45, s45, 0
    v_lshlrev_b32 v4, 7, v0
    v_cmp_gt_u32 vcc, L_codeend-{NAME}_kernel, v4
    s_and_saveexec_b64 s[46:47], vcc
    s_cbranch_execz L_pfd
    global_load_dword v5, v4, s[44:45]
    L_pfd:
    s_mov_b64 exec, -1
    """)
    if tp:
        A(f"""
        s_min_u32 s44, s3, 14
        s_lshl_b32 s45, s44, 3
        s_load_dwordx2 s[60:61], s[0:1], s45
        s_lshl_b32 s44, s44, 1
        s_lshr_b32 s44, {(2<<6)|(2<<8)|(2<<12)|(2<<16)|(1<<22)}, s44
        s_and_b32 s44, s44, 3
        v_min_u32 v4, s44, v1
        v_lshlrev_b32 v4, 21, v4
        v_and_b32 v6, 1, v1
        v_bfe_u32 v7, v1, 1, 1
        v_lshl_or_b32 v6, v7, 4, v6
        s_lshl_b32 s44, s4, 1
        v_add_u32 v6, s44, v6
        v_lshlrev_b32 v6, 21, v6
        s_cmp_eq_u32 s3, 2
        s_cselect_b64 vcc, -1, 0
        v_or_b32 v6, 0x180000, v6
        v_cndmask_b32 v4, v4, v6, vcc
        s_mov_b64 exec, 15
        s_waitcnt lgkmcnt(0)
        global_load_dword v126, v4, s[60:61] nt
        s_mov_b64 exec, -1
        """)
    A(f"""
    L_nopf:
    s_cmp_lt_u32 s5, 16
    s_cbranch_scc1 L_A
    {'s_branch L_exit' if diag & 32 else ''}
    s_sub_u32 s5, s5, 16                  ; u
    s_sub_u32 s55, s2, {25*8}
    s_min_u32 s47, s4, {JX}
    s_mul_i32 s48, s4, {JX}
    s_add_u32 s47, s47, s48
    s_add_u32 s47, s47, s5
    s_sub_u32 s47, s47, 9
    s_mul_i32 s48, s47, 0xe39
    s_lshr_b32 s48, s48, 16               ; ksp
    s_mul_i32 s49, s48, 18
    s_sub_u32 s49, s47, s49               ; cgp
    s_mul_i32 s50, s48, {RW*6912}
    s_lshl_b32 s51, s49, 7
    s_add_u32 s50, s50, s51               ; M offset
    s_lshl_b32 s51, s4, 3
    s_add_u32 s51, s51, s5                ; qb
    s_lshl_b32 s52, s51, 7                ; B offset
    v_lshrrev_b32 v4, 3, v1
    v_bfe_u32 v6, v1, 4, 2
    v_lshlrev_b32 v6, 1, v6
    v_and_b32 v7, 7, v1
    v_xor_b32 v6, v6, v7
    s_movk_i32 s53, 6912
    s_lshl_b32 s44, s4, 1
    s_add_u32 s44, s44, s5
    s_lshl_b32 s44, s44, 8
    s_sub_u32 s44, s44, {28*128 - 2304}
    s_sub_u32 s45, s5, 8
    s_cmp_ge_u32 s45, {6 if me else 99}   ; u < 8 or u >= 14
    s_cselect_b32 s54, 72, {RW//8}             ; count
    s_cselect_b32 s50, s44, s50
    s_cselect_b32 s56, 0, s55
    s_cmp_lt_u32 s5, 8
    s_cselect_b32 s50, s52, s50
    s_cselect_b32 s53, 8192, s53          ; stride
    s_mul_i32 s10, s53, 576
    s_cselect_b32 s47, s51, s47
    s_cselect_b32 s55, 0, s55
    v_mul_u32_u24 v14, s53, v4
    v_lshl_add_u32 v14, v6, 4, v14
    v_add_u32 v15, s50, v14
    s_mov_b32 s11, 0x20000
    s_lshl_b32 s53, s53, 3
    s_mul_i32 s44, s3, s53
    s_lshl_b32 s53, s53, 4
    s_lshl_b32 s45, s3, 10
    s_mov_b32 s46, s3
    s_cmp_lt_u32 s5, 8
    s_waitcnt lgkmcnt(0)
    s_cselect_b32 s8, s{WQ_}, s{WM_}
    s_cselect_b32 s9, s{WQ_+1}, s{WM_+1}
    s_and_b32 s9, s9, 0xffff
    s_cmp_ge_u32 s56, {NJ}
    s_cbranch_scc1 L_W_nodma
    L_W_dma:
    s_mov_b32 m0, s45
    s_add_u32 s45, s45, 16384
    buffer_load_dwordx4 v15, s[8:11], s44 offen{'' if wm & 1 else NT} lds
    s_add_u32 s44, s44, s53
    s_add_u32 s46, s46, 16
    s_cmp_lt_u32 s46, s54
    s_cbranch_scc1 L_W_dma
    L_W_nodma:
    s_load_dword s6, {sp(WS_)}, {WS_EPOCH}
    s_branch L_W
    """)
    A(f"""
    L_A:
    """)
    if ordr:
        t0_, t1_ = {1: (0xd8, 0xd8), 2: (0xe4, 0xd2), 3: (0xd8, 0xd2)}[ordr]
        A(f"""
        s_bitcmp1_b32 s5, 0
        s_movk_i32 s44, {t0_}
        s_cselect_b32 s44, {t1_}, s44
        s_lshr_b32 s45, s3, 2
        s_lshl_b32 s45, s45, 1
        s_lshr_b32 s44, s44, s45
        s_and_b32 s44, s44, 3
        s_and_b32 s3, s3, 3
        s_lshl_b32 s44, s44, 2
        s_or_b32 s3, s3, s44
        """)
    A(f"""
    v_mov_b32 v4, {AL}
    v_lshl_add_u32 v5, v1, 2, v4
    v_bfe_i32 v6, v1, 5, 1
    ds_write_b32 v5, v6 offset:{L_CNT}
    s_lshr_b32 s44, s5, 3
    s_lshl_b32 s45, s4, 1
    s_add_u32 s46, s45, s44            ; hkv
    s_bfe_u32 s47, s5, 0x10002          ; b
    s_and_b32 s48, s5, 3                ; sp
    s_lshl_b32 s49, s47, 4
    s_add_u32 s49, s49, s46             ; b*16+hkv
    s_lshl_b32 s49, s49, 21
    s_lshl_b32 s50, s48, {SP}
    s_add_u32 s49, s49, s50
    s_add_u32 s49, s49, {6144*256}
    s_bfe_u32 s51, s3, 0x10002            ; g
    s_and_b32 s44, s3, 3
    s_lshl_b32 s50, s51, {CH+1}
    s_add_u32 s49, s49, s50
    s_lshl_b32 s50, s44, {BL}
    s_add_u32 s49, s49, s50
    s_lshl_b32 s45, s51, 3
    s_add_u32 s48, s44, s45
    v_and_b32 v9, 3, v1
    v_mov_b32 v7, 1
    s_cmp_ge_u32 s3, 8
    s_cbranch_scc1 L_AV
    s_add_u32 s49, s49, 4096
    v_bfe_u32 v5, v1, 2, 2
    v_lshlrev_b32 v5, 8, v5
    v_and_b32 v6, 48, v1
    v_lshl_or_b32 v5, v6, 2, v5
    v_lshl_or_b32 v5, v9, 4, v5
    s_waitcnt lgkmcnt(0)
    s_load_dword s6, {sp(WS_)}, {WS_EPOCH}
    s_add_u32 s52, s{K_}, s49
    s_addc_u32 s53, s{K_+1}, 0
    s_add_u32 s54, s52, {1 << CH}
    s_addc_u32 s55, s53, 0
    """)
    if adelay: A("s_waitcnt lgkmcnt(0)")
    A("s_barrier")
    if xk:
        A("s_sub_u32 s58, s52, 0x80000\ns_subb_u32 s59, s53, 0\ns_sub_u32 s60, s54, 0x80000\ns_subb_u32 s61, s55, 0")
        for t in range(16):
            A(f"global_load_dwordx4 {vr(32+4*t,4)}, v5, s[{58+2*(t>>3)}:{59+2*(t>>3)}] offset:{(t&7)*1024-4096}{NT}")
    for t in range(16):
        A(f"global_load_dwordx4 {vr(32+4*t,4)}, v5, s[{52+2*(t>>3)}:{53+2*(t>>3)}] offset:{(t&7)*1024-4096}{NT}")
    if stamps: A("s_waitcnt lgkmcnt(0)\nv_writelane_b32 v127, s98, 0")
    A.stamp(1)
    A(f"""
    v_bfe_u32 v8, v1, 2, 1
    v_lshlrev_b32 v8, 8, v8
    v_lshl_or_b32 v8, v6, 2, v8
    v_lshl_or_b32 v8, v9, 4, v8
    v_add_u32 v8, v4, v8
    v_bfe_u32 v11, v1, 4, 1
    v_mul_u32_u24 v10, {PSTR}, v11
    v_and_b32 v12, 1, v1
    v_lshl_add_u32 v10, v12, 5, v10
    v_lshrrev_b32 v13, 5, v1
    v_lshl_add_u32 v10, v13, 4, v10
    v_bfe_u32 v13, v1, 1, 1
    v_lshl_add_u32 v10, v13, 3, v10
    v_bfe_u32 v13, v1, 2, 2
    v_lshl_add_u32 v10, v13, 1, v10
    s_lshl_b32 s44, s48, 6
    s_add_u32 s44, s44, {AL + L_P}
    v_add_u32 v10, s44, v10
    v_mul_u32_u24 v12, {PSTR}, v12
    v_add3_u32 v12, v12, v6, v4
    v_lshl_add_u32 v11, v11, 5, v4
    v_and_b32 v13, 31, v1
    v_lshl_add_u32 v13, v13, 2, v4
    s_lshl_b32 s44, s3, 2
    v_add_u32 v11, s44, v11
    v_bfe_u32 v17, v1, 4, 1
    v_lshl_add_u32 v17, v17, 5, v11
    v_and_b32 v18, 32, v1
    v_add_u32 v17, v17, v18
    v_bfe_u32 v14, v1, 2, 3
    v_xor_b32 v14, s3, v14
    v_lshlrev_b32 v14, 5, v14
    v_lshrrev_b32 v15, 2, v1
    v_lshl_or_b32 v14, v15, 8, v14
    v_lshl_or_b32 v14, v9, 3, v14
    v_add_u32 v15, {12*8192}, v14
    v_and_b32 v14, 15, v1
    v_lshl_add_u32 v14, v14, 3, v4
    s_lshl_b32 s44, s3, 7
    v_add_u32 v14, s44, v14
    s_mov_b32 s58, 0x22222222
    s_mov_b32 s59, 0x22222222
    s_mov_b32 s60, 0x44444444
    s_mov_b32 s61, 0x44444444
    s_mov_b32 s62, 0x88888888
    s_mov_b32 s63, 0x88888888
    s_lshl_b32 s44, s47, 14
    s_lshl_b32 s45, s46, 10
    s_add_u32 s44, s44, s45
    s_lshl_b32 s45, s3, 7
    s_add_u32 s44, s44, s45
    s_add_u32 s44, s44, {WS_QG}
    s_add_u32 s56, s{WS_}, s44
    s_addc_u32 s57, s{WS_+1}, 0
    s_lshl_b32 s50, s4, 4
    s_add_u32 s50, s50, s5
    s_lshl_b32 s50, s50, 10
    s_add_u32 s50, s50, s45
    s_add_u32 s50, s50, {WS_OG}
    v_lshl_add_u32 v6, v1, 3, s50
    s_waitcnt lgkmcnt(0)
    """)
    A.mktag()
    A(f"""
    """)
    if qlay:
        A(f"""
        s_sub_u32 s44, s44, {WS_QG}
        s_lshl_b32 s44, s44, 3
        s_add_u32 s44, s44, {WS_QL}
        s_add_u32 s52, s{WS_}, s44
        s_addc_u32 s53, s{WS_+1}, 0
        """)
    else:
        A(f"s_add_u32 s52, s56, {WS_QL - WS_QG}\ns_addc_u32 s53, s57, 0")
    A(f"""
    s_waitcnt vmcnt(0)
    """)
    if qv:
        A.lds_inc(L_CNT+12, "v4", "v7")
        A.lds_spin(L_CNT+12, 8, "v16", "v4")
    A(f"""
    s_mov_b32 s7, {0 if ql else nr}
    L_A_qpoll:
    s_add_u32 s7, s7, 1
    s_cmp_gt_u32 s7, {SPIN}
    s_cbranch_scc1 L_end
    s_cmp_gt_u32 s7, {nr}
    s_cbranch_scc1 L_A_qg
    s_load_dwordx16 s[64:79], s[52:53], 0
    s_load_dwordx16 s[80:95], s[52:53], 64
    s_add_u32 s52, s52, {128 if qlay else 32768}
    s_addc_u32 s53, s53, 0
    s_branch L_A_qc
    L_A_qr:
    s_sleep {qs}
    s_branch L_A_qpoll
    L_A_qg:
    s_load_dwordx16 s[64:79], s[56:57], 0 glc
    s_load_dwordx16 s[80:95], s[56:57], 64 glc
    L_A_qc:
    s_waitcnt lgkmcnt(0)
    """)
    for i in range(16):
        A(f"s_cmp_lg_u32 s{65+2*i}, {TAG}\ns_cbranch_scc1 L_A_qr")
    A("s_mov_b64 exec, 1")
    for i in range(16):
        A(f"v_mov_b32 v{96+i}, s{64+2*i}")
    A(f"s_lshl_b32 s44, s3, 6\nv_add_u32 v20, s44, v4")
    for i in range(4):
        A(f"ds_write_b128 v20, {vr(96+4*i,4)} offset:{L_Q+16*i}")
    A(f"""
    ds_add_u32 v4, v7 offset:{L_CNT}
    s_mov_b64 exec, -1
    s_mov_b32 s56, 0xff00ff00
    s_mov_b32 s57, 0xff00ff00
    """)
    A.lds_spin(L_CNT, 8, "v16", "v4", sleep=False)
    A.stamp(2)
    A(f"ds_read_b128 v[20:23], v8 offset:{L_Q}\ns_waitcnt lgkmcnt(0)")
    for i in range(4):
        A(f"v_cndmask_b32 v{24+i}, 0, v{20+i}, s[56:57]")
        A(f"v_cndmask_b32 v{20+i}, v{20+i}, 0, s[56:57]")
    A("s_waitcnt vmcnt(0)\ns_nop 0")
    D = [96, 32]
    def qk(z, i):
        u = i & 3
        if i < 4: A(f"v_mfma_f32_16x16x32_bf16 {vr(D[z]+4*u,4)}, v[20:23], {vr(32+32*z+8*u,4)}, 0")
        else: A(f"v_mfma_f32_16x16x32_bf16 {vr(D[z]+4*u,4)}, v[24:27], {vr(36+32*z+8*u,4)}, {vr(D[z]+4*u,4)}")
    def red(z, u):
        t = 112 + 4*z
        A(f"v_mov_b32_dpp v{t+u}, v{D[z]+4*u} quad_perm:[0,0,0,0] {DPPM}")
        for c in range(1, 4):
            A(f"v_add_f32_dpp v{t+u}, v{D[z]+4*u+c}, v{t+u} quad_perm:[{c},{c},{c},{c}] {DPPM}")
    for i in range(8): qk(0, i)
    for i in range(5): qk(1, i)
    for u in range(3):
        red(0, u); qk(1, 5+u)
    red(0, 3)
    for k, m in ((1, 58), (2, 60), (3, 62)):
        A(f"v_cndmask_b32 v112, v112, v{112+k}, s[{m}:{m+1}]")
    for u in range(4): red(1, u)
    A.stamp(3)
    for k, m in ((1, 58), (2, 60), (3, 62)):
        A(f"v_cndmask_b32 v116, v116, v{116+k}, s[{m}:{m+1}]")
    A.r1("v112", "v116")
    A("v_mul_f32 v112, 0x3db504f3, v112\nv_mul_f32 v116, 0x3db504f3, v116")
    A.r1("v112", "v116")
    A("v_max_f32 v113, v112, v116")
    A.row_reduce("v_max_f32", ["v113"])
    A(f"""
    s_mov_b32 exec_lo, 0x10001
    s_mov_b32 exec_hi, 0x10001
    ds_write_b32 v17, v113 offset:{L_MX}
    s_mov_b64 exec, -1
    ds_read_b32 v118, v4 offset:{L_CNT+28}
    v_mul_f32 v112, {hex(LOG2E)}, v112
    v_mul_f32 v116, {hex(LOG2E)}, v116
    s_mov_b32 s45, {hex(LOG2E)}
    """)
    A.spin_head("L_A_mx")
    A(f"""
    ds_read_b32 v113, v13 offset:{L_MX}
    s_waitcnt lgkmcnt(0)
    v_cmp_eq_u32 vcc, -1, v113
    s_cbranch_vccnz L_A_mx
    v_readfirstlane_b32 s67, v118
    """)
    A.row_reduce("v_max_f32", ["v113"])
    A(f"""
    v_fma_f32 v112, -v113, s45, v112
    v_fma_f32 v116, -v113, s45, v116
    v_exp_f32 v112, v112
    v_exp_f32 v116, v116
    s_nop 0
    v_cvt_pk_bf16_f32 v115, v112, v116
    ds_write_b16 v10, v115
    ds_write_b16_d16_hi v10, v115 offset:256
    v_add_f32 v112, v112, v116
    """)
    A.row_reduce("v_add_f32", ["v112"])
    A(f"""
    s_mov_b32 exec_lo, 0x10001
    s_mov_b32 exec_hi, 0x10001
    ds_write_b32 v17, v112 offset:{L_LS}
    s_mov_b64 exec, 1
    ds_add_u32 v4, v7 offset:{L_CNT+8}
    s_mov_b64 exec, -1
    v_mov_b32 v20, v113
    """)
    def vreads3():
        for k in range(4):
            for half in range(2):
                A(f"ds_read_b64_tr_b16 {vr(32+4*k+2*half,2)}, v15 offset:{k*8192 + half*4096}")
    A("s_cmp_lt_u32 s67, 4\ns_cbranch_scc1 L_A_np")
    vreads3()
    A("L_A_np:")
    A.lds_spin(L_CNT+8, 8, "v16", "v4", sleep=False)
    A.stamp(4)
    for k in range(4):
        A(f"ds_read_b128 {vr(64+4*k,4)}, v12 offset:{L_P + (12+k)*64}")
    A(f"""
    s_cmp_lg_u32 s3, 0
    s_cbranch_scc1 L_A_nml
    ds_read_b32 v21, v13 offset:{L_LS}
    s_lshl_b32 s50, s4, 4
    s_add_u32 s50, s50, s5
    s_lshl_b32 s50, s50, 7
    s_add_u32 s50, s50, {WS_MLG}
    v_mov_b32 v24, s50
    v_mov_b32 v22, v20
    s_waitcnt lgkmcnt(0)
    """)
    A.row_reduce("v_add_f32", ["v21"])
    A("""
    v_mov_b32 v23, v21
    v_permlane16_swap_b32 v20, v22
    s_nop 0
    v_permlane16_swap_b32 v21, v23
    """)
    for r in range(20, 24): A.epack(f"v{r}", f"v{r}")
    A("s_mov_b64 exec, 1")
    A.dual_store("global_store_dwordx4", "v24", "v[20:23]")
    A("s_mov_b64 exec, -1")
    A.stamp(7)
    A("L_A_nml:")
    def vm(k, wait):
        A(f"s_waitcnt lgkmcnt({wait})")
        A(f"v_mfma_f32_16x16x32_bf16 v[112:115], {vr(64+4*k,4)}, {vr(32+4*k,4)}, {'0' if k == 0 else 'v[112:115]'}")
    def pd():
        A.lds_spin(L_CNT+32, 4, "v120", "v4", sleep=False)
        A(f"ds_read_b64 v[118:119], v14 offset:{L_PD}")
    A("s_cmp_lt_u32 s67, 4\ns_cbranch_scc1 L_A_slow")
    for k in range(4): vm(k, 3-k)
    A("L_A_pd:")
    pd()
    A("s_waitcnt lgkmcnt(0)\ns_branch L_A_fin\nL_A_slow:")
    A.spin_head("L_A_w")
    A(f"""
    ds_read2_b32 v[120:121], v4 offset0:{(L_CNT+28)//4} offset1:{(L_CNT+32)//4}
    s_waitcnt lgkmcnt(0)
    v_readfirstlane_b32 s44, v120
    v_readfirstlane_b32 s45, v121
    s_cmp_ge_u32 s45, 4
    s_cbranch_scc1 L_A_y
    s_cmp_lt_u32 s44, 4
    s_cbranch_scc1 L_A_w
    """)
    vreads3()
    for k in range(4): vm(k, 6-2*k)
    A(f"s_branch L_A_pd\nL_A_y:\nds_read_b64 v[118:119], v14 offset:{L_PD}\ns_cmp_ge_u32 s44, 4\ns_cbranch_scc1 L_A_y2")
    A.lds_spin(L_CNT+28, 4, "v120", "v4", sleep=False)
    A("L_A_y2:")
    vreads3()
    for k in range(4): vm(k, 6-2*k)
    A("s_nop 6\nL_A_fin:\ns_mov_b64 exec, 0xffff\nv_add_f32 v112, v112, v118\nv_add_f32 v113, v113, v119")
    A.epack("v116", "v112"); A.epack("v117", "v113")
    A.dual_store("global_store_dwordx2", "v6", "v[116:117]")
    A("s_mov_b64 exec, -1")
    A.stamp(6)
    A("s_branch L_end")
    A(f"""
    L_AV:
    s_lshl_b32 s45, s48, 13
    s_mov_b32 s44, s49                    ; soffset
    v_lshrrev_b32 v5, 4, v1
    v_lshlrev_b32 v6, 1, v5
    v_and_b32 v8, 15, v1
    v_xor_b32 v6, v6, v8
    v_lshlrev_b32 v6, 4, v6
    v_lshl_or_b32 v5, v5, 8, v6
    v_xor_b32 v6, 128, v5
    s_waitcnt lgkmcnt(0)
    s_load_dword s6, {sp(WS_)}, {WS_EPOCH}
    """)
    A.srd(8, V_, 0x4000000)
    A("s_barrier")
    for hf in range(2):
        for q4 in range(2):
            A("s_mov_b32 m0, s45\ns_nop 0")
            for n in range(4):
                A(f"buffer_load_dwordx4 {'v6' if n & 1 else 'v5'}, s[8:11], s44 offen offset:{n*1024}{NT} lds")
            if q4 == 0: A("s_add_u32 s45, s45, 4096\ns_add_u32 s44, s44, 4096")
            elif hf == 0: A(f"s_add_u32 s45, s45, {4*8192 - 4096}\ns_add_u32 s44, s44, {(1 << CH) - 4096}")
    if stamps: A("s_waitcnt lgkmcnt(0)\nv_writelane_b32 v127, s98, 0")
    A.stamp(1)
    if pf:
        A(f"""
        s_cmp_lt_u32 s3, 11
        s_cbranch_scc1 L_AV_np
        s_mul_i32 s45, s5, 5
        s_add_u32 s45, s45, s3
        s_lshl_b32 s50, s45, 6
        s_sub_u32 s50, s50, {10*64}
        s_lshl_b32 s44, s51, 3
        v_add_u32 v5, s44, v4
        v_add_u32 v20, s50, v1
        v_mul_u32_u24 v21, 0x1c72, v20
        v_lshrrev_b32 v21, 16, v21
        v_mul_u32_u24 v22, 9, v21
        v_sub_u32 v22, v20, v22
        v_mul_u32_u24 v21, 9216, v21
        v_lshl_add_u32 v21, v22, 7, v21
        s_mul_i32 s50, s4, 1152
        v_add_u32 v21, s50, v21
        global_load_dword v29, v21, {sp(W1_)}{NT}
        s_mov_b64 exec, 1
        s_waitcnt vmcnt(9)
        ds_add_u32 v5, v7 offset:{L_CNT+16}
        s_waitcnt vmcnt(1)
        ds_add_u32 v5, v7 offset:{L_CNT+20}
        s_mov_b64 exec, -1
        """)
        A.stamp(5)
        A("s_waitcnt vmcnt(0) lgkmcnt(0)\ns_branch L_end\nL_AV_np:")
    if at == 3: A("""
        s_and_b32 s44, s5, 3
        s_cmp_lg_u32 s44, 0
        s_cbranch_scc1 L_AV_ns
        s_cmp_lg_u32 s3, 12
        s_cbranch_scc1 L_AV_ns
        s_lshl_b32 s44, s4, 5
        s_add_u32 s94, s94, s44
        s_addc_u32 s95, s95, 0
        s_mov_b32 s44, 1
        s_atomic_add s44, s[94:95], 0
        L_AV_ns:
        """)
    A(f"""
    s_lshl_b32 s44, s51, 3
    v_add_u32 v5, s44, v4
    s_mov_b64 exec, 1
    s_waitcnt vmcnt(8)
    ds_add_u32 v5, v7 offset:{L_CNT+16}
    """)
    if at == 1: A("""
        s_and_b32 s44, s5, 3
        s_cmp_lg_u32 s44, 0
        s_cbranch_scc1 L_AV_ns
        s_cmp_lg_u32 s3, 8
        s_cbranch_scc1 L_AV_ns
        s_lshl_b32 s44, s4, 5
        s_add_u32 s94, s94, s44
        s_addc_u32 s95, s95, 0
        s_mov_b32 s44, 1
        s_atomic_add s44, s[94:95], 0
        L_AV_ns:
        """)
    A(f"""
    s_waitcnt vmcnt(0)
    {f's_sleep {dv}' if dv else ''}
    ds_add_u32 v5, v7 offset:{L_CNT+20}
    s_mov_b64 exec, -1
    """)
    if at == 2: A("""
        s_and_b32 s44, s5, 3
        s_cmp_lg_u32 s44, 0
        s_cbranch_scc1 L_AV_ns
        s_cmp_lg_u32 s3, 8
        s_cbranch_scc1 L_AV_ns
        s_lshl_b32 s44, s4, 5
        s_add_u32 s94, s94, s44
        s_addc_u32 s95, s95, 0
        s_mov_b32 s44, 1
        s_atomic_add s44, s[94:95], 0
        L_AV_ns:
        """)
    A.stamp(5)
    A(f"""
    s_waitcnt lgkmcnt(0)
    s_cmp_ge_u32 s3, 12
    s_cbranch_scc1 L_end
    s_and_b32 s45, s3, 3
    s_lshl_b32 s45, s45, 1
    v_bfe_u32 v5, v1, 2, 3
    v_xor_b32 v5, s45, v5
    v_lshlrev_b32 v5, 5, v5
    v_lshrrev_b32 v6, 2, v1
    v_lshl_or_b32 v5, v6, 8, v5
    v_lshl_or_b32 v5, v9, 3, v5
    v_xor_b32 v6, 32, v5
    v_and_b32 v3, 1, v1
    v_mul_u32_u24 v3, {PSTR}, v3
    v_and_b32 v2, 48, v1
    v_add3_u32 v3, v3, v2, v4
    v_lshl_add_u32 v2, v8, 3, v4
    s_lshl_b32 s45, s45, 7
    v_add_u32 v2, s45, v2
    """)
    def B(t, ks): return 16 + 8*ks + 4*t
    def tr(ks0, ks1):
        for ks in range(ks0, ks1):
            for t in range(2):
                for half in range(2):
                    A(f"ds_read_b64_tr_b16 {vr(B(t,ks)+2*half,2)}, v{5+t} offset:{(ks&7)*8192 + half*4096}")
    def chain(ks0, ks1):
        n = ks1 - ks0
        free = [112, 116, 120]; loc = {}; issued = 0
        def issue():
            nonlocal issued
            while free and issued < n:
                loc[issued] = free.pop(0)
                A(f"ds_read_b128 {vr(loc[issued],4)}, v3 offset:{L_P + (ks0+issued)*64}")
                issued += 1
        issue()
        for i in range(n):
            ks = ks0 + i
            A(f"s_waitcnt lgkmcnt({issued - i - 1})")
            for t in range(2):
                A(f"v_mfma_f32_16x16x32_bf16 {vr(8+4*t,4)}, {vr(loc[i],4)}, {vr(B(t,ks),4)}, {'0' if ks == 0 else vr(8+4*t,4)}")
            free += [B(0, ks), loc[i], B(1, ks)]
            issue()
    A.lds_spin(L_CNT+20, 4, "v124", "v4")
    tr(0, 8)
    A("v_add_u32 v5, 0x10000, v5\nv_add_u32 v6, 0x10000, v6")
    A.spin_head("L_AV_w")
    A(f"""
    ds_read2_b32 v[124:125], v4 offset0:{(L_CNT+8)//4} offset1:{(L_CNT+24)//4}
    s_waitcnt lgkmcnt(0)
    v_readfirstlane_b32 s44, v125
    v_readfirstlane_b32 s45, v124
    s_cmp_ge_u32 s44, 4
    s_cbranch_scc1 L_AV_x
    s_cmp_lt_u32 s45, 8
    s_cbranch_scc1 L_AV_w
    """)
    chain(0, 8)
    A.lds_spin(L_CNT+24, 4, "v124", "v4", sleep=False)
    tr(8, 12)
    chain(8, 12)
    A("s_branch L_AV_f\nL_AV_x:")
    tr(8, 12)
    A.lds_spin(L_CNT+8, 8, "v124", "v4", sleep=False)
    chain(0, 12)
    A(f"""
    L_AV_f:
    s_mov_b64 exec, 0xffff
    s_nop 6
    ds_write_b64 v2, v[8:9] offset:{L_PD}
    ds_write_b64 v2, v[12:13] offset:{L_PD+128}
    s_mov_b64 exec, 1
    ds_add_u32 v4, v7 offset:{L_CNT+32}
    s_mov_b64 exec, -1
    s_waitcnt lgkmcnt(0)
    """)
    A.stamp(8)
    A("s_branch L_end")

    A("L_W:")
    if stamps: A("v_writelane_b32 v127, s98, 0")
    A.stamp(1)
    A(f"""
    v_mov_b32 v18, {L_WCNT}
    ds_write2_b32 v18, v3, v3 offset1:1
    ds_write_b32 v18, v3 offset:8
    v_lshrrev_b32 v8, 5, v0
    v_lshlrev_b32 v8, 6, v8
    v_bfe_u32 v9, v0, 2, 2
    v_lshl_or_b32 v8, v9, 4, v8
    v_bfe_u32 v9, v0, 4, 1
    v_lshl_or_b32 v8, v9, 3, v8
    v_and_b32 v9, 3, v0
    v_lshl_or_b32 v8, v9, 1, v8
    v_add_u32 v8, {L_ACT}, v8
    s_and_b32 s46, s3, 3
    v_bfe_u32 v10, v1, 3, 2
    v_xor_b32 v10, s46, v10
    v_lshlrev_b32 v10, 5, v10
    v_lshrrev_b32 v11, 2, v1
    v_lshl_or_b32 v10, v11, 7, v10
    v_lshl_or_b32 v10, v9, 3, v10
    v_and_b32 v11, 48, v1
    v_add_u32 v11, {L_ACT}, v11
    v_and_b32 v12, 1, v1
    v_mul_u32_u24 v12, {4*ASTR}, v12
    v_add_u32 v12, v11, v12
    v_and_b32 v13, 4, v1
    v_mul_u32_u24 v13, {ASTR}, v13
    v_add_u32 v13, v11, v13
    v_mov_b32 v17, 1
    s_cmp_eq_u32 s5, 8
    s_cbranch_scc1 L_KT
    s_cbranch_scc0 L_Wd
    L_Wd:
    s_cmp_gt_u32 s5, 8
    s_cbranch_scc1 L_M
    s_waitcnt lgkmcnt(0)
    """)
    A.mktag()
    A(f"""
    s_barrier
    {'s_waitcnt vmcnt(0)' + chr(10) + 's_branch L_end' if diag & 4 else ''}
    s_cmp_ge_u32 s3, 9
    s_cbranch_scc1 L_B_nh
    s_mul_i32 s44, s4, 4608
    s_add_u32 s44, s44, {WS_HL}
    v_lshl_add_u32 v15, v0, 3, s44
    global_load_dwordx2 v[24:25], v15, {sp(WS_)} sc1
    s_waitcnt vmcnt(0)
    """)
    A.lds_inc(0, "v18", "v17")
    A.stamp(2)
    if nb1: vtail(nb1, 2, 0)
    A("s_mov_b32 s7, 0\ns_branch L_B_chk")
    A.dual_head("L_B_h", ["v15"], init=False)
    A(f"s_sleep {ps}")
    A(f"global_load_dwordx2 v[24:25], v15, {sp(WS_)} sc1\ns_waitcnt vmcnt(0)\nL_B_chk:")
    A.tagcheck(["v25"], None, None, "L_B_h")
    A(f"""
    ds_write_b16 v8, v24
    ds_write_b16_d16_hi v8, v24 offset:{4*ASTR}
    s_waitcnt lgkmcnt(0)
    """)
    A.stamp(3)
    A(f"""
    s_barrier
    s_branch L_S5
    L_B_nh:
    """)
    if ql and qpt:
        A(f"""
        s_cmp_lg_u32 s3, 9
        s_cbranch_scc1 L_B_npt
        v_bfe_u32 v15, v1, 4, 1
        v_lshlrev_b32 v15, 17, v15            ; b*16384*8
        v_and_b32 v16, 15, v1
        v_lshl_or_b32 v15, v16, 7, v15
        s_lshl_b32 s44, s47, 11
        s_add_u32 s44, s44, {WS_QL}
        v_add_u32 v15, s44, v15
        global_load_dword v16, v15, {sp(WS_)}{' nt' if qpt == 2 else ' sc1'}
        L_B_npt:
        """)
    A("s_waitcnt vmcnt(0)")
    A.lds_inc(0, "v18", "v17")
    A(f"""
    s_cmp_ge_u32 s3, 12
    s_cbranch_scc1 L_B_m
    s_waitcnt lgkmcnt(0)
    s_barrier
    s_branch L_S5
    L_B_m:
    """)
    A.lds_spin(0, 16, "v16", "v18")
    A.stamp(2)
    A("v_mov_b32 v15, v10")
    bfrags(A, "v15")
    A(f"""
    s_lshl_b32 s44, s47, 8
    s_lshl_b32 s45, s46, 6
    s_add_u32 s44, s44, s45
    s_add_u32 s44, s44, {WS_QG}
    v_and_b32 v15, 15, v1
    v_lshlrev_b32 v15, 2, v15
    v_bfe_u32 v16, v1, 4, 1
    v_lshl_or_b32 v15, v16, 14, v15
    v_add_u32 v15, s44, v15
    """)
    if qlay:
        A(f"""
        v_subrev_u32 v16, {WS_QG}, v15
        v_and_b32 v17, 0x78, v16
        v_and_b32 v16, 0xffffff80, v16
        v_lshl_or_b32 v16, v16, 3, v17
        v_and_b32 v17, 1, v1
        v_lshl_add_u32 v16, v17, 7, v16
        v_lshrrev_b32 v17, 5, v1
        v_lshl_add_u32 v16, v17, 8, v16
        v_add_u32 v16, {WS_QL}, v16
        """)
    else:
        A(f"""
    v_and_b32 v16, -8, v15
    v_and_b32 v17, 1, v1
    v_lshl_add_u32 v16, v17, 15, v16
    v_lshrrev_b32 v17, 5, v1
    v_lshl_add_u32 v16, v17, 16, v16
    v_add_u32 v16, {WS_QL - WS_QG}, v16
""")
    A(f"""
    s_waitcnt lgkmcnt(0)
    s_barrier
    """)
    gemv_mfma(A, "v13")
    A(f"""
    s_nop 7
    v_mov_b32_dpp v21, v20 quad_perm:[1,1,3,3] {DPPM}
    v_mov_b32_dpp v20, v20 quad_perm:[0,0,2,2] {DPPM}
    v_mov_b32 v23, {TAG}
    v_cvt_pk_bf16_f32 v22, v20, v21
    """)
    if ql:
        for i in range(nr//4):
            A(f"global_store_dwordx2 v16, v[22:23], {sp(WS_)}")
            if i < nr//4 - 1: A(f"v_add_u32 v16, {512 if qlay else 4*32768}, v16")
    A(f"""
    s_mov_b32 exec_lo, 0x55555555
    s_mov_b32 exec_hi, 0
    global_store_dwordx2 v15, v[22:23], {sp(WS_)} sc1
    s_mov_b64 exec, -1
    """)
    A.stamp(4)
    A("s_branch L_S5")

    A(f"""
    L_M:
    """)
    if me:
        A(f"s_cmp_lt_u32 s5, 14\ns_cbranch_scc1 L_M_n2\nv_add_u32 v16, 128, v15\ns_barrier")
        dma_tile(A, 8, "v16", 6912, L_BUF1, 72)
        A("s_barrier\nL_M_n2:")
    A(f"""
    s_cmp_ge_u32 s3, 9
    s_cbranch_scc1 L_M_bar0
    v_lshlrev_b32 v15, 1, v0
    global_load_ushort v16, v15, {sp(C_)}
    global_load_ushort v17, v15, {sp(C_)} offset:1152
    s_waitcnt vmcnt(0)
    v_lshlrev_b32 v16, 16, v16
    v_lshlrev_b32 v17, 16, v17
    v_mul_f32 v34, 0xbfb8aa3b, v16
    v_mul_f32 v35, 0xbfb8aa3b, v17
    v_exp_f32 v34, v34
    v_exp_f32 v35, v35
    s_nop 0
    v_add_f32 v34, 1.0, v34
    v_add_f32 v35, 1.0, v35
    v_rcp_f32 v34, v34
    v_rcp_f32 v35, v35
    s_nop 0
    v_mul_f32 v16, v16, v34
    v_mul_f32 v17, v17, v35
    v_cvt_pk_bf16_f32 v16, v16, v17
    ds_write_b16 v8, v16
    ds_write_b16_d16_hi v8, v16 offset:{4*ASTR}
    L_M_bar0:
    s_mul_i32 s44, s48, {RW*2}
    v_add_u32 v15, s44, v12
    s_mul_i32 s44, s48, {AGS}
    s_lshl_b32 s45, s49, 9
    s_add_u32 s44, s44, s45
    s_lshl_b32 s45, s46, 7
    s_add_u32 s44, s44, s45
    s_add_u32 s44, s44, {WS_AG}
    v_lshl_add_u32 v18, v1, {4 if x4 else 3}, s44
    s_waitcnt vmcnt(0) lgkmcnt(0)
    L_M_skip:
    """)
    A.mktag()
    A("s_barrier")
    A.stamp(2)
    A(f"s_cmp_lt_u32 s3, 12\ns_cbranch_scc1 L_M_bar1\ns_cmp_ge_u32 s55, {NJ}\ns_cbranch_scc1 L_M_bar1")
    bfrags(A, "v10", 52, RW//32)
    gemv_mfma(A, "v15", nks=RW//32)
    A("s_mov_b64 exec, 0xffff\ns_nop 6\nv_add_u32 v20, 4, v20\nv_add_u32 v21, 4, v21")
    A.epack("v22", "v20", 7); A.epack("v23", "v21", 7)
    if x4:
        A(f"s_nop 0\nv_mov_b32_dpp v24, v22 row_ror:8 {DPPM}\nv_mov_b32_dpp v25, v23 row_ror:8 {DPPM}\ns_mov_b64 exec, 0xff")
        A(f"global_store_dwordx4 v18, v[22:25], {sp(WS_)} sc1\ns_mov_b64 exec, -1")
    else:
        A(f"global_store_dwordx2 v18, v[22:23], {sp(WS_)} sc1\ns_mov_b64 exec, -1")
    A.stamp(3)
    A(f"""
    L_M_bar1:
    s_sub_u32 s44, s5, 9
    s_lshl_b32 s50, s44, 1                ; slot0 = 2(u-9)
    s_add_u32 s51, s50, 1
    s_add_u32 s45, s4, 44
    s_cmp_ge_u32 s4, 4
    s_cselect_b32 s45, s45, 255
    s_cmp_eq_u32 s5, 13
    s_cselect_b32 s51, s45, s51
    s_lshl_b32 s44, s4, 1
    s_add_u32 s44, s44, s5
    s_lshl_b32 s44, s44, 1
    s_sub_u32 s44, s44, {28 - 16}
    s_add_u32 s45, s44, 1
    s_cmp_ge_u32 s5, 14
    s_cselect_b32 s50, s44, s50
    s_cselect_b32 s51, s45, s51
    v_mul_u32_u24 v19, 1152, v4
    v_lshl_add_u32 v19, v6, 4, v19
    s_mul_i32 s44, s4, {512*1152}
    v_add_u32 v19, s44, v19
    """)
    A.srd(12, WO_, 4096*1152)
    A("s_barrier")
    if pt:
        A(f"""
        s_cmp_ge_u32 s3, 3
        s_cbranch_scc1 L_M_pt
        s_cmp_lg_u32 s5, 13
        s_cbranch_scc1 L_M_pt
        s_lshl_b32 s44, s4, 14
        s_lshl_b32 s45, s3, 13
        s_add_u32 s44, s44, s45
        s_add_u32 s44, s44, {WS_OG}
        s_lshl_b32 s45, s4, 11
        s_add_u32 s45, s45, {WS_MLG}
        s_cmp_eq_u32 s3, 2
        s_cselect_b32 s44, s45, s44
        s_cselect_b32 s45, 15, 63
        v_and_b32 v16, s45, v1
        v_lshl_add_u32 v16, v16, 7, s44
        global_load_dword v20, v16, {sp(WS_)} sc1
        L_M_pt:
        """)
    if me: A("s_cmp_ge_u32 s5, 14\ns_cbranch_scc1 L_sl1_d")
    for sl, (reg, buf) in enumerate((("s50", L_BUF0), ("s51", L_BUF1))):
        A(f"""
        s_lshl_b32 s52, {reg}, 7
        s_cmp_ge_u32 {reg}, 16
        s_cbranch_scc1 L_sl{sl}_m
        v_add_u32 v16, s52, v19
        """)
        dma_tile(A, 12, "v16", 1152, buf, 64, '' if wm & 2 else NT)
        A(f"""
        s_branch L_sl{sl}_d
        L_sl{sl}_m:
        s_cmp_eq_u32 {reg}, 255
        s_cbranch_scc1 L_sl{sl}_d
        s_add_u32 s52, s52, {2304 - 16*128}
        v_add_u32 v16, s52, v14
        """)
        dma_tile(A, 8, "v16", 6912, buf, 72, '' if wm & 2 else NT)
        A(f"L_sl{sl}_d:")
    A("s_waitcnt vmcnt(0)\ns_barrier")
    A.stamp(4)
    if diag & 8: A("s_branch L_end")
    A(f"""
    s_cmp_lt_u32 s3, 8
    s_cbranch_scc1 L_H_p
    s_cmp_ge_u32 s3, 12
    s_cselect_b32 s50, s51, s50
    s_cselect_b32 s44, {L_BUF1}, 0
    v_add_u32 v17, s44, v10
    s_cmp_lt_u32 s50, 16
    s_cbranch_scc1 L_A_s4m
    s_cmp_eq_u32 s50, 255
    s_cbranch_scc1 L_H_x
    s_lshl_b32 s44, s50, 9
    s_lshl_b32 s45, s46, 7
    s_add_u32 s44, s44, s45
    s_add_u32 s44, s44, {WS_MG - 16*512}
    v_lshl_add_u32 v18, v1, 3, s44
    """)
    bfrags(A, "v17")
    gemv_mfma(A, "v12")
    A(f"""
    s_mov_b64 exec, 0xffff
    s_nop 6
    v_cvt_pk_bf16_f32 v22, v20, v21
    v_mov_b32 v23, {TAG}
    global_store_dwordx2 v18, v[22:23], {sp(WS_)} sc1
    s_mov_b64 exec, -1
    """)
    A.stamp(5)
    A(f"""
    L_H_x:
    s_cmp_eq_u32 s5, 15
    s_cbranch_scc1 L_XR
    s_branch L_end
    L_H_p:
    """)
    if trig and not at:
        A(f"""
        s_cmp_lg_u32 s3, 0
        s_cbranch_scc1 L_M_tr
        s_lshl_b32 s52, s4, 3
        s_add_u32 s52, s52, s5
        s_lshl_b32 s52, s52, 7
        s_add_u32 s52, s52, {WS_TR - 9*128}
        v_mov_b32 v20, s52
        v_mov_b32 v19, {TAG}
        global_store_dword v20, v19, {sp(WS_)}
        L_M_tr:
        """)
    A("s_cmp_ge_u32 s5, 14\ns_cbranch_scc1 L_H_x")
    A(f"""
    s_lshl_b32 s50, s4, 4
    s_lshr_b32 s45, s3, 1
    s_lshl_b32 s45, s45, 2
    s_add_u32 s50, s50, s45
    s_and_b32 s44, s3, 1                  ; dh
    s_lshl_b32 s51, s50, 7
    s_add_u32 s51, s51, {WS_MLG}
    v_bfe_u32 v18, v1, 2, 2
    v_lshlrev_b32 v18, 7, v18
    v_lshl_add_u32 v18, v9, 2, v18
    v_add_u32 v18, s51, v18
    s_lshl_b32 s51, s50, 10
    s_lshl_b32 s45, s44, 9
    s_add_u32 s51, s51, s45
    s_add_u32 s51, s51, {WS_OG}
    v_lshl_add_u32 v17, v1, 3, s51
    s_bfe_u32 s45, s3, 0x10001
    s_mul_i32 s45, s45, {ASTR}
    s_lshr_b32 s51, s3, 2
    s_lshl_b32 s51, s51, 9
    s_add_u32 s45, s45, s51
    s_and_b32 s51, s3, 6
    s_lshl_b32 s51, s51, 7
    s_sub_u32 s45, s45, s51
    s_add_u32 s45, s45, {ASTR}
    v_add_u32 v19, s45, v8
    s_lshl_b32 s45, s4, 2
    s_add_u32 s45, s45, {WS_FL}
    v_lshl_add_u32 v40, v0, 7, s45
    v_mov_b32 v41, {TAG}
    """)
    def oloads():
        for s_ in range(4):
            A(f"global_load_dwordx2 {vr(32+2*s_,2)}, v17, {sp(WS_)} offset:{s_*1024} sc1")
    A.dual_head("L_A_ml", ["v17", "v18"])
    A(f"""
    global_load_dword v20, v18, {sp(WS_)} sc1
    s_waitcnt vmcnt(0)
    v_xor_b32 v20, {ETAG}, v20
    v_and_b32 v21, 63, v20
    v_cmp_ne_u32 vcc, 0, v21
    s_cbranch_vccnz L_A_ml
    """)
    oloads()
    A(f"""
    v_max_f32_dpp v21, v20, v20 row_ror:4 {DPPM}
    v_mov_b32_dpp v23, v20 quad_perm:[1,1,3,3] {DPPM}
    s_nop 0
    v_max_f32_dpp v21, v21, v21 row_ror:8 {DPPM}
    v_sub_f32 v22, v20, v21
    v_mul_f32 v22, {hex(LOG2E)}, v22
    v_exp_f32 v22, v22
    s_nop 0
    v_mul_f32 v23, v22, v23
    s_nop 1
    v_add_f32_dpp v23, v23, v23 row_ror:4 {DPPM}
    s_nop 1
    v_add_f32_dpp v23, v23, v23 row_ror:8 {DPPM}
    v_rcp_f32 v23, v23
    s_nop 0
    v_mul_f32 v22, v22, v23
    """)
    A.stamp(7)
    A("s_branch L_A_ochk")
    A.dual_head("L_A_h3", ["v17"], init=False)
    oloads()
    A("L_A_ochk:\ns_waitcnt vmcnt(0)")
    A.etagcheck([f"v{32+i}" for i in range(8)], "v20", "L_A_h3")
    for s_ in range(4):
        op = "v_mul_f32_dpp" if s_ == 0 else "v_fmac_f32_dpp"
        A(f"{op} v30, v22, v{32+2*s_} row_newbcast:{4*s_} {DPPM}\n{op} v31, v22, v{33+2*s_} row_newbcast:{4*s_+2} {DPPM}")
    A(f"""
    v_cvt_pk_bf16_f32 v30, v30, v31
    ds_write_b16 v19, v30
    ds_write_b16_d16_hi v19, v30 offset:256
    s_waitcnt lgkmcnt(0)
    s_barrier
    """)
    if fl: A(f"""
        s_cmp_lg_u32 s5, 9
        s_cbranch_scc1 L_H_nf
        s_cmp_gt_u32 s3, 1
        s_cbranch_scc1 L_H_nf
        v_cmp_gt_u32 vcc, 72, v0
        s_and_saveexec_b64 s[44:45], vcc
        {f's_sleep {fpos}' if fpos else ''}
        global_store_dword v40, v41, {sp(WS_)} sc1
        s_mov_b64 exec, -1
        L_H_nf:
        """)
    A.stamp(8)
    A("s_branch L_end")
    A(f"""
    L_A_s4m:
    v_and_b32 v18, 1, v1
    v_mul_u32_u24 v18, {ASTR}, v18
    v_add_u32 v18, v18, v11
    v_add_u32 v18, {ASTR}, v18
    s_mul_i32 s45, s4, 4608
    s_lshl_b32 s44, s50, 9
    s_add_u32 s45, s45, s44
    s_lshl_b32 s44, s46, 7
    s_add_u32 s45, s45, s44
    s_add_u32 s45, s45, {WS_PC if pc else WS_PX}
    v_lshl_add_u32 v19, {'v7' if pc else 'v1'}, {4 if x4 else 3}, s45
    {'v_mul_u32_u24 v16, 36864, v4' + chr(10) + 'v_add_u32 v19, v19, v16' + chr(10) + 's_mov_b32 s56, 0xff00ff00' + chr(10) + 's_mov_b32 s57, 0xff00ff00' if pc else ''}
    {f's_mov_b64 exec, 0xffff' + chr(10) + f'global_load_dword v125, v19, {sp(WS_)} sc1' + chr(10) + 's_mov_b64 exec, -1' if ppt else ''}
    """)
    bfrags(A, "v17", 56, 16)
    A("s_waitcnt lgkmcnt(0)\ns_barrier")
    gemv_mfma(A, "v18", vb=56, depth=8, nks=16)
    A("s_nop 7" if pc else "s_mov_b64 exec, 0xffff\ns_nop 6")
    A.epack("v24", "v20"); A.epack("v25", "v21")
    if pc:
        A(f"""
        v_mov_b32 v26, v24
        v_mov_b32 v27, v25
        v_mov_b32_dpp v24, v24 row_ror:8 row_mask:0xf bank_mask:0xc
        v_mov_b32_dpp v25, v25 row_ror:8 row_mask:0xf bank_mask:0xc
        v_mov_b32_dpp v26, v26 row_ror:8 row_mask:0xf bank_mask:0x3
        v_mov_b32_dpp v27, v27 row_ror:8 row_mask:0xf bank_mask:0x3
        global_store_dwordx4 v19, v[24:27], {sp(WS_)} sc1
        """)
    elif x4:
        A(f"s_nop 0\nv_mov_b32_dpp v26, v24 row_ror:8 {DPPM}\nv_mov_b32_dpp v27, v25 row_ror:8 {DPPM}\ns_mov_b64 exec, 0xff")
        A(f"global_store_dwordx4 v19, v[24:27], {sp(WS_)} sc1\ns_mov_b64 exec, -1")
    else:
        A(f"global_store_dwordx2 v19, v[24:25], {sp(WS_)} sc1\ns_mov_b64 exec, -1")
    A.stamp(9)
    if wb0: A("s_cmp_lg_u32 s5, 13\ns_cbranch_scc1 L_end\ns_cmp_lg_u32 s3, 8\ns_cbranch_scc1 L_end\ns_waitcnt vmcnt(0)\nbuffer_wbl2 sc1\ns_waitcnt vmcnt(0)")
    A("s_branch L_end")

    A("L_KT:\ns_waitcnt lgkmcnt(0)")
    A.mktag()
    A(f"""
    s_cmp_lt_u32 s3, 9
    s_cbranch_scc1 L_HR_go
    s_cmp_ge_u32 s3, {9 + hq}
    s_cbranch_scc1 L_S5
    s_lshr_b32 s44, s{WQ_}, 7
    s_sub_u32 s44, 3, s44
    s_and_b32 s44, s44, 7
    s_lshl_b32 s45, s4, 3
    s_add_u32 s44, s44, s45
    s_lshl_b32 s44, s44, 7
    s_sub_u32 s45, 24, s3
    v_lshlrev_b32 v15, 7, v4              ; (l>>3)*128 rows
    v_add_u32 v15, v15, v7
    s_lshl_b32 s45, s45, 3
    v_add_u32 v15, s45, v15               ; row = i*128 + w*8 + (l&7)
    v_subrev_u32 v16, {512 + 56}, v15
    v_cmp_gt_u32 vcc, 512, v15
    s_nop 1
    v_cndmask_b32 v15, v16, v15, vcc
    v_lshl_add_u32 v15, v15, 13, s44
    global_load_dword v125, v15, {sp(WQ_)}{NT}
    s_branch L_S5
    L_HR_go:
    v_lshlrev_b32 v15, 1, v0
    global_load_ushort v33, v15, {sp(X_)}
    global_load_ushort v34, v15, {sp(X_)} offset:1152
    s_mul_i32 s44, s4, 4608
    s_add_u32 s44, s44, {WS_HL}
    v_lshl_add_u32 v55, v0, 3, s44
    global_load_dword v57, v55, {sp(WS_)} sc1
    v_mul_u32_u24 v15, 36, v1
    global_load_dwordx4 v[24:27], v15, {sp(X_)}
    global_load_dwordx4 v[28:31], v15, {sp(X_)} offset:16
    global_load_dword v32, v15, {sp(X_)} offset:32
    v_lshlrev_b32 v15, 3, v0
    """)
    if x4: A("""    v_and_b32 v15, -16, v0
    v_lshlrev_b32 v15, 3, v15
    v_lshl_or_b32 v15, v7, 4, v15
    v_and_b32 v39, 8, v0
    v_or_b32 v15, v15, v39
""")
    A(f"""
    v_add_u32 v52, {WS_AG + 2304}, v15
    v_add_u32 v53, {WS_AG + 2304 + AGS}, v15
    v_add_u32 v54, {WS_AG + 2304 + 2*AGS}, v15
    """)
    def ag_loads():
        for k in range(ks):
            A(f"global_load_dwordx2 {vr(40+4*k,2)}, v{52+k}, {sp(WS_)} offset:-2304 sc1")
            A(f"global_load_dwordx2 {vr(42+4*k,2)}, v{52+k}, {sp(WS_)} offset:2304 sc1")
    A(f"""
    s_mov_b32 s44, 0x3f803f80
    v_mov_b32 v35, 0
    v_mov_b32 v36, 0
    s_waitcnt vmcnt(0)
    v_mov_b32 v61, {TAG}
    """)
    for i in range(9):
        A(f"v_dot2_f32_bf16 v35, v{24+i}, s44, v35\nv_dot2_f32_bf16 v36, v{24+i}, v{24+i}, v36")
    A("s_nop 2")
    A.row_reduce("v_add_f32", ["v35", "v36"])
    A(f"""
    v_mov_b32 v37, v35
    v_mov_b32 v38, v36
    s_nop 0
    v_permlane16_swap_b32 v35, v37
    v_permlane16_swap_b32 v36, v38
    v_add_f32 v35, v35, v37
    v_add_f32 v36, v36, v38
    v_mul_f32 v35, {INV576}, v35
    v_mul_f32 v36, {INV576}, v36
    v_fma_f32 v36, -v35, v35, v36
    """)
    ln_finish(A, "v35", "v36", "v38")
    A("""
    v_readlane_b32 s48, v35, 0
    v_readlane_b32 s49, v35, 32
    v_readlane_b32 s50, v38, 0
    v_readlane_b32 s51, v38, 32
    v_lshlrev_b32 v33, 16, v33
    v_lshlrev_b32 v34, 16, v34
    v_subrev_f32 v33, s48, v33
    v_subrev_f32 v34, s49, v34
    """)
    A.r1("v33", "v34")
    A("v_mul_f32 v33, s50, v33\nv_mul_f32 v34, s51, v34")
    A.r1("v33", "v34")
    A("s_mov_b32 s7, 0")
    if hs: A(f"s_sleep {hs}")
    A(f"L_HR_h:\ns_add_u32 s7, s7, 1\ns_cmp_gt_u32 s7, {SPIN}\ns_cbranch_scc1 L_end\ns_sleep {hp}")
    ag_loads()
    A("s_waitcnt vmcnt(0)")
    A.etagcheck([f"v{40+i}" for i in range(4*ks)], "v39", "L_HR_h", "s100", 7)
    for i in range(4): A(f"v_add_f32 v{40+i}, v{40+i}, v{44+i}")
    if ks == 3:
        for i in range(4): A(f"v_add_f32 v{40+i}, v{40+i}, v{48+i}")
    A.r1("v40", "v41", "v42", "v43")
    A("v_add_f32 v42, 1.0, v42\nv_add_f32 v43, 1.0, v43")
    A.r1("v42", "v43")
    A("v_mul_f32 v42, v33, v42\nv_mul_f32 v43, v34, v43")
    A.r1("v42", "v43")
    A(f"""
    v_add_f32 v42, v42, v40
    v_add_f32 v43, v43, v41
    v_cvt_pk_bf16_f32 v60, v42, v43
    """)
    if dq: A(f"s_sleep {dq}")
    A.dual_store("global_store_dwordx2", "v55", "v[60:61]")
    A.stamp(3)
    A("s_branch L_S5")
    A("L_XR:")
    if diag & 8: A("s_branch L_end")
    A(f"""
    v_lshlrev_b32 v16, 2, v0
    v_min_u32 v16, 1532, v16
    v_add_u32 v16, {L_ST}, v16
    ds_write_b32 v16, v3
    v_mov_b32 v21, {L_WCNT}
    v_mov_b32 v22, 1
    s_waitcnt lgkmcnt(0)
    s_barrier
    s_cmp_eq_u32 s3, 9
    s_cbranch_scc1 L_XR_stat
    s_cmp_gt_u32 s3, 9
    s_cbranch_scc1 L_end
    v_lshlrev_b32 v16, 1, v0
    global_load_ushort v80, v16, {sp(X_)}
    global_load_ushort v81, v16, {sp(X_)} offset:1152
    v_lshlrev_b32 v16, 3, v0
    v_add_u32 v17, {WS_MG + 2304}, v16
    v_add_u32 v18, {WS_MG + 9216}, v16
    """)
    if x4: A("""    v_and_b32 v16, -16, v0
    v_lshlrev_b32 v16, 3, v16
    v_lshl_or_b32 v16, v7, 4, v16
    v_and_b32 v30, 8, v0
    v_or_b32 v16, v16, v30
""")
    if pc: A("s_mul_i32 s44, s4, 36864\nv_add_u32 v16, s44, v16")
    for k in range(4): A(f"v_add_u32 v{88+k}, {(WS_PC if pc else WS_PX) + 2304 + k*9216}, v16")
    A(f"""
    s_mul_i32 s44, s4, 4608
    s_lshl_b32 s44, s44, 1
    s_add_u32 s45, s44, {WS_RG}
    v_lshl_add_u32 v26, v0, 4, s45
    s_add_u32 s45, s44, {WS_XA}
    v_lshl_add_u32 v27, v0, 4, s45
    v_and_b32 v24, 48, v1
    v_lshlrev_b32 v24, 2, v24
    s_lshl_b32 s44, s3, 2
    s_add_u32 s44, s44, {L_ST}
    v_add_u32 v24, s44, v24
    s_mov_b32 s56, 0x00010001
    s_mov_b32 s57, 0x00010001
    """)
    def partial_stats(off, r):
        for i in range(6): A(f"v_permlane32_swap_b32 v{r+2*i}, v{r+1+2*i}")
        for i in range(6): A(f"v_add_f32 v{r+2*i}, v{r+2*i}, v{r+1+2*i}")
        A("s_nop 0")
        for i in range(3): A(f"v_permlane16_swap_b32 v{r+4*i}, v{r+2+4*i}")
        for i in range(3): A(f"v_add_f32 v{r+4*i}, v{r+4*i}, v{r+2+4*i}")
        A.row_reduce("v_add_f32", [f"v{r}", f"v{r+4}", f"v{r+8}"])
        A(f"""
        s_mov_b64 exec, s[56:57]
        ds_write_b32 v24, v{r} offset:{off}
        ds_write_b32 v24, v{r+4} offset:{off+256}
        ds_write_b32 v24, v{r+8} offset:{off+512}
        s_mov_b64 exec, -1
        """)
    A(f"""
    s_mov_b32 s7, 0
    s_movk_i32 s60, {0x100 if fl else 0x1ff}
    s_mov_b32 s61, 0
    L_XR_px:
    s_add_u32 s7, s7, 1
    s_cmp_gt_u32 s7, {SPIN}
    s_cbranch_scc1 L_end
    """)
    for k in range(8):
        A(f"s_bitcmp0_b32 s60, {k}\ns_cbranch_scc1 L_px_l{k}")
        A(f"global_load_dwordx2 {vr(96+2*k,2)}, v{88+k//2}, {sp(WS_)} offset:{2304 if k & 1 else -2304} sc1")
        A(f"L_px_l{k}:")
    A("s_bitcmp0_b32 s60, 8\ns_cbranch_scc1 L_px_m")
    for j, (r, o) in enumerate((("v17", -2304), ("v17", 2304), ("v18", 0))):
        A(f"global_load_dwordx2 {vr((40, 34, 42)[j],2)}, {r}, {sp(WS_)} offset:{o} sc1")
    A("s_waitcnt vmcnt(0)")
    A.tagcheck(["v41", "v35", "v43", "v43"], "v30", "v31", "L_px_m")
    A(f"""
    s_bitset0_b32 s60, 8
    v_lshlrev_b32 v82, 16, v40
    v_and_b32 v83, 0xffff0000, v40        ; ga
    v_and_b32 v43, 0xffff0000, v42
    v_lshlrev_b32 v42, 16, v42
    v_add_f32 v42, 1.0, v42
    v_add_f32 v43, 1.0, v43
    v_cvt_pk_bf16_f32 v32, v42, v43       ; g
    v_mov_b32 v33, {TAG}
    """)
    A(f"""
    global_store_dwordx4 v26, v[32:35], {sp(WS_)}
    v_mov_b32 v36, v32
    v_mov_b32 v37, v33
    v_mov_b32 v38, v34
    v_mov_b32 v39, v35
    v_lshlrev_b32 v80, 16, v80
    v_lshlrev_b32 v81, 16, v81
    v_lshlrev_b32 v84, 16, v32
    v_and_b32 v85, 0xffff0000, v32
    v_lshlrev_b32 v86, 16, v34
    v_and_b32 v87, 0xffff0000, v34
    v_mov_b32 v44, v84
    v_mov_b32 v45, v85
    v_mul_f32 v46, v84, v84
    v_mul_f32 v47, v85, v85
    v_mov_b32 v48, v86
    v_mov_b32 v49, v87
    v_mul_f32 v50, v86, v86
    v_mul_f32 v51, v87, v87
    v_mul_f32 v52, v84, v86
    v_mul_f32 v53, v85, v87
    v_mov_b32 v54, 0
    v_mov_b32 v55, 0
    """)
    partial_stats(0, 44)
    A.lds_inc(4, "v21", "v22")
    A.stamp(6)
    A("s_branch L_px_m2\nL_px_m:\ns_waitcnt vmcnt(0)\nL_px_m2:")
    for k in range(8):
        A(f"""
        s_bitcmp0_b32 s60, {k}
        s_cbranch_scc1 L_px_c{k}
        v_xor_b32 v{96+2*k}, {ETAG}, v{96+2*k}
        v_xor_b32 v{97+2*k}, {ETAG}, v{97+2*k}
        v_or_b32 v30, v{96+2*k}, v{97+2*k}
        v_and_b32 v30, 63, v30
        v_cmp_ne_u32 vcc, 0, v30
        s_cbranch_vccnz L_px_c{k}
        s_bitset0_b32 s60, {k}
        L_px_c{k}:
        """)
    A("s_cmp_lg_u32 s60, 0\ns_cbranch_scc1 L_XR_px")
    if fl:
        A(f"""
        s_cmp_lg_u32 s61, 0
        s_cbranch_scc1 L_XR_done
        s_mul_i32 s44, s4, 9
        s_add_u32 s44, s44, s3
        s_lshl_b32 s44, s44, 7
        s_add_u32 s44, s44, {WS_FL}
        s_add_u32 s62, s{WS_}, s44
        s_addc_u32 s63, s{WS_+1}, 0
        L_XR_fl:
        s_add_u32 s7, s7, 1
        s_cmp_gt_u32 s7, {SPIN}
        s_cbranch_scc1 L_end
        s_load_dwordx8 s[64:71], s[62:63], 0 glc
        s_waitcnt lgkmcnt(0)
        """)
        for k in range(8):
            A(f"""
            s_bitcmp1_b32 s61, {k}
            s_cselect_b32 s58, 0, s{64+k}
            s_cmp_lg_u32 s58, {TAG}
            s_cbranch_scc1 L_fl_{k}
            global_load_dwordx2 {vr(96+2*k,2)}, v{88+k//2}, {sp(WS_)} offset:{2304 if k & 1 else -2304} sc1
            s_bitset1_b32 s61, {k}
            L_fl_{k}:
            """)
        A(f"""
        s_cmp_lg_u32 s61, 0xff
        s_cbranch_scc1 L_XR_fl
        s_movk_i32 s60, 0xff
        s_branch L_px_m
        L_XR_done:
        """)
    A.stamp(10)
    for i in range(4): A(f"v_add_f32 v{96+2*i}, v{96+2*i}, v{104+2*i}\nv_add_f32 v{97+2*i}, v{97+2*i}, v{105+2*i}")
    for i in range(2): A(f"v_add_f32 v{96+2*i}, v{96+2*i}, v{100+2*i}\nv_add_f32 v{97+2*i}, v{97+2*i}, v{101+2*i}")
    A("v_add_f32 v96, v96, v98\nv_add_f32 v97, v97, v99")
    A.r1("v96", "v97")
    A("v_mul_f32 v96, v82, v96\nv_mul_f32 v97, v83, v97")
    A.r1("v96", "v97")
    A(f"""
    v_add_f32 v96, v80, v96
    v_add_f32 v97, v81, v97
    v_cvt_pk_bf16_f32 v34, v96, v97
    v_lshlrev_b32 v96, 16, v34
    v_and_b32 v97, 0xffff0000, v34        ; x1
    v_mul_f32 v100, v96, v84
    v_mul_f32 v101, v97, v85
    v_cvt_pk_bf16_f32 v32, v100, v101
    global_store_dwordx4 v27, v[32:35], {sp(WS_)}
    v_lshlrev_b32 v100, 16, v32
    v_and_b32 v101, 0xffff0000, v32       ; a
    v_mul_f32 v98, v96, v96
    v_mul_f32 v99, v97, v97
    v_mul_f32 v102, v100, v100
    v_mul_f32 v103, v101, v101
    v_mul_f32 v104, v100, v84
    v_mul_f32 v105, v101, v85
    v_mul_f32 v106, v100, v86
    v_mul_f32 v107, v101, v87
    """)
    partial_stats(768, 96)
    A("s_waitcnt lgkmcnt(0)\ns_barrier")
    A("s_barrier")
    A(f"v_add_u32 v27, {WS_GOFF}, v27\nglobal_store_dwordx4 v27, v[32:35], {sp(WS_)} sc1")
    A(f"v_add_u32 v26, {WS_GOFF}, v26\nglobal_store_dwordx4 v26, v[36:39], {sp(WS_)} sc1")
    A.stamp(11)
    A(f"""
    s_branch L_end
    L_XR_stat:
    v_lshlrev_b32 v22, 2, v1
    v_add_u32 v22, {L_ST}, v22
    v_lshrrev_b32 v20, 5, v1
    s_lshl_b32 s44, s4, 7
    s_add_u32 s44, s44, {WS_CF}
    v_lshl_add_u32 v20, v20, 4, s44
    global_load_dword v23, v20, {sp(WS_)} sc1
    """)
    def gather_stats(off, cnt, r, sleep):
        if sleep: A.lds_spin(cnt, 9, "v23", "v21")
        else: A("s_barrier")
        A(f"""
        ds_read_b32 v{r}, v22 offset:{off}
        ds_read_b32 v{r+2}, v22 offset:{off+256}
        ds_read_b32 v{r+4}, v22 offset:{off+512}
        s_waitcnt lgkmcnt(0)
        """)
        A.row_reduce("v_add_f32", [f"v{r}", f"v{r+2}", f"v{r+4}"])
        for q in (r, r+2, r+4): A(f"v_mul_f32 v{q}, {INV576}, v{q}")
        for q in (r, r+2, r+4): A(f"v_mov_b32 v{q+1}, v{q}")
        for q in (r, r+2, r+4): A(f"v_permlane16_swap_b32 v{q}, v{q+1}")
    A("s_waitcnt vmcnt(0)")
    gather_stats(0, 4, 100, True)
    gather_stats(768, 8, 84, False)
    A("v_fma_f32 v85, -v84, v84, v85")
    ln_finish(A, "v84", "v85", "v90")
    A(f"""
    v_fma_f32 v86, -v84, v100, v86
    v_fma_f32 v89, -v84, v104, v89
    v_add_f32 v88, v88, v88
    v_fma_f32 v88, v84, v101, -v88
    v_fma_f32 v87, v84, v88, v87
    v_fma_f32 v86, v90, v86, v102         ; mean2
    v_add_f32 v89, v89, v89
    v_fma_f32 v87, v90, v87, v89
    v_fma_f32 v87, v90, v87, v103         ; E[h2^2]
    v_fma_f32 v87, -v86, v86, v87         ; var2
    """)
    ln_finish(A, "v86", "v87", "v94")
    A(f"""
    v_mul_f32 v92, v90, v94               ; c0
    v_mul_f32 v95, -v86, v94              ; c3
    v_mul_f32 v93, -v84, v92              ; c1
    """)
    for r in range(92, 96): A.epack(f"v{r}", f"v{r}")
    A("s_mov_b32 exec_lo, 1\ns_mov_b32 exec_hi, 1")
    A.dual_store("global_store_dwordx4", "v20", "v[92:95]")
    A("s_mov_b64 exec, -1\ns_barrier")
    if wb: A(f"s_sleep {wb}\nbuffer_wbl2 sc1\ns_waitcnt vmcnt(0)")
    A.stamp(12)
    A("s_branch L_end")

    A(f"""
    L_S5:
    {'s_branch L_end' if diag & 8 else ''}
    s_mul_i32 s47, s4, 9
    s_add_u32 s47, s47, s5                ; f
    """)
    A.srd(8, W1_, 576*9216)
    A.srd(12, W2_, 4608*1152)
    A(f"""
    s_lshl_b32 s44, s47, 7
    v_mul_u32_u24 v14, 9216, v4
    v_lshl_add_u32 v14, v6, 4, v14
    v_add_u32 v14, s44, v14
    s_lshl_b32 s45, s46, 5
    s_add_u32 s44, s44, s45
    v_and_b32 v15, 15, v1
    v_lshl_add_u32 v15, v15, 1, s44
    global_load_ushort v19, v15, {sp(B1_)}
    v_mul_u32_u24 v15, 0x38f, v0
    v_lshrrev_b32 v15, 16, v15
    v_mul_u32_u24 v16, 72, v15
    v_sub_u32 v16, v0, v16
    v_and_b32 v17, 6, v15
    v_xor_b32 v16, v16, v17
    v_mul_u32_u24 v15, 1152, v15
    v_lshl_add_u32 v15, v16, 4, v15
    s_mul_i32 s49, s4, 9216
    s_add_u32 s45, s49, {WS_RG}
    v_lshl_add_u32 v80, v0, 4, s45
    s_add_u32 s45, s49, {WS_XA}
    v_lshl_add_u32 v81, v0, 4, s45
    v_lshrrev_b32 v20, 2, v1
    v_mul_u32_u24 v20, 1152, v20
    v_lshl_add_u32 v20, v9, 3, v20
    v_add_u32 v20, {L_BUF1}, v20
    v_bfe_u32 v17, v1, 3, 2
    s_mul_i32 s48, s3, 3
    """)
    for i in range(3):
        A(f"s_add_u32 s44, s48, {i}\nv_xor_b32 v{92+i}, s44, v17\nv_lshl_add_u32 v{92+i}, v{92+i}, 5, v20")
    A(f"""
    s_mul_i32 s44, s48, {2*4608}
    s_lshl_b32 s45, s47, 6
    s_add_u32 s44, s44, s45
    s_add_u32 s44, s44, {WS_FG}
    v_mul_u32_u24 v20, 4608, v4
    v_lshl_add_u32 v20, v7, 3, v20
    v_add_u32 v76, s44, v20
    v_and_b32 v79, 1, v1
    v_lshlrev_b32 v79, 7, v79
    v_and_b32 v20, 48, v1
    v_add_u32 v79, v79, v20
    v_add_u32 v79, {L_H1}, v79
    s_lshl_b32 s44, s47, 3
    v_add_u32 v77, s44, v7                ; col
    v_lshrrev_b32 v78, 5, v1              ; b
    v_mul_u32_u24 v82, 1152, v78
    v_lshl_add_u32 v82, v77, 1, v82
    v_lshlrev_b32 v83, 1, v77
    s_cmp_lg_u32 s3, 10
    s_cbranch_scc1 L_S5_nf
    global_load_ushort v84, v83, {sp(B2_)}
    {f'global_load_ushort v85, v82, {sp(OUT_)}' if ot else ''}
    L_S5_nf:
    v_lshlrev_b32 v83, 3, v77
    v_add_u32 v83, {WS_MG + 1728*8}, v83
    s_add_u32 s44, s49, {WS_XA + 8}
    v_lshl_add_u32 v77, v77, 4, s44
    v_lshlrev_b32 v78, 4, v78             ; 16*b
    s_mul_i32 s44, s47, 4608
    s_add_u32 s44, s44, {WS_FG + 2048}
    v_lshl_add_u32 v88, v1, 3, s44
    v_mov_b32 v21, {L_WCNT}
    v_mov_b32 v22, 1
    """)
    if nb2:
        A(f"""
        s_barrier
        s_cmp_eq_u32 s5, 8
        s_cbranch_scc1 L_vt2
        s_lshr_b32 s44, s{W1_}, 7
        s_add_u32 s44, s44, s47
        s_and_b32 s44, s44, 7
        s_cmp_eq_u32 s44, 3
        s_cbranch_scc1 L_vt2
        """)
        vtail(nb2, 3, 0)
        A("L_vt2:")
    if trig:
        A(f"""
        s_cmp_lg_u32 s3, 11
        s_cbranch_scc1 L_S5_tb
        s_lshr_b32 s44, s{W1_}, 7
        s_add_u32 s44, s44, s47
        s_and_b32 s44, s44, 7
        s_cmp_eq_u32 s44, {3 if c3 else 9}
        s_cbranch_scc1 L_S5_tb
        """)
        if at:
            A(f"""
            s_lshl_b32 s44, s4, 5
            v_mov_b32 v16, s44
            s_mov_b32 s7, 0
            L_S5_trig:
            s_sleep {ps}
            global_load_dword v17, v16, s[94:95] sc1
            s_add_u32 s7, s7, 1
            s_cmp_gt_u32 s7, {NLOC//2}
            s_cbranch_scc1 L_S5_tb
            s_waitcnt vmcnt(0)
            v_readfirstlane_b32 s44, v17
            s_cmp_lt_u32 s44, {an}
            """)
        else:
            A(f"""
        s_lshl_b32 s44, s4, 10
        s_add_u32 s44, s44, {WS_TR}
        v_lshl_add_u32 v16, v7, 7, s44
        s_mov_b32 s7, 0
        L_S5_trig:
        s_sleep {ps}
        global_load_dword v17, v16, {sp(WS_)} sc1
        s_add_u32 s7, s7, 1
        s_cmp_gt_u32 s7, {NLOC//2}
        s_cbranch_scc1 L_S5_tb
        s_waitcnt vmcnt(0)
        v_cmp_eq_u32 vcc, {TAG}, v17
        s_and_b32 s44, vcc_lo, {tm}
        s_bcnt1_i32_b32 s44, s44
        s_cmp_lt_u32 s44, {trig}
""")
        A(f"""
        s_cbranch_scc1 L_S5_trig
        L_S5_tb:
        """)
    A("s_barrier")
    A.stamp(5)
    dma_tile(A, 8, "v14", 9216, L_BUF0, 72, '' if wm & 4 else NT)
    A(f"""
    s_barrier
    s_cmp_ge_u32 s3, 9
    s_cbranch_scc1 L_S5_hi
    s_mul_i32 s44, s47, {64*1152}
    s_lshl_b32 s45, s3, 10
    s_add_u32 s45, s45, {L_BUF1}
    """)
    for o in range(8):
        A(f"s_mov_b32 m0, s45\ns_add_u32 s45, s45, 9216")
        A(f"buffer_load_dwordx4 v15, s[12:15], s44 offen{'' if wm & 8 else NT} lds")
        A(f"s_add_u32 s44, s44, 9216")
    A(f"global_load_dwordx4 v[24:27], v80, {sp(WS_)} sc1\ns_waitcnt vmcnt(9)")
    A.lds_inc(4, "v21", "v22")
    A("s_mov_b32 s7, 0\ns_branch L_S5_rgc")
    A.dual_head("L_S5_rg", ["v80", "v81"], init=False)
    A(f"s_sleep {ps}\nglobal_load_dwordx4 v[24:27], v80, {sp(WS_)} sc1\nL_S5_rgc:\ns_waitcnt vmcnt(0)")
    A.tagcheck(["v25", "v27"], "v30", "v31", "L_S5_rg")
    A(f"""
    v_mov_b32 v35, 0x3f80
    ds_write_b16 v8, v24 offset:{ASTR}
    ds_write_b16_d16_hi v8, v24 offset:{5*ASTR}
    ds_write_b16 v8, v26 offset:{2*ASTR}
    ds_write_b16_d16_hi v8, v26 offset:{6*ASTR}
    ds_write_b16 v8, v35 offset:{3*ASTR}
    ds_write_b16 v8, v35 offset:{7*ASTR}
    s_waitcnt lgkmcnt(0)
    {f's_sleep {ds5}' if ds5 else ''}
    s_barrier
    global_load_dwordx2 v[24:25], v81, {sp(WS_)} sc1
    """)
    A.stamp(6)
    def w2frags():
        for i in range(3):
            for ks in range(2):
                for half in range(2):
                    A(f"ds_read_b64_tr_b16 {vr(52+i*8+ks*4+half*2,2)}, v{92+i} offset:{(ks*32+half*16)*1152}")
    w2frags()
    A("s_branch L_S5_xac")
    A.dual_head("L_S5_xa", ["v81"], init=False)
    A(f"global_load_dwordx2 v[24:25], v81, {sp(WS_)} sc1\nL_S5_xac:\ns_waitcnt vmcnt(0)")
    A.tagcheck(["v25"], None, None, "L_S5_xa")
    A(f"""
    ds_write_b16 v8, v24
    ds_write_b16_d16_hi v8, v24 offset:{4*ASTR}
    s_waitcnt lgkmcnt(0)
    s_barrier
    """)
    A.stamp(7)
    A(f"""
    s_branch L_S5_g2
    L_S5_hi:
    s_waitcnt vmcnt(0)
    """)
    A.lds_inc(4, "v21", "v22")
    A(f"""
    s_cmp_ge_u32 s3, 12
    s_cbranch_scc1 L_S5_g1
    s_barrier
    """)
    w2frags()
    A(f"""
    s_cmp_lg_u32 s3, 10
    s_cbranch_scc1 L_S5_h2
    global_load_dwordx2 v[86:87], v83, {sp(WS_)} sc1
    s_barrier
    s_mov_b32 s7, 0
    s_branch L_S5_gb1
    """)
    A.dual_head("L_S5_gb", ["v77"], init=False)
    A(f"""
    global_load_dwordx2 v[86:87], v83, {sp(WS_)} sc1
    L_S5_gb1:
    global_load_dwordx2 v[90:91], v77, {sp(WS_)} sc1
    s_waitcnt vmcnt(0)
    """)
    A.tagcheck(["v87", "v91"], "v30", "v31", "L_S5_gb")
    A(f"""
    v_lshrrev_b32 v86, v78, v86
    v_lshrrev_b32 v85, v78, v90
    v_lshlrev_b32 v86, 16, v86            ; gb
    v_lshlrev_b32 v85, 16, v85            ; x1
    v_lshlrev_b32 v84, 16, v84            ; b2
    s_branch L_S5_g2
    L_S5_h2:
    s_barrier
    L_S5_g2:
    s_mov_b32 s56, 0xffff0000
    s_mov_b32 s57, 0
    s_mov_b32 s58, 0
    s_mov_b32 s59, 0xffff
    s_waitcnt lgkmcnt(0)
    s_barrier
    ds_read_b128 v[32:35], v79
    ds_read_b128 v[36:39], v79 offset:64
    s_waitcnt lgkmcnt(1)
    """)
    for i in range(3):
        A(f"v_mfma_f32_16x16x32_bf16 {vr(40+4*i,4)}, v[32:35], {vr(52+8*i,4)}, 0")
    A("s_waitcnt lgkmcnt(0)")
    for i in range(3):
        A(f"v_mfma_f32_16x16x32_bf16 {vr(40+4*i,4)}, v[36:39], {vr(56+8*i,4)}, {vr(40+4*i,4)}")
    A(f"""
    s_mov_b32 exec_hi, 0xffff
    s_nop 5
    v_cndmask_b32 v28, v40, v44, s[56:57]
    v_cndmask_b32 v29, v41, v45, s[56:57]
    v_cndmask_b32 v28, v28, v48, s[58:59]
    v_cndmask_b32 v29, v29, v49, s[58:59]
    """)
    A.epack("v28", "v28"); A.epack("v29", "v29")
    A(f"global_store_dwordx2 v76, v[28:29], {sp(WS_)} sc1\ns_mov_b64 exec, -1")
    A.stamp(11)
    A(f"""
    s_cmp_lg_u32 s3, 10
    s_cbranch_scc1 L_end
    {f's_sleep {fgs}' if fgs else 's_waitcnt vmcnt(0)'}
    """)
    A.spin_head("L_S5_fg")
    for i in range(9):
        A(f"global_load_dwordx2 {vr(40+2*i,2)}, v88, {sp(WS_)} offset:{i*512-2048} sc1")
    A("s_waitcnt vmcnt(0)")
    A.etagcheck([f"v{40+i}" for i in range(18)], "v30", "L_S5_fg")
    A.stamp(12)
    fold8(A, 9, 40, 41, 42)
    A.r1("v40")
    A("v_add_f32 v40, v84, v40")
    A.r1("v40")
    A("v_mul_f32 v40, v86, v40")
    A.r1("v40")
    A(f"""
    v_add_f32 v40, v85, v40
    v_cvt_pk_bf16_f32 v40, v40, v40
    s_mov_b32 exec_lo, 0xff
    s_mov_b32 exec_hi, 0xff
    global_store_short v82, v40, {sp(OUT_)}{' sc1' if osc else ''}
    s_cmp_lg_u32 s47, 0
    s_cbranch_scc1 L_S5_fin
    s_mov_b64 exec, 1
    v_mov_b32 v33, {TAG}
    global_store_dword v3, v33, {sp(WS_)} sc1
    L_S5_fin:
    s_mov_b64 exec, -1
    """)
    if probe:
        base, stride = {1: (0xB0000, 128*72), 2: (0x400000, 65536), 3: (0x1000000, 0x200000), 4: (0xB0000, 128*72)}[probe]
        A(f"s_lshl_b32 s44, s47, 7\ns_add_u32 s44, s44, {base}\nv_mov_b32 v60, s44\ns_waitcnt vmcnt(0)\ns_mov_b64 exec, 1")
        for i in range(8):
            if probe == 1: A(f"global_store_dword v60, v3, {sp(WS_)} sc1")
            else: A(f"global_load_dword v61, v60, {sp(WS_)} nt")
            A(f"s_waitcnt vmcnt(0)\nv_add_u32 v60, {stride}, v60")
        A("s_mov_b64 exec, -1")
    A.stamp(13)
    A("s_branch L_end")
    A("L_S5_g1:\nv_mov_b32 v15, v10")
    A.lds_spin(4, 16, "v16", "v21")
    bfrags(A, "v15")
    k0_ = -2.0 * 1.4426950408889634 * 0.7978845608028654
    A(f"""
    v_bfe_u32 v16, v1, 4, 1
    v_lshlrev_b32 v15, 7, v16
    s_lshl_b32 s44, s4, 7
    s_add_u32 s44, s44, {WS_CF}
    v_lshl_add_u32 v18, v16, 4, s44
    v_bfe_u32 v16, v1, 2, 2
    v_lshl_or_b32 v15, v16, 4, v15
    v_lshl_or_b32 v15, v9, 1, v15
    s_lshr_b32 s44, s46, 1
    s_lshl_b32 s44, s44, 6
    s_and_b32 s45, s46, 1
    s_lshl_b32 s45, s45, 3
    s_add_u32 s44, s44, s45
    s_add_u32 s44, s44, {L_H1}
    v_add_u32 v15, s44, v15
    v_lshlrev_b32 v19, 16, v19
    v_mul_u32_u24 v16, {ASTR}, v7
    v_add_u32 v16, v11, v16               ; A rows = i&7
    v_mov_b32 v17, {f2h(k0_)}
    s_waitcnt lgkmcnt(0)
    s_barrier
    s_barrier
    """)
    cfl = f"global_load_dwordx4 v[52:55], v18, {sp(WS_)} sc1"
    gemv_mfma(A, "v16", mid=(cfm, cfl))
    A.stamp(9)
    A("s_mov_b32 s7, 0\ns_branch L_S5_cfc")
    A.dual_head("L_S5_cf", ["v18"], init=False)
    A(f"{cfl}\nL_S5_cfc:\ns_waitcnt vmcnt(0)")
    A.etagcheck(["v52", "v53", "v54", "v55"], "v30", "L_S5_cf")
    A.stamp(8)
    A(f"""
    v_mul_f32 v20, v20, v52
    v_mul_f32 v22, v22, v54
    v_fmac_f32 v20, v21, v53
    v_fmac_f32 v22, v23, v55
    v_add_f32 v20, v20, v22
    """)
    A.r1("v20")
    A("v_add_f32 v20, v20, v19")
    A.r1("v20")
    A(f"""
    v_mul_f32 v21, v20, v20
    v_fmamk_f32 v21, v21, {f2h(k0_*0.044715)}, v17
    v_mul_f32 v21, v21, v20
    v_exp_f32 v21, v21
    s_nop 0
    v_add_f32 v21, 1.0, v21
    v_rcp_f32 v21, v21
    s_mov_b32 exec_hi, 0
    v_mul_f32 v21, v21, v20
    v_cvt_pk_bf16_f32 v21, v21, v21
    ds_write_b16 v15, v21
    s_mov_b64 exec, -1
    s_waitcnt lgkmcnt(0)
    s_barrier
    """)
    A.stamp(10)
    A("L_end:")
    if dbg:
        maps = {"A": {1: 4, 2: 5, 4: 6, 7: 7, 9: 8, 10: 9, 12: 14}, "B": {4: 3, 5: 10, 6: 11, 8: 12, 11: 13}, "M": {3: 2, 5: 15}}
        A(f"""
        s_mov_b64 exec, -1
        s_lshl_b32 s44, 1, s3
        s_and_b32 s44, s44, {(1<<0)|(1<<9)|(1<<12)|(1<<15)}
        s_cbranch_scc0 L_exit
        s_load_dwordx2 s[46:47], s[0:1], 104
        v_mov_b32 v125, 0x400
        v_readlane_b32 s44, v127, 0
        s_nop 3
        s_not_b32 s44, s44
        v_writelane_b32 v127, s44, 15
        v_writelane_b32 v125, 4, 0
        v_writelane_b32 v125, 0, 15
        s_lshr_b32 s45, s2, 3
        s_cmp_lt_u32 s45, 16
        s_cbranch_scc1 L_dbg_A
        s_cmp_lt_u32 s45, 25
        s_cbranch_scc1 L_dbg_B
        """)
        for nm in ("M", "B", "A"):
            A(f"L_dbg_{nm}:")
            for st, sl in maps[nm].items(): A(f"v_writelane_b32 v125, {sl*4}, {st}")
            A("s_branch L_dbg_go")
        A(f"""
        L_dbg_go:
        s_waitcnt lgkmcnt(0)
        v_cmp_gt_u32 vcc, 0x100, v125
        s_and_saveexec_b64 s[48:49], vcc
        global_atomic_umax v125, v127, s[46:47]
        s_endpgm
        """)
    elif stamps:
        if LITE: A("s_cmp_lg_u32 s3, 10\ns_cbranch_scc1 L_exit")
        A(f"""
        s_mov_b64 exec, 0xffff
        s_lshl_b32 s44, s2, 4
        s_add_u32 s44, s44, s3
        s_lshl_b32 s44, s44, 6
        s_add_u32 s44, s44, {WS_STAMP}
        v_lshl_add_u32 v126, v1, 2, s44
        global_store_dword v126, v127, {sp(WS_)}{' sc1' if LITE else ''}
        """)
    A("L_exit:\ns_endpgm\nL_codeend:")
    A.footer(128, 102)
    return A

HEAD = """; Fused adaLN + sliding-window GQA decode attention + channel MLP, one persistent launch (gfx950).
"""
if __name__ == "__main__":
    out = sys.argv[1]
    kw = {}
    for o in sys.argv[2:]:
        if "=" in o:
            k, v = o.split("="); kw[k] = int(v)
        elif o == "stamps": kw["stamps"] = True
        elif o == "lite": kw["stamps"] = True; LITE = True
        elif o == "nont": kw["nt"] = ""
    A = build(**kw)
    open(out, "w").write(HEAD + A.text())
```

```python
import sys, struct
from asmlib import Asm, NAME

WS_EPOCH = 0x0
WS_QG    = 0x4000
WS_TR    = 0x18000
WS_FL    = 0x1C000
WS_PX    = 0x20000
WS_AG    = 0x30000
AGS = 1152*8
WS_MG    = 0x40000
WS_FG    = 0x50000
WS_OG    = 0x100000
WS_MLG   = 0x120000
WS_RG    = 0x124000
WS_XA    = 0x136000
WS_CF    = 0x151000
WS_HL    = 0x152000
WS_GOFF  = 0x80000
WS_QL    = 0x200000
WS_PC    = 0xA2000
WS_STAMP = 0x8000000
AL = 131072; L_Q = 0; L_CNT = 512; L_MX = 640; L_LS = 768; L_P = 1024; PSTR = 1152; L_PD = 3328
ASTR = 1184
L_BUF0 = 0; L_BUF1 = 73728; L_ACT = 147456; L_H1 = L_ACT + 8*ASTR; L_CF = L_H1 + 256; L_WCNT = L_CF + 64; L_ST = L_WCNT + 64; L_X1 = L_ST + 1536
LDS_BYTES = 160768
assert L_X1 <= LDS_BYTES
NLOC = 300
SPIN = 40000
LITE = False
LOG2E = 0x3fb8aa3b
X_, K_, V_, WQ_, WO_, W1_, B1_, W2_, B2_, C_, WM_, OUT_, WS_ = 16, 18, 20, 22, 24, 28, 30, 32, 34, 36, 38, 40, 42
TAG = "s6"; ETAG = "s101"

def sp(n): return f"s[{n}:{n+1}]"
def vr(n, k): return f"v[{n}:{n+k-1}]"
def f2h(x): return hex(struct.unpack("<I", struct.pack("<f", x))[0])
DPPM = "row_mask:0xf bank_mask:0xf"

class G(Asm):
    def __init__(self, stamps=False, nt="nt"):
        super().__init__()
        self.stamps = stamps
        self.nt = (" " + nt) if nt else ""
    def stamp(self, i):
        if self.stamps and (not LITE or i == 13):
            self(f"s_memrealtime s[96:97]\ns_waitcnt lgkmcnt(0)\nv_writelane_b32 v127, s96, {i}")
    def rbf(self, *pairs):
        for d, s in pairs: self(f"v_cvt_pk_bf16_f32 {d}, 0, {s}")
    def r1(self, *regs): self.rbf(*[(r, r) for r in regs])
    def srd(self, b, ptr, nbytes):
        self(f"s_mov_b32 s{b}, s{ptr}\ns_and_b32 s{b+1}, s{ptr+1}, 0xffff\ns_mov_b32 s{b+2}, {nbytes}\ns_mov_b32 s{b+3}, 0x20000")
    def mktag(self):
        self(f"s_add_u32 s6, s6, 0x9e3779b9\ns_and_b32 {ETAG}, s6, 63\ns_and_b32 s100, s6, 7")
    def tagcheck(self, tags, mn, mx, retry):
        if len(tags) == 1:
            self(f"v_cmp_ne_u32 vcc, {TAG}, {tags[0]}")
        else:
            assert len(tags) % 2 == 0
            for i in range(0, len(tags), 2):
                a, b = tags[i], tags[i+1]
                self(f"v_min3_u32 {mn}, {a}, {b}, {TAG if i == 0 else mn}")
                self(f"v_max3_u32 {mx}, {a}, {b}, {TAG if i == 0 else mx}")
            self(f"v_cmp_ne_u32 vcc, {mn}, {mx}")
        self(f"s_cbranch_vccnz {retry}")
    def etagcheck(self, words, acc, retry, ETAG=ETAG, mask=63):
        assert len(words) % 2 == 0
        for i in range(0, len(words), 2):
            a, b = words[i], words[i+1]
            self(f"v_xor_b32 {a}, {ETAG}, {a}\nv_xor_b32 {b}, {ETAG}, {b}")
            if i == 0: self(f"v_or_b32 {acc}, {a}, {b}")
            else: self(f"v_or3_b32 {acc}, {a}, {b}, {acc}")
        self(f"v_and_b32 {acc}, {mask}, {acc}\nv_cmp_ne_u32 vcc, 0, {acc}\ns_cbranch_vccnz {retry}")
    def epack(self, d, v, mask=63):
        self(f"v_bfi_b32 {d}, {mask}, {ETAG}, {v}")
    def spin_head(self, lab):
        self(f"s_mov_b32 s7, 0\n{lab}:\ns_add_u32 s7, s7, 1\ns_cmp_gt_u32 s7, {SPIN}\ns_cbranch_scc1 L_end")
    def dual_head(self, lab, regs, init=True):
        if init: self("s_mov_b32 s7, 0")
        self(f"{lab}:\ns_add_u32 s7, s7, 1\ns_cmp_gt_u32 s7, {SPIN}\ns_cbranch_scc1 L_end")
        self(f"s_cmp_lg_u32 s7, {NLOC}\ns_cbranch_scc1 {lab}_k")
        for r in regs: self(f"v_add_u32 {r}, {WS_GOFF}, {r}")
        self(f"{lab}_k:")
    def dual_store(self, op, vaddr, data):
        self(f"{op} {vaddr}, {data}, {sp(WS_)}\nv_add_u32 {vaddr}, {WS_GOFF}, {vaddr}\n{op} {vaddr}, {data}, {sp(WS_)} sc1")
    def row_reduce(self, op, regs, steps=4):
        for ctl in ("quad_perm:[1,0,3,2]", "quad_perm:[2,3,0,1]", "row_half_mirror", "row_mirror")[:steps]:
            if len(regs) < 3: self(f"s_nop {2 - len(regs)}")
            for r in regs:
                self(f"{op}_dpp {r}, {r}, {r} {ctl} {DPPM}")
    def lds_spin(self, off, val, vt, vbase, sleep=True):
        lab = self.label("LS")
        self.spin_head(lab)
        self(f"ds_read_b32 {vt}, {vbase} offset:{off}\ns_waitcnt lgkmcnt(0)\nv_readfirstlane_b32 s44, {vt}\ns_cmp_ge_u32 s44, {val}")
        done = self.label("LD")
        self(f"s_cbranch_scc1 {done}\n" + ("s_sleep 1\n" if sleep else "") + f"s_branch {lab}\n{done}:")
    def lds_inc(self, off, vbase, vone):
        self(f"s_mov_b64 exec, 1\nds_add_u32 {vbase}, {vone} offset:{off}\ns_mov_b64 exec, -1")

INV576 = f2h(1.0/576)
def ln_finish(A, mean, var, rs):
    A(f"v_max_f32 {var}, 0, {var}")
    A.r1(mean, var)
    A(f"v_add_f32 {var}, 0x3727c5ac, {var}")
    A.r1(var)
    A(f"v_sqrt_f32 {var}, {var}\ns_nop 0")
    A.r1(var)
    A(f"v_rcp_f32 {rs}, {var}\ns_nop 0")

def dma_tile(A, srd, voff, rowstride, ldsbase, ninstr=72, nt=None):
    if nt is None: nt = A.nt
    A(f"s_mul_i32 s44, s3, {8*rowstride}\ns_lshl_b32 s45, s3, 10\ns_add_u32 s45, s45, {ldsbase}")
    for i in range((ninstr + 15)//16):
        skip = None
        if (i+1)*16 > ninstr:
            skip = A.label("DS")
            A(f"s_cmp_ge_u32 s3, {ninstr - 16*i}\ns_cbranch_scc1 {skip}")
        A(f"s_mov_b32 m0, s45\ns_add_u32 s45, s45, 16384")
        A(f"buffer_load_dwordx4 {voff}, s[{srd}:{srd+3}], s44 offen{nt} lds")
        A(f"s_add_u32 s44, s44, {128*rowstride}")
        if skip: A(f"{skip}:")

def bfrags(A, vaddr, vb=52, nks=18, rowb=128):
    base = 0
    for ks in range(nks):
        for half in range(2):
            off = (ks*32 + half*16) * rowb
            if off - base > 65535:
                A(f"v_add_u32 {vaddr}, {off - base}, {vaddr}"); base = off
            A(f"ds_read_b64_tr_b16 {vr(vb + ks*4 + half*2,2)}, {vaddr} offset:{off - base}")

def kv_chunk_base(A, rp, dst, t, SP):
    A(f"""
    s_lshr_b32 {t}, {rp}, 3
    s_lshl_b32 {dst}, s4, 1
    s_add_u32 {dst}, {dst}, {t}
    s_bfe_u32 {t}, {rp}, 0x10002
    s_lshl_b32 {t}, {t}, 4
    s_add_u32 {dst}, {dst}, {t}
    s_lshl_b32 {dst}, {dst}, 21
    s_and_b32 {t}, {rp}, 3
    s_lshl_b32 {t}, {t}, {SP}
    s_add_u32 {dst}, {dst}, {t}
    s_add_u32 {dst}, {dst}, {6144*256}
    """)

def gemv_mfma(A, vaaddr, vb=52, va=24, vd=20, depth=7, nks=18, mid=None):
    depth = min(depth, nks)
    def rd(ks):
        A(f"ds_read_b128 {vr(va + (ks % depth)*4,4)}, {vaaddr} offset:{ks*64}")
    for ks in range(depth): rd(ks)
    for ks in range(nks):
        issued = min(nks, depth + ks)
        A(f"s_waitcnt lgkmcnt({issued - ks - 1})")
        c = "0" if ks == 0 else vr(vd, 4)
        A(f"v_mfma_f32_16x16x32_bf16 {vr(vd,4)}, {vr(va + (ks % depth)*4,4)}, {vr(vb+ks*4,4)}, {c}")
        if ks + depth < nks: rd(ks + depth)
        if mid and ks == mid[0]: A(mid[1])

def gemv_sm(A, vaaddr, vidx, vb=52, va=24, vd=20, depth=7, nch=9, mid=None):
    depth = min(depth, nch)
    def rd(c):
        A(f"ds_read_b128 {vr(va + (c % depth)*4,4)}, {vaaddr} offset:{c*128}")
    for c in range(depth): rd(c)
    for c in range(nch):
        issued = min(nch, depth + c)
        A(f"s_waitcnt lgkmcnt({issued - c - 1})")
        A(f"v_smfmac_f32_16x16x64_bf16 {vr(vd,4)}, {vr(va + (c % depth)*4,4)}, {vr(vb+c*8,8)}, {vidx}")
        if c + depth < nch: rd(c + depth)
        if mid and c == mid[0]: A(mid[1])

def sm_idx(A, vidx, vd=20, n=4):
    A(f"v_bfe_i32 {vidx}, v1, 0, 1\nv_and_b32 {vidx}, 0xaaaa, {vidx}\nv_or_b32 {vidx}, 0x4444, {vidx}")
    for i in range(n): A(f"v_mov_b32 v{vd+i}, 0")

def fold8(A, n, a, b, t, swapb=True):
    for i in range(1, n):
        A(f"v_add_f32 v{a}, v{a}, v{a+2*i}\nv_add_f32 v{b}, v{b}, v{b+2*i}")
    A(f"""
    s_nop 1
    v_permlane32_swap_b32 v{a}, v{b}
    v_add_f32 v{a}, v{a}, v{b}
    v_mov_b32 v{t}, v{a}
    s_nop 1
    v_permlane16_swap_b32 v{a}, v{t}
    v_add_f32 v{a}, v{a}, v{t}
    s_nop 1
    v_add_f32_dpp v{a}, v{a}, v{a} row_ror:8 {DPPM}
    """)

def build(stamps=False, nt="nt", adelay=0, dbg=0, w2first=0, qs=2, ps=2, pt=1, diag=0, ql=0, rgw=0, il=2, trig=1, pf=0, fgs=13, ordr=0, nb1=0, nb2=0, mlt=0, c3=1, hq=0, fl=0, ppt=0, probe=0, cfm=2, x4=1, me=0, tm=96, dq=0, dv=0, ds5=0, nr=8, qpt=0, qv=1, qlay=1, pc=0, fpos=0, hs=0, hp=2, xk=0, wm=0, at=0, an=2, ks=2, tp=0, osc=1, wb=0, wb0=0, ot=0, tw=8, tk=0, p2=0, sw=1, hw=0, pp=0, kb=1):
    NJ = 18*ks; RW = 576//ks; JX = 4 if ks == 2 else 6
    CH, BL, SP = {0: (15, 13, 17), 1: (17, 15, 13), 2: (17, 13, 15)}[il]
    global SPIN, NLOC
    if diag: SPIN = 60; NLOC = 100
    A = G(stamps, nt)
    def vtail(n, level, w0):
        lab = A.label("VT")
        A(f"""
        s_sub_u32 s48, s3, {w0}
        s_cmp_ge_u32 s48, {n}
        s_cbranch_scc1 {lab}
        s_and_b32 s49, s48, 1
        s_lshl_b32 s50, s5, 1
        s_add_u32 s50, s50, s49
        """)
        kv_chunk_base(A, "s50", "s44", "s45", SP)
        A(f"""
        s_lshr_b32 s48, s48, 1
        s_sub_u32 s48, 3, s48
        s_lshl_b32 s48, s48, {BL}
        s_add_u32 s44, s44, s48
        s_add_u32 s44, s44, {level << CH}
        v_lshl_add_u32 v20, v1, 7, s44
        global_load_dword v125, v20, {sp(V_)}{A.nt}
        {lab}:
        """)
    NT = A.nt
    A.header(256, 1024, LDS_BYTES)
    A(f"""
    s_cmp_ge_u32 s2, 256
    s_cbranch_scc1 L_exit
    s_load_dwordx16 s[16:31], s[0:1], 0
    s_load_dwordx8 s[32:39], s[0:1], 64
    s_load_dwordx2 s[40:41], s[0:1], 96
    s_load_dwordx2 s[42:43], s[0:1], 112
    {'s_load_dwordx2 s[94:95], s[0:1], 104' if at else ''}
    v_lshrrev_b32 v2, 6, v0
    v_and_b32 v1, 63, v0
    s_and_b32 s4, s2, 7
    v_readfirstlane_b32 s3, v2
    s_lshr_b32 s5, s2, 3
    v_mov_b32 v3, 0
    """)
    if stamps:
        A("v_mov_b32 v127, 0\ns_memrealtime s[98:99]")
    A(f"""
    s_cmp_lg_u32 s5, 24
    s_cbranch_scc1 L_nopf
    s_getpc_b64 s[44:45]
    L_pfbase:
    s_sub_u32 s44, s44, L_pfbase-{NAME}_kernel
    s_subb_u32 s45, s45, 0
    v_lshlrev_b32 v4, 7, v0
    v_cmp_gt_u32 vcc, L_codeend-{NAME}_kernel, v4
    s_and_saveexec_b64 s[46:47], vcc
    s_cbranch_execz L_pfd
    global_load_dword v5, v4, s[44:45]
    L_pfd:
    s_mov_b64 exec, -1
    """)
    if tp:
        A(f"""
        s_min_u32 s44, s3, 14
        s_lshl_b32 s45, s44, 3
        s_load_dwordx2 s[60:61], s[0:1], s45
        s_lshl_b32 s44, s44, 1
        s_lshr_b32 s44, {(2<<6)|(2<<8)|(2<<12)|(2<<16)|(1<<22)}, s44
        s_and_b32 s44, s44, 3
        v_min_u32 v4, s44, v1
        v_lshlrev_b32 v4, 21, v4
        v_and_b32 v6, 1, v1
        v_bfe_u32 v7, v1, 1, 1
        v_lshl_or_b32 v6, v7, 4, v6
        s_lshl_b32 s44, s4, 1
        v_add_u32 v6, s44, v6
        v_lshlrev_b32 v6, 21, v6
        s_cmp_eq_u32 s3, 2
        s_cselect_b64 vcc, -1, 0
        v_or_b32 v6, 0x180000, v6
        v_cndmask_b32 v4, v4, v6, vcc
        s_mov_b64 exec, 15
        s_waitcnt lgkmcnt(0)
        global_load_dword v126, v4, s[60:61] nt
        s_mov_b64 exec, -1
        """)
    A(f"""
    L_nopf:
    s_cmp_lt_u32 s5, 16
    s_cbranch_scc1 L_A
    {'s_branch L_exit' if diag & 32 else ''}
    s_sub_u32 s5, s5, 16                  ; u
    s_sub_u32 s55, s2, {25*8}
    s_min_u32 s47, s4, {JX}
    s_mul_i32 s48, s4, {JX}
    s_add_u32 s47, s47, s48
    s_add_u32 s47, s47, s5
    s_sub_u32 s47, s47, 9
    s_mul_i32 s48, s47, 0xe39
    s_lshr_b32 s48, s48, 16               ; ksp
    s_mul_i32 s49, s48, 18
    s_sub_u32 s49, s47, s49               ; cgp
    s_mul_i32 s50, s48, {RW*6912}
    s_lshl_b32 s51, s49, 7
    s_add_u32 s50, s50, s51               ; M offset
    s_lshl_b32 s51, s4, 3
    s_add_u32 s51, s51, s5                ; qb
    s_lshl_b32 s52, s51, 7                ; B offset
    v_lshrrev_b32 v4, 3, v1
    v_bfe_u32 v6, v1, 4, 2
    v_lshlrev_b32 v6, 1, v6
    v_and_b32 v7, 7, v1
    v_xor_b32 v6, v6, v7
    s_movk_i32 s53, 6912
    s_cmp_lt_u32 s5, 8
    s_cselect_b32 s50, s52, s50
    s_cselect_b32 s53, 8192, s53          ; stride
    s_cselect_b32 s54, 72, {RW//8}        ; count
    s_mul_i32 s10, s53, 576
    s_cselect_b32 s47, s51, s47
    s_cselect_b32 s55, 0, s55
    v_mul_u32_u24 v14, s53, v4
    v_lshl_add_u32 v14, v6, 4, v14
    v_add_u32 v15, s50, v14
    s_mov_b32 s11, 0x20000
    s_lshl_b32 s53, s53, 3
    s_mul_i32 s44, s3, s53
    s_lshl_b32 s53, s53, 4
    s_lshl_b32 s45, s3, 10
    s_mov_b32 s46, s3
    s_cmp_lt_u32 s5, 8
    s_waitcnt lgkmcnt(0)
    s_cselect_b32 s8, s{WQ_}, s{WM_}
    s_cselect_b32 s9, s{WQ_+1}, s{WM_+1}
    s_and_b32 s9, s9, 0xffff
    s_cmp_ge_u32 s55, {NJ}
    s_cbranch_scc1 L_W_nodma
    L_W_dma:
    s_mov_b32 m0, s45
    s_add_u32 s45, s45, 16384
    buffer_load_dwordx4 v15, s[8:11], s44 offen{'' if wm & 1 else NT} lds
    s_add_u32 s44, s44, s53
    s_add_u32 s46, s46, 16
    s_cmp_lt_u32 s46, s54
    s_cbranch_scc1 L_W_dma
    L_W_nodma:
    s_load_dword s6, {sp(WS_)}, {WS_EPOCH}
    s_branch L_W
    """)
    A(f"""
    L_A:
    """)
    if ordr:
        t0_, t1_ = {1: (0xd8, 0xd8), 2: (0xe4, 0xd2), 3: (0xd8, 0xd2)}[ordr]
        A(f"""
        s_bitcmp1_b32 s5, 0
        s_movk_i32 s44, {t0_}
        s_cselect_b32 s44, {t1_}, s44
        s_lshr_b32 s45, s3, 2
        s_lshl_b32 s45, s45, 1
        s_lshr_b32 s44, s44, s45
        s_and_b32 s44, s44, 3
        s_and_b32 s3, s3, 3
        s_lshl_b32 s44, s44, 2
        s_or_b32 s3, s3, s44
        """)
    A(f"""
    v_mov_b32 v4, {AL}
    v_lshl_add_u32 v5, v1, 2, v4
    v_bfe_i32 v6, v1, 5, 1
    ds_write_b32 v5, v6 offset:{L_CNT}
    s_lshr_b32 s44, s5, 3
    s_lshl_b32 s45, s4, 1
    s_add_u32 s46, s45, s44            ; hkv
    s_bfe_u32 s47, s5, 0x10002          ; b
    s_and_b32 s48, s5, 3                ; sp
    s_lshl_b32 s49, s47, 4
    s_add_u32 s49, s49, s46             ; b*16+hkv
    s_lshl_b32 s49, s49, 21
    s_lshl_b32 s50, s48, {SP}
    s_add_u32 s49, s49, s50
    s_add_u32 s49, s49, {6144*256}
    s_bfe_u32 s51, s3, 0x10002            ; g
    s_and_b32 s44, s3, 3
    s_lshl_b32 s50, s51, {CH+1}
    s_add_u32 s49, s49, s50
    s_lshl_b32 s50, s44, {BL}
    s_add_u32 s49, s49, s50
    s_lshl_b32 s45, s51, 3
    s_add_u32 s48, s44, s45
    v_and_b32 v9, 3, v1
    v_mov_b32 v7, 1
    s_cmp_ge_u32 s3, 8
    s_cbranch_scc1 L_AV
    s_add_u32 s49, s49, 4096
    v_bfe_u32 v5, v1, 2, 2
    v_lshlrev_b32 v5, 8, v5
    v_and_b32 v6, 48, v1
    v_lshl_or_b32 v5, v6, 2, v5
    v_lshl_or_b32 v5, v9, 4, v5
    s_waitcnt lgkmcnt(0)
    s_load_dword s6, {sp(WS_)}, {WS_EPOCH}
    s_add_u32 s52, s{K_}, s49
    s_addc_u32 s53, s{K_+1}, 0
    s_add_u32 s54, s52, {1 << CH}
    s_addc_u32 s55, s53, 0
    """)
    if adelay: A("s_waitcnt lgkmcnt(0)")
    if not kb: A("s_barrier")
    if xk:
        A("s_sub_u32 s58, s52, 0x80000\ns_subb_u32 s59, s53, 0\ns_sub_u32 s60, s54, 0x80000\ns_subb_u32 s61, s55, 0")
        for t in range(16):
            A(f"global_load_dwordx4 {vr(32+4*t,4)}, v5, s[{58+2*(t>>3)}:{59+2*(t>>3)}] offset:{(t&7)*1024-4096}{NT}")
    for t in range(16):
        A(f"global_load_dwordx4 {vr(32+4*t,4)}, v5, s[{52+2*(t>>3)}:{53+2*(t>>3)}] offset:{(t&7)*1024-4096}{NT}")
    if kb: A("s_barrier")
    if stamps: A("s_waitcnt lgkmcnt(0)\nv_writelane_b32 v127, s98, 0")
    A.stamp(1)
    A(f"""
    v_bfe_u32 v8, v1, 2, 1
    v_lshlrev_b32 v8, 8, v8
    v_lshl_or_b32 v8, v6, 2, v8
    v_lshl_or_b32 v8, v9, 4, v8
    v_add_u32 v8, v4, v8
    v_bfe_u32 v11, v1, 4, 1
    v_mul_u32_u24 v10, {PSTR}, v11
    v_and_b32 v12, 1, v1
    v_lshl_add_u32 v10, v12, 4, v10
    v_lshrrev_b32 v13, 5, v1
    v_lshl_add_u32 v10, v13, 3, v10
    v_and_b32 v13, 2, v1
    v_lshl_add_u32 v10, v13, 1, v10
    v_bfe_u32 v13, v1, 2, 1
    v_lshl_add_u32 v10, v13, 1, v10
    v_and_b32 v13, 8, v1
    v_lshl_add_u32 v10, v13, 3, v10
    s_lshr_b32 s44, s48, 1
    s_lshl_b32 s44, s44, 7
    s_and_b32 s45, s48, 1
    s_lshl_b32 s45, s45, 5
    s_add_u32 s44, s44, s45
    s_add_u32 s44, s44, {AL + L_P}
    v_add_u32 v10, s44, v10
    v_lshl_add_u32 v12, v12, 6, v6
    v_bfe_u32 v13, v1, 1, 1
    v_mul_u32_u24 v13, {PSTR}, v13
    v_add3_u32 v12, v12, v13, v4
    v_lshl_add_u32 v11, v11, 5, v4
    v_and_b32 v13, 31, v1
    v_lshl_add_u32 v13, v13, 2, v4
    s_lshl_b32 s44, s3, 2
    v_add_u32 v11, s44, v11
    v_bfe_u32 v17, v1, 4, 1
    v_lshl_add_u32 v17, v17, 5, v11
    v_and_b32 v18, 32, v1
    v_add_u32 v17, v17, v18
    v_bfe_u32 v14, v1, 2, 3
    v_xor_b32 v14, s3, v14
    v_lshlrev_b32 v14, 5, v14
    v_lshrrev_b32 v15, 2, v1
    v_lshl_or_b32 v14, v15, 8, v14
    v_lshl_or_b32 v14, v9, 3, v14
    v_add_u32 v15, {12*8192}, v14
    v_and_b32 v14, 15, v1
    v_lshl_add_u32 v14, v14, 3, v4
    s_lshl_b32 s44, s3, 7
    v_add_u32 v14, s44, v14
    s_mov_b32 s58, 0x22222222
    s_mov_b32 s59, 0x22222222
    s_mov_b32 s60, 0x44444444
    s_mov_b32 s61, 0x44444444
    s_mov_b32 s62, 0x88888888
    s_mov_b32 s63, 0x88888888
    s_lshl_b32 s44, s47, 14
    s_lshl_b32 s45, s46, 10
    s_add_u32 s44, s44, s45
    s_lshl_b32 s45, s3, 7
    s_add_u32 s44, s44, s45
    s_add_u32 s44, s44, {WS_QG}
    s_add_u32 s56, s{WS_}, s44
    s_addc_u32 s57, s{WS_+1}, 0
    s_lshl_b32 s50, s4, 4
    s_add_u32 s50, s50, s5
    s_lshl_b32 s50, s50, 10
    s_add_u32 s50, s50, s45
    s_add_u32 s50, s50, {WS_OG}
    v_lshl_add_u32 v6, v1, 3, s50
    s_waitcnt lgkmcnt(0)
    """)
    A.mktag()
    A(f"""
    """)
    if not ql: pass
    elif qlay:
        A(f"""
        s_sub_u32 s44, s44, {WS_QG}
        s_lshl_b32 s44, s44, 3
        s_add_u32 s44, s44, {WS_QL}
        s_add_u32 s52, s{WS_}, s44
        s_addc_u32 s53, s{WS_+1}, 0
        """)
    else:
        A(f"s_add_u32 s52, s56, {WS_QL - WS_QG}\ns_addc_u32 s53, s57, 0")
    A(f"""
    s_waitcnt vmcnt(0)
    """)
    if qv:
        A.lds_inc(L_CNT+12, "v4", "v7")
        A.lds_spin(L_CNT+12, 8, "v16", "v4")
    A(f"""
    """)
    if ql:
        A(f"""
    s_mov_b32 s7, {0 if ql else nr}
    L_A_qpoll:
    s_add_u32 s7, s7, 1
    s_cmp_gt_u32 s7, {SPIN}
    s_cbranch_scc1 L_end
    s_cmp_gt_u32 s7, {nr}
    s_cbranch_scc1 L_A_qg
    s_load_dwordx16 s[64:79], s[52:53], 0
    s_load_dwordx16 s[80:95], s[52:53], 64
    s_add_u32 s52, s52, {128 if qlay else 32768}
    s_addc_u32 s53, s53, 0
    s_branch L_A_qc
    L_A_qr:
    s_sleep {qs}
    s_branch L_A_qpoll
""")
    else:
        A(f"""
        s_mov_b32 s7, 0
        L_A_qr:
        s_add_u32 s7, s7, 1
        s_cmp_gt_u32 s7, {SPIN}
        s_cbranch_scc1 L_end
        s_sleep {qs}
        """)
    A(f"""
    L_A_qg:
    s_load_dwordx16 s[64:79], s[56:57], 0 glc
    s_load_dwordx16 s[80:95], s[56:57], 64 glc
    L_A_qc:
    s_waitcnt lgkmcnt(0)
    """)
    for i in range(16):
        A(f"s_cmp_lg_u32 s{65+2*i}, {TAG}\ns_cbranch_scc1 L_A_qr")
    A("s_mov_b64 exec, 1")
    for i in range(16):
        A(f"v_mov_b32 v{96+i}, s{64+2*i}")
    A(f"s_lshl_b32 s44, s3, 6\nv_add_u32 v20, s44, v4")
    for i in range(4):
        A(f"ds_write_b128 v20, {vr(96+4*i,4)} offset:{L_Q+16*i}")
    A(f"""
    ds_add_u32 v4, v7 offset:{L_CNT}
    s_mov_b64 exec, -1
    s_mov_b32 s56, 0xff00ff00
    s_mov_b32 s57, 0xff00ff00
    """)
    A.lds_spin(L_CNT, 8, "v16", "v4", sleep=False)
    A.stamp(2)
    A(f"ds_read_b128 v[20:23], v8 offset:{L_Q}\ns_waitcnt lgkmcnt(0)")
    for i in range(4):
        A(f"v_cndmask_b32 v{24+i}, 0, v{20+i}, s[56:57]")
        A(f"v_cndmask_b32 v{20+i}, v{20+i}, 0, s[56:57]")
    A("s_waitcnt vmcnt(0)\ns_nop 0")
    D = [96, 32]
    def qk(z, i):
        u = i & 3
        if i < 4: A(f"v_mfma_f32_16x16x32_bf16 {vr(D[z]+4*u,4)}, v[20:23], {vr(32+32*z+8*u,4)}, 0")
        else: A(f"v_mfma_f32_16x16x32_bf16 {vr(D[z]+4*u,4)}, v[24:27], {vr(36+32*z+8*u,4)}, {vr(D[z]+4*u,4)}")
    def red(z, u):
        t = 112 + 4*z
        A(f"v_mov_b32_dpp v{t+u}, v{D[z]+4*u} quad_perm:[0,0,0,0] {DPPM}")
        for c in range(1, 4):
            A(f"v_add_f32_dpp v{t+u}, v{D[z]+4*u+c}, v{t+u} quad_perm:[{c},{c},{c},{c}] {DPPM}")
    for i in range(8): qk(0, i)
    for i in range(5): qk(1, i)
    for u in range(3):
        red(0, u); qk(1, 5+u)
    red(0, 3)
    for k, m in ((1, 58), (2, 60), (3, 62)):
        A(f"v_cndmask_b32 v112, v112, v{112+k}, s[{m}:{m+1}]")
    for u in range(4): red(1, u)
    A.stamp(3)
    for k, m in ((1, 58), (2, 60), (3, 62)):
        A(f"v_cndmask_b32 v116, v116, v{116+k}, s[{m}:{m+1}]")
    A.r1("v112", "v116")
    A("v_mul_f32 v112, 0x3db504f3, v112\nv_mul_f32 v116, 0x3db504f3, v116")
    A.r1("v112", "v116")
    A("v_max_f32 v113, v112, v116")
    A.row_reduce("v_max_f32", ["v113"])
    A(f"""
    s_mov_b32 exec_lo, 0x10001
    s_mov_b32 exec_hi, 0x10001
    ds_write_b32 v17, v113 offset:{L_MX}
    s_mov_b64 exec, -1
    ds_read_b32 v118, v4 offset:{L_CNT+28}
    v_mul_f32 v112, {hex(LOG2E)}, v112
    v_mul_f32 v116, {hex(LOG2E)}, v116
    s_mov_b32 s45, {hex(LOG2E)}
    """)
    A.spin_head("L_A_mx")
    A(f"""
    ds_read_b32 v113, v13 offset:{L_MX}
    s_waitcnt lgkmcnt(0)
    v_cmp_eq_u32 vcc, -1, v113
    s_cbranch_vccnz L_A_mx
    v_readfirstlane_b32 s67, v118
    """)
    A.row_reduce("v_max_f32", ["v113"])
    A(f"""
    v_fma_f32 v112, -v113, s45, v112
    v_fma_f32 v116, -v113, s45, v116
    v_exp_f32 v112, v112
    v_exp_f32 v116, v116
    s_nop 0
    v_cvt_pk_bf16_f32 v115, v112, v116
    ds_write_b16 v10, v115
    ds_write_b16_d16_hi v10, v115 offset:256
    v_add_f32 v112, v112, v116
    """)
    A.row_reduce("v_add_f32", ["v112"])
    A(f"""
    s_mov_b32 exec_lo, 0x10001
    s_mov_b32 exec_hi, 0x10001
    ds_write_b32 v17, v112 offset:{L_LS}
    s_mov_b64 exec, 1
    ds_add_u32 v4, v7 offset:{L_CNT+8}
    s_mov_b64 exec, -1
    v_mov_b32 v20, v113
    """)
    sm_idx(A, "v19", 112)
    def vreads3():
        for k in range(4):
            for half in range(2):
                A(f"ds_read_b64_tr_b16 {vr(32+4*k+2*half,2)}, v15 offset:{k*8192 + half*4096}")
    A("s_cmp_lt_u32 s67, 4\ns_cbranch_scc1 L_A_np")
    vreads3()
    A("L_A_np:")
    A.lds_spin(L_CNT+8, 8, "v16", "v4", sleep=False)
    A.stamp(4)
    for k in range(2):
        A(f"ds_read_b128 {vr(64+4*k,4)}, v12 offset:{L_P + (6+k)*128}")
    A(f"""
    s_cmp_lg_u32 s3, 0
    s_cbranch_scc1 L_A_nml
    ds_read_b32 v21, v13 offset:{L_LS}
    s_lshl_b32 s50, s4, 4
    s_add_u32 s50, s50, s5
    s_lshl_b32 s50, s50, 7
    s_add_u32 s50, s50, {WS_MLG}
    v_mov_b32 v24, s50
    v_mov_b32 v22, v20
    s_waitcnt lgkmcnt(0)
    """)
    A.row_reduce("v_add_f32", ["v21"])
    A("""
    v_mov_b32 v23, v21
    v_permlane16_swap_b32 v20, v22
    s_nop 0
    v_permlane16_swap_b32 v21, v23
    """)
    for r in range(20, 24): A.epack(f"v{r}", f"v{r}")
    A("s_mov_b64 exec, 1")
    A.dual_store("global_store_dwordx4", "v24", "v[20:23]")
    A("s_mov_b64 exec, -1")
    A.stamp(7)
    A("L_A_nml:")
    def vm(k, wait):
        A(f"s_waitcnt lgkmcnt({wait})")
        A(f"v_smfmac_f32_16x16x64_bf16 v[112:115], {vr(64+4*k,4)}, {vr(32+8*k,8)}, v19")
    def pd():
        A.lds_spin(L_CNT+32, 4, "v120", "v4", sleep=False)
        A(f"ds_read_b64 v[118:119], v14 offset:{L_PD}")
    A("s_cmp_lt_u32 s67, 4\ns_cbranch_scc1 L_A_slow")
    for k in range(2): vm(k, 1-k)
    A("L_A_pd:")
    pd()
    A("s_waitcnt lgkmcnt(0)\ns_branch L_A_fin\nL_A_slow:")
    A.spin_head("L_A_w")
    A(f"""
    ds_read2_b32 v[120:121], v4 offset0:{(L_CNT+28)//4} offset1:{(L_CNT+32)//4}
    s_waitcnt lgkmcnt(0)
    v_readfirstlane_b32 s44, v120
    v_readfirstlane_b32 s45, v121
    s_cmp_ge_u32 s45, 4
    s_cbranch_scc1 L_A_y
    s_cmp_lt_u32 s44, 4
    s_cbranch_scc1 L_A_w
    """)
    vreads3()
    for k in range(2): vm(k, 4-4*k)
    A(f"s_branch L_A_pd\nL_A_y:\nds_read_b64 v[118:119], v14 offset:{L_PD}\ns_cmp_ge_u32 s44, 4\ns_cbranch_scc1 L_A_y2")
    A.lds_spin(L_CNT+28, 4, "v120", "v4", sleep=False)
    A("L_A_y2:")
    vreads3()
    for k in range(2): vm(k, 4-4*k)
    A("s_nop 6\nL_A_fin:\ns_mov_b64 exec, 0xffff\nv_add_f32 v112, v112, v113\nv_add_f32 v113, v114, v115\nv_add_f32 v112, v112, v118\nv_add_f32 v113, v113, v119")
    A.epack("v116", "v112"); A.epack("v117", "v113")
    A.dual_store("global_store_dwordx2", "v6", "v[116:117]")
    A("s_mov_b64 exec, -1")
    A.stamp(6)
    if p2:
        A(f"""
        s_cmp_ge_u32 s3, {p2}
        s_cbranch_scc1 L_end
        s_lshl_b32 s44, s3, 4
        s_add_u32 s44, s44, s5                ; unit index 0..79 : tile = idx % 9, piece = 8 - idx / 9
        s_mul_i32 s45, s44, 0x1c72
        s_lshr_b32 s45, s45, 16
        s_mul_i32 s46, s45, 9
        s_sub_u32 s44, s44, s46
        s_mul_i32 s46, s4, 9
        s_add_u32 s44, s44, s46
        s_mul_i32 s44, s44, 9
        s_add_u32 s44, s44, 8
        s_sub_u32 s44, s44, s45
        s_lshl_b32 s44, s44, 13
        v_lshl_add_u32 v20, v1, 7, s44
        global_load_dword v21, v20, {sp(W2_)}{NT}
        s_waitcnt vmcnt(0)
        """)
    A("s_branch L_end")
    A(f"""
    L_AV:
    s_lshl_b32 s45, s48, 13
    s_mov_b32 s44, s49                    ; soffset
    v_lshrrev_b32 v5, 4, v1
    v_lshlrev_b32 v6, 1, v5
    v_and_b32 v8, 15, v1
    v_xor_b32 v6, v6, v8
    v_lshlrev_b32 v6, 4, v6
    v_lshl_or_b32 v5, v5, 8, v6
    v_xor_b32 v6, 128, v5
    s_waitcnt lgkmcnt(0)
    s_load_dword s6, {sp(WS_)}, {WS_EPOCH}
    """)
    A.srd(8, V_, 0x4000000)
    A("s_barrier")
    for hf in range(2):
        for q4 in range(2):
            A("s_mov_b32 m0, s45\ns_nop 0")
            for n in range(4):
                A(f"buffer_load_dwordx4 {'v6' if n & 1 else 'v5'}, s[8:11], s44 offen offset:{n*1024}{NT} lds")
            if q4 == 0: A("s_add_u32 s45, s45, 4096\ns_add_u32 s44, s44, 4096")
            elif hf == 0: A(f"s_add_u32 s45, s45, {4*8192 - 4096}\ns_add_u32 s44, s44, {(1 << CH) - 4096}")
    if stamps: A("s_waitcnt lgkmcnt(0)\nv_writelane_b32 v127, s98, 0")
    A.stamp(1)
    if pf:
        A(f"""
        s_cmp_lt_u32 s3, 11
        s_cbranch_scc1 L_AV_np
        s_mul_i32 s45, s5, 5
        s_add_u32 s45, s45, s3
        s_lshl_b32 s50, s45, 6
        s_sub_u32 s50, s50, {10*64}
        s_lshl_b32 s44, s51, 3
        v_add_u32 v5, s44, v4
        v_add_u32 v20, s50, v1
        v_mul_u32_u24 v21, 0x1c72, v20
        v_lshrrev_b32 v21, 16, v21
        v_mul_u32_u24 v22, 9, v21
        v_sub_u32 v22, v20, v22
        v_mul_u32_u24 v21, 9216, v21
        v_lshl_add_u32 v21, v22, 7, v21
        s_mul_i32 s50, s4, 1152
        v_add_u32 v21, s50, v21
        global_load_dword v29, v21, {sp(W1_)}{NT}
        s_mov_b64 exec, 1
        s_waitcnt vmcnt(9)
        ds_add_u32 v5, v7 offset:{L_CNT+16}
        s_waitcnt vmcnt(1)
        ds_add_u32 v5, v7 offset:{L_CNT+20}
        s_mov_b64 exec, -1
        """)
        A.stamp(5)
        A("s_waitcnt vmcnt(0) lgkmcnt(0)\ns_branch L_end\nL_AV_np:")
    if at == 3: A("""
        s_and_b32 s44, s5, 3
        s_cmp_lg_u32 s44, 0
        s_cbranch_scc1 L_AV_ns
        s_cmp_lg_u32 s3, 12
        s_cbranch_scc1 L_AV_ns
        s_lshl_b32 s44, s4, 5
        s_add_u32 s94, s94, s44
        s_addc_u32 s95, s95, 0
        s_mov_b32 s44, 1
        s_atomic_add s44, s[94:95], 0
        L_AV_ns:
        """)
    A(f"""
    s_lshl_b32 s44, s51, 3
    v_add_u32 v5, s44, v4
    s_mov_b64 exec, 1
    s_waitcnt vmcnt(8)
    ds_add_u32 v5, v7 offset:{L_CNT+16}
    """)
    if at == 1: A("""
        s_and_b32 s44, s5, 3
        s_cmp_lg_u32 s44, 0
        s_cbranch_scc1 L_AV_ns
        s_cmp_lg_u32 s3, 8
        s_cbranch_scc1 L_AV_ns
        s_lshl_b32 s44, s4, 5
        s_add_u32 s94, s94, s44
        s_addc_u32 s95, s95, 0
        s_mov_b32 s44, 1
        s_atomic_add s44, s[94:95], 0
        L_AV_ns:
        """)
    A(f"""
    s_waitcnt vmcnt(0)
    {f's_sleep {dv}' if dv else ''}
    ds_add_u32 v5, v7 offset:{L_CNT+20}
    s_mov_b64 exec, -1
    """)
    if at == 2: A("""
        s_and_b32 s44, s5, 3
        s_cmp_lg_u32 s44, 0
        s_cbranch_scc1 L_AV_ns
        s_cmp_lg_u32 s3, 8
        s_cbranch_scc1 L_AV_ns
        s_lshl_b32 s44, s4, 5
        s_add_u32 s94, s94, s44
        s_addc_u32 s95, s95, 0
        s_mov_b32 s44, 1
        s_atomic_add s44, s[94:95], 0
        L_AV_ns:
        """)
    A.stamp(5)
    A(f"""
    s_waitcnt lgkmcnt(0)
    s_cmp_ge_u32 s3, 12
    s_cbranch_scc1 L_end
    s_and_b32 s45, s3, 3
    s_lshl_b32 s45, s45, 1
    v_bfe_u32 v5, v1, 2, 3
    v_xor_b32 v5, s45, v5
    v_lshlrev_b32 v5, 5, v5
    v_lshrrev_b32 v6, 2, v1
    v_lshl_or_b32 v5, v6, 8, v5
    v_lshl_or_b32 v5, v9, 3, v5
    v_xor_b32 v6, 32, v5
    v_bfe_u32 v3, v1, 1, 1
    v_mul_u32_u24 v3, {PSTR}, v3
    v_and_b32 v2, 48, v1
    v_add3_u32 v3, v3, v2, v4
    v_and_b32 v2, 1, v1
    v_lshl_add_u32 v3, v2, 6, v3
    v_lshl_add_u32 v2, v8, 3, v4
    s_lshl_b32 s45, s45, 7
    v_add_u32 v2, s45, v2
    """)
    sm_idx(A, 'v126', 8, 8)
    def B(t, ks): return 16 + 16*(ks>>1) + 8*t + 4*(ks&1)
    def tr(ks0, ks1):
        for ks in range(ks0, ks1):
            for t in range(2):
                for half in range(2):
                    A(f"ds_read_b64_tr_b16 {vr(B(t,ks)+2*half,2)}, v{5+t} offset:{(ks&7)*8192 + half*4096}")
    def chain(ks0, ks1):
        c0 = ks0//2; n = (ks1 - ks0)//2
        free = [112, 116, 120]; loc = {}; issued = 0
        def issue():
            nonlocal issued
            while free and issued < n:
                loc[issued] = free.pop(0)
                A(f"ds_read_b128 {vr(loc[issued],4)}, v3 offset:{L_P + (c0+issued)*128}")
                issued += 1
        issue()
        for i in range(n):
            ks = ks0 + 2*i
            A(f"s_waitcnt lgkmcnt({issued - i - 1})")
            for t in range(2):
                A(f"v_smfmac_f32_16x16x64_bf16 {vr(8+4*t,4)}, {vr(loc[i],4)}, {vr(B(t,ks),8)}, v126")
            free += [B(0, ks), B(0, ks+1), loc[i]]
            issue()
    A.lds_spin(L_CNT+20, 4, "v124", "v4")
    tr(0, 8)
    A("v_add_u32 v5, 0x10000, v5\nv_add_u32 v6, 0x10000, v6")
    A.spin_head("L_AV_w")
    A(f"""
    ds_read2_b32 v[124:125], v4 offset0:{(L_CNT+8)//4} offset1:{(L_CNT+24)//4}
    s_waitcnt lgkmcnt(0)
    v_readfirstlane_b32 s44, v125
    v_readfirstlane_b32 s45, v124
    s_cmp_ge_u32 s44, 4
    s_cbranch_scc1 L_AV_x
    s_cmp_lt_u32 s45, 8
    s_cbranch_scc1 L_AV_w
    """)
    chain(0, 8)
    A.lds_spin(L_CNT+24, 4, "v124", "v4", sleep=False)
    tr(8, 12)
    chain(8, 12)
    A("s_branch L_AV_f\nL_AV_x:")
    tr(8, 12)
    A.lds_spin(L_CNT+8, 8, "v124", "v4", sleep=False)
    chain(0, 12)
    A(f"""
    L_AV_f:
    s_mov_b64 exec, 0xffff
    s_nop 5
    v_add_f32 v8, v8, v9
    v_add_f32 v9, v10, v11
    v_add_f32 v12, v12, v13
    v_add_f32 v13, v14, v15
    ds_write_b64 v2, v[8:9] offset:{L_PD}
    ds_write_b64 v2, v[12:13] offset:{L_PD+128}
    s_mov_b64 exec, 1
    ds_add_u32 v4, v7 offset:{L_CNT+32}
    s_mov_b64 exec, -1
    s_waitcnt lgkmcnt(0)
    """)
    A.stamp(8)
    A("s_branch L_end")

    A("L_W:")
    if stamps: A("v_writelane_b32 v127, s98, 0")
    A.stamp(1)
    A(f"""
    v_mov_b32 v18, {L_WCNT}
    ds_write2_b32 v18, v3, v3 offset1:1
    ds_write_b32 v18, v3 offset:8
    v_lshrrev_b32 v8, 5, v0
    v_lshlrev_b32 v8, 6, v8
    v_bfe_u32 v9, v0, 2, 2
    v_lshl_or_b32 v8, v9, 4, v8
    v_bfe_u32 v9, v0, 4, 1
    v_lshl_or_b32 v8, v9, 3, v8
    v_and_b32 v9, 3, v0
    v_lshl_or_b32 v8, v9, 1, v8
    v_add_u32 v8, {L_ACT}, v8
    v_lshrrev_b32 v2, 6, v0
    v_lshlrev_b32 v2, 7, v2
    v_and_b32 v10, 32, v0
    v_or_b32 v2, v2, v10
    v_and_b32 v10, 13, v0
    v_lshl_or_b32 v2, v10, 1, v2
    v_bfe_u32 v10, v0, 1, 1
    v_lshl_or_b32 v2, v10, 6, v2
    v_bfe_u32 v10, v0, 4, 1
    v_lshl_or_b32 v2, v10, 2, v2
    v_add_u32 v2, {L_ACT}, v2
    s_and_b32 s46, s3, 3
    v_bfe_u32 v10, v1, 3, 2
    v_xor_b32 v10, s46, v10
    v_lshlrev_b32 v10, 5, v10
    v_lshrrev_b32 v11, 2, v1
    v_lshl_or_b32 v10, v11, 7, v10
    v_lshl_or_b32 v10, v9, 3, v10
    v_and_b32 v11, 48, v1
    v_add_u32 v11, {L_ACT}, v11
    v_and_b32 v13, 1, v1
    v_mul_u32_u24 v12, {4*ASTR}, v13
    v_add_u32 v12, v11, v12
    v_lshl_add_u32 v11, v13, 6, v11
    v_and_b32 v13, 4, v1
    v_mul_u32_u24 v13, {ASTR}, v13
    v_add_u32 v13, v11, v13
    v_mov_b32 v17, 1
    s_cmp_eq_u32 s5, 8
    s_cbranch_scc1 L_KT
    s_cmp_gt_u32 s5, 8
    s_cbranch_scc1 L_M
    s_waitcnt lgkmcnt(0)
    """)
    A.mktag()
    A(f"""
    s_barrier
    {'s_waitcnt vmcnt(0)' + chr(10) + 's_branch L_end' if diag & 4 else ''}
    s_cmp_ge_u32 s3, 9
    s_cbranch_scc1 L_B_nh
    s_mul_i32 s44, s4, 4608
    s_add_u32 s44, s44, {WS_HL}
    v_lshl_add_u32 v15, v0, 3, s44
    global_load_dwordx2 v[24:25], v15, {sp(WS_)} sc1
    s_waitcnt vmcnt(0)
    """)
    A.lds_inc(0, "v18", "v17")
    A.stamp(2)
    if nb1: vtail(nb1, 2, 0)
    A("s_mov_b32 s7, 0\ns_branch L_B_chk")
    A.dual_head("L_B_h", ["v15"], init=False)
    A(f"s_sleep {ps}")
    A(f"global_load_dwordx2 v[24:25], v15, {sp(WS_)} sc1\ns_waitcnt vmcnt(0)\nL_B_chk:")
    A.tagcheck(["v25"], None, None, "L_B_h")
    A(f"""
    ds_write_b16 v2, v24
    ds_write_b16_d16_hi v2, v24 offset:{4*ASTR}
    s_waitcnt lgkmcnt(0)
    """)
    A.stamp(3)
    A(f"""
    s_barrier
    s_branch L_S5
    L_B_nh:
    """)
    if ql and qpt:
        A(f"""
        s_cmp_lg_u32 s3, 9
        s_cbranch_scc1 L_B_npt
        v_bfe_u32 v15, v1, 4, 1
        v_lshlrev_b32 v15, 17, v15            ; b*16384*8
        v_and_b32 v16, 15, v1
        v_lshl_or_b32 v15, v16, 7, v15
        s_lshl_b32 s44, s47, 11
        s_add_u32 s44, s44, {WS_QL}
        v_add_u32 v15, s44, v15
        global_load_dword v16, v15, {sp(WS_)}{' nt' if qpt == 2 else ' sc1'}
        L_B_npt:
        """)
    A("s_waitcnt vmcnt(0)")
    A.lds_inc(0, "v18", "v17")
    A(f"""
    s_cmp_ge_u32 s3, 12
    s_cbranch_scc1 L_B_m
    s_waitcnt lgkmcnt(0)
    s_barrier
    s_branch L_S5
    L_B_m:
    """)
    A.lds_spin(0, 16, "v16", "v18")
    A.stamp(2)
    A("v_mov_b32 v15, v10")
    bfrags(A, "v15")
    A(f"""
    s_lshl_b32 s44, s47, 8
    s_lshl_b32 s45, s46, 6
    s_add_u32 s44, s44, s45
    s_add_u32 s44, s44, {WS_QG}
    v_and_b32 v15, 15, v1
    v_lshlrev_b32 v15, 2, v15
    v_bfe_u32 v16, v1, 4, 1
    v_lshl_or_b32 v15, v16, 14, v15
    v_add_u32 v15, s44, v15
    """)
    if not ql: pass
    elif qlay:
        A(f"""
        v_subrev_u32 v16, {WS_QG}, v15
        v_and_b32 v17, 0x78, v16
        v_and_b32 v16, 0xffffff80, v16
        v_lshl_or_b32 v16, v16, 3, v17
        v_and_b32 v17, 1, v1
        v_lshl_add_u32 v16, v17, 7, v16
        v_lshrrev_b32 v17, 5, v1
        v_lshl_add_u32 v16, v17, 8, v16
        v_add_u32 v16, {WS_QL}, v16
        """)
    else:
        A(f"""
    v_and_b32 v16, -8, v15
    v_and_b32 v17, 1, v1
    v_lshl_add_u32 v16, v17, 15, v16
    v_lshrrev_b32 v17, 5, v1
    v_lshl_add_u32 v16, v17, 16, v16
    v_add_u32 v16, {WS_QL - WS_QG}, v16
""")
    A(f"""
    """)
    sm_idx(A, "v19")
    A("s_waitcnt lgkmcnt(0)\ns_barrier")
    gemv_sm(A, "v13", "v19")
    A(f"""
    s_nop 7
    v_add_f32 v20, v20, v21
    s_nop 1
    v_mov_b32_dpp v21, v20 quad_perm:[1,1,3,3] {DPPM}
    v_mov_b32_dpp v20, v20 quad_perm:[0,0,2,2] {DPPM}
    v_mov_b32 v23, {TAG}
    v_cvt_pk_bf16_f32 v22, v20, v21
    """)
    if ql:
        for i in range(nr//4):
            A(f"global_store_dwordx2 v16, v[22:23], {sp(WS_)}")
            if i < nr//4 - 1: A(f"v_add_u32 v16, {512 if qlay else 4*32768}, v16")
    A(f"""
    s_mov_b32 exec_lo, 0x55555555
    s_mov_b32 exec_hi, 0
    global_store_dwordx2 v15, v[22:23], {sp(WS_)} sc1
    s_mov_b64 exec, -1
    """)
    A.stamp(4)
    A("s_branch L_S5")

    A(f"""
    L_M:
    """)
    if me:
        A(f"s_cmp_lt_u32 s5, 14\ns_cbranch_scc1 L_M_n2\nv_add_u32 v16, 128, v15\ns_barrier")
        dma_tile(A, 8, "v16", 6912, L_BUF1, 72)
        A("s_barrier\nL_M_n2:")
    A(f"""
    s_cmp_ge_u32 s3, 9
    s_cbranch_scc1 L_M_bar0
    v_lshlrev_b32 v15, 1, v0
    global_load_ushort v16, v15, {sp(C_)}
    global_load_ushort v17, v15, {sp(C_)} offset:1152
    s_waitcnt vmcnt(0)
    v_lshlrev_b32 v16, 16, v16
    v_lshlrev_b32 v17, 16, v17
    v_mul_f32 v34, 0xbfb8aa3b, v16
    v_mul_f32 v35, 0xbfb8aa3b, v17
    v_exp_f32 v34, v34
    v_exp_f32 v35, v35
    s_nop 0
    v_add_f32 v34, 1.0, v34
    v_add_f32 v35, 1.0, v35
    v_rcp_f32 v34, v34
    v_rcp_f32 v35, v35
    s_nop 0
    v_mul_f32 v16, v16, v34
    v_mul_f32 v17, v17, v35
    v_cvt_pk_bf16_f32 v16, v16, v17
    ds_write_b16 v8, v16
    ds_write_b16_d16_hi v8, v16 offset:{4*ASTR}
    L_M_bar0:
    s_mul_i32 s44, s48, {RW*2}
    v_add_u32 v15, s44, v12
    s_mul_i32 s44, s48, {AGS}
    s_lshl_b32 s45, s49, 9
    s_add_u32 s44, s44, s45
    s_lshl_b32 s45, s46, 7
    s_add_u32 s44, s44, s45
    s_add_u32 s44, s44, {WS_AG}
    v_lshl_add_u32 v18, v1, {4 if x4 else 3}, s44
    s_waitcnt vmcnt(0) lgkmcnt(0)
    """)
    A.mktag()
    A("s_barrier")
    A.stamp(2)
    A(f"s_cmp_lt_u32 s3, 12\ns_cbranch_scc1 L_M_bar1\ns_cmp_ge_u32 s55, {NJ}\ns_cbranch_scc1 L_M_bar1")
    bfrags(A, "v10", 52, RW//32)
    gemv_mfma(A, "v15", nks=RW//32)
    A("s_mov_b64 exec, 0xffff\ns_nop 6\nv_add_u32 v20, 4, v20\nv_add_u32 v21, 4, v21")
    A.epack("v22", "v20", 7); A.epack("v23", "v21", 7)
    if x4:
        A(f"s_nop 0\nv_mov_b32_dpp v24, v22 row_ror:8 {DPPM}\nv_mov_b32_dpp v25, v23 row_ror:8 {DPPM}\ns_mov_b64 exec, 0xff")
        A(f"global_store_dwordx4 v18, v[22:25], {sp(WS_)} sc1\ns_mov_b64 exec, -1")
    else:
        A(f"global_store_dwordx2 v18, v[22:23], {sp(WS_)} sc1\ns_mov_b64 exec, -1")
    A.stamp(3)
    A(f"""
    L_M_bar1:
    s_sub_u32 s44, s5, 9
    s_lshl_b32 s50, s44, 1                ; slot0 = 2(u-9)
    s_add_u32 s51, s50, 1
    s_add_u32 s45, s4, 44
    s_cmp_ge_u32 s4, 4
    s_cselect_b32 s45, s45, 255
    s_cmp_eq_u32 s5, 13
    s_cselect_b32 s51, s45, s51
    s_lshl_b32 s44, s4, 1
    s_add_u32 s44, s44, s5
    s_lshl_b32 s44, s44, 1
    s_sub_u32 s44, s44, {28 - 16}
    s_add_u32 s45, s44, 1
    s_cmp_ge_u32 s5, 14
    s_cselect_b32 s50, s44, s50
    s_cselect_b32 s51, s45, s51
    v_mul_u32_u24 v19, 1152, v4
    v_lshl_add_u32 v19, v6, 4, v19
    s_mul_i32 s44, s4, {512*1152}
    v_add_u32 v19, s44, v19
    """)
    A.srd(12, WO_, 4096*1152)
    A("s_barrier")
    if pt:
        A(f"""
        s_cmp_ge_u32 s3, 3
        s_cbranch_scc1 L_M_pt
        s_cmp_lg_u32 s5, 13
        s_cbranch_scc1 L_M_pt
        s_lshl_b32 s44, s4, 14
        s_lshl_b32 s45, s3, 13
        s_add_u32 s44, s44, s45
        s_add_u32 s44, s44, {WS_OG}
        s_lshl_b32 s45, s4, 11
        s_add_u32 s45, s45, {WS_MLG}
        s_cmp_eq_u32 s3, 2
        s_cselect_b32 s44, s45, s44
        s_cselect_b32 s45, 15, 63
        v_and_b32 v16, s45, v1
        v_lshl_add_u32 v16, v16, 7, s44
        global_load_dword v20, v16, {sp(WS_)} sc1
        L_M_pt:
        """)
    if pp:
        A(f"""
        s_cmp_lg_u32 s5, {13 if pp == 1 else 15}
        s_cbranch_scc1 L_M_pp
        s_sub_u32 s44, s3, 3
        s_cmp_ge_u32 s44, 5
        s_cbranch_scc1 L_M_pp
        v_subrev_u32 v16, 192, v0
        v_min_u32 v16, 287, v16
        v_lshlrev_b32 v16, 7, v16
        v_add_u32 v16, {WS_PX}, v16
        global_load_dword v20, v16, {sp(WS_)} sc1
        L_M_pp:
        """)
    if me: A("s_cmp_ge_u32 s5, 14\ns_cbranch_scc1 L_sl1_d")
    for sl, (reg, buf) in enumerate((("s50", L_BUF0), ("s51", L_BUF1))):
        A(f"""
        s_lshl_b32 s52, {reg}, 7
        s_cmp_ge_u32 {reg}, 16
        s_cbranch_scc1 L_sl{sl}_m
        v_add_u32 v16, s52, v19
        """)
        dma_tile(A, 12, "v16", 1152, buf, 64, '' if wm & 2 else NT)
        A(f"""
        s_branch L_sl{sl}_d
        L_sl{sl}_m:
        s_cmp_eq_u32 {reg}, 255
        s_cbranch_scc1 L_sl{sl}_d
        s_add_u32 s52, s52, {2304 - 16*128}
        v_add_u32 v16, s52, v14
        """)
        dma_tile(A, 8, "v16", 6912, buf, 72, '' if wm & 2 else NT)
        A(f"L_sl{sl}_d:")
    if tw < 16: A(f"""
        s_cmp_lg_u32 s3, {tw}
        s_cbranch_scc1 L_M_tr2
        s_lshl_b32 s52, s4, 3
        s_add_u32 s52, s52, s5
        s_lshl_b32 s52, s52, 7
        s_add_u32 s52, s52, {WS_TR - 9*128}
        v_mov_b32 v21, s52
        v_mov_b32 v22, {TAG}
        s_waitcnt vmcnt({tk})
        global_store_dword v21, v22, {sp(WS_)}
        L_M_tr2:
        """)
    A("s_waitcnt vmcnt(0)\ns_barrier")
    A.stamp(4)
    if diag & 8: A("s_branch L_end")
    A(f"""
    s_cmp_lt_u32 s3, 8
    s_cbranch_scc1 L_H_p
    s_cmp_ge_u32 s3, 12
    s_cselect_b32 s50, s51, s50
    s_cselect_b32 s44, {L_BUF1}, 0
    v_add_u32 v17, s44, v10
    s_cmp_lt_u32 s50, 16
    s_cbranch_scc1 L_A_s4m
    s_cmp_eq_u32 s50, 255
    s_cbranch_scc1 L_H_x
    s_lshl_b32 s44, s50, 9
    s_lshl_b32 s45, s46, 7
    s_add_u32 s44, s44, s45
    s_add_u32 s44, s44, {WS_MG - 16*512}
    v_lshl_add_u32 v18, v1, 3, s44
    """)
    bfrags(A, "v17")
    gemv_mfma(A, "v12")
    A(f"""
    s_mov_b64 exec, 0xffff
    s_nop 6
    v_cvt_pk_bf16_f32 v22, v20, v21
    v_mov_b32 v23, {TAG}
    global_store_dwordx2 v18, v[22:23], {sp(WS_)} sc1
    s_mov_b64 exec, -1
    """)
    A.stamp(5)
    A(f"""
    L_H_x:
    s_cmp_eq_u32 s5, 15
    s_cbranch_scc1 L_XR
    s_branch L_end
    L_H_p:
    """)
    if trig and not at and tw >= 16:
        A(f"""
        s_cmp_lg_u32 s3, 0
        s_cbranch_scc1 L_M_tr
        s_lshl_b32 s52, s4, 3
        s_add_u32 s52, s52, s5
        s_lshl_b32 s52, s52, 7
        s_add_u32 s52, s52, {WS_TR - 9*128}
        v_mov_b32 v20, s52
        v_mov_b32 v19, {TAG}
        global_store_dword v20, v19, {sp(WS_)}
        L_M_tr:
        """)
    if hw: A("s_cmp_eq_u32 s5, 14\ns_cbranch_scc1 L_HW")
    A("s_cmp_ge_u32 s5, 14\ns_cbranch_scc1 L_H_x")
    A(f"""
    s_lshl_b32 s50, s4, 4
    s_lshr_b32 s45, s3, 1
    s_lshl_b32 s45, s45, 2
    s_add_u32 s50, s50, s45
    s_and_b32 s44, s3, 1                  ; dh
    s_lshl_b32 s51, s50, 7
    s_add_u32 s51, s51, {WS_MLG}
    v_bfe_u32 v18, v1, 2, 2
    v_lshlrev_b32 v18, 7, v18
    v_lshl_add_u32 v18, v9, 2, v18
    v_add_u32 v18, s51, v18
    s_lshl_b32 s51, s50, 10
    s_lshl_b32 s45, s44, 9
    s_add_u32 s51, s51, s45
    s_add_u32 s51, s51, {WS_OG}
    v_lshl_add_u32 v17, v1, 3, s51
    s_bfe_u32 s45, s3, 0x10001
    s_mul_i32 s45, s45, {ASTR}
    s_lshr_b32 s51, s3, 2
    s_lshl_b32 s51, s51, 9
    s_add_u32 s45, s45, s51
    s_and_b32 s51, s3, 6
    s_lshl_b32 s51, s51, 7
    s_sub_u32 s45, s45, s51
    s_add_u32 s45, s45, {ASTR}
    v_add_u32 v19, s45, v2
    """)
    def oloads():
        for s_ in range(4):
            A(f"global_load_dwordx2 {vr(32+2*s_,2)}, v17, {sp(WS_)} offset:{s_*1024} sc1")
    A.dual_head("L_A_ml", ["v17", "v18"])
    A(f"""
    global_load_dword v20, v18, {sp(WS_)} sc1
    s_waitcnt vmcnt(0)
    v_xor_b32 v20, {ETAG}, v20
    v_and_b32 v21, 63, v20
    v_cmp_ne_u32 vcc, 0, v21
    s_cbranch_vccnz L_A_ml
    """)
    oloads()
    A(f"""
    v_max_f32_dpp v21, v20, v20 row_ror:4 {DPPM}
    v_mov_b32_dpp v23, v20 quad_perm:[1,1,3,3] {DPPM}
    s_nop 0
    v_max_f32_dpp v21, v21, v21 row_ror:8 {DPPM}
    v_sub_f32 v22, v20, v21
    v_mul_f32 v22, {hex(LOG2E)}, v22
    v_exp_f32 v22, v22
    s_nop 0
    v_mul_f32 v23, v22, v23
    s_nop 1
    v_add_f32_dpp v23, v23, v23 row_ror:4 {DPPM}
    s_nop 1
    v_add_f32_dpp v23, v23, v23 row_ror:8 {DPPM}
    v_rcp_f32 v23, v23
    s_nop 0
    v_mul_f32 v22, v22, v23
    """)
    A.stamp(7)
    A("s_branch L_A_ochk")
    A.dual_head("L_A_h3", ["v17"], init=False)
    oloads()
    A("L_A_ochk:")
    for s_ in range(4):
        a, b = 32+2*s_, 33+2*s_
        A(f"s_waitcnt vmcnt({3-s_})\nv_xor_b32 v{a}, {ETAG}, v{a}\nv_xor_b32 v{b}, {ETAG}, v{b}")
        A(f"v_or_b32 v20, v{a}, v{b}" if s_ == 0 else f"v_or3_b32 v20, v{a}, v{b}, v20")
        op = "v_mul_f32_dpp" if s_ == 0 else "v_fmac_f32_dpp"
        A(f"{op} v30, v22, v{a} row_newbcast:{4*s_} {DPPM}\n{op} v31, v22, v{b} row_newbcast:{4*s_+2} {DPPM}")
    A("v_and_b32 v20, 63, v20\nv_cmp_ne_u32 vcc, 0, v20\ns_cbranch_vccnz L_A_h3")
    A(f"""
    v_cvt_pk_bf16_f32 v30, v30, v31
    ds_write_b16 v19, v30
    ds_write_b16_d16_hi v19, v30 offset:256
    s_waitcnt lgkmcnt(0)
    s_barrier
    """)
    if fl: A(f"""
        s_cmp_lg_u32 s5, 9
        s_cbranch_scc1 L_H_nf
        s_cmp_gt_u32 s3, 1
        s_cbranch_scc1 L_H_nf
        v_cmp_gt_u32 vcc, 72, v0
        s_and_saveexec_b64 s[44:45], vcc
        {f's_sleep {fpos}' if fpos else ''}
        global_store_dword v40, v41, {sp(WS_)} sc1
        s_mov_b64 exec, -1
        L_H_nf:
        """)
    A.stamp(8)
    if hw:
        A(f"""
        L_HW:
        s_mul_i32 s44, s3, 6
        s_add_u32 s44, s44, s5
        s_sub_u32 s44, s44, 9
        s_cmp_ge_u32 s44, 8
        s_cbranch_scc1 L_end
        s_mul_i32 s44, s44, 4608
        s_add_u32 s44, s44, {WS_PX + 124}
        v_min_u32 v16, 35, v1
        v_lshl_add_u32 v16, v16, 7, s44
        s_mov_b32 s7, 0
        L_HW_p:
        global_load_dword v17, v16, {sp(WS_)} sc1
        s_add_u32 s7, s7, 1
        s_cmp_gt_u32 s7, {NLOC}
        s_cbranch_scc1 L_end
        s_waitcnt vmcnt(0)
        v_and_b32 v17, 63, v17
        v_cmp_ne_u32 vcc, {ETAG}, v17
        s_cbranch_vccnz L_HW_p
        """)
    A("s_branch L_end")
    A(f"""
    L_A_s4m:
    v_bfe_u32 v18, v1, 1, 1
    v_mul_u32_u24 v18, {ASTR}, v18
    v_add_u32 v18, v18, v11
    v_add_u32 v18, {ASTR}, v18
    s_mul_i32 s45, s4, 4608
    s_lshl_b32 s44, s50, 9
    s_add_u32 s45, s45, s44
    s_lshl_b32 s44, s46, 7
    s_add_u32 s45, s45, s44
    s_add_u32 s45, s45, {WS_PC if pc else WS_PX}
    v_lshl_add_u32 v19, {'v7' if pc else 'v1'}, {4 if x4 else 3}, s45
    {'v_mul_u32_u24 v16, 36864, v4' + chr(10) + 'v_add_u32 v19, v19, v16' + chr(10) + 's_mov_b32 s56, 0xff00ff00' + chr(10) + 's_mov_b32 s57, 0xff00ff00' if pc else ''}
    {f's_mov_b64 exec, 0xffff' + chr(10) + f'global_load_dword v125, v19, {sp(WS_)} sc1' + chr(10) + 's_mov_b64 exec, -1' if ppt else ''}
    """)
    bfrags(A, "v17", 56, 16)
    sm_idx(A, "v16")
    A("s_waitcnt lgkmcnt(0)\ns_barrier")
    gemv_sm(A, "v18", "v16", vb=56, depth=8, nch=8)
    A("s_mov_b64 exec, 0xffff\ns_nop 6\nv_add_f32 v20, v20, v21\nv_add_f32 v21, v22, v23")
    A.epack("v24", "v20"); A.epack("v25", "v21")
    if pc:
        A(f"""
        v_mov_b32 v26, v24
        v_mov_b32 v27, v25
        v_mov_b32_dpp v24, v24 row_ror:8 row_mask:0xf bank_mask:0xc
        v_mov_b32_dpp v25, v25 row_ror:8 row_mask:0xf bank_mask:0xc
        v_mov_b32_dpp v26, v26 row_ror:8 row_mask:0xf bank_mask:0x3
        v_mov_b32_dpp v27, v27 row_ror:8 row_mask:0xf bank_mask:0x3
        global_store_dwordx4 v19, v[24:27], {sp(WS_)} sc1
        """)
    elif x4:
        A(f"s_nop 0\nv_mov_b32_dpp v26, v24 row_ror:8 {DPPM}\nv_mov_b32_dpp v27, v25 row_ror:8 {DPPM}\ns_mov_b64 exec, 0xff")
        A(f"global_store_dwordx4 v19, v[24:27], {sp(WS_)} sc1\ns_mov_b64 exec, -1")
    else:
        A(f"global_store_dwordx2 v19, v[24:25], {sp(WS_)} sc1\ns_mov_b64 exec, -1")
    A.stamp(9)
    if wb0: A("s_cmp_lg_u32 s5, 13\ns_cbranch_scc1 L_end\ns_cmp_lg_u32 s3, 8\ns_cbranch_scc1 L_end\ns_waitcnt vmcnt(0)\nbuffer_wbl2 sc1\ns_waitcnt vmcnt(0)")
    A("s_branch L_end")

    A("L_KT:\ns_waitcnt lgkmcnt(0)")
    A.mktag()
    A(f"""
    s_cmp_lt_u32 s3, 9
    s_cbranch_scc1 L_HR_go
    s_cmp_ge_u32 s3, {9 + hq}
    s_cbranch_scc1 L_S5
    s_lshr_b32 s44, s{WQ_}, 7
    s_sub_u32 s44, 3, s44
    s_and_b32 s44, s44, 7
    s_lshl_b32 s45, s4, 3
    s_add_u32 s44, s44, s45
    s_lshl_b32 s44, s44, 7
    s_sub_u32 s45, 24, s3
    v_lshlrev_b32 v15, 7, v4              ; (l>>3)*128 rows
    v_add_u32 v15, v15, v7
    s_lshl_b32 s45, s45, 3
    v_add_u32 v15, s45, v15               ; row = i*128 + w*8 + (l&7)
    v_subrev_u32 v16, {512 + 56}, v15
    v_cmp_gt_u32 vcc, 512, v15
    s_nop 1
    v_cndmask_b32 v15, v16, v15, vcc
    v_lshl_add_u32 v15, v15, 13, s44
    global_load_dword v125, v15, {sp(WQ_)}{NT}
    s_branch L_S5
    L_HR_go:
    v_lshlrev_b32 v15, 1, v0
    global_load_ushort v33, v15, {sp(X_)}
    global_load_ushort v34, v15, {sp(X_)} offset:1152
    s_mul_i32 s44, s4, 4608
    s_add_u32 s44, s44, {WS_HL}
    v_lshl_add_u32 v55, v0, 3, s44
    global_load_dword v57, v55, {sp(WS_)} sc1
    v_mul_u32_u24 v15, 36, v1
    global_load_dwordx4 v[24:27], v15, {sp(X_)}
    global_load_dwordx4 v[28:31], v15, {sp(X_)} offset:16
    global_load_dword v32, v15, {sp(X_)} offset:32
    v_lshlrev_b32 v15, 3, v0
    """)
    if x4: A("""    v_and_b32 v15, -16, v0
    v_lshlrev_b32 v15, 3, v15
    v_lshl_or_b32 v15, v7, 4, v15
    v_and_b32 v39, 8, v0
    v_or_b32 v15, v15, v39
""")
    A(f"""
    v_add_u32 v52, {WS_AG + 2304}, v15
    v_add_u32 v53, {WS_AG + 2304 + AGS}, v15
    {f'v_add_u32 v54, {WS_AG + 2304 + 2*AGS}, v15' if ks == 3 else ''}
    """)
    def ag_loads():
        for k in range(ks):
            A(f"global_load_dwordx2 {vr(40+4*k,2)}, v{52+k}, {sp(WS_)} offset:-2304 sc1")
            A(f"global_load_dwordx2 {vr(42+4*k,2)}, v{52+k}, {sp(WS_)} offset:2304 sc1")
    A(f"""
    s_mov_b32 s44, 0x3f803f80
    v_mov_b32 v35, 0
    v_mov_b32 v36, 0
    s_waitcnt vmcnt(0)
    v_mov_b32 v61, {TAG}
    """)
    for i in range(9):
        A(f"v_dot2_f32_bf16 v35, v{24+i}, s44, v35\nv_dot2_f32_bf16 v36, v{24+i}, v{24+i}, v36")
    A("s_nop 2")
    A.row_reduce("v_add_f32", ["v35", "v36"])
    A(f"""
    v_mov_b32 v37, v35
    v_mov_b32 v38, v36
    s_nop 0
    v_permlane16_swap_b32 v35, v37
    v_permlane16_swap_b32 v36, v38
    v_add_f32 v35, v35, v37
    v_add_f32 v36, v36, v38
    v_mul_f32 v35, {INV576}, v35
    v_mul_f32 v36, {INV576}, v36
    v_fma_f32 v36, -v35, v35, v36
    """)
    ln_finish(A, "v35", "v36", "v38")
    A("""
    v_readlane_b32 s48, v35, 0
    v_readlane_b32 s49, v35, 32
    v_readlane_b32 s50, v38, 0
    v_readlane_b32 s51, v38, 32
    v_lshlrev_b32 v33, 16, v33
    v_lshlrev_b32 v34, 16, v34
    v_subrev_f32 v33, s48, v33
    v_subrev_f32 v34, s49, v34
    """)
    A.r1("v33", "v34")
    A("v_mul_f32 v33, s50, v33\nv_mul_f32 v34, s51, v34")
    A.r1("v33", "v34")
    A("s_mov_b32 s7, 0")
    if hs: A(f"s_sleep {hs}")
    A(f"L_HR_h:\ns_add_u32 s7, s7, 1\ns_cmp_gt_u32 s7, {SPIN}\ns_cbranch_scc1 L_end\ns_sleep {hp}")
    ag_loads()
    A("s_waitcnt vmcnt(0)")
    A.etagcheck([f"v{40+i}" for i in range(4*ks)], "v39", "L_HR_h", "s100", 7)
    for i in range(4): A(f"v_add_f32 v{40+i}, v{40+i}, v{44+i}")
    if ks == 3:
        for i in range(4): A(f"v_add_f32 v{40+i}, v{40+i}, v{48+i}")
    A.r1("v40", "v41", "v42", "v43")
    A("v_add_f32 v42, 1.0, v42\nv_add_f32 v43, 1.0, v43")
    A.r1("v42", "v43")
    A("v_mul_f32 v42, v33, v42\nv_mul_f32 v43, v34, v43")
    A.r1("v42", "v43")
    A(f"""
    v_add_f32 v42, v42, v40
    v_add_f32 v43, v43, v41
    v_cvt_pk_bf16_f32 v60, v42, v43
    """)
    if dq: A(f"s_sleep {dq}")
    A.dual_store("global_store_dwordx2", "v55", "v[60:61]")
    A.stamp(3)
    A("s_branch L_S5")
    A("L_XR:")
    if diag & 8: A("s_branch L_end")
    A(f"""
    v_lshlrev_b32 v16, 2, v0
    v_min_u32 v16, 1532, v16
    v_add_u32 v16, {L_ST}, v16
    ds_write_b32 v16, v3
    v_mov_b32 v21, {L_WCNT}
    v_mov_b32 v22, 1
    s_waitcnt lgkmcnt(0)
    s_barrier
    s_cmp_eq_u32 s3, 9
    s_cbranch_scc1 L_XR_stat
    s_cmp_gt_u32 s3, 9
    s_cbranch_scc1 L_end
    v_lshlrev_b32 v16, 1, v0
    global_load_ushort v80, v16, {sp(X_)}
    global_load_ushort v81, v16, {sp(X_)} offset:1152
    v_lshlrev_b32 v16, 3, v0
    v_add_u32 v17, {WS_MG + 2304}, v16
    v_add_u32 v18, {WS_MG + 9216}, v16
    """)
    if x4: A("""    v_and_b32 v16, -16, v0
    v_lshlrev_b32 v16, 3, v16
    v_lshl_or_b32 v16, v7, 4, v16
    v_and_b32 v30, 8, v0
    v_or_b32 v16, v16, v30
""")
    if pc: A("s_mul_i32 s44, s4, 36864\nv_add_u32 v16, s44, v16")
    for k in range(4): A(f"v_add_u32 v{88+k}, {(WS_PC if pc else WS_PX) + 2304 + k*9216}, v16")
    A(f"""
    s_mul_i32 s44, s4, 4608
    s_lshl_b32 s44, s44, 1
    s_add_u32 s45, s44, {WS_RG}
    v_lshl_add_u32 v26, v0, 4, s45
    s_add_u32 s45, s44, {WS_XA}
    v_lshl_add_u32 v27, v0, 4, s45
    v_and_b32 v24, 48, v1
    v_lshlrev_b32 v24, 2, v24
    s_lshl_b32 s44, s3, 2
    s_add_u32 s44, s44, {L_ST}
    v_add_u32 v24, s44, v24
    s_mov_b32 s56, 0x00010001
    s_mov_b32 s57, 0x00010001
    """)
    def partial_stats(off, r):
        for i in range(6): A(f"v_permlane32_swap_b32 v{r+2*i}, v{r+1+2*i}")
        for i in range(6): A(f"v_add_f32 v{r+2*i}, v{r+2*i}, v{r+1+2*i}")
        A("s_nop 0")
        for i in range(3): A(f"v_permlane16_swap_b32 v{r+4*i}, v{r+2+4*i}")
        for i in range(3): A(f"v_add_f32 v{r+4*i}, v{r+4*i}, v{r+2+4*i}")
        A.row_reduce("v_add_f32", [f"v{r}", f"v{r+4}", f"v{r+8}"])
        A(f"""
        s_mov_b64 exec, s[56:57]
        ds_write_b32 v24, v{r} offset:{off}
        ds_write_b32 v24, v{r+4} offset:{off+256}
        ds_write_b32 v24, v{r+8} offset:{off+512}
        s_mov_b64 exec, -1
        """)
    A(f"""
    s_mov_b32 s7, 0
    s_movk_i32 s60, 0x1ff
    s_branch L_XR_px
    """)
    for k in range(8):
        A(f"L_px_i{k}:")
        A(f"global_load_dwordx2 {vr(96+2*k,2)}, v{88+k//2}, {sp(WS_)} offset:{2304 if k & 1 else -2304} sc1")
        A(f"s_branch L_px_l{k}")
    for k in range(8):
        A(f"""
        L_px_k{k}:
        v_xor_b32 v{96+2*k}, {ETAG}, v{96+2*k}
        v_xor_b32 v{97+2*k}, {ETAG}, v{97+2*k}
        v_or_b32 v30, v{96+2*k}, v{97+2*k}
        v_and_b32 v30, 63, v30
        v_cmp_ne_u32 vcc, 0, v30
        s_cbranch_vccnz L_px_c{k}
        s_andn2_b32 s60, s60, {1 << k}
        s_cbranch_scc0 L_XR_done
        s_branch L_px_c{k}
        """)
    A("L_px_mg:")
    for j, (r, o) in enumerate((("v17", -2304), ("v17", 2304), ("v18", 0))):
        A(f"global_load_dwordx2 {vr((40, 34, 42)[j],2)}, {r}, {sp(WS_)} offset:{o} sc1")
    A("s_waitcnt vmcnt(0)")
    A.tagcheck(["v41", "v35", "v43", "v43"], "v30", "v31", "L_px_m")
    A(f"""
    s_bitset0_b32 s60, 8
    v_lshlrev_b32 v82, 16, v40
    v_and_b32 v83, 0xffff0000, v40        ; ga
    v_and_b32 v43, 0xffff0000, v42
    v_lshlrev_b32 v42, 16, v42
    v_add_f32 v42, 1.0, v42
    v_add_f32 v43, 1.0, v43
    v_cvt_pk_bf16_f32 v32, v42, v43       ; g
    v_mov_b32 v33, {TAG}
    """)
    A(f"""
    global_store_dwordx4 v26, v[32:35], {sp(WS_)}
    v_mov_b32 v36, v32
    v_mov_b32 v37, v33
    v_mov_b32 v38, v34
    v_mov_b32 v39, v35
    v_lshlrev_b32 v80, 16, v80
    v_lshlrev_b32 v81, 16, v81
    v_lshlrev_b32 v84, 16, v32
    v_and_b32 v85, 0xffff0000, v32
    v_lshlrev_b32 v86, 16, v34
    v_and_b32 v87, 0xffff0000, v34
    v_mov_b32 v44, v84
    v_mov_b32 v45, v85
    v_mul_f32 v46, v84, v84
    v_mul_f32 v47, v85, v85
    v_mov_b32 v48, v86
    v_mov_b32 v49, v87
    v_mul_f32 v50, v86, v86
    v_mul_f32 v51, v87, v87
    v_mul_f32 v52, v84, v86
    v_mul_f32 v53, v85, v87
    v_mov_b32 v54, 0
    v_mov_b32 v55, 0
    """)
    partial_stats(0, 44)
    A.lds_inc(4, "v21", "v22")
    A.stamp(6)
    A("s_branch L_px_m2\nL_XR_px:")
    for k in range(8):
        A(f"s_bitcmp1_b32 s60, {k}\ns_cbranch_scc1 L_px_i{k}\nL_px_l{k}:")
    A(f"""
    s_add_u32 s7, s7, 1
    s_cmp_gt_u32 s7, {SPIN}
    s_cbranch_scc1 L_end
    s_bitcmp1_b32 s60, 8
    s_cbranch_scc1 L_px_mg
    L_px_m:
    s_waitcnt vmcnt(0)
    L_px_m2:
    """)
    for k in range(8):
        A(f"s_bitcmp1_b32 s60, {k}\ns_cbranch_scc1 L_px_k{k}\nL_px_c{k}:")
    A("s_cmp_lg_u32 s60, 0\ns_cbranch_scc1 L_XR_px\nL_XR_done:")
    A.stamp(10)
    for i in range(4): A(f"v_pk_add_f32 {vr(96+2*i,2)}, {vr(96+2*i,2)}, {vr(104+2*i,2)}")
    for i in range(2): A(f"v_pk_add_f32 {vr(96+2*i,2)}, {vr(96+2*i,2)}, {vr(100+2*i,2)}")
    A("v_pk_add_f32 v[96:97], v[96:97], v[98:99]")
    A.r1("v96", "v97")
    A("v_pk_mul_f32 v[96:97], v[82:83], v[96:97]")
    A.r1("v96", "v97")
    A(f"""
    v_pk_add_f32 v[98:99], v[80:81], v[96:97]
    v_cvt_pk_bf16_f32 v96, 0, v98
    v_cvt_pk_bf16_f32 v97, 0, v99         ; x1
    v_cvt_pk_bf16_f32 v34, v98, v99
    v_pk_mul_f32 v[102:103], v[96:97], v[84:85]
    v_cvt_pk_bf16_f32 v32, v102, v103
    global_store_dwordx4 v27, v[32:35], {sp(WS_)}
    v_cvt_pk_bf16_f32 v100, 0, v102
    v_cvt_pk_bf16_f32 v101, 0, v103       ; a
    v_pk_mul_f32 v[98:99], v[96:97], v[96:97]
    v_pk_mul_f32 v[102:103], v[100:101], v[100:101]
    v_pk_mul_f32 v[104:105], v[100:101], v[84:85]
    v_pk_mul_f32 v[106:107], v[100:101], v[86:87]
    """)
    partial_stats(768, 96)
    A("s_waitcnt lgkmcnt(0)\ns_barrier")
    A("s_barrier")
    A(f"v_add_u32 v27, {WS_GOFF}, v27\nglobal_store_dwordx4 v27, v[32:35], {sp(WS_)} sc1")
    A(f"v_add_u32 v26, {WS_GOFF}, v26\nglobal_store_dwordx4 v26, v[36:39], {sp(WS_)} sc1")
    A.stamp(11)
    A(f"""
    s_branch L_end
    L_XR_stat:
    v_lshlrev_b32 v22, 2, v1
    v_add_u32 v22, {L_ST}, v22
    v_lshrrev_b32 v20, 5, v1
    s_lshl_b32 s44, s4, 7
    s_add_u32 s44, s44, {WS_CF}
    v_lshl_add_u32 v20, v20, 4, s44
    global_load_dword v23, v20, {sp(WS_)} sc1
    """)
    def gather_stats(off, cnt, r, sleep):
        if sleep: A.lds_spin(cnt, 9, "v23", "v21")
        else: A("s_barrier")
        A(f"""
        ds_read_b32 v{r}, v22 offset:{off}
        ds_read_b32 v{r+2}, v22 offset:{off+256}
        ds_read_b32 v{r+4}, v22 offset:{off+512}
        s_waitcnt lgkmcnt(0)
        """)
        A.row_reduce("v_add_f32", [f"v{r}", f"v{r+2}", f"v{r+4}"])
        k3 = f2h((2.0 if sleep else -2.0)/576)
        for q in (r, r+2, r+4): A(f"v_mul_f32 v{q+1}, {k3 if q == r+4 else INV576}, v{q}")
        for q in (r, r+2, r+4): A(f"v_mul_f32 v{q}, {k3 if q == r+4 else INV576}, v{q}")
        for q in (r, r+2, r+4): A(f"v_permlane16_swap_b32 v{q}, v{q+1}")
    A("s_waitcnt vmcnt(0)")
    gather_stats(0, 4, 100, True)
    gather_stats(768, 8, 84, False)
    A(f"""
    v_fma_f32 v85, -v84, v84, v85
    v_max_f32 v85, 0, v85
    v_cvt_pk_bf16_f32 v85, 0, v85
    v_add_f32 v85, 0x3727c5ac, v85
    v_cvt_pk_bf16_f32 v85, 0, v85
    v_sqrt_f32 v85, v85
    v_cvt_pk_bf16_f32 v84, 0, v84         ; mu1
    v_cvt_pk_bf16_f32 v85, 0, v85
    v_rcp_f32 v90, v85                    ; r1
    v_fma_f32 v88, v84, v101, v88
    v_fma_f32 v86, -v84, v100, v86
    v_fma_f32 v89, v84, v104, v89
    v_fma_f32 v87, v84, v88, v87
    v_fma_f32 v86, v90, v86, v102         ; mean2
    v_fma_f32 v87, v90, v87, -v89
    v_fma_f32 v87, v90, v87, v103         ; E[h2^2]
    v_fma_f32 v87, -v86, v86, v87         ; var2
    v_max_f32 v87, 0, v87
    v_cvt_pk_bf16_f32 v87, 0, v87
    v_add_f32 v87, 0x3727c5ac, v87
    v_cvt_pk_bf16_f32 v87, 0, v87
    v_sqrt_f32 v87, v87
    v_cvt_pk_bf16_f32 v86, 0, v86         ; mu2
    v_cvt_pk_bf16_f32 v87, 0, v87
    v_rcp_f32 v94, v87                    ; r2 = c2
    v_mul_f32 v93, -v84, v90
    v_mul_f32 v92, v90, v94               ; c0
    v_mul_f32 v95, -v86, v94              ; c3
    v_mul_f32 v93, v93, v94               ; c1
    """)
    for r in range(92, 96): A.epack(f"v{r}", f"v{r}")
    A("s_mov_b32 exec_lo, 1\ns_mov_b32 exec_hi, 1")
    A.dual_store("global_store_dwordx4", "v20", "v[92:95]")
    A("s_mov_b64 exec, -1\ns_barrier")
    if wb: A(f"s_sleep {wb}\nbuffer_wbl2 sc1\ns_waitcnt vmcnt(0)")
    A.stamp(12)
    A("s_branch L_end")

    A(f"""
    L_S5:
    {'s_branch L_end' if diag & 8 else ''}
    s_mul_i32 s47, s4, 9
    """)
    if sw:
        A(f"""
        s_lshr_b32 s44, s{W1_}, 7
        s_add_u32 s44, s44, s4
        s_sub_u32 s44, 3, s44
        s_and_b32 s44, s44, 7
        s_cmp_eq_u32 s5, s44
        s_cselect_b32 s45, 8, s5
        s_cmp_eq_u32 s5, 8
        s_cselect_b32 s45, s44, s45
        s_add_u32 s47, s47, s45               ; f
        """)
    else:
        A("s_add_u32 s47, s47, s5")
    A.srd(8, W1_, 576*9216)
    A.srd(12, W2_, 4608*1152)
    A(f"""
    s_lshl_b32 s44, s47, 7
    v_mul_u32_u24 v14, 9216, v4
    v_lshl_add_u32 v14, v6, 4, v14
    v_add_u32 v14, s44, v14
    s_lshl_b32 s45, s46, 5
    s_add_u32 s44, s44, s45
    v_and_b32 v15, 15, v1
    v_lshl_add_u32 v15, v15, 1, s44
    global_load_ushort v19, v15, {sp(B1_)}
    v_mul_u32_u24 v15, 0x38f, v0
    v_lshrrev_b32 v15, 16, v15
    v_mul_u32_u24 v16, 72, v15
    v_sub_u32 v16, v0, v16
    v_and_b32 v17, 6, v15
    v_xor_b32 v16, v16, v17
    v_mul_u32_u24 v15, 1152, v15
    v_lshl_add_u32 v15, v16, 4, v15
    s_mul_i32 s49, s4, 9216
    s_add_u32 s45, s49, {WS_RG}
    v_lshl_add_u32 v80, v0, 4, s45
    s_add_u32 s45, s49, {WS_XA}
    v_lshl_add_u32 v81, v0, 4, s45
    v_lshrrev_b32 v20, 2, v1
    v_mul_u32_u24 v20, 1152, v20
    v_lshl_add_u32 v20, v9, 3, v20
    v_add_u32 v20, {L_BUF1}, v20
    v_bfe_u32 v17, v1, 3, 2
    s_mul_i32 s48, s3, 3
    """)
    for i in range(3):
        A(f"s_add_u32 s44, s48, {i}\nv_xor_b32 v{92+i}, s44, v17\nv_lshl_add_u32 v{92+i}, v{92+i}, 5, v20")
    A(f"""
    s_mul_i32 s44, s48, {2*4608}
    s_lshl_b32 s45, s47, 6
    s_add_u32 s44, s44, s45
    s_add_u32 s44, s44, {WS_FG}
    v_mul_u32_u24 v20, 4608, v4
    v_lshl_add_u32 v20, v7, 3, v20
    v_add_u32 v76, s44, v20
    v_lshlrev_b32 v79, 6, v9
    v_and_b32 v20, 48, v1
    v_add_u32 v79, v79, v20
    v_add_u32 v79, {L_H1}, v79
    s_lshl_b32 s44, s47, 3
    v_add_u32 v77, s44, v7                ; col
    v_lshrrev_b32 v78, 5, v1              ; b
    v_mul_u32_u24 v82, 1152, v78
    v_lshl_add_u32 v82, v77, 1, v82
    v_lshlrev_b32 v83, 1, v77
    s_cmp_lg_u32 s3, 10
    s_cbranch_scc1 L_S5_nf
    global_load_ushort v84, v83, {sp(B2_)}
    {f'global_load_ushort v85, v82, {sp(OUT_)}' if ot else ''}
    L_S5_nf:
    v_lshlrev_b32 v83, 3, v77
    v_add_u32 v83, {WS_MG + 1728*8}, v83
    s_add_u32 s44, s49, {WS_XA + 8}
    v_lshl_add_u32 v77, v77, 4, s44
    v_lshlrev_b32 v78, 4, v78             ; 16*b
    s_mul_i32 s44, s47, 4608
    s_add_u32 s44, s44, {WS_FG + 2048}
    v_lshl_add_u32 v88, v1, 3, s44
    v_mov_b32 v21, {L_WCNT}
    v_mov_b32 v22, 1
    """)
    if nb2:
        A(f"""
        s_barrier
        s_cmp_eq_u32 s5, 8
        s_cbranch_scc1 L_vt2
        s_lshr_b32 s44, s{W1_}, 7
        s_add_u32 s44, s44, s47
        s_and_b32 s44, s44, 7
        s_cmp_eq_u32 s44, 3
        s_cbranch_scc1 L_vt2
        """)
        vtail(nb2, 3, 0)
        A("L_vt2:")
    if trig:
        A(f"""
        s_cmp_lg_u32 s3, 11
        s_cbranch_scc1 L_S5_tb
        s_lshr_b32 s44, s{W1_}, 7
        s_add_u32 s44, s44, s47
        s_and_b32 s44, s44, 7
        s_cmp_eq_u32 s44, {3 if c3 else 9}
        s_cbranch_scc1 L_S5_tb
        """)
        if at:
            A(f"""
            s_lshl_b32 s44, s4, 5
            v_mov_b32 v16, s44
            s_mov_b32 s7, 0
            L_S5_trig:
            s_sleep {ps}
            global_load_dword v17, v16, s[94:95] sc1
            s_add_u32 s7, s7, 1
            s_cmp_gt_u32 s7, {NLOC//2}
            s_cbranch_scc1 L_S5_tb
            s_waitcnt vmcnt(0)
            v_readfirstlane_b32 s44, v17
            s_cmp_lt_u32 s44, {an}
            """)
        else:
            A(f"""
        s_lshl_b32 s44, s4, 10
        s_add_u32 s44, s44, {WS_TR}
        v_lshl_add_u32 v16, v7, 7, s44
        s_mov_b32 s7, 0
        L_S5_trig:
        s_sleep {ps}
        global_load_dword v17, v16, {sp(WS_)} sc1
        s_add_u32 s7, s7, 1
        s_cmp_gt_u32 s7, {NLOC//2}
        s_cbranch_scc1 L_S5_tb
        s_waitcnt vmcnt(0)
        v_cmp_eq_u32 vcc, {TAG}, v17
        s_and_b32 s44, vcc_lo, {tm}
        s_bcnt1_i32_b32 s44, s44
        s_cmp_lt_u32 s44, {trig}
""")
        A(f"""
        s_cbranch_scc1 L_S5_trig
        L_S5_tb:
        """)
    A("s_barrier")
    A.stamp(5)
    dma_tile(A, 8, "v14", 9216, L_BUF0, 72, '' if wm & 4 else NT)
    A(f"""
    s_barrier
    s_cmp_ge_u32 s3, 9
    s_cbranch_scc1 L_S5_hi
    s_mul_i32 s44, s47, {64*1152}
    s_lshl_b32 s45, s3, 10
    s_add_u32 s45, s45, {L_BUF1}
    """)
    for o in range(8):
        A(f"s_mov_b32 m0, s45\ns_add_u32 s45, s45, 9216")
        A(f"buffer_load_dwordx4 v15, s[12:15], s44 offen{'' if wm & 8 else NT} lds")
        A(f"s_add_u32 s44, s44, 9216")
    A(f"global_load_dwordx4 v[24:27], v80, {sp(WS_)} sc1\ns_waitcnt vmcnt(9)")
    A.lds_inc(4, "v21", "v22")
    if stamps and not LITE:
        A("s_waitcnt vmcnt(0)"); A.stamp(15)
    A("s_mov_b32 s7, 0\ns_branch L_S5_rgc")
    A.dual_head("L_S5_rg", ["v80", "v81"], init=False)
    A(f"s_sleep {ps}\nglobal_load_dwordx4 v[24:27], v80, {sp(WS_)} sc1\nL_S5_rgc:\ns_waitcnt vmcnt(0)")
    A.tagcheck(["v25", "v27"], "v30", "v31", "L_S5_rg")
    A(f"""
    v_mov_b32 v35, 0x3f80
    ds_write_b16 v2, v24 offset:{ASTR}
    ds_write_b16_d16_hi v2, v24 offset:{5*ASTR}
    ds_write_b16 v2, v26 offset:{2*ASTR}
    ds_write_b16_d16_hi v2, v26 offset:{6*ASTR}
    ds_write_b16 v2, v35 offset:{3*ASTR}
    ds_write_b16 v2, v35 offset:{7*ASTR}
    s_waitcnt lgkmcnt(0)
    {f's_sleep {ds5}' if ds5 else ''}
    s_barrier
    global_load_dwordx2 v[24:25], v81, {sp(WS_)} sc1
    """)
    A.stamp(6)
    def w2frags():
        for i in range(3):
            for ks in range(2):
                for half in range(2):
                    A(f"ds_read_b64_tr_b16 {vr(52+i*8+ks*4+half*2,2)}, v{92+i} offset:{(ks*32+half*16)*1152}")
    w2frags()
    A("s_branch L_S5_xac")
    A.dual_head("L_S5_xa", ["v81"], init=False)
    A(f"global_load_dwordx2 v[24:25], v81, {sp(WS_)} sc1\nL_S5_xac:\ns_waitcnt vmcnt(0)")
    A.tagcheck(["v25"], None, None, "L_S5_xa")
    A(f"""
    ds_write_b16 v2, v24
    ds_write_b16_d16_hi v2, v24 offset:{4*ASTR}
    s_waitcnt lgkmcnt(0)
    s_barrier
    """)
    A.stamp(7)
    A(f"""
    s_branch L_S5_g2
    L_S5_hi:
    s_waitcnt vmcnt(0)
    """)
    A.lds_inc(4, "v21", "v22")
    A(f"""
    s_cmp_ge_u32 s3, 12
    s_cbranch_scc1 L_S5_g1
    s_barrier
    """)
    w2frags()
    A(f"""
    s_cmp_lg_u32 s3, 10
    s_cbranch_scc1 L_S5_h2
    global_load_dwordx2 v[86:87], v83, {sp(WS_)} sc1
    s_barrier
    s_mov_b32 s7, 0
    s_branch L_S5_gb1
    """)
    A.dual_head("L_S5_gb", ["v77"], init=False)
    A(f"""
    global_load_dwordx2 v[86:87], v83, {sp(WS_)} sc1
    L_S5_gb1:
    global_load_dwordx2 v[90:91], v77, {sp(WS_)} sc1
    s_waitcnt vmcnt(0)
    """)
    A.tagcheck(["v87", "v91"], "v30", "v31", "L_S5_gb")
    A(f"""
    v_lshrrev_b32 v86, v78, v86
    v_lshrrev_b32 v85, v78, v90
    v_lshlrev_b32 v86, 16, v86            ; gb
    v_lshlrev_b32 v85, 16, v85            ; x1
    v_lshlrev_b32 v84, 16, v84            ; b2
    s_branch L_S5_g2
    L_S5_h2:
    s_barrier
    L_S5_g2:
    s_mov_b32 s56, 0xffff0000
    s_mov_b32 s57, 0
    s_mov_b32 s58, 0
    s_mov_b32 s59, 0xffff
    """)
    sm_idx(A, "v36", 40, 12)
    A(f"""
    s_waitcnt lgkmcnt(0)
    s_barrier
    ds_read_b128 v[32:35], v79
    s_waitcnt lgkmcnt(0)
    """)
    for i in range(3):
        A(f"v_smfmac_f32_16x16x64_bf16 {vr(40+4*i,4)}, v[32:35], {vr(52+8*i,8)}, v36")
    A(f"""
    s_mov_b32 exec_hi, 0xffff
    s_nop 5
    """)
    for r in range(4): A(f"v_cndmask_b32 v{28+r}, v{40+r}, v{44+r}, s[56:57]")
    for r in range(4): A(f"v_cndmask_b32 v{28+r}, v{28+r}, v{48+r}, s[58:59]")
    A("v_add_f32 v28, v28, v29\nv_add_f32 v29, v30, v31")
    A.epack("v28", "v28"); A.epack("v29", "v29")
    A(f"global_store_dwordx2 v76, v[28:29], {sp(WS_)} sc1\ns_mov_b64 exec, -1")
    A.stamp(11)
    A(f"""
    s_cmp_lg_u32 s3, 10
    s_cbranch_scc1 L_end
    {f's_sleep {fgs}' if fgs else 's_waitcnt vmcnt(0)'}
    """)
    A.spin_head("L_S5_fg")
    for i in range(9):
        A(f"global_load_dwordx2 {vr(40+2*i,2)}, v88, {sp(WS_)} offset:{i*512-2048} sc1")
    for i in range(9):
        a, b = 40+2*i, 41+2*i
        A(f"s_waitcnt vmcnt({8-i})\nv_xor_b32 v{a}, {ETAG}, v{a}\nv_xor_b32 v{b}, {ETAG}, v{b}")
        if i == 0: A(f"v_or_b32 v30, v{a}, v{b}")
        else: A(f"v_or3_b32 v30, v{a}, v{b}, v30\nv_add_f32 v40, v40, v{a}\nv_add_f32 v41, v41, v{b}")
    A("v_and_b32 v30, 63, v30\nv_cmp_ne_u32 vcc, 0, v30\ns_cbranch_vccnz L_S5_fg")
    A.stamp(12)
    A(f"""
    v_permlane32_swap_b32 v40, v41
    v_add_f32 v40, v40, v41
    v_mov_b32 v42, v40
    s_nop 1
    v_permlane16_swap_b32 v40, v42
    v_add_f32 v40, v40, v42
    s_nop 1
    v_add_f32_dpp v40, v40, v40 row_ror:8 {DPPM}
    """)
    A.r1("v40")
    A("v_add_f32 v40, v84, v40")
    A.r1("v40")
    A("v_mul_f32 v40, v86, v40")
    A.r1("v40")
    A(f"""
    v_add_f32 v40, v85, v40
    v_cvt_pk_bf16_f32 v40, v40, v40
    s_mov_b32 exec_lo, 0xff
    s_mov_b32 exec_hi, 0xff
    global_store_short v82, v40, {sp(OUT_)}{' sc1' if osc else ''}
    s_cmp_lg_u32 s47, 0
    s_cbranch_scc1 L_S5_fin
    s_mov_b64 exec, 1
    v_mov_b32 v33, {TAG}
    global_store_dword v3, v33, {sp(WS_)} sc1
    L_S5_fin:
    s_mov_b64 exec, -1
    """)
    if probe:
        base, stride = {1: (0xB0000, 128*72), 2: (0x400000, 65536), 3: (0x1000000, 0x200000), 4: (0xB0000, 128*72)}[probe]
        A(f"s_lshl_b32 s44, s47, 7\ns_add_u32 s44, s44, {base}\nv_mov_b32 v60, s44\ns_waitcnt vmcnt(0)\ns_mov_b64 exec, 1")
        for i in range(8):
            if probe == 1: A(f"global_store_dword v60, v3, {sp(WS_)} sc1")
            else: A(f"global_load_dword v61, v60, {sp(WS_)} nt")
            A(f"s_waitcnt vmcnt(0)\nv_add_u32 v60, {stride}, v60")
        A("s_mov_b64 exec, -1")
    A.stamp(13)
    A("s_branch L_end")
    A("L_S5_g1:\nv_mov_b32 v15, v10")
    A.lds_spin(4, 16, "v16", "v21")
    A.stamp(14)
    bfrags(A, "v15")
    k0_ = -2.0 * 1.4426950408889634 * 0.7978845608028654
    A(f"""
    v_lshrrev_b32 v16, 4, v1
    s_lshl_b32 s44, s4, 7
    s_add_u32 s44, s44, {WS_CF}
    v_lshl_add_u32 v18, v16, 3, s44
    v_lshrrev_b32 v15, 5, v1
    v_lshlrev_b32 v15, 7, v15
    v_and_b32 v16, 13, v1
    v_lshl_or_b32 v15, v16, 1, v15
    v_bfe_u32 v16, v1, 1, 1
    v_lshl_or_b32 v15, v16, 6, v15
    s_lshr_b32 s44, s46, 1
    s_lshl_b32 s44, s44, 5
    s_and_b32 s45, s46, 1
    s_lshl_b32 s45, s45, 2
    s_add_u32 s44, s44, s45
    s_add_u32 s44, s44, {L_H1}
    v_add_u32 v15, s44, v15
    v_lshlrev_b32 v19, 16, v19
    v_bfe_u32 v16, v1, 1, 3
    v_mul_u32_u24 v16, {ASTR}, v16
    v_add_u32 v16, v11, v16
    v_mov_b32 v17, {f2h(k0_)}
    """)
    sm_idx(A, "v14")
    A("s_waitcnt lgkmcnt(0)\ns_barrier\ns_barrier")
    cfl = f"global_load_dwordx2 v[124:125], v18, {sp(WS_)} sc1"
    gemv_sm(A, "v16", "v14", mid=(cfm, cfl))
    A.stamp(9)
    A("s_mov_b32 s7, 0\ns_nop 6\nv_add_f32 v20, v20, v21\nv_add_f32 v22, v22, v23\ns_branch L_S5_cfc")
    A.dual_head("L_S5_cf", ["v18"], init=False)
    A(f"{cfl}\nL_S5_cfc:\ns_waitcnt vmcnt(0)")
    A.etagcheck(["v124", "v125"], "v30", "L_S5_cf")
    A.stamp(8)
    A(f"""
    v_mul_f32 v20, v20, v124
    v_fmac_f32 v20, v22, v125
    v_mov_b32 v21, v20
    s_nop 1
    v_permlane16_swap_b32 v20, v21
    v_add_f32 v20, v20, v21
    """)
    A.r1("v20")
    A("v_add_f32 v20, v20, v19")
    A.r1("v20")
    A(f"""
    v_mul_f32 v21, v20, v20
    v_fmamk_f32 v21, v21, {f2h(k0_*0.044715)}, v17
    v_mul_f32 v21, v21, v20
    v_exp_f32 v21, v21
    s_nop 0
    v_add_f32 v21, 1.0, v21
    v_rcp_f32 v21, v21
    s_mov_b32 exec_lo, 0xffff
    s_mov_b32 exec_hi, 0xffff
    v_mul_f32 v21, v21, v20
    v_cvt_pk_bf16_f32 v21, v21, v21
    ds_write_b16 v15, v21
    s_mov_b64 exec, -1
    s_waitcnt lgkmcnt(0)
    s_barrier
    """)
    A.stamp(10)
    A("L_end:")
    if dbg:
        maps = {"A": {1: 4, 2: 5, 4: 6, 7: 7, 9: 8, 10: 9, 12: 14}, "B": {4: 3, 5: 10, 6: 11, 8: 12, 11: 13}, "M": {3: 2, 5: 15}}
        A(f"""
        s_mov_b64 exec, -1
        s_lshl_b32 s44, 1, s3
        s_and_b32 s44, s44, {(1<<0)|(1<<9)|(1<<12)|(1<<15)}
        s_cbranch_scc0 L_exit
        s_load_dwordx2 s[46:47], s[0:1], 104
        v_mov_b32 v125, 0x400
        v_readlane_b32 s44, v127, 0
        s_nop 3
        s_not_b32 s44, s44
        v_writelane_b32 v127, s44, 15
        v_writelane_b32 v125, 4, 0
        v_writelane_b32 v125, 0, 15
        s_lshr_b32 s45, s2, 3
        s_cmp_lt_u32 s45, 16
        s_cbranch_scc1 L_dbg_A
        s_cmp_lt_u32 s45, 25
        s_cbranch_scc1 L_dbg_B
        """)
        for nm in ("M", "B", "A"):
            A(f"L_dbg_{nm}:")
            for st, sl in maps[nm].items(): A(f"v_writelane_b32 v125, {sl*4}, {st}")
            A("s_branch L_dbg_go")
        A(f"""
        L_dbg_go:
        s_waitcnt lgkmcnt(0)
        v_cmp_gt_u32 vcc, 0x100, v125
        s_and_saveexec_b64 s[48:49], vcc
        global_atomic_umax v125, v127, s[46:47]
        s_endpgm
        """)
    elif stamps:
        if LITE: A("s_cmp_lg_u32 s3, 10\ns_cbranch_scc1 L_exit")
        A(f"""
        s_mov_b64 exec, 0xffff
        s_lshl_b32 s44, s2, 4
        s_add_u32 s44, s44, s3
        s_lshl_b32 s44, s44, 6
        s_add_u32 s44, s44, {WS_STAMP}
        v_lshl_add_u32 v126, v1, 2, s44
        global_store_dword v126, v127, {sp(WS_)}{' sc1' if LITE else ''}
        """)
    A("L_exit:\ns_endpgm\nL_codeend:")
    A.footer(128, 102)
    return A

HEAD = """; Fused adaLN + sliding-window GQA decode attention + channel MLP, one persistent launch (gfx950).
"""
if __name__ == "__main__":
    out = sys.argv[1]
    kw = {}
    for o in sys.argv[2:]:
        if "=" in o:
            k, v = o.split("="); kw[k] = int(v)
        elif o == "stamps": kw["stamps"] = True
        elif o == "lite": kw["stamps"] = True; LITE = True
        elif o == "nont": kw["nt"] = ""
    A = build(**kw)
    open(out, "w").write(HEAD + A.text())
```

```python
import sys, struct
from asmlib import Asm, NAME

WS_EPOCH = 0x0
WS_QG    = 0x4000
WS_TR    = 0x18000
WS_FL    = 0x1C000
WS_PX    = 0x20000
WS_AG    = 0x30000
AGS = 1152*8
WS_MG    = 0x40000
WS_FG    = 0x50000
WS_OG    = 0x100000
WS_MLG   = 0x120000
WS_RG    = 0x124000
WS_XA    = 0x136000
WS_CF    = 0x151000
WS_HL    = 0x152000
WS_GOFF  = 0x80000
WS_QL    = 0x200000
WS_PC    = 0xA2000
WS_STAMP = 0x8000000
AL = 131072; L_Q = 0; L_CNT = 512; L_MX = 640; L_LS = 768; L_P = 1024; PSTR = 1152; L_PD = 3328
ASTR = 1184
L_BUF0 = 0; L_BUF1 = 73728; L_ACT = 147456; L_H1 = L_ACT + 8*ASTR; L_CF = L_H1 + 256; L_WCNT = L_CF + 64; L_ST = L_WCNT + 64; L_X1 = L_ST + 1536
LDS_BYTES = 160768
assert L_X1 <= LDS_BYTES
NLOC = 300
SPIN = 40000
LITE = False
LOG2E = 0x3fb8aa3b
X_, K_, V_, WQ_, WO_, W1_, B1_, W2_, B2_, C_, WM_, OUT_, WS_ = 16, 18, 20, 22, 24, 28, 30, 32, 34, 36, 38, 40, 42
TAG = "s6"; ETAG = "s101"

def sp(n): return f"s[{n}:{n+1}]"
def vr(n, k): return f"v[{n}:{n+k-1}]"
def f2h(x): return hex(struct.unpack("<I", struct.pack("<f", x))[0])
DPPM = "row_mask:0xf bank_mask:0xf"

class G(Asm):
    def __init__(self, stamps=False, nt="nt"):
        super().__init__()
        self.stamps = stamps
        self.nt = (" " + nt) if nt else ""
    def stamp(self, i):
        if self.stamps and (not LITE or i == 13):
            self(f"s_memrealtime s[96:97]\ns_waitcnt lgkmcnt(0)\nv_writelane_b32 v127, s96, {i}")
    def rbf(self, *pairs):
        for d, s in pairs: self(f"v_cvt_pk_bf16_f32 {d}, 0, {s}")
    def r1(self, *regs): self.rbf(*[(r, r) for r in regs])
    def srd(self, b, ptr, nbytes):
        self(f"s_mov_b32 s{b}, s{ptr}\ns_and_b32 s{b+1}, s{ptr+1}, 0xffff\ns_mov_b32 s{b+2}, {nbytes}\ns_mov_b32 s{b+3}, 0x20000")
    def mktag(self):
        self(f"s_add_u32 s6, s6, 0x9e3779b9\ns_and_b32 {ETAG}, s6, 63\ns_and_b32 s100, s6, 7")
    def tagcheck(self, tags, mn, mx, retry):
        if len(tags) == 1:
            self(f"v_cmp_ne_u32 vcc, {TAG}, {tags[0]}")
        else:
            assert len(tags) % 2 == 0
            for i in range(0, len(tags), 2):
                a, b = tags[i], tags[i+1]
                self(f"v_min3_u32 {mn}, {a}, {b}, {TAG if i == 0 else mn}")
                self(f"v_max3_u32 {mx}, {a}, {b}, {TAG if i == 0 else mx}")
            self(f"v_cmp_ne_u32 vcc, {mn}, {mx}")
        self(f"s_cbranch_vccnz {retry}")
    def etagcheck(self, words, acc, retry, ETAG=ETAG, mask=63):
        assert len(words) % 2 == 0
        for i in range(0, len(words), 2):
            a, b = words[i], words[i+1]
            self(f"v_xor_b32 {a}, {ETAG}, {a}\nv_xor_b32 {b}, {ETAG}, {b}")
            if i == 0: self(f"v_or_b32 {acc}, {a}, {b}")
            else: self(f"v_or3_b32 {acc}, {a}, {b}, {acc}")
        self(f"v_and_b32 {acc}, {mask}, {acc}\nv_cmp_ne_u32 vcc, 0, {acc}\ns_cbranch_vccnz {retry}")
    def epack(self, d, v, mask=63):
        self(f"v_bfi_b32 {d}, {mask}, {ETAG}, {v}")
    def spin_head(self, lab):
        self(f"s_mov_b32 s7, 0\n{lab}:\ns_add_u32 s7, s7, 1\ns_cmp_gt_u32 s7, {SPIN}\ns_cbranch_scc1 L_end")
    def dual_head(self, lab, regs, init=True):
        if init: self("s_mov_b32 s7, 0")
        self(f"{lab}:\ns_add_u32 s7, s7, 1\ns_cmp_gt_u32 s7, {SPIN}\ns_cbranch_scc1 L_end")
        self(f"s_cmp_lg_u32 s7, {NLOC}\ns_cbranch_scc1 {lab}_k")
        for r in regs: self(f"v_add_u32 {r}, {WS_GOFF}, {r}")
        self(f"{lab}_k:")
    def dual_store(self, op, vaddr, data):
        self(f"{op} {vaddr}, {data}, {sp(WS_)}\nv_add_u32 {vaddr}, {WS_GOFF}, {vaddr}\n{op} {vaddr}, {data}, {sp(WS_)} sc1")
    def row_reduce(self, op, regs, steps=4):
        for ctl in ("quad_perm:[1,0,3,2]", "quad_perm:[2,3,0,1]", "row_half_mirror", "row_mirror")[:steps]:
            if len(regs) < 3: self(f"s_nop {2 - len(regs)}")
            for r in regs:
                self(f"{op}_dpp {r}, {r}, {r} {ctl} {DPPM}")
    def lds_spin(self, off, val, vt, vbase, sleep=True):
        lab = self.label("LS")
        self.spin_head(lab)
        self(f"ds_read_b32 {vt}, {vbase} offset:{off}\ns_waitcnt lgkmcnt(0)\nv_readfirstlane_b32 s44, {vt}\ns_cmp_ge_u32 s44, {val}")
        done = self.label("LD")
        self(f"s_cbranch_scc1 {done}\n" + ("s_sleep 1\n" if sleep else "") + f"s_branch {lab}\n{done}:")
    def lds_inc(self, off, vbase, vone):
        self(f"s_mov_b64 exec, 1\nds_add_u32 {vbase}, {vone} offset:{off}\ns_mov_b64 exec, -1")

INV576 = f2h(1.0/576)
def ln_finish(A, mean, var, rs):
    A(f"v_max_f32 {var}, 0, {var}")
    A.r1(mean, var)
    A(f"v_add_f32 {var}, 0x3727c5ac, {var}")
    A.r1(var)
    A(f"v_sqrt_f32 {var}, {var}\ns_nop 0")
    A.r1(var)
    A(f"v_rcp_f32 {rs}, {var}\ns_nop 0")

def dma_tile(A, srd, voff, rowstride, ldsbase, ninstr=72, nt=None):
    if nt is None: nt = A.nt
    A(f"s_mul_i32 s44, s3, {8*rowstride}\ns_lshl_b32 s45, s3, 10\ns_add_u32 s45, s45, {ldsbase}")
    for i in range((ninstr + 15)//16):
        skip = None
        if (i+1)*16 > ninstr:
            skip = A.label("DS")
            A(f"s_cmp_ge_u32 s3, {ninstr - 16*i}\ns_cbranch_scc1 {skip}")
        A(f"s_mov_b32 m0, s45\ns_add_u32 s45, s45, 16384")
        A(f"buffer_load_dwordx4 {voff}, s[{srd}:{srd+3}], s44 offen{nt} lds")
        A(f"s_add_u32 s44, s44, {128*rowstride}")
        if skip: A(f"{skip}:")

def bfrags(A, vaddr, vb=52, nks=18, rowb=128):
    base = 0
    for ks in range(nks):
        for half in range(2):
            off = (ks*32 + half*16) * rowb
            if off - base > 65535:
                A(f"v_add_u32 {vaddr}, {off - base}, {vaddr}"); base = off
            A(f"ds_read_b64_tr_b16 {vr(vb + ks*4 + half*2,2)}, {vaddr} offset:{off - base}")

def kv_chunk_base(A, rp, dst, t, SP):
    A(f"""
    s_lshr_b32 {t}, {rp}, 3
    s_lshl_b32 {dst}, s4, 1
    s_add_u32 {dst}, {dst}, {t}
    s_bfe_u32 {t}, {rp}, 0x10002
    s_lshl_b32 {t}, {t}, 4
    s_add_u32 {dst}, {dst}, {t}
    s_lshl_b32 {dst}, {dst}, 21
    s_and_b32 {t}, {rp}, 3
    s_lshl_b32 {t}, {t}, {SP}
    s_add_u32 {dst}, {dst}, {t}
    s_add_u32 {dst}, {dst}, {6144*256}
    """)

def gemv_mfma(A, vaaddr, vb=52, va=24, vd=20, depth=7, nks=18, mid=None):
    depth = min(depth, nks)
    def rd(ks):
        A(f"ds_read_b128 {vr(va + (ks % depth)*4,4)}, {vaaddr} offset:{ks*64}")
    for ks in range(depth): rd(ks)
    for ks in range(nks):
        issued = min(nks, depth + ks)
        A(f"s_waitcnt lgkmcnt({issued - ks - 1})")
        c = "0" if ks == 0 else vr(vd, 4)
        A(f"v_mfma_f32_16x16x32_bf16 {vr(vd,4)}, {vr(va + (ks % depth)*4,4)}, {vr(vb+ks*4,4)}, {c}")
        if ks + depth < nks: rd(ks + depth)
        if mid and ks == mid[0]: A(mid[1])

def gemv_sm(A, vaaddr, vidx, vb=52, va=24, vd=20, depth=7, nch=9, mid=None):
    depth = min(depth, nch)
    def rd(c):
        A(f"ds_read_b128 {vr(va + (c % depth)*4,4)}, {vaaddr} offset:{c*128}")
    for c in range(depth): rd(c)
    for c in range(nch):
        issued = min(nch, depth + c)
        A(f"s_waitcnt lgkmcnt({issued - c - 1})")
        A(f"v_smfmac_f32_16x16x64_bf16 {vr(vd,4)}, {vr(va + (c % depth)*4,4)}, {vr(vb+c*8,8)}, {vidx}")
        if c + depth < nch: rd(c + depth)
        if mid and c == mid[0]: A(mid[1])

def sm_idx(A, vidx, vd=20, n=4):
    A(f"v_bfe_i32 {vidx}, v1, 0, 1\nv_and_b32 {vidx}, 0xaaaa, {vidx}\nv_or_b32 {vidx}, 0x4444, {vidx}")
    for i in range(n): A(f"v_mov_b32 v{vd+i}, 0")

def fold8(A, n, a, b, t, swapb=True):
    for i in range(1, n):
        A(f"v_add_f32 v{a}, v{a}, v{a+2*i}\nv_add_f32 v{b}, v{b}, v{b+2*i}")
    A(f"""
    s_nop 1
    v_permlane32_swap_b32 v{a}, v{b}
    v_add_f32 v{a}, v{a}, v{b}
    v_mov_b32 v{t}, v{a}
    s_nop 1
    v_permlane16_swap_b32 v{a}, v{t}
    v_add_f32 v{a}, v{a}, v{t}
    s_nop 1
    v_add_f32_dpp v{a}, v{a}, v{a} row_ror:8 {DPPM}
    """)

def build(stamps=False, nt="nt", adelay=0, dbg=0, w2first=0, qs=2, ps=2, pt=1, diag=0, ql=0, rgw=0, il=2, trig=1, pf=0, fgs=13, ordr=0, nb1=0, nb2=0, mlt=0, c3=1, hq=0, fl=0, ppt=0, probe=0, cfm=2, x4=1, me=0, tm=96, dq=0, dv=0, ds5=0, nr=8, qpt=0, qv=1, qlay=1, pc=0, fpos=0, hs=0, hp=2, xk=0, wm=0, at=0, an=2, ks=2, tp=0, osc=1, wb=0, wb0=0, ot=0, tw=99, tk=0, p2=0, sw=1, hw=0, pp=0, kb=1, w16=1, m2=1, mgf=0):
    NJ = 18*ks; RW = 576//ks; JX = 4 if ks == 2 else 6
    CH, BL, SP = {0: (15, 13, 17), 1: (17, 15, 13), 2: (17, 13, 15)}[il]
    global SPIN, NLOC
    if diag: SPIN = 60; NLOC = 100
    A = G(stamps, nt)
    def vtail(n, level, w0):
        lab = A.label("VT")
        A(f"""
        s_sub_u32 s48, s3, {w0}
        s_cmp_ge_u32 s48, {n}
        s_cbranch_scc1 {lab}
        s_and_b32 s49, s48, 1
        s_lshl_b32 s50, s5, 1
        s_add_u32 s50, s50, s49
        """)
        kv_chunk_base(A, "s50", "s44", "s45", SP)
        A(f"""
        s_lshr_b32 s48, s48, 1
        s_sub_u32 s48, 3, s48
        s_lshl_b32 s48, s48, {BL}
        s_add_u32 s44, s44, s48
        s_add_u32 s44, s44, {level << CH}
        v_lshl_add_u32 v20, v1, 7, s44
        global_load_dword v125, v20, {sp(V_)}{A.nt}
        {lab}:
        """)
    NT = A.nt
    A.header(256, 1024, LDS_BYTES)
    A(f"""
    s_cmp_ge_u32 s2, 256
    s_cbranch_scc1 L_exit
    s_load_dwordx16 s[16:31], s[0:1], 0
    s_load_dwordx8 s[32:39], s[0:1], 64
    s_load_dwordx2 s[40:41], s[0:1], 96
    s_load_dwordx2 s[42:43], s[0:1], 112
    {'s_load_dwordx2 s[94:95], s[0:1], 104' if at else ''}
    v_lshrrev_b32 v2, 6, v0
    v_and_b32 v1, 63, v0
    s_and_b32 s4, s2, 7
    v_readfirstlane_b32 s3, v2
    s_lshr_b32 s5, s2, 3
    v_mov_b32 v3, 0
    """)
    if stamps:
        A("v_mov_b32 v127, 0\ns_memrealtime s[98:99]")
    A(f"""
    s_cmp_lg_u32 s5, 24
    s_cbranch_scc1 L_nopf
    s_getpc_b64 s[44:45]
    L_pfbase:
    s_sub_u32 s44, s44, L_pfbase-{NAME}_kernel
    s_subb_u32 s45, s45, 0
    v_lshlrev_b32 v4, 7, v0
    v_cmp_gt_u32 vcc, L_codeend-{NAME}_kernel, v4
    s_and_saveexec_b64 s[46:47], vcc
    s_cbranch_execz L_pfd
    global_load_dword v5, v4, s[44:45]
    L_pfd:
    s_mov_b64 exec, -1
    """)
    if tp:
        A(f"""
        s_min_u32 s44, s3, 14
        s_lshl_b32 s45, s44, 3
        s_load_dwordx2 s[60:61], s[0:1], s45
        s_lshl_b32 s44, s44, 1
        s_lshr_b32 s44, {(2<<6)|(2<<8)|(2<<12)|(2<<16)|(1<<22)}, s44
        s_and_b32 s44, s44, 3
        v_min_u32 v4, s44, v1
        v_lshlrev_b32 v4, 21, v4
        v_and_b32 v6, 1, v1
        v_bfe_u32 v7, v1, 1, 1
        v_lshl_or_b32 v6, v7, 4, v6
        s_lshl_b32 s44, s4, 1
        v_add_u32 v6, s44, v6
        v_lshlrev_b32 v6, 21, v6
        s_cmp_eq_u32 s3, 2
        s_cselect_b64 vcc, -1, 0
        v_or_b32 v6, 0x180000, v6
        v_cndmask_b32 v4, v4, v6, vcc
        s_mov_b64 exec, 15
        s_waitcnt lgkmcnt(0)
        global_load_dword v126, v4, s[60:61] nt
        s_mov_b64 exec, -1
        """)
    A(f"""
    L_nopf:
    s_cmp_lt_u32 s5, 16
    s_cbranch_scc1 L_A
    {'s_branch L_exit' if diag & 32 else ''}
    s_sub_u32 s5, s5, 16                  ; u
    s_sub_u32 s55, s2, {25*8}
    s_min_u32 s47, s4, {JX}
    s_mul_i32 s48, s4, {JX}
    s_add_u32 s47, s47, s48
    s_add_u32 s47, s47, s5
    s_sub_u32 s47, s47, 9
    s_mul_i32 s48, s47, 0xe39
    s_lshr_b32 s48, s48, 16               ; ksp
    s_mul_i32 s49, s48, 18
    s_sub_u32 s49, s47, s49               ; cgp
    s_mul_i32 s50, s48, {RW*6912}
    s_lshl_b32 s51, s49, 7
    s_add_u32 s50, s50, s51               ; M offset
    s_lshl_b32 s51, s4, 3
    s_add_u32 s51, s51, s5                ; qb
    s_lshl_b32 s52, s51, 7                ; B offset
    v_lshrrev_b32 v4, 3, v1
    v_bfe_u32 v6, v1, 4, 2
    v_lshlrev_b32 v6, 1, v6
    v_and_b32 v7, 7, v1
    v_xor_b32 v6, v6, v7
    s_movk_i32 s53, 6912
    s_cmp_lt_u32 s5, 8
    s_cselect_b32 s50, s52, s50
    s_cselect_b32 s53, 8192, s53          ; stride
    s_cselect_b32 s54, 72, {RW//8}        ; count
    s_mul_i32 s10, s53, 576
    s_cselect_b32 s47, s51, s47
    s_cselect_b32 s55, 0, s55
    v_mul_u32_u24 v14, s53, v4
    v_lshl_add_u32 v14, v6, 4, v14
    v_add_u32 v15, s50, v14
    s_mov_b32 s11, 0x20000
    s_lshl_b32 s53, s53, 3
    s_mul_i32 s44, s3, s53
    s_lshl_b32 s53, s53, 4
    s_lshl_b32 s45, s3, 10
    s_mov_b32 s46, s3
    s_cmp_lt_u32 s5, 8
    s_waitcnt lgkmcnt(0)
    s_cselect_b32 s8, s{WQ_}, s{WM_}
    s_cselect_b32 s9, s{WQ_+1}, s{WM_+1}
    s_and_b32 s9, s9, 0xffff
    s_cmp_ge_u32 s55, {NJ}
    s_cbranch_scc1 L_W_nodma
    L_W_dma:
    s_mov_b32 m0, s45
    s_add_u32 s45, s45, 16384
    buffer_load_dwordx4 v15, s[8:11], s44 offen{'' if wm & 1 else NT} lds
    s_add_u32 s44, s44, s53
    s_add_u32 s46, s46, 16
    s_cmp_lt_u32 s46, s54
    s_cbranch_scc1 L_W_dma
    L_W_nodma:
    s_load_dword s6, {sp(WS_)}, {WS_EPOCH}
    s_branch L_W
    """)
    A(f"""
    L_A:
    """)
    if ordr:
        t0_, t1_ = {1: (0xd8, 0xd8), 2: (0xe4, 0xd2), 3: (0xd8, 0xd2)}[ordr]
        A(f"""
        s_bitcmp1_b32 s5, 0
        s_movk_i32 s44, {t0_}
        s_cselect_b32 s44, {t1_}, s44
        s_lshr_b32 s45, s3, 2
        s_lshl_b32 s45, s45, 1
        s_lshr_b32 s44, s44, s45
        s_and_b32 s44, s44, 3
        s_and_b32 s3, s3, 3
        s_lshl_b32 s44, s44, 2
        s_or_b32 s3, s3, s44
        """)
    A(f"""
    v_mov_b32 v4, {AL}
    v_lshl_add_u32 v5, v1, 2, v4
    v_bfe_i32 v6, v1, 5, 1
    ds_write_b32 v5, v6 offset:{L_CNT}
    s_lshr_b32 s44, s5, 3
    s_lshl_b32 s45, s4, 1
    s_add_u32 s46, s45, s44            ; hkv
    s_bfe_u32 s47, s5, 0x10002          ; b
    s_and_b32 s48, s5, 3                ; sp
    s_lshl_b32 s49, s47, 4
    s_add_u32 s49, s49, s46             ; b*16+hkv
    s_lshl_b32 s49, s49, 21
    s_lshl_b32 s50, s48, {SP}
    s_add_u32 s49, s49, s50
    s_add_u32 s49, s49, {6144*256}
    s_bfe_u32 s51, s3, 0x10002            ; g
    s_and_b32 s44, s3, 3
    s_lshl_b32 s50, s51, {CH+1}
    s_add_u32 s49, s49, s50
    s_lshl_b32 s50, s44, {BL}
    s_add_u32 s49, s49, s50
    s_lshl_b32 s45, s51, 3
    s_add_u32 s48, s44, s45
    v_and_b32 v9, 3, v1
    v_mov_b32 v7, 1
    s_cmp_ge_u32 s3, 8
    s_cbranch_scc1 L_AV
    s_add_u32 s49, s49, 4096
    v_bfe_u32 v5, v1, 2, 2
    v_lshlrev_b32 v5, 8, v5
    v_and_b32 v6, 48, v1
    v_lshl_or_b32 v5, v6, 2, v5
    v_lshl_or_b32 v5, v9, 4, v5
    s_waitcnt lgkmcnt(0)
    s_load_dword s6, {sp(WS_)}, {WS_EPOCH}
    s_add_u32 s52, s{K_}, s49
    s_addc_u32 s53, s{K_+1}, 0
    s_add_u32 s54, s52, {1 << CH}
    s_addc_u32 s55, s53, 0
    """)
    if adelay: A("s_waitcnt lgkmcnt(0)")
    if not kb: A("s_barrier")
    if xk:
        A("s_sub_u32 s58, s52, 0x80000\ns_subb_u32 s59, s53, 0\ns_sub_u32 s60, s54, 0x80000\ns_subb_u32 s61, s55, 0")
        for t in range(16):
            A(f"global_load_dwordx4 {vr(32+4*t,4)}, v5, s[{58+2*(t>>3)}:{59+2*(t>>3)}] offset:{(t&7)*1024-4096}{NT}")
    for t in range(16):
        A(f"global_load_dwordx4 {vr(32+4*t,4)}, v5, s[{52+2*(t>>3)}:{53+2*(t>>3)}] offset:{(t&7)*1024-4096}{NT}")
    if kb: A("s_barrier")
    if stamps: A("s_waitcnt lgkmcnt(0)\nv_writelane_b32 v127, s98, 0")
    A.stamp(1)
    A(f"""
    v_bfe_u32 v8, v1, 2, 1
    v_lshlrev_b32 v8, 8, v8
    v_lshl_or_b32 v8, v6, 2, v8
    v_lshl_or_b32 v8, v9, 4, v8
    v_add_u32 v8, v4, v8
    v_bfe_u32 v11, v1, 4, 1
    v_mul_u32_u24 v10, {PSTR}, v11
    v_and_b32 v12, 1, v1
    v_lshl_add_u32 v10, v12, 4, v10
    v_lshrrev_b32 v13, 5, v1
    v_lshl_add_u32 v10, v13, 3, v10
    v_and_b32 v13, 2, v1
    v_lshl_add_u32 v10, v13, 1, v10
    v_bfe_u32 v13, v1, 2, 1
    v_lshl_add_u32 v10, v13, 1, v10
    v_and_b32 v13, 8, v1
    v_lshl_add_u32 v10, v13, 3, v10
    s_lshr_b32 s44, s48, 1
    s_lshl_b32 s44, s44, 7
    s_and_b32 s45, s48, 1
    s_lshl_b32 s45, s45, 5
    s_add_u32 s44, s44, s45
    s_add_u32 s44, s44, {AL + L_P}
    v_add_u32 v10, s44, v10
    v_lshl_add_u32 v12, v12, 6, v6
    v_bfe_u32 v13, v1, 1, 1
    v_mul_u32_u24 v13, {PSTR}, v13
    v_add3_u32 v12, v12, v13, v4
    v_lshl_add_u32 v11, v11, 5, v4
    v_and_b32 v13, 31, v1
    v_lshl_add_u32 v13, v13, 2, v4
    s_lshl_b32 s44, s3, 2
    v_add_u32 v11, s44, v11
    v_bfe_u32 v17, v1, 4, 1
    v_lshl_add_u32 v17, v17, 5, v11
    v_and_b32 v18, 32, v1
    v_add_u32 v17, v17, v18
    v_bfe_u32 v14, v1, 2, 3
    v_xor_b32 v14, s3, v14
    v_lshlrev_b32 v14, 5, v14
    v_lshrrev_b32 v15, 2, v1
    v_lshl_or_b32 v14, v15, 8, v14
    v_lshl_or_b32 v14, v9, 3, v14
    v_add_u32 v15, {12*8192}, v14
    v_and_b32 v14, 15, v1
    v_lshl_add_u32 v14, v14, 3, v4
    s_lshl_b32 s44, s3, 7
    v_add_u32 v14, s44, v14
    s_mov_b32 s58, 0x22222222
    s_mov_b32 s59, 0x22222222
    s_mov_b32 s60, 0x44444444
    s_mov_b32 s61, 0x44444444
    s_mov_b32 s62, 0x88888888
    s_mov_b32 s63, 0x88888888
    s_lshl_b32 s44, s47, 14
    s_lshl_b32 s45, s46, 10
    s_add_u32 s44, s44, s45
    s_lshl_b32 s45, s3, 7
    s_add_u32 s44, s44, s45
    s_add_u32 s44, s44, {WS_QG}
    s_add_u32 s56, s{WS_}, s44
    s_addc_u32 s57, s{WS_+1}, 0
    s_lshl_b32 s50, s4, 4
    s_add_u32 s50, s50, s5
    s_lshl_b32 s50, s50, 10
    s_add_u32 s50, s50, s45
    s_add_u32 s50, s50, {WS_OG}
    v_lshl_add_u32 v6, v1, 3, s50
    s_waitcnt lgkmcnt(0)
    """)
    A.mktag()
    A(f"""
    """)
    if not ql: pass
    elif qlay:
        A(f"""
        s_sub_u32 s44, s44, {WS_QG}
        s_lshl_b32 s44, s44, 3
        s_add_u32 s44, s44, {WS_QL}
        s_add_u32 s52, s{WS_}, s44
        s_addc_u32 s53, s{WS_+1}, 0
        """)
    else:
        A(f"s_add_u32 s52, s56, {WS_QL - WS_QG}\ns_addc_u32 s53, s57, 0")
    A(f"""
    s_waitcnt vmcnt(0)
    """)
    if qv:
        A.lds_inc(L_CNT+12, "v4", "v7")
        A.lds_spin(L_CNT+12, 8, "v16", "v4")
    A(f"""
    """)
    if ql:
        A(f"""
    s_mov_b32 s7, {0 if ql else nr}
    L_A_qpoll:
    s_add_u32 s7, s7, 1
    s_cmp_gt_u32 s7, {SPIN}
    s_cbranch_scc1 L_end
    s_cmp_gt_u32 s7, {nr}
    s_cbranch_scc1 L_A_qg
    s_load_dwordx16 s[64:79], s[52:53], 0
    s_load_dwordx16 s[80:95], s[52:53], 64
    s_add_u32 s52, s52, {128 if qlay else 32768}
    s_addc_u32 s53, s53, 0
    s_branch L_A_qc
    L_A_qr:
    s_sleep {qs}
    s_branch L_A_qpoll
""")
    else:
        A(f"""
        s_mov_b32 s7, 0
        L_A_qr:
        s_add_u32 s7, s7, 1
        s_cmp_gt_u32 s7, {SPIN}
        s_cbranch_scc1 L_end
        s_sleep {qs}
        """)
    A(f"""
    L_A_qg:
    s_load_dwordx16 s[64:79], s[56:57], 0 glc
    s_load_dwordx16 s[80:95], s[56:57], 64 glc
    L_A_qc:
    s_waitcnt lgkmcnt(0)
    """)
    for i in range(16):
        A(f"s_cmp_lg_u32 s{65+2*i}, {TAG}\ns_cbranch_scc1 L_A_qr")
    A("s_mov_b64 exec, 1")
    for i in range(16):
        A(f"v_mov_b32 v{96+i}, s{64+2*i}")
    A(f"s_lshl_b32 s44, s3, 6\nv_add_u32 v20, s44, v4")
    for i in range(4):
        A(f"ds_write_b128 v20, {vr(96+4*i,4)} offset:{L_Q+16*i}")
    A(f"""
    ds_add_u32 v4, v7 offset:{L_CNT}
    s_mov_b64 exec, -1
    s_mov_b32 s56, 0xff00ff00
    s_mov_b32 s57, 0xff00ff00
    """)
    A.lds_spin(L_CNT, 8, "v16", "v4")
    A.stamp(2)
    A(f"ds_read_b128 v[20:23], v8 offset:{L_Q}\ns_waitcnt lgkmcnt(0)")
    for i in range(4):
        A(f"v_cndmask_b32 v{24+i}, 0, v{20+i}, s[56:57]")
        A(f"v_cndmask_b32 v{20+i}, v{20+i}, 0, s[56:57]")
    A("s_waitcnt vmcnt(0)\ns_nop 0")
    D = [96, 32]
    def qk(z, i):
        u = i & 3
        if i < 4: A(f"v_mfma_f32_16x16x32_bf16 {vr(D[z]+4*u,4)}, v[20:23], {vr(32+32*z+8*u,4)}, 0")
        else: A(f"v_mfma_f32_16x16x32_bf16 {vr(D[z]+4*u,4)}, v[24:27], {vr(36+32*z+8*u,4)}, {vr(D[z]+4*u,4)}")
    def red(z, u):
        t = 112 + 4*z
        A(f"v_mov_b32_dpp v{t+u}, v{D[z]+4*u} quad_perm:[0,0,0,0] {DPPM}")
        for c in range(1, 4):
            A(f"v_add_f32_dpp v{t+u}, v{D[z]+4*u+c}, v{t+u} quad_perm:[{c},{c},{c},{c}] {DPPM}")
    for i in range(8): qk(0, i)
    for i in range(5): qk(1, i)
    for u in range(3):
        red(0, u); qk(1, 5+u)
    red(0, 3)
    for k, m in ((1, 58), (2, 60), (3, 62)):
        A(f"v_cndmask_b32 v112, v112, v{112+k}, s[{m}:{m+1}]")
    for u in range(4): red(1, u)
    A.stamp(3)
    for k, m in ((1, 58), (2, 60), (3, 62)):
        A(f"v_cndmask_b32 v116, v116, v{116+k}, s[{m}:{m+1}]")
    A.r1("v112", "v116")
    A("v_mul_f32 v112, 0x3db504f3, v112\nv_mul_f32 v116, 0x3db504f3, v116")
    A.r1("v112", "v116")
    A("v_max_f32 v113, v112, v116")
    A.row_reduce("v_max_f32", ["v113"])
    A(f"""
    s_mov_b32 exec_lo, 0x10001
    s_mov_b32 exec_hi, 0x10001
    ds_write_b32 v17, v113 offset:{L_MX}
    s_mov_b64 exec, -1
    ds_read_b32 v118, v4 offset:{L_CNT+28}
    v_mul_f32 v112, {hex(LOG2E)}, v112
    v_mul_f32 v116, {hex(LOG2E)}, v116
    s_mov_b32 s45, {hex(LOG2E)}
    """)
    A.spin_head("L_A_mx")
    A(f"""
    ds_read_b32 v113, v13 offset:{L_MX}
    s_waitcnt lgkmcnt(0)
    v_cmp_eq_u32 vcc, -1, v113
    s_cbranch_vccnz L_A_mx
    v_readfirstlane_b32 s67, v118
    """)
    A.row_reduce("v_max_f32", ["v113"])
    A(f"""
    v_fma_f32 v112, -v113, s45, v112
    v_fma_f32 v116, -v113, s45, v116
    v_exp_f32 v112, v112
    v_exp_f32 v116, v116
    s_nop 0
    v_cvt_pk_bf16_f32 v115, v112, v116
    ds_write_b16 v10, v115
    ds_write_b16_d16_hi v10, v115 offset:256
    v_add_f32 v112, v112, v116
    """)
    A.row_reduce("v_add_f32", ["v112"])
    A(f"""
    s_mov_b32 exec_lo, 0x10001
    s_mov_b32 exec_hi, 0x10001
    ds_write_b32 v17, v112 offset:{L_LS}
    s_mov_b64 exec, 1
    ds_add_u32 v4, v7 offset:{L_CNT+8}
    s_mov_b64 exec, -1
    v_mov_b32 v20, v113
    """)
    sm_idx(A, "v19", 112)
    def vreads3():
        for k in range(4):
            for half in range(2):
                A(f"ds_read_b64_tr_b16 {vr(32+4*k+2*half,2)}, v15 offset:{k*8192 + half*4096}")
    A("s_cmp_lt_u32 s67, 4\ns_cbranch_scc1 L_A_np")
    vreads3()
    A("L_A_np:")
    A.lds_spin(L_CNT+8, 8, "v16", "v4")
    A.stamp(4)
    for k in range(2):
        A(f"ds_read_b128 {vr(64+4*k,4)}, v12 offset:{L_P + (6+k)*128}")
    A(f"""
    s_cmp_lg_u32 s3, 0
    s_cbranch_scc1 L_A_nml
    ds_read_b32 v21, v13 offset:{L_LS}
    s_lshl_b32 s50, s4, 4
    s_add_u32 s50, s50, s5
    s_lshl_b32 s50, s50, 7
    s_add_u32 s50, s50, {WS_MLG}
    v_mov_b32 v24, s50
    v_mov_b32 v22, v20
    s_waitcnt lgkmcnt(0)
    """)
    A.row_reduce("v_add_f32", ["v21"])
    A("""
    v_mov_b32 v23, v21
    v_permlane16_swap_b32 v20, v22
    s_nop 0
    v_permlane16_swap_b32 v21, v23
    """)
    for r in range(20, 24): A.epack(f"v{r}", f"v{r}")
    A("s_mov_b64 exec, 1")
    A.dual_store("global_store_dwordx4", "v24", "v[20:23]")
    A("s_mov_b64 exec, -1")
    A.stamp(7)
    A("L_A_nml:")
    def vm(k, wait):
        A(f"s_waitcnt lgkmcnt({wait})")
        A(f"v_smfmac_f32_16x16x64_bf16 v[112:115], {vr(64+4*k,4)}, {vr(32+8*k,8)}, v19")
    def pd():
        A.lds_spin(L_CNT+32, 4, "v120", "v4")
        A(f"ds_read_b64 v[118:119], v14 offset:{L_PD}")
    A("s_cmp_lt_u32 s67, 4\ns_cbranch_scc1 L_A_slow")
    for k in range(2): vm(k, 1-k)
    A("L_A_pd:")
    pd()
    A("s_waitcnt lgkmcnt(0)\ns_branch L_A_fin\nL_A_slow:")
    A.spin_head("L_A_w")
    A("s_sleep 1")
    A(f"""
    ds_read2_b32 v[120:121], v4 offset0:{(L_CNT+28)//4} offset1:{(L_CNT+32)//4}
    s_waitcnt lgkmcnt(0)
    v_readfirstlane_b32 s44, v120
    v_readfirstlane_b32 s45, v121
    s_cmp_ge_u32 s45, 4
    s_cbranch_scc1 L_A_y
    s_cmp_lt_u32 s44, 4
    s_cbranch_scc1 L_A_w
    """)
    vreads3()
    for k in range(2): vm(k, 4-4*k)
    A(f"s_branch L_A_pd\nL_A_y:\nds_read_b64 v[118:119], v14 offset:{L_PD}\ns_cmp_ge_u32 s44, 4\ns_cbranch_scc1 L_A_y2")
    A.lds_spin(L_CNT+28, 4, "v120", "v4")
    A("L_A_y2:")
    vreads3()
    for k in range(2): vm(k, 4-4*k)
    A("s_nop 6\nL_A_fin:\ns_mov_b64 exec, 0xffff\nv_add_f32 v112, v112, v113\nv_add_f32 v113, v114, v115\nv_add_f32 v112, v112, v118\nv_add_f32 v113, v113, v119")
    A.epack("v116", "v112"); A.epack("v117", "v113")
    A.dual_store("global_store_dwordx2", "v6", "v[116:117]")
    A("s_mov_b64 exec, -1")
    A.stamp(6)
    if p2:
        A(f"""
        s_cmp_ge_u32 s3, {p2}
        s_cbranch_scc1 L_end
        s_lshl_b32 s44, s3, 4
        s_add_u32 s44, s44, s5                ; unit index 0..79 : tile = idx % 9, piece = 8 - idx / 9
        s_mul_i32 s45, s44, 0x1c72
        s_lshr_b32 s45, s45, 16
        s_mul_i32 s46, s45, 9
        s_sub_u32 s44, s44, s46
        s_mul_i32 s46, s4, 9
        s_add_u32 s44, s44, s46
        s_mul_i32 s44, s44, 9
        s_add_u32 s44, s44, 8
        s_sub_u32 s44, s44, s45
        s_lshl_b32 s44, s44, 13
        v_lshl_add_u32 v20, v1, 7, s44
        global_load_dword v21, v20, {sp(W2_)}{NT}
        s_waitcnt vmcnt(0)
        """)
    A("s_branch L_end")
    A(f"""
    L_AV:
    s_lshl_b32 s45, s48, 13
    s_mov_b32 s44, s49                    ; soffset
    v_lshrrev_b32 v5, 4, v1
    v_lshlrev_b32 v6, 1, v5
    v_and_b32 v8, 15, v1
    v_xor_b32 v6, v6, v8
    v_lshlrev_b32 v6, 4, v6
    v_lshl_or_b32 v5, v5, 8, v6
    v_xor_b32 v6, 128, v5
    s_waitcnt lgkmcnt(0)
    s_load_dword s6, {sp(WS_)}, {WS_EPOCH}
    """)
    A.srd(8, V_, 0x4000000)
    A("s_barrier")
    for hf in range(2):
        for q4 in range(2):
            A("s_mov_b32 m0, s45\ns_nop 0")
            for n in range(4):
                A(f"buffer_load_dwordx4 {'v6' if n & 1 else 'v5'}, s[8:11], s44 offen offset:{n*1024}{NT} lds")
            if q4 == 0: A("s_add_u32 s45, s45, 4096\ns_add_u32 s44, s44, 4096")
            elif hf == 0: A(f"s_add_u32 s45, s45, {4*8192 - 4096}\ns_add_u32 s44, s44, {(1 << CH) - 4096}")
    if stamps: A("s_waitcnt lgkmcnt(0)\nv_writelane_b32 v127, s98, 0")
    A.stamp(1)
    if pf:
        A(f"""
        s_cmp_lt_u32 s3, 11
        s_cbranch_scc1 L_AV_np
        s_mul_i32 s45, s5, 5
        s_add_u32 s45, s45, s3
        s_lshl_b32 s50, s45, 6
        s_sub_u32 s50, s50, {10*64}
        s_lshl_b32 s44, s51, 3
        v_add_u32 v5, s44, v4
        v_add_u32 v20, s50, v1
        v_mul_u32_u24 v21, 0x1c72, v20
        v_lshrrev_b32 v21, 16, v21
        v_mul_u32_u24 v22, 9, v21
        v_sub_u32 v22, v20, v22
        v_mul_u32_u24 v21, 9216, v21
        v_lshl_add_u32 v21, v22, 7, v21
        s_mul_i32 s50, s4, 1152
        v_add_u32 v21, s50, v21
        global_load_dword v29, v21, {sp(W1_)}{NT}
        s_mov_b64 exec, 1
        s_waitcnt vmcnt(9)
        ds_add_u32 v5, v7 offset:{L_CNT+16}
        s_waitcnt vmcnt(1)
        ds_add_u32 v5, v7 offset:{L_CNT+20}
        s_mov_b64 exec, -1
        """)
        A.stamp(5)
        A("s_waitcnt vmcnt(0) lgkmcnt(0)\ns_branch L_end\nL_AV_np:")
    if at == 3: A("""
        s_and_b32 s44, s5, 3
        s_cmp_lg_u32 s44, 0
        s_cbranch_scc1 L_AV_ns
        s_cmp_lg_u32 s3, 12
        s_cbranch_scc1 L_AV_ns
        s_lshl_b32 s44, s4, 5
        s_add_u32 s94, s94, s44
        s_addc_u32 s95, s95, 0
        s_mov_b32 s44, 1
        s_atomic_add s44, s[94:95], 0
        L_AV_ns:
        """)
    A(f"""
    s_lshl_b32 s44, s51, 3
    v_add_u32 v5, s44, v4
    s_mov_b64 exec, 1
    s_waitcnt vmcnt(8)
    ds_add_u32 v5, v7 offset:{L_CNT+16}
    """)
    if at == 1: A("""
        s_and_b32 s44, s5, 3
        s_cmp_lg_u32 s44, 0
        s_cbranch_scc1 L_AV_ns
        s_cmp_lg_u32 s3, 8
        s_cbranch_scc1 L_AV_ns
        s_lshl_b32 s44, s4, 5
        s_add_u32 s94, s94, s44
        s_addc_u32 s95, s95, 0
        s_mov_b32 s44, 1
        s_atomic_add s44, s[94:95], 0
        L_AV_ns:
        """)
    A(f"""
    s_waitcnt vmcnt(0)
    {f's_sleep {dv}' if dv else ''}
    ds_add_u32 v5, v7 offset:{L_CNT+20}
    s_mov_b64 exec, -1
    """)
    if at == 2: A("""
        s_and_b32 s44, s5, 3
        s_cmp_lg_u32 s44, 0
        s_cbranch_scc1 L_AV_ns
        s_cmp_lg_u32 s3, 8
        s_cbranch_scc1 L_AV_ns
        s_lshl_b32 s44, s4, 5
        s_add_u32 s94, s94, s44
        s_addc_u32 s95, s95, 0
        s_mov_b32 s44, 1
        s_atomic_add s44, s[94:95], 0
        L_AV_ns:
        """)
    A.stamp(5)
    A(f"""
    s_waitcnt lgkmcnt(0)
    s_cmp_ge_u32 s3, 12
    s_cbranch_scc1 L_end
    s_and_b32 s45, s3, 3
    s_lshl_b32 s45, s45, 1
    v_bfe_u32 v5, v1, 2, 3
    v_xor_b32 v5, s45, v5
    v_lshlrev_b32 v5, 5, v5
    v_lshrrev_b32 v6, 2, v1
    v_lshl_or_b32 v5, v6, 8, v5
    v_lshl_or_b32 v5, v9, 3, v5
    v_xor_b32 v6, 32, v5
    v_bfe_u32 v3, v1, 1, 1
    v_mul_u32_u24 v3, {PSTR}, v3
    v_and_b32 v2, 48, v1
    v_add3_u32 v3, v3, v2, v4
    v_and_b32 v2, 1, v1
    v_lshl_add_u32 v3, v2, 6, v3
    v_lshl_add_u32 v2, v8, 3, v4
    s_lshl_b32 s45, s45, 7
    v_add_u32 v2, s45, v2
    """)
    sm_idx(A, 'v126', 8, 8)
    def B(t, ks): return 16 + 16*(ks>>1) + 8*t + 4*(ks&1)
    def tr(ks0, ks1):
        for ks in range(ks0, ks1):
            for t in range(2):
                for half in range(2):
                    A(f"ds_read_b64_tr_b16 {vr(B(t,ks)+2*half,2)}, v{5+t} offset:{(ks&7)*8192 + half*4096}")
    def chain(ks0, ks1):
        c0 = ks0//2; n = (ks1 - ks0)//2
        free = [112, 116, 120]; loc = {}; issued = 0
        def issue():
            nonlocal issued
            while free and issued < n:
                loc[issued] = free.pop(0)
                A(f"ds_read_b128 {vr(loc[issued],4)}, v3 offset:{L_P + (c0+issued)*128}")
                issued += 1
        issue()
        for i in range(n):
            ks = ks0 + 2*i
            A(f"s_waitcnt lgkmcnt({issued - i - 1})")
            for t in range(2):
                A(f"v_smfmac_f32_16x16x64_bf16 {vr(8+4*t,4)}, {vr(loc[i],4)}, {vr(B(t,ks),8)}, v126")
            free += [B(0, ks), B(0, ks+1), loc[i]]
            issue()
    A.lds_spin(L_CNT+20, 4, "v124", "v4")
    tr(0, 8)
    A("v_add_u32 v5, 0x10000, v5\nv_add_u32 v6, 0x10000, v6")
    A.spin_head("L_AV_w")
    A("s_sleep 1")
    A(f"""
    ds_read2_b32 v[124:125], v4 offset0:{(L_CNT+8)//4} offset1:{(L_CNT+24)//4}
    s_waitcnt lgkmcnt(0)
    v_readfirstlane_b32 s44, v125
    v_readfirstlane_b32 s45, v124
    s_cmp_ge_u32 s44, 4
    s_cbranch_scc1 L_AV_x
    s_cmp_lt_u32 s45, 8
    s_cbranch_scc1 L_AV_w
    """)
    chain(0, 8)
    A.lds_spin(L_CNT+24, 4, "v124", "v4")
    tr(8, 12)
    chain(8, 12)
    A("s_branch L_AV_f\nL_AV_x:")
    tr(8, 12)
    A.lds_spin(L_CNT+8, 8, "v124", "v4")
    chain(0, 12)
    A(f"""
    L_AV_f:
    s_mov_b64 exec, 0xffff
    s_nop 5
    v_add_f32 v8, v8, v9
    v_add_f32 v9, v10, v11
    v_add_f32 v12, v12, v13
    v_add_f32 v13, v14, v15
    ds_write_b64 v2, v[8:9] offset:{L_PD}
    ds_write_b64 v2, v[12:13] offset:{L_PD+128}
    s_mov_b64 exec, 1
    ds_add_u32 v4, v7 offset:{L_CNT+32}
    s_mov_b64 exec, -1
    s_waitcnt lgkmcnt(0)
    """)
    A.stamp(8)
    A("s_branch L_end")

    A("L_W:")
    if stamps: A("v_writelane_b32 v127, s98, 0")
    A.stamp(1)
    A(f"""
    v_mov_b32 v18, {L_WCNT}
    ds_write2_b32 v18, v3, v3 offset1:1
    ds_write_b32 v18, v3 offset:8
    v_lshrrev_b32 v8, 5, v0
    v_lshlrev_b32 v8, 6, v8
    v_bfe_u32 v9, v0, 2, 2
    v_lshl_or_b32 v8, v9, 4, v8
    v_bfe_u32 v9, v0, 4, 1
    v_lshl_or_b32 v8, v9, 3, v8
    v_and_b32 v9, 3, v0
    v_lshl_or_b32 v8, v9, 1, v8
    v_add_u32 v8, {L_ACT}, v8
    v_lshrrev_b32 v2, 6, v0
    v_lshlrev_b32 v2, 7, v2
    v_and_b32 v10, 32, v0
    v_or_b32 v2, v2, v10
    v_and_b32 v10, 13, v0
    v_lshl_or_b32 v2, v10, 1, v2
    v_bfe_u32 v10, v0, 1, 1
    v_lshl_or_b32 v2, v10, 6, v2
    v_bfe_u32 v10, v0, 4, 1
    v_lshl_or_b32 v2, v10, 2, v2
    v_add_u32 v2, {L_ACT}, v2
    s_and_b32 s46, s3, 3
    v_bfe_u32 v10, v1, 3, 2
    v_xor_b32 v10, s46, v10
    v_lshlrev_b32 v10, 5, v10
    v_lshrrev_b32 v11, 2, v1
    v_lshl_or_b32 v10, v11, 7, v10
    v_lshl_or_b32 v10, v9, 3, v10
    v_and_b32 v11, 48, v1
    v_add_u32 v11, {L_ACT}, v11
    v_and_b32 v13, 1, v1
    v_mul_u32_u24 v12, {4*ASTR}, v13
    v_add_u32 v12, v11, v12
    v_lshl_add_u32 v11, v13, 6, v11
    v_and_b32 v13, 4, v1
    v_mul_u32_u24 v13, {ASTR}, v13
    v_add_u32 v13, v11, v13
    v_mov_b32 v17, 1
    s_cmp_eq_u32 s5, 8
    s_cbranch_scc1 L_KT
    s_cmp_gt_u32 s5, 8
    s_cbranch_scc1 L_M
    s_waitcnt lgkmcnt(0)
    """)
    A.mktag()
    A(f"""
    s_barrier
    {'s_waitcnt vmcnt(0)' + chr(10) + 's_branch L_end' if diag & 4 else ''}
    s_cmp_ge_u32 s3, 9
    s_cbranch_scc1 L_B_nh
    s_mul_i32 s44, s4, 4608
    s_add_u32 s44, s44, {WS_HL}
    v_lshl_add_u32 v15, v0, 3, s44
    global_load_dwordx2 v[24:25], v15, {sp(WS_)} sc1
    s_waitcnt vmcnt(0)
    """)
    A.lds_inc(0, "v18", "v17")
    A.stamp(2)
    if nb1: vtail(nb1, 2, 0)
    A("s_mov_b32 s7, 0\ns_branch L_B_chk")
    A.dual_head("L_B_h", ["v15"], init=False)
    A(f"s_sleep {ps}")
    A(f"global_load_dwordx2 v[24:25], v15, {sp(WS_)} sc1\ns_waitcnt vmcnt(0)\nL_B_chk:")
    A.tagcheck(["v25"], None, None, "L_B_h")
    A(f"""
    ds_write_b16 v2, v24
    ds_write_b16_d16_hi v2, v24 offset:{4*ASTR}
    s_waitcnt lgkmcnt(0)
    """)
    A.stamp(3)
    A(f"""
    s_barrier
    s_branch L_S5
    L_B_nh:
    """)
    if ql and qpt:
        A(f"""
        s_cmp_lg_u32 s3, 9
        s_cbranch_scc1 L_B_npt
        v_bfe_u32 v15, v1, 4, 1
        v_lshlrev_b32 v15, 17, v15            ; b*16384*8
        v_and_b32 v16, 15, v1
        v_lshl_or_b32 v15, v16, 7, v15
        s_lshl_b32 s44, s47, 11
        s_add_u32 s44, s44, {WS_QL}
        v_add_u32 v15, s44, v15
        global_load_dword v16, v15, {sp(WS_)}{' nt' if qpt == 2 else ' sc1'}
        L_B_npt:
        """)
    A("s_waitcnt vmcnt(0)")
    A.lds_inc(0, "v18", "v17")
    A(f"""
    s_cmp_ge_u32 s3, 12
    s_cbranch_scc1 L_B_m
    s_waitcnt lgkmcnt(0)
    s_barrier
    s_branch L_S5
    L_B_m:
    """)
    A.lds_spin(0, 16, "v16", "v18")
    A.stamp(2)
    A("v_mov_b32 v15, v10")
    bfrags(A, "v15")
    A(f"""
    s_lshl_b32 s44, s47, 8
    s_lshl_b32 s45, s46, 6
    s_add_u32 s44, s44, s45
    s_add_u32 s44, s44, {WS_QG}
    v_and_b32 v15, 15, v1
    v_lshlrev_b32 v15, 2, v15
    v_bfe_u32 v16, v1, 4, 1
    v_lshl_or_b32 v15, v16, 14, v15
    v_add_u32 v15, s44, v15
    """)
    if not ql: pass
    elif qlay:
        A(f"""
        v_subrev_u32 v16, {WS_QG}, v15
        v_and_b32 v17, 0x78, v16
        v_and_b32 v16, 0xffffff80, v16
        v_lshl_or_b32 v16, v16, 3, v17
        v_and_b32 v17, 1, v1
        v_lshl_add_u32 v16, v17, 7, v16
        v_lshrrev_b32 v17, 5, v1
        v_lshl_add_u32 v16, v17, 8, v16
        v_add_u32 v16, {WS_QL}, v16
        """)
    else:
        A(f"""
    v_and_b32 v16, -8, v15
    v_and_b32 v17, 1, v1
    v_lshl_add_u32 v16, v17, 15, v16
    v_lshrrev_b32 v17, 5, v1
    v_lshl_add_u32 v16, v17, 16, v16
    v_add_u32 v16, {WS_QL - WS_QG}, v16
""")
    A(f"""
    """)
    sm_idx(A, "v19")
    A("s_waitcnt lgkmcnt(0)\ns_barrier")
    gemv_sm(A, "v13", "v19")
    A(f"""
    s_nop 7
    v_add_f32 v20, v20, v21
    s_nop 1
    v_mov_b32_dpp v21, v20 quad_perm:[1,1,3,3] {DPPM}
    v_mov_b32_dpp v20, v20 quad_perm:[0,0,2,2] {DPPM}
    v_mov_b32 v23, {TAG}
    v_cvt_pk_bf16_f32 v22, v20, v21
    """)
    if ql:
        for i in range(nr//4):
            A(f"global_store_dwordx2 v16, v[22:23], {sp(WS_)}")
            if i < nr//4 - 1: A(f"v_add_u32 v16, {512 if qlay else 4*32768}, v16")
    A(f"""
    s_mov_b32 exec_lo, 0x55555555
    s_mov_b32 exec_hi, 0
    global_store_dwordx2 v15, v[22:23], {sp(WS_)} sc1
    s_mov_b64 exec, -1
    """)
    A.stamp(4)
    A("s_branch L_S5")

    A(f"""
    L_M:
    """)
    A(f"""
    s_cmp_ge_u32 s3, 9
    s_cbranch_scc1 L_M_c
    v_lshlrev_b32 v15, 1, v0
    global_load_ushort v36, v15, {sp(C_)}
    global_load_ushort v37, v15, {sp(C_)} offset:1152
    L_M_c:
    s_cmp_lt_u32 s55, {NJ}
    s_cbranch_scc1 L_M_a
    s_waitcnt {'lgkmcnt(0)' if m2 else 'vmcnt(0) lgkmcnt(0)'}
    """)
    A.mktag()
    A(f"""
    s_branch L_M_bar1
    L_M_a:
    s_cmp_ge_u32 s3, 9
    s_cbranch_scc1 L_M_bar0
    s_waitcnt vmcnt(0)
    v_lshlrev_b32 v36, 16, v36
    v_lshlrev_b32 v37, 16, v37
    v_mul_f32 v34, 0xbfb8aa3b, v36
    v_mul_f32 v35, 0xbfb8aa3b, v37
    v_exp_f32 v34, v34
    v_exp_f32 v35, v35
    s_nop 0
    v_add_f32 v34, 1.0, v34
    v_add_f32 v35, 1.0, v35
    v_rcp_f32 v34, v34
    v_rcp_f32 v35, v35
    s_nop 0
    v_mul_f32 v36, v36, v34
    v_mul_f32 v37, v37, v35
    v_cvt_pk_bf16_f32 v36, v36, v37
    ds_write_b16 v8, v36
    ds_write_b16_d16_hi v8, v36 offset:{4*ASTR}
    L_M_bar0:
    s_mul_i32 s44, s48, {RW*2}
    v_add_u32 v15, s44, v12
    s_mul_i32 s44, s48, {AGS}
    s_lshl_b32 s45, s49, 9
    s_add_u32 s44, s44, s45
    s_lshl_b32 s45, s46, 7
    s_add_u32 s44, s44, s45
    s_add_u32 s44, s44, {WS_AG}
    v_lshl_add_u32 v18, v1, {4 if x4 else 3}, s44
    s_waitcnt vmcnt(0) lgkmcnt(0)
    """)
    A.mktag()
    A("s_barrier")
    A.stamp(2)
    A(f"s_cmp_lt_u32 s3, 12\ns_cbranch_scc1 L_M_bar1")
    bfrags(A, "v10", 52, RW//32)
    gemv_mfma(A, "v15", nks=RW//32)
    A("s_mov_b64 exec, 0xffff\ns_nop 6\nv_add_u32 v20, 4, v20\nv_add_u32 v21, 4, v21")
    A.epack("v22", "v20", 7); A.epack("v23", "v21", 7)
    if x4:
        A(f"s_nop 0\nv_mov_b32_dpp v24, v22 row_ror:8 {DPPM}\nv_mov_b32_dpp v25, v23 row_ror:8 {DPPM}\ns_mov_b64 exec, 0xff")
        A(f"global_store_dwordx4 v18, v[22:25], {sp(WS_)} sc1\ns_mov_b64 exec, -1")
    else:
        A(f"global_store_dwordx2 v18, v[22:23], {sp(WS_)} sc1\ns_mov_b64 exec, -1")
    A.stamp(3)
    A(f"""
    L_M_bar1:
    s_sub_u32 s44, s5, 9
    s_lshl_b32 s50, s44, 1                ; slot0 = 2(u-9)
    s_add_u32 s51, s50, 1
    s_add_u32 s45, s4, 44
    s_cmp_ge_u32 s4, 4
    s_cselect_b32 s45, s45, 255
    s_cmp_eq_u32 s5, 13
    s_cselect_b32 s51, s45, s51
    s_lshl_b32 s44, s4, 1
    s_add_u32 s44, s44, s5
    s_lshl_b32 s44, s44, 1
    s_sub_u32 s44, s44, {28 - 16}
    s_add_u32 s45, s44, 1
    s_cmp_ge_u32 s5, 14
    s_cselect_b32 s50, s44, s50
    s_cselect_b32 s51, s45, s51
    v_mul_u32_u24 v19, 1152, v4
    v_lshl_add_u32 v19, v6, 4, v19
    s_mul_i32 s44, s4, {512*1152}
    v_add_u32 v19, s44, v19
    """)
    A.srd(12, WO_, 4096*1152)
    A("s_barrier")
    if pt:
        A(f"""
        s_cmp_ge_u32 s3, 3
        s_cbranch_scc1 L_M_pt
        s_cmp_lg_u32 s5, 13
        s_cbranch_scc1 L_M_pt
        s_lshl_b32 s44, s4, 14
        s_lshl_b32 s45, s3, 13
        s_add_u32 s44, s44, s45
        s_add_u32 s44, s44, {WS_OG}
        s_lshl_b32 s45, s4, 11
        s_add_u32 s45, s45, {WS_MLG}
        s_cmp_eq_u32 s3, 2
        s_cselect_b32 s44, s45, s44
        s_cselect_b32 s45, 15, 63
        v_and_b32 v16, s45, v1
        v_lshl_add_u32 v16, v16, 7, s44
        global_load_dword v20, v16, {sp(WS_)} sc1
        L_M_pt:
        """)
    if pp:
        A(f"""
        s_cmp_lg_u32 s5, {13 if pp == 1 else 15}
        s_cbranch_scc1 L_M_pp
        s_sub_u32 s44, s3, 3
        s_cmp_ge_u32 s44, 5
        s_cbranch_scc1 L_M_pp
        v_subrev_u32 v16, 192, v0
        v_min_u32 v16, 287, v16
        v_lshlrev_b32 v16, 7, v16
        v_add_u32 v16, {WS_PX}, v16
        global_load_dword v20, v16, {sp(WS_)} sc1
        L_M_pp:
        """)
    for sl, (reg, buf) in enumerate((("s50", L_BUF0), ("s51", L_BUF1))):
        A(f"""
        s_lshl_b32 s52, {reg}, 7
        s_cmp_ge_u32 {reg}, 16
        s_cbranch_scc1 L_sl{sl}_m
        v_add_u32 v16, s52, v19
        """)
        dma_tile(A, 12, "v16", 1152, buf, 64, '' if wm & 2 else NT)
        A(f"""
        s_branch L_sl{sl}_d
        L_sl{sl}_m:
        s_cmp_eq_u32 {reg}, 255
        s_cbranch_scc1 L_sl{sl}_d
        s_add_u32 s52, s52, {2304 - 16*128}
        v_add_u32 v16, s52, v14
        """)
        dma_tile(A, 8, "v16", 6912, buf, 72, '' if wm & 2 else NT)
        A(f"L_sl{sl}_d:")
    if tw < 16: A(f"""
        s_cmp_lg_u32 s3, {tw}
        s_cbranch_scc1 L_M_tr2
        s_sub_u32 s52, s5, 9
        s_bitcmp0_b32 {tm}, s52
        s_cbranch_scc1 L_M_tr2
        s_lshl_b32 s52, s4, 3
        s_add_u32 s52, s52, s5
        s_lshl_b32 s52, s52, 7
        s_add_u32 s52, s52, {WS_TR - 9*128}
        v_mov_b32 v21, s52
        v_mov_b32 v22, {TAG}
        s_mov_b64 exec, 1
        s_waitcnt vmcnt({tk})
        global_store_dword v21, v22, {sp(WS_)}
        s_mov_b64 exec, -1
        L_M_tr2:
        """)
    A(f"""
    s_waitcnt vmcnt(0)
    s_cmp_ge_u32 s3, 9
    s_cbranch_scc1 L_M_ld
    s_cmp_lt_u32 s55, {NJ}
    s_cbranch_scc1 L_M_ld
    v_lshlrev_b32 v36, 16, v36
    v_lshlrev_b32 v37, 16, v37
    v_mul_f32 v34, 0xbfb8aa3b, v36
    v_mul_f32 v35, 0xbfb8aa3b, v37
    v_exp_f32 v34, v34
    v_exp_f32 v35, v35
    s_nop 0
    v_add_f32 v34, 1.0, v34
    v_add_f32 v35, 1.0, v35
    v_rcp_f32 v34, v34
    v_rcp_f32 v35, v35
    s_nop 0
    v_mul_f32 v36, v36, v34
    v_mul_f32 v37, v37, v35
    v_cvt_pk_bf16_f32 v36, v36, v37
    ds_write_b16 v2, v36
    ds_write_b16_d16_hi v2, v36 offset:{4*ASTR}
    s_waitcnt lgkmcnt(0)
    L_M_ld:
    s_barrier
    """)
    A.stamp(4)
    if diag & 8: A("s_branch L_end")
    A(f"""
    s_cmp_lt_u32 s3, 8
    s_cbranch_scc1 L_H_p
    s_cmp_ge_u32 s3, 12
    s_cselect_b32 s50, s51, s50
    s_cselect_b32 s44, {L_BUF1}, 0
    v_add_u32 v17, s44, v10
    s_cmp_lt_u32 s50, 16
    s_cbranch_scc1 L_A_s4m
    s_cmp_eq_u32 s50, 255
    s_cbranch_scc1 L_H_x
    s_lshl_b32 s44, s50, 9
    s_lshl_b32 s45, s46, 7
    s_add_u32 s44, s44, s45
    s_add_u32 s44, s44, {WS_MG - 16*512}
    v_lshl_add_u32 v18, v1, 3, s44
    """)
    bfrags(A, "v17")
    A(f"v_bfe_u32 v15, v1, 1, 1\nv_mul_u32_u24 v15, {4*ASTR}, v15\nv_add_u32 v15, v11, v15")
    sm_idx(A, "v16")
    gemv_sm(A, "v15", "v16")
    A(f"""
    s_mov_b64 exec, 0xffff
    s_nop 6
    v_add_f32 v20, v20, v21
    v_add_f32 v21, v22, v23
    v_cvt_pk_bf16_f32 v22, v20, v21
    v_mov_b32 v23, {TAG}
    global_store_dwordx2 v18, v[22:23], {sp(WS_)} sc1
    s_mov_b64 exec, -1
    """)
    A.stamp(5)
    A(f"""
    L_H_x:
    s_cmp_eq_u32 s5, 15
    s_cbranch_scc1 L_XR
    s_branch L_end
    L_H_p:
    """)
    if trig and not at and tw >= 16:
        A(f"""
        s_cmp_lg_u32 s3, 0
        s_cbranch_scc1 L_M_tr
        s_lshl_b32 s52, s4, 3
        s_add_u32 s52, s52, s5
        s_lshl_b32 s52, s52, 7
        s_add_u32 s52, s52, {WS_TR - 9*128}
        v_mov_b32 v20, s52
        v_mov_b32 v19, {TAG}
        global_store_dword v20, v19, {sp(WS_)}
        L_M_tr:
        """)
    if hw: A("s_cmp_eq_u32 s5, 14\ns_cbranch_scc1 L_HW")
    A("s_cmp_ge_u32 s5, 14\ns_cbranch_scc1 L_H_x")
    A(f"""
    s_lshl_b32 s50, s4, 4
    s_lshr_b32 s45, s3, 1
    s_lshl_b32 s45, s45, 2
    s_add_u32 s50, s50, s45
    s_and_b32 s44, s3, 1                  ; dh
    s_lshl_b32 s51, s50, 7
    s_add_u32 s51, s51, {WS_MLG}
    v_bfe_u32 v18, v1, 2, 2
    v_lshlrev_b32 v18, 7, v18
    v_lshl_add_u32 v18, v9, 2, v18
    v_add_u32 v18, s51, v18
    s_lshl_b32 s51, s50, 10
    s_lshl_b32 s45, s44, 9
    s_add_u32 s51, s51, s45
    s_add_u32 s51, s51, {WS_OG}
    v_lshl_add_u32 v17, v1, 3, s51
    s_bfe_u32 s45, s3, 0x10001
    s_mul_i32 s45, s45, {ASTR}
    s_lshr_b32 s51, s3, 2
    s_lshl_b32 s51, s51, 9
    s_add_u32 s45, s45, s51
    s_and_b32 s51, s3, 6
    s_lshl_b32 s51, s51, 7
    s_sub_u32 s45, s45, s51
    s_add_u32 s45, s45, {ASTR}
    v_add_u32 v19, s45, v2
    """)
    def oloads():
        for s_ in range(4):
            A(f"global_load_dwordx2 {vr(32+2*s_,2)}, v17, {sp(WS_)} offset:{s_*1024} sc1")
    A.dual_head("L_A_ml", ["v17", "v18"])
    A(f"""
    global_load_dword v20, v18, {sp(WS_)} sc1
    s_waitcnt vmcnt(0)
    v_xor_b32 v20, {ETAG}, v20
    v_and_b32 v21, 63, v20
    v_cmp_ne_u32 vcc, 0, v21
    s_cbranch_vccnz L_A_ml
    """)
    oloads()
    A(f"""
    v_max_f32_dpp v21, v20, v20 row_ror:4 {DPPM}
    v_mov_b32_dpp v23, v20 quad_perm:[1,1,3,3] {DPPM}
    s_nop 0
    v_max_f32_dpp v21, v21, v21 row_ror:8 {DPPM}
    v_sub_f32 v22, v20, v21
    v_mul_f32 v22, {hex(LOG2E)}, v22
    v_exp_f32 v22, v22
    s_nop 0
    v_mul_f32 v23, v22, v23
    s_nop 1
    v_add_f32_dpp v23, v23, v23 row_ror:4 {DPPM}
    s_nop 1
    v_add_f32_dpp v23, v23, v23 row_ror:8 {DPPM}
    v_rcp_f32 v23, v23
    s_nop 0
    v_mul_f32 v22, v22, v23
    """)
    A.stamp(7)
    A("s_branch L_A_ochk")
    A.dual_head("L_A_h3", ["v17"], init=False)
    oloads()
    A("L_A_ochk:")
    for s_ in range(4):
        a, b = 32+2*s_, 33+2*s_
        A(f"s_waitcnt vmcnt({3-s_})\nv_xor_b32 v{a}, {ETAG}, v{a}\nv_xor_b32 v{b}, {ETAG}, v{b}")
        A(f"v_or_b32 v20, v{a}, v{b}" if s_ == 0 else f"v_or3_b32 v20, v{a}, v{b}, v20")
        op = "v_mul_f32_dpp" if s_ == 0 else "v_fmac_f32_dpp"
        A(f"{op} v30, v22, v{a} row_newbcast:{4*s_} {DPPM}\n{op} v31, v22, v{b} row_newbcast:{4*s_+2} {DPPM}")
    A("v_and_b32 v20, 63, v20\nv_cmp_ne_u32 vcc, 0, v20\ns_cbranch_vccnz L_A_h3")
    A(f"""
    v_cvt_pk_bf16_f32 v30, v30, v31
    ds_write_b16 v19, v30
    ds_write_b16_d16_hi v19, v30 offset:256
    s_waitcnt lgkmcnt(0)
    s_barrier
    """)
    if fl: A(f"""
        s_cmp_lg_u32 s5, 9
        s_cbranch_scc1 L_H_nf
        s_cmp_gt_u32 s3, 1
        s_cbranch_scc1 L_H_nf
        v_cmp_gt_u32 vcc, 72, v0
        s_and_saveexec_b64 s[44:45], vcc
        {f's_sleep {fpos}' if fpos else ''}
        global_store_dword v40, v41, {sp(WS_)} sc1
        s_mov_b64 exec, -1
        L_H_nf:
        """)
    A.stamp(8)
    if hw:
        A(f"""
        L_HW:
        s_mul_i32 s44, s3, 6
        s_add_u32 s44, s44, s5
        s_sub_u32 s44, s44, 9
        s_cmp_ge_u32 s44, 8
        s_cbranch_scc1 L_end
        s_mul_i32 s44, s44, 4608
        s_add_u32 s44, s44, {WS_PX + 124}
        v_min_u32 v16, 35, v1
        v_lshl_add_u32 v16, v16, 7, s44
        s_mov_b32 s7, 0
        L_HW_p:
        global_load_dword v17, v16, {sp(WS_)} sc1
        s_add_u32 s7, s7, 1
        s_cmp_gt_u32 s7, {NLOC}
        s_cbranch_scc1 L_end
        s_waitcnt vmcnt(0)
        v_and_b32 v17, 63, v17
        v_cmp_ne_u32 vcc, {ETAG}, v17
        s_cbranch_vccnz L_HW_p
        """)
    A("s_branch L_end")
    A(f"""
    L_A_s4m:
    v_bfe_u32 v18, v1, 1, 1
    v_mul_u32_u24 v18, {ASTR}, v18
    v_add_u32 v18, v18, v11
    v_add_u32 v18, {ASTR}, v18
    s_mul_i32 s45, s4, 4608
    s_lshl_b32 s44, s50, 9
    s_add_u32 s45, s45, s44
    s_lshl_b32 s44, s46, 7
    s_add_u32 s45, s45, s44
    s_add_u32 s45, s45, {WS_PC if pc else WS_PX}
    v_lshl_add_u32 v19, {'v7' if pc else 'v1'}, {4 if x4 else 3}, s45
    {'v_mul_u32_u24 v16, 36864, v4' + chr(10) + 'v_add_u32 v19, v19, v16' + chr(10) + 's_mov_b32 s56, 0xff00ff00' + chr(10) + 's_mov_b32 s57, 0xff00ff00' if pc else ''}
    {f's_mov_b64 exec, 0xffff' + chr(10) + f'global_load_dword v125, v19, {sp(WS_)} sc1' + chr(10) + 's_mov_b64 exec, -1' if ppt else ''}
    """)
    bfrags(A, "v17", 56, 16)
    sm_idx(A, "v16")
    A("s_waitcnt lgkmcnt(0)\ns_barrier")
    gemv_sm(A, "v18", "v16", vb=56, depth=8, nch=8)
    A("s_mov_b64 exec, 0xffff\ns_nop 6\nv_add_f32 v20, v20, v21\nv_add_f32 v21, v22, v23")
    A.epack("v24", "v20"); A.epack("v25", "v21")
    if pc:
        A(f"""
        v_mov_b32 v26, v24
        v_mov_b32 v27, v25
        v_mov_b32_dpp v24, v24 row_ror:8 row_mask:0xf bank_mask:0xc
        v_mov_b32_dpp v25, v25 row_ror:8 row_mask:0xf bank_mask:0xc
        v_mov_b32_dpp v26, v26 row_ror:8 row_mask:0xf bank_mask:0x3
        v_mov_b32_dpp v27, v27 row_ror:8 row_mask:0xf bank_mask:0x3
        global_store_dwordx4 v19, v[24:27], {sp(WS_)} sc1
        """)
    elif x4:
        A(f"s_nop 0\nv_mov_b32_dpp v26, v24 row_ror:8 {DPPM}\nv_mov_b32_dpp v27, v25 row_ror:8 {DPPM}\ns_mov_b64 exec, 0xff")
        A(f"global_store_dwordx4 v19, v[24:27], {sp(WS_)} sc1\ns_mov_b64 exec, -1")
    else:
        A(f"global_store_dwordx2 v19, v[24:25], {sp(WS_)} sc1\ns_mov_b64 exec, -1")
    A.stamp(9)
    if wb0: A("s_cmp_lg_u32 s5, 13\ns_cbranch_scc1 L_end\ns_cmp_lg_u32 s3, 8\ns_cbranch_scc1 L_end\ns_waitcnt vmcnt(0)\nbuffer_wbl2 sc1\ns_waitcnt vmcnt(0)")
    A("s_branch L_end")

    A("L_KT:\ns_waitcnt lgkmcnt(0)")
    A.mktag()
    A(f"""
    s_cmp_ge_u32 s3, 9
    s_cbranch_scc1 L_S5
    v_lshlrev_b32 v15, 1, v0
    global_load_ushort v33, v15, {sp(X_)}
    global_load_ushort v34, v15, {sp(X_)} offset:1152
    s_mul_i32 s44, s4, 4608
    s_add_u32 s44, s44, {WS_HL}
    v_lshl_add_u32 v55, v0, 3, s44
    global_load_dword v57, v55, {sp(WS_)} sc1
    v_mul_u32_u24 v15, 36, v1
    global_load_dwordx4 v[24:27], v15, {sp(X_)}
    global_load_dwordx4 v[28:31], v15, {sp(X_)} offset:16
    global_load_dword v32, v15, {sp(X_)} offset:32
    v_lshlrev_b32 v15, 3, v0
    """)
    if x4: A("""    v_and_b32 v15, -16, v0
    v_lshlrev_b32 v15, 3, v15
    v_lshl_or_b32 v15, v7, 4, v15
    v_and_b32 v39, 8, v0
    v_or_b32 v15, v15, v39
""")
    A(f"""
    v_add_u32 v52, {WS_AG + 2304}, v15
    v_add_u32 v53, {WS_AG + 2304 + AGS}, v15
    {f'v_add_u32 v54, {WS_AG + 2304 + 2*AGS}, v15' if ks == 3 else ''}
    """)
    def ag_loads():
        for k in range(ks):
            A(f"global_load_dwordx2 {vr(40+4*k,2)}, v{52+k}, {sp(WS_)} offset:-2304 sc1")
            A(f"global_load_dwordx2 {vr(42+4*k,2)}, v{52+k}, {sp(WS_)} offset:2304 sc1")
    A(f"""
    s_mov_b32 s44, 0x3f803f80
    v_mov_b32 v35, 0
    v_mov_b32 v36, 0
    s_waitcnt vmcnt(0)
    v_mov_b32 v61, {TAG}
    """)
    for i in range(9):
        A(f"v_dot2_f32_bf16 v35, v{24+i}, s44, v35\nv_dot2_f32_bf16 v36, v{24+i}, v{24+i}, v36")
    A("s_nop 2")
    A.row_reduce("v_add_f32", ["v35", "v36"])
    A(f"""
    v_mov_b32 v37, v35
    v_mov_b32 v38, v36
    s_nop 0
    v_permlane16_swap_b32 v35, v37
    v_permlane16_swap_b32 v36, v38
    v_add_f32 v35, v35, v37
    v_add_f32 v36, v36, v38
    v_mul_f32 v35, {INV576}, v35
    v_mul_f32 v36, {INV576}, v36
    v_fma_f32 v36, -v35, v35, v36
    """)
    ln_finish(A, "v35", "v36", "v38")
    A("""
    v_readlane_b32 s48, v35, 0
    v_readlane_b32 s49, v35, 32
    v_readlane_b32 s50, v38, 0
    v_readlane_b32 s51, v38, 32
    v_lshlrev_b32 v33, 16, v33
    v_lshlrev_b32 v34, 16, v34
    v_subrev_f32 v33, s48, v33
    v_subrev_f32 v34, s49, v34
    """)
    A.r1("v33", "v34")
    A("v_mul_f32 v33, s50, v33\nv_mul_f32 v34, s51, v34")
    A.r1("v33", "v34")
    A("s_mov_b32 s7, 0")
    if hs: A(f"s_sleep {hs}")
    A(f"L_HR_h:\ns_add_u32 s7, s7, 1\ns_cmp_gt_u32 s7, {SPIN}\ns_cbranch_scc1 L_end\ns_sleep {hp}")
    ag_loads()
    A("s_waitcnt vmcnt(0)")
    A.etagcheck([f"v{40+i}" for i in range(4*ks)], "v39", "L_HR_h", "s100", 7)
    for i in range(4): A(f"v_add_f32 v{40+i}, v{40+i}, v{44+i}")
    if ks == 3:
        for i in range(4): A(f"v_add_f32 v{40+i}, v{40+i}, v{48+i}")
    A.r1("v40", "v41", "v42", "v43")
    A("v_add_f32 v42, 1.0, v42\nv_add_f32 v43, 1.0, v43")
    A.r1("v42", "v43")
    A("v_mul_f32 v42, v33, v42\nv_mul_f32 v43, v34, v43")
    A.r1("v42", "v43")
    A(f"""
    v_add_f32 v42, v42, v40
    v_add_f32 v43, v43, v41
    v_cvt_pk_bf16_f32 v60, v42, v43
    """)
    if dq: A(f"s_sleep {dq}")
    A.dual_store("global_store_dwordx2", "v55", "v[60:61]")
    A.stamp(3)
    A("s_branch L_S5")
    A("L_XR:")
    if diag & 8: A("s_branch L_end")
    A(f"""
    v_lshlrev_b32 v16, 2, v0
    v_min_u32 v16, 1532, v16
    v_add_u32 v16, {L_ST}, v16
    ds_write_b32 v16, v3
    v_mov_b32 v21, {L_WCNT}
    v_mov_b32 v22, 1
    s_waitcnt lgkmcnt(0)
    s_barrier
    s_cmp_eq_u32 s3, 9
    s_cbranch_scc1 L_XR_stat
    s_cmp_gt_u32 s3, 9
    s_cbranch_scc1 L_end
    v_lshlrev_b32 v16, 1, v0
    global_load_ushort v80, v16, {sp(X_)}
    global_load_ushort v81, v16, {sp(X_)} offset:1152
    v_lshlrev_b32 v16, 3, v0
    v_add_u32 v17, {WS_MG + 2304}, v16
    v_add_u32 v18, {WS_MG + 9216}, v16
    """)
    if x4: A("""    v_and_b32 v16, -16, v0
    v_lshlrev_b32 v16, 3, v16
    v_lshl_or_b32 v16, v7, 4, v16
    v_and_b32 v30, 8, v0
    v_or_b32 v16, v16, v30
""")
    if pc: A("s_mul_i32 s44, s4, 36864\nv_add_u32 v16, s44, v16")
    for k in range(4): A(f"v_add_u32 v{88+k}, {(WS_PC if pc else WS_PX) + 2304 + k*9216}, v16")
    A(f"""
    s_mul_i32 s44, s4, 4608
    s_lshl_b32 s44, s44, 1
    s_add_u32 s45, s44, {WS_RG}
    v_lshl_add_u32 v26, v0, 4, s45
    s_add_u32 s45, s44, {WS_XA}
    v_lshl_add_u32 v27, v0, 4, s45
    v_and_b32 v24, 48, v1
    v_lshlrev_b32 v24, 2, v24
    s_lshl_b32 s44, s3, 2
    s_add_u32 s44, s44, {L_ST}
    v_add_u32 v24, s44, v24
    s_mov_b32 s56, 0x00010001
    s_mov_b32 s57, 0x00010001
    """)
    def partial_stats(off, r):
        for i in range(6): A(f"v_permlane32_swap_b32 v{r+2*i}, v{r+1+2*i}")
        for i in range(6): A(f"v_add_f32 v{r+2*i}, v{r+2*i}, v{r+1+2*i}")
        A("s_nop 0")
        for i in range(3): A(f"v_permlane16_swap_b32 v{r+4*i}, v{r+2+4*i}")
        for i in range(3): A(f"v_add_f32 v{r+4*i}, v{r+4*i}, v{r+2+4*i}")
        A.row_reduce("v_add_f32", [f"v{r}", f"v{r+4}", f"v{r+8}"])
        A(f"""
        s_mov_b64 exec, s[56:57]
        ds_write_b32 v24, v{r} offset:{off}
        ds_write_b32 v24, v{r+4} offset:{off+256}
        ds_write_b32 v24, v{r+8} offset:{off+512}
        s_mov_b64 exec, -1
        """)
    A(f"""
    s_mov_b32 s7, 0
    s_movk_i32 s60, {0x100 if mgf else 0x1ff}
    s_branch L_XR_px
    """)
    for k in range(8):
        A(f"L_px_i{k}:")
        A(f"global_load_dwordx2 {vr(96+2*k,2)}, v{88+k//2}, {sp(WS_)} offset:{2304 if k & 1 else -2304} sc1")
        A(f"s_branch L_px_l{k}")
    for k in range(8):
        A(f"""
        L_px_k{k}:
        v_xor_b32 v{96+2*k}, {ETAG}, v{96+2*k}
        v_xor_b32 v{97+2*k}, {ETAG}, v{97+2*k}
        v_or_b32 v30, v{96+2*k}, v{97+2*k}
        v_and_b32 v30, 63, v30
        v_cmp_ne_u32 vcc, 0, v30
        s_cbranch_vccnz L_px_c{k}
        s_andn2_b32 s60, s60, {1 << k}
        s_cbranch_scc0 L_XR_done
        s_branch L_px_c{k}
        """)
    A("L_px_mg:")
    for j, (r, o) in enumerate((("v17", -2304), ("v17", 2304), ("v18", 0))):
        A(f"global_load_dwordx2 {vr((40, 34, 42)[j],2)}, {r}, {sp(WS_)} offset:{o} sc1")
    A("s_waitcnt vmcnt(0)")
    A.tagcheck(["v41", "v35", "v43", "v43"], "v30", "v31", "L_px_m")
    A(f"""
    s_bitset0_b32 s60, 8
    v_lshlrev_b32 v82, 16, v40
    v_and_b32 v83, 0xffff0000, v40        ; ga
    v_and_b32 v43, 0xffff0000, v42
    v_lshlrev_b32 v42, 16, v42
    v_add_f32 v42, 1.0, v42
    v_add_f32 v43, 1.0, v43
    v_cvt_pk_bf16_f32 v32, v42, v43       ; g
    v_mov_b32 v33, {TAG}
    """)
    A(f"""
    global_store_dwordx4 v26, v[32:35], {sp(WS_)}
    v_mov_b32 v36, v32
    v_mov_b32 v37, v33
    v_mov_b32 v38, v34
    v_mov_b32 v39, v35
    v_lshlrev_b32 v80, 16, v80
    v_lshlrev_b32 v81, 16, v81
    v_lshlrev_b32 v84, 16, v32
    v_and_b32 v85, 0xffff0000, v32
    v_lshlrev_b32 v86, 16, v34
    v_and_b32 v87, 0xffff0000, v34
    v_mov_b32 v44, v84
    v_mov_b32 v45, v85
    v_mul_f32 v46, v84, v84
    v_mul_f32 v47, v85, v85
    v_mov_b32 v48, v86
    v_mov_b32 v49, v87
    v_mul_f32 v50, v86, v86
    v_mul_f32 v51, v87, v87
    v_mul_f32 v52, v84, v86
    v_mul_f32 v53, v85, v87
    v_mov_b32 v54, 0
    v_mov_b32 v55, 0
    """)
    partial_stats(0, 44)
    A.lds_inc(4, "v21", "v22")
    A.stamp(6)
    A("s_movk_i32 s60, 0xff\nL_XR_px:" if mgf else "s_branch L_px_m2\nL_XR_px:")
    for k in range(8):
        A(f"s_bitcmp1_b32 s60, {k}\ns_cbranch_scc1 L_px_i{k}\nL_px_l{k}:")
    A(f"""
    s_add_u32 s7, s7, 1
    s_cmp_gt_u32 s7, {SPIN}
    s_cbranch_scc1 L_end
    s_bitcmp1_b32 s60, 8
    s_cbranch_scc1 L_px_mg
    L_px_m:
    s_waitcnt vmcnt(0)
    L_px_m2:
    """)
    for k in range(8):
        A(f"s_bitcmp1_b32 s60, {k}\ns_cbranch_scc1 L_px_k{k}\nL_px_c{k}:")
    A("s_cmp_lg_u32 s60, 0\ns_cbranch_scc1 L_XR_px\nL_XR_done:")
    A.stamp(10)
    for i in range(4): A(f"v_pk_add_f32 {vr(96+2*i,2)}, {vr(96+2*i,2)}, {vr(104+2*i,2)}")
    for i in range(2): A(f"v_pk_add_f32 {vr(96+2*i,2)}, {vr(96+2*i,2)}, {vr(100+2*i,2)}")
    A("v_pk_add_f32 v[96:97], v[96:97], v[98:99]")
    A.r1("v96", "v97")
    A("v_pk_mul_f32 v[96:97], v[82:83], v[96:97]")
    A.r1("v96", "v97")
    A(f"""
    v_pk_add_f32 v[98:99], v[80:81], v[96:97]
    v_cvt_pk_bf16_f32 v96, 0, v98
    v_cvt_pk_bf16_f32 v97, 0, v99         ; x1
    v_cvt_pk_bf16_f32 v34, v98, v99
    v_pk_mul_f32 v[102:103], v[96:97], v[84:85]
    v_cvt_pk_bf16_f32 v32, v102, v103
    global_store_dwordx4 v27, v[32:35], {sp(WS_)}
    v_cvt_pk_bf16_f32 v100, 0, v102
    v_cvt_pk_bf16_f32 v101, 0, v103       ; a
    v_pk_mul_f32 v[98:99], v[96:97], v[96:97]
    v_pk_mul_f32 v[102:103], v[100:101], v[100:101]
    v_pk_mul_f32 v[104:105], v[100:101], v[84:85]
    v_pk_mul_f32 v[106:107], v[100:101], v[86:87]
    """)
    partial_stats(768, 96)
    A("s_waitcnt lgkmcnt(0)\ns_barrier")
    A("s_barrier")
    A(f"v_add_u32 v27, {WS_GOFF}, v27\nglobal_store_dwordx4 v27, v[32:35], {sp(WS_)} sc1")
    A(f"v_add_u32 v26, {WS_GOFF}, v26\nglobal_store_dwordx4 v26, v[36:39], {sp(WS_)} sc1")
    A.stamp(11)
    A(f"""
    s_branch L_end
    L_XR_stat:
    v_lshlrev_b32 v22, 2, v1
    v_add_u32 v22, {L_ST}, v22
    v_lshrrev_b32 v20, 5, v1
    s_lshl_b32 s44, s4, 7
    s_add_u32 s44, s44, {WS_CF}
    v_lshl_add_u32 v20, v20, 4, s44
    global_load_dword v23, v20, {sp(WS_)} sc1
    """)
    def gather_stats(off, cnt, r, sleep):
        if sleep: A.lds_spin(cnt, 9, "v23", "v21")
        else: A("s_barrier")
        A(f"""
        ds_read_b32 v{r}, v22 offset:{off}
        ds_read_b32 v{r+2}, v22 offset:{off+256}
        ds_read_b32 v{r+4}, v22 offset:{off+512}
        s_waitcnt lgkmcnt(0)
        """)
        A.row_reduce("v_add_f32", [f"v{r}", f"v{r+2}", f"v{r+4}"])
        k3 = f2h((2.0 if sleep else -2.0)/576)
        for q in (r, r+2, r+4): A(f"v_mul_f32 v{q+1}, {k3 if q == r+4 else INV576}, v{q}")
        for q in (r, r+2, r+4): A(f"v_mul_f32 v{q}, {k3 if q == r+4 else INV576}, v{q}")
        for q in (r, r+2, r+4): A(f"v_permlane16_swap_b32 v{q}, v{q+1}")
    A("s_waitcnt vmcnt(0)")
    gather_stats(0, 4, 100, True)
    gather_stats(768, 8, 84, False)
    A(f"""
    v_fma_f32 v85, -v84, v84, v85
    v_max_f32 v85, 0, v85
    v_cvt_pk_bf16_f32 v85, 0, v85
    v_add_f32 v85, 0x3727c5ac, v85
    v_cvt_pk_bf16_f32 v85, 0, v85
    v_sqrt_f32 v85, v85
    v_cvt_pk_bf16_f32 v84, 0, v84         ; mu1
    v_cvt_pk_bf16_f32 v85, 0, v85
    v_rcp_f32 v90, v85                    ; r1
    v_fma_f32 v88, v84, v101, v88
    v_fma_f32 v86, -v84, v100, v86
    v_fma_f32 v89, v84, v104, v89
    v_fma_f32 v87, v84, v88, v87
    v_fma_f32 v86, v90, v86, v102         ; mean2
    v_fma_f32 v87, v90, v87, -v89
    v_fma_f32 v87, v90, v87, v103         ; E[h2^2]
    v_fma_f32 v87, -v86, v86, v87         ; var2
    v_max_f32 v87, 0, v87
    v_cvt_pk_bf16_f32 v87, 0, v87
    v_add_f32 v87, 0x3727c5ac, v87
    v_cvt_pk_bf16_f32 v87, 0, v87
    v_sqrt_f32 v87, v87
    v_cvt_pk_bf16_f32 v86, 0, v86         ; mu2
    v_cvt_pk_bf16_f32 v87, 0, v87
    v_rcp_f32 v94, v87                    ; r2 = c2
    v_mul_f32 v93, -v84, v90
    v_mul_f32 v92, v90, v94               ; c0
    v_mul_f32 v95, -v86, v94              ; c3
    v_mul_f32 v93, v93, v94               ; c1
    """)
    for r in range(92, 96): A.epack(f"v{r}", f"v{r}")
    A("s_mov_b32 exec_lo, 1\ns_mov_b32 exec_hi, 1")
    A.dual_store("global_store_dwordx4", "v20", "v[92:95]")
    A("s_mov_b64 exec, -1\ns_barrier")
    if wb: A(f"s_sleep {wb}\nbuffer_wbl2 sc1\ns_waitcnt vmcnt(0)")
    A.stamp(12)
    A("s_branch L_end")

    A(f"""
    L_S5:
    {'s_branch L_end' if diag & 8 else ''}
    s_mul_i32 s47, s4, 9
    """)
    if sw:
        A(f"""
        s_lshr_b32 s44, s{W1_}, 7
        s_add_u32 s44, s44, s4
        s_sub_u32 s44, 3, s44
        s_and_b32 s44, s44, 7
        s_cmp_eq_u32 s5, s44
        s_cselect_b32 s45, 8, s5
        s_cmp_eq_u32 s5, 8
        s_cselect_b32 s45, s44, s45
        s_add_u32 s47, s47, s45               ; f
        """)
    else:
        A("s_add_u32 s47, s47, s5")
    A.srd(8, W1_, 576*9216)
    A.srd(12, W2_, 4608*1152)
    A(f"""
    s_lshl_b32 s44, s47, 7
    v_mul_u32_u24 v14, 9216, v4
    v_lshl_add_u32 v14, v6, 4, v14
    v_add_u32 v14, s44, v14
    s_lshl_b32 s45, s46, 5
    s_add_u32 s44, s44, s45
    v_and_b32 v15, 15, v1
    v_lshl_add_u32 v15, v15, 1, s44
    global_load_ushort v19, v15, {sp(B1_)}
    """)
    if not w16: A(f"""
    v_mul_u32_u24 v15, 0x38f, v0
    v_lshrrev_b32 v15, 16, v15
    v_mul_u32_u24 v16, 72, v15
    v_sub_u32 v16, v0, v16
    v_and_b32 v17, 6, v15
    v_xor_b32 v16, v16, v17
    v_mul_u32_u24 v15, 1152, v15
    v_lshl_add_u32 v15, v16, 4, v15
    """)
    if w16:
        for i in range(5):
            A(f"""
            v_add_u32 v16, {1024*i}, v0
            v_mul_u32_u24 v17, 0xe39, v16
            v_lshrrev_b32 v17, 18, v17
            v_and_b32 v17, 6, v17
            v_xor_b32 v16, v16, v17
            v_lshlrev_b32 v{96+i}, 4, v16
            """)
    A(f"""
    s_mul_i32 s49, s4, 9216
    s_add_u32 s45, s49, {WS_RG}
    v_lshl_add_u32 v80, v0, 4, s45
    s_add_u32 s45, s49, {WS_XA}
    v_lshl_add_u32 v81, v0, 4, s45
    v_lshrrev_b32 v20, 2, v1
    v_mul_u32_u24 v20, 1152, v20
    v_lshl_add_u32 v20, v9, 3, v20
    v_add_u32 v20, {L_BUF1}, v20
    v_bfe_u32 v17, v1, 3, 2
    s_mul_i32 s48, s3, 3
    """)
    for i in range(3):
        A(f"s_add_u32 s44, s48, {i}\nv_xor_b32 v{92+i}, s44, v17\nv_lshl_add_u32 v{92+i}, v{92+i}, 5, v20")
    A(f"""
    s_mul_i32 s44, s48, {2*4608}
    s_lshl_b32 s45, s47, 6
    s_add_u32 s44, s44, s45
    s_add_u32 s44, s44, {WS_FG}
    v_mul_u32_u24 v20, 4608, v4
    v_lshl_add_u32 v20, v7, 3, v20
    v_add_u32 v76, s44, v20
    v_lshlrev_b32 v79, 6, v9
    v_and_b32 v20, 48, v1
    v_add_u32 v79, v79, v20
    v_add_u32 v79, {L_H1}, v79
    s_lshl_b32 s44, s47, 3
    v_add_u32 v77, s44, v7                ; col
    v_lshrrev_b32 v78, 5, v1              ; b
    v_mul_u32_u24 v82, 1152, v78
    v_lshl_add_u32 v82, v77, 1, v82
    v_lshlrev_b32 v83, 1, v77
    s_cmp_lg_u32 s3, 10
    s_cbranch_scc1 L_S5_nf
    global_load_ushort v84, v83, {sp(B2_)}
    {f'global_load_ushort v85, v82, {sp(OUT_)}' if ot else ''}
    L_S5_nf:
    v_lshlrev_b32 v83, 3, v77
    v_add_u32 v83, {WS_MG + 1728*8}, v83
    s_add_u32 s44, s49, {WS_XA + 8}
    v_lshl_add_u32 v77, v77, 4, s44
    v_lshlrev_b32 v78, 4, v78             ; 16*b
    s_mul_i32 s44, s47, 4608
    s_add_u32 s44, s44, {WS_FG + 2048}
    v_lshl_add_u32 v88, v1, 3, s44
    v_mov_b32 v21, {L_WCNT}
    v_mov_b32 v22, 1
    """)
    if nb2:
        A(f"""
        s_barrier
        s_cmp_eq_u32 s5, 8
        s_cbranch_scc1 L_vt2
        s_lshr_b32 s44, s{W1_}, 7
        s_add_u32 s44, s44, s47
        s_and_b32 s44, s44, 7
        s_cmp_eq_u32 s44, 3
        s_cbranch_scc1 L_vt2
        """)
        vtail(nb2, 3, 0)
        A("L_vt2:")
    if trig:
        A(f"""
        s_cmp_lg_u32 s3, 11
        s_cbranch_scc1 L_S5_tb
        s_lshr_b32 s44, s{W1_}, 7
        s_add_u32 s44, s44, s47
        s_and_b32 s44, s44, 7
        s_cmp_eq_u32 s44, {3 if c3 else 9}
        s_cbranch_scc1 L_S5_tb
        """)
        if at:
            A(f"""
            s_lshl_b32 s44, s4, 5
            v_mov_b32 v16, s44
            s_mov_b32 s7, 0
            L_S5_trig:
            s_sleep {ps}
            global_load_dword v17, v16, s[94:95] sc1
            s_add_u32 s7, s7, 1
            s_cmp_gt_u32 s7, {NLOC//2}
            s_cbranch_scc1 L_S5_tb
            s_waitcnt vmcnt(0)
            v_readfirstlane_b32 s44, v17
            s_cmp_lt_u32 s44, {an}
            """)
        else:
            A(f"""
        s_lshl_b32 s44, s4, 10
        s_add_u32 s44, s44, {WS_TR}
        v_lshl_add_u32 v16, v7, 7, s44
        s_mov_b32 s7, 0
        L_S5_trig:
        s_sleep {ps}
        global_load_dword v17, v16, {sp(WS_)} sc1
        s_add_u32 s7, s7, 1
        s_cmp_gt_u32 s7, {NLOC//2}
        s_cbranch_scc1 L_S5_tb
        s_waitcnt vmcnt(0)
        v_cmp_eq_u32 vcc, {TAG}, v17
        s_and_b32 s44, vcc_lo, {tm}
        s_bcnt1_i32_b32 s44, s44
        s_cmp_lt_u32 s44, {trig}
""")
        A(f"""
        s_cbranch_scc1 L_S5_trig
        L_S5_tb:
        """)
    A("s_barrier")
    A.stamp(5)
    dma_tile(A, 8, "v14", 9216, L_BUF0, 72, '' if wm & 4 else NT)
    A(f"""
    s_barrier
    """)
    if w16:
        A(f"s_mul_i32 s44, s47, {64*1152}\ns_lshl_b32 s45, s3, 10\ns_add_u32 s45, s45, {L_BUF1 + 4*16384}")
        A("s_cmp_ge_u32 s3, 8\ns_cbranch_scc1 L_S5_w4")
        for i in (4, 3, 2, 1, 0):
            A(f"s_mov_b32 m0, s45\ns_nop 0\nbuffer_load_dwordx4 v{96+i}, s[12:15], s44 offen{NT} lds")
            if i == 4: A("L_S5_w4:")
            if i: A("s_sub_u32 s45, s45, 16384")
        A("s_cmp_ge_u32 s3, 9\ns_cbranch_scc1 L_S5_hi")
        A(f"global_load_dwordx4 v[24:27], v80, {sp(WS_)} sc1\ns_waitcnt vmcnt(5)")
    else:
        A(f"""
    s_cmp_ge_u32 s3, 9
    s_cbranch_scc1 L_S5_hi
    s_mul_i32 s44, s47, {64*1152}
    s_lshl_b32 s45, s3, 10
    s_add_u32 s45, s45, {L_BUF1}
    """)
        for o in range(8):
            A(f"s_mov_b32 m0, s45\ns_add_u32 s45, s45, 9216")
            A(f"buffer_load_dwordx4 v15, s[12:15], s44 offen{'' if wm & 8 else NT} lds")
            A(f"s_add_u32 s44, s44, 9216")
        A(f"global_load_dwordx4 v[24:27], v80, {sp(WS_)} sc1\ns_waitcnt vmcnt(9)")
    A.lds_inc(4, "v21", "v22")
    if stamps and not LITE:
        A("s_waitcnt vmcnt(0)"); A.stamp(15)
    A("s_mov_b32 s7, 0\ns_branch L_S5_rgc")
    A.dual_head("L_S5_rg", ["v80", "v81"], init=False)
    A(f"s_sleep {ps}\nglobal_load_dwordx4 v[24:27], v80, {sp(WS_)} sc1\nL_S5_rgc:\ns_waitcnt vmcnt(0)")
    A.tagcheck(["v25", "v27"], "v30", "v31", "L_S5_rg")
    A(f"""
    v_mov_b32 v35, 0x3f80
    ds_write_b16 v2, v24 offset:{ASTR}
    ds_write_b16_d16_hi v2, v24 offset:{5*ASTR}
    ds_write_b16 v2, v26 offset:{2*ASTR}
    ds_write_b16_d16_hi v2, v26 offset:{6*ASTR}
    ds_write_b16 v2, v35 offset:{3*ASTR}
    ds_write_b16 v2, v35 offset:{7*ASTR}
    s_waitcnt lgkmcnt(0)
    {f's_sleep {ds5}' if ds5 else ''}
    s_barrier
    global_load_dwordx2 v[24:25], v81, {sp(WS_)} sc1
    """)
    A.stamp(6)
    def w2frags():
        for i in range(3):
            for ks in range(2):
                for half in range(2):
                    A(f"ds_read_b64_tr_b16 {vr(52+i*8+ks*4+half*2,2)}, v{92+i} offset:{(ks*32+half*16)*1152}")
    w2frags()
    A("s_branch L_S5_xac")
    A.dual_head("L_S5_xa", ["v81"], init=False)
    A(f"global_load_dwordx2 v[24:25], v81, {sp(WS_)} sc1\nL_S5_xac:\ns_waitcnt vmcnt(0)")
    A.tagcheck(["v25"], None, None, "L_S5_xa")
    A(f"""
    ds_write_b16 v2, v24
    ds_write_b16_d16_hi v2, v24 offset:{4*ASTR}
    s_waitcnt lgkmcnt(0)
    s_barrier
    """)
    A.stamp(7)
    A(f"""
    s_branch L_S5_g2
    L_S5_hi:
    s_waitcnt vmcnt({4 if w16 else 0})
    """)
    A.lds_inc(4, "v21", "v22")
    A(f"""
    s_cmp_ge_u32 s3, 12
    s_cbranch_scc1 L_S5_g1
    s_waitcnt vmcnt(0)
    s_barrier
    """)
    w2frags()
    A(f"""
    s_cmp_lg_u32 s3, 10
    s_cbranch_scc1 L_S5_h2
    global_load_dwordx2 v[86:87], v83, {sp(WS_)} sc1
    s_barrier
    s_mov_b32 s7, 0
    s_branch L_S5_gb1
    """)
    A.dual_head("L_S5_gb", ["v77"], init=False)
    A(f"""
    global_load_dwordx2 v[86:87], v83, {sp(WS_)} sc1
    L_S5_gb1:
    global_load_dwordx2 v[90:91], v77, {sp(WS_)} sc1
    s_waitcnt vmcnt(0)
    """)
    A.tagcheck(["v87", "v91"], "v30", "v31", "L_S5_gb")
    A(f"""
    v_lshrrev_b32 v86, v78, v86
    v_lshrrev_b32 v85, v78, v90
    v_lshlrev_b32 v86, 16, v86            ; gb
    v_lshlrev_b32 v85, 16, v85            ; x1
    v_lshlrev_b32 v84, 16, v84            ; b2
    s_branch L_S5_g2
    L_S5_h2:
    s_barrier
    L_S5_g2:
    s_mov_b32 s56, 0xffff0000
    s_mov_b32 s57, 0
    s_mov_b32 s58, 0
    s_mov_b32 s59, 0xffff
    """)
    sm_idx(A, "v36", 40, 12)
    A(f"""
    s_waitcnt lgkmcnt(0)
    s_barrier
    ds_read_b128 v[32:35], v79
    s_waitcnt lgkmcnt(0)
    """)
    for i in range(3):
        A(f"v_smfmac_f32_16x16x64_bf16 {vr(40+4*i,4)}, v[32:35], {vr(52+8*i,8)}, v36")
    A(f"""
    s_mov_b32 exec_hi, 0xffff
    s_nop 5
    """)
    for r in range(4): A(f"v_cndmask_b32 v{28+r}, v{40+r}, v{44+r}, s[56:57]")
    for r in range(4): A(f"v_cndmask_b32 v{28+r}, v{28+r}, v{48+r}, s[58:59]")
    A("v_add_f32 v28, v28, v29\nv_add_f32 v29, v30, v31")
    A.epack("v28", "v28"); A.epack("v29", "v29")
    A(f"global_store_dwordx2 v76, v[28:29], {sp(WS_)} sc1\ns_mov_b64 exec, -1")
    A.stamp(11)
    A(f"""
    s_cmp_lg_u32 s3, 10
    s_cbranch_scc1 L_end
    {f's_sleep {fgs}' if fgs else 's_waitcnt vmcnt(0)'}
    """)
    A.spin_head("L_S5_fg")
    for i in range(9):
        A(f"global_load_dwordx2 {vr(40+2*i,2)}, v88, {sp(WS_)} offset:{i*512-2048} sc1")
    for i in range(9):
        a, b = 40+2*i, 41+2*i
        A(f"s_waitcnt vmcnt({8-i})\nv_xor_b32 v{a}, {ETAG}, v{a}\nv_xor_b32 v{b}, {ETAG}, v{b}")
        if i == 0: A(f"v_or_b32 v30, v{a}, v{b}")
        else: A(f"v_or3_b32 v30, v{a}, v{b}, v30\nv_add_f32 v40, v40, v{a}\nv_add_f32 v41, v41, v{b}")
    A("v_and_b32 v30, 63, v30\nv_cmp_ne_u32 vcc, 0, v30\ns_cbranch_vccnz L_S5_fg")
    A.stamp(12)
    A(f"""
    v_permlane32_swap_b32 v40, v41
    v_add_f32 v40, v40, v41
    v_mov_b32 v42, v40
    s_nop 1
    v_permlane16_swap_b32 v40, v42
    v_add_f32 v40, v40, v42
    s_nop 1
    v_add_f32_dpp v40, v40, v40 row_ror:8 {DPPM}
    """)
    A.r1("v40")
    A("v_add_f32 v40, v84, v40")
    A.r1("v40")
    A("v_mul_f32 v40, v86, v40")
    A.r1("v40")
    A(f"""
    v_add_f32 v40, v85, v40
    v_cvt_pk_bf16_f32 v40, v40, v40
    s_mov_b32 exec_lo, 0xff
    s_mov_b32 exec_hi, 0xff
    global_store_short v82, v40, {sp(OUT_)}{' sc1' if osc else ''}
    s_cmp_lg_u32 s47, 0
    s_cbranch_scc1 L_S5_fin
    s_mov_b64 exec, 1
    v_mov_b32 v33, {TAG}
    global_store_dword v3, v33, {sp(WS_)} sc1
    L_S5_fin:
    s_mov_b64 exec, -1
    """)
    if probe:
        base, stride = {1: (0xB0000, 128*72), 2: (0x400000, 65536), 3: (0x1000000, 0x200000), 4: (0xB0000, 128*72)}[probe]
        A(f"s_lshl_b32 s44, s47, 7\ns_add_u32 s44, s44, {base}\nv_mov_b32 v60, s44\ns_waitcnt vmcnt(0)\ns_mov_b64 exec, 1")
        for i in range(8):
            if probe == 1: A(f"global_store_dword v60, v3, {sp(WS_)} sc1")
            else: A(f"global_load_dword v61, v60, {sp(WS_)} nt")
            A(f"s_waitcnt vmcnt(0)\nv_add_u32 v60, {stride}, v60")
        A("s_mov_b64 exec, -1")
    A.stamp(13)
    A("s_branch L_end")
    A("L_S5_g1:\nv_mov_b32 v15, v10")
    A.lds_spin(4, 16, "v16", "v21")
    A.stamp(14)
    bfrags(A, "v15")
    k0_ = -2.0 * 1.4426950408889634 * 0.7978845608028654
    A(f"""
    v_lshrrev_b32 v16, 4, v1
    s_lshl_b32 s44, s4, 7
    s_add_u32 s44, s44, {WS_CF}
    v_lshl_add_u32 v18, v16, 3, s44
    v_lshrrev_b32 v15, 5, v1
    v_lshlrev_b32 v15, 7, v15
    v_and_b32 v16, 13, v1
    v_lshl_or_b32 v15, v16, 1, v15
    v_bfe_u32 v16, v1, 1, 1
    v_lshl_or_b32 v15, v16, 6, v15
    s_lshr_b32 s44, s46, 1
    s_lshl_b32 s44, s44, 5
    s_and_b32 s45, s46, 1
    s_lshl_b32 s45, s45, 2
    s_add_u32 s44, s44, s45
    s_add_u32 s44, s44, {L_H1}
    v_add_u32 v15, s44, v15
    v_lshlrev_b32 v19, 16, v19
    v_bfe_u32 v16, v1, 1, 3
    v_mul_u32_u24 v16, {ASTR}, v16
    v_add_u32 v16, v11, v16
    v_mov_b32 v17, {f2h(k0_)}
    """)
    sm_idx(A, "v14")
    A("s_waitcnt vmcnt(0) lgkmcnt(0)\ns_barrier\ns_barrier")
    cfl = f"global_load_dwordx2 v[124:125], v18, {sp(WS_)} sc1"
    gemv_sm(A, "v16", "v14", mid=(cfm, cfl))
    A.stamp(9)
    A("s_mov_b32 s7, 0\ns_nop 6\nv_add_f32 v20, v20, v21\nv_add_f32 v22, v22, v23\ns_branch L_S5_cfc")
    A.dual_head("L_S5_cf", ["v18"], init=False)
    A(f"{cfl}\nL_S5_cfc:\ns_waitcnt vmcnt(0)")
    A.etagcheck(["v124", "v125"], "v30", "L_S5_cf")
    A.stamp(8)
    A(f"""
    v_mul_f32 v20, v20, v124
    v_fmac_f32 v20, v22, v125
    v_mov_b32 v21, v20
    s_nop 1
    v_permlane16_swap_b32 v20, v21
    v_add_f32 v20, v20, v21
    """)
    A.r1("v20")
    A("v_add_f32 v20, v20, v19")
    A.r1("v20")
    A(f"""
    v_mul_f32 v21, v20, v20
    v_fmamk_f32 v21, v21, {f2h(k0_*0.044715)}, v17
    v_mul_f32 v21, v21, v20
    v_exp_f32 v21, v21
    s_nop 0
    v_add_f32 v21, 1.0, v21
    v_rcp_f32 v21, v21
    s_mov_b32 exec_lo, 0xffff
    s_mov_b32 exec_hi, 0xffff
    v_mul_f32 v21, v21, v20
    v_cvt_pk_bf16_f32 v21, v21, v21
    ds_write_b16 v15, v21
    s_mov_b64 exec, -1
    s_waitcnt lgkmcnt(0)
    s_barrier
    """)
    A.stamp(10)
    A("L_end:")
    if dbg:
        maps = {"A": {1: 4, 2: 5, 4: 6, 7: 7, 9: 8, 10: 9, 12: 14}, "B": {4: 3, 5: 10, 6: 11, 8: 12, 11: 13}, "M": {3: 2, 5: 15}}
        A(f"""
        s_mov_b64 exec, -1
        s_lshl_b32 s44, 1, s3
        s_and_b32 s44, s44, {(1<<0)|(1<<9)|(1<<12)|(1<<15)}
        s_cbranch_scc0 L_exit
        s_load_dwordx2 s[46:47], s[0:1], 104
        v_mov_b32 v125, 0x400
        v_readlane_b32 s44, v127, 0
        s_nop 3
        s_not_b32 s44, s44
        v_writelane_b32 v127, s44, 15
        v_writelane_b32 v125, 4, 0
        v_writelane_b32 v125, 0, 15
        s_lshr_b32 s45, s2, 3
        s_cmp_lt_u32 s45, 16
        s_cbranch_scc1 L_dbg_A
        s_cmp_lt_u32 s45, 25
        s_cbranch_scc1 L_dbg_B
        """)
        for nm in ("M", "B", "A"):
            A(f"L_dbg_{nm}:")
            for st, sl in maps[nm].items(): A(f"v_writelane_b32 v125, {sl*4}, {st}")
            A("s_branch L_dbg_go")
        A(f"""
        L_dbg_go:
        s_waitcnt lgkmcnt(0)
        v_cmp_gt_u32 vcc, 0x100, v125
        s_and_saveexec_b64 s[48:49], vcc
        global_atomic_umax v125, v127, s[46:47]
        s_endpgm
        """)
    elif stamps:
        if LITE: A("s_cmp_lg_u32 s3, 10\ns_cbranch_scc1 L_exit")
        A(f"""
        s_mov_b64 exec, 0xffff
        s_lshl_b32 s44, s2, 4
        s_add_u32 s44, s44, s3
        s_lshl_b32 s44, s44, 6
        s_add_u32 s44, s44, {WS_STAMP}
        v_lshl_add_u32 v126, v1, 2, s44
        global_store_dword v126, v127, {sp(WS_)}{' sc1' if LITE else ''}
        """)
    A("L_exit:\ns_endpgm\nL_codeend:")
    A.footer(128, 102)
    return A

HEAD = """; Fused adaLN + sliding-window GQA decode attention + channel MLP in one persistent launch (gfx950).
"""
if __name__ == "__main__":
    out = sys.argv[1]
    kw = {}
    for o in sys.argv[2:]:
        if "=" in o:
            k, v = o.split("="); kw[k] = int(v)
        elif o == "stamps": kw["stamps"] = True
        elif o == "lite": kw["stamps"] = True; LITE = True
        elif o == "nont": kw["nt"] = ""
    A = build(**kw)
    open(out, "w").write(HEAD + A.text())
```

```python
import sys, struct
from asmlib import Asm, NAME

WS_EPOCH = 0x0
WS_QG    = 0x4000
WS_TR    = 0x18000
WS_FL    = 0x1C000
WS_PX    = 0x20000
WS_AG    = 0x30000
AGS = 1152*8
WS_MG    = 0x40000
WS_FG    = 0x50000
WS_OG    = 0x100000
WS_MLG   = 0x120000
WS_RG    = 0x124000
WS_XA    = 0x136000
WS_CF    = 0x151000
WS_HL    = 0x152000
WS_GOFF  = 0x80000
WS_QL    = 0x200000
WS_PC    = 0xA2000
WS_STAMP = 0x8000000
AL = 131072; L_Q = 0; L_CNT = 512; L_MX = 640; L_LS = 768; L_P = 1024; PSTR = 1152; L_PD = 3328
ASTR = 1184
L_BUF0 = 0; L_BUF1 = 73728; L_ACT = 147456; L_H1 = L_ACT + 8*ASTR; L_CF = L_H1 + 256; L_WCNT = L_CF + 64; L_ST = L_WCNT + 64; L_X1 = L_ST + 1536
LDS_BYTES = 160768
assert L_X1 <= LDS_BYTES
NLOC = 300
SPIN = 400000
LITE = False
LOG2E = 0x3fb8aa3b
X_, K_, V_, WQ_, WO_, W1_, B1_, W2_, B2_, C_, WM_, OUT_, WS_ = 16, 18, 20, 22, 24, 28, 30, 32, 34, 36, 38, 40, 42
TAG = "s6"; ETAG = "s101"

def sp(n): return f"s[{n}:{n+1}]"
def vr(n, k): return f"v[{n}:{n+k-1}]"
def f2h(x): return hex(struct.unpack("<I", struct.pack("<f", x))[0])
DPPM = "row_mask:0xf bank_mask:0xf"

class G(Asm):
    def __init__(self, stamps=False, nt="nt"):
        super().__init__()
        self.stamps = stamps
        self.nt = (" " + nt) if nt else ""
    def stamp(self, i):
        if self.stamps and (not LITE or i == 13):
            self(f"s_memrealtime s[96:97]\ns_waitcnt lgkmcnt(0)\nv_writelane_b32 v127, s96, {i}")
    def rbf(self, *pairs):
        for d, s in pairs: self(f"v_cvt_pk_bf16_f32 {d}, 0, {s}")
    def r1(self, *regs): self.rbf(*[(r, r) for r in regs])
    def srd(self, b, ptr, nbytes):
        self(f"s_mov_b32 s{b}, s{ptr}\ns_and_b32 s{b+1}, s{ptr+1}, 0xffff\ns_mov_b32 s{b+2}, {nbytes}\ns_mov_b32 s{b+3}, 0x20000")
    def mktag(self):
        self(f"s_add_u32 s6, s6, 0x9e3779b9\ns_and_b32 {ETAG}, s6, 63\ns_and_b32 s100, s6, 7")
    def tagcheck(self, tags, mn, mx, retry):
        if len(tags) == 1:
            self(f"v_cmp_ne_u32 vcc, {TAG}, {tags[0]}")
        else:
            assert len(tags) % 2 == 0
            for i in range(0, len(tags), 2):
                a, b = tags[i], tags[i+1]
                self(f"v_min3_u32 {mn}, {a}, {b}, {TAG if i == 0 else mn}")
                self(f"v_max3_u32 {mx}, {a}, {b}, {TAG if i == 0 else mx}")
            self(f"v_cmp_ne_u32 vcc, {mn}, {mx}")
        self(f"s_cbranch_vccnz {retry}")
    def etagcheck(self, words, acc, retry, ETAG=ETAG, mask=63):
        assert len(words) % 2 == 0
        for i in range(0, len(words), 2):
            a, b = words[i], words[i+1]
            self(f"v_xor_b32 {a}, {ETAG}, {a}\nv_xor_b32 {b}, {ETAG}, {b}")
            if i == 0: self(f"v_or_b32 {acc}, {a}, {b}")
            else: self(f"v_or3_b32 {acc}, {a}, {b}, {acc}")
        self(f"v_and_b32 {acc}, {mask}, {acc}\nv_cmp_ne_u32 vcc, 0, {acc}\ns_cbranch_vccnz {retry}")
    def epack(self, d, v, mask=63):
        self(f"v_bfi_b32 {d}, {mask}, {ETAG}, {v}")
    def spin_head(self, lab):
        self(f"s_mov_b32 s7, 0\n{lab}:\ns_add_u32 s7, s7, 1\ns_cmp_gt_u32 s7, {SPIN}\ns_cbranch_scc1 L_end")
    def dual_head(self, lab, regs, init=True):
        if init: self("s_mov_b32 s7, 0")
        self(f"{lab}:\ns_add_u32 s7, s7, 1\ns_cmp_gt_u32 s7, {SPIN}\ns_cbranch_scc1 L_end")
        self(f"s_cmp_lg_u32 s7, {NLOC}\ns_cbranch_scc1 {lab}_k")
        for r in regs: self(f"v_add_u32 {r}, {WS_GOFF}, {r}")
        self(f"{lab}_k:")
    def dual_store(self, op, vaddr, data):
        self(f"{op} {vaddr}, {data}, {sp(WS_)}\nv_add_u32 {vaddr}, {WS_GOFF}, {vaddr}\n{op} {vaddr}, {data}, {sp(WS_)} sc1")
    def row_reduce(self, op, regs, steps=4):
        for ctl in ("quad_perm:[1,0,3,2]", "quad_perm:[2,3,0,1]", "row_half_mirror", "row_mirror")[:steps]:
            if len(regs) < 3: self(f"s_nop {2 - len(regs)}")
            for r in regs:
                self(f"{op}_dpp {r}, {r}, {r} {ctl} {DPPM}")
    def lds_spin(self, off, val, vt, vbase, sleep=True):
        lab = self.label("LS")
        self.spin_head(lab)
        self(f"ds_read_b32 {vt}, {vbase} offset:{off}\ns_waitcnt lgkmcnt(0)\nv_readfirstlane_b32 s44, {vt}\ns_cmp_ge_u32 s44, {val}")
        done = self.label("LD")
        self(f"s_cbranch_scc1 {done}\n" + ("s_sleep 1\n" if sleep else "") + f"s_branch {lab}\n{done}:")
    def lds_inc(self, off, vbase, vone):
        self(f"s_mov_b64 exec, 1\nds_add_u32 {vbase}, {vone} offset:{off}\ns_mov_b64 exec, -1")

INV576 = f2h(1.0/576)
def ln_finish(A, mean, var, rs):
    A(f"v_max_f32 {var}, 0, {var}")
    A.r1(mean, var)
    A(f"v_add_f32 {var}, 0x3727c5ac, {var}")
    A.r1(var)
    A(f"v_sqrt_f32 {var}, {var}\ns_nop 0")
    A.r1(var)
    A(f"v_rcp_f32 {rs}, {var}\ns_nop 0")

def dma_tile(A, srd, voff, rowstride, ldsbase, ninstr=72, nt=None):
    if nt is None: nt = A.nt
    A(f"s_mul_i32 s44, s3, {8*rowstride}\ns_lshl_b32 s45, s3, 10\ns_add_u32 s45, s45, {ldsbase}")
    for i in range((ninstr + 15)//16):
        skip = None
        if (i+1)*16 > ninstr:
            skip = A.label("DS")
            A(f"s_cmp_ge_u32 s3, {ninstr - 16*i}\ns_cbranch_scc1 {skip}")
        A(f"s_mov_b32 m0, s45\ns_add_u32 s45, s45, 16384")
        A(f"buffer_load_dwordx4 {voff}, s[{srd}:{srd+3}], s44 offen{nt} lds")
        A(f"s_add_u32 s44, s44, {128*rowstride}")
        if skip: A(f"{skip}:")

def bfrags(A, vaddr, vb=52, nks=18, rowb=128):
    base = 0
    for ks in range(nks):
        for half in range(2):
            off = (ks*32 + half*16) * rowb
            if off - base > 65535:
                A(f"v_add_u32 {vaddr}, {off - base}, {vaddr}"); base = off
            A(f"ds_read_b64_tr_b16 {vr(vb + ks*4 + half*2,2)}, {vaddr} offset:{off - base}")

def kv_chunk_base(A, rp, dst, t, SP):
    A(f"""
    s_lshr_b32 {t}, {rp}, 3
    s_lshl_b32 {dst}, s4, 1
    s_add_u32 {dst}, {dst}, {t}
    s_bfe_u32 {t}, {rp}, 0x10002
    s_lshl_b32 {t}, {t}, 4
    s_add_u32 {dst}, {dst}, {t}
    s_lshl_b32 {dst}, {dst}, 21
    s_and_b32 {t}, {rp}, 3
    s_lshl_b32 {t}, {t}, {SP}
    s_add_u32 {dst}, {dst}, {t}
    s_add_u32 {dst}, {dst}, {6144*256}
    """)

def gemv_mfma(A, vaaddr, vb=52, va=24, vd=20, depth=7, nks=18, mid=None):
    depth = min(depth, nks)
    def rd(ks):
        A(f"ds_read_b128 {vr(va + (ks % depth)*4,4)}, {vaaddr} offset:{ks*64}")
    for ks in range(depth): rd(ks)
    for ks in range(nks):
        issued = min(nks, depth + ks)
        A(f"s_waitcnt lgkmcnt({issued - ks - 1})")
        c = "0" if ks == 0 else vr(vd, 4)
        A(f"v_mfma_f32_16x16x32_bf16 {vr(vd,4)}, {vr(va + (ks % depth)*4,4)}, {vr(vb+ks*4,4)}, {c}")
        if ks + depth < nks: rd(ks + depth)
        if mid and ks == mid[0]: A(mid[1])

def gemv_sm(A, vaaddr, vidx, vb=52, va=24, vd=20, depth=7, nch=9, mid=None):
    depth = min(depth, nch)
    def rd(c):
        A(f"ds_read_b128 {vr(va + (c % depth)*4,4)}, {vaaddr} offset:{c*128}")
    for c in range(depth): rd(c)
    for c in range(nch):
        issued = min(nch, depth + c)
        A(f"s_waitcnt lgkmcnt({issued - c - 1})")
        A(f"v_smfmac_f32_16x16x64_bf16 {vr(vd,4)}, {vr(va + (c % depth)*4,4)}, {vr(vb+c*8,8)}, {vidx}")
        if c + depth < nch: rd(c + depth)
        if mid and c == mid[0]: A(mid[1])

def sm_idx(A, vidx, vd=20, n=4):
    A(f"v_bfe_i32 {vidx}, v1, 0, 1\nv_and_b32 {vidx}, 0xaaaa, {vidx}\nv_or_b32 {vidx}, 0x4444, {vidx}")
    for i in range(n): A(f"v_mov_b32 v{vd+i}, 0")

def fold8(A, n, a, b, t, swapb=True):
    for i in range(1, n):
        A(f"v_add_f32 v{a}, v{a}, v{a+2*i}\nv_add_f32 v{b}, v{b}, v{b+2*i}")
    A(f"""
    s_nop 1
    v_permlane32_swap_b32 v{a}, v{b}
    v_add_f32 v{a}, v{a}, v{b}
    v_mov_b32 v{t}, v{a}
    s_nop 1
    v_permlane16_swap_b32 v{a}, v{t}
    v_add_f32 v{a}, v{a}, v{t}
    s_nop 1
    v_add_f32_dpp v{a}, v{a}, v{a} row_ror:8 {DPPM}
    """)

def build(stamps=False, nt="nt", adelay=0, dbg=0, w2first=0, qs=2, ps=2, pt=1, diag=0, ql=0, rgw=0, il=2, trig=1, pf=0, fgs=13, ordr=0, nb1=0, nb2=0, mlt=0, c3=1, hq=0, fl=0, ppt=0, probe=0, cfm=2, x4=1, me=0, tm=96, dq=0, dv=0, ds5=0, nr=8, qpt=0, qv=1, qlay=1, pc=0, fpos=0, hs=0, hp=2, xk=0, wm=0, at=0, an=2, ks=2, tp=0, osc=1, wb=0, wb0=0, ot=0, tw=99, tk=0, p2=0, sw=1, hw=0, pp=0, kb=1, w16=1, m2=1, mgf=0):
    NJ = 18*ks; RW = 576//ks; JX = 4 if ks == 2 else 6
    CH, BL, SP = {0: (15, 13, 17), 1: (17, 15, 13), 2: (17, 13, 15)}[il]
    global SPIN, NLOC
    if diag: SPIN = 60; NLOC = 100
    A = G(stamps, nt)
    def vtail(n, level, w0):
        lab = A.label("VT")
        A(f"""
        s_sub_u32 s48, s3, {w0}
        s_cmp_ge_u32 s48, {n}
        s_cbranch_scc1 {lab}
        s_and_b32 s49, s48, 1
        s_lshl_b32 s50, s5, 1
        s_add_u32 s50, s50, s49
        """)
        kv_chunk_base(A, "s50", "s44", "s45", SP)
        A(f"""
        s_lshr_b32 s48, s48, 1
        s_sub_u32 s48, 3, s48
        s_lshl_b32 s48, s48, {BL}
        s_add_u32 s44, s44, s48
        s_add_u32 s44, s44, {level << CH}
        v_lshl_add_u32 v20, v1, 7, s44
        global_load_dword v125, v20, {sp(V_)}{A.nt}
        {lab}:
        """)
    NT = A.nt
    A.header(256, 1024, LDS_BYTES)
    A(f"""
    s_cmp_ge_u32 s2, 256
    s_cbranch_scc1 L_exit
    s_load_dwordx16 s[16:31], s[0:1], 0
    s_load_dwordx8 s[32:39], s[0:1], 64
    s_load_dwordx2 s[40:41], s[0:1], 96
    s_load_dwordx2 s[42:43], s[0:1], 112
    {'s_load_dwordx2 s[94:95], s[0:1], 104' if at else ''}
    v_lshrrev_b32 v2, 6, v0
    v_and_b32 v1, 63, v0
    s_and_b32 s4, s2, 7
    v_readfirstlane_b32 s3, v2
    s_lshr_b32 s5, s2, 3
    v_mov_b32 v3, 0
    """)
    if stamps:
        A("v_mov_b32 v127, 0\ns_memrealtime s[98:99]")
    A(f"""
    s_cmp_lg_u32 s5, 24
    s_cbranch_scc1 L_nopf
    s_getpc_b64 s[44:45]
    L_pfbase:
    s_sub_u32 s44, s44, L_pfbase-{NAME}_kernel
    s_subb_u32 s45, s45, 0
    v_lshlrev_b32 v4, 7, v0
    v_cmp_gt_u32 vcc, L_codeend-{NAME}_kernel, v4
    s_and_saveexec_b64 s[46:47], vcc
    s_cbranch_execz L_pfd
    global_load_dword v5, v4, s[44:45]
    L_pfd:
    s_mov_b64 exec, -1
    """)
    if tp:
        A(f"""
        s_min_u32 s44, s3, 14
        s_lshl_b32 s45, s44, 3
        s_load_dwordx2 s[60:61], s[0:1], s45
        s_lshl_b32 s44, s44, 1
        s_lshr_b32 s44, {(2<<6)|(2<<8)|(2<<12)|(2<<16)|(1<<22)}, s44
        s_and_b32 s44, s44, 3
        v_min_u32 v4, s44, v1
        v_lshlrev_b32 v4, 21, v4
        v_and_b32 v6, 1, v1
        v_bfe_u32 v7, v1, 1, 1
        v_lshl_or_b32 v6, v7, 4, v6
        s_lshl_b32 s44, s4, 1
        v_add_u32 v6, s44, v6
        v_lshlrev_b32 v6, 21, v6
        s_cmp_eq_u32 s3, 2
        s_cselect_b64 vcc, -1, 0
        v_or_b32 v6, 0x180000, v6
        v_cndmask_b32 v4, v4, v6, vcc
        s_mov_b64 exec, 15
        s_waitcnt lgkmcnt(0)
        global_load_dword v126, v4, s[60:61] nt
        s_mov_b64 exec, -1
        """)
    A(f"""
    L_nopf:
    s_cmp_lt_u32 s5, 16
    s_cbranch_scc1 L_A
    {'s_branch L_exit' if diag & 32 else ''}
    s_sub_u32 s5, s5, 16                  ; u
    s_sub_u32 s55, s2, {25*8}
    s_min_u32 s47, s4, {JX}
    s_mul_i32 s48, s4, {JX}
    s_add_u32 s47, s47, s48
    s_add_u32 s47, s47, s5
    s_sub_u32 s47, s47, 9
    s_mul_i32 s48, s47, 0xe39
    s_lshr_b32 s48, s48, 16               ; ksp
    s_mul_i32 s49, s48, 18
    s_sub_u32 s49, s47, s49               ; cgp
    s_mul_i32 s50, s48, {RW*6912}
    s_lshl_b32 s51, s49, 7
    s_add_u32 s50, s50, s51               ; M offset
    s_lshl_b32 s51, s4, 3
    s_add_u32 s51, s51, s5                ; qb
    s_lshl_b32 s52, s51, 7                ; B offset
    v_lshrrev_b32 v4, 3, v1
    v_bfe_u32 v6, v1, 4, 2
    v_lshlrev_b32 v6, 1, v6
    v_and_b32 v7, 7, v1
    v_xor_b32 v6, v6, v7
    s_movk_i32 s53, 6912
    s_cmp_lt_u32 s5, 8
    s_cselect_b32 s50, s52, s50
    s_cselect_b32 s53, 8192, s53          ; stride
    s_cselect_b32 s54, 72, {RW//8}        ; count
    s_mul_i32 s10, s53, 576
    s_cselect_b32 s47, s51, s47
    s_cselect_b32 s55, 0, s55
    v_mul_u32_u24 v14, s53, v4
    v_lshl_add_u32 v14, v6, 4, v14
    v_add_u32 v15, s50, v14
    s_mov_b32 s11, 0x20000
    s_lshl_b32 s53, s53, 3
    s_mul_i32 s44, s3, s53
    s_lshl_b32 s53, s53, 4
    s_lshl_b32 s45, s3, 10
    s_mov_b32 s46, s3
    s_cmp_lt_u32 s5, 8
    s_waitcnt lgkmcnt(0)
    s_cselect_b32 s8, s{WQ_}, s{WM_}
    s_cselect_b32 s9, s{WQ_+1}, s{WM_+1}
    s_and_b32 s9, s9, 0xffff
    s_cmp_ge_u32 s55, {NJ}
    s_cbranch_scc1 L_W_nodma
    L_W_dma:
    s_mov_b32 m0, s45
    s_add_u32 s45, s45, 16384
    buffer_load_dwordx4 v15, s[8:11], s44 offen{'' if wm & 1 else NT} lds
    s_add_u32 s44, s44, s53
    s_add_u32 s46, s46, 16
    s_cmp_lt_u32 s46, s54
    s_cbranch_scc1 L_W_dma
    L_W_nodma:
    s_load_dword s6, {sp(WS_)}, {WS_EPOCH}
    s_branch L_W
    """)
    A(f"""
    L_A:
    """)
    if ordr:
        t0_, t1_ = {1: (0xd8, 0xd8), 2: (0xe4, 0xd2), 3: (0xd8, 0xd2)}[ordr]
        A(f"""
        s_bitcmp1_b32 s5, 0
        s_movk_i32 s44, {t0_}
        s_cselect_b32 s44, {t1_}, s44
        s_lshr_b32 s45, s3, 2
        s_lshl_b32 s45, s45, 1
        s_lshr_b32 s44, s44, s45
        s_and_b32 s44, s44, 3
        s_and_b32 s3, s3, 3
        s_lshl_b32 s44, s44, 2
        s_or_b32 s3, s3, s44
        """)
    A(f"""
    v_mov_b32 v4, {AL}
    v_lshl_add_u32 v5, v1, 2, v4
    v_bfe_i32 v6, v1, 5, 1
    ds_write_b32 v5, v6 offset:{L_CNT}
    s_lshr_b32 s44, s5, 3
    s_lshl_b32 s45, s4, 1
    s_add_u32 s46, s45, s44            ; hkv
    s_bfe_u32 s47, s5, 0x10002          ; b
    s_and_b32 s48, s5, 3                ; sp
    s_lshl_b32 s49, s47, 4
    s_add_u32 s49, s49, s46             ; b*16+hkv
    s_lshl_b32 s49, s49, 21
    s_lshl_b32 s50, s48, {SP}
    s_add_u32 s49, s49, s50
    s_add_u32 s49, s49, {6144*256}
    s_bfe_u32 s51, s3, 0x10002            ; g
    s_and_b32 s44, s3, 3
    s_lshl_b32 s50, s51, {CH+1}
    s_add_u32 s49, s49, s50
    s_lshl_b32 s50, s44, {BL}
    s_add_u32 s49, s49, s50
    s_lshl_b32 s45, s51, 3
    s_add_u32 s48, s44, s45
    v_and_b32 v9, 3, v1
    v_mov_b32 v7, 1
    s_cmp_ge_u32 s3, 8
    s_cbranch_scc1 L_AV
    s_add_u32 s49, s49, 4096
    v_bfe_u32 v5, v1, 2, 2
    v_lshlrev_b32 v5, 8, v5
    v_and_b32 v6, 48, v1
    v_lshl_or_b32 v5, v6, 2, v5
    v_lshl_or_b32 v5, v9, 4, v5
    s_waitcnt lgkmcnt(0)
    s_load_dword s6, {sp(WS_)}, {WS_EPOCH}
    s_add_u32 s52, s{K_}, s49
    s_addc_u32 s53, s{K_+1}, 0
    s_add_u32 s54, s52, {1 << CH}
    s_addc_u32 s55, s53, 0
    """)
    if adelay: A("s_waitcnt lgkmcnt(0)")
    if not kb: A("s_barrier")
    if xk:
        A("s_sub_u32 s58, s52, 0x80000\ns_subb_u32 s59, s53, 0\ns_sub_u32 s60, s54, 0x80000\ns_subb_u32 s61, s55, 0")
        for t in range(16):
            A(f"global_load_dwordx4 {vr(32+4*t,4)}, v5, s[{58+2*(t>>3)}:{59+2*(t>>3)}] offset:{(t&7)*1024-4096}{NT}")
    for t in range(16):
        A(f"global_load_dwordx4 {vr(32+4*t,4)}, v5, s[{52+2*(t>>3)}:{53+2*(t>>3)}] offset:{(t&7)*1024-4096}{NT}")
    if kb: A("s_barrier")
    if stamps: A("s_waitcnt lgkmcnt(0)\nv_writelane_b32 v127, s98, 0")
    A.stamp(1)
    A(f"""
    v_bfe_u32 v8, v1, 2, 1
    v_lshlrev_b32 v8, 8, v8
    v_lshl_or_b32 v8, v6, 2, v8
    v_lshl_or_b32 v8, v9, 4, v8
    v_add_u32 v8, v4, v8
    v_bfe_u32 v11, v1, 4, 1
    v_mul_u32_u24 v10, {PSTR}, v11
    v_and_b32 v12, 1, v1
    v_lshl_add_u32 v10, v12, 4, v10
    v_lshrrev_b32 v13, 5, v1
    v_lshl_add_u32 v10, v13, 3, v10
    v_and_b32 v13, 2, v1
    v_lshl_add_u32 v10, v13, 1, v10
    v_bfe_u32 v13, v1, 2, 1
    v_lshl_add_u32 v10, v13, 1, v10
    v_and_b32 v13, 8, v1
    v_lshl_add_u32 v10, v13, 3, v10
    s_lshr_b32 s44, s48, 1
    s_lshl_b32 s44, s44, 7
    s_and_b32 s45, s48, 1
    s_lshl_b32 s45, s45, 5
    s_add_u32 s44, s44, s45
    s_add_u32 s44, s44, {AL + L_P}
    v_add_u32 v10, s44, v10
    v_lshl_add_u32 v12, v12, 6, v6
    v_bfe_u32 v13, v1, 1, 1
    v_mul_u32_u24 v13, {PSTR}, v13
    v_add3_u32 v12, v12, v13, v4
    v_lshl_add_u32 v11, v11, 5, v4
    v_and_b32 v13, 31, v1
    v_lshl_add_u32 v13, v13, 2, v4
    s_lshl_b32 s44, s3, 2
    v_add_u32 v11, s44, v11
    v_bfe_u32 v17, v1, 4, 1
    v_lshl_add_u32 v17, v17, 5, v11
    v_and_b32 v18, 32, v1
    v_add_u32 v17, v17, v18
    v_bfe_u32 v14, v1, 2, 3
    v_xor_b32 v14, s3, v14
    v_lshlrev_b32 v14, 5, v14
    v_lshrrev_b32 v15, 2, v1
    v_lshl_or_b32 v14, v15, 8, v14
    v_lshl_or_b32 v14, v9, 3, v14
    v_add_u32 v15, {12*8192}, v14
    v_and_b32 v14, 15, v1
    v_lshl_add_u32 v14, v14, 3, v4
    s_lshl_b32 s44, s3, 7
    v_add_u32 v14, s44, v14
    s_mov_b32 s58, 0x22222222
    s_mov_b32 s59, 0x22222222
    s_mov_b32 s60, 0x44444444
    s_mov_b32 s61, 0x44444444
    s_mov_b32 s62, 0x88888888
    s_mov_b32 s63, 0x88888888
    s_lshl_b32 s44, s47, 14
    s_lshl_b32 s45, s46, 10
    s_add_u32 s44, s44, s45
    s_lshl_b32 s45, s3, 7
    s_add_u32 s44, s44, s45
    s_add_u32 s44, s44, {WS_QG}
    s_add_u32 s56, s{WS_}, s44
    s_addc_u32 s57, s{WS_+1}, 0
    s_lshl_b32 s50, s4, 4
    s_add_u32 s50, s50, s5
    s_lshl_b32 s50, s50, 10
    s_add_u32 s50, s50, s45
    s_add_u32 s50, s50, {WS_OG}
    v_lshl_add_u32 v6, v1, 3, s50
    s_waitcnt lgkmcnt(0)
    """)
    A.mktag()
    A(f"""
    """)
    if not ql: pass
    elif qlay:
        A(f"""
        s_sub_u32 s44, s44, {WS_QG}
        s_lshl_b32 s44, s44, 3
        s_add_u32 s44, s44, {WS_QL}
        s_add_u32 s52, s{WS_}, s44
        s_addc_u32 s53, s{WS_+1}, 0
        """)
    else:
        A(f"s_add_u32 s52, s56, {WS_QL - WS_QG}\ns_addc_u32 s53, s57, 0")
    A(f"""
    s_waitcnt vmcnt(0)
    """)
    if qv:
        A.lds_inc(L_CNT+12, "v4", "v7")
        A.lds_spin(L_CNT+12, 8, "v16", "v4")
    A(f"""
    """)
    if ql:
        A(f"""
    s_mov_b32 s7, {0 if ql else nr}
    L_A_qpoll:
    s_add_u32 s7, s7, 1
    s_cmp_gt_u32 s7, {SPIN}
    s_cbranch_scc1 L_end
    s_cmp_gt_u32 s7, {nr}
    s_cbranch_scc1 L_A_qg
    s_load_dwordx16 s[64:79], s[52:53], 0
    s_load_dwordx16 s[80:95], s[52:53], 64
    s_add_u32 s52, s52, {128 if qlay else 32768}
    s_addc_u32 s53, s53, 0
    s_branch L_A_qc
    L_A_qr:
    s_sleep {qs}
    s_branch L_A_qpoll
""")
    else:
        A(f"""
        s_mov_b32 s7, 0
        L_A_qr:
        s_add_u32 s7, s7, 1
        s_cmp_gt_u32 s7, {SPIN}
        s_cbranch_scc1 L_end
        s_sleep {qs}
        """)
    A(f"""
    L_A_qg:
    s_load_dwordx16 s[64:79], s[56:57], 0 glc
    s_load_dwordx16 s[80:95], s[56:57], 64 glc
    L_A_qc:
    s_waitcnt lgkmcnt(0)
    """)
    for i in range(16):
        A(f"s_cmp_lg_u32 s{65+2*i}, {TAG}\ns_cbranch_scc1 L_A_qr")
    A("s_mov_b64 exec, 1")
    for i in range(16):
        A(f"v_mov_b32 v{96+i}, s{64+2*i}")
    A(f"s_lshl_b32 s44, s3, 6\nv_add_u32 v20, s44, v4")
    for i in range(4):
        A(f"ds_write_b128 v20, {vr(96+4*i,4)} offset:{L_Q+16*i}")
    A(f"""
    ds_add_u32 v4, v7 offset:{L_CNT}
    s_mov_b64 exec, -1
    s_mov_b32 s56, 0xff00ff00
    s_mov_b32 s57, 0xff00ff00
    """)
    A.lds_spin(L_CNT, 8, "v16", "v4")
    A.stamp(2)
    A(f"ds_read_b128 v[20:23], v8 offset:{L_Q}\ns_waitcnt lgkmcnt(0)")
    for i in range(4):
        A(f"v_cndmask_b32 v{24+i}, 0, v{20+i}, s[56:57]")
        A(f"v_cndmask_b32 v{20+i}, v{20+i}, 0, s[56:57]")
    A("s_waitcnt vmcnt(0)\ns_nop 0")
    D = [96, 32]
    def qk(z, i):
        u = i & 3
        if i < 4: A(f"v_mfma_f32_16x16x32_bf16 {vr(D[z]+4*u,4)}, v[20:23], {vr(32+32*z+8*u,4)}, 0")
        else: A(f"v_mfma_f32_16x16x32_bf16 {vr(D[z]+4*u,4)}, v[24:27], {vr(36+32*z+8*u,4)}, {vr(D[z]+4*u,4)}")
    def red(z, u):
        t = 112 + 4*z
        A(f"v_mov_b32_dpp v{t+u}, v{D[z]+4*u} quad_perm:[0,0,0,0] {DPPM}")
        for c in range(1, 4):
            A(f"v_add_f32_dpp v{t+u}, v{D[z]+4*u+c}, v{t+u} quad_perm:[{c},{c},{c},{c}] {DPPM}")
    for i in range(8): qk(0, i)
    for i in range(5): qk(1, i)
    for u in range(3):
        red(0, u); qk(1, 5+u)
    red(0, 3)
    for k, m in ((1, 58), (2, 60), (3, 62)):
        A(f"v_cndmask_b32 v112, v112, v{112+k}, s[{m}:{m+1}]")
    for u in range(4): red(1, u)
    A.stamp(3)
    for k, m in ((1, 58), (2, 60), (3, 62)):
        A(f"v_cndmask_b32 v116, v116, v{116+k}, s[{m}:{m+1}]")
    A.r1("v112", "v116")
    A("v_mul_f32 v112, 0x3db504f3, v112\nv_mul_f32 v116, 0x3db504f3, v116")
    A.r1("v112", "v116")
    A("v_max_f32 v113, v112, v116")
    A.row_reduce("v_max_f32", ["v113"])
    A(f"""
    s_mov_b32 exec_lo, 0x10001
    s_mov_b32 exec_hi, 0x10001
    ds_write_b32 v17, v113 offset:{L_MX}
    s_mov_b64 exec, -1
    ds_read_b32 v118, v4 offset:{L_CNT+28}
    v_mul_f32 v112, {hex(LOG2E)}, v112
    v_mul_f32 v116, {hex(LOG2E)}, v116
    s_mov_b32 s45, {hex(LOG2E)}
    """)
    A.spin_head("L_A_mx")
    A(f"""
    ds_read_b32 v113, v13 offset:{L_MX}
    s_waitcnt lgkmcnt(0)
    v_cmp_eq_u32 vcc, -1, v113
    s_cbranch_vccnz L_A_mx
    v_readfirstlane_b32 s67, v118
    """)
    A.row_reduce("v_max_f32", ["v113"])
    A(f"""
    v_fma_f32 v112, -v113, s45, v112
    v_fma_f32 v116, -v113, s45, v116
    v_exp_f32 v112, v112
    v_exp_f32 v116, v116
    s_nop 0
    v_cvt_pk_bf16_f32 v115, v112, v116
    ds_write_b16 v10, v115
    ds_write_b16_d16_hi v10, v115 offset:256
    v_add_f32 v112, v112, v116
    """)
    A.row_reduce("v_add_f32", ["v112"])
    A(f"""
    s_mov_b32 exec_lo, 0x10001
    s_mov_b32 exec_hi, 0x10001
    ds_write_b32 v17, v112 offset:{L_LS}
    s_mov_b64 exec, 1
    ds_add_u32 v4, v7 offset:{L_CNT+8}
    s_mov_b64 exec, -1
    v_mov_b32 v20, v113
    """)
    sm_idx(A, "v19", 112)
    def vreads3():
        for k in range(4):
            for half in range(2):
                A(f"ds_read_b64_tr_b16 {vr(32+4*k+2*half,2)}, v15 offset:{k*8192 + half*4096}")
    A("s_cmp_lt_u32 s67, 4\ns_cbranch_scc1 L_A_np")
    vreads3()
    A("L_A_np:")
    A.lds_spin(L_CNT+8, 8, "v16", "v4")
    A.stamp(4)
    for k in range(2):
        A(f"ds_read_b128 {vr(64+4*k,4)}, v12 offset:{L_P + (6+k)*128}")
    A(f"""
    s_cmp_lg_u32 s3, 0
    s_cbranch_scc1 L_A_nml
    ds_read_b32 v21, v13 offset:{L_LS}
    s_lshl_b32 s50, s4, 4
    s_add_u32 s50, s50, s5
    s_lshl_b32 s50, s50, 7
    s_add_u32 s50, s50, {WS_MLG}
    v_mov_b32 v24, s50
    v_mov_b32 v22, v20
    s_waitcnt lgkmcnt(0)
    """)
    A.row_reduce("v_add_f32", ["v21"])
    A("""
    v_mov_b32 v23, v21
    v_permlane16_swap_b32 v20, v22
    s_nop 0
    v_permlane16_swap_b32 v21, v23
    """)
    for r in range(20, 24): A.epack(f"v{r}", f"v{r}")
    A("s_mov_b64 exec, 1")
    A.dual_store("global_store_dwordx4", "v24", "v[20:23]")
    A("s_mov_b64 exec, -1")
    A.stamp(7)
    A("L_A_nml:")
    def vm(k, wait):
        A(f"s_waitcnt lgkmcnt({wait})")
        A(f"v_smfmac_f32_16x16x64_bf16 v[112:115], {vr(64+4*k,4)}, {vr(32+8*k,8)}, v19")
    def pd():
        A.lds_spin(L_CNT+32, 4, "v120", "v4")
        A(f"ds_read_b64 v[118:119], v14 offset:{L_PD}")
    A("s_cmp_lt_u32 s67, 4\ns_cbranch_scc1 L_A_slow")
    for k in range(2): vm(k, 1-k)
    A("L_A_pd:")
    pd()
    A("s_waitcnt lgkmcnt(0)\ns_branch L_A_fin\nL_A_slow:")
    A.spin_head("L_A_w")
    A("s_sleep 1")
    A(f"""
    ds_read2_b32 v[120:121], v4 offset0:{(L_CNT+28)//4} offset1:{(L_CNT+32)//4}
    s_waitcnt lgkmcnt(0)
    v_readfirstlane_b32 s44, v120
    v_readfirstlane_b32 s45, v121
    s_cmp_ge_u32 s45, 4
    s_cbranch_scc1 L_A_y
    s_cmp_lt_u32 s44, 4
    s_cbranch_scc1 L_A_w
    """)
    vreads3()
    for k in range(2): vm(k, 4-4*k)
    A(f"s_branch L_A_pd\nL_A_y:\nds_read_b64 v[118:119], v14 offset:{L_PD}\ns_cmp_ge_u32 s44, 4\ns_cbranch_scc1 L_A_y2")
    A.lds_spin(L_CNT+28, 4, "v120", "v4")
    A("L_A_y2:")
    vreads3()
    for k in range(2): vm(k, 4-4*k)
    A("s_nop 6\nL_A_fin:\ns_mov_b64 exec, 0xffff\nv_add_f32 v112, v112, v113\nv_add_f32 v113, v114, v115\nv_add_f32 v112, v112, v118\nv_add_f32 v113, v113, v119")
    A.epack("v116", "v112"); A.epack("v117", "v113")
    A.dual_store("global_store_dwordx2", "v6", "v[116:117]")
    A("s_mov_b64 exec, -1")
    A.stamp(6)
    if p2:
        A(f"""
        s_cmp_ge_u32 s3, {p2}
        s_cbranch_scc1 L_end
        s_lshl_b32 s44, s3, 4
        s_add_u32 s44, s44, s5                ; unit index 0..79 : tile = idx % 9, piece = 8 - idx / 9
        s_mul_i32 s45, s44, 0x1c72
        s_lshr_b32 s45, s45, 16
        s_mul_i32 s46, s45, 9
        s_sub_u32 s44, s44, s46
        s_mul_i32 s46, s4, 9
        s_add_u32 s44, s44, s46
        s_mul_i32 s44, s44, 9
        s_add_u32 s44, s44, 8
        s_sub_u32 s44, s44, s45
        s_lshl_b32 s44, s44, 13
        v_lshl_add_u32 v20, v1, 7, s44
        global_load_dword v21, v20, {sp(W2_)}{NT}
        s_waitcnt vmcnt(0)
        """)
    A("s_branch L_end")
    A(f"""
    L_AV:
    s_lshl_b32 s45, s48, 13
    s_mov_b32 s44, s49                    ; soffset
    v_lshrrev_b32 v5, 4, v1
    v_lshlrev_b32 v6, 1, v5
    v_and_b32 v8, 15, v1
    v_xor_b32 v6, v6, v8
    v_lshlrev_b32 v6, 4, v6
    v_lshl_or_b32 v5, v5, 8, v6
    v_xor_b32 v6, 128, v5
    s_waitcnt lgkmcnt(0)
    s_load_dword s6, {sp(WS_)}, {WS_EPOCH}
    """)
    A.srd(8, V_, 0x4000000)
    A("s_barrier")
    for hf in range(2):
        for q4 in range(2):
            A("s_mov_b32 m0, s45\ns_nop 0")
            for n in range(4):
                A(f"buffer_load_dwordx4 {'v6' if n & 1 else 'v5'}, s[8:11], s44 offen offset:{n*1024}{NT} lds")
            if q4 == 0: A("s_add_u32 s45, s45, 4096\ns_add_u32 s44, s44, 4096")
            elif hf == 0: A(f"s_add_u32 s45, s45, {4*8192 - 4096}\ns_add_u32 s44, s44, {(1 << CH) - 4096}")
    if stamps: A("s_waitcnt lgkmcnt(0)\nv_writelane_b32 v127, s98, 0")
    A.stamp(1)
    if pf:
        A(f"""
        s_cmp_lt_u32 s3, 11
        s_cbranch_scc1 L_AV_np
        s_mul_i32 s45, s5, 5
        s_add_u32 s45, s45, s3
        s_lshl_b32 s50, s45, 6
        s_sub_u32 s50, s50, {10*64}
        s_lshl_b32 s44, s51, 3
        v_add_u32 v5, s44, v4
        v_add_u32 v20, s50, v1
        v_mul_u32_u24 v21, 0x1c72, v20
        v_lshrrev_b32 v21, 16, v21
        v_mul_u32_u24 v22, 9, v21
        v_sub_u32 v22, v20, v22
        v_mul_u32_u24 v21, 9216, v21
        v_lshl_add_u32 v21, v22, 7, v21
        s_mul_i32 s50, s4, 1152
        v_add_u32 v21, s50, v21
        global_load_dword v29, v21, {sp(W1_)}{NT}
        s_mov_b64 exec, 1
        s_waitcnt vmcnt(9)
        ds_add_u32 v5, v7 offset:{L_CNT+16}
        s_waitcnt vmcnt(1)
        ds_add_u32 v5, v7 offset:{L_CNT+20}
        s_mov_b64 exec, -1
        """)
        A.stamp(5)
        A("s_waitcnt vmcnt(0) lgkmcnt(0)\ns_branch L_end\nL_AV_np:")
    if at == 3: A("""
        s_and_b32 s44, s5, 3
        s_cmp_lg_u32 s44, 0
        s_cbranch_scc1 L_AV_ns
        s_cmp_lg_u32 s3, 12
        s_cbranch_scc1 L_AV_ns
        s_lshl_b32 s44, s4, 5
        s_add_u32 s94, s94, s44
        s_addc_u32 s95, s95, 0
        s_mov_b32 s44, 1
        s_atomic_add s44, s[94:95], 0
        L_AV_ns:
        """)
    A(f"""
    s_lshl_b32 s44, s51, 3
    v_add_u32 v5, s44, v4
    s_mov_b64 exec, 1
    s_waitcnt vmcnt(8)
    ds_add_u32 v5, v7 offset:{L_CNT+16}
    """)
    if at == 1: A("""
        s_and_b32 s44, s5, 3
        s_cmp_lg_u32 s44, 0
        s_cbranch_scc1 L_AV_ns
        s_cmp_lg_u32 s3, 8
        s_cbranch_scc1 L_AV_ns
        s_lshl_b32 s44, s4, 5
        s_add_u32 s94, s94, s44
        s_addc_u32 s95, s95, 0
        s_mov_b32 s44, 1
        s_atomic_add s44, s[94:95], 0
        L_AV_ns:
        """)
    A(f"""
    s_waitcnt vmcnt(0)
    {f's_sleep {dv}' if dv else ''}
    ds_add_u32 v5, v7 offset:{L_CNT+20}
    s_mov_b64 exec, -1
    """)
    if at == 2: A("""
        s_and_b32 s44, s5, 3
        s_cmp_lg_u32 s44, 0
        s_cbranch_scc1 L_AV_ns
        s_cmp_lg_u32 s3, 8
        s_cbranch_scc1 L_AV_ns
        s_lshl_b32 s44, s4, 5
        s_add_u32 s94, s94, s44
        s_addc_u32 s95, s95, 0
        s_mov_b32 s44, 1
        s_atomic_add s44, s[94:95], 0
        L_AV_ns:
        """)
    A.stamp(5)
    A(f"""
    s_waitcnt lgkmcnt(0)
    s_cmp_ge_u32 s3, 12
    s_cbranch_scc1 L_end
    s_and_b32 s45, s3, 3
    s_lshl_b32 s45, s45, 1
    v_bfe_u32 v5, v1, 2, 3
    v_xor_b32 v5, s45, v5
    v_lshlrev_b32 v5, 5, v5
    v_lshrrev_b32 v6, 2, v1
    v_lshl_or_b32 v5, v6, 8, v5
    v_lshl_or_b32 v5, v9, 3, v5
    v_xor_b32 v6, 32, v5
    v_bfe_u32 v3, v1, 1, 1
    v_mul_u32_u24 v3, {PSTR}, v3
    v_and_b32 v2, 48, v1
    v_add3_u32 v3, v3, v2, v4
    v_and_b32 v2, 1, v1
    v_lshl_add_u32 v3, v2, 6, v3
    v_lshl_add_u32 v2, v8, 3, v4
    s_lshl_b32 s45, s45, 7
    v_add_u32 v2, s45, v2
    """)
    sm_idx(A, 'v126', 8, 8)
    def B(t, ks): return 16 + 16*(ks>>1) + 8*t + 4*(ks&1)
    def tr(ks0, ks1):
        for ks in range(ks0, ks1):
            for t in range(2):
                for half in range(2):
                    A(f"ds_read_b64_tr_b16 {vr(B(t,ks)+2*half,2)}, v{5+t} offset:{(ks&7)*8192 + half*4096}")
    def chain(ks0, ks1):
        c0 = ks0//2; n = (ks1 - ks0)//2
        free = [112, 116, 120]; loc = {}; issued = 0
        def issue():
            nonlocal issued
            while free and issued < n:
                loc[issued] = free.pop(0)
                A(f"ds_read_b128 {vr(loc[issued],4)}, v3 offset:{L_P + (c0+issued)*128}")
                issued += 1
        issue()
        for i in range(n):
            ks = ks0 + 2*i
            A(f"s_waitcnt lgkmcnt({issued - i - 1})")
            for t in range(2):
                A(f"v_smfmac_f32_16x16x64_bf16 {vr(8+4*t,4)}, {vr(loc[i],4)}, {vr(B(t,ks),8)}, v126")
            free += [B(0, ks), B(0, ks+1), loc[i]]
            issue()
    A.lds_spin(L_CNT+20, 4, "v124", "v4")
    tr(0, 8)
    A("v_add_u32 v5, 0x10000, v5\nv_add_u32 v6, 0x10000, v6")
    A.spin_head("L_AV_w")
    A("s_sleep 1")
    A(f"""
    ds_read2_b32 v[124:125], v4 offset0:{(L_CNT+8)//4} offset1:{(L_CNT+24)//4}
    s_waitcnt lgkmcnt(0)
    v_readfirstlane_b32 s44, v125
    v_readfirstlane_b32 s45, v124
    s_cmp_ge_u32 s44, 4
    s_cbranch_scc1 L_AV_x
    s_cmp_lt_u32 s45, 8
    s_cbranch_scc1 L_AV_w
    """)
    chain(0, 8)
    A.lds_spin(L_CNT+24, 4, "v124", "v4")
    tr(8, 12)
    chain(8, 12)
    A("s_branch L_AV_f\nL_AV_x:")
    tr(8, 12)
    A.lds_spin(L_CNT+8, 8, "v124", "v4")
    chain(0, 12)
    A(f"""
    L_AV_f:
    s_mov_b64 exec, 0xffff
    s_nop 5
    v_add_f32 v8, v8, v9
    v_add_f32 v9, v10, v11
    v_add_f32 v12, v12, v13
    v_add_f32 v13, v14, v15
    ds_write_b64 v2, v[8:9] offset:{L_PD}
    ds_write_b64 v2, v[12:13] offset:{L_PD+128}
    s_mov_b64 exec, 1
    ds_add_u32 v4, v7 offset:{L_CNT+32}
    s_mov_b64 exec, -1
    s_waitcnt lgkmcnt(0)
    """)
    A.stamp(8)
    A("s_branch L_end")

    A("L_W:")
    if stamps: A("v_writelane_b32 v127, s98, 0")
    A.stamp(1)
    A(f"""
    v_mov_b32 v18, {L_WCNT}
    ds_write2_b32 v18, v3, v3 offset1:1
    ds_write_b32 v18, v3 offset:8
    v_lshrrev_b32 v8, 5, v0
    v_lshlrev_b32 v8, 6, v8
    v_bfe_u32 v9, v0, 2, 2
    v_lshl_or_b32 v8, v9, 4, v8
    v_bfe_u32 v9, v0, 4, 1
    v_lshl_or_b32 v8, v9, 3, v8
    v_and_b32 v9, 3, v0
    v_lshl_or_b32 v8, v9, 1, v8
    v_add_u32 v8, {L_ACT}, v8
    v_lshrrev_b32 v2, 6, v0
    v_lshlrev_b32 v2, 7, v2
    v_and_b32 v10, 32, v0
    v_or_b32 v2, v2, v10
    v_and_b32 v10, 13, v0
    v_lshl_or_b32 v2, v10, 1, v2
    v_bfe_u32 v10, v0, 1, 1
    v_lshl_or_b32 v2, v10, 6, v2
    v_bfe_u32 v10, v0, 4, 1
    v_lshl_or_b32 v2, v10, 2, v2
    v_add_u32 v2, {L_ACT}, v2
    s_and_b32 s46, s3, 3
    v_bfe_u32 v10, v1, 3, 2
    v_xor_b32 v10, s46, v10
    v_lshlrev_b32 v10, 5, v10
    v_lshrrev_b32 v11, 2, v1
    v_lshl_or_b32 v10, v11, 7, v10
    v_lshl_or_b32 v10, v9, 3, v10
    v_and_b32 v11, 48, v1
    v_add_u32 v11, {L_ACT}, v11
    v_and_b32 v13, 1, v1
    v_mul_u32_u24 v12, {4*ASTR}, v13
    v_add_u32 v12, v11, v12
    v_lshl_add_u32 v11, v13, 6, v11
    v_and_b32 v13, 4, v1
    v_mul_u32_u24 v13, {ASTR}, v13
    v_add_u32 v13, v11, v13
    v_mov_b32 v17, 1
    s_cmp_eq_u32 s5, 8
    s_cbranch_scc1 L_KT
    s_cmp_gt_u32 s5, 8
    s_cbranch_scc1 L_M
    s_waitcnt lgkmcnt(0)
    """)
    A.mktag()
    A(f"""
    s_barrier
    {'s_waitcnt vmcnt(0)' + chr(10) + 's_branch L_end' if diag & 4 else ''}
    s_cmp_ge_u32 s3, 9
    s_cbranch_scc1 L_B_nh
    s_mul_i32 s44, s4, 4608
    s_add_u32 s44, s44, {WS_HL}
    v_lshl_add_u32 v15, v0, 3, s44
    global_load_dwordx2 v[24:25], v15, {sp(WS_)} sc1
    s_waitcnt vmcnt(0)
    """)
    A.lds_inc(0, "v18", "v17")
    A.stamp(2)
    if nb1: vtail(nb1, 2, 0)
    A("s_mov_b32 s7, 0\ns_branch L_B_chk")
    A.dual_head("L_B_h", ["v15"], init=False)
    A(f"s_sleep {ps}")
    A(f"global_load_dwordx2 v[24:25], v15, {sp(WS_)} sc1\ns_waitcnt vmcnt(0)\nL_B_chk:")
    A.tagcheck(["v25"], None, None, "L_B_h")
    A(f"""
    ds_write_b16 v2, v24
    ds_write_b16_d16_hi v2, v24 offset:{4*ASTR}
    s_waitcnt lgkmcnt(0)
    """)
    A.stamp(3)
    A(f"""
    s_barrier
    s_branch L_S5
    L_B_nh:
    """)
    if ql and qpt:
        A(f"""
        s_cmp_lg_u32 s3, 9
        s_cbranch_scc1 L_B_npt
        v_bfe_u32 v15, v1, 4, 1
        v_lshlrev_b32 v15, 17, v15            ; b*16384*8
        v_and_b32 v16, 15, v1
        v_lshl_or_b32 v15, v16, 7, v15
        s_lshl_b32 s44, s47, 11
        s_add_u32 s44, s44, {WS_QL}
        v_add_u32 v15, s44, v15
        global_load_dword v16, v15, {sp(WS_)}{' nt' if qpt == 2 else ' sc1'}
        L_B_npt:
        """)
    A("s_waitcnt vmcnt(0)")
    A.lds_inc(0, "v18", "v17")
    A(f"""
    s_cmp_ge_u32 s3, 12
    s_cbranch_scc1 L_B_m
    s_waitcnt lgkmcnt(0)
    s_barrier
    s_branch L_S5
    L_B_m:
    """)
    A.lds_spin(0, 16, "v16", "v18")
    A.stamp(2)
    A("v_mov_b32 v15, v10")
    bfrags(A, "v15")
    A(f"""
    s_lshl_b32 s44, s47, 8
    s_lshl_b32 s45, s46, 6
    s_add_u32 s44, s44, s45
    s_add_u32 s44, s44, {WS_QG}
    v_and_b32 v15, 15, v1
    v_lshlrev_b32 v15, 2, v15
    v_bfe_u32 v16, v1, 4, 1
    v_lshl_or_b32 v15, v16, 14, v15
    v_add_u32 v15, s44, v15
    """)
    if not ql: pass
    elif qlay:
        A(f"""
        v_subrev_u32 v16, {WS_QG}, v15
        v_and_b32 v17, 0x78, v16
        v_and_b32 v16, 0xffffff80, v16
        v_lshl_or_b32 v16, v16, 3, v17
        v_and_b32 v17, 1, v1
        v_lshl_add_u32 v16, v17, 7, v16
        v_lshrrev_b32 v17, 5, v1
        v_lshl_add_u32 v16, v17, 8, v16
        v_add_u32 v16, {WS_QL}, v16
        """)
    else:
        A(f"""
    v_and_b32 v16, -8, v15
    v_and_b32 v17, 1, v1
    v_lshl_add_u32 v16, v17, 15, v16
    v_lshrrev_b32 v17, 5, v1
    v_lshl_add_u32 v16, v17, 16, v16
    v_add_u32 v16, {WS_QL - WS_QG}, v16
""")
    A(f"""
    """)
    sm_idx(A, "v19")
    A("s_waitcnt lgkmcnt(0)\ns_barrier")
    gemv_sm(A, "v13", "v19")
    A(f"""
    s_nop 7
    v_add_f32 v20, v20, v21
    s_nop 1
    v_mov_b32_dpp v21, v20 quad_perm:[1,1,3,3] {DPPM}
    v_mov_b32_dpp v20, v20 quad_perm:[0,0,2,2] {DPPM}
    v_mov_b32 v23, {TAG}
    v_cvt_pk_bf16_f32 v22, v20, v21
    """)
    if ql:
        for i in range(nr//4):
            A(f"global_store_dwordx2 v16, v[22:23], {sp(WS_)}")
            if i < nr//4 - 1: A(f"v_add_u32 v16, {512 if qlay else 4*32768}, v16")
    A(f"""
    s_mov_b32 exec_lo, 0x55555555
    s_mov_b32 exec_hi, 0
    global_store_dwordx2 v15, v[22:23], {sp(WS_)} sc1
    s_mov_b64 exec, -1
    """)
    A.stamp(4)
    A("s_branch L_S5")

    A(f"""
    L_M:
    """)
    A(f"""
    s_cmp_ge_u32 s3, 9
    s_cbranch_scc1 L_M_c
    v_lshlrev_b32 v15, 1, v0
    global_load_ushort v36, v15, {sp(C_)}
    global_load_ushort v37, v15, {sp(C_)} offset:1152
    L_M_c:
    s_cmp_lt_u32 s55, {NJ}
    s_cbranch_scc1 L_M_a
    s_waitcnt {'lgkmcnt(0)' if m2 else 'vmcnt(0) lgkmcnt(0)'}
    """)
    A.mktag()
    A(f"""
    s_branch L_M_bar1
    L_M_a:
    s_cmp_ge_u32 s3, 9
    s_cbranch_scc1 L_M_bar0
    s_waitcnt vmcnt(0)
    v_lshlrev_b32 v36, 16, v36
    v_lshlrev_b32 v37, 16, v37
    v_mul_f32 v34, 0xbfb8aa3b, v36
    v_mul_f32 v35, 0xbfb8aa3b, v37
    v_exp_f32 v34, v34
    v_exp_f32 v35, v35
    s_nop 0
    v_add_f32 v34, 1.0, v34
    v_add_f32 v35, 1.0, v35
    v_min_f32 v34, 0x7f000000, v34
    v_min_f32 v35, 0x7f000000, v35
    v_rcp_f32 v38, v34
    v_rcp_f32 v39, v35
    s_nop 0
    v_mul_f32 v40, v36, v38
    v_mul_f32 v41, v37, v39
    v_fma_f32 v36, -v40, v34, v36
    v_fma_f32 v37, -v41, v35, v37
    v_fmac_f32 v40, v36, v38
    v_fmac_f32 v41, v37, v39
    v_cvt_pk_bf16_f32 v36, v40, v41
    ds_write_b16 v8, v36
    ds_write_b16_d16_hi v8, v36 offset:{4*ASTR}
    L_M_bar0:
    s_mul_i32 s44, s48, {RW*2}
    v_add_u32 v15, s44, v12
    s_mul_i32 s44, s48, {AGS}
    s_lshl_b32 s45, s49, 9
    s_add_u32 s44, s44, s45
    s_lshl_b32 s45, s46, 7
    s_add_u32 s44, s44, s45
    s_add_u32 s44, s44, {WS_AG}
    v_lshl_add_u32 v18, v1, {4 if x4 else 3}, s44
    s_waitcnt vmcnt(0) lgkmcnt(0)
    """)
    A.mktag()
    A("s_barrier")
    A.stamp(2)
    A(f"s_cmp_lt_u32 s3, 12\ns_cbranch_scc1 L_M_bar1")
    bfrags(A, "v10", 52, RW//32)
    gemv_mfma(A, "v15", nks=RW//32)
    A("s_mov_b64 exec, 0xffff\ns_nop 6\nv_add_u32 v20, 4, v20\nv_add_u32 v21, 4, v21")
    A.epack("v22", "v20", 7); A.epack("v23", "v21", 7)
    if x4:
        A(f"s_nop 0\nv_mov_b32_dpp v24, v22 row_ror:8 {DPPM}\nv_mov_b32_dpp v25, v23 row_ror:8 {DPPM}\ns_mov_b64 exec, 0xff")
        A(f"global_store_dwordx4 v18, v[22:25], {sp(WS_)} sc1\ns_mov_b64 exec, -1")
    else:
        A(f"global_store_dwordx2 v18, v[22:23], {sp(WS_)} sc1\ns_mov_b64 exec, -1")
    A.stamp(3)
    A(f"""
    L_M_bar1:
    s_sub_u32 s44, s5, 9
    s_lshl_b32 s50, s44, 1                ; slot0 = 2(u-9)
    s_add_u32 s51, s50, 1
    s_add_u32 s45, s4, 44
    s_cmp_ge_u32 s4, 4
    s_cselect_b32 s45, s45, 255
    s_cmp_eq_u32 s5, 13
    s_cselect_b32 s51, s45, s51
    s_lshl_b32 s44, s4, 1
    s_add_u32 s44, s44, s5
    s_lshl_b32 s44, s44, 1
    s_sub_u32 s44, s44, {28 - 16}
    s_add_u32 s45, s44, 1
    s_cmp_ge_u32 s5, 14
    s_cselect_b32 s50, s44, s50
    s_cselect_b32 s51, s45, s51
    v_mul_u32_u24 v19, 1152, v4
    v_lshl_add_u32 v19, v6, 4, v19
    s_mul_i32 s44, s4, {512*1152}
    v_add_u32 v19, s44, v19
    """)
    A.srd(12, WO_, 4096*1152)
    A("s_barrier")
    if pt:
        A(f"""
        s_cmp_ge_u32 s3, 3
        s_cbranch_scc1 L_M_pt
        s_cmp_lg_u32 s5, 13
        s_cbranch_scc1 L_M_pt
        s_lshl_b32 s44, s4, 14
        s_lshl_b32 s45, s3, 13
        s_add_u32 s44, s44, s45
        s_add_u32 s44, s44, {WS_OG}
        s_lshl_b32 s45, s4, 11
        s_add_u32 s45, s45, {WS_MLG}
        s_cmp_eq_u32 s3, 2
        s_cselect_b32 s44, s45, s44
        s_cselect_b32 s45, 15, 63
        v_and_b32 v16, s45, v1
        v_lshl_add_u32 v16, v16, 7, s44
        global_load_dword v20, v16, {sp(WS_)} sc1
        L_M_pt:
        """)
    if pp:
        A(f"""
        s_cmp_lg_u32 s5, {13 if pp == 1 else 15}
        s_cbranch_scc1 L_M_pp
        s_sub_u32 s44, s3, 3
        s_cmp_ge_u32 s44, 5
        s_cbranch_scc1 L_M_pp
        v_subrev_u32 v16, 192, v0
        v_min_u32 v16, 287, v16
        v_lshlrev_b32 v16, 7, v16
        v_add_u32 v16, {WS_PX}, v16
        global_load_dword v20, v16, {sp(WS_)} sc1
        L_M_pp:
        """)
    for sl, (reg, buf) in enumerate((("s50", L_BUF0), ("s51", L_BUF1))):
        A(f"""
        s_lshl_b32 s52, {reg}, 7
        s_cmp_ge_u32 {reg}, 16
        s_cbranch_scc1 L_sl{sl}_m
        v_add_u32 v16, s52, v19
        """)
        dma_tile(A, 12, "v16", 1152, buf, 64, '' if wm & 2 else NT)
        A(f"""
        s_branch L_sl{sl}_d
        L_sl{sl}_m:
        s_cmp_eq_u32 {reg}, 255
        s_cbranch_scc1 L_sl{sl}_d
        s_add_u32 s52, s52, {2304 - 16*128}
        v_add_u32 v16, s52, v14
        """)
        dma_tile(A, 8, "v16", 6912, buf, 72, '' if wm & 2 else NT)
        A(f"L_sl{sl}_d:")
    if tw < 16: A(f"""
        s_cmp_lg_u32 s3, {tw}
        s_cbranch_scc1 L_M_tr2
        s_sub_u32 s52, s5, 9
        s_bitcmp0_b32 {tm}, s52
        s_cbranch_scc1 L_M_tr2
        s_lshl_b32 s52, s4, 3
        s_add_u32 s52, s52, s5
        s_lshl_b32 s52, s52, 7
        s_add_u32 s52, s52, {WS_TR - 9*128}
        v_mov_b32 v21, s52
        v_mov_b32 v22, {TAG}
        s_mov_b64 exec, 1
        s_waitcnt vmcnt({tk})
        global_store_dword v21, v22, {sp(WS_)}
        s_mov_b64 exec, -1
        L_M_tr2:
        """)
    A(f"""
    s_waitcnt vmcnt(0)
    s_cmp_ge_u32 s3, 9
    s_cbranch_scc1 L_M_ld
    s_cmp_lt_u32 s55, {NJ}
    s_cbranch_scc1 L_M_ld
    v_lshlrev_b32 v36, 16, v36
    v_lshlrev_b32 v37, 16, v37
    v_mul_f32 v34, 0xbfb8aa3b, v36
    v_mul_f32 v35, 0xbfb8aa3b, v37
    v_exp_f32 v34, v34
    v_exp_f32 v35, v35
    s_nop 0
    v_add_f32 v34, 1.0, v34
    v_add_f32 v35, 1.0, v35
    v_min_f32 v34, 0x7f000000, v34
    v_min_f32 v35, 0x7f000000, v35
    v_rcp_f32 v38, v34
    v_rcp_f32 v39, v35
    s_nop 0
    v_mul_f32 v40, v36, v38
    v_mul_f32 v41, v37, v39
    v_fma_f32 v36, -v40, v34, v36
    v_fma_f32 v37, -v41, v35, v37
    v_fmac_f32 v40, v36, v38
    v_fmac_f32 v41, v37, v39
    v_cvt_pk_bf16_f32 v36, v40, v41
    ds_write_b16 v2, v36
    ds_write_b16_d16_hi v2, v36 offset:{4*ASTR}
    s_waitcnt lgkmcnt(0)
    L_M_ld:
    s_barrier
    """)
    A.stamp(4)
    if diag & 8: A("s_branch L_end")
    A(f"""
    s_cmp_lt_u32 s3, 8
    s_cbranch_scc1 L_H_p
    s_cmp_ge_u32 s3, 12
    s_cselect_b32 s50, s51, s50
    s_cselect_b32 s44, {L_BUF1}, 0
    v_add_u32 v17, s44, v10
    s_cmp_lt_u32 s50, 16
    s_cbranch_scc1 L_A_s4m
    s_cmp_eq_u32 s50, 255
    s_cbranch_scc1 L_H_x
    s_lshl_b32 s44, s50, 9
    s_lshl_b32 s45, s46, 7
    s_add_u32 s44, s44, s45
    s_add_u32 s44, s44, {WS_MG - 16*512}
    v_lshl_add_u32 v18, v1, 3, s44
    """)
    bfrags(A, "v17")
    A(f"v_bfe_u32 v15, v1, 1, 1\nv_mul_u32_u24 v15, {4*ASTR}, v15\nv_add_u32 v15, v11, v15")
    sm_idx(A, "v16")
    gemv_sm(A, "v15", "v16")
    A(f"""
    s_mov_b64 exec, 0xffff
    s_nop 6
    v_add_f32 v20, v20, v21
    v_add_f32 v21, v22, v23
    v_cvt_pk_bf16_f32 v22, v20, v21
    v_mov_b32 v23, {TAG}
    global_store_dwordx2 v18, v[22:23], {sp(WS_)} sc1
    s_mov_b64 exec, -1
    """)
    A.stamp(5)
    A(f"""
    L_H_x:
    s_cmp_eq_u32 s5, 15
    s_cbranch_scc1 L_XR
    s_branch L_end
    L_H_p:
    """)
    if trig and not at and tw >= 16:
        A(f"""
        s_cmp_lg_u32 s3, 0
        s_cbranch_scc1 L_M_tr
        s_lshl_b32 s52, s4, 3
        s_add_u32 s52, s52, s5
        s_lshl_b32 s52, s52, 7
        s_add_u32 s52, s52, {WS_TR - 9*128}
        v_mov_b32 v20, s52
        v_mov_b32 v19, {TAG}
        global_store_dword v20, v19, {sp(WS_)}
        L_M_tr:
        """)
    if hw: A("s_cmp_eq_u32 s5, 14\ns_cbranch_scc1 L_HW")
    A("s_cmp_ge_u32 s5, 14\ns_cbranch_scc1 L_H_x")
    A(f"""
    s_lshl_b32 s50, s4, 4
    s_lshr_b32 s45, s3, 1
    s_lshl_b32 s45, s45, 2
    s_add_u32 s50, s50, s45
    s_and_b32 s44, s3, 1                  ; dh
    s_lshl_b32 s51, s50, 7
    s_add_u32 s51, s51, {WS_MLG}
    v_bfe_u32 v18, v1, 2, 2
    v_lshlrev_b32 v18, 7, v18
    v_lshl_add_u32 v18, v9, 2, v18
    v_add_u32 v18, s51, v18
    s_lshl_b32 s51, s50, 10
    s_lshl_b32 s45, s44, 9
    s_add_u32 s51, s51, s45
    s_add_u32 s51, s51, {WS_OG}
    v_lshl_add_u32 v17, v1, 3, s51
    s_bfe_u32 s45, s3, 0x10001
    s_mul_i32 s45, s45, {ASTR}
    s_lshr_b32 s51, s3, 2
    s_lshl_b32 s51, s51, 9
    s_add_u32 s45, s45, s51
    s_and_b32 s51, s3, 6
    s_lshl_b32 s51, s51, 7
    s_sub_u32 s45, s45, s51
    s_add_u32 s45, s45, {ASTR}
    v_add_u32 v19, s45, v2
    """)
    def oloads():
        for s_ in range(4):
            A(f"global_load_dwordx2 {vr(32+2*s_,2)}, v17, {sp(WS_)} offset:{s_*1024} sc1")
    A.dual_head("L_A_ml", ["v17", "v18"])
    A(f"""
    global_load_dword v20, v18, {sp(WS_)} sc1
    s_waitcnt vmcnt(0)
    v_xor_b32 v20, {ETAG}, v20
    v_and_b32 v21, 63, v20
    v_cmp_ne_u32 vcc, 0, v21
    s_cbranch_vccnz L_A_ml
    """)
    oloads()
    A(f"""
    v_max_f32_dpp v21, v20, v20 row_ror:4 {DPPM}
    v_mov_b32_dpp v23, v20 quad_perm:[1,1,3,3] {DPPM}
    s_nop 0
    v_max_f32_dpp v21, v21, v21 row_ror:8 {DPPM}
    v_sub_f32 v22, v20, v21
    v_mul_f32 v22, {hex(LOG2E)}, v22
    v_exp_f32 v22, v22
    s_nop 0
    v_mul_f32 v23, v22, v23
    s_nop 1
    v_add_f32_dpp v23, v23, v23 row_ror:4 {DPPM}
    s_nop 1
    v_add_f32_dpp v23, v23, v23 row_ror:8 {DPPM}
    v_rcp_f32 v23, v23
    s_nop 0
    v_mul_f32 v22, v22, v23
    """)
    A.stamp(7)
    A("s_branch L_A_ochk")
    A.dual_head("L_A_h3", ["v17"], init=False)
    oloads()
    A("L_A_ochk:")
    for s_ in range(4):
        a, b = 32+2*s_, 33+2*s_
        A(f"s_waitcnt vmcnt({3-s_})\nv_xor_b32 v{a}, {ETAG}, v{a}\nv_xor_b32 v{b}, {ETAG}, v{b}")
        A(f"v_or_b32 v20, v{a}, v{b}" if s_ == 0 else f"v_or3_b32 v20, v{a}, v{b}, v20")
        op = "v_mul_f32_dpp" if s_ == 0 else "v_fmac_f32_dpp"
        A(f"{op} v30, v22, v{a} row_newbcast:{4*s_} {DPPM}\n{op} v31, v22, v{b} row_newbcast:{4*s_+2} {DPPM}")
    A("v_and_b32 v20, 63, v20\nv_cmp_ne_u32 vcc, 0, v20\ns_cbranch_vccnz L_A_h3")
    A(f"""
    v_cvt_pk_bf16_f32 v30, v30, v31
    ds_write_b16 v19, v30
    ds_write_b16_d16_hi v19, v30 offset:256
    s_waitcnt lgkmcnt(0)
    s_barrier
    """)
    if fl: A(f"""
        s_cmp_lg_u32 s5, 9
        s_cbranch_scc1 L_H_nf
        s_cmp_gt_u32 s3, 1
        s_cbranch_scc1 L_H_nf
        v_cmp_gt_u32 vcc, 72, v0
        s_and_saveexec_b64 s[44:45], vcc
        {f's_sleep {fpos}' if fpos else ''}
        global_store_dword v40, v41, {sp(WS_)} sc1
        s_mov_b64 exec, -1
        L_H_nf:
        """)
    A.stamp(8)
    if hw:
        A(f"""
        L_HW:
        s_mul_i32 s44, s3, 6
        s_add_u32 s44, s44, s5
        s_sub_u32 s44, s44, 9
        s_cmp_ge_u32 s44, 8
        s_cbranch_scc1 L_end
        s_mul_i32 s44, s44, 4608
        s_add_u32 s44, s44, {WS_PX + 124}
        v_min_u32 v16, 35, v1
        v_lshl_add_u32 v16, v16, 7, s44
        s_mov_b32 s7, 0
        L_HW_p:
        global_load_dword v17, v16, {sp(WS_)} sc1
        s_add_u32 s7, s7, 1
        s_cmp_gt_u32 s7, {NLOC}
        s_cbranch_scc1 L_end
        s_waitcnt vmcnt(0)
        v_and_b32 v17, 63, v17
        v_cmp_ne_u32 vcc, {ETAG}, v17
        s_cbranch_vccnz L_HW_p
        """)
    A("s_branch L_end")
    A(f"""
    L_A_s4m:
    v_bfe_u32 v18, v1, 1, 1
    v_mul_u32_u24 v18, {ASTR}, v18
    v_add_u32 v18, v18, v11
    v_add_u32 v18, {ASTR}, v18
    s_mul_i32 s45, s4, 4608
    s_lshl_b32 s44, s50, 9
    s_add_u32 s45, s45, s44
    s_lshl_b32 s44, s46, 7
    s_add_u32 s45, s45, s44
    s_add_u32 s45, s45, {WS_PC if pc else WS_PX}
    v_lshl_add_u32 v19, {'v7' if pc else 'v1'}, {4 if x4 else 3}, s45
    {'v_mul_u32_u24 v16, 36864, v4' + chr(10) + 'v_add_u32 v19, v19, v16' + chr(10) + 's_mov_b32 s56, 0xff00ff00' + chr(10) + 's_mov_b32 s57, 0xff00ff00' if pc else ''}
    {f's_mov_b64 exec, 0xffff' + chr(10) + f'global_load_dword v125, v19, {sp(WS_)} sc1' + chr(10) + 's_mov_b64 exec, -1' if ppt else ''}
    """)
    bfrags(A, "v17", 56, 16)
    sm_idx(A, "v16")
    A("s_waitcnt lgkmcnt(0)\ns_barrier")
    gemv_sm(A, "v18", "v16", vb=56, depth=8, nch=8)
    A("s_mov_b64 exec, 0xffff\ns_nop 6\nv_add_f32 v20, v20, v21\nv_add_f32 v21, v22, v23")
    A.epack("v24", "v20"); A.epack("v25", "v21")
    if pc:
        A(f"""
        v_mov_b32 v26, v24
        v_mov_b32 v27, v25
        v_mov_b32_dpp v24, v24 row_ror:8 row_mask:0xf bank_mask:0xc
        v_mov_b32_dpp v25, v25 row_ror:8 row_mask:0xf bank_mask:0xc
        v_mov_b32_dpp v26, v26 row_ror:8 row_mask:0xf bank_mask:0x3
        v_mov_b32_dpp v27, v27 row_ror:8 row_mask:0xf bank_mask:0x3
        global_store_dwordx4 v19, v[24:27], {sp(WS_)} sc1
        """)
    elif x4:
        A(f"s_nop 0\nv_mov_b32_dpp v26, v24 row_ror:8 {DPPM}\nv_mov_b32_dpp v27, v25 row_ror:8 {DPPM}\ns_mov_b64 exec, 0xff")
        A(f"global_store_dwordx4 v19, v[24:27], {sp(WS_)} sc1\ns_mov_b64 exec, -1")
    else:
        A(f"global_store_dwordx2 v19, v[24:25], {sp(WS_)} sc1\ns_mov_b64 exec, -1")
    A.stamp(9)
    if wb0: A("s_cmp_lg_u32 s5, 13\ns_cbranch_scc1 L_end\ns_cmp_lg_u32 s3, 8\ns_cbranch_scc1 L_end\ns_waitcnt vmcnt(0)\nbuffer_wbl2 sc1\ns_waitcnt vmcnt(0)")
    A("s_branch L_end")

    A("L_KT:\ns_waitcnt lgkmcnt(0)")
    A.mktag()
    A(f"""
    s_cmp_ge_u32 s3, 9
    s_cbranch_scc1 L_S5
    v_lshlrev_b32 v15, 1, v0
    global_load_ushort v33, v15, {sp(X_)}
    global_load_ushort v34, v15, {sp(X_)} offset:1152
    s_mul_i32 s44, s4, 4608
    s_add_u32 s44, s44, {WS_HL}
    v_lshl_add_u32 v55, v0, 3, s44
    global_load_dword v57, v55, {sp(WS_)} sc1
    v_mul_u32_u24 v15, 36, v1
    global_load_dwordx4 v[24:27], v15, {sp(X_)}
    global_load_dwordx4 v[28:31], v15, {sp(X_)} offset:16
    global_load_dword v32, v15, {sp(X_)} offset:32
    v_lshlrev_b32 v15, 3, v0
    """)
    if x4: A("""    v_and_b32 v15, -16, v0
    v_lshlrev_b32 v15, 3, v15
    v_lshl_or_b32 v15, v7, 4, v15
    v_and_b32 v39, 8, v0
    v_or_b32 v15, v15, v39
""")
    A(f"""
    v_add_u32 v52, {WS_AG + 2304}, v15
    v_add_u32 v53, {WS_AG + 2304 + AGS}, v15
    {f'v_add_u32 v54, {WS_AG + 2304 + 2*AGS}, v15' if ks == 3 else ''}
    """)
    def ag_loads():
        for k in range(ks):
            A(f"global_load_dwordx2 {vr(40+4*k,2)}, v{52+k}, {sp(WS_)} offset:-2304 sc1")
            A(f"global_load_dwordx2 {vr(42+4*k,2)}, v{52+k}, {sp(WS_)} offset:2304 sc1")
    A(f"""
    s_mov_b32 s44, 0x3f803f80
    v_mov_b32 v35, 0
    v_mov_b32 v36, 0
    s_waitcnt vmcnt(0)
    v_mov_b32 v61, {TAG}
    """)
    for i in range(9):
        A(f"v_dot2_f32_bf16 v35, v{24+i}, s44, v35\nv_dot2_f32_bf16 v36, v{24+i}, v{24+i}, v36")
    A("s_nop 2")
    A.row_reduce("v_add_f32", ["v35", "v36"])
    A(f"""
    v_mov_b32 v37, v35
    v_mov_b32 v38, v36
    s_nop 0
    v_permlane16_swap_b32 v35, v37
    v_permlane16_swap_b32 v36, v38
    v_add_f32 v35, v35, v37
    v_add_f32 v36, v36, v38
    v_mul_f32 v35, {INV576}, v35
    v_mul_f32 v36, {INV576}, v36
    v_fma_f32 v36, -v35, v35, v36
    """)
    ln_finish(A, "v35", "v36", "v38")
    A("""
    v_readlane_b32 s48, v35, 0
    v_readlane_b32 s49, v35, 32
    v_readlane_b32 s50, v38, 0
    v_readlane_b32 s51, v38, 32
    v_readlane_b32 s52, v36, 0
    v_readlane_b32 s53, v36, 32
    v_lshlrev_b32 v33, 16, v33
    v_lshlrev_b32 v34, 16, v34
    v_subrev_f32 v33, s48, v33
    v_subrev_f32 v34, s49, v34
    """)
    A.r1("v33", "v34")
    A("""
    v_mul_f32 v37, s50, v33
    v_mul_f32 v38, s51, v34
    v_fma_f32 v33, -v37, s52, v33
    v_fma_f32 v34, -v38, s53, v34
    v_fma_f32 v33, v33, s50, v37
    v_fma_f32 v34, v34, s51, v38
    """)
    A.r1("v33", "v34")
    A("s_mov_b32 s7, 0")
    if hs: A(f"s_sleep {hs}")
    A(f"L_HR_h:\ns_add_u32 s7, s7, 1\ns_cmp_gt_u32 s7, {SPIN}\ns_cbranch_scc1 L_end\ns_sleep {hp}")
    ag_loads()
    A("s_waitcnt vmcnt(0)")
    A.etagcheck([f"v{40+i}" for i in range(4*ks)], "v39", "L_HR_h", "s100", 7)
    for i in range(4): A(f"v_add_f32 v{40+i}, v{40+i}, v{44+i}")
    if ks == 3:
        for i in range(4): A(f"v_add_f32 v{40+i}, v{40+i}, v{48+i}")
    A.r1("v40", "v41", "v42", "v43")
    A("v_add_f32 v42, 1.0, v42\nv_add_f32 v43, 1.0, v43")
    A.r1("v42", "v43")
    A("v_mul_f32 v42, v33, v42\nv_mul_f32 v43, v34, v43")
    A.r1("v42", "v43")
    A(f"""
    v_add_f32 v42, v42, v40
    v_add_f32 v43, v43, v41
    v_cvt_pk_bf16_f32 v60, v42, v43
    """)
    if dq: A(f"s_sleep {dq}")
    A.dual_store("global_store_dwordx2", "v55", "v[60:61]")
    A.stamp(3)
    A("s_branch L_S5")
    A("L_XR:")
    if diag & 8: A("s_branch L_end")
    A(f"""
    v_lshlrev_b32 v16, 2, v0
    v_min_u32 v16, 1532, v16
    v_add_u32 v16, {L_ST}, v16
    ds_write_b32 v16, v3
    v_mov_b32 v21, {L_WCNT}
    v_mov_b32 v22, 1
    s_waitcnt lgkmcnt(0)
    s_barrier
    s_cmp_eq_u32 s3, 9
    s_cbranch_scc1 L_XR_stat
    s_cmp_gt_u32 s3, 9
    s_cbranch_scc1 L_end
    v_lshlrev_b32 v16, 1, v0
    global_load_ushort v80, v16, {sp(X_)}
    global_load_ushort v81, v16, {sp(X_)} offset:1152
    v_lshlrev_b32 v16, 3, v0
    v_add_u32 v17, {WS_MG + 2304}, v16
    v_add_u32 v18, {WS_MG + 9216}, v16
    """)
    if x4: A("""    v_and_b32 v16, -16, v0
    v_lshlrev_b32 v16, 3, v16
    v_lshl_or_b32 v16, v7, 4, v16
    v_and_b32 v30, 8, v0
    v_or_b32 v16, v16, v30
""")
    if pc: A("s_mul_i32 s44, s4, 36864\nv_add_u32 v16, s44, v16")
    for k in range(4): A(f"v_add_u32 v{88+k}, {(WS_PC if pc else WS_PX) + 2304 + k*9216}, v16")
    A(f"""
    s_mul_i32 s44, s4, 4608
    s_lshl_b32 s44, s44, 1
    s_add_u32 s45, s44, {WS_RG}
    v_lshl_add_u32 v26, v0, 4, s45
    s_add_u32 s45, s44, {WS_XA}
    v_lshl_add_u32 v27, v0, 4, s45
    v_and_b32 v24, 48, v1
    v_lshlrev_b32 v24, 2, v24
    s_lshl_b32 s44, s3, 2
    s_add_u32 s44, s44, {L_ST}
    v_add_u32 v24, s44, v24
    s_mov_b32 s56, 0x00010001
    s_mov_b32 s57, 0x00010001
    """)
    def partial_stats(off, r):
        for i in range(6): A(f"v_permlane32_swap_b32 v{r+2*i}, v{r+1+2*i}")
        for i in range(6): A(f"v_add_f32 v{r+2*i}, v{r+2*i}, v{r+1+2*i}")
        A("s_nop 0")
        for i in range(3): A(f"v_permlane16_swap_b32 v{r+4*i}, v{r+2+4*i}")
        for i in range(3): A(f"v_add_f32 v{r+4*i}, v{r+4*i}, v{r+2+4*i}")
        A.row_reduce("v_add_f32", [f"v{r}", f"v{r+4}", f"v{r+8}"])
        A(f"""
        s_mov_b64 exec, s[56:57]
        ds_write_b32 v24, v{r} offset:{off}
        ds_write_b32 v24, v{r+4} offset:{off+256}
        ds_write_b32 v24, v{r+8} offset:{off+512}
        s_mov_b64 exec, -1
        """)
    A(f"""
    s_mov_b32 s7, 0
    s_movk_i32 s60, {0x100 if mgf else 0x1ff}
    s_branch L_XR_px
    """)
    for k in range(8):
        A(f"L_px_i{k}:")
        A(f"global_load_dwordx2 {vr(96+2*k,2)}, v{88+k//2}, {sp(WS_)} offset:{2304 if k & 1 else -2304} sc1")
        A(f"s_branch L_px_l{k}")
    for k in range(8):
        A(f"""
        L_px_k{k}:
        v_xor_b32 v{96+2*k}, {ETAG}, v{96+2*k}
        v_xor_b32 v{97+2*k}, {ETAG}, v{97+2*k}
        v_or_b32 v30, v{96+2*k}, v{97+2*k}
        v_and_b32 v30, 63, v30
        v_cmp_ne_u32 vcc, 0, v30
        s_cbranch_vccnz L_px_c{k}
        s_andn2_b32 s60, s60, {1 << k}
        s_cbranch_scc0 L_XR_done
        s_branch L_px_c{k}
        """)
    A("L_px_mg:")
    for j, (r, o) in enumerate((("v17", -2304), ("v17", 2304), ("v18", 0))):
        A(f"global_load_dwordx2 {vr((40, 34, 42)[j],2)}, {r}, {sp(WS_)} offset:{o} sc1")
    A("s_waitcnt vmcnt(0)")
    A.tagcheck(["v41", "v35", "v43", "v43"], "v30", "v31", "L_px_m")
    A(f"""
    s_bitset0_b32 s60, 8
    v_lshlrev_b32 v82, 16, v40
    v_and_b32 v83, 0xffff0000, v40        ; ga
    v_and_b32 v43, 0xffff0000, v42
    v_lshlrev_b32 v42, 16, v42
    v_add_f32 v42, 1.0, v42
    v_add_f32 v43, 1.0, v43
    v_cvt_pk_bf16_f32 v32, v42, v43       ; g
    v_mov_b32 v33, {TAG}
    """)
    A(f"""
    global_store_dwordx4 v26, v[32:35], {sp(WS_)}
    v_mov_b32 v36, v32
    v_mov_b32 v37, v33
    v_mov_b32 v38, v34
    v_mov_b32 v39, v35
    v_lshlrev_b32 v80, 16, v80
    v_lshlrev_b32 v81, 16, v81
    v_lshlrev_b32 v84, 16, v32
    v_and_b32 v85, 0xffff0000, v32
    v_lshlrev_b32 v86, 16, v34
    v_and_b32 v87, 0xffff0000, v34
    v_mov_b32 v44, v84
    v_mov_b32 v45, v85
    v_mul_f32 v46, v84, v84
    v_mul_f32 v47, v85, v85
    v_mov_b32 v48, v86
    v_mov_b32 v49, v87
    v_mul_f32 v50, v86, v86
    v_mul_f32 v51, v87, v87
    v_mul_f32 v52, v84, v86
    v_mul_f32 v53, v85, v87
    v_mov_b32 v54, 0
    v_mov_b32 v55, 0
    """)
    partial_stats(0, 44)
    A.lds_inc(4, "v21", "v22")
    A.stamp(6)
    A("s_movk_i32 s60, 0xff\nL_XR_px:" if mgf else "s_branch L_px_m2\nL_XR_px:")
    for k in range(8):
        A(f"s_bitcmp1_b32 s60, {k}\ns_cbranch_scc1 L_px_i{k}\nL_px_l{k}:")
    A(f"""
    s_add_u32 s7, s7, 1
    s_cmp_gt_u32 s7, {SPIN}
    s_cbranch_scc1 L_end
    s_bitcmp1_b32 s60, 8
    s_cbranch_scc1 L_px_mg
    L_px_m:
    s_waitcnt vmcnt(0)
    L_px_m2:
    """)
    for k in range(8):
        A(f"s_bitcmp1_b32 s60, {k}\ns_cbranch_scc1 L_px_k{k}\nL_px_c{k}:")
    A("s_cmp_lg_u32 s60, 0\ns_cbranch_scc1 L_XR_px\nL_XR_done:")
    A.stamp(10)
    for i in range(4): A(f"v_pk_add_f32 {vr(96+2*i,2)}, {vr(96+2*i,2)}, {vr(104+2*i,2)}")
    for i in range(2): A(f"v_pk_add_f32 {vr(96+2*i,2)}, {vr(96+2*i,2)}, {vr(100+2*i,2)}")
    A("v_pk_add_f32 v[96:97], v[96:97], v[98:99]")
    A.r1("v96", "v97")
    A("v_pk_mul_f32 v[96:97], v[82:83], v[96:97]")
    A.r1("v96", "v97")
    A(f"""
    v_pk_add_f32 v[98:99], v[80:81], v[96:97]
    v_cvt_pk_bf16_f32 v96, 0, v98
    v_cvt_pk_bf16_f32 v97, 0, v99         ; x1
    v_cvt_pk_bf16_f32 v34, v98, v99
    v_pk_mul_f32 v[102:103], v[96:97], v[84:85]
    v_cvt_pk_bf16_f32 v32, v102, v103
    global_store_dwordx4 v27, v[32:35], {sp(WS_)}
    v_cvt_pk_bf16_f32 v100, 0, v102
    v_cvt_pk_bf16_f32 v101, 0, v103       ; a
    v_pk_mul_f32 v[98:99], v[96:97], v[96:97]
    v_pk_mul_f32 v[102:103], v[100:101], v[100:101]
    v_pk_mul_f32 v[104:105], v[100:101], v[84:85]
    v_pk_mul_f32 v[106:107], v[100:101], v[86:87]
    """)
    partial_stats(768, 96)
    A("s_waitcnt lgkmcnt(0)\ns_barrier")
    A("s_barrier")
    A(f"v_add_u32 v27, {WS_GOFF}, v27\nglobal_store_dwordx4 v27, v[32:35], {sp(WS_)} sc1")
    A(f"v_add_u32 v26, {WS_GOFF}, v26\nglobal_store_dwordx4 v26, v[36:39], {sp(WS_)} sc1")
    A.stamp(11)
    A(f"""
    s_branch L_end
    L_XR_stat:
    v_lshlrev_b32 v22, 2, v1
    v_add_u32 v22, {L_ST}, v22
    v_lshrrev_b32 v20, 5, v1
    s_lshl_b32 s44, s4, 7
    s_add_u32 s44, s44, {WS_CF}
    v_lshl_add_u32 v20, v20, 4, s44
    global_load_dword v23, v20, {sp(WS_)} sc1
    """)
    def gather_stats(off, cnt, r, sleep):
        if sleep: A.lds_spin(cnt, 9, "v23", "v21")
        else: A("s_barrier")
        A(f"""
        ds_read_b32 v{r}, v22 offset:{off}
        ds_read_b32 v{r+2}, v22 offset:{off+256}
        ds_read_b32 v{r+4}, v22 offset:{off+512}
        s_waitcnt lgkmcnt(0)
        """)
        A.row_reduce("v_add_f32", [f"v{r}", f"v{r+2}", f"v{r+4}"])
        k3 = f2h((2.0 if sleep else -2.0)/576)
        for q in (r, r+2, r+4): A(f"v_mul_f32 v{q+1}, {k3 if q == r+4 else INV576}, v{q}")
        for q in (r, r+2, r+4): A(f"v_mul_f32 v{q}, {k3 if q == r+4 else INV576}, v{q}")
        for q in (r, r+2, r+4): A(f"v_permlane16_swap_b32 v{q}, v{q+1}")
    A("s_waitcnt vmcnt(0)")
    gather_stats(0, 4, 100, True)
    gather_stats(768, 8, 84, False)
    A(f"""
    v_fma_f32 v85, -v84, v84, v85
    v_max_f32 v85, 0, v85
    v_cvt_pk_bf16_f32 v85, 0, v85
    v_add_f32 v85, 0x3727c5ac, v85
    v_cvt_pk_bf16_f32 v85, 0, v85
    v_sqrt_f32 v85, v85
    v_cvt_pk_bf16_f32 v84, 0, v84         ; mu1
    v_cvt_pk_bf16_f32 v85, 0, v85
    v_rcp_f32 v90, v85                    ; r1
    v_fma_f32 v88, v84, v101, v88
    v_fma_f32 v86, -v84, v100, v86
    v_fma_f32 v89, v84, v104, v89
    v_fma_f32 v87, v84, v88, v87
    v_fma_f32 v86, v90, v86, v102         ; mean2
    v_fma_f32 v87, v90, v87, -v89
    v_fma_f32 v87, v90, v87, v103         ; E[h2^2]
    v_fma_f32 v87, -v86, v86, v87         ; var2
    v_max_f32 v87, 0, v87
    v_cvt_pk_bf16_f32 v87, 0, v87
    v_add_f32 v87, 0x3727c5ac, v87
    v_cvt_pk_bf16_f32 v87, 0, v87
    v_sqrt_f32 v87, v87
    v_cvt_pk_bf16_f32 v86, 0, v86         ; mu2
    v_cvt_pk_bf16_f32 v87, 0, v87
    v_rcp_f32 v94, v87                    ; r2 = c2
    v_mul_f32 v93, -v84, v90
    v_mul_f32 v92, v90, v94               ; c0
    v_mul_f32 v95, -v86, v94              ; c3
    v_mul_f32 v93, v93, v94               ; c1
    """)
    for r in range(92, 96): A.epack(f"v{r}", f"v{r}")
    A("s_mov_b32 exec_lo, 1\ns_mov_b32 exec_hi, 1")
    A.dual_store("global_store_dwordx4", "v20", "v[92:95]")
    A("s_mov_b64 exec, -1\ns_barrier")
    if wb: A(f"s_sleep {wb}\nbuffer_wbl2 sc1\ns_waitcnt vmcnt(0)")
    A.stamp(12)
    A("s_branch L_end")

    A(f"""
    L_S5:
    {'s_branch L_end' if diag & 8 else ''}
    s_mul_i32 s47, s4, 9
    """)
    if sw:
        A(f"""
        s_lshr_b32 s44, s{W1_}, 7
        s_add_u32 s44, s44, s4
        s_sub_u32 s44, 3, s44
        s_and_b32 s44, s44, 7
        s_cmp_eq_u32 s5, s44
        s_cselect_b32 s45, 8, s5
        s_cmp_eq_u32 s5, 8
        s_cselect_b32 s45, s44, s45
        s_add_u32 s47, s47, s45               ; f
        """)
    else:
        A("s_add_u32 s47, s47, s5")
    A.srd(8, W1_, 576*9216)
    A.srd(12, W2_, 4608*1152)
    A(f"""
    s_lshl_b32 s44, s47, 7
    v_mul_u32_u24 v14, 9216, v4
    v_lshl_add_u32 v14, v6, 4, v14
    v_add_u32 v14, s44, v14
    s_lshl_b32 s45, s46, 5
    s_add_u32 s44, s44, s45
    v_and_b32 v15, 15, v1
    v_lshl_add_u32 v15, v15, 1, s44
    global_load_ushort v19, v15, {sp(B1_)}
    """)
    if not w16: A(f"""
    v_mul_u32_u24 v15, 0x38f, v0
    v_lshrrev_b32 v15, 16, v15
    v_mul_u32_u24 v16, 72, v15
    v_sub_u32 v16, v0, v16
    v_and_b32 v17, 6, v15
    v_xor_b32 v16, v16, v17
    v_mul_u32_u24 v15, 1152, v15
    v_lshl_add_u32 v15, v16, 4, v15
    """)
    if w16:
        for i in range(5):
            A(f"""
            v_add_u32 v16, {1024*i}, v0
            v_mul_u32_u24 v17, 0xe39, v16
            v_lshrrev_b32 v17, 18, v17
            v_and_b32 v17, 6, v17
            v_xor_b32 v16, v16, v17
            v_lshlrev_b32 v{96+i}, 4, v16
            """)
    A(f"""
    s_mul_i32 s49, s4, 9216
    s_add_u32 s45, s49, {WS_RG}
    v_lshl_add_u32 v80, v0, 4, s45
    s_add_u32 s45, s49, {WS_XA}
    v_lshl_add_u32 v81, v0, 4, s45
    v_lshrrev_b32 v20, 2, v1
    v_mul_u32_u24 v20, 1152, v20
    v_lshl_add_u32 v20, v9, 3, v20
    v_add_u32 v20, {L_BUF1}, v20
    v_bfe_u32 v17, v1, 3, 2
    s_mul_i32 s48, s3, 3
    """)
    for i in range(3):
        A(f"s_add_u32 s44, s48, {i}\nv_xor_b32 v{92+i}, s44, v17\nv_lshl_add_u32 v{92+i}, v{92+i}, 5, v20")
    A(f"""
    s_mul_i32 s44, s48, {2*4608}
    s_lshl_b32 s45, s47, 6
    s_add_u32 s44, s44, s45
    s_add_u32 s44, s44, {WS_FG}
    v_mul_u32_u24 v20, 4608, v4
    v_lshl_add_u32 v20, v7, 3, v20
    v_add_u32 v76, s44, v20
    v_lshlrev_b32 v79, 6, v9
    v_and_b32 v20, 48, v1
    v_add_u32 v79, v79, v20
    v_add_u32 v79, {L_H1}, v79
    s_lshl_b32 s44, s47, 3
    v_add_u32 v77, s44, v7                ; col
    v_lshrrev_b32 v78, 5, v1              ; b
    v_mul_u32_u24 v82, 1152, v78
    v_lshl_add_u32 v82, v77, 1, v82
    v_lshlrev_b32 v83, 1, v77
    s_cmp_lg_u32 s3, 10
    s_cbranch_scc1 L_S5_nf
    global_load_ushort v84, v83, {sp(B2_)}
    {f'global_load_ushort v85, v82, {sp(OUT_)}' if ot else ''}
    L_S5_nf:
    v_lshlrev_b32 v83, 3, v77
    v_add_u32 v83, {WS_MG + 1728*8}, v83
    s_add_u32 s44, s49, {WS_XA + 8}
    v_lshl_add_u32 v77, v77, 4, s44
    v_lshlrev_b32 v78, 4, v78             ; 16*b
    s_mul_i32 s44, s47, 4608
    s_add_u32 s44, s44, {WS_FG + 2048}
    v_lshl_add_u32 v88, v1, 3, s44
    v_mov_b32 v21, {L_WCNT}
    v_mov_b32 v22, 1
    """)
    if nb2:
        A(f"""
        s_barrier
        s_cmp_eq_u32 s5, 8
        s_cbranch_scc1 L_vt2
        s_lshr_b32 s44, s{W1_}, 7
        s_add_u32 s44, s44, s47
        s_and_b32 s44, s44, 7
        s_cmp_eq_u32 s44, 3
        s_cbranch_scc1 L_vt2
        """)
        vtail(nb2, 3, 0)
        A("L_vt2:")
    if trig:
        A(f"""
        s_cmp_lg_u32 s3, 11
        s_cbranch_scc1 L_S5_tb
        s_lshr_b32 s44, s{W1_}, 7
        s_add_u32 s44, s44, s47
        s_and_b32 s44, s44, 7
        s_cmp_eq_u32 s44, {3 if c3 else 9}
        s_cbranch_scc1 L_S5_tb
        """)
        if at:
            A(f"""
            s_lshl_b32 s44, s4, 5
            v_mov_b32 v16, s44
            s_mov_b32 s7, 0
            L_S5_trig:
            s_sleep {ps}
            global_load_dword v17, v16, s[94:95] sc1
            s_add_u32 s7, s7, 1
            s_cmp_gt_u32 s7, {NLOC//2}
            s_cbranch_scc1 L_S5_tb
            s_waitcnt vmcnt(0)
            v_readfirstlane_b32 s44, v17
            s_cmp_lt_u32 s44, {an}
            """)
        else:
            A(f"""
        s_lshl_b32 s44, s4, 10
        s_add_u32 s44, s44, {WS_TR}
        v_lshl_add_u32 v16, v7, 7, s44
        s_mov_b32 s7, 0
        L_S5_trig:
        s_sleep {ps}
        global_load_dword v17, v16, {sp(WS_)} sc1
        s_add_u32 s7, s7, 1
        s_cmp_gt_u32 s7, {NLOC//2}
        s_cbranch_scc1 L_S5_tb
        s_waitcnt vmcnt(0)
        v_cmp_eq_u32 vcc, {TAG}, v17
        s_and_b32 s44, vcc_lo, {tm}
        s_bcnt1_i32_b32 s44, s44
        s_cmp_lt_u32 s44, {trig}
""")
        A(f"""
        s_cbranch_scc1 L_S5_trig
        L_S5_tb:
        """)
    A("s_barrier")
    A.stamp(5)
    dma_tile(A, 8, "v14", 9216, L_BUF0, 72, '' if wm & 4 else NT)
    A(f"""
    s_barrier
    """)
    if w16:
        A(f"s_mul_i32 s44, s47, {64*1152}\ns_lshl_b32 s45, s3, 10\ns_add_u32 s45, s45, {L_BUF1 + 4*16384}")
        A("s_cmp_ge_u32 s3, 8\ns_cbranch_scc1 L_S5_w4")
        for i in (4, 3, 2, 1, 0):
            A(f"s_mov_b32 m0, s45\ns_nop 0\nbuffer_load_dwordx4 v{96+i}, s[12:15], s44 offen{NT} lds")
            if i == 4: A("L_S5_w4:")
            if i: A("s_sub_u32 s45, s45, 16384")
        A("s_cmp_ge_u32 s3, 9\ns_cbranch_scc1 L_S5_hi")
        A(f"global_load_dwordx4 v[24:27], v80, {sp(WS_)} sc1\ns_waitcnt vmcnt(5)")
    else:
        A(f"""
    s_cmp_ge_u32 s3, 9
    s_cbranch_scc1 L_S5_hi
    s_mul_i32 s44, s47, {64*1152}
    s_lshl_b32 s45, s3, 10
    s_add_u32 s45, s45, {L_BUF1}
    """)
        for o in range(8):
            A(f"s_mov_b32 m0, s45\ns_add_u32 s45, s45, 9216")
            A(f"buffer_load_dwordx4 v15, s[12:15], s44 offen{'' if wm & 8 else NT} lds")
            A(f"s_add_u32 s44, s44, 9216")
        A(f"global_load_dwordx4 v[24:27], v80, {sp(WS_)} sc1\ns_waitcnt vmcnt(9)")
    A.lds_inc(4, "v21", "v22")
    if stamps and not LITE:
        A("s_waitcnt vmcnt(0)"); A.stamp(15)
    A("s_mov_b32 s7, 0\ns_branch L_S5_rgc")
    A.dual_head("L_S5_rg", ["v80", "v81"], init=False)
    A(f"s_sleep {ps}\nglobal_load_dwordx4 v[24:27], v80, {sp(WS_)} sc1\nL_S5_rgc:\ns_waitcnt vmcnt(0)")
    A.tagcheck(["v25", "v27"], "v30", "v31", "L_S5_rg")
    A(f"""
    v_mov_b32 v35, 0x3f80
    ds_write_b16 v2, v24 offset:{ASTR}
    ds_write_b16_d16_hi v2, v24 offset:{5*ASTR}
    ds_write_b16 v2, v26 offset:{2*ASTR}
    ds_write_b16_d16_hi v2, v26 offset:{6*ASTR}
    ds_write_b16 v2, v35 offset:{3*ASTR}
    ds_write_b16 v2, v35 offset:{7*ASTR}
    s_waitcnt lgkmcnt(0)
    {f's_sleep {ds5}' if ds5 else ''}
    s_barrier
    global_load_dwordx2 v[24:25], v81, {sp(WS_)} sc1
    """)
    A.stamp(6)
    def w2frags():
        for i in range(3):
            for ks in range(2):
                for half in range(2):
                    A(f"ds_read_b64_tr_b16 {vr(52+i*8+ks*4+half*2,2)}, v{92+i} offset:{(ks*32+half*16)*1152}")
    w2frags()
    A("s_branch L_S5_xac")
    A.dual_head("L_S5_xa", ["v81"], init=False)
    A(f"global_load_dwordx2 v[24:25], v81, {sp(WS_)} sc1\nL_S5_xac:\ns_waitcnt vmcnt(0)")
    A.tagcheck(["v25"], None, None, "L_S5_xa")
    A(f"""
    ds_write_b16 v2, v24
    ds_write_b16_d16_hi v2, v24 offset:{4*ASTR}
    s_waitcnt lgkmcnt(0)
    s_barrier
    """)
    A.stamp(7)
    A(f"""
    s_branch L_S5_g2
    L_S5_hi:
    s_waitcnt vmcnt({4 if w16 else 0})
    """)
    A.lds_inc(4, "v21", "v22")
    A(f"""
    s_cmp_ge_u32 s3, 12
    s_cbranch_scc1 L_S5_g1
    s_waitcnt vmcnt(0)
    s_barrier
    """)
    w2frags()
    A(f"""
    s_cmp_lg_u32 s3, 10
    s_cbranch_scc1 L_S5_h2
    global_load_dwordx2 v[86:87], v83, {sp(WS_)} sc1
    s_barrier
    s_mov_b32 s7, 0
    s_branch L_S5_gb1
    """)
    A.dual_head("L_S5_gb", ["v77"], init=False)
    A(f"""
    global_load_dwordx2 v[86:87], v83, {sp(WS_)} sc1
    L_S5_gb1:
    global_load_dwordx2 v[90:91], v77, {sp(WS_)} sc1
    s_waitcnt vmcnt(0)
    """)
    A.tagcheck(["v87", "v91"], "v30", "v31", "L_S5_gb")
    A(f"""
    v_lshrrev_b32 v86, v78, v86
    v_lshrrev_b32 v85, v78, v90
    v_lshlrev_b32 v86, 16, v86            ; gb
    v_lshlrev_b32 v85, 16, v85            ; x1
    v_lshlrev_b32 v84, 16, v84            ; b2
    s_branch L_S5_g2
    L_S5_h2:
    s_barrier
    L_S5_g2:
    s_mov_b32 s56, 0xffff0000
    s_mov_b32 s57, 0
    s_mov_b32 s58, 0
    s_mov_b32 s59, 0xffff
    """)
    sm_idx(A, "v36", 40, 12)
    A(f"""
    s_waitcnt lgkmcnt(0)
    s_barrier
    ds_read_b128 v[32:35], v79
    s_waitcnt lgkmcnt(0)
    """)
    for i in range(3):
        A(f"v_smfmac_f32_16x16x64_bf16 {vr(40+4*i,4)}, v[32:35], {vr(52+8*i,8)}, v36")
    A(f"""
    s_mov_b32 exec_hi, 0xffff
    s_nop 5
    """)
    for r in range(4): A(f"v_cndmask_b32 v{28+r}, v{40+r}, v{44+r}, s[56:57]")
    for r in range(4): A(f"v_cndmask_b32 v{28+r}, v{28+r}, v{48+r}, s[58:59]")
    A("v_add_f32 v28, v28, v29\nv_add_f32 v29, v30, v31")
    A.epack("v28", "v28"); A.epack("v29", "v29")
    A(f"global_store_dwordx2 v76, v[28:29], {sp(WS_)} sc1\ns_mov_b64 exec, -1")
    A.stamp(11)
    A(f"""
    s_cmp_lg_u32 s3, 10
    s_cbranch_scc1 L_end
    {f's_sleep {fgs}' if fgs else 's_waitcnt vmcnt(0)'}
    """)
    A.spin_head("L_S5_fg")
    for i in range(9):
        A(f"global_load_dwordx2 {vr(40+2*i,2)}, v88, {sp(WS_)} offset:{i*512-2048} sc1")
    for i in range(9):
        a, b = 40+2*i, 41+2*i
        A(f"s_waitcnt vmcnt({8-i})\nv_xor_b32 v{a}, {ETAG}, v{a}\nv_xor_b32 v{b}, {ETAG}, v{b}")
        if i == 0: A(f"v_or_b32 v30, v{a}, v{b}")
        else: A(f"v_or3_b32 v30, v{a}, v{b}, v30\nv_add_f32 v40, v40, v{a}\nv_add_f32 v41, v41, v{b}")
    A("v_and_b32 v30, 63, v30\nv_cmp_ne_u32 vcc, 0, v30\ns_cbranch_vccnz L_S5_fg")
    A.stamp(12)
    A(f"""
    v_permlane32_swap_b32 v40, v41
    v_add_f32 v40, v40, v41
    v_mov_b32 v42, v40
    s_nop 1
    v_permlane16_swap_b32 v40, v42
    v_add_f32 v40, v40, v42
    s_nop 1
    v_add_f32_dpp v40, v40, v40 row_ror:8 {DPPM}
    """)
    A.r1("v40")
    A("v_add_f32 v40, v84, v40")
    A.r1("v40")
    A("v_mul_f32 v40, v86, v40")
    A.r1("v40")
    A(f"""
    v_add_f32 v40, v85, v40
    v_cvt_pk_bf16_f32 v40, v40, v40
    s_mov_b32 exec_lo, 0xff
    s_mov_b32 exec_hi, 0xff
    global_store_short v82, v40, {sp(OUT_)}{' sc1' if osc else ''}
    s_cmp_lg_u32 s47, 0
    s_cbranch_scc1 L_S5_fin
    s_mov_b64 exec, 1
    v_mov_b32 v33, {TAG}
    global_store_dword v3, v33, {sp(WS_)} sc1
    L_S5_fin:
    s_mov_b64 exec, -1
    """)
    if probe:
        base, stride = {1: (0xB0000, 128*72), 2: (0x400000, 65536), 3: (0x1000000, 0x200000), 4: (0xB0000, 128*72)}[probe]
        A(f"s_lshl_b32 s44, s47, 7\ns_add_u32 s44, s44, {base}\nv_mov_b32 v60, s44\ns_waitcnt vmcnt(0)\ns_mov_b64 exec, 1")
        for i in range(8):
            if probe == 1: A(f"global_store_dword v60, v3, {sp(WS_)} sc1")
            else: A(f"global_load_dword v61, v60, {sp(WS_)} nt")
            A(f"s_waitcnt vmcnt(0)\nv_add_u32 v60, {stride}, v60")
        A("s_mov_b64 exec, -1")
    A.stamp(13)
    A("s_branch L_end")
    A("L_S5_g1:\nv_mov_b32 v15, v10")
    A.lds_spin(4, 16, "v16", "v21")
    A.stamp(14)
    bfrags(A, "v15")
    k0_ = -2.0 * 1.4426950408889634 * 0.7978845608028654
    A(f"""
    v_lshrrev_b32 v16, 4, v1
    s_lshl_b32 s44, s4, 7
    s_add_u32 s44, s44, {WS_CF}
    v_lshl_add_u32 v18, v16, 3, s44
    v_lshrrev_b32 v15, 5, v1
    v_lshlrev_b32 v15, 7, v15
    v_and_b32 v16, 13, v1
    v_lshl_or_b32 v15, v16, 1, v15
    v_bfe_u32 v16, v1, 1, 1
    v_lshl_or_b32 v15, v16, 6, v15
    s_lshr_b32 s44, s46, 1
    s_lshl_b32 s44, s44, 5
    s_and_b32 s45, s46, 1
    s_lshl_b32 s45, s45, 2
    s_add_u32 s44, s44, s45
    s_add_u32 s44, s44, {L_H1}
    v_add_u32 v15, s44, v15
    v_lshlrev_b32 v19, 16, v19
    v_bfe_u32 v16, v1, 1, 3
    v_mul_u32_u24 v16, {ASTR}, v16
    v_add_u32 v16, v11, v16
    v_mov_b32 v17, {f2h(k0_)}
    """)
    sm_idx(A, "v14")
    A("s_waitcnt vmcnt(0) lgkmcnt(0)\ns_barrier\ns_barrier")
    cfl = f"global_load_dwordx2 v[124:125], v18, {sp(WS_)} sc1"
    gemv_sm(A, "v16", "v14", mid=(cfm, cfl))
    A.stamp(9)
    A("s_mov_b32 s7, 0\ns_nop 6\nv_add_f32 v20, v20, v21\nv_add_f32 v22, v22, v23\ns_branch L_S5_cfc")
    A.dual_head("L_S5_cf", ["v18"], init=False)
    A(f"{cfl}\nL_S5_cfc:\ns_waitcnt vmcnt(0)")
    A.etagcheck(["v124", "v125"], "v30", "L_S5_cf")
    A.stamp(8)
    A(f"""
    v_mul_f32 v20, v20, v124
    v_fmac_f32 v20, v22, v125
    v_mov_b32 v21, v20
    s_nop 1
    v_permlane16_swap_b32 v20, v21
    v_add_f32 v20, v20, v21
    """)
    A.r1("v20")
    A("v_add_f32 v20, v20, v19")
    A.r1("v20")
    A(f"""
    v_mul_f32 v21, v20, v20
    v_fmamk_f32 v21, v21, {f2h(k0_*0.044715)}, v17
    v_mul_f32 v21, v21, v20
    v_exp_f32 v21, v21
    s_nop 0
    v_add_f32 v21, 1.0, v21
    v_rcp_f32 v21, v21
    s_mov_b32 exec_lo, 0xffff
    s_mov_b32 exec_hi, 0xffff
    v_mul_f32 v21, v21, v20
    v_cvt_pk_bf16_f32 v21, v21, v21
    ds_write_b16 v15, v21
    s_mov_b64 exec, -1
    s_waitcnt lgkmcnt(0)
    s_barrier
    """)
    A.stamp(10)
    A("L_end:")
    if dbg:
        maps = {"A": {1: 4, 2: 5, 4: 6, 7: 7, 9: 8, 10: 9, 12: 14}, "B": {4: 3, 5: 10, 6: 11, 8: 12, 11: 13}, "M": {3: 2, 5: 15}}
        A(f"""
        s_mov_b64 exec, -1
        s_lshl_b32 s44, 1, s3
        s_and_b32 s44, s44, {(1<<0)|(1<<9)|(1<<12)|(1<<15)}
        s_cbranch_scc0 L_exit
        s_load_dwordx2 s[46:47], s[0:1], 104
        v_mov_b32 v125, 0x400
        v_readlane_b32 s44, v127, 0
        s_nop 3
        s_not_b32 s44, s44
        v_writelane_b32 v127, s44, 15
        v_writelane_b32 v125, 4, 0
        v_writelane_b32 v125, 0, 15
        s_lshr_b32 s45, s2, 3
        s_cmp_lt_u32 s45, 16
        s_cbranch_scc1 L_dbg_A
        s_cmp_lt_u32 s45, 25
        s_cbranch_scc1 L_dbg_B
        """)
        for nm in ("M", "B", "A"):
            A(f"L_dbg_{nm}:")
            for st, sl in maps[nm].items(): A(f"v_writelane_b32 v125, {sl*4}, {st}")
            A("s_branch L_dbg_go")
        A(f"""
        L_dbg_go:
        s_waitcnt lgkmcnt(0)
        v_cmp_gt_u32 vcc, 0x100, v125
        s_and_saveexec_b64 s[48:49], vcc
        global_atomic_umax v125, v127, s[46:47]
        s_endpgm
        """)
    elif stamps:
        if LITE: A("s_cmp_lg_u32 s3, 10\ns_cbranch_scc1 L_exit")
        A(f"""
        s_mov_b64 exec, 0xffff
        s_lshl_b32 s44, s2, 4
        s_add_u32 s44, s44, s3
        s_lshl_b32 s44, s44, 6
        s_add_u32 s44, s44, {WS_STAMP}
        v_lshl_add_u32 v126, v1, 2, s44
        global_store_dword v126, v127, {sp(WS_)}{' sc1' if LITE else ''}
        """)
    A("L_exit:\ns_endpgm\nL_codeend:")
    A.footer(128, 102)
    return A

HEAD = """; Fused adaLN + sliding-window GQA decode attention + channel MLP in one persistent launch (gfx950).
"""
if __name__ == "__main__":
    out = sys.argv[1]
    kw = {}
    for o in sys.argv[2:]:
        if "=" in o:
            k, v = o.split("="); kw[k] = int(v)
        elif o == "stamps": kw["stamps"] = True
        elif o == "lite": kw["stamps"] = True; LITE = True
        elif o == "nont": kw["nt"] = ""
    A = build(**kw)
    open(out, "w").write(HEAD + A.text())
```

```python
import sys, struct
from asmlib import Asm, NAME

WS_EPOCH = 0x0
WS_QG    = 0x4000
WS_TR    = 0x18000
WS_FL    = 0x1C000
WS_PX    = 0x20000
WS_AG    = 0x30000
AGS = 1152*8
WS_MG    = 0x40000
WS_FG    = 0x50000
WS_OG    = 0x100000
WS_MLG   = 0x120000
WS_RG    = 0x124000
WS_XA    = 0x136000
WS_SG    = 0x148000
WS_CF    = 0x151000
WS_HL    = 0x152000
WS_GOFF  = 0x80000
WS_QL    = 0x200000
WS_PC    = 0xA2000
WS_STAMP = 0x8000000
AL = 131072; L_Q = 0; L_CNT = 512; L_MX = 640; L_LS = 768; L_P = 1024; PSTR = 1152; L_PD = 3328; L_PXL = 4608
ASTR = 1184
L_BUF0 = 0; L_BUF1 = 73728; L_ACT = 147456; L_H1 = L_ACT + 8*ASTR; L_CF = L_H1 + 256; L_WCNT = L_CF + 64; L_ST = L_WCNT + 64; L_X1 = L_ST + 1536
LDS_BYTES = 160768
assert L_X1 <= LDS_BYTES
NLOC = 300
SPIN = 400000
LITE = False
LOG2E = 0x3fb8aa3b
X_, K_, V_, WQ_, WO_, W1_, B1_, W2_, B2_, C_, WM_, OUT_, WS_ = 16, 18, 20, 22, 24, 28, 30, 32, 34, 36, 38, 40, 42
TAG = "s6"; ETAG = "s101"

def sp(n): return f"s[{n}:{n+1}]"
def vr(n, k): return f"v[{n}:{n+k-1}]"
def f2h(x): return hex(struct.unpack("<I", struct.pack("<f", x))[0])
DPPM = "row_mask:0xf bank_mask:0xf"

class G(Asm):
    def __init__(self, stamps=False, nt="nt"):
        super().__init__()
        self.stamps = stamps
        self.nt = (" " + nt) if nt else ""
    def stamp(self, i):
        if self.stamps and (not LITE or i == 13):
            self(f"s_memrealtime s[96:97]\ns_waitcnt lgkmcnt(0)\nv_writelane_b32 v127, s96, {i}")
    def rbf(self, *pairs):
        for d, s in pairs: self(f"v_cvt_pk_bf16_f32 {d}, 0, {s}")
    def r1(self, *regs): self.rbf(*[(r, r) for r in regs])
    def srd(self, b, ptr, nbytes):
        self(f"s_mov_b32 s{b}, s{ptr}\ns_and_b32 s{b+1}, s{ptr+1}, 0xffff\ns_mov_b32 s{b+2}, {nbytes}\ns_mov_b32 s{b+3}, 0x20000")
    def mktag(self):
        self(f"s_add_u32 s6, s6, 0x9e3779b9\ns_and_b32 {ETAG}, s6, 63\ns_and_b32 s100, s6, 7")
    def tagcheck(self, tags, mn, mx, retry):
        if len(tags) == 1:
            self(f"v_cmp_ne_u32 vcc, {TAG}, {tags[0]}")
        else:
            assert len(tags) % 2 == 0
            for i in range(0, len(tags), 2):
                a, b = tags[i], tags[i+1]
                self(f"v_min3_u32 {mn}, {a}, {b}, {TAG if i == 0 else mn}")
                self(f"v_max3_u32 {mx}, {a}, {b}, {TAG if i == 0 else mx}")
            self(f"v_cmp_ne_u32 vcc, {mn}, {mx}")
        self(f"s_cbranch_vccnz {retry}")
    def etagcheck(self, words, acc, retry, ETAG=ETAG, mask=63):
        assert len(words) % 2 == 0
        for i in range(0, len(words), 2):
            a, b = words[i], words[i+1]
            self(f"v_xor_b32 {a}, {ETAG}, {a}\nv_xor_b32 {b}, {ETAG}, {b}")
            if i == 0: self(f"v_or_b32 {acc}, {a}, {b}")
            else: self(f"v_or3_b32 {acc}, {a}, {b}, {acc}")
        self(f"v_and_b32 {acc}, {mask}, {acc}\nv_cmp_ne_u32 vcc, 0, {acc}\ns_cbranch_vccnz {retry}")
    def epack(self, d, v, mask=63):
        self(f"v_bfi_b32 {d}, {mask}, {ETAG}, {v}")
    def spin_head(self, lab):
        self(f"s_mov_b32 s7, 0\n{lab}:\ns_add_u32 s7, s7, 1\ns_cmp_gt_u32 s7, {SPIN}\ns_cbranch_scc1 L_end")
    def dual_head(self, lab, regs, init=True):
        if init: self("s_mov_b32 s7, 0")
        self(f"{lab}:\ns_add_u32 s7, s7, 1\ns_cmp_gt_u32 s7, {SPIN}\ns_cbranch_scc1 L_end")
        self(f"s_cmp_lg_u32 s7, {NLOC}\ns_cbranch_scc1 {lab}_k")
        for r in regs: self(f"v_add_u32 {r}, {WS_GOFF}, {r}")
        self(f"{lab}_k:")
    def dual_store(self, op, vaddr, data):
        self(f"{op} {vaddr}, {data}, {sp(WS_)}\nv_add_u32 {vaddr}, {WS_GOFF}, {vaddr}\n{op} {vaddr}, {data}, {sp(WS_)} sc1")
    def row_reduce(self, op, regs, steps=4):
        for ctl in ("quad_perm:[1,0,3,2]", "quad_perm:[2,3,0,1]", "row_half_mirror", "row_mirror")[:steps]:
            if len(regs) < 3: self(f"s_nop {2 - len(regs)}")
            for r in regs:
                self(f"{op}_dpp {r}, {r}, {r} {ctl} {DPPM}")
    def lds_spin(self, off, val, vt, vbase, sleep=True):
        lab = self.label("LS")
        self.spin_head(lab)
        self(f"ds_read_b32 {vt}, {vbase} offset:{off}\ns_waitcnt lgkmcnt(0)\nv_readfirstlane_b32 s44, {vt}\ns_cmp_ge_u32 s44, {val}")
        done = self.label("LD")
        self(f"s_cbranch_scc1 {done}\n" + ("s_sleep 1\n" if sleep else "") + f"s_branch {lab}\n{done}:")
    def lds_inc(self, off, vbase, vone):
        self(f"s_mov_b64 exec, 1\nds_add_u32 {vbase}, {vone} offset:{off}\ns_mov_b64 exec, -1")

INV576 = f2h(1.0/576)
def ln_finish(A, mean, var, rs):
    A(f"v_max_f32 {var}, 0, {var}")
    A.r1(mean, var)
    A(f"v_add_f32 {var}, 0x3727c5ac, {var}")
    A.r1(var)
    A(f"v_sqrt_f32 {var}, {var}\ns_nop 0")
    A.r1(var)
    A(f"v_rcp_f32 {rs}, {var}\ns_nop 0")

def dma_tile(A, srd, voff, rowstride, ldsbase, ninstr=72, nt=None):
    if nt is None: nt = A.nt
    A(f"s_mul_i32 s44, s3, {8*rowstride}\ns_lshl_b32 s45, s3, 10\ns_add_u32 s45, s45, {ldsbase}")
    for i in range((ninstr + 15)//16):
        skip = None
        if (i+1)*16 > ninstr:
            skip = A.label("DS")
            A(f"s_cmp_ge_u32 s3, {ninstr - 16*i}\ns_cbranch_scc1 {skip}")
        A(f"s_mov_b32 m0, s45\ns_add_u32 s45, s45, 16384")
        A(f"buffer_load_dwordx4 {voff}, s[{srd}:{srd+3}], s44 offen{nt} lds")
        A(f"s_add_u32 s44, s44, {128*rowstride}")
        if skip: A(f"{skip}:")

def bfrags(A, vaddr, vb=52, nks=18, rowb=128):
    base = 0
    for ks in range(nks):
        for half in range(2):
            off = (ks*32 + half*16) * rowb
            if off - base > 65535:
                A(f"v_add_u32 {vaddr}, {off - base}, {vaddr}"); base = off
            A(f"ds_read_b64_tr_b16 {vr(vb + ks*4 + half*2,2)}, {vaddr} offset:{off - base}")

def kv_chunk_base(A, rp, dst, t, SP):
    A(f"""
    s_lshr_b32 {t}, {rp}, 3
    s_lshl_b32 {dst}, s4, 1
    s_add_u32 {dst}, {dst}, {t}
    s_bfe_u32 {t}, {rp}, 0x10002
    s_lshl_b32 {t}, {t}, 4
    s_add_u32 {dst}, {dst}, {t}
    s_lshl_b32 {dst}, {dst}, 21
    s_and_b32 {t}, {rp}, 3
    s_lshl_b32 {t}, {t}, {SP}
    s_add_u32 {dst}, {dst}, {t}
    s_add_u32 {dst}, {dst}, {6144*256}
    """)

def gemv_mfma(A, vaaddr, vb=52, va=24, vd=20, depth=7, nks=18, mid=None):
    depth = min(depth, nks)
    def rd(ks):
        A(f"ds_read_b128 {vr(va + (ks % depth)*4,4)}, {vaaddr} offset:{ks*64}")
    for ks in range(depth): rd(ks)
    for ks in range(nks):
        issued = min(nks, depth + ks)
        A(f"s_waitcnt lgkmcnt({issued - ks - 1})")
        c = "0" if ks == 0 else vr(vd, 4)
        A(f"v_mfma_f32_16x16x32_bf16 {vr(vd,4)}, {vr(va + (ks % depth)*4,4)}, {vr(vb+ks*4,4)}, {c}")
        if ks + depth < nks: rd(ks + depth)
        if mid and ks == mid[0]: A(mid[1])

def gemv_sm(A, vaaddr, vidx, vb=52, va=24, vd=20, depth=7, nch=9, mid=None):
    depth = min(depth, nch)
    def rd(c):
        A(f"ds_read_b128 {vr(va + (c % depth)*4,4)}, {vaaddr} offset:{c*128}")
    for c in range(depth): rd(c)
    for c in range(nch):
        issued = min(nch, depth + c)
        A(f"s_waitcnt lgkmcnt({issued - c - 1})")
        A(f"v_smfmac_f32_16x16x64_bf16 {vr(vd,4)}, {vr(va + (c % depth)*4,4)}, {vr(vb+c*8,8)}, {vidx}")
        if c + depth < nch: rd(c + depth)
        if mid and c == mid[0]: A(mid[1])

def sm_idx(A, vidx, vd=20, n=4):
    A(f"v_bfe_i32 {vidx}, v1, 0, 1\nv_and_b32 {vidx}, 0xaaaa, {vidx}\nv_or_b32 {vidx}, 0x4444, {vidx}")
    for i in range(n): A(f"v_mov_b32 v{vd+i}, 0")

def fold8(A, n, a, b, t, swapb=True):
    for i in range(1, n):
        A(f"v_add_f32 v{a}, v{a}, v{a+2*i}\nv_add_f32 v{b}, v{b}, v{b+2*i}")
    A(f"""
    s_nop 1
    v_permlane32_swap_b32 v{a}, v{b}
    v_add_f32 v{a}, v{a}, v{b}
    v_mov_b32 v{t}, v{a}
    s_nop 1
    v_permlane16_swap_b32 v{a}, v{t}
    v_add_f32 v{a}, v{a}, v{t}
    s_nop 1
    v_add_f32_dpp v{a}, v{a}, v{a} row_ror:8 {DPPM}
    """)

def build(stamps=False, nt="nt", adelay=0, dbg=0, w2first=0, qs=2, ps=2, pt=1, diag=0, ql=0, rgw=0, il=2, trig=1, pf=0, fgs=13, ordr=0, nb1=0, nb2=0, mlt=0, c3=1, hq=0, fl=0, ppt=0, probe=0, cfm=2, x4=1, me=0, tm=96, dq=0, dv=0, ds5=0, nr=8, qpt=0, qv=1, qlay=1, pc=0, fpos=0, hs=0, hp=2, xk=0, wm=0, at=0, an=2, ks=2, tp=0, osc=1, wb=0, wb0=0, ot=0, tw=4, tk=6, p2=0, sw=1, hw=0, pp=0, kb=1, w16=1, m2=1, mgf=0, sprobe=0, ath=0, mx=1, xs=1):
    NJ = 18*ks; RW = 576//ks; JX = 4 if ks == 2 else 6
    CH, BL, SP = {0: (15, 13, 17), 1: (17, 15, 13), 2: (17, 13, 15)}[il]
    global SPIN, NLOC
    if diag: SPIN = 60; NLOC = 100
    A = G(stamps, nt)
    def vtail(n, level, w0):
        lab = A.label("VT")
        A(f"""
        s_sub_u32 s48, s3, {w0}
        s_cmp_ge_u32 s48, {n}
        s_cbranch_scc1 {lab}
        s_and_b32 s49, s48, 1
        s_lshl_b32 s50, s5, 1
        s_add_u32 s50, s50, s49
        """)
        kv_chunk_base(A, "s50", "s44", "s45", SP)
        A(f"""
        s_lshr_b32 s48, s48, 1
        s_sub_u32 s48, 3, s48
        s_lshl_b32 s48, s48, {BL}
        s_add_u32 s44, s44, s48
        s_add_u32 s44, s44, {level << CH}
        v_lshl_add_u32 v20, v1, 7, s44
        global_load_dword v125, v20, {sp(V_)}{A.nt}
        {lab}:
        """)
    NT = A.nt
    A.header(256, 1024, LDS_BYTES)
    A(f"""
    s_cmp_ge_u32 s2, 256
    s_cbranch_scc1 L_exit
    s_load_dwordx16 s[16:31], s[0:1], 0
    s_load_dwordx8 s[32:39], s[0:1], 64
    s_load_dwordx2 s[40:41], s[0:1], 96
    s_load_dwordx2 s[42:43], s[0:1], 112
    {'s_load_dwordx2 s[94:95], s[0:1], 104' if at else ''}
    v_lshrrev_b32 v2, 6, v0
    v_and_b32 v1, 63, v0
    s_and_b32 s4, s2, 7
    v_readfirstlane_b32 s3, v2
    s_lshr_b32 s5, s2, 3
    v_mov_b32 v3, 0
    """)
    if stamps:
        A("v_mov_b32 v127, 0\ns_memrealtime s[98:99]")
    A(f"""
    s_cmp_lg_u32 s5, 24
    s_cbranch_scc1 L_nopf
    s_getpc_b64 s[44:45]
    L_pfbase:
    s_sub_u32 s44, s44, L_pfbase-{NAME}_kernel
    s_subb_u32 s45, s45, 0
    v_lshlrev_b32 v4, 7, v0
    v_cmp_gt_u32 vcc, L_codeend-{NAME}_kernel, v4
    s_and_saveexec_b64 s[46:47], vcc
    s_cbranch_execz L_pfd
    global_load_dword v5, v4, s[44:45]
    L_pfd:
    s_mov_b64 exec, -1
    """)
    if tp:
        A(f"""
        s_min_u32 s44, s3, 14
        s_lshl_b32 s45, s44, 3
        s_load_dwordx2 s[60:61], s[0:1], s45
        s_lshl_b32 s44, s44, 1
        s_lshr_b32 s44, {(2<<6)|(2<<8)|(2<<12)|(2<<16)|(1<<22)}, s44
        s_and_b32 s44, s44, 3
        v_min_u32 v4, s44, v1
        v_lshlrev_b32 v4, 21, v4
        v_and_b32 v6, 1, v1
        v_bfe_u32 v7, v1, 1, 1
        v_lshl_or_b32 v6, v7, 4, v6
        s_lshl_b32 s44, s4, 1
        v_add_u32 v6, s44, v6
        v_lshlrev_b32 v6, 21, v6
        s_cmp_eq_u32 s3, 2
        s_cselect_b64 vcc, -1, 0
        v_or_b32 v6, 0x180000, v6
        v_cndmask_b32 v4, v4, v6, vcc
        s_mov_b64 exec, 15
        s_waitcnt lgkmcnt(0)
        global_load_dword v126, v4, s[60:61] nt
        s_mov_b64 exec, -1
        """)
    A(f"""
    L_nopf:
    s_cmp_lt_u32 s5, 16
    s_cbranch_scc1 L_A
    {'s_branch L_exit' if diag & 32 else ''}
    s_sub_u32 s5, s5, 16                  ; u
    s_sub_u32 s55, s2, {25*8}
    s_min_u32 s47, s4, {JX}
    s_mul_i32 s48, s4, {JX}
    s_add_u32 s47, s47, s48
    s_add_u32 s47, s47, s5
    s_sub_u32 s47, s47, 9
    s_mul_i32 s48, s47, 0xe39
    s_lshr_b32 s48, s48, 16               ; ksp
    s_mul_i32 s49, s48, 18
    s_sub_u32 s49, s47, s49               ; cgp
    s_mul_i32 s50, s48, {RW*6912}
    s_lshl_b32 s51, s49, 7
    s_add_u32 s50, s50, s51               ; M offset
    s_lshl_b32 s51, s4, 3
    s_add_u32 s51, s51, s5                ; qb
    s_lshl_b32 s52, s51, 7                ; B offset
    v_lshrrev_b32 v4, 3, v1
    v_bfe_u32 v6, v1, 4, 2
    v_lshlrev_b32 v6, 1, v6
    v_and_b32 v7, 7, v1
    v_xor_b32 v6, v6, v7
    s_movk_i32 s53, 6912
    s_cmp_lt_u32 s5, 8
    s_cselect_b32 s50, s52, s50
    s_cselect_b32 s53, 8192, s53          ; stride
    s_cselect_b32 s54, 72, {RW//8}        ; count
    s_mul_i32 s10, s53, 576
    s_cselect_b32 s47, s51, s47
    s_cselect_b32 s55, 0, s55
    v_mul_u32_u24 v14, s53, v4
    v_lshl_add_u32 v14, v6, 4, v14
    v_add_u32 v15, s50, v14
    s_mov_b32 s11, 0x20000
    s_lshl_b32 s53, s53, 3
    s_mul_i32 s44, s3, s53
    s_lshl_b32 s53, s53, 4
    s_lshl_b32 s45, s3, 10
    s_mov_b32 s46, s3
    s_cmp_lt_u32 s5, 8
    s_waitcnt lgkmcnt(0)
    s_cselect_b32 s8, s{WQ_}, s{WM_}
    s_cselect_b32 s9, s{WQ_+1}, s{WM_+1}
    s_and_b32 s9, s9, 0xffff
    s_cmp_ge_u32 s55, {NJ}
    s_cbranch_scc1 L_W_nodma
    L_W_dma:
    s_mov_b32 m0, s45
    s_add_u32 s45, s45, 16384
    buffer_load_dwordx4 v15, s[8:11], s44 offen{'' if wm & 1 else NT} lds
    s_add_u32 s44, s44, s53
    s_add_u32 s46, s46, 16
    s_cmp_lt_u32 s46, s54
    s_cbranch_scc1 L_W_dma
    L_W_nodma:
    s_load_dword s6, {sp(WS_)}, {WS_EPOCH}
    s_branch L_W
    """)
    A(f"""
    L_A:
    """)
    if ordr:
        t0_, t1_ = {1: (0xd8, 0xd8), 2: (0xe4, 0xd2), 3: (0xd8, 0xd2)}[ordr]
        A(f"""
        s_bitcmp1_b32 s5, 0
        s_movk_i32 s44, {t0_}
        s_cselect_b32 s44, {t1_}, s44
        s_lshr_b32 s45, s3, 2
        s_lshl_b32 s45, s45, 1
        s_lshr_b32 s44, s44, s45
        s_and_b32 s44, s44, 3
        s_and_b32 s3, s3, 3
        s_lshl_b32 s44, s44, 2
        s_or_b32 s3, s3, s44
        """)
    A(f"""
    v_mov_b32 v4, {AL}
    v_lshl_add_u32 v5, v1, 2, v4
    v_bfe_i32 v6, v1, 5, 1
    ds_write_b32 v5, v6 offset:{L_CNT}
    s_lshr_b32 s44, s5, 3
    s_lshl_b32 s45, s4, 1
    s_add_u32 s46, s45, s44            ; hkv
    s_bfe_u32 s47, s5, 0x10002          ; b
    s_and_b32 s48, s5, 3                ; sp
    s_lshl_b32 s49, s47, 4
    s_add_u32 s49, s49, s46             ; b*16+hkv
    s_lshl_b32 s49, s49, 21
    s_lshl_b32 s50, s48, {SP}
    s_add_u32 s49, s49, s50
    s_add_u32 s49, s49, {6144*256}
    s_bfe_u32 s51, s3, 0x10002            ; g
    s_and_b32 s44, s3, 3
    s_lshl_b32 s50, s51, {CH+1}
    s_add_u32 s49, s49, s50
    s_lshl_b32 s50, s44, {BL}
    s_add_u32 s49, s49, s50
    s_lshl_b32 s45, s51, 3
    s_add_u32 s48, s44, s45
    v_and_b32 v9, 3, v1
    v_mov_b32 v7, 1
    s_cmp_ge_u32 s3, 8
    s_cbranch_scc1 L_AV
    s_add_u32 s49, s49, 4096
    v_bfe_u32 v5, v1, 2, 2
    v_lshlrev_b32 v5, 8, v5
    v_and_b32 v6, 48, v1
    v_lshl_or_b32 v5, v6, 2, v5
    v_lshl_or_b32 v5, v9, 4, v5
    s_waitcnt lgkmcnt(0)
    s_load_dword s6, {sp(WS_)}, {WS_EPOCH}
    s_add_u32 s52, s{K_}, s49
    s_addc_u32 s53, s{K_+1}, 0
    s_add_u32 s54, s52, {1 << CH}
    s_addc_u32 s55, s53, 0
    """)
    if adelay: A("s_waitcnt lgkmcnt(0)")
    if not kb: A("s_barrier")
    if xk:
        A("s_sub_u32 s58, s52, 0x80000\ns_subb_u32 s59, s53, 0\ns_sub_u32 s60, s54, 0x80000\ns_subb_u32 s61, s55, 0")
        for t in range(16):
            A(f"global_load_dwordx4 {vr(32+4*t,4)}, v5, s[{58+2*(t>>3)}:{59+2*(t>>3)}] offset:{(t&7)*1024-4096}{NT}")
    for t in range(16):
        A(f"global_load_dwordx4 {vr(32+4*t,4)}, v5, s[{52+2*(t>>3)}:{53+2*(t>>3)}] offset:{(t&7)*1024-4096}{NT}")
    if kb: A("s_barrier")
    if stamps: A("s_waitcnt lgkmcnt(0)\nv_writelane_b32 v127, s98, 0")
    A.stamp(1)
    A(f"""
    v_bfe_u32 v8, v1, 2, 1
    v_lshlrev_b32 v8, 8, v8
    v_lshl_or_b32 v8, v6, 2, v8
    v_lshl_or_b32 v8, v9, 4, v8
    v_add_u32 v8, v4, v8
    v_bfe_u32 v11, v1, 4, 1
    v_mul_u32_u24 v10, {PSTR}, v11
    v_and_b32 v12, 1, v1
    v_lshl_add_u32 v10, v12, 4, v10
    v_lshrrev_b32 v13, 5, v1
    v_lshl_add_u32 v10, v13, 3, v10
    v_and_b32 v13, 2, v1
    v_lshl_add_u32 v10, v13, 1, v10
    v_bfe_u32 v13, v1, 2, 1
    v_lshl_add_u32 v10, v13, 1, v10
    v_and_b32 v13, 8, v1
    v_lshl_add_u32 v10, v13, 3, v10
    s_lshr_b32 s44, s48, 1
    s_lshl_b32 s44, s44, 7
    s_and_b32 s45, s48, 1
    s_lshl_b32 s45, s45, 5
    s_add_u32 s44, s44, s45
    s_add_u32 s44, s44, {AL + L_P}
    v_add_u32 v10, s44, v10
    v_lshl_add_u32 v12, v12, 6, v6
    v_bfe_u32 v13, v1, 1, 1
    v_mul_u32_u24 v13, {PSTR}, v13
    v_add3_u32 v12, v12, v13, v4
    v_lshl_add_u32 v11, v11, 5, v4
    v_and_b32 v13, 31, v1
    v_lshl_add_u32 v13, v13, 2, v4
    s_lshl_b32 s44, s3, 2
    v_add_u32 v11, s44, v11
    v_bfe_u32 v17, v1, 4, 1
    v_lshl_add_u32 v17, v17, 5, v11
    v_and_b32 v18, 32, v1
    v_add_u32 v17, v17, v18
    v_bfe_u32 v14, v1, 2, 3
    v_xor_b32 v14, s3, v14
    v_lshlrev_b32 v14, 5, v14
    v_lshrrev_b32 v15, 2, v1
    v_lshl_or_b32 v14, v15, 8, v14
    v_lshl_or_b32 v14, v9, 3, v14
    v_add_u32 v15, {12*8192}, v14
    v_and_b32 v14, 15, v1
    v_lshl_add_u32 v14, v14, 3, v4
    s_lshl_b32 s44, s3, 7
    v_add_u32 v14, s44, v14
    s_mov_b32 s58, 0x22222222
    s_mov_b32 s59, 0x22222222
    s_mov_b32 s60, 0x44444444
    s_mov_b32 s61, 0x44444444
    s_mov_b32 s62, 0x88888888
    s_mov_b32 s63, 0x88888888
    s_lshl_b32 s44, s47, 14
    s_lshl_b32 s45, s46, 10
    s_add_u32 s44, s44, s45
    s_lshl_b32 s45, s3, 7
    s_add_u32 s44, s44, s45
    s_add_u32 s44, s44, {WS_QG}
    s_add_u32 s56, s{WS_}, s44
    s_addc_u32 s57, s{WS_+1}, 0
    s_lshl_b32 s50, s4, 4
    s_add_u32 s50, s50, s5
    s_lshl_b32 s50, s50, 10
    s_add_u32 s50, s50, s45
    s_add_u32 s50, s50, {WS_OG}
    v_lshl_add_u32 v6, v1, 3, s50
    s_waitcnt lgkmcnt(0)
    """)
    A.mktag()
    A(f"""
    """)
    if not ql: pass
    elif qlay:
        A(f"""
        s_sub_u32 s44, s44, {WS_QG}
        s_lshl_b32 s44, s44, 3
        s_add_u32 s44, s44, {WS_QL}
        s_add_u32 s52, s{WS_}, s44
        s_addc_u32 s53, s{WS_+1}, 0
        """)
    else:
        A(f"s_add_u32 s52, s56, {WS_QL - WS_QG}\ns_addc_u32 s53, s57, 0")
    A(f"""
    s_waitcnt vmcnt(0)
    """)
    if qv:
        A.lds_inc(L_CNT+12, "v4", "v7")
        A.lds_spin(L_CNT+12, 8, "v16", "v4")
    A(f"""
    """)
    if ql:
        A(f"""
    s_mov_b32 s7, {0 if ql else nr}
    L_A_qpoll:
    s_add_u32 s7, s7, 1
    s_cmp_gt_u32 s7, {SPIN}
    s_cbranch_scc1 L_end
    s_cmp_gt_u32 s7, {nr}
    s_cbranch_scc1 L_A_qg
    s_load_dwordx16 s[64:79], s[52:53], 0
    s_load_dwordx16 s[80:95], s[52:53], 64
    s_add_u32 s52, s52, {128 if qlay else 32768}
    s_addc_u32 s53, s53, 0
    s_branch L_A_qc
    L_A_qr:
    s_sleep {qs}
    s_branch L_A_qpoll
""")
    else:
        A(f"""
        s_mov_b32 s7, 0
        L_A_qr:
        s_add_u32 s7, s7, 1
        s_cmp_gt_u32 s7, {SPIN}
        s_cbranch_scc1 L_end
        s_sleep {qs}
        """)
    A(f"""
    L_A_qg:
    s_load_dwordx16 s[64:79], s[56:57], 0 glc
    s_load_dwordx16 s[80:95], s[56:57], 64 glc
    L_A_qc:
    s_waitcnt lgkmcnt(0)
    """)
    for i in range(16):
        A(f"s_cmp_lg_u32 s{65+2*i}, {TAG}\ns_cbranch_scc1 L_A_qr")
    A("s_mov_b64 exec, 1")
    for i in range(16):
        A(f"v_mov_b32 v{96+i}, s{64+2*i}")
    A(f"s_lshl_b32 s44, s3, 6\nv_add_u32 v20, s44, v4")
    for i in range(4):
        A(f"ds_write_b128 v20, {vr(96+4*i,4)} offset:{L_Q+16*i}")
    A(f"""
    ds_add_u32 v4, v7 offset:{L_CNT}
    s_mov_b64 exec, -1
    s_mov_b32 s56, 0xff00ff00
    s_mov_b32 s57, 0xff00ff00
    """)
    A.lds_spin(L_CNT, 8, "v16", "v4")
    A.stamp(2)
    A(f"ds_read_b128 v[20:23], v8 offset:{L_Q}\ns_waitcnt lgkmcnt(0)")
    for i in range(4):
        A(f"v_cndmask_b32 v{24+i}, 0, v{20+i}, s[56:57]")
        A(f"v_cndmask_b32 v{20+i}, v{20+i}, 0, s[56:57]")
    A("s_waitcnt vmcnt(0)\ns_nop 0")
    D = [96, 32]
    def qk(z, i):
        u = i & 3
        if i < 4: A(f"v_mfma_f32_16x16x32_bf16 {vr(D[z]+4*u,4)}, v[20:23], {vr(32+32*z+8*u,4)}, 0")
        else: A(f"v_mfma_f32_16x16x32_bf16 {vr(D[z]+4*u,4)}, v[24:27], {vr(36+32*z+8*u,4)}, {vr(D[z]+4*u,4)}")
    def red(z, u):
        t = 112 + 4*z
        A(f"v_mov_b32_dpp v{t+u}, v{D[z]+4*u} quad_perm:[0,0,0,0] {DPPM}")
        for c in range(1, 4):
            A(f"v_add_f32_dpp v{t+u}, v{D[z]+4*u+c}, v{t+u} quad_perm:[{c},{c},{c},{c}] {DPPM}")
    for i in range(8): qk(0, i)
    for i in range(5): qk(1, i)
    for u in range(3):
        red(0, u); qk(1, 5+u)
    red(0, 3)
    for k, m in ((1, 58), (2, 60), (3, 62)):
        A(f"v_cndmask_b32 v112, v112, v{112+k}, s[{m}:{m+1}]")
    for u in range(4): red(1, u)
    A.stamp(3)
    for k, m in ((1, 58), (2, 60), (3, 62)):
        A(f"v_cndmask_b32 v116, v116, v{116+k}, s[{m}:{m+1}]")
    A.r1("v112", "v116")
    A("v_mul_f32 v112, 0x3db504f3, v112\nv_mul_f32 v116, 0x3db504f3, v116")
    A.r1("v112", "v116")
    A("v_max_f32 v113, v112, v116")
    A.row_reduce("v_max_f32", ["v113"])
    A(f"""
    s_mov_b32 exec_lo, 0x10001
    s_mov_b32 exec_hi, 0x10001
    ds_write_b32 v17, v113 offset:{L_MX}
    s_mov_b64 exec, -1
    ds_read_b32 v118, v4 offset:{L_CNT+28}
    v_mul_f32 v112, {hex(LOG2E)}, v112
    v_mul_f32 v116, {hex(LOG2E)}, v116
    s_mov_b32 s45, {hex(LOG2E)}
    """)
    A.spin_head("L_A_mx")
    A(f"""
    ds_read_b32 v113, v13 offset:{L_MX}
    s_waitcnt lgkmcnt(0)
    v_cmp_eq_u32 vcc, -1, v113
    s_cbranch_vccnz L_A_mx
    v_readfirstlane_b32 s67, v118
    """)
    A.row_reduce("v_max_f32", ["v113"])
    A(f"""
    v_fma_f32 v112, -v113, s45, v112
    v_fma_f32 v116, -v113, s45, v116
    v_exp_f32 v112, v112
    v_exp_f32 v116, v116
    s_nop 0
    v_cvt_pk_bf16_f32 v115, v112, v116
    ds_write_b16 v10, v115
    ds_write_b16_d16_hi v10, v115 offset:256
    v_add_f32 v112, v112, v116
    """)
    A.row_reduce("v_add_f32", ["v112"])
    A(f"""
    s_mov_b32 exec_lo, 0x10001
    s_mov_b32 exec_hi, 0x10001
    ds_write_b32 v17, v112 offset:{L_LS}
    s_mov_b64 exec, 1
    ds_add_u32 v4, v7 offset:{L_CNT+8}
    s_mov_b64 exec, -1
    v_mov_b32 v20, v113
    """)
    sm_idx(A, "v19", 112)
    def vreads3():
        for k in range(4):
            for half in range(2):
                A(f"ds_read_b64_tr_b16 {vr(32+4*k+2*half,2)}, v15 offset:{k*8192 + half*4096}")
    A("s_cmp_lt_u32 s67, 4\ns_cbranch_scc1 L_A_np")
    vreads3()
    A("L_A_np:")
    A.lds_spin(L_CNT+8, 8, "v16", "v4")
    A.stamp(4)
    for k in range(2):
        A(f"ds_read_b128 {vr(64+4*k,4)}, v12 offset:{L_P + (6+k)*128}")
    A(f"""
    s_cmp_lg_u32 s3, 0
    s_cbranch_scc1 L_A_nml
    ds_read_b32 v21, v13 offset:{L_LS}
    s_lshl_b32 s50, s4, 4
    s_add_u32 s50, s50, s5
    s_lshl_b32 s50, s50, 7
    s_add_u32 s50, s50, {WS_MLG}
    v_mov_b32 v24, s50
    v_mov_b32 v22, v20
    s_waitcnt lgkmcnt(0)
    """)
    A.row_reduce("v_add_f32", ["v21"])
    A("""
    v_mov_b32 v23, v21
    v_permlane16_swap_b32 v20, v22
    s_nop 0
    v_permlane16_swap_b32 v21, v23
    """)
    for r in range(20, 24): A.epack(f"v{r}", f"v{r}")
    A("s_mov_b64 exec, 1")
    A.dual_store("global_store_dwordx4", "v24", "v[20:23]")
    A("s_mov_b64 exec, -1")
    A.stamp(7)
    A("L_A_nml:")
    def vm(k, wait):
        A(f"s_waitcnt lgkmcnt({wait})")
        A(f"v_smfmac_f32_16x16x64_bf16 v[112:115], {vr(64+4*k,4)}, {vr(32+8*k,8)}, v19")
    def pd():
        A.lds_spin(L_CNT+32, 4, "v120", "v4")
        A(f"ds_read_b64 v[118:119], v14 offset:{L_PD}")
    A("s_cmp_lt_u32 s67, 4\ns_cbranch_scc1 L_A_slow")
    for k in range(2): vm(k, 1-k)
    A("L_A_pd:")
    pd()
    A("s_waitcnt lgkmcnt(0)\ns_branch L_A_fin\nL_A_slow:")
    A.spin_head("L_A_w")
    A("s_sleep 1")
    A(f"""
    ds_read2_b32 v[120:121], v4 offset0:{(L_CNT+28)//4} offset1:{(L_CNT+32)//4}
    s_waitcnt lgkmcnt(0)
    v_readfirstlane_b32 s44, v120
    v_readfirstlane_b32 s45, v121
    s_cmp_ge_u32 s45, 4
    s_cbranch_scc1 L_A_y
    s_cmp_lt_u32 s44, 4
    s_cbranch_scc1 L_A_w
    """)
    vreads3()
    for k in range(2): vm(k, 4-4*k)
    A(f"s_branch L_A_pd\nL_A_y:\nds_read_b64 v[118:119], v14 offset:{L_PD}\ns_cmp_ge_u32 s44, 4\ns_cbranch_scc1 L_A_y2")
    A.lds_spin(L_CNT+28, 4, "v120", "v4")
    A("L_A_y2:")
    vreads3()
    for k in range(2): vm(k, 4-4*k)
    A("s_nop 6\nL_A_fin:\ns_mov_b64 exec, 0xffff\nv_add_f32 v112, v112, v113\nv_add_f32 v113, v114, v115\nv_add_f32 v112, v112, v118\nv_add_f32 v113, v113, v119")
    A.epack("v116", "v112"); A.epack("v117", "v113")
    A.dual_store("global_store_dwordx2", "v6", "v[116:117]")
    A("s_mov_b64 exec, -1")
    A.stamp(6)
    if p2:
        A(f"""
        s_cmp_ge_u32 s3, {p2}
        s_cbranch_scc1 L_end
        s_lshl_b32 s44, s3, 4
        s_add_u32 s44, s44, s5                ; unit index 0..79 : tile = idx % 9, piece = 8 - idx / 9
        s_mul_i32 s45, s44, 0x1c72
        s_lshr_b32 s45, s45, 16
        s_mul_i32 s46, s45, 9
        s_sub_u32 s44, s44, s46
        s_mul_i32 s46, s4, 9
        s_add_u32 s44, s44, s46
        s_mul_i32 s44, s44, 9
        s_add_u32 s44, s44, 8
        s_sub_u32 s44, s44, s45
        s_lshl_b32 s44, s44, 13
        v_lshl_add_u32 v20, v1, 7, s44
        global_load_dword v21, v20, {sp(W2_)}{NT}
        s_waitcnt vmcnt(0)
        """)
    A("s_branch L_AX" if mx else "s_branch L_end")
    A(f"""
    L_AV:
    s_lshl_b32 s45, s48, 13
    s_mov_b32 s44, s49                    ; soffset
    v_lshrrev_b32 v5, 4, v1
    v_lshlrev_b32 v6, 1, v5
    v_and_b32 v8, 15, v1
    v_xor_b32 v6, v6, v8
    v_lshlrev_b32 v6, 4, v6
    v_lshl_or_b32 v5, v5, 8, v6
    v_xor_b32 v6, 128, v5
    s_waitcnt lgkmcnt(0)
    s_load_dword s6, {sp(WS_)}, {WS_EPOCH}
    """)
    A.srd(8, V_, 0x4000000)
    A("s_barrier")
    for hf in range(2):
        for q4 in range(2):
            A("s_mov_b32 m0, s45\ns_nop 0")
            for n in range(4):
                A(f"buffer_load_dwordx4 {'v6' if n & 1 else 'v5'}, s[8:11], s44 offen offset:{n*1024}{NT} lds")
            if q4 == 0: A("s_add_u32 s45, s45, 4096\ns_add_u32 s44, s44, 4096")
            elif hf == 0: A(f"s_add_u32 s45, s45, {4*8192 - 4096}\ns_add_u32 s44, s44, {(1 << CH) - 4096}")
    if stamps: A("s_waitcnt lgkmcnt(0)\nv_writelane_b32 v127, s98, 0")
    A.stamp(1)
    if pf:
        A(f"""
        s_cmp_lt_u32 s3, 11
        s_cbranch_scc1 L_AV_np
        s_mul_i32 s45, s5, 5
        s_add_u32 s45, s45, s3
        s_lshl_b32 s50, s45, 6
        s_sub_u32 s50, s50, {10*64}
        s_lshl_b32 s44, s51, 3
        v_add_u32 v5, s44, v4
        v_add_u32 v20, s50, v1
        v_mul_u32_u24 v21, 0x1c72, v20
        v_lshrrev_b32 v21, 16, v21
        v_mul_u32_u24 v22, 9, v21
        v_sub_u32 v22, v20, v22
        v_mul_u32_u24 v21, 9216, v21
        v_lshl_add_u32 v21, v22, 7, v21
        s_mul_i32 s50, s4, 1152
        v_add_u32 v21, s50, v21
        global_load_dword v29, v21, {sp(W1_)}{NT}
        s_mov_b64 exec, 1
        s_waitcnt vmcnt(9)
        ds_add_u32 v5, v7 offset:{L_CNT+16}
        s_waitcnt vmcnt(1)
        ds_add_u32 v5, v7 offset:{L_CNT+20}
        s_mov_b64 exec, -1
        """)
        A.stamp(5)
        A("s_waitcnt vmcnt(0) lgkmcnt(0)\ns_branch L_end\nL_AV_np:")
    if at == 3: A("""
        s_and_b32 s44, s5, 3
        s_cmp_lg_u32 s44, 0
        s_cbranch_scc1 L_AV_ns
        s_cmp_lg_u32 s3, 12
        s_cbranch_scc1 L_AV_ns
        s_lshl_b32 s44, s4, 5
        s_add_u32 s94, s94, s44
        s_addc_u32 s95, s95, 0
        s_mov_b32 s44, 1
        s_atomic_add s44, s[94:95], 0
        L_AV_ns:
        """)
    A(f"""
    s_lshl_b32 s44, s51, 3
    v_add_u32 v5, s44, v4
    s_mov_b64 exec, 1
    s_waitcnt vmcnt(8)
    ds_add_u32 v5, v7 offset:{L_CNT+16}
    """)
    if at == 1: A("""
        s_and_b32 s44, s5, 3
        s_cmp_lg_u32 s44, 0
        s_cbranch_scc1 L_AV_ns
        s_cmp_lg_u32 s3, 8
        s_cbranch_scc1 L_AV_ns
        s_lshl_b32 s44, s4, 5
        s_add_u32 s94, s94, s44
        s_addc_u32 s95, s95, 0
        s_mov_b32 s44, 1
        s_atomic_add s44, s[94:95], 0
        L_AV_ns:
        """)
    A(f"""
    s_waitcnt vmcnt(0)
    {f's_sleep {dv}' if dv else ''}
    ds_add_u32 v5, v7 offset:{L_CNT+20}
    s_mov_b64 exec, -1
    """)
    if at == 2: A("""
        s_and_b32 s44, s5, 3
        s_cmp_lg_u32 s44, 0
        s_cbranch_scc1 L_AV_ns
        s_cmp_lg_u32 s3, 8
        s_cbranch_scc1 L_AV_ns
        s_lshl_b32 s44, s4, 5
        s_add_u32 s94, s94, s44
        s_addc_u32 s95, s95, 0
        s_mov_b32 s44, 1
        s_atomic_add s44, s[94:95], 0
        L_AV_ns:
        """)
    A.stamp(5)
    A(f"""
    s_waitcnt lgkmcnt(0)
    s_cmp_ge_u32 s3, 12
    s_cbranch_scc1 {'L_AXv' if mx else 'L_end'}
    s_and_b32 s45, s3, 3
    s_lshl_b32 s45, s45, 1
    v_bfe_u32 v5, v1, 2, 3
    v_xor_b32 v5, s45, v5
    v_lshlrev_b32 v5, 5, v5
    v_lshrrev_b32 v6, 2, v1
    v_lshl_or_b32 v5, v6, 8, v5
    v_lshl_or_b32 v5, v9, 3, v5
    v_xor_b32 v6, 32, v5
    v_bfe_u32 v3, v1, 1, 1
    v_mul_u32_u24 v3, {PSTR}, v3
    v_and_b32 v2, 48, v1
    v_add3_u32 v3, v3, v2, v4
    v_and_b32 v2, 1, v1
    v_lshl_add_u32 v3, v2, 6, v3
    v_lshl_add_u32 v2, v8, 3, v4
    s_lshl_b32 s45, s45, 7
    v_add_u32 v2, s45, v2
    """)
    sm_idx(A, 'v126', 8, 8)
    def B(t, ks): return 16 + 16*(ks>>1) + 8*t + 4*(ks&1)
    def tr(ks0, ks1):
        for ks in range(ks0, ks1):
            for t in range(2):
                for half in range(2):
                    A(f"ds_read_b64_tr_b16 {vr(B(t,ks)+2*half,2)}, v{5+t} offset:{(ks&7)*8192 + half*4096}")
    def chain(ks0, ks1):
        c0 = ks0//2; n = (ks1 - ks0)//2
        free = [112, 116, 120]; loc = {}; issued = 0
        def issue():
            nonlocal issued
            while free and issued < n:
                loc[issued] = free.pop(0)
                A(f"ds_read_b128 {vr(loc[issued],4)}, v3 offset:{L_P + (c0+issued)*128}")
                issued += 1
        issue()
        for i in range(n):
            ks = ks0 + 2*i
            A(f"s_waitcnt lgkmcnt({issued - i - 1})")
            for t in range(2):
                A(f"v_smfmac_f32_16x16x64_bf16 {vr(8+4*t,4)}, {vr(loc[i],4)}, {vr(B(t,ks),8)}, v126")
            free += [B(0, ks), B(0, ks+1), loc[i]]
            issue()
    A.lds_spin(L_CNT+20, 4, "v124", "v4")
    tr(0, 8)
    A("v_add_u32 v5, 0x10000, v5\nv_add_u32 v6, 0x10000, v6")
    A.spin_head("L_AV_w")
    A("s_sleep 1")
    A(f"""
    ds_read2_b32 v[124:125], v4 offset0:{(L_CNT+8)//4} offset1:{(L_CNT+24)//4}
    s_waitcnt lgkmcnt(0)
    v_readfirstlane_b32 s44, v125
    v_readfirstlane_b32 s45, v124
    s_cmp_ge_u32 s44, 4
    s_cbranch_scc1 L_AV_x
    s_cmp_lt_u32 s45, 8
    s_cbranch_scc1 L_AV_w
    """)
    chain(0, 8)
    A.lds_spin(L_CNT+24, 4, "v124", "v4")
    tr(8, 12)
    chain(8, 12)
    A("s_branch L_AV_f\nL_AV_x:")
    tr(8, 12)
    A.lds_spin(L_CNT+8, 8, "v124", "v4")
    chain(0, 12)
    A(f"""
    L_AV_f:
    s_mov_b64 exec, 0xffff
    s_nop 5
    v_add_f32 v8, v8, v9
    v_add_f32 v9, v10, v11
    v_add_f32 v12, v12, v13
    v_add_f32 v13, v14, v15
    ds_write_b64 v2, v[8:9] offset:{L_PD}
    ds_write_b64 v2, v[12:13] offset:{L_PD+128}
    s_mov_b64 exec, 1
    ds_add_u32 v4, v7 offset:{L_CNT+32}
    s_mov_b64 exec, -1
    s_waitcnt lgkmcnt(0)
    """)
    A.stamp(8)
    if mx:
        A("L_AXv:")
        A.mktag()
        A(f"""
        L_AX:
        s_cmp_ge_u32 s5, 9
        s_cbranch_scc1 L_end
        s_lshr_b32 s44, s3, 1
        s_mul_i32 s44, s44, 4608
        s_and_b32 s45, s3, 1
        s_lshl_b32 s45, s45, 8
        s_add_u32 s44, s44, s45
        s_lshl_b32 s45, s5, 9
        s_add_u32 s44, s44, s45
        s_add_u32 s44, s44, {WS_PX}
        s_add_u32 s60, s{WS_}, s44
        s_addc_u32 s61, s{WS_+1}, 0
        s_lshl_b32 s44, s3, 8
        s_add_u32 s44, s44, {AL + L_PXL}
        v_lshl_add_u32 v2, v1, 2, s44
        v_mov_b32 v26, 0
        v_mov_b32 v27, 0
        v_mov_b32 v24, 0
        s_cmp_lg_u32 s3, 12
        s_cbranch_scc1 L_AX_p
        s_lshl_b32 s44, s5, 6
        v_add_u32 v16, s44, v1                ; column
        v_lshlrev_b32 v17, 1, v16
        global_load_ushort v80, v17, {sp(X_)}
        global_load_ushort v81, v17, {sp(X_)} offset:1152
        v_lshlrev_b32 v18, 3, v16
        v_add_u32 v17, {WS_MG + 2304}, v18
        v_add_u32 v18, {WS_MG + 9216}, v18
        s_mul_i32 s44, s4, 9216
        s_add_u32 s45, s44, {WS_RG}
        v_lshl_add_u32 v26, v16, 4, s45
        s_add_u32 s45, s44, {WS_XA}
        v_lshl_add_u32 v27, v16, 4, s45
        s_lshl_b32 s44, s4, 11
        s_lshl_b32 s45, s5, 4
        s_add_u32 s44, s44, s45
        s_add_u32 s44, s44, {WS_SG}
        v_lshl_add_u32 v24, v1, 4, s44
        v_and_b32 v25, 48, v1
        v_lshlrev_b32 v25, 3, v25
        v_and_b32 v16, 7, v1
        v_lshl_or_b32 v25, v16, 4, v25
        v_and_b32 v16, 8, v1
        v_add3_u32 v25, v25, v16, v4
        """)
        A.spin_head("L_AX_mg")
        for j, (r, o) in enumerate((("v17", -2304), ("v17", 2304), ("v18", 0))):
            A(f"global_load_dwordx2 {vr((40, 34, 42)[j],2)}, {r}, {sp(WS_)} offset:{o} sc1")
        A("s_waitcnt vmcnt(0)")
        A.tagcheck(["v41", "v35", "v43", "v43"], "v30", "v31", "L_AX_mg")
        A(f"""
        v_lshlrev_b32 v82, 16, v40
        v_and_b32 v83, 0xffff0000, v40        ; ga
        v_and_b32 v43, 0xffff0000, v42
        v_lshlrev_b32 v42, 16, v42
        v_add_f32 v42, 1.0, v42
        v_add_f32 v43, 1.0, v43
        v_cvt_pk_bf16_f32 v32, v42, v43       ; g
        v_mov_b32 v33, {TAG}
        """)
        A.dual_store("global_store_dwordx4", "v26", "v[32:35]")
        A(f"""
        v_lshlrev_b32 v80, 16, v80
        v_lshlrev_b32 v81, 16, v81
        v_lshlrev_b32 v84, 16, v32
        v_and_b32 v85, 0xffff0000, v32
        v_lshlrev_b32 v86, 16, v34
        v_and_b32 v87, 0xffff0000, v34
        v_mov_b32 v96, v84
        v_mov_b32 v97, v85
        v_mul_f32 v98, v84, v84
        v_mul_f32 v99, v85, v85
        v_mov_b32 v100, v86
        v_mov_b32 v101, v87
        v_mul_f32 v102, v86, v86
        v_mul_f32 v103, v87, v87
        v_mul_f32 v104, v84, v86
        v_mul_f32 v105, v85, v87
        v_mov_b32 v106, 0
        v_mov_b32 v107, 0
        """)
        def pstats(off):
            r = 96
            for i in range(6): A(f"v_permlane32_swap_b32 v{r+2*i}, v{r+1+2*i}")
            for i in range(6): A(f"v_add_f32 v{r+2*i}, v{r+2*i}, v{r+1+2*i}")
            A("s_nop 0")
            for i in range(3): A(f"v_permlane16_swap_b32 v{r+4*i}, v{r+2+4*i}")
            for i in range(3): A(f"v_add_f32 v{r+4*i}, v{r+4*i}, v{r+2+4*i}")
            A.row_reduce("v_add_f32", [f"v{r}", f"v{r+4}", f"v{r+8}"])
            A("s_mov_b32 exec_lo, 0x10001\ns_mov_b32 exec_hi, 0x10001")
            for i in range(3): A.epack(f"v{108+i}", f"v{r+4*i}")
            A(f"""
            global_store_dwordx3 v24, v[108:110], {sp(WS_)} offset:{off}
            v_add_u32 v111, {WS_GOFF}, v24
            global_store_dwordx3 v111, v[108:110], {sp(WS_)} offset:{off} sc1
            s_mov_b64 exec, -1
            """)
        pstats(0)
        A.stamp(9)
        A("L_AX_p:")
        A.spin_head("L_AX_q")
        if xs: A(f"s_sleep {xs}")
        SB = (8, 24, 44, 64)
        for i, b_ in enumerate(SB): A(f"s_load_dwordx16 s[{b_}:{b_+15}], s[60:61], {64*i} glc")
        A("s_waitcnt lgkmcnt(0)")
        A(f"s_xor_b32 s62, s23, {ETAG}")
        for b_ in SB[1:]: A(f"s_xor_b32 s63, s{b_+15}, {ETAG}\ns_or_b32 s62, s62, s63")
        A("s_and_b32 s62, s62, 63\ns_cbranch_scc1 L_AX_q")
        for i in range(64): A(f"v_writelane_b32 v3, s{SB[i>>4] + (i&15)}, {i}")
        A(f"""
        v_xor_b32 v3, {ETAG}, v3
        v_and_b32 v5, 63, v3
        v_cmp_ne_u32 vcc, 0, v5
        s_cbranch_vccnz L_AX_q
        ds_write_b32 v2, v3
        s_waitcnt lgkmcnt(0)
        """)
        A.stamp(10)
        A("s_barrier\ns_cmp_lg_u32 s3, 12\ns_cbranch_scc1 L_end")
        for k in (0, 4, 1, 5, 2, 6, 3, 7): A(f"ds_read_b64 {vr(96+2*k,2)}, v25 offset:{L_PXL + k*512}")
        for i in range(4): A(f"s_waitcnt lgkmcnt({6-2*i})\nv_pk_add_f32 {vr(96+2*i,2)}, {vr(96+2*i,2)}, {vr(104+2*i,2)}")
        for i in range(2): A(f"v_pk_add_f32 {vr(96+2*i,2)}, {vr(96+2*i,2)}, {vr(100+2*i,2)}")
        A("v_pk_add_f32 v[96:97], v[96:97], v[98:99]")
        A.r1("v96", "v97")
        A("v_pk_mul_f32 v[96:97], v[82:83], v[96:97]")
        A.r1("v96", "v97")
        A(f"""
        v_pk_add_f32 v[98:99], v[80:81], v[96:97]
        v_cvt_pk_bf16_f32 v96, 0, v98
        v_cvt_pk_bf16_f32 v97, 0, v99         ; x1
        v_cvt_pk_bf16_f32 v34, v98, v99
        v_pk_mul_f32 v[102:103], v[96:97], v[84:85]
        v_cvt_pk_bf16_f32 v32, v102, v103
        global_store_dwordx4 v27, v[32:35], {sp(WS_)}
        v_cvt_pk_bf16_f32 v100, 0, v102
        v_cvt_pk_bf16_f32 v101, 0, v103       ; a
        v_pk_mul_f32 v[98:99], v[96:97], v[96:97]
        v_pk_mul_f32 v[102:103], v[100:101], v[100:101]
        v_pk_mul_f32 v[104:105], v[100:101], v[84:85]
        v_pk_mul_f32 v[106:107], v[100:101], v[86:87]
        """)
        pstats(1024)
        A(f"v_add_u32 v27, {WS_GOFF}, v27\nglobal_store_dwordx4 v27, v[32:35], {sp(WS_)} sc1")
        A.stamp(11)
    A("s_branch L_end")

    A("L_W:")
    if stamps: A("v_writelane_b32 v127, s98, 0")
    A.stamp(1)
    A(f"""
    v_mov_b32 v18, {L_WCNT}
    ds_write2_b32 v18, v3, v3 offset1:1
    ds_write_b32 v18, v3 offset:8
    v_lshrrev_b32 v8, 5, v0
    v_lshlrev_b32 v8, 6, v8
    v_bfe_u32 v9, v0, 2, 2
    v_lshl_or_b32 v8, v9, 4, v8
    v_bfe_u32 v9, v0, 4, 1
    v_lshl_or_b32 v8, v9, 3, v8
    v_and_b32 v9, 3, v0
    v_lshl_or_b32 v8, v9, 1, v8
    v_add_u32 v8, {L_ACT}, v8
    v_lshrrev_b32 v2, 6, v0
    v_lshlrev_b32 v2, 7, v2
    v_and_b32 v10, 32, v0
    v_or_b32 v2, v2, v10
    v_and_b32 v10, 13, v0
    v_lshl_or_b32 v2, v10, 1, v2
    v_bfe_u32 v10, v0, 1, 1
    v_lshl_or_b32 v2, v10, 6, v2
    v_bfe_u32 v10, v0, 4, 1
    v_lshl_or_b32 v2, v10, 2, v2
    v_add_u32 v2, {L_ACT}, v2
    s_and_b32 s46, s3, 3
    v_bfe_u32 v10, v1, 3, 2
    v_xor_b32 v10, s46, v10
    v_lshlrev_b32 v10, 5, v10
    v_lshrrev_b32 v11, 2, v1
    v_lshl_or_b32 v10, v11, 7, v10
    v_lshl_or_b32 v10, v9, 3, v10
    v_and_b32 v11, 48, v1
    v_add_u32 v11, {L_ACT}, v11
    v_and_b32 v13, 1, v1
    v_mul_u32_u24 v12, {4*ASTR}, v13
    v_add_u32 v12, v11, v12
    v_lshl_add_u32 v11, v13, 6, v11
    v_and_b32 v13, 4, v1
    v_mul_u32_u24 v13, {ASTR}, v13
    v_add_u32 v13, v11, v13
    v_mov_b32 v17, 1
    s_cmp_eq_u32 s5, 8
    s_cbranch_scc1 L_KT
    s_cmp_gt_u32 s5, 8
    s_cbranch_scc1 L_M
    s_waitcnt lgkmcnt(0)
    """)
    A.mktag()
    A(f"""
    s_barrier
    {'s_waitcnt vmcnt(0)' + chr(10) + 's_branch L_end' if diag & 4 else ''}
    s_cmp_ge_u32 s3, 9
    s_cbranch_scc1 L_B_nh
    s_mul_i32 s44, s4, 4608
    s_add_u32 s44, s44, {WS_HL}
    v_lshl_add_u32 v15, v0, 3, s44
    global_load_dwordx2 v[24:25], v15, {sp(WS_)} sc1
    s_waitcnt vmcnt(0)
    """)
    A.lds_inc(0, "v18", "v17")
    A.stamp(2)
    if nb1: vtail(nb1, 2, 0)
    A("s_mov_b32 s7, 0\ns_branch L_B_chk")
    A.dual_head("L_B_h", ["v15"], init=False)
    A(f"s_sleep {ps}")
    A(f"global_load_dwordx2 v[24:25], v15, {sp(WS_)} sc1\ns_waitcnt vmcnt(0)\nL_B_chk:")
    A.tagcheck(["v25"], None, None, "L_B_h")
    A(f"""
    ds_write_b16 v2, v24
    ds_write_b16_d16_hi v2, v24 offset:{4*ASTR}
    s_waitcnt lgkmcnt(0)
    """)
    A.stamp(3)
    A(f"""
    s_barrier
    s_branch L_S5
    L_B_nh:
    """)
    if ql and qpt:
        A(f"""
        s_cmp_lg_u32 s3, 9
        s_cbranch_scc1 L_B_npt
        v_bfe_u32 v15, v1, 4, 1
        v_lshlrev_b32 v15, 17, v15            ; b*16384*8
        v_and_b32 v16, 15, v1
        v_lshl_or_b32 v15, v16, 7, v15
        s_lshl_b32 s44, s47, 11
        s_add_u32 s44, s44, {WS_QL}
        v_add_u32 v15, s44, v15
        global_load_dword v16, v15, {sp(WS_)}{' nt' if qpt == 2 else ' sc1'}
        L_B_npt:
        """)
    A("s_waitcnt vmcnt(0)")
    A.lds_inc(0, "v18", "v17")
    A(f"""
    s_cmp_ge_u32 s3, 12
    s_cbranch_scc1 L_B_m
    s_waitcnt lgkmcnt(0)
    s_barrier
    s_branch L_S5
    L_B_m:
    """)
    A.lds_spin(0, 16, "v16", "v18")
    A.stamp(2)
    A("v_mov_b32 v15, v10")
    bfrags(A, "v15")
    A(f"""
    s_lshl_b32 s44, s47, 8
    s_lshl_b32 s45, s46, 6
    s_add_u32 s44, s44, s45
    s_add_u32 s44, s44, {WS_QG}
    v_and_b32 v15, 15, v1
    v_lshlrev_b32 v15, 2, v15
    v_bfe_u32 v16, v1, 4, 1
    v_lshl_or_b32 v15, v16, 14, v15
    v_add_u32 v15, s44, v15
    """)
    if not ql: pass
    elif qlay:
        A(f"""
        v_subrev_u32 v16, {WS_QG}, v15
        v_and_b32 v17, 0x78, v16
        v_and_b32 v16, 0xffffff80, v16
        v_lshl_or_b32 v16, v16, 3, v17
        v_and_b32 v17, 1, v1
        v_lshl_add_u32 v16, v17, 7, v16
        v_lshrrev_b32 v17, 5, v1
        v_lshl_add_u32 v16, v17, 8, v16
        v_add_u32 v16, {WS_QL}, v16
        """)
    else:
        A(f"""
    v_and_b32 v16, -8, v15
    v_and_b32 v17, 1, v1
    v_lshl_add_u32 v16, v17, 15, v16
    v_lshrrev_b32 v17, 5, v1
    v_lshl_add_u32 v16, v17, 16, v16
    v_add_u32 v16, {WS_QL - WS_QG}, v16
""")
    A(f"""
    """)
    sm_idx(A, "v19")
    A("s_waitcnt lgkmcnt(0)\ns_barrier")
    gemv_sm(A, "v13", "v19")
    A(f"""
    s_nop 7
    v_add_f32 v20, v20, v21
    s_nop 1
    v_mov_b32_dpp v21, v20 quad_perm:[1,1,3,3] {DPPM}
    v_mov_b32_dpp v20, v20 quad_perm:[0,0,2,2] {DPPM}
    v_mov_b32 v23, {TAG}
    v_cvt_pk_bf16_f32 v22, v20, v21
    """)
    if ql:
        for i in range(nr//4):
            A(f"global_store_dwordx2 v16, v[22:23], {sp(WS_)}")
            if i < nr//4 - 1: A(f"v_add_u32 v16, {512 if qlay else 4*32768}, v16")
    A(f"""
    s_mov_b32 exec_lo, 0x55555555
    s_mov_b32 exec_hi, 0
    global_store_dwordx2 v15, v[22:23], {sp(WS_)} sc1
    s_mov_b64 exec, -1
    """)
    A.stamp(4)
    A("s_branch L_S5")

    A(f"""
    L_M:
    """)
    A(f"""
    s_cmp_ge_u32 s3, 9
    s_cbranch_scc1 L_M_c
    v_lshlrev_b32 v15, 1, v0
    global_load_ushort v36, v15, {sp(C_)}
    global_load_ushort v37, v15, {sp(C_)} offset:1152
    L_M_c:
    s_cmp_lt_u32 s55, {NJ}
    s_cbranch_scc1 L_M_a
    s_waitcnt {'lgkmcnt(0)' if m2 else 'vmcnt(0) lgkmcnt(0)'}
    """)
    A.mktag()
    A(f"""
    s_branch L_M_bar1
    L_M_a:
    s_cmp_ge_u32 s3, 9
    s_cbranch_scc1 L_M_bar0
    s_waitcnt vmcnt(0)
    v_lshlrev_b32 v36, 16, v36
    v_lshlrev_b32 v37, 16, v37
    v_mul_f32 v34, 0xbfb8aa3b, v36
    v_mul_f32 v35, 0xbfb8aa3b, v37
    v_exp_f32 v34, v34
    v_exp_f32 v35, v35
    s_nop 0
    v_add_f32 v34, 1.0, v34
    v_add_f32 v35, 1.0, v35
    v_min_f32 v34, 0x7f000000, v34
    v_min_f32 v35, 0x7f000000, v35
    v_rcp_f32 v38, v34
    v_rcp_f32 v39, v35
    s_nop 0
    v_mul_f32 v40, v36, v38
    v_mul_f32 v41, v37, v39
    v_fma_f32 v36, -v40, v34, v36
    v_fma_f32 v37, -v41, v35, v37
    v_fmac_f32 v40, v36, v38
    v_fmac_f32 v41, v37, v39
    v_cvt_pk_bf16_f32 v36, v40, v41
    ds_write_b16 v8, v36
    ds_write_b16_d16_hi v8, v36 offset:{4*ASTR}
    L_M_bar0:
    s_mul_i32 s44, s48, {RW*2}
    v_add_u32 v15, s44, v12
    s_mul_i32 s44, s48, {AGS}
    s_lshl_b32 s45, s49, 9
    s_add_u32 s44, s44, s45
    s_lshl_b32 s45, s46, 7
    s_add_u32 s44, s44, s45
    s_add_u32 s44, s44, {WS_AG}
    v_lshl_add_u32 v18, v1, {4 if x4 else 3}, s44
    s_waitcnt vmcnt(0) lgkmcnt(0)
    """)
    A.mktag()
    A("s_barrier")
    A.stamp(2)
    A(f"s_cmp_lt_u32 s3, 12\ns_cbranch_scc1 L_M_bar1")
    bfrags(A, "v10", 52, RW//32)
    gemv_mfma(A, "v15", nks=RW//32)
    A("s_mov_b64 exec, 0xffff\ns_nop 6\nv_add_u32 v20, 4, v20\nv_add_u32 v21, 4, v21")
    A.epack("v22", "v20", 7); A.epack("v23", "v21", 7)
    if x4:
        A(f"s_nop 0\nv_mov_b32_dpp v24, v22 row_ror:8 {DPPM}\nv_mov_b32_dpp v25, v23 row_ror:8 {DPPM}\ns_mov_b64 exec, 0xff")
        A(f"global_store_dwordx4 v18, v[22:25], {sp(WS_)} sc1\ns_mov_b64 exec, -1")
    else:
        A(f"global_store_dwordx2 v18, v[22:23], {sp(WS_)} sc1\ns_mov_b64 exec, -1")
    A.stamp(3)
    A(f"""
    L_M_bar1:
    s_sub_u32 s44, s5, 9
    s_lshl_b32 s50, s44, 1                ; slot0 = 2(u-9)
    s_add_u32 s51, s50, 1
    s_add_u32 s45, s4, 44
    s_cmp_ge_u32 s4, 4
    s_cselect_b32 s45, s45, 255
    s_cmp_eq_u32 s5, 13
    s_cselect_b32 s51, s45, s51
    s_lshl_b32 s44, s4, 1
    s_add_u32 s44, s44, s5
    s_lshl_b32 s44, s44, 1
    s_sub_u32 s44, s44, {28 - 16}
    s_add_u32 s45, s44, 1
    s_cmp_ge_u32 s5, 14
    s_cselect_b32 s50, s44, s50
    s_cselect_b32 s51, s45, s51
    v_mul_u32_u24 v19, 1152, v4
    v_lshl_add_u32 v19, v6, 4, v19
    s_mul_i32 s44, s4, {512*1152}
    v_add_u32 v19, s44, v19
    """)
    A.srd(12, WO_, 4096*1152)
    A("s_barrier")
    if pt:
        A(f"""
        s_cmp_ge_u32 s3, 3
        s_cbranch_scc1 L_M_pt
        s_cmp_lg_u32 s5, 13
        s_cbranch_scc1 L_M_pt
        s_lshl_b32 s44, s4, 14
        s_lshl_b32 s45, s3, 13
        s_add_u32 s44, s44, s45
        s_add_u32 s44, s44, {WS_OG}
        s_lshl_b32 s45, s4, 11
        s_add_u32 s45, s45, {WS_MLG}
        s_cmp_eq_u32 s3, 2
        s_cselect_b32 s44, s45, s44
        s_cselect_b32 s45, 15, 63
        v_and_b32 v16, s45, v1
        v_lshl_add_u32 v16, v16, 7, s44
        global_load_dword v20, v16, {sp(WS_)} sc1
        L_M_pt:
        """)
    if pp:
        A(f"""
        s_cmp_lg_u32 s5, {13 if pp == 1 else 15}
        s_cbranch_scc1 L_M_pp
        s_sub_u32 s44, s3, 3
        s_cmp_ge_u32 s44, 5
        s_cbranch_scc1 L_M_pp
        v_subrev_u32 v16, 192, v0
        v_min_u32 v16, 287, v16
        v_lshlrev_b32 v16, 7, v16
        v_add_u32 v16, {WS_PX}, v16
        global_load_dword v20, v16, {sp(WS_)} sc1
        L_M_pp:
        """)
    for sl, (reg, buf) in enumerate((("s50", L_BUF0), ("s51", L_BUF1))):
        A(f"""
        s_lshl_b32 s52, {reg}, 7
        s_cmp_ge_u32 {reg}, 16
        s_cbranch_scc1 L_sl{sl}_m
        v_add_u32 v16, s52, v19
        """)
        dma_tile(A, 12, "v16", 1152, buf, 64, '' if wm & 2 else NT)
        A(f"""
        s_branch L_sl{sl}_d
        L_sl{sl}_m:
        s_cmp_eq_u32 {reg}, 255
        s_cbranch_scc1 L_sl{sl}_d
        s_add_u32 s52, s52, {2304 - 16*128}
        v_add_u32 v16, s52, v14
        """)
        dma_tile(A, 8, "v16", 6912, buf, 72, '' if wm & 2 else NT)
        A(f"L_sl{sl}_d:")
    if tw < 16: A(f"""
        s_cmp_lg_u32 s3, {tw}
        s_cbranch_scc1 L_M_tr2
        s_sub_u32 s52, s5, 9
        s_bitcmp0_b32 {tm}, s52
        s_cbranch_scc1 L_M_tr2
        s_lshl_b32 s52, s4, 3
        s_add_u32 s52, s52, s5
        s_lshl_b32 s52, s52, 7
        s_add_u32 s52, s52, {WS_TR - 9*128}
        v_mov_b32 v21, s52
        v_mov_b32 v22, {TAG}
        s_mov_b64 exec, 1
        s_waitcnt vmcnt({tk})
        global_store_dword v21, v22, {sp(WS_)}
        s_mov_b64 exec, -1
        L_M_tr2:
        """)
    A(f"""
    s_waitcnt vmcnt(0)
    s_cmp_ge_u32 s3, 9
    s_cbranch_scc1 L_M_ld
    s_cmp_lt_u32 s55, {NJ}
    s_cbranch_scc1 L_M_ld
    v_lshlrev_b32 v36, 16, v36
    v_lshlrev_b32 v37, 16, v37
    v_mul_f32 v34, 0xbfb8aa3b, v36
    v_mul_f32 v35, 0xbfb8aa3b, v37
    v_exp_f32 v34, v34
    v_exp_f32 v35, v35
    s_nop 0
    v_add_f32 v34, 1.0, v34
    v_add_f32 v35, 1.0, v35
    v_min_f32 v34, 0x7f000000, v34
    v_min_f32 v35, 0x7f000000, v35
    v_rcp_f32 v38, v34
    v_rcp_f32 v39, v35
    s_nop 0
    v_mul_f32 v40, v36, v38
    v_mul_f32 v41, v37, v39
    v_fma_f32 v36, -v40, v34, v36
    v_fma_f32 v37, -v41, v35, v37
    v_fmac_f32 v40, v36, v38
    v_fmac_f32 v41, v37, v39
    v_cvt_pk_bf16_f32 v36, v40, v41
    ds_write_b16 v2, v36
    ds_write_b16_d16_hi v2, v36 offset:{4*ASTR}
    s_waitcnt lgkmcnt(0)
    L_M_ld:
    s_barrier
    """)
    A.stamp(4)
    if diag & 8: A("s_branch L_end")
    A(f"""
    s_cmp_lt_u32 s3, 8
    s_cbranch_scc1 L_H_p
    s_cmp_ge_u32 s3, 12
    s_cselect_b32 s50, s51, s50
    s_cselect_b32 s44, {L_BUF1}, 0
    v_add_u32 v17, s44, v10
    s_cmp_lt_u32 s50, 16
    s_cbranch_scc1 L_A_s4m
    s_cmp_eq_u32 s50, 255
    s_cbranch_scc1 L_H_x
    s_lshl_b32 s44, s50, 9
    s_lshl_b32 s45, s46, 7
    s_add_u32 s44, s44, s45
    s_add_u32 s44, s44, {WS_MG - 16*512}
    v_lshl_add_u32 v18, v1, 3, s44
    """)
    bfrags(A, "v17")
    A(f"v_bfe_u32 v15, v1, 1, 1\nv_mul_u32_u24 v15, {4*ASTR}, v15\nv_add_u32 v15, v11, v15")
    sm_idx(A, "v16")
    gemv_sm(A, "v15", "v16")
    A(f"""
    s_mov_b64 exec, 0xffff
    s_nop 6
    v_add_f32 v20, v20, v21
    v_add_f32 v21, v22, v23
    v_cvt_pk_bf16_f32 v22, v20, v21
    v_mov_b32 v23, {TAG}
    global_store_dwordx2 v18, v[22:23], {sp(WS_)} sc1
    s_mov_b64 exec, -1
    """)
    A.stamp(5)
    A(f"""
    L_H_x:
    {'' if mx else 's_cmp_eq_u32 s5, 15' + chr(10) + 's_cbranch_scc1 L_XR'}
    s_branch L_end
    L_H_p:
    """)
    if trig and not at and tw >= 16:
        A(f"""
        s_cmp_lg_u32 s3, 0
        s_cbranch_scc1 L_M_tr
        s_lshl_b32 s52, s4, 3
        s_add_u32 s52, s52, s5
        s_lshl_b32 s52, s52, 7
        s_add_u32 s52, s52, {WS_TR - 9*128}
        v_mov_b32 v20, s52
        v_mov_b32 v19, {TAG}
        global_store_dword v20, v19, {sp(WS_)}
        L_M_tr:
        """)
    if hw: A("s_cmp_eq_u32 s5, 14\ns_cbranch_scc1 L_HW")
    A("s_cmp_ge_u32 s5, 14\ns_cbranch_scc1 L_H_x")
    A(f"""
    s_lshl_b32 s50, s4, 4
    s_lshr_b32 s45, s3, 1
    s_lshl_b32 s45, s45, 2
    s_add_u32 s50, s50, s45
    s_and_b32 s44, s3, 1                  ; dh
    s_lshl_b32 s51, s50, 7
    s_add_u32 s51, s51, {WS_MLG}
    v_bfe_u32 v18, v1, 2, 2
    v_lshlrev_b32 v18, 7, v18
    v_lshl_add_u32 v18, v9, 2, v18
    v_add_u32 v18, s51, v18
    s_lshl_b32 s51, s50, 10
    s_lshl_b32 s45, s44, 9
    s_add_u32 s51, s51, s45
    s_add_u32 s51, s51, {WS_OG}
    v_lshl_add_u32 v17, v1, 3, s51
    s_bfe_u32 s45, s3, 0x10001
    s_mul_i32 s45, s45, {ASTR}
    s_lshr_b32 s51, s3, 2
    s_lshl_b32 s51, s51, 9
    s_add_u32 s45, s45, s51
    s_and_b32 s51, s3, 6
    s_lshl_b32 s51, s51, 7
    s_sub_u32 s45, s45, s51
    s_add_u32 s45, s45, {ASTR}
    v_add_u32 v19, s45, v2
    """)
    def oloads():
        for s_ in range(4):
            A(f"global_load_dwordx2 {vr(32+2*s_,2)}, v17, {sp(WS_)} offset:{s_*1024} sc1")
    A.dual_head("L_A_ml", ["v17", "v18"])
    A(f"""
    global_load_dword v20, v18, {sp(WS_)} sc1
    s_waitcnt vmcnt(0)
    v_xor_b32 v20, {ETAG}, v20
    v_and_b32 v21, 63, v20
    v_cmp_ne_u32 vcc, 0, v21
    s_cbranch_vccnz L_A_ml
    """)
    oloads()
    A(f"""
    v_max_f32_dpp v21, v20, v20 row_ror:4 {DPPM}
    v_mov_b32_dpp v23, v20 quad_perm:[1,1,3,3] {DPPM}
    s_nop 0
    v_max_f32_dpp v21, v21, v21 row_ror:8 {DPPM}
    v_sub_f32 v22, v20, v21
    v_mul_f32 v22, {hex(LOG2E)}, v22
    v_exp_f32 v22, v22
    s_nop 0
    v_mul_f32 v23, v22, v23
    s_nop 1
    v_add_f32_dpp v23, v23, v23 row_ror:4 {DPPM}
    s_nop 1
    v_add_f32_dpp v23, v23, v23 row_ror:8 {DPPM}
    v_rcp_f32 v23, v23
    s_nop 0
    v_mul_f32 v22, v22, v23
    """)
    A.stamp(7)
    A("s_branch L_A_ochk")
    A.dual_head("L_A_h3", ["v17"], init=False)
    oloads()
    A("L_A_ochk:")
    for s_ in range(4):
        a, b = 32+2*s_, 33+2*s_
        A(f"s_waitcnt vmcnt({3-s_})\nv_xor_b32 v{a}, {ETAG}, v{a}\nv_xor_b32 v{b}, {ETAG}, v{b}")
        A(f"v_or_b32 v20, v{a}, v{b}" if s_ == 0 else f"v_or3_b32 v20, v{a}, v{b}, v20")
        op = "v_mul_f32_dpp" if s_ == 0 else "v_fmac_f32_dpp"
        A(f"{op} v30, v22, v{a} row_newbcast:{4*s_} {DPPM}\n{op} v31, v22, v{b} row_newbcast:{4*s_+2} {DPPM}")
    A("v_and_b32 v20, 63, v20\nv_cmp_ne_u32 vcc, 0, v20\ns_cbranch_vccnz L_A_h3")
    A(f"""
    v_cvt_pk_bf16_f32 v30, v30, v31
    ds_write_b16 v19, v30
    ds_write_b16_d16_hi v19, v30 offset:256
    s_waitcnt lgkmcnt(0)
    s_barrier
    """)
    if fl: A(f"""
        s_cmp_lg_u32 s5, 9
        s_cbranch_scc1 L_H_nf
        s_cmp_gt_u32 s3, 1
        s_cbranch_scc1 L_H_nf
        v_cmp_gt_u32 vcc, 72, v0
        s_and_saveexec_b64 s[44:45], vcc
        {f's_sleep {fpos}' if fpos else ''}
        global_store_dword v40, v41, {sp(WS_)} sc1
        s_mov_b64 exec, -1
        L_H_nf:
        """)
    A.stamp(8)
    if hw:
        A(f"""
        L_HW:
        s_mul_i32 s44, s3, 6
        s_add_u32 s44, s44, s5
        s_sub_u32 s44, s44, 9
        s_cmp_ge_u32 s44, 8
        s_cbranch_scc1 L_end
        s_mul_i32 s44, s44, 4608
        s_add_u32 s44, s44, {WS_PX + 124}
        v_min_u32 v16, 35, v1
        v_lshl_add_u32 v16, v16, 7, s44
        s_mov_b32 s7, 0
        L_HW_p:
        global_load_dword v17, v16, {sp(WS_)} sc1
        s_add_u32 s7, s7, 1
        s_cmp_gt_u32 s7, {NLOC}
        s_cbranch_scc1 L_end
        s_waitcnt vmcnt(0)
        v_and_b32 v17, 63, v17
        v_cmp_ne_u32 vcc, {ETAG}, v17
        s_cbranch_vccnz L_HW_p
        """)
    A("s_branch L_end")
    A(f"""
    L_A_s4m:
    v_bfe_u32 v18, v1, 1, 1
    v_mul_u32_u24 v18, {ASTR}, v18
    v_add_u32 v18, v18, v11
    v_add_u32 v18, {ASTR}, v18
    s_mul_i32 s45, s4, 4608
    s_lshl_b32 s44, s50, 9
    s_add_u32 s45, s45, s44
    s_lshl_b32 s44, s46, 7
    s_add_u32 s45, s45, s44
    s_add_u32 s45, s45, {WS_PC if pc else WS_PX}
    v_lshl_add_u32 v19, {'v7' if pc else 'v1'}, {4 if x4 else 3}, s45
    {'v_mul_u32_u24 v16, 36864, v4' + chr(10) + 'v_add_u32 v19, v19, v16' + chr(10) + 's_mov_b32 s56, 0xff00ff00' + chr(10) + 's_mov_b32 s57, 0xff00ff00' if pc else ''}
    {f's_mov_b64 exec, 0xffff' + chr(10) + f'global_load_dword v125, v19, {sp(WS_)} sc1' + chr(10) + 's_mov_b64 exec, -1' if ppt else ''}
    """)
    bfrags(A, "v17", 56, 16)
    sm_idx(A, "v16")
    A("s_waitcnt lgkmcnt(0)\ns_barrier")
    gemv_sm(A, "v18", "v16", vb=56, depth=8, nch=8)
    A("s_mov_b64 exec, 0xffff\ns_nop 6\nv_add_f32 v20, v20, v21\nv_add_f32 v21, v22, v23")
    A.epack("v24", "v20"); A.epack("v25", "v21")
    if pc:
        A(f"""
        v_mov_b32 v26, v24
        v_mov_b32 v27, v25
        v_mov_b32_dpp v24, v24 row_ror:8 row_mask:0xf bank_mask:0xc
        v_mov_b32_dpp v25, v25 row_ror:8 row_mask:0xf bank_mask:0xc
        v_mov_b32_dpp v26, v26 row_ror:8 row_mask:0xf bank_mask:0x3
        v_mov_b32_dpp v27, v27 row_ror:8 row_mask:0xf bank_mask:0x3
        global_store_dwordx4 v19, v[24:27], {sp(WS_)} sc1
        """)
    elif x4:
        A(f"s_nop 0\nv_mov_b32_dpp v26, v24 row_ror:8 {DPPM}\nv_mov_b32_dpp v27, v25 row_ror:8 {DPPM}\ns_mov_b64 exec, 0xff")
        A(f"global_store_dwordx4 v19, v[24:27], {sp(WS_)} sc1\ns_mov_b64 exec, -1")
    else:
        A(f"global_store_dwordx2 v19, v[24:25], {sp(WS_)} sc1\ns_mov_b64 exec, -1")
    A.stamp(9)
    if wb0: A("s_cmp_lg_u32 s5, 13\ns_cbranch_scc1 L_end\ns_cmp_lg_u32 s3, 8\ns_cbranch_scc1 L_end\ns_waitcnt vmcnt(0)\nbuffer_wbl2 sc1\ns_waitcnt vmcnt(0)")
    A("s_branch L_end")

    A("L_KT:\ns_waitcnt lgkmcnt(0)")
    A.mktag()
    A(f"""
    s_cmp_ge_u32 s3, 9
    s_cbranch_scc1 L_S5
    v_lshlrev_b32 v15, 1, v0
    global_load_ushort v33, v15, {sp(X_)}
    global_load_ushort v34, v15, {sp(X_)} offset:1152
    s_mul_i32 s44, s4, 4608
    s_add_u32 s44, s44, {WS_HL}
    v_lshl_add_u32 v55, v0, 3, s44
    global_load_dword v57, v55, {sp(WS_)} sc1
    v_mul_u32_u24 v15, 36, v1
    global_load_dwordx4 v[24:27], v15, {sp(X_)}
    global_load_dwordx4 v[28:31], v15, {sp(X_)} offset:16
    global_load_dword v32, v15, {sp(X_)} offset:32
    v_lshlrev_b32 v15, 3, v0
    """)
    if x4: A("""    v_and_b32 v15, -16, v0
    v_lshlrev_b32 v15, 3, v15
    v_lshl_or_b32 v15, v7, 4, v15
    v_and_b32 v39, 8, v0
    v_or_b32 v15, v15, v39
""")
    A(f"""
    v_add_u32 v52, {WS_AG + 2304}, v15
    v_add_u32 v53, {WS_AG + 2304 + AGS}, v15
    {f'v_add_u32 v54, {WS_AG + 2304 + 2*AGS}, v15' if ks == 3 else ''}
    """)
    def ag_loads():
        for k in range(ks):
            A(f"global_load_dwordx2 {vr(40+4*k,2)}, v{52+k}, {sp(WS_)} offset:-2304 sc1")
            A(f"global_load_dwordx2 {vr(42+4*k,2)}, v{52+k}, {sp(WS_)} offset:2304 sc1")
    A(f"""
    s_mov_b32 s44, 0x3f803f80
    v_mov_b32 v35, 0
    v_mov_b32 v36, 0
    s_waitcnt vmcnt(0)
    v_mov_b32 v61, {TAG}
    """)
    for i in range(9):
        A(f"v_dot2_f32_bf16 v35, v{24+i}, s44, v35\nv_dot2_f32_bf16 v36, v{24+i}, v{24+i}, v36")
    A("s_nop 2")
    A.row_reduce("v_add_f32", ["v35", "v36"])
    A(f"""
    v_mov_b32 v37, v35
    v_mov_b32 v38, v36
    s_nop 0
    v_permlane16_swap_b32 v35, v37
    v_permlane16_swap_b32 v36, v38
    v_add_f32 v35, v35, v37
    v_add_f32 v36, v36, v38
    v_mul_f32 v35, {INV576}, v35
    v_mul_f32 v36, {INV576}, v36
    v_fma_f32 v36, -v35, v35, v36
    """)
    ln_finish(A, "v35", "v36", "v38")
    A("""
    v_readlane_b32 s48, v35, 0
    v_readlane_b32 s49, v35, 32
    v_readlane_b32 s50, v38, 0
    v_readlane_b32 s51, v38, 32
    v_readlane_b32 s52, v36, 0
    v_readlane_b32 s53, v36, 32
    v_lshlrev_b32 v33, 16, v33
    v_lshlrev_b32 v34, 16, v34
    v_subrev_f32 v33, s48, v33
    v_subrev_f32 v34, s49, v34
    """)
    A.r1("v33", "v34")
    A("""
    v_mul_f32 v37, s50, v33
    v_mul_f32 v38, s51, v34
    v_fma_f32 v33, -v37, s52, v33
    v_fma_f32 v34, -v38, s53, v34
    v_fma_f32 v33, v33, s50, v37
    v_fma_f32 v34, v34, s51, v38
    """)
    A.r1("v33", "v34")
    A("s_mov_b32 s7, 0")
    if hs: A(f"s_sleep {hs}")
    A(f"L_HR_h:\ns_add_u32 s7, s7, 1\ns_cmp_gt_u32 s7, {SPIN}\ns_cbranch_scc1 L_end\ns_sleep {hp}")
    ag_loads()
    A("s_waitcnt vmcnt(0)")
    A.etagcheck([f"v{40+i}" for i in range(4*ks)], "v39", "L_HR_h", "s100", 7)
    for i in range(4): A(f"v_add_f32 v{40+i}, v{40+i}, v{44+i}")
    if ks == 3:
        for i in range(4): A(f"v_add_f32 v{40+i}, v{40+i}, v{48+i}")
    A.r1("v40", "v41", "v42", "v43")
    A("v_add_f32 v42, 1.0, v42\nv_add_f32 v43, 1.0, v43")
    A.r1("v42", "v43")
    A("v_mul_f32 v42, v33, v42\nv_mul_f32 v43, v34, v43")
    A.r1("v42", "v43")
    A(f"""
    v_add_f32 v42, v42, v40
    v_add_f32 v43, v43, v41
    v_cvt_pk_bf16_f32 v60, v42, v43
    """)
    if dq: A(f"s_sleep {dq}")
    A.dual_store("global_store_dwordx2", "v55", "v[60:61]")
    A.stamp(3)
    A("s_branch L_S5")
    def xr_job():
        A("L_XR:")
        if diag & 8: A("s_branch L_end")
        A(f"""
        v_lshlrev_b32 v16, 2, v0
        v_min_u32 v16, 1532, v16
        v_add_u32 v16, {L_ST}, v16
        ds_write_b32 v16, v3
        v_mov_b32 v21, {L_WCNT}
        v_mov_b32 v22, 1
        s_waitcnt lgkmcnt(0)
        s_barrier
        s_cmp_eq_u32 s3, 9
        s_cbranch_scc1 L_XR_stat
        s_cmp_gt_u32 s3, 9
        s_cbranch_scc1 {'L_SP' if sprobe else 'L_end'}
        v_lshlrev_b32 v16, 1, v0
        global_load_ushort v80, v16, {sp(X_)}
        global_load_ushort v81, v16, {sp(X_)} offset:1152
        v_lshlrev_b32 v16, 3, v0
        v_add_u32 v17, {WS_MG + 2304}, v16
        v_add_u32 v18, {WS_MG + 9216}, v16
        """)
        if x4: A("""    v_and_b32 v16, -16, v0
        v_lshlrev_b32 v16, 3, v16
        v_lshl_or_b32 v16, v7, 4, v16
        v_and_b32 v30, 8, v0
        v_or_b32 v16, v16, v30
    """)
        if pc: A("s_mul_i32 s44, s4, 36864\nv_add_u32 v16, s44, v16")
        for k in range(4): A(f"v_add_u32 v{88+k}, {(WS_PC if pc else WS_PX) + 2304 + k*9216}, v16")
        A(f"""
        s_mul_i32 s44, s4, 4608
        s_lshl_b32 s44, s44, 1
        s_add_u32 s45, s44, {WS_RG}
        v_lshl_add_u32 v26, v0, 4, s45
        s_add_u32 s45, s44, {WS_XA}
        v_lshl_add_u32 v27, v0, 4, s45
        v_and_b32 v24, 48, v1
        v_lshlrev_b32 v24, 2, v24
        s_lshl_b32 s44, s3, 2
        s_add_u32 s44, s44, {L_ST}
        v_add_u32 v24, s44, v24
        s_mov_b32 s56, 0x00010001
        s_mov_b32 s57, 0x00010001
        """)
        def partial_stats(off, r):
            for i in range(6): A(f"v_permlane32_swap_b32 v{r+2*i}, v{r+1+2*i}")
            for i in range(6): A(f"v_add_f32 v{r+2*i}, v{r+2*i}, v{r+1+2*i}")
            A("s_nop 0")
            for i in range(3): A(f"v_permlane16_swap_b32 v{r+4*i}, v{r+2+4*i}")
            for i in range(3): A(f"v_add_f32 v{r+4*i}, v{r+4*i}, v{r+2+4*i}")
            A.row_reduce("v_add_f32", [f"v{r}", f"v{r+4}", f"v{r+8}"])
            A(f"""
            s_mov_b64 exec, s[56:57]
            ds_write_b32 v24, v{r} offset:{off}
            ds_write_b32 v24, v{r+4} offset:{off+256}
            ds_write_b32 v24, v{r+8} offset:{off+512}
            s_mov_b64 exec, -1
            """)
        A(f"""
        s_mov_b32 s7, 0
        s_movk_i32 s60, {0x100 if mgf else 0x1ff}
        v_mov_b32 v28, 0
        v_mov_b32 v29, 0
        s_branch L_XR_px
        """)
        for k in range(8):
            A(f"L_px_i{k}:")
            if ath: A(f"s_cbranch_vccnz L_px_a{k}")
            A(f"global_load_dwordx2 {vr(96+2*k,2)}, v{88+k//2}, {sp(WS_)} offset:{2304 if k & 1 else -2304} sc1")
            A(f"s_branch L_px_l{k}")
            if ath:
                A(f"L_px_a{k}:")
                A(f"global_atomic_or_x2 {vr(96+2*k,2)}, v{88+k//2}, v[28:29], {sp(WS_)} offset:{2304 if k & 1 else -2304} sc0 sc1")
                A(f"s_branch L_px_l{k}")
        for k in range(8):
            A(f"""
            L_px_k{k}:
            v_xor_b32 v{96+2*k}, {ETAG}, v{96+2*k}
            v_xor_b32 v{97+2*k}, {ETAG}, v{97+2*k}
            v_or_b32 v30, v{96+2*k}, v{97+2*k}
            v_and_b32 v30, 63, v30
            v_cmp_ne_u32 vcc, 0, v30
            s_cbranch_vccnz L_px_c{k}
            s_andn2_b32 s60, s60, {1 << k}
            s_cbranch_scc0 L_XR_done
            s_branch L_px_c{k}
            """)
        A("L_px_mg:")
        for j, (r, o) in enumerate((("v17", -2304), ("v17", 2304), ("v18", 0))):
            A(f"global_load_dwordx2 {vr((40, 34, 42)[j],2)}, {r}, {sp(WS_)} offset:{o} sc1")
        A("s_waitcnt vmcnt(0)")
        A.tagcheck(["v41", "v35", "v43", "v43"], "v30", "v31", "L_px_m")
        A(f"""
        s_bitset0_b32 s60, 8
        v_lshlrev_b32 v82, 16, v40
        v_and_b32 v83, 0xffff0000, v40        ; ga
        v_and_b32 v43, 0xffff0000, v42
        v_lshlrev_b32 v42, 16, v42
        v_add_f32 v42, 1.0, v42
        v_add_f32 v43, 1.0, v43
        v_cvt_pk_bf16_f32 v32, v42, v43       ; g
        v_mov_b32 v33, {TAG}
        """)
        A(f"""
        global_store_dwordx4 v26, v[32:35], {sp(WS_)}
        v_mov_b32 v36, v32
        v_mov_b32 v37, v33
        v_mov_b32 v38, v34
        v_mov_b32 v39, v35
        v_lshlrev_b32 v80, 16, v80
        v_lshlrev_b32 v81, 16, v81
        v_lshlrev_b32 v84, 16, v32
        v_and_b32 v85, 0xffff0000, v32
        v_lshlrev_b32 v86, 16, v34
        v_and_b32 v87, 0xffff0000, v34
        v_mov_b32 v44, v84
        v_mov_b32 v45, v85
        v_mul_f32 v46, v84, v84
        v_mul_f32 v47, v85, v85
        v_mov_b32 v48, v86
        v_mov_b32 v49, v87
        v_mul_f32 v50, v86, v86
        v_mul_f32 v51, v87, v87
        v_mul_f32 v52, v84, v86
        v_mul_f32 v53, v85, v87
        v_mov_b32 v54, 0
        v_mov_b32 v55, 0
        """)
        partial_stats(0, 44)
        A.lds_inc(4, "v21", "v22")
        A.stamp(6)
        A("s_movk_i32 s60, 0xff\nL_XR_px:" if mgf else "s_branch L_px_m2\nL_XR_px:")
        if ath: A(f"s_bcnt1_i32_b32 s59, s60\ns_cmp_le_u32 s59, {ath}\ns_cselect_b64 vcc, -1, 0")
        for k in range(8):
            A(f"s_bitcmp1_b32 s60, {k}\ns_cbranch_scc1 L_px_i{k}\nL_px_l{k}:")
        A(f"""
        s_add_u32 s7, s7, 1
        s_cmp_gt_u32 s7, {SPIN}
        s_cbranch_scc1 L_end
        s_bitcmp1_b32 s60, 8
        s_cbranch_scc1 L_px_mg
        L_px_m:
        s_waitcnt vmcnt(0)
        L_px_m2:
        """)
        for k in range(8):
            A(f"s_bitcmp1_b32 s60, {k}\ns_cbranch_scc1 L_px_k{k}\nL_px_c{k}:")
        A("s_cmp_lg_u32 s60, 0\ns_cbranch_scc1 L_XR_px\nL_XR_done:")
        A.stamp(10)
        for i in range(4): A(f"v_pk_add_f32 {vr(96+2*i,2)}, {vr(96+2*i,2)}, {vr(104+2*i,2)}")
        for i in range(2): A(f"v_pk_add_f32 {vr(96+2*i,2)}, {vr(96+2*i,2)}, {vr(100+2*i,2)}")
        A("v_pk_add_f32 v[96:97], v[96:97], v[98:99]")
        A.r1("v96", "v97")
        A("v_pk_mul_f32 v[96:97], v[82:83], v[96:97]")
        A.r1("v96", "v97")
        A(f"""
        v_pk_add_f32 v[98:99], v[80:81], v[96:97]
        v_cvt_pk_bf16_f32 v96, 0, v98
        v_cvt_pk_bf16_f32 v97, 0, v99         ; x1
        v_cvt_pk_bf16_f32 v34, v98, v99
        v_pk_mul_f32 v[102:103], v[96:97], v[84:85]
        v_cvt_pk_bf16_f32 v32, v102, v103
        global_store_dwordx4 v27, v[32:35], {sp(WS_)}
        v_cvt_pk_bf16_f32 v100, 0, v102
        v_cvt_pk_bf16_f32 v101, 0, v103       ; a
        v_pk_mul_f32 v[98:99], v[96:97], v[96:97]
        v_pk_mul_f32 v[102:103], v[100:101], v[100:101]
        v_pk_mul_f32 v[104:105], v[100:101], v[84:85]
        v_pk_mul_f32 v[106:107], v[100:101], v[86:87]
        """)
        partial_stats(768, 96)
        A("s_waitcnt lgkmcnt(0)\ns_barrier")
        A("s_barrier")
        A(f"v_add_u32 v27, {WS_GOFF}, v27\nglobal_store_dwordx4 v27, v[32:35], {sp(WS_)} sc1")
        A(f"v_add_u32 v26, {WS_GOFF}, v26\nglobal_store_dwordx4 v26, v[36:39], {sp(WS_)} sc1")
        A.stamp(11)
        A(f"""
        s_branch L_end
        L_XR_stat:
        v_lshlrev_b32 v22, 2, v1
        v_add_u32 v22, {L_ST}, v22
        v_lshrrev_b32 v20, 5, v1
        s_lshl_b32 s44, s4, 7
        s_add_u32 s44, s44, {WS_CF}
        v_lshl_add_u32 v20, v20, 4, s44
        global_load_dword v23, v20, {sp(WS_)} sc1
        """)
        def gather_stats(off, cnt, r, sleep):
            if sleep: A.lds_spin(cnt, 9, "v23", "v21")
            else: A("s_barrier")
            A(f"""
            ds_read_b32 v{r}, v22 offset:{off}
            ds_read_b32 v{r+2}, v22 offset:{off+256}
            ds_read_b32 v{r+4}, v22 offset:{off+512}
            s_waitcnt lgkmcnt(0)
            """)
            A.row_reduce("v_add_f32", [f"v{r}", f"v{r+2}", f"v{r+4}"])
            k3 = f2h((2.0 if sleep else -2.0)/576)
            for q in (r, r+2, r+4): A(f"v_mul_f32 v{q+1}, {k3 if q == r+4 else INV576}, v{q}")
            for q in (r, r+2, r+4): A(f"v_mul_f32 v{q}, {k3 if q == r+4 else INV576}, v{q}")
            for q in (r, r+2, r+4): A(f"v_permlane16_swap_b32 v{q}, v{q+1}")
        A("s_waitcnt vmcnt(0)")
        gather_stats(0, 4, 100, True)
        gather_stats(768, 8, 84, False)
        A(f"""
        v_fma_f32 v85, -v84, v84, v85
        v_max_f32 v85, 0, v85
        v_cvt_pk_bf16_f32 v85, 0, v85
        v_add_f32 v85, 0x3727c5ac, v85
        v_cvt_pk_bf16_f32 v85, 0, v85
        v_sqrt_f32 v85, v85
        v_cvt_pk_bf16_f32 v84, 0, v84         ; mu1
        v_cvt_pk_bf16_f32 v85, 0, v85
        v_rcp_f32 v90, v85                    ; r1
        v_fma_f32 v88, v84, v101, v88
        v_fma_f32 v86, -v84, v100, v86
        v_fma_f32 v89, v84, v104, v89
        v_fma_f32 v87, v84, v88, v87
        v_fma_f32 v86, v90, v86, v102         ; mean2
        v_fma_f32 v87, v90, v87, -v89
        v_fma_f32 v87, v90, v87, v103         ; E[h2^2]
        v_fma_f32 v87, -v86, v86, v87         ; var2
        v_max_f32 v87, 0, v87
        v_cvt_pk_bf16_f32 v87, 0, v87
        v_add_f32 v87, 0x3727c5ac, v87
        v_cvt_pk_bf16_f32 v87, 0, v87
        v_sqrt_f32 v87, v87
        v_cvt_pk_bf16_f32 v86, 0, v86         ; mu2
        v_cvt_pk_bf16_f32 v87, 0, v87
        v_rcp_f32 v94, v87                    ; r2 = c2
        v_mul_f32 v93, -v84, v90
        v_mul_f32 v92, v90, v94               ; c0
        v_mul_f32 v95, -v86, v94              ; c3
        v_mul_f32 v93, v93, v94               ; c1
        """)
        for r in range(92, 96): A.epack(f"v{r}", f"v{r}")
        A("s_mov_b32 exec_lo, 1\ns_mov_b32 exec_hi, 1")
        A.dual_store("global_store_dwordx4", "v20", "v[92:95]")
        A("s_mov_b64 exec, -1\ns_barrier")
        if wb: A(f"s_sleep {wb}\nbuffer_wbl2 sc1\ns_waitcnt vmcnt(0)")
        A.stamp(12)
        A("s_branch L_end")
    if not mx: xr_job()
    if sprobe:
        A(f"""
        L_SP:
        s_lshl_b32 s44, s3, 8
        s_lshl_b32 s45, s4, 2
        s_add_u32 s44, s44, s45
        s_add_u32 s44, s44, {WS_PX}
        s_add_u32 s62, s{WS_}, s44
        s_addc_u32 s63, s{WS_+1}, 0
        """)
        A.spin_head("L_SP_p")
        for k in range(8): A(f"s_load_dword s{64+k}, s[62:63], {k*4608} glc")
        A("s_waitcnt lgkmcnt(0)")
        for k in range(8): A(f"s_and_b32 s{64+k}, s{64+k}, 63\ns_cmp_lg_u32 s{64+k}, {ETAG}\ns_cbranch_scc1 L_SP_p")
        A.stamp(14)
        A("s_branch L_end")
    A(f"""
    L_S5:
    {'s_branch L_end' if diag & 8 else ''}
    s_mul_i32 s47, s4, 9
    """)
    if sw:
        A(f"""
        s_lshr_b32 s44, s{W1_}, 7
        s_add_u32 s44, s44, s4
        s_sub_u32 s44, 3, s44
        s_and_b32 s44, s44, 7
        s_cmp_eq_u32 s5, s44
        s_cselect_b32 s45, 8, s5
        s_cmp_eq_u32 s5, 8
        s_cselect_b32 s45, s44, s45
        s_add_u32 s47, s47, s45               ; f
        """)
    else:
        A("s_add_u32 s47, s47, s5")
    A.srd(8, W1_, 576*9216)
    A.srd(12, W2_, 4608*1152)
    A(f"""
    s_lshl_b32 s44, s47, 7
    v_mul_u32_u24 v14, 9216, v4
    v_lshl_add_u32 v14, v6, 4, v14
    v_add_u32 v14, s44, v14
    s_lshl_b32 s45, s46, 5
    s_add_u32 s44, s44, s45
    v_and_b32 v15, 15, v1
    v_lshl_add_u32 v15, v15, 1, s44
    global_load_ushort v19, v15, {sp(B1_)}
    """)
    if not w16: A(f"""
    v_mul_u32_u24 v15, 0x38f, v0
    v_lshrrev_b32 v15, 16, v15
    v_mul_u32_u24 v16, 72, v15
    v_sub_u32 v16, v0, v16
    v_and_b32 v17, 6, v15
    v_xor_b32 v16, v16, v17
    v_mul_u32_u24 v15, 1152, v15
    v_lshl_add_u32 v15, v16, 4, v15
    """)
    if w16:
        for i in range(5):
            A(f"""
            v_add_u32 v16, {1024*i}, v0
            v_mul_u32_u24 v17, 0xe39, v16
            v_lshrrev_b32 v17, 18, v17
            v_and_b32 v17, 6, v17
            v_xor_b32 v16, v16, v17
            v_lshlrev_b32 v{96+i}, 4, v16
            """)
    A(f"""
    s_mul_i32 s49, s4, 9216
    s_add_u32 s45, s49, {WS_RG}
    v_lshl_add_u32 v80, v0, 4, s45
    s_add_u32 s45, s49, {WS_XA}
    v_lshl_add_u32 v81, v0, 4, s45
    v_lshrrev_b32 v20, 2, v1
    v_mul_u32_u24 v20, 1152, v20
    v_lshl_add_u32 v20, v9, 3, v20
    v_add_u32 v20, {L_BUF1}, v20
    v_bfe_u32 v17, v1, 3, 2
    s_mul_i32 s48, s3, 3
    """)
    for i in range(3):
        A(f"s_add_u32 s44, s48, {i}\nv_xor_b32 v{92+i}, s44, v17\nv_lshl_add_u32 v{92+i}, v{92+i}, 5, v20")
    A(f"""
    s_mul_i32 s44, s48, {2*4608}
    s_lshl_b32 s45, s47, 6
    s_add_u32 s44, s44, s45
    s_add_u32 s44, s44, {WS_FG}
    v_mul_u32_u24 v20, 4608, v4
    v_lshl_add_u32 v20, v7, 3, v20
    v_add_u32 v76, s44, v20
    v_lshlrev_b32 v79, 6, v9
    v_and_b32 v20, 48, v1
    v_add_u32 v79, v79, v20
    v_add_u32 v79, {L_H1}, v79
    s_lshl_b32 s44, s47, 3
    v_add_u32 v77, s44, v7                ; col
    v_lshrrev_b32 v78, 5, v1              ; b
    v_mul_u32_u24 v82, 1152, v78
    v_lshl_add_u32 v82, v77, 1, v82
    v_lshlrev_b32 v83, 1, v77
    s_cmp_lg_u32 s3, 10
    s_cbranch_scc1 L_S5_nf
    global_load_ushort v84, v83, {sp(B2_)}
    {f'global_load_ushort v85, v82, {sp(OUT_)}' if ot else ''}
    L_S5_nf:
    v_lshlrev_b32 v83, 3, v77
    v_add_u32 v83, {WS_MG + 1728*8}, v83
    s_add_u32 s44, s49, {WS_XA + 8}
    v_lshl_add_u32 v77, v77, 4, s44
    v_lshlrev_b32 v78, 4, v78             ; 16*b
    s_mul_i32 s44, s47, 4608
    s_add_u32 s44, s44, {WS_FG + 2048}
    v_lshl_add_u32 v88, v1, 3, s44
    v_mov_b32 v21, {L_WCNT}
    v_mov_b32 v22, 1
    """)
    if nb2:
        A(f"""
        s_barrier
        s_cmp_eq_u32 s5, 8
        s_cbranch_scc1 L_vt2
        s_lshr_b32 s44, s{W1_}, 7
        s_add_u32 s44, s44, s47
        s_and_b32 s44, s44, 7
        s_cmp_eq_u32 s44, 3
        s_cbranch_scc1 L_vt2
        """)
        vtail(nb2, 3, 0)
        A("L_vt2:")
    if trig:
        A(f"""
        s_cmp_lg_u32 s3, 11
        s_cbranch_scc1 L_S5_tb
        s_lshr_b32 s44, s{W1_}, 7
        s_add_u32 s44, s44, s47
        s_and_b32 s44, s44, 7
        s_cmp_eq_u32 s44, {3 if c3 else 9}
        s_cbranch_scc1 L_S5_tb
        """)
        if at:
            A(f"""
            s_lshl_b32 s44, s4, 5
            v_mov_b32 v16, s44
            s_mov_b32 s7, 0
            L_S5_trig:
            s_sleep {ps}
            global_load_dword v17, v16, s[94:95] sc1
            s_add_u32 s7, s7, 1
            s_cmp_gt_u32 s7, {NLOC//2}
            s_cbranch_scc1 L_S5_tb
            s_waitcnt vmcnt(0)
            v_readfirstlane_b32 s44, v17
            s_cmp_lt_u32 s44, {an}
            """)
        else:
            A(f"""
        s_lshl_b32 s44, s4, 10
        s_add_u32 s44, s44, {WS_TR}
        v_lshl_add_u32 v16, v7, 7, s44
        s_mov_b32 s7, 0
        L_S5_trig:
        s_sleep {ps}
        global_load_dword v17, v16, {sp(WS_)} sc1
        s_add_u32 s7, s7, 1
        s_cmp_gt_u32 s7, {NLOC//2}
        s_cbranch_scc1 L_S5_tb
        s_waitcnt vmcnt(0)
        v_cmp_eq_u32 vcc, {TAG}, v17
        s_and_b32 s44, vcc_lo, {tm}
        s_bcnt1_i32_b32 s44, s44
        s_cmp_lt_u32 s44, {trig}
""")
        A(f"""
        s_cbranch_scc1 L_S5_trig
        L_S5_tb:
        """)
    A("s_barrier")
    A.stamp(5)
    dma_tile(A, 8, "v14", 9216, L_BUF0, 72, '' if wm & 4 else NT)
    A(f"""
    s_barrier
    """)
    if w16:
        A(f"s_mul_i32 s44, s47, {64*1152}\ns_lshl_b32 s45, s3, 10\ns_add_u32 s45, s45, {L_BUF1 + 4*16384}")
        A("s_cmp_ge_u32 s3, 8\ns_cbranch_scc1 L_S5_w4")
        for i in (4, 3, 2, 1, 0):
            A(f"s_mov_b32 m0, s45\ns_nop 0\nbuffer_load_dwordx4 v{96+i}, s[12:15], s44 offen{NT} lds")
            if i == 4: A("L_S5_w4:")
            if i: A("s_sub_u32 s45, s45, 16384")
        A("s_cmp_ge_u32 s3, 9\ns_cbranch_scc1 L_S5_hi")
        A(f"global_load_dwordx4 v[24:27], v80, {sp(WS_)} sc1\ns_waitcnt vmcnt(5)")
    else:
        A(f"""
    s_cmp_ge_u32 s3, 9
    s_cbranch_scc1 L_S5_hi
    s_mul_i32 s44, s47, {64*1152}
    s_lshl_b32 s45, s3, 10
    s_add_u32 s45, s45, {L_BUF1}
    """)
        for o in range(8):
            A(f"s_mov_b32 m0, s45\ns_add_u32 s45, s45, 9216")
            A(f"buffer_load_dwordx4 v15, s[12:15], s44 offen{'' if wm & 8 else NT} lds")
            A(f"s_add_u32 s44, s44, 9216")
        A(f"global_load_dwordx4 v[24:27], v80, {sp(WS_)} sc1\ns_waitcnt vmcnt(9)")
    A.lds_inc(4, "v21", "v22")
    if stamps and not LITE:
        A("s_waitcnt vmcnt(0)"); A.stamp(15)
    A("s_mov_b32 s7, 0\ns_branch L_S5_rgc")
    A.dual_head("L_S5_rg", ["v80", "v81"], init=False)
    A(f"s_sleep {ps}\nglobal_load_dwordx4 v[24:27], v80, {sp(WS_)} sc1\nL_S5_rgc:\ns_waitcnt vmcnt(0)")
    A.tagcheck(["v25", "v27"], "v30", "v31", "L_S5_rg")
    A(f"""
    v_mov_b32 v35, 0x3f80
    ds_write_b16 v2, v24 offset:{ASTR}
    ds_write_b16_d16_hi v2, v24 offset:{5*ASTR}
    ds_write_b16 v2, v26 offset:{2*ASTR}
    ds_write_b16_d16_hi v2, v26 offset:{6*ASTR}
    ds_write_b16 v2, v35 offset:{3*ASTR}
    ds_write_b16 v2, v35 offset:{7*ASTR}
    s_waitcnt lgkmcnt(0)
    {f's_sleep {ds5}' if ds5 else ''}
    s_barrier
    global_load_dwordx2 v[24:25], v81, {sp(WS_)} sc1
    """)
    A.stamp(6)
    def w2frags():
        for i in range(3):
            for ks in range(2):
                for half in range(2):
                    A(f"ds_read_b64_tr_b16 {vr(52+i*8+ks*4+half*2,2)}, v{92+i} offset:{(ks*32+half*16)*1152}")
    w2frags()
    A("s_branch L_S5_xac")
    A.dual_head("L_S5_xa", ["v81"], init=False)
    A(f"global_load_dwordx2 v[24:25], v81, {sp(WS_)} sc1\nL_S5_xac:\ns_waitcnt vmcnt(0)")
    A.tagcheck(["v25"], None, None, "L_S5_xa")
    A(f"""
    ds_write_b16 v2, v24
    ds_write_b16_d16_hi v2, v24 offset:{4*ASTR}
    s_waitcnt lgkmcnt(0)
    s_barrier
    """)
    A.stamp(7)
    A(f"""
    s_branch L_S5_g2
    L_S5_hi:
    s_waitcnt vmcnt({4 if w16 else 0})
    """)
    A.lds_inc(4, "v21", "v22")
    A(f"""
    s_cmp_ge_u32 s3, 12
    s_cbranch_scc1 L_S5_g1
    s_waitcnt vmcnt(0)
    s_barrier
    """)
    w2frags()
    A(f"""
    s_cmp_lg_u32 s3, 10
    s_cbranch_scc1 L_S5_h2
    global_load_dwordx2 v[86:87], v83, {sp(WS_)} sc1
    s_barrier
    s_mov_b32 s7, 0
    s_branch L_S5_gb1
    """)
    A.dual_head("L_S5_gb", ["v77"], init=False)
    A(f"""
    global_load_dwordx2 v[86:87], v83, {sp(WS_)} sc1
    L_S5_gb1:
    global_load_dwordx2 v[90:91], v77, {sp(WS_)} sc1
    s_waitcnt vmcnt(0)
    """)
    A.tagcheck(["v87", "v91"], "v30", "v31", "L_S5_gb")
    A(f"""
    v_lshrrev_b32 v86, v78, v86
    v_lshrrev_b32 v85, v78, v90
    v_lshlrev_b32 v86, 16, v86            ; gb
    v_lshlrev_b32 v85, 16, v85            ; x1
    v_lshlrev_b32 v84, 16, v84            ; b2
    s_branch L_S5_g2
    L_S5_h2:
    s_barrier
    L_S5_g2:
    s_mov_b32 s56, 0xffff0000
    s_mov_b32 s57, 0
    s_mov_b32 s58, 0
    s_mov_b32 s59, 0xffff
    """)
    sm_idx(A, "v36", 40, 12)
    A(f"""
    s_waitcnt lgkmcnt(0)
    s_barrier
    ds_read_b128 v[32:35], v79
    s_waitcnt lgkmcnt(0)
    """)
    for i in range(3):
        A(f"v_smfmac_f32_16x16x64_bf16 {vr(40+4*i,4)}, v[32:35], {vr(52+8*i,8)}, v36")
    A(f"""
    s_mov_b32 exec_hi, 0xffff
    s_nop 5
    """)
    for r in range(4): A(f"v_cndmask_b32 v{28+r}, v{40+r}, v{44+r}, s[56:57]")
    for r in range(4): A(f"v_cndmask_b32 v{28+r}, v{28+r}, v{48+r}, s[58:59]")
    A("v_add_f32 v28, v28, v29\nv_add_f32 v29, v30, v31")
    A.epack("v28", "v28"); A.epack("v29", "v29")
    A(f"global_store_dwordx2 v76, v[28:29], {sp(WS_)} sc1\ns_mov_b64 exec, -1")
    A.stamp(11)
    A(f"""
    s_cmp_lg_u32 s3, 10
    s_cbranch_scc1 L_end
    {f's_sleep {fgs}' if fgs else 's_waitcnt vmcnt(0)'}
    """)
    A.spin_head("L_S5_fg")
    for i in range(9):
        A(f"global_load_dwordx2 {vr(40+2*i,2)}, v88, {sp(WS_)} offset:{i*512-2048} sc1")
    for i in range(9):
        a, b = 40+2*i, 41+2*i
        A(f"s_waitcnt vmcnt({8-i})\nv_xor_b32 v{a}, {ETAG}, v{a}\nv_xor_b32 v{b}, {ETAG}, v{b}")
        if i == 0: A(f"v_or_b32 v30, v{a}, v{b}")
        else: A(f"v_or3_b32 v30, v{a}, v{b}, v30\nv_add_f32 v40, v40, v{a}\nv_add_f32 v41, v41, v{b}")
    A("v_and_b32 v30, 63, v30\nv_cmp_ne_u32 vcc, 0, v30\ns_cbranch_vccnz L_S5_fg")
    A.stamp(12)
    A(f"""
    v_permlane32_swap_b32 v40, v41
    v_add_f32 v40, v40, v41
    v_mov_b32 v42, v40
    s_nop 1
    v_permlane16_swap_b32 v40, v42
    v_add_f32 v40, v40, v42
    s_nop 1
    v_add_f32_dpp v40, v40, v40 row_ror:8 {DPPM}
    """)
    A.r1("v40")
    A("v_add_f32 v40, v84, v40")
    A.r1("v40")
    A("v_mul_f32 v40, v86, v40")
    A.r1("v40")
    A(f"""
    v_add_f32 v40, v85, v40
    v_cvt_pk_bf16_f32 v40, v40, v40
    s_mov_b32 exec_lo, 0xff
    s_mov_b32 exec_hi, 0xff
    global_store_short v82, v40, {sp(OUT_)}{' sc1' if osc else ''}
    s_cmp_lg_u32 s47, 0
    s_cbranch_scc1 L_S5_fin
    s_mov_b64 exec, 1
    v_mov_b32 v33, {TAG}
    global_store_dword v3, v33, {sp(WS_)} sc1
    L_S5_fin:
    s_mov_b64 exec, -1
    """)
    if probe:
        base, stride = {1: (0xB0000, 128*72), 2: (0x400000, 65536), 3: (0x1000000, 0x200000), 4: (0xB0000, 128*72)}[probe]
        A(f"s_lshl_b32 s44, s47, 7\ns_add_u32 s44, s44, {base}\nv_mov_b32 v60, s44\ns_waitcnt vmcnt(0)\ns_mov_b64 exec, 1")
        for i in range(8):
            if probe == 1: A(f"global_store_dword v60, v3, {sp(WS_)} sc1")
            else: A(f"global_load_dword v61, v60, {sp(WS_)} nt")
            A(f"s_waitcnt vmcnt(0)\nv_add_u32 v60, {stride}, v60")
        A("s_mov_b64 exec, -1")
    A.stamp(13)
    A("s_branch L_end")
    A("L_S5_g1:\nv_mov_b32 v15, v10")
    A.lds_spin(4, 16, "v16", "v21")
    A.stamp(14)
    bfrags(A, "v15")
    k0_ = -2.0 * 1.4426950408889634 * 0.7978845608028654
    A(f"""
    v_lshrrev_b32 v16, 4, v1
    s_lshl_b32 s44, s4, 7
    s_add_u32 s44, s44, {WS_CF}
    v_lshl_add_u32 v18, v16, 3, s44
    v_lshrrev_b32 v15, 5, v1
    v_lshlrev_b32 v15, 7, v15
    v_and_b32 v16, 13, v1
    v_lshl_or_b32 v15, v16, 1, v15
    v_bfe_u32 v16, v1, 1, 1
    v_lshl_or_b32 v15, v16, 6, v15
    s_lshr_b32 s44, s46, 1
    s_lshl_b32 s44, s44, 5
    s_and_b32 s45, s46, 1
    s_lshl_b32 s45, s45, 2
    s_add_u32 s44, s44, s45
    s_add_u32 s44, s44, {L_H1}
    v_add_u32 v15, s44, v15
    v_lshlrev_b32 v19, 16, v19
    v_bfe_u32 v16, v1, 1, 3
    v_mul_u32_u24 v16, {ASTR}, v16
    v_add_u32 v16, v11, v16
    v_mov_b32 v17, {f2h(k0_)}
    """)
    sm_idx(A, "v14")
    if mx:
        A(f"""
        v_and_b32 v18, 15, v1
        v_min_u32 v18, 8, v18
        v_and_b32 v24, 48, v1
        v_add_u32 v18, v18, v24
        s_lshl_b32 s44, s4, 11
        s_add_u32 s44, s44, {WS_SG}
        v_lshl_add_u32 v18, v18, 4, s44
        s_mov_b32 s56, 0x01ff01ff
        s_mov_b32 s57, 0x01ff01ff
        s_mov_b32 s58, 0xffff0000
        s_mov_b32 s59, 0xffff0000
        global_load_dword v24, v18, {sp(WS_)} offset:1024 sc1
        global_load_dwordx3 v[124:126], v18, {sp(WS_)} sc1
        s_waitcnt vmcnt(0) lgkmcnt(0)
        s_barrier
        s_mov_b32 s7, 0
        s_branch L_S5_s0c
        """)
        def sgfin(r, d, k3, lab):
            A(f"""
            v_xor_b32 v{r}, {ETAG}, v{r}
            v_xor_b32 v{r+1}, {ETAG}, v{r+1}
            v_xor_b32 v{r+2}, {ETAG}, v{r+2}
            v_or3_b32 v30, v{r}, v{r+1}, v{r+2}
            v_and_b32 v30, 63, v30
            v_cmp_ne_u32 vcc, 0, v30
            s_cbranch_vccnz {lab}
            """)
            for i in range(3): A(f"v_cndmask_b32 v{r+i}, 0, v{r+i}, s[56:57]")
            A.row_reduce("v_add_f32", [f"v{r}", f"v{r+1}", f"v{r+2}"])
            for i in range(3): A(f"v_mul_f32 {d[2*i+1]}, {k3 if i == 2 else INV576}, v{r+i}")
            for i in range(3): A(f"v_mul_f32 {d[2*i]}, {k3 if i == 2 else INV576}, v{r+i}")
            for i in range(3): A(f"v_permlane16_swap_b32 {d[2*i]}, {d[2*i+1]}")
        A.dual_head("L_S5_s0", ["v18"], init=False)
        A(f"global_load_dwordx3 v[124:126], v18, {sp(WS_)} sc1\ns_waitcnt vmcnt(0)\nL_S5_s0c:")
        sgfin(124, ["v2", "v3", "v12", "v13", "v8", "v5"], f2h(2.0/576), "L_S5_s0")
        A.dual_head("L_S5_cf", ["v18"], init=False)
        A(f"global_load_dwordx3 v[124:126], v18, {sp(WS_)} offset:1024 sc1\ns_waitcnt vmcnt(0)")
        mark = len(A.L)
        sgfin(124, [f"v{44+i}" for i in range(6)], f2h(-2.0/576), "L_S5_cf")
        A(f"""
        v_fma_f32 v45, -v44, v44, v45
        v_max_f32 v45, 0, v45
        v_cvt_pk_bf16_f32 v45, 0, v45
        v_add_f32 v45, 0x3727c5ac, v45
        v_cvt_pk_bf16_f32 v45, 0, v45
        v_sqrt_f32 v45, v45
        v_cvt_pk_bf16_f32 v44, 0, v44
        v_cvt_pk_bf16_f32 v45, 0, v45
        v_rcp_f32 v50, v45
        v_fma_f32 v48, v44, v3, v48
        v_fma_f32 v46, -v44, v2, v46
        v_fma_f32 v49, v44, v8, v49
        v_fma_f32 v47, v44, v48, v47
        v_fma_f32 v46, v50, v46, v12
        v_fma_f32 v47, v50, v47, -v49
        v_fma_f32 v47, v50, v47, v13
        v_fma_f32 v47, -v46, v46, v47
        v_max_f32 v47, 0, v47
        v_cvt_pk_bf16_f32 v47, 0, v47
        v_add_f32 v47, 0x3727c5ac, v47
        v_cvt_pk_bf16_f32 v47, 0, v47
        v_sqrt_f32 v47, v47
        v_cvt_pk_bf16_f32 v46, 0, v46
        v_cvt_pk_bf16_f32 v47, 0, v47
        v_rcp_f32 v51, v47
        v_mul_f32 v44, v44, v50
        v_cndmask_b32 v124, v50, 1.0, s[58:59]
        v_cndmask_b32 v125, v44, v46, s[58:59]
        """)
        body = A.L[mark:]; del A.L[mark:]
        chk, rest = body[:7], body[7:]
        A("\n".join(chk))
        A.stamp(9)
        A("s_barrier")
        depth = 5
        def rd(c): A(f"ds_read_b128 {vr(24 + (c % depth)*4,4)}, v16 offset:{c*128}")
        for c in range(depth): rd(c)
        A("\n".join(rest[:15])); rest = rest[15:]
        for c in range(9):
            A(f"s_waitcnt lgkmcnt({min(9, depth + c) - c - 1})")
            A(f"v_smfmac_f32_16x16x64_bf16 v[20:23], {vr(24 + (c % depth)*4,4)}, {vr(52+c*8,8)}, v14")
            if c + depth < 9: rd(c + depth)
            A("\n".join(rest[:3])); rest = rest[3:]
        A("\n".join(rest))
        A("""
        v_add_f32 v20, v20, v21
        v_add_f32 v22, v22, v23
        v_mul_f32 v124, v124, v51
        v_mul_f32 v125, -v125, v51
        """)
        A.stamp(8)
    else:
        A("s_waitcnt vmcnt(0) lgkmcnt(0)\ns_barrier\ns_barrier")
        cfl = f"global_load_dwordx2 v[124:125], v18, {sp(WS_)} sc1"
        gemv_sm(A, "v16", "v14", mid=(cfm, cfl))
        A.stamp(9)
        A("s_mov_b32 s7, 0\ns_nop 6\nv_add_f32 v20, v20, v21\nv_add_f32 v22, v22, v23\ns_branch L_S5_cfc")
        A.dual_head("L_S5_cf", ["v18"], init=False)
        A(f"{cfl}\nL_S5_cfc:\ns_waitcnt vmcnt(0)")
        A.etagcheck(["v124", "v125"], "v30", "L_S5_cf")
        A.stamp(8)
    A(f"""
    v_mul_f32 v20, v20, v124
    v_fmac_f32 v20, v22, v125
    v_mov_b32 v21, v20
    s_nop 1
    v_permlane16_swap_b32 v20, v21
    v_add_f32 v20, v20, v21
    """)
    A.r1("v20")
    A("v_add_f32 v20, v20, v19")
    A.r1("v20")
    A(f"""
    v_mul_f32 v21, v20, v20
    v_fmamk_f32 v21, v21, {f2h(k0_*0.044715)}, v17
    v_mul_f32 v21, v21, v20
    v_exp_f32 v21, v21
    s_nop 0
    v_add_f32 v21, 1.0, v21
    v_rcp_f32 v21, v21
    s_mov_b32 exec_lo, 0xffff
    s_mov_b32 exec_hi, 0xffff
    v_mul_f32 v21, v21, v20
    v_cvt_pk_bf16_f32 v21, v21, v21
    ds_write_b16 v15, v21
    s_mov_b64 exec, -1
    s_waitcnt lgkmcnt(0)
    s_barrier
    """)
    A.stamp(10)
    A("L_end:")
    if dbg:
        maps = {"A": {1: 4, 2: 5, 4: 6, 7: 7, 9: 8, 10: 9, 12: 14}, "B": {4: 3, 5: 10, 6: 11, 8: 12, 11: 13}, "M": {3: 2, 5: 15}}
        A(f"""
        s_mov_b64 exec, -1
        s_lshl_b32 s44, 1, s3
        s_and_b32 s44, s44, {(1<<0)|(1<<9)|(1<<12)|(1<<15)}
        s_cbranch_scc0 L_exit
        s_load_dwordx2 s[46:47], s[0:1], 104
        v_mov_b32 v125, 0x400
        v_readlane_b32 s44, v127, 0
        s_nop 3
        s_not_b32 s44, s44
        v_writelane_b32 v127, s44, 15
        v_writelane_b32 v125, 4, 0
        v_writelane_b32 v125, 0, 15
        s_lshr_b32 s45, s2, 3
        s_cmp_lt_u32 s45, 16
        s_cbranch_scc1 L_dbg_A
        s_cmp_lt_u32 s45, 25
        s_cbranch_scc1 L_dbg_B
        """)
        for nm in ("M", "B", "A"):
            A(f"L_dbg_{nm}:")
            for st, sl in maps[nm].items(): A(f"v_writelane_b32 v125, {sl*4}, {st}")
            A("s_branch L_dbg_go")
        A(f"""
        L_dbg_go:
        s_waitcnt lgkmcnt(0)
        v_cmp_gt_u32 vcc, 0x100, v125
        s_and_saveexec_b64 s[48:49], vcc
        global_atomic_umax v125, v127, s[46:47]
        s_endpgm
        """)
    elif stamps:
        if LITE: A("s_cmp_lg_u32 s3, 10\ns_cbranch_scc1 L_exit")
        A(f"""
        s_mov_b64 exec, 0xffff
        s_lshl_b32 s44, s2, 4
        s_add_u32 s44, s44, s3
        s_lshl_b32 s44, s44, 6
        s_add_u32 s44, s44, {WS_STAMP}
        v_lshl_add_u32 v126, v1, 2, s44
        global_store_dword v126, v127, {sp(WS_)}{' sc1' if LITE else ''}
        """)
    A("L_exit:\ns_endpgm\nL_codeend:")
    A.footer(128, 102)
    return A

HEAD = """; Fused adaLN + sliding-window GQA decode attention + channel MLP in one persistent launch (gfx950).
"""
if __name__ == "__main__":
    out = sys.argv[1]
    kw = {}
    for o in sys.argv[2:]:
        if "=" in o:
            k, v = o.split("="); kw[k] = int(v)
        elif o == "stamps": kw["stamps"] = True
        elif o == "lite": kw["stamps"] = True; LITE = True
        elif o == "nont": kw["nt"] = ""
    A = build(**kw)
    open(out, "w").write(HEAD + A.text())
```
